```python
import torch

def _softmax(x, axis=-1):
    return torch.softmax(x, dim=axis)
def _gelu(x):
    return torch.nn.functional.gelu(x, approximate="tanh")
def _silu(x):
    return torch.nn.functional.silu(x)
def _sigmoid(x):
    return torch.sigmoid(x)
def _layernorm(x, axis=-1, eps=1e-5):
    m = x.mean(dim=axis, keepdim=True)
    v = x.var(dim=axis, keepdim=True, unbiased=False)
    return (x - m) / torch.sqrt(v + eps)
def _scatter_add(tgt, idx, src, axis=0):
    return tgt.clone().index_add_(axis, idx, src)
def _segment_sum(src, seg, n):
    out = torch.zeros((n,) + src.shape[1:], dtype=src.dtype)
    return out.index_add_(0, seg, src)
def _pad(x, pw):
    flat = tuple(v for pair in reversed(pw) for v in pair)
    return torch.nn.functional.pad(x, flat)

kernel_name = 'concat_heads__mha_block__sliding_local_dilated__prompt'

def setup_inputs():

    _w = (lambda a: (lambda t: t.to(torch.bfloat16) if t.is_floating_point() else t)(torch.as_tensor(a)))
    def _A_setup():
        B, S, D, H = 1, 2048, 1024, 32
        return {
            "x": _w((lambda *s: torch.randn(*s, dtype=torch.bfloat16) * 0.1)(B, S, D)),
            "wqkv": _w((lambda *s: torch.randn(*s, dtype=torch.bfloat16) * 0.4)(D, 3 * D)),
            "wo": _w((lambda *s: torch.randn(*s, dtype=torch.bfloat16) * 0.8)(D, D)),
        }
    _A_in = _A_setup()

    def _B_setup():
        B, S, D = 1, 2048, 1024
        return {
            "x": _w((lambda *s: torch.randn(*s, dtype=torch.bfloat16) * 0.1)(B, S, D)),
            "wqkv": _w((lambda *s: torch.randn(*s, dtype=torch.bfloat16) * 0.4)(D, 3 * D)),
            "wo": _w((lambda *s: torch.randn(*s, dtype=torch.bfloat16) * 0.8)(D, D)),
        }
    _B_in = _B_setup()

    return {
        "A_x": _A_in["x"],
        "A_wqkv": _A_in["wqkv"],
        "A_wo": _A_in["wo"],
        "B_x": _B_in["x"],
        "B_wqkv": _B_in["wqkv"],
        "B_wo": _B_in["wo"],
    }

def reference(A_x, A_wqkv, A_wo, B_x, B_wqkv, B_wo):
    def _A_ref(x, wqkv, wo):
        B, S, D = x.shape
        H = 32
        Dh = D // H
        qkv = (lambda x, *d: x.permute(*d))((x @ wqkv).reshape(B, S, 3, H, Dh), 2, 0, 3, 1, 4)
        q, k, v = qkv[0], qkv[1], qkv[2]
        scores = torch.einsum("bhqd,bhkd->bhqk", q, k) * (Dh ** -0.5)
        p = _softmax(scores, axis=-1)
        o = torch.einsum("bhqk,bhkd->bhqd", p, v)
        return (lambda x, *d: x.permute(*d))(o, 0, 2, 1, 3).reshape(B, S, D) @ wo

    def _B_ref(x, wqkv, wo):
        B, S, D = x.shape
        H = 32; Dh = D // H
        W, dil = 8, 2
        qkv = (lambda x, *d: x.permute(*d))((x @ wqkv).reshape(B, S, 3, H, Dh), 2, 0, 3, 1, 4)
        q, k, v = qkv[0], qkv[1], qkv[2]
        scale = Dh ** -0.5
        pos = torch.arange(S)
        off = torch.arange(W) * dil
        idx = pos[:, None] - off[None, :]
        mask = idx >= 0
        idx_c = torch.where(mask, idx, 0).reshape(-1)
        kg = k[:, :, idx_c, :].reshape(B, H, S, W, Dh)
        vg = v[:, :, idx_c, :].reshape(B, H, S, W, Dh)
        logits = torch.einsum("bhsd,bhswd->bhsw", q, kg) * scale
        logits = torch.where(mask[None, None, :, :], logits, -1e9)
        attn = _softmax(logits, axis=-1)
        o = torch.einsum("bhsw,bhswd->bhsd", attn, vg)
        return (lambda x, *d: x.permute(*d))(o, 0, 2, 1, 3).reshape(B, S, D) @ wo

    a = _A_ref(A_x, A_wqkv, A_wo)
    b = _B_ref(B_x, B_wqkv, B_wo)
    return torch.concatenate([a, b], axis=-1)
```

```python
import struct, math, sys

NAME = "concat_heads__mha_block__sliding_local_dilated__prompt"
OPT = dict(st1=" sc1", st2=" sc1", st3="")
for a in sys.argv[2:]:
    k, v = a.split("=", 1)
    OPT[k] = v

def f2u(x): return struct.unpack("<I", struct.pack("<f", x))[0]
QSCALE = f2u(math.log2(math.e) / math.sqrt(32.0))
NEGBIG = f2u(-1e30)

QF, KF, VF, OF = 0, 8 << 20, 16 << 20, 24 << 20
WS_BYTES = 32 << 20

class A:
    def __init__(s): s.l = []
    def __call__(s, t): s.l.append("    " + t)
    def lab(s, t): s.l.append(t + ":")
    def raw(s, t): s.l.append(t)
    def text(s): return "\n".join(s.l) + "\n"

def vr(b, n=4): return f"v[{b}:{b+n-1}]"
def mfma(d, a, b, c=None):
    cc = vr(d, 16) if c is None else (c if isinstance(c, str) else vr(c, 16))
    return f"v_mfma_f32_32x32x16_bf16 {vr(d,16)}, {vr(a)}, {vr(b)}, {cc}"

def interleave(main, fill, pattern):
    out = []; k = 0
    for i, m in enumerate(main):
        for _ in range(pattern[i] if i < len(pattern) else 0):
            if k < len(fill):
                out += fill[k]; k += 1
        out.append(m)
    while k < len(fill):
        out += fill[k]; k += 1
    return out

def kd(name, vgpr, sgpr=96):
    acc = (vgpr + 3) // 4 * 4
    return f""".p2align 6
.amdhsa_kernel {name}
  .amdhsa_next_free_vgpr {vgpr}
  .amdhsa_next_free_sgpr {sgpr}
  .amdhsa_accum_offset {acc}
  .amdhsa_group_segment_fixed_size 0
  .amdhsa_kernarg_size 72
  .amdhsa_user_sgpr_count 2
  .amdhsa_user_sgpr_kernarg_segment_ptr 1
  .amdhsa_system_sgpr_workgroup_id_x 1
.end_amdhsa_kernel
"""

def head(a, name):
    a.raw(f".globl {name}\n.p2align 8\n.type {name},@function\n{name}:")

def srd(a, d, base, nbytes):
    a(f"s_mov_b32 s{d}, s{base}")
    a(f"s_mov_b32 s{d+1}, s{base+1}")
    a(f"s_mov_b32 s{d+2}, {nbytes:#x}")
    a(f"s_mov_b32 s{d+3}, 0x00020000")

def k1():
    a = A(); N = "qkv_kernel"
    head(a, N)
    XS, WS0, WS1 = 32768, 98304, 122880
    VXD, VWD, VXB, VXA, VWB, VWA, VST, VSTK = 10, 14, 18, 22, 26, 27, 28, 29
    F = [32, 52]; ACC = 72
    def A_(f, mt): return F[f] + 4*mt
    def B_(f, g): return F[f] + 8 + 4*g
    def acc(mt, g): return ACC + (mt*3 + g)*16
    a("s_cmp_ge_u32 s2, 256")
    a("s_cbranch_scc1 L1_end")
    a("s_and_b32 s20, s2, 7")
    a("s_lshr_b32 s21, s2, 3")
    a("s_lshr_b32 s22, s20, 2")
    a("s_mul_i32 s23, s22, 24")
    a("s_load_dwordx4 s[4:7], s[0:1], s23")
    a("s_load_dwordx2 s[36:37], s[0:1], 64")
    a("s_and_b32 s24, s20, 1")
    a("s_lshl_b32 s24, s24, 2")
    a("s_and_b32 s25, s21, 3")
    a("s_add_u32 s24, s24, s25")
    a("s_bfe_u32 s25, s20, 0x10001")
    a("s_lshl_b32 s25, s25, 3")
    a("s_lshr_b32 s26, s21, 2")
    a("s_add_u32 s25, s25, s26")
    a("v_lshrrev_b32 v1, 6, v0")
    a("v_and_b32 v0, 63, v0")
    a("v_readfirstlane_b32 s26, v1")
    a("v_lshrrev_b32 v2, 3, v0")
    a("v_and_b32 v3, 7, v0")
    a("v_lshrrev_b32 v4, 4, v0")
    a("v_lshlrev_b32 v5, 11, v2")
    a("v_xor_b32 v6, v3, v4")
    a("v_lshl_add_u32 v6, v6, 4, v5")
    a("v_xor_b32 v7, 64, v6")
    a(f"v_mov_b32 v{VXD}, v6")
    a(f"v_add_u32 v{VXD+1}, 16384, v7")
    a(f"v_add_u32 v{VXD+2}, 32768, v6")
    a(f"v_add_u32 v{VXD+3}, 49152, v7")
    a("v_mul_u32_u24 v5, 6144, v2")
    a("v_and_b32 v6, 1, v4")
    a("v_lshlrev_b32 v6, 2, v6")
    a("v_xor_b32 v6, v3, v6")
    a(f"v_lshl_add_u32 v{VWD}, v6, 4, v5")
    a(f"v_add_u32 v{VWD+1}, 2048, v{VWD}")
    a(f"v_add_u32 v{VWD+2}, 4096, v{VWD}")
    a("s_lshl_b32 s27, s24, 19")
    a("s_lshl_b32 s28, s26, 16")
    a("s_add_u32 s27, s27, s28")
    a("s_lshl_b32 s28, s25, 7")
    a(f"s_mul_i32 s29, s26, {8*6144}")
    a("s_add_u32 s28, s28, s29")
    a("s_lshl_b32 s29, s26, 12")
    a("s_lshl_b32 s30, s26, 10")
    a("s_waitcnt lgkmcnt(0)")
    srd(a, 8, 4, 4 << 20)
    srd(a, 12, 6, 6 << 20)
    srd(a, 16, 36, WS_BYTES)
    def dma_x(slot_sgpr_or_imm, j, soff="s27"):
        if isinstance(slot_sgpr_or_imm, int):
            m = f"s_add_u32 m0, s29, {slot_sgpr_or_imm + j*1024}"
        else:
            m = f"s_add_u32 m0, {slot_sgpr_or_imm}, {j*1024}"
        return [m, "s_nop 0", f"buffer_load_dwordx4 v{VXD+j}, s[8:11], {soff} offen lds"]
    def dma_w(slot, g, soff="s28"):
        if isinstance(slot, int):
            m = f"s_add_u32 m0, s30, {slot + g*8192}"
        else:
            m = f"s_add_u32 m0, {slot}, {g*8192}"
        return [m, "s_nop 0", f"buffer_load_dwordx4 v{VWD+g}, s[12:15], {soff} offen lds"]
    for g in range(3):
        for t in dma_w(WS0, g): a(t)
    for j in range(4):
        for t in dma_x(0, j): a(t)
    a(f"s_add_u32 s28, s28, {64*6144}")
    a("s_add_u32 s27, s27, 128")
    for g in range(3):
        for t in dma_w(WS1, g): a(t)
    for j in range(4):
        for t in dma_x(XS, j): a(t)
    a("s_add_u32 s27, s27, 128")
    for j in range(4):
        for t in dma_x(2*XS, j): a(t)
    a("s_and_b32 s31, s26, 3")
    a("s_lshr_b32 s32, s26, 2")
    a("v_and_b32 v2, 31, v0")
    a("v_lshrrev_b32 v3, 5, v0")
    a("v_bfe_u32 v4, v0, 1, 3")
    a("s_lshl_b32 s33, s31, 13")
    a("v_lshlrev_b32 v5, 7, v2")
    a("v_add_u32 v5, s33, v5")
    for ks in range(4):
        a(f"v_or_b32 v6, {2*ks}, v3")
        a("v_xor_b32 v6, v6, v4")
        a(f"v_lshl_add_u32 v{VXB+ks}, v6, 4, v5")
        a(f"v_mov_b32 v{VXA+ks}, v{VXB+ks}")
    a("v_bfe_u32 v4, v0, 2, 2")
    a("v_lshl_add_u32 v4, v3, 3, v4")
    a("v_lshlrev_b32 v4, 7, v4")
    a("v_bfe_u32 v5, v0, 4, 1")
    a("v_lshlrev_b32 v5, 5, v5")
    a("v_and_b32 v6, 3, v0")
    a("v_lshl_add_u32 v5, v6, 3, v5")
    a("s_lshl_b32 s33, s32, 6")
    a("v_add_u32 v5, s33, v5")
    a("v_bfe_u32 v6, v0, 3, 1")
    a("v_lshlrev_b32 v6, 6, v6")
    a("v_xor_b32 v5, v5, v6")
    a(f"v_add_u32 v{VWB}, v4, v5")
    a(f"v_add_u32 v{VWA}, {WS0}, v{VWB}")
    a(f"v_lshlrev_b32 v{VST}, 4, v0")
    a("v_and_b32 v4, 0x33, v0")
    a("v_and_b32 v5, 4, v0")
    a("v_lshl_or_b32 v4, v5, 1, v4")
    a("v_bfe_u32 v5, v0, 3, 1")
    a("v_lshl_or_b32 v4, v5, 2, v4")
    a(f"v_lshlrev_b32 v{VSTK}, 4, v4")
    for i in range(96): a(f"v_mov_b32 v{ACC+i}, 0")
    a("s_mov_b32 s33, 0")
    a(f"s_mov_b32 s34, {WS0}")
    a("s_mov_b32 s35, 0")
    def reads(f, ks):
        r = [[f"ds_read_b128 {vr(A_(f,0))}, v{VXA+ks}"]]
        for g in range(3):
            r.append([f"ds_read_b64_tr_b16 {vr(B_(f,g),2)}, v{VWA} offset:{g*8192+ks*2048}",
                      f"ds_read_b64_tr_b16 {vr(B_(f,g)+2,2)}, v{VWA} offset:{g*8192+ks*2048+512}"])
        r.append([f"ds_read_b128 {vr(A_(f,1))}, v{VXA+ks} offset:4096"])
        return r
    def mm(f):
        r = []
        for mt in range(2):
            r.append(mfma(acc(mt,0), B_(f,0), A_(f,mt)))
            r.append(mfma(acc(mt,1), B_(f,1), A_(f,mt)))
            r.append(mfma(acc(mt,2), A_(f,mt), B_(f,2)))
        return r
    a("s_waitcnt vmcnt(11)")
    a("s_barrier")
    for grp in reads(0, 0):
        for t in grp: a(t)
    a("s_branch L1_mid")
    a.raw(".p2align 6")
    a.lab("L1_loop")
    fill = reads(0, 0) + [dma_w("s39", g) for g in range(3)] + [dma_x("s38", 0)]
    for t in interleave(mm(1), fill, [2, 2, 1, 1, 1, 1]): a(t)
    a.lab("L1_mid2")
    a("s_waitcnt lgkmcnt(0)")
    fill = reads(1, 1) + [dma_x("s38", j) for j in (1, 2, 3)]
    for t in interleave(mm(0), fill, [0, 2, 2, 1, 1, 1]): a(t)
    a.lab("L1_b1")
    a("s_waitcnt lgkmcnt(0)")
    for t in interleave(mm(1), reads(0, 2), [0, 2, 2, 1]): a(t)
    a("s_waitcnt lgkmcnt(0)")
    upd = [
        ["s_add_u32 s38, s33, s29", "s_add_u32 s39, s34, s30"],
        [f"s_add_u32 s33, s33, {XS}", f"s_cmp_eq_u32 s33, {3*XS}", "s_cselect_b32 s33, 0, s33", f"s_xor_b32 s34, s34, {WS0 ^ WS1}"],
        ["s_add_u32 s27, s27, 128", f"s_add_u32 s28, s28, {64*6144}", "s_add_u32 s35, s35, 1"],
        ["s_cmp_le_u32 s35, 13", f"s_cselect_b32 s10, {4<<20:#x}, 0", "s_cmp_le_u32 s35, 14", f"s_cselect_b32 s14, {6<<20:#x}, 0"],
    ]
    for t in interleave(mm(0), reads(1, 3) + upd, [0, 2, 2, 1, 2, 2]): a(t)
    for ks in range(4): a(f"v_add_u32 v{VXA+ks}, s33, v{VXB+ks}")
    a(f"v_add_u32 v{VWA}, s34, v{VWB}")
    a("s_cmp_lt_u32 s35, 16")
    a("s_waitcnt vmcnt(4) lgkmcnt(0)")
    a("s_barrier")
    a("s_cbranch_scc1 L1_loop")
    for t in mm(1): a(t)
    a("s_branch L1_epi")
    a.lab("L1_mid")
    a("s_waitcnt lgkmcnt(0)")
    for t in interleave(mm(0), reads(1, 1), [0, 2, 2, 1]): a(t)
    a("s_branch L1_b1")
    a.lab("L1_epi")
    a("s_lshl_b32 s40, s22, 22")
    a("s_lshl_b32 s41, s25, 1")
    a("s_add_u32 s41, s41, s32")
    a("s_lshl_b32 s41, s41, 17")
    a("s_add_u32 s40, s40, s41")
    a("s_lshl_b32 s41, s24, 14")
    a("s_add_u32 s40, s40, s41")
    a("s_lshl_b32 s41, s31, 12")
    a("s_add_u32 s40, s40, s41")
    a(f"s_add_u32 s41, s40, {KF}")
    a(f"s_add_u32 s42, s40, {VF}")
    a(f"s_mov_b32 s43, {QSCALE:#x}")
    a("s_nop 7")
    tmp = [32, 40, 48, 56]
    n = 0
    for mt in range(2):
        for g in (1, 2, 0):
            b = acc(mt, g); t0 = tmp[n % 4]; n += 1
            if g == 0:
                for r in range(16): a(f"v_mul_f32 v{b+r}, s43, v{b+r}")
            for r in range(8): a(f"v_cvt_pk_bf16_f32 v{t0+r}, v{b+2*r}, v{b+2*r+1}")
            vo = VSTK if g == 1 else VST
            a(f"buffer_store_dwordx4 {vr(t0)}, v{vo}, s[16:19], s{40+g} offen offset:{mt*2048}{OPT['st1']}")
            a(f"buffer_store_dwordx4 {vr(t0+4)}, v{vo}, s[16:19], s{40+g} offen offset:{mt*2048+1024}{OPT['st1']}")
    a.lab("L1_end")
    a("s_endpgm")
    return a.text(), kd(N, 168), f"; @launch kernel={N} grid=(256,1,1) block=(512,1,1) lds=147456"

def sw23(x): return (x & ~12) | ((x & 4) << 1) | ((x & 8) >> 1)

def k2():
    a = A(); N = "attn_kernel"
    head(a, N)
    VL16, VKA, VVA, VIDX, VM, VT = 1, 2, 3, 4, 5, 6
    ONES = 8; Q = 12; NEG = 20; O = 36; L = 52; KB = [56, 64]; VB = [72, 80]; S = [88, 104, 120, 136]
    NV = 152
    def sm32(d, av, b): return f"v_smfmac_f32_32x32x32_bf16 {vr(d,16)}, {vr(av)}, {vr(b,8)}, v{VIDX}"
    def sm16(b): return f"v_smfmac_f32_16x16x64_bf16 {vr(L)}, {vr(ONES)}, {vr(b,8)}, v{VIDX}"
    a("s_cmp_ge_u32 s2, 256")
    a("s_cbranch_scc1 L2_end")
    a("s_load_dwordx2 s[4:5], s[0:1], 64")
    a("s_and_b32 s20, s2, 7")
    a("s_lshr_b32 s21, s2, 3")
    a("s_lshl_b32 s22, s20, 2")
    a("s_lshr_b32 s23, s21, 3")
    a("s_add_u32 s22, s22, s23")
    a("s_and_b32 s23, s21, 7")
    a("v_lshrrev_b32 v1, 6, v0")
    a("v_and_b32 v0, 63, v0")
    a("v_readfirstlane_b32 s24, v1")
    a(f"v_lshlrev_b32 v{VL16}, 4, v0")
    a("s_lshl_b32 s25, s23, 3")
    a("s_add_u32 s25, s25, s24")
    a("s_lshl_b32 s26, s22, 17")
    a("s_lshl_b32 s27, s25, 11")
    a("s_add_u32 s27, s27, s26")
    a(f"s_add_u32 s28, s27, {4<<20}")
    a(f"s_add_u32 s29, s28, {KF}")
    a(f"s_add_u32 s30, s28, {VF}")
    a("s_cmp_eq_u32 s25, 0")
    a("s_cselect_b32 s31, 0, 2048")
    a("s_cselect_b64 s[44:45], 0, -1")
    a("s_sub_u32 s32, s29, s31")
    a("s_sub_u32 s33, s30, s31")
    a("s_lshl_b32 s34, s24, 11")
    a("s_add_u32 s35, s26, s34")
    a(f"s_add_u32 s36, s35, {VF}")
    a(f"s_add_u32 s35, s35, {KF}")
    a("s_waitcnt lgkmcnt(0)")
    srd(a, 8, 4, WS_BYTES)
    srd(a, 12, 4, WS_BYTES)
    def ld(d, soff, off=0): a(f"buffer_load_dwordx4 {vr(d)}, v{VL16}, s[8:11], {soff} offen offset:{off}")
    QB = S[3]
    ld(QB, "s28"); ld(QB+4, "s28", 1024)
    ld(KB[0], "s29"); ld(KB[0]+4, "s29", 1024)
    ld(KB[1], "s32"); ld(KB[1]+4, "s32", 1024)
    ld(VB[0], "s30"); ld(VB[0]+4, "s30", 1024)
    ld(VB[1]+4, "s33", 1024)
    def dma_stage(kslot, vslot):
        r = []
        r.append([f"s_add_u32 m0, s34, {kslot}" if isinstance(kslot, int) else f"s_add_u32 m0, s34, {kslot}", "s_nop 0",
                  f"buffer_load_dwordx4 v{VL16}, s[12:15], s35 offen lds"])
        r.append([f"buffer_load_dwordx4 v{VL16}, s[12:15], s35 offen offset:1024 lds"])
        r.append([f"s_add_u32 m0, s34, {vslot}", "s_nop 0",
                  f"buffer_load_dwordx4 v{VL16}, s[12:15], s36 offen lds"])
        r.append([f"buffer_load_dwordx4 v{VL16}, s[12:15], s36 offen offset:1024 lds",
                  "s_add_u32 s35, s35, 16384", "s_add_u32 s36, s36, 16384"])
        return r
    for st in range(2):
        for grp in dma_stage(st*16384, 65536 + st*16384):
            for t in grp: a(t)
    ld(Q, "s27"); ld(Q+4, "s27", 1024)
    a(f"v_mov_b32 v{VIDX}, 0xdddddddd")
    a("v_bfe_u32 v5, v0, 2, 1")
    a("v_cmp_eq_u32 vcc, 0, v5")
    a("v_mov_b32 v6, 0x3f803f80")
    a("s_nop 0")
    a(f"v_cndmask_b32 v{ONES}, 0, v6, vcc")
    a(f"v_cndmask_b32 v{ONES+1}, 0, v6, vcc")
    a(f"v_cndmask_b32 v{ONES+2}, v6, 0, vcc")
    a(f"v_cndmask_b32 v{ONES+3}, v6, 0, vcc")
    a(f"v_mov_b32 v{VKA}, v{VL16}")
    a(f"v_add_u32 v{VVA}, 0x10000, v{VL16}")
    a(f"v_mov_b32 v7, {NEGBIG:#x}")
    def lanemask(r, prev):
        m = 0
        for l in range(64):
            q = l & 31; hh = l >> 5
            key = sw23(8*(r//4) + 4*hh + r % 4)
            d = q - key + (32 if prev else 0)
            if 0 <= d <= 14 and d % 2 == 0: m |= 1 << l
        return m
    k = 0
    for prev in (0, 1):
        for r in range(16):
            if prev and r < 8:
                assert lanemask(r, 1) == 0
                a(f"v_mov_b32 v{S[1]+r}, 0")
                continue
            m = lanemask(r, prev)
            sp = 46 + 2*(k % 4); k += 1
            a(f"s_mov_b32 s{sp}, {m & 0xffffffff:#x}")
            a(f"s_mov_b32 s{sp+1}, {m >> 32:#x}")
            if prev: a(f"s_and_b64 s[{sp}:{sp+1}], s[{sp}:{sp+1}], s[44:45]")
            a(f"v_cndmask_b32 v{S[prev]+r}, v7, 0, s[{sp}:{sp+1}]")
    for i in range(16): a(f"v_mov_b32 v{O+i}, 0")
    for i in range(4): a(f"v_mov_b32 v{L+i}, 0")
    a("s_waitcnt vmcnt(13)")
    a(mfma(S[0], KB[0], QB)); a(mfma(S[1], KB[1], QB))
    a(mfma(S[0], KB[0]+4, QB+4)); a(mfma(S[1], KB[1]+4, QB+4))
    a("s_nop 15")
    vals = [S[0]+r for r in range(16)] + [S[1]+r for r in range(8, 16)]
    a(f"v_max3_f32 v{VM}, v{vals[0]}, v{vals[1]}, v{vals[2]}")
    a(f"v_max3_f32 v{VT}, v{vals[3]}, v{vals[4]}, v{vals[5]}")
    for i in range(6, 22, 4):
        a(f"v_max3_f32 v{VM}, v{VM}, v{vals[i]}, v{vals[i+1]}")
        a(f"v_max3_f32 v{VT}, v{VT}, v{vals[i+2]}, v{vals[i+3]}")
    a(f"v_max3_f32 v{VM}, v{VM}, v{vals[22]}, v{vals[23]}")
    def xhalf_max():
        a(f"v_max_f32 v{VM}, v{VM}, v{VT}")
        a("s_nop 0")
        a(f"v_mov_b32 v{VT}, v{VM}")
        a("s_nop 1")
        a(f"v_permlane32_swap_b32 v{VM}, v{VT}")
        a("s_nop 1")
        a(f"v_max_f32 v{VM}, v{VM}, v{VT}")
    xhalf_max()
    for v in vals: a(f"v_sub_f32 v{v}, v{v}, v{VM}")
    for v in vals: a(f"v_exp_f32 v{v}, v{v}")
    a("s_waitcnt vmcnt(10)")
    a("s_nop 1")
    a(sm32(O, VB[0], S[0])); a(sm16(S[0]))
    a(sm32(O, VB[0]+4, S[0]+8)); a(sm16(S[0]+8))
    a(sm32(O, VB[1]+4, S[1]+8)); a(sm16(S[1]+8))
    a("s_lshl_b32 s37, s25, 16")
    a("s_lshl_b32 s38, s22, 11")
    a("s_add_u32 s37, s37, s38")
    a(f"s_add_u32 s37, s37, {OF}")
    a(f"s_add_u32 s38, s37, {4<<20}")
    def finish(soff, T):
        a("s_nop 15")
        a(f"v_rcp_f32 v{VT}, v{L}")
        a("s_nop 0")
        for i in range(16): a(f"v_mul_f32 v{O+i}, v{O+i}, v{VT}")
        for i in range(8): a(f"v_cvt_pk_bf16_f32 v{T+i}, v{O+2*i}, v{O+2*i+1}")
        a(f"buffer_store_dwordx4 {vr(T)}, v{VL16}, s[8:11], {soff} offen{OPT['st2']}")
        a(f"buffer_store_dwordx4 {vr(T+4)}, v{VL16}, s[8:11], {soff} offen offset:1024{OPT['st2']}")
    finish("s38", S[2])
    for i in range(16): a(f"v_mov_b32 v{O+i}, 0")
    for i in range(4): a(f"v_mov_b32 v{L+i}, 0")
    for i in range(16): a(f"v_mov_b32 v{S[3]+i}, 0")
    for i in range(8): a(f"v_mov_b32 v{VB[1]+i}, 0")
    a("s_waitcnt vmcnt(2)")
    a("s_barrier")
    for grp in dma_stage(2*16384, 65536 + 2*16384):
        for t in grp: a(t)
    a(f"ds_read_b128 {vr(KB[0])}, v{VKA}")
    a(f"ds_read_b128 {vr(KB[0]+4)}, v{VKA} offset:1024")
    a(f"ds_read_b128 {vr(KB[1])}, v{VKA} offset:2048")
    a(f"ds_read_b128 {vr(KB[1]+4)}, v{VKA} offset:3072")
    a("s_waitcnt lgkmcnt(2)")
    a(mfma(S[0], KB[0], Q, "0")); a(mfma(S[0], KB[0]+4, Q+4))
    a("s_nop 15")
    s0 = S[0]
    a(f"v_max3_f32 v{VM}, v{s0}, v{s0+1}, v{s0+2}")
    a(f"v_max3_f32 v{VT}, v{s0+3}, v{s0+4}, v{s0+5}")
    a(f"v_max3_f32 v{VM}, v{VM}, v{s0+6}, v{s0+7}")
    a(f"v_max3_f32 v{VT}, v{VT}, v{s0+8}, v{s0+9}")
    a(f"v_max3_f32 v{VM}, v{VM}, v{s0+10}, v{s0+11}")
    a(f"v_max3_f32 v{VT}, v{VT}, v{s0+12}, v{s0+13}")
    a(f"v_max3_f32 v{VM}, v{VM}, v{s0+14}, v{s0+15}")
    xhalf_max()
    for i in range(16): a(f"v_sub_f32 v{NEG+i}, 0, v{VM}")
    for i in range(16): a(f"v_sub_f32 v{s0+i}, v{s0+i}, v{VM}")
    a("s_mov_b32 s39, 0")
    a("s_mov_b32 s40, 0")
    a(f"s_mov_b32 s42, {3*16384}")
    a("s_branch L2_it2")

    def it(u, qk=True, rdk=True, rdv=True, pre=None, extra=None):
        i = (u - 2) % 8
        Sn, Sc, Sp = S[(i+1) % 4], S[i % 4], S[(i-1) % 4]
        kb_use, kb_ld = KB[(i+1) % 2], KB[i % 2]
        vb_use, vb_ld = VB[(i-1) % 2], VB[i % 2]
        a("s_waitcnt lgkmcnt(0)")
        if pre:
            for t in pre: a(t)
        rd = []
        if rdk:
            rd += [f"ds_read_b128 {vr(kb_ld)}, v{VKA} offset:{u*2048}", f"ds_read_b128 {vr(kb_ld+4)}, v{VKA} offset:{u*2048+1024}"]
        if rdv:
            rd += [f"ds_read_b128 {vr(vb_ld)}, v{VVA} offset:{i*2048}", f"ds_read_b128 {vr(vb_ld+4)}, v{VVA} offset:{i*2048+1024}"]
        ex = [f"v_exp_f32 v{Sc+r}, v{Sc+r}" for r in range(16)]
        seq = []
        if qk: seq.append(mfma(Sn, kb_use, Q, NEG))
        seq += rd[:2] + ex[0:3]
        if qk: seq.append(mfma(Sn, kb_use+4, Q+4))
        seq += rd[2:] + ex[3:6]
        seq.append(sm32(O, vb_use, Sp))
        seq += ex[6:9]
        seq.append(sm16(Sp))
        seq += ex[9:11]
        seq.append(sm32(O, vb_use+4, Sp+8))
        seq += ex[11:14]
        seq.append(sm16(Sp+8))
        seq += ex[14:16]
        if extra:
            out = []; k = 0
            for n, t in enumerate(seq):
                out.append(t)
                if n % 5 == 4 and k < len(extra):
                    out += extra[k]; k += 1
            while k < len(extra):
                out += extra[k]; k += 1
            seq = out
        for t in seq: a(t)

    a.raw(".p2align 6")
    a.lab("L2_loop")
    pre = ["s_waitcnt vmcnt(4)", "s_barrier",
           "s_add_u32 s40, s40, 16384", "s_and_b32 s40, s40, 0xffff",
           f"v_add_u32 v{VKA}, s40, v{VL16}",
           "s_cmp_le_u32 s39, 5", f"s_cselect_b32 s14, {WS_BYTES:#x}, 0",
           "s_add_u32 s43, s42, 0x10000"]
    it(0, pre=pre, extra=dma_stage("s42", "s43") + [["s_add_u32 s42, s42, 16384", "s_and_b32 s42, s42, 0xffff"]])
    it(1)
    a(f"v_add_u32 v{VVA}, 0x10000, v{VKA}")
    a.lab("L2_it2")
    for u in range(2, 8): it(u)
    a("s_add_u32 s39, s39, 1")
    a("s_cmp_lt_u32 s39, 8")
    a("s_cbranch_scc1 L2_loop")
    it(0, rdk=False)
    it(1, qk=False, rdk=False)
    a("s_waitcnt lgkmcnt(0)")
    a("s_nop 1")
    Sp = S[3]
    a(sm32(O, VB[1], Sp)); a(sm16(Sp)); a(sm32(O, VB[1]+4, Sp+8)); a(sm16(Sp+8))
    a("s_nop 15")
    a(f"v_mul_f32 v{VM}, 0, v{O}")
    for i in range(1, 16): a(f"v_fma_f32 v{VM}, v{O+i}, 0, v{VM}")
    a(f"v_add_f32 v{VM}, v{VM}, v{L}")
    a(f"v_mov_b32 v{VT}, {f2u(2.0**64):#x}")
    a(f"v_cmp_nlt_f32 vcc, v{VM}, v{VT}")
    a("s_nop 4")
    a("s_cbranch_vccnz L2_slow")
    a.lab("L2_fin")
    finish("s37", S[2])
    a.lab("L2_end")
    a("s_endpgm")
    a.lab("L2_slow")
    a(f"s_add_u32 s35, s26, {KF}")
    a(f"s_add_u32 s36, s26, {VF}")
    a(f"v_mov_b32 v{VM}, 0xff800000")
    a("s_mov_b32 s39, 0")
    a.lab("L2_s1")
    a("s_add_u32 s41, s35, s39")
    ld(KB[0], "s41"); ld(KB[0]+4, "s41", 1024)
    a("s_waitcnt vmcnt(0)")
    a(mfma(S[0], KB[0], Q, "0")); a(mfma(S[0], KB[0]+4, Q+4))
    a("s_nop 15")
    for i in range(0, 16, 2): a(f"v_max3_f32 v{VM}, v{VM}, v{s0+i}, v{s0+i+1}")
    a("s_add_u32 s39, s39, 2048")
    a(f"s_cmp_lt_u32 s39, {64*2048}")
    a("s_cbranch_scc1 L2_s1")
    a(f"v_mov_b32 v{VT}, v{VM}")
    xhalf_max()
    for i in range(16): a(f"v_sub_f32 v{NEG+i}, 0, v{VM}")
    for i in range(16): a(f"v_mov_b32 v{O+i}, 0")
    for i in range(4): a(f"v_mov_b32 v{L+i}, 0")
    a("s_mov_b32 s39, 0")
    a.lab("L2_s2")
    a("s_add_u32 s41, s35, s39")
    ld(KB[0], "s41"); ld(KB[0]+4, "s41", 1024)
    a("s_add_u32 s41, s36, s39")
    ld(VB[0], "s41"); ld(VB[0]+4, "s41", 1024)
    a("s_waitcnt vmcnt(0)")
    a(mfma(S[0], KB[0], Q, NEG)); a(mfma(S[0], KB[0]+4, Q+4))
    a("s_nop 15")
    for i in range(16): a(f"v_exp_f32 v{s0+i}, v{s0+i}")
    a("s_nop 1")
    a(sm32(O, VB[0], s0)); a(sm16(s0)); a(sm32(O, VB[0]+4, s0+8)); a(sm16(s0+8))
    a("s_nop 7")
    a("s_add_u32 s39, s39, 2048")
    a(f"s_cmp_lt_u32 s39, {64*2048}")
    a("s_cbranch_scc1 L2_s2")
    a("s_branch L2_fin")
    return a.text(), kd(N, NV), f"; @launch kernel={N} grid=(256,1,1) block=(512,1,1) lds=131072"

def k3():
    a = A(); N = NAME + "_kernel"
    head(a, N)
    VL16, VWD0, VWD1, VOB, VOA, VWB0, VWB1, VWA0, VWA1, VST = 1, 8, 9, 10, 11, 12, 13, 14, 15, 16
    F = [20, 36]; ACC = 52; NV = 116
    def Of(f, mt): return F[f] + 4*mt
    def Wf(f, nt): return F[f] + 8 + 4*nt
    def acc(mt, nt): return ACC + (mt*2 + nt)*16
    SLOT = 32768
    a("s_cmp_ge_u32 s2, 256")
    a("s_cbranch_scc1 L3_end")
    a("s_and_b32 s20, s2, 7")
    a("s_lshr_b32 s21, s2, 3")
    a("s_lshr_b32 s22, s20, 2")
    a("s_mul_i32 s23, s22, 24")
    a("s_add_u32 s23, s23, 16")
    a("s_load_dwordx2 s[4:5], s[0:1], s23")
    a("s_load_dwordx2 s[6:7], s[0:1], 64")
    a("s_load_dwordx2 s[36:37], s[0:1], 48")
    a("s_and_b32 s24, s20, 3")
    a("s_lshl_b32 s24, s24, 2")
    a("s_and_b32 s25, s21, 3")
    a("s_add_u32 s24, s24, s25")
    a("s_lshr_b32 s25, s21, 2")
    a("v_lshrrev_b32 v1, 6, v0")
    a("v_and_b32 v0, 63, v0")
    a("v_readfirstlane_b32 s26, v1")
    a(f"v_lshlrev_b32 v{VL16}, 4, v0")
    a("v_lshrrev_b32 v2, 4, v0")
    a("v_and_b32 v3, 15, v0")
    a("v_lshlrev_b32 v4, 2, v2")
    a("v_xor_b32 v3, v3, v4")
    a("v_lshlrev_b32 v3, 4, v3")
    a(f"v_lshl_add_u32 v{VWD0}, v2, 11, v3")
    a(f"v_add_u32 v{VWD1}, 8192, v{VWD0}")
    a("s_lshl_b32 s27, s22, 22")
    a("s_lshl_b32 s28, s24, 2")
    a("s_lshr_b32 s29, s26, 1")
    a("s_add_u32 s28, s28, s29")
    a("s_lshl_b32 s28, s28, 16")
    a("s_add_u32 s27, s27, s28")
    a("s_and_b32 s28, s26, 1")
    a("s_lshl_b32 s28, s28, 11")
    a("s_add_u32 s27, s27, s28")
    a(f"s_add_u32 s27, s27, {OF}")
    a("s_lshl_b32 s28, s26, 14")
    a("s_lshl_b32 s29, s25, 8")
    a("s_add_u32 s28, s28, s29")
    a("s_lshl_b32 s29, s26, 11")
    a("s_waitcnt lgkmcnt(0)")
    srd(a, 8, 6, WS_BYTES)
    srd(a, 12, 4, 2 << 20)
    srd(a, 16, 36, 8 << 20)
    def dma(slot):
        sl = str(slot)
        return [[f"s_add_u32 m0, s29, {sl}", "s_nop 0", f"buffer_load_dwordx4 v{VL16}, s[8:11], s27 offen lds"],
                [f"buffer_load_dwordx4 v{VL16}, s[8:11], s27 offen offset:1024 lds", "s_add_u32 m0, m0, 16384", "s_add_u32 s27, s27, 4096"],
                [f"buffer_load_dwordx4 v{VWD0}, s[12:15], s28 offen lds", "s_add_u32 m0, m0, 1024", "s_nop 0"],
                [f"buffer_load_dwordx4 v{VWD1}, s[12:15], s28 offen lds", f"s_add_u32 s28, s28, {64*2048}"]]
    for st in range(4):
        for grp in dma(st*SLOT):
            for t in grp: a(t)
    a("s_lshr_b32 s30, s26, 2")
    a("s_and_b32 s31, s26, 1")
    a("s_bfe_u32 s32, s26, 0x10001")
    a("s_lshl_b32 s33, s31, 13")
    a("s_lshl_b32 s34, s30, 11")
    a("s_add_u32 s33, s33, s34")
    a(f"v_add_u32 v{VOB}, s33, v{VL16}")
    a(f"v_mov_b32 v{VOA}, v{VOB}")
    a("v_lshrrev_b32 v2, 5, v0")
    a("v_bfe_u32 v3, v0, 2, 2")
    a("v_lshl_add_u32 v4, v2, 2, v3")
    a("v_lshlrev_b32 v4, 8, v4")
    a("s_lshl_b32 s33, s30, 13")
    a("s_add_u32 s33, s33, 16384")
    a("v_add_u32 v4, s33, v4")
    a("v_bfe_u32 v5, v0, 4, 1")
    a("v_lshlrev_b32 v5, 5, v5")
    a("v_and_b32 v6, 3, v0")
    a("v_lshl_add_u32 v5, v6, 3, v5")
    a("s_lshl_b32 s33, s32, 7")
    a("v_add_u32 v5, s33, v5")
    a("v_lshlrev_b32 v6, 6, v3")
    a("v_xor_b32 v5, v5, v6")
    a(f"v_add_u32 v{VWB0}, v4, v5")
    a("v_xor_b32 v5, 64, v5")
    a(f"v_add_u32 v{VWB1}, v4, v5")
    a(f"v_mov_b32 v{VWA0}, v{VWB0}")
    a(f"v_mov_b32 v{VWA1}, v{VWB1}")
    a("v_and_b32 v3, 31, v0")
    a("v_lshlrev_b32 v3, 12, v3")
    a(f"v_lshl_add_u32 v{VST}, v2, 4, v3")
    for i in range(64): a(f"v_mov_b32 v{ACC+i}, 0")
    a("s_mov_b32 s33, 0")
    a("s_mov_b32 s35, 0")
    def reads(f, kk):
        r = [[f"ds_read_b64_tr_b16 {vr(Wf(f,0),2)}, v{VWA0} offset:{kk*4096}", f"ds_read_b64_tr_b16 {vr(Wf(f,0)+2,2)}, v{VWA0} offset:{kk*4096+2048}"],
             [f"ds_read_b128 {vr(Of(f,0))}, v{VOA} offset:{kk*1024}"],
             [f"ds_read_b64_tr_b16 {vr(Wf(f,1),2)}, v{VWA1} offset:{kk*4096}", f"ds_read_b64_tr_b16 {vr(Wf(f,1)+2,2)}, v{VWA1} offset:{kk*4096+2048}"],
             [f"ds_read_b128 {vr(Of(f,1))}, v{VOA} offset:{kk*1024+4096}"]]
        return r
    def mm(f):
        return [mfma(acc(mt, nt), Wf(f, nt), Of(f, mt)) for mt in range(2) for nt in range(2)]
    a("s_waitcnt vmcnt(12)")
    a("s_barrier")
    for grp in reads(0, 0):
        for t in grp: a(t)
    a("s_branch L3_mid")
    a.raw(".p2align 6")
    a.lab("L3_loop")
    for t in interleave(mm(1), reads(0, 0) + dma("s38"), [2, 2, 2, 1]): a(t)
    a.lab("L3_mid")
    a("s_waitcnt lgkmcnt(0)")
    upd = [["s_mov_b32 s38, s33", f"s_add_u32 s33, s33, {SLOT}", f"s_and_b32 s33, s33, {4*SLOT-1:#x}", "s_add_u32 s35, s35, 1"],
           ["s_cmp_le_u32 s35, 12", f"s_cselect_b32 s10, {WS_BYTES:#x}, 0", f"s_cselect_b32 s14, {2<<20:#x}, 0"]]
    for t in interleave(mm(0), reads(1, 1) + upd, [0, 2, 2, 1]): a(t)
    a(f"v_add_u32 v{VOA}, s33, v{VOB}")
    a(f"v_add_u32 v{VWA0}, s33, v{VWB0}")
    a(f"v_add_u32 v{VWA1}, s33, v{VWB1}")
    a("s_cmp_lt_u32 s35, 16")
    a("s_waitcnt vmcnt(8) lgkmcnt(0)")
    a("s_barrier")
    a("s_cbranch_scc1 L3_loop")
    for t in mm(1): a(t)
    a("s_waitcnt vmcnt(0)")
    a("s_barrier")
    a("s_lshl_b32 s40, s26, 13")
    a("s_xor_b32 s41, s40, 32768")
    a(f"v_add_u32 v2, s40, v{VL16}")
    a(f"v_add_u32 v3, s41, v{VL16}")
    a("s_cmp_eq_u32 s30, 0")
    a("s_nop 7")
    a("s_cbranch_scc1 L3_k0")
    for i in range(8): a(f"ds_write_b128 v2, {vr(acc(0,0)+4*i)} offset:{i*1024}")
    a("s_waitcnt lgkmcnt(0)")
    for i in range(32): a(f"v_mov_b32 v{acc(0,0)+i}, v{acc(1,0)+i}")
    a("s_branch L3_ex")
    a.lab("L3_k0")
    for i in range(8): a(f"ds_write_b128 v2, {vr(acc(1,0)+4*i)} offset:{i*1024}")
    a("s_waitcnt lgkmcnt(0)")
    a.lab("L3_ex")
    a("s_barrier")
    for i in range(8): a(f"ds_read_b128 {vr(acc(1,0)+4*i)}, v3 offset:{i*1024}")
    a("s_lshl_b32 s40, s24, 19")
    a("s_lshl_b32 s41, s31, 18")
    a("s_add_u32 s40, s40, s41")
    a("s_lshl_b32 s41, s30, 17")
    a("s_add_u32 s40, s40, s41")
    a("s_lshl_b32 s41, s22, 11")
    a("s_add_u32 s40, s40, s41")
    a("s_lshl_b32 s41, s25, 8")
    a("s_add_u32 s40, s40, s41")
    a("s_lshl_b32 s41, s32, 7")
    a("s_add_u32 s40, s40, s41")
    for q in range(4):
        a(f"s_waitcnt lgkmcnt({6-2*q})")
        b = acc(0, 0) + 8*q; p = acc(1, 0) + 8*q; t0 = F[0] + 4*q
        for r in range(8): a(f"v_add_f32 v{b+r}, v{b+r}, v{p+r}")
        for r in range(4): a(f"v_cvt_pk_bf16_f32 v{t0+r}, v{b+2*r}, v{b+2*r+1}")
        a("s_nop 1")
        a(f"v_permlane32_swap_b32 v{t0}, v{t0+2}")
        a(f"v_permlane32_swap_b32 v{t0+1}, v{t0+3}")
        a("s_nop 1")
        a(f"buffer_store_dwordx4 {vr(t0)}, v{VST}, s[16:19], s40 offen offset:{q*32}{OPT['st3']}")
    a.lab("L3_end")
    a("s_endpgm")
    return a.text(), kd(N, NV), f"; @launch kernel={N} grid=(256,1,1) block=(512,1,1) lds=131072"

def main():
    ks = [k1(), k2(), k3()]
    hdr = open("cdna_kernels/" + NAME + ".s.ref").read().split("\n")
    top = [l for l in hdr if l.startswith(";") and "@launch" not in l and "Override" not in l and "grid=ceil" not in l]
    out = "\n".join(top) + "\n" + "\n".join(k[2] for k in ks) + "\n"
    out += '.amdgcn_target "amdgcn-amd-amdhsa--gfx950"\n.text\n'
    for k in ks: out += k[0]
    out += '.section .rodata,"a"\n'
    for k in ks: out += k[1]
    open(sys.argv[1], "w").write(out)

main()
```

```python
import struct, math, sys

NAME = "concat_heads__mha_block__sliding_local_dilated__prompt"
OPT = dict(st1=" sc1", st2=" sc1", st3="", dbg="0", pf1="1", pf3="1", ord1="0")
for a in sys.argv[2:]:
    k, v = a.split("=", 1)
    OPT[k] = v

def f2u(x): return struct.unpack("<I", struct.pack("<f", x))[0]
QSCALE = f2u(math.log2(math.e) / math.sqrt(32.0))
NEGBIG = f2u(-1e30)

QF, KF, VF, OF = 0, 8 << 20, 16 << 20, 24 << 20
WS_BYTES = 32 << 20

class A:
    def __init__(s): s.l = []
    def __call__(s, t): s.l.append("    " + t)
    def lab(s, t): s.l.append(t + ":")
    def raw(s, t): s.l.append(t)
    def text(s): return "\n".join(s.l) + "\n"

def vr(b, n=4): return f"v[{b}:{b+n-1}]"
def mfma(d, a, b, c=None):
    cc = vr(d, 16) if c is None else (c if isinstance(c, str) else vr(c, 16))
    return f"v_mfma_f32_32x32x16_bf16 {vr(d,16)}, {vr(a)}, {vr(b)}, {cc}"

def mfma16(d, a, b):
    return f"v_mfma_f32_16x16x32_bf16 {vr(d)}, {vr(a)}, {vr(b)}, {vr(d)}"

def spread(main, fill, start=0, every=1, per=1):
    out = []; k = 0
    for i, m in enumerate(main):
        out.append(m)
        if i >= start and (i - start) % every == 0:
            for _ in range(per):
                if k < len(fill):
                    out += fill[k]; k += 1
    while k < len(fill):
        out += fill[k]; k += 1
    return out

def interleave(main, fill, pattern):
    out = []; k = 0
    for i, m in enumerate(main):
        for _ in range(pattern[i] if i < len(pattern) else 0):
            if k < len(fill):
                out += fill[k]; k += 1
        out.append(m)
    while k < len(fill):
        out += fill[k]; k += 1
    return out

def kd(name, vgpr, sgpr=96):
    acc = (vgpr + 3) // 4 * 4
    return f""".p2align 6
.amdhsa_kernel {name}
  .amdhsa_next_free_vgpr {vgpr}
  .amdhsa_next_free_sgpr {sgpr}
  .amdhsa_accum_offset {acc}
  .amdhsa_group_segment_fixed_size 0
  .amdhsa_kernarg_size 72
  .amdhsa_user_sgpr_count 2
  .amdhsa_user_sgpr_kernarg_segment_ptr 1
  .amdhsa_system_sgpr_workgroup_id_x 1
.end_amdhsa_kernel
"""

DBG = OPT["dbg"] == "1"
def stamp(a, n):
    if DBG:
        a(f"s_memtime s[{64+2*n}:{65+2*n}]")
def rstamp(a, n):
    if DBG:
        a(f"s_memrealtime s[{64+2*n}:{65+2*n}]")
def dump(a, kidx, wave_sgpr, nst=8):
    if not DBG: return
    a("s_load_dwordx2 s[88:89], s[0:1], 64")
    a("s_waitcnt lgkmcnt(0) vmcnt(0)")
    a(f"s_memtime s[{64+2*(nst-2)}:{65+2*(nst-2)}]")
    a(f"s_memrealtime s[{64+2*(nst-1)}:{65+2*(nst-1)}]")
    a("s_waitcnt lgkmcnt(0)")
    a("s_mov_b32 s90, 0x8000000")
    a("s_mov_b32 s91, 0x00020000")
    a("s_lshl_b32 s92, s2, 3")
    a(f"s_add_u32 s92, s92, {wave_sgpr}")
    a("s_lshl_b32 s92, s92, 6")
    a(f"s_add_u32 s92, s92, {(64+kidx) << 20}")
    a("v_mov_b32 v2, 0")
    for n in range(nst):
        a(f"v_mov_b32 v3, s{64+2*n}")
        a(f"buffer_store_dword v3, v2, s[88:91], s92 offen offset:{4*n}")
        a("s_nop 1")

def head(a, name):
    a.raw(f".globl {name}\n.p2align 8\n.type {name},@function\n{name}:")

def srd(a, d, base, nbytes):
    a(f"s_mov_b32 s{d}, s{base}")
    a(f"s_mov_b32 s{d+1}, s{base+1}")
    a(f"s_mov_b32 s{d+2}, {nbytes:#x}")
    a(f"s_mov_b32 s{d+3}, 0x00020000")

def k1():
    a = A(); N = "qkv_kernel"
    head(a, N)
    XS, WS0, WS1 = 32768, 98304, 122880
    VXD, VWD, VXB, VXA, VWB, VWA, VST, VPF, VPD = 10, 14, 18, 20, 22, 24, 26, 27, 28
    F = [32, 72]; ACC = 112; NV = 208
    def A_(f, mt): return F[f] + 4*mt
    def B_(f, nb): return F[f] + 16 + 4*nb
    def acc(mt, nb): return ACC + (mt*6 + nb)*4
    a("s_cmp_ge_u32 s2, 256")
    a("s_cbranch_scc1 L1_end")
    stamp(a, 0); rstamp(a, 1)
    a("s_and_b32 s20, s2, 7")
    a("s_lshr_b32 s21, s2, 3")
    a("s_lshr_b32 s22, s20, 2")
    a("s_mul_i32 s23, s22, 24")
    a("s_load_dwordx4 s[4:7], s[0:1], s23")
    a("s_load_dwordx2 s[36:37], s[0:1], 64")
    a("s_and_b32 s24, s20, 1")
    a("s_lshl_b32 s24, s24, 2")
    a("s_and_b32 s25, s21, 3")
    a("s_add_u32 s24, s24, s25")
    a("s_bfe_u32 s25, s20, 0x10001")
    a("s_lshl_b32 s25, s25, 3")
    a("s_lshr_b32 s26, s21, 2")
    a("s_add_u32 s25, s25, s26")
    a("v_lshrrev_b32 v1, 6, v0")
    a("v_and_b32 v0, 63, v0")
    a("v_readfirstlane_b32 s26, v1")
    a("v_lshrrev_b32 v2, 3, v0")
    a("v_and_b32 v3, 7, v0")
    a("v_lshrrev_b32 v4, 4, v0")
    a("v_lshlrev_b32 v5, 11, v2")
    a("v_xor_b32 v6, v3, v4")
    a("v_lshl_add_u32 v6, v6, 4, v5")
    a("v_xor_b32 v7, 64, v6")
    a(f"v_mov_b32 v{VXD}, v6")
    a(f"v_add_u32 v{VXD+1}, 16384, v7")
    a(f"v_add_u32 v{VXD+2}, 32768, v6")
    a(f"v_add_u32 v{VXD+3}, 49152, v7")
    a("v_mul_u32_u24 v5, 6144, v2")
    a("v_and_b32 v6, 1, v4")
    a("v_lshlrev_b32 v6, 1, v6")
    a("s_and_b32 s31, s26, 1")
    a("s_lshl_b32 s31, s31, 2")
    a("v_xor_b32 v6, v3, v6")
    a("v_xor_b32 v6, s31, v6")
    a(f"v_lshl_add_u32 v{VWD}, v6, 4, v5")
    a(f"v_add_u32 v{VWD+1}, 2048, v{VWD}")
    a(f"v_add_u32 v{VWD+2}, 4096, v{VWD}")
    a("s_lshl_b32 s27, s24, 19")
    a("s_lshl_b32 s28, s26, 16")
    a("s_add_u32 s27, s27, s28")
    a("s_lshl_b32 s28, s25, 7")
    a(f"s_mul_i32 s29, s26, {8*6144}")
    a("s_add_u32 s28, s28, s29")
    a("s_lshl_b32 s29, s26, 12")
    a("s_lshl_b32 s30, s26, 10")
    a("s_waitcnt lgkmcnt(0)")
    srd(a, 8, 4, 4 << 20)
    srd(a, 12, 6, 6 << 20)
    def dma_x(slot, j):
        m = f"s_add_u32 m0, s29, {slot + j*1024}" if isinstance(slot, int) else f"s_add_u32 m0, {slot}, {j*1024}"
        return [m, "s_nop 0", f"buffer_load_dwordx4 v{VXD+j}, s[8:11], s27 offen lds"]
    def dma_w(slot, g):
        m = f"s_add_u32 m0, s30, {slot + g*8192}" if isinstance(slot, int) else f"s_add_u32 m0, {slot}, {g*8192}"
        return [m, "s_nop 0", f"buffer_load_dwordx4 v{VWD+g}, s[12:15], s28 offen lds"]
    for g in range(3):
        for t in dma_w(WS0, g): a(t)
    for j in range(4):
        for t in dma_x(0, j): a(t)
    a(f"s_add_u32 s28, s28, {64*6144}")
    a("s_add_u32 s27, s27, 128")
    srd(a, 16, 36, WS_BYTES)
    a("s_and_b32 s31, s26, 3")
    a("s_lshr_b32 s32, s26, 2")
    a("v_and_b32 v2, 15, v0")
    a("v_lshrrev_b32 v3, 4, v0")
    a("v_bfe_u32 v4, v0, 1, 3")
    a("s_lshl_b32 s33, s31, 13")
    a("v_lshlrev_b32 v5, 7, v2")
    a("v_add_u32 v5, s33, v5")
    a("v_xor_b32 v6, v3, v4")
    a(f"v_lshl_add_u32 v{VXB}, v6, 4, v5")
    a(f"v_xor_b32 v{VXB+1}, 64, v{VXB}")
    a(f"v_mov_b32 v{VXA}, v{VXB}")
    a(f"v_mov_b32 v{VXA+1}, v{VXB+1}")
    a("v_bfe_u32 v4, v0, 2, 2")
    a("v_lshl_add_u32 v4, v3, 3, v4")
    a("v_lshlrev_b32 v4, 7, v4")
    a("v_and_b32 v6, 3, v0")
    a("v_lshl_add_u32 v4, v6, 3, v4")
    a("v_bfe_u32 v5, v0, 3, 2")
    a("s_lshl_b32 s33, s32, 1")
    a("v_xor_b32 v5, s33, v5")
    a(f"v_lshl_add_u32 v{VWB}, v5, 5, v4")
    a(f"v_xor_b32 v{VWB+1}, 32, v{VWB}")
    a(f"v_add_u32 v{VWA}, {WS0}, v{VWB}")
    a(f"v_add_u32 v{VWA+1}, {WS0}, v{VWB+1}")
    a("v_lshlrev_b32 v4, 4, v2")
    a(f"v_lshl_add_u32 v{VST}, v3, 9, v4")
    for i in range(96): a(f"v_mov_b32 v{ACC+i}, 0")
    PF = OPT["pf1"] == "1"
    if PF:
        a("s_cmp_lt_u32 s26, 4")
        a("s_cselect_b32 s44, s8, s12")
        a("s_cselect_b32 s45, s9, s13")
        a("s_cselect_b32 s46, s10, s14")
        a("s_mov_b32 s47, 0x00020000")
        a(f"s_mov_b32 s48, {64*6144}")
        a("s_cselect_b32 s48, 128, s48")
        a("s_and_b32 s49, s20, 1")
        a("s_lshl_b32 s49, s49, 21")
        a("s_lshl_b32 s50, s21, 16")
        a("s_add_u32 s49, s49, s50")
        a("s_lshl_b32 s50, s26, 14")
        a("s_add_u32 s49, s49, s50")
        a("s_bfe_u32 s50, s20, 0x10001")
        a("s_lshl_b32 s50, s50, 10")
        a(f"s_mul_i32 s51, s21, {2*6144}")
        a("s_add_u32 s50, s50, s51")
        a("s_cmp_lt_u32 s26, 4")
        a("s_cselect_b32 s49, s49, s50")
        a("s_cselect_b32 s52, 8, 12")
        a("s_cselect_b64 s[54:55], -1, 0")
        a("s_sub_u32 s50, s26, 4")
        a("s_mul_i32 s50, s50, 12")
        a("v_add_u32 v2, s50, v0")
        a("v_lshrrev_b32 v3, 3, v2")
        a("v_and_b32 v4, 7, v2")
        a("v_lshlrev_b32 v4, 7, v4")
        a("v_lshl_add_u32 v4, v3, 11, v4")
        a("v_lshlrev_b32 v5, 11, v0")
        a(f"v_cndmask_b32 v{VPF}, v4, v5, s[54:55]")
        a("v_cmp_gt_u32 vcc, s52, v0")
        a("v_mov_b32 v5, 0x7fffff00")
        a("s_nop 0")
        a(f"v_cndmask_b32 v{VPF}, v5, v{VPF}, vcc")
        for st in range(3):
            a("s_add_u32 s49, s49, s48")
            a(f"buffer_load_dword v{VPD}, v{VPF}, s[44:47], s49 offen")
    pf = ["s_add_u32 s49, s49, s48", f"buffer_load_dword v{VPD}, v{VPF}, s[44:47], s49 offen"] if PF else []
    NPF = 1 if PF else 0
    a("s_mov_b32 s33, 0")
    a(f"s_mov_b32 s34, {WS0}")
    a("s_mov_b32 s35, 0")
    def rdA(f, ks, mt): return [f"ds_read_b128 {vr(A_(f,mt))}, v{VXA+ks} offset:{mt*2048}"]
    def rdB(f, ks, nb):
        o = (nb//2)*8192 + ks*4096
        return [f"ds_read_b64_tr_b16 {vr(B_(f,nb),2)}, v{VWA+nb%2} offset:{o}",
                f"ds_read_b64_tr_b16 {vr(B_(f,nb)+2,2)}, v{VWA+nb%2} offset:{o+512}"]
    def reads(f, ks):
        if OPT["ord1"] == "0":
            return [rdA(f, ks, 0)] + [rdB(f, ks, nb) for nb in range(6)] + [rdA(f, ks, mt) for mt in (1, 2, 3)]
        return [rdB(f, ks, 0)] + [rdA(f, ks, mt) for mt in range(4)] + [rdB(f, ks, nb) for nb in range(1, 6)]
    def mm(f):
        r = []
        order = [(mt, nb) for mt in range(4) for nb in range(6)] if OPT["ord1"] == "0" else [(mt, nb) for nb in range(6) for mt in range(4)]
        for mt, nb in order:
            if nb < 4: r.append(mfma16(acc(mt, nb), B_(f, nb), A_(f, mt)))
            else:      r.append(mfma16(acc(mt, nb), A_(f, mt), B_(f, nb)))
        return r
    stamp(a, 2)
    a(f"s_waitcnt vmcnt({3*NPF})")
    a("s_barrier")
    stamp(a, 3)
    for grp in reads(0, 0) + [dma_w(WS1, g) for g in range(3)] + [dma_x(XS, j) for j in range(2)]:
        for t in grp: a(t)
    a("s_branch L1_mid")
    a.raw(".p2align 6")
    a.lab("L1_loop")
    rd = reads(0, 0)
    for t in rd[0] + rd[1]: a(t)
    fill = rd[2:] + [dma_w("s39", g) for g in range(3)] + [dma_x("s38", j) for j in range(4)] + [pf]
    for t in spread(mm(1), fill, 0, 1): a(t)
    upd = [
        ["s_add_u32 s38, s33, s29", "s_add_u32 s39, s34, s30"],
        [f"s_add_u32 s33, s33, {XS}", f"s_cmp_eq_u32 s33, {3*XS}", "s_cselect_b32 s33, 0, s33", f"s_xor_b32 s34, s34, {WS0 ^ WS1}"],
        ["s_add_u32 s27, s27, 128", f"s_add_u32 s28, s28, {64*6144}", "s_add_u32 s35, s35, 1"],
        ["s_cmp_le_u32 s35, 13", f"s_cselect_b32 s10, {4<<20:#x}, 0", "s_cmp_le_u32 s35, 14", f"s_cselect_b32 s14, {6<<20:#x}, 0"],
        ["s_cmp_le_u32 s35, 11", "s_cselect_b32 s46, s46, 0"] if PF else [],
        [f"v_add_u32 v{VXA}, s33, v{VXB}", f"v_add_u32 v{VXA+1}, s33, v{VXB+1}"],
        [f"v_add_u32 v{VWA}, s34, v{VWB}", f"v_add_u32 v{VWA+1}, s34, v{VWB+1}"],
    ]
    a("s_waitcnt lgkmcnt(0)")
    for t in spread(mm(0), reads(1, 1) + upd, 0, 1): a(t)
    a.lab("L1_bar")
    a("s_cmp_lt_u32 s35, 16")
    a(f"s_waitcnt vmcnt({4+NPF}) lgkmcnt(0)")
    a("s_barrier")
    a("s_cbranch_scc1 L1_loop")
    for t in mm(1): a(t)
    a("s_branch L1_epi")
    a.lab("L1_mid")
    a("s_waitcnt lgkmcnt(0)")
    fill = reads(1, 1) + [dma_x(XS, 2), dma_x(XS, 3) + ["s_add_u32 s27, s27, 128"]] + [dma_x(2*XS, j) for j in range(4)] + [pf] + upd
    for t in spread(mm(0), fill, 0, 1): a(t)
    a("s_branch L1_bar")
    a.lab("L1_epi")
    stamp(a, 4)
    a("s_lshl_b32 s40, s22, 22")
    a("s_lshl_b32 s41, s25, 1")
    a("s_add_u32 s41, s41, s32")
    a("s_lshl_b32 s41, s41, 17")
    a("s_add_u32 s40, s40, s41")
    a("s_lshl_b32 s41, s24, 14")
    a("s_add_u32 s40, s40, s41")
    a("s_lshl_b32 s41, s31, 12")
    a("s_add_u32 s40, s40, s41")
    a(f"s_add_u32 s41, s40, {KF}")
    a(f"s_add_u32 s42, s40, {VF}")
    a(f"s_mov_b32 s43, {QSCALE:#x}")
    n = 0
    jobs = []
    for T in range(2):
        for sg in range(2): jobs.append((1, acc(2*T+sg, 2), acc(2*T+sg, 3), T*2048 + sg*256))
        for u in range(2):  jobs.append((2, acc(2*T, 4+u), acc(2*T+1, 4+u), T*2048 + u*256))
        for sg in range(2): jobs.append((0, acc(2*T+sg, 0), acc(2*T+sg, 1), T*2048 + sg*256))
    for seg, b0, b1, off in jobs:
        t0 = F[0] + 4*(n % 8); n += 1
        if seg == 0:
            for b in (b0, b1):
                for r in range(4): a(f"v_mul_f32 v{b+r}, s43, v{b+r}")
        a(f"v_cvt_pk_bf16_f32 v{t0}, v{b0}, v{b0+1}")
        a(f"v_cvt_pk_bf16_f32 v{t0+1}, v{b0+2}, v{b0+3}")
        a(f"v_cvt_pk_bf16_f32 v{t0+2}, v{b1}, v{b1+1}")
        a(f"v_cvt_pk_bf16_f32 v{t0+3}, v{b1+2}, v{b1+3}")
        a(f"buffer_store_dwordx4 {vr(t0)}, v{VST}, s[16:19], s{40+seg} offen offset:{off}{OPT['st1']}")
    stamp(a, 5)
    dump(a, 0, "s26")
    a.lab("L1_end")
    a("s_endpgm")
    return a.text(), kd(N, NV), f"; @launch kernel={N} grid=(256,1,1) block=(512,1,1) lds=147456"

def kperm(rho):
    return ((rho >> 2) & 1) * 16 + (rho >> 3) * 4 + (rho & 3)

def k2():
    a = A(); N = "attn_kernel"
    head(a, N)
    VL16, VKA, VVA, VIDX, VM, VT, VKL, VPF = 1, 2, 3, 4, 5, 6, 7, 152
    ONES = 8; Q = 12; NEG = 20; O = 36; L = 52; KB = [56, 64]; VB = [72, 80]; S = [88, 104, 120, 136]
    NV = 156
    PF = OPT["pf3"] == "1"
    NPF = 1 if PF else 0
    def sm32(d, av, b): return f"v_smfmac_f32_32x32x32_bf16 {vr(d,16)}, {vr(av)}, {vr(b,8)}, v{VIDX}"
    def sm16(b): return f"v_smfmac_f32_16x16x64_bf16 {vr(L)}, {vr(ONES)}, {vr(b,8)}, v{VIDX}"
    a("s_cmp_ge_u32 s2, 256")
    a("s_cbranch_scc1 L2_end")
    stamp(a, 0); rstamp(a, 1)
    a("s_load_dwordx2 s[4:5], s[0:1], 64")
    a("s_and_b32 s20, s2, 7")
    a("s_lshr_b32 s21, s2, 3")
    a("s_lshr_b32 s22, s20, 2")
    a("s_mul_i32 s22, s22, 24")
    a("s_add_u32 s22, s22, 16")
    a("s_load_dwordx2 s[6:7], s[0:1], s22")
    a("s_lshl_b32 s22, s20, 2")
    a("s_lshr_b32 s23, s21, 3")
    a("s_add_u32 s22, s22, s23")
    a("s_and_b32 s23, s21, 7")
    a("v_lshrrev_b32 v1, 6, v0")
    a("v_and_b32 v0, 63, v0")
    a("v_readfirstlane_b32 s24, v1")
    a(f"v_lshlrev_b32 v{VL16}, 4, v0")
    a("s_lshl_b32 s25, s23, 3")
    a("s_add_u32 s25, s25, s24")
    a("s_lshl_b32 s26, s22, 17")
    a("s_lshl_b32 s27, s25, 11")
    a("s_add_u32 s27, s27, s26")
    a("s_lshl_b32 s34, s24, 11")
    a("s_add_u32 s35, s26, s34")
    a(f"s_add_u32 s36, s35, {VF}")
    a(f"s_add_u32 s35, s35, {KF}")
    a("s_waitcnt lgkmcnt(0)")
    srd(a, 8, 4, WS_BYTES)
    def ld(d, soff, off=0, v=VL16): a(f"buffer_load_dwordx4 {vr(d)}, v{v}, s[8:11], {soff} offen offset:{off}")
    def dma_stage(kslot, vslot):
        r = []
        r.append([f"s_add_u32 m0, s34, {kslot}", "s_nop 0",
                  f"buffer_load_dwordx4 v{VL16}, s[8:11], s35 offen lds"])
        r.append([f"buffer_load_dwordx4 v{VL16}, s[8:11], s35 offen offset:1024 lds"])
        r.append([f"s_add_u32 m0, s34, {vslot}", "s_nop 0",
                  f"buffer_load_dwordx4 v{VL16}, s[8:11], s36 offen lds"])
        r.append([f"buffer_load_dwordx4 v{VL16}, s[8:11], s36 offen offset:1024 lds",
                  "s_add_u32 s35, s35, 16384", "s_add_u32 s36, s36, 16384"])
        return r
    ld(Q, "s27"); ld(Q+4, "s27", 1024)
    for st in range(2):
        for grp in dma_stage(st*16384, 65536 + st*16384):
            for t in grp: a(t)
    srd(a, 16, 6, 2 << 20)
    a(f"s_add_u32 s28, s27, {4<<20}")
    a(f"s_add_u32 s29, s28, {KF}")
    a(f"s_add_u32 s30, s28, {VF}")
    a("s_lshl_b32 s31, s23, 14")
    a("s_add_u32 s31, s31, s26")
    a("s_cmp_eq_u32 s23, 0")
    a("s_cselect_b32 s32, 0, 2048")
    a("s_sub_u32 s31, s31, s32")
    a(f"s_add_u32 s31, s31, {(4<<20) + KF}")
    a("s_and_b32 s32, s24, 1")
    a(f"s_mul_i32 s32, s32, {VF-KF}")
    a("s_add_u32 s31, s31, s32")
    a("s_cmp_eq_u32 s25, 0")
    a("s_cselect_b64 s[44:45], 0, -1")
    a(f"v_mov_b32 v{VIDX}, 0xdddddddd")
    a("v_bfe_u32 v5, v0, 2, 1")
    a("v_cmp_eq_u32 vcc, 0, v5")
    a("v_mov_b32 v6, 0x3f803f80")
    a("s_nop 0")
    a(f"v_cndmask_b32 v{ONES}, 0, v6, vcc")
    a(f"v_cndmask_b32 v{ONES+1}, 0, v6, vcc")
    a(f"v_cndmask_b32 v{ONES+2}, v6, 0, vcc")
    a(f"v_cndmask_b32 v{ONES+3}, v6, 0, vcc")
    a("v_and_b32 v6, 0x23, v0")
    a("v_lshl_or_b32 v6, v5, 4, v6")
    a("v_bfe_u32 v5, v0, 3, 2")
    a("v_lshl_or_b32 v6, v5, 2, v6")
    a(f"v_lshlrev_b32 v{VKL}, 4, v6")
    a(f"v_mov_b32 v{VKA}, v{VKL}")
    a(f"v_add_u32 v{VVA}, 0x10000, v{VL16}")
    if PF:
        a(f"v_lshlrev_b32 v{VPF}, 7, v0")
        a("v_cmp_gt_u32 vcc, 8, v0")
        a("v_mov_b32 v5, 0x7fffff00")
        a("s_lshl_b32 s50, s21, 3")
        a(f"v_cndmask_b32 v{VPF}, v5, v{VPF}, vcc")
        a("s_add_u32 s50, s50, s24")
        a("s_lshl_b32 s50, s50, 13")
    pf = [f"buffer_load_dword v{VPF+1}, v{VPF}, s[16:19], s50 offen", "s_add_u32 s50, s50, 1024"] if PF else []
    def xhalf_max():
        a(f"v_max_f32 v{VM}, v{VM}, v{VT}")
        a("s_nop 0")
        a(f"v_mov_b32 v{VT}, v{VM}")
        a("s_nop 1")
        a(f"v_permlane32_swap_b32 v{VM}, v{VT}")
        a("s_nop 1")
        a(f"v_max_f32 v{VM}, v{VM}, v{VT}")
    a("s_lshl_b32 s37, s25, 16")
    a("s_lshl_b32 s38, s22, 11")
    a("s_add_u32 s37, s37, s38")
    a(f"s_add_u32 s37, s37, {OF}")
    a(f"s_add_u32 s38, s37, {4<<20}")
    def finish(soff, T):
        a(f"v_rcp_f32 v{VT}, v{L}")
        a("s_nop 0")
        for i in range(16): a(f"v_mul_f32 v{O+i}, v{O+i}, v{VT}")
        for i in range(8): a(f"v_cvt_pk_bf16_f32 v{T+i}, v{O+2*i}, v{O+2*i+1}")
        a(f"buffer_store_dwordx4 {vr(T)}, v{VL16}, s[8:11], {soff} offen{OPT['st2']}")
        a(f"buffer_store_dwordx4 {vr(T+4)}, v{VL16}, s[8:11], {soff} offen offset:1024{OPT['st2']}")
    for i in range(16): a(f"v_mov_b32 v{O+i}, 0")
    for i in range(4): a(f"v_mov_b32 v{L+i}, 0")
    for i in range(16): a(f"v_mov_b32 v{S[3]+i}, 0")
    for i in range(8): a(f"v_mov_b32 v{VB[1]+i}, 0")
    stamp(a, 2)
    a("s_waitcnt vmcnt(4)")
    a("s_barrier")
    stamp(a, 3)
    if DBG: a("s_waitcnt lgkmcnt(0)")
    a(f"ds_read_b128 {vr(KB[0])}, v{VKA}")
    a(f"ds_read_b128 {vr(KB[0]+4)}, v{VKA} offset:1024")
    a(f"ds_read_b128 {vr(KB[1])}, v{VKA} offset:2048")
    a(f"ds_read_b128 {vr(KB[1]+4)}, v{VKA} offset:3072")
    a("s_waitcnt lgkmcnt(2)")
    a(mfma(S[0], KB[0], Q, "0")); a(mfma(S[0], KB[0]+4, Q+4))
    for grp in dma_stage(2*16384, 65536 + 2*16384) + [pf]:
        for t in grp: a(t)
    a("s_nop 3")
    s0 = S[0]
    a(f"v_max3_f32 v{VM}, v{s0}, v{s0+1}, v{s0+2}")
    a(f"v_max3_f32 v{VT}, v{s0+3}, v{s0+4}, v{s0+5}")
    a(f"v_max3_f32 v{VM}, v{VM}, v{s0+6}, v{s0+7}")
    a(f"v_max3_f32 v{VT}, v{VT}, v{s0+8}, v{s0+9}")
    a(f"v_max3_f32 v{VM}, v{VM}, v{s0+10}, v{s0+11}")
    a(f"v_max3_f32 v{VT}, v{VT}, v{s0+12}, v{s0+13}")
    a(f"v_max3_f32 v{VM}, v{VM}, v{s0+14}, v{s0+15}")
    xhalf_max()
    for i in range(16): a(f"v_sub_f32 v{NEG+i}, 0, v{VM}")
    for i in range(16): a(f"v_sub_f32 v{s0+i}, v{s0+i}, v{VM}")
    a("s_mov_b32 s39, 0")
    a("s_mov_b32 s40, 0")
    a(f"s_mov_b32 s42, {3*16384}")
    stamp(a, 4)
    a("s_branch L2_it2")

    def it(u, qk=True, rdk=True, rdv=True, pre=None, extra=None):
        i = (u - 2) % 8
        Sn, Sc, Sp = S[(i+1) % 4], S[i % 4], S[(i-1) % 4]
        kb_use, kb_ld = KB[(i+1) % 2], KB[i % 2]
        vb_use, vb_ld = VB[(i-1) % 2], VB[i % 2]
        a("s_waitcnt lgkmcnt(0)")
        if pre:
            for t in pre: a(t)
        rd = []
        if rdk:
            rd += [f"ds_read_b128 {vr(kb_ld)}, v{VKA} offset:{u*2048}", f"ds_read_b128 {vr(kb_ld+4)}, v{VKA} offset:{u*2048+1024}"]
        if rdv:
            rd += [f"ds_read_b128 {vr(vb_ld)}, v{VVA} offset:{i*2048}", f"ds_read_b128 {vr(vb_ld+4)}, v{VVA} offset:{i*2048+1024}"]
        ex = [f"v_exp_f32 v{Sc+r}, v{Sc+r}" for r in range(16)]
        seq = []
        if qk: seq.append(mfma(Sn, kb_use, Q, NEG))
        seq += rd[:2] + ex[0:3]
        if qk: seq.append(mfma(Sn, kb_use+4, Q+4))
        seq += rd[2:] + ex[3:6]
        seq.append(sm32(O, vb_use, Sp))
        seq += ex[6:9]
        seq.append(sm16(Sp))
        seq += ex[9:11]
        seq.append(sm32(O, vb_use+4, Sp+8))
        seq += ex[11:14]
        seq.append(sm16(Sp+8))
        seq += ex[14:16]
        if extra:
            seq = spread(seq, extra, 4, 4)
        for t in seq: a(t)

    a.raw(".p2align 6")
    a.lab("L2_loop")
    pre = [f"s_waitcnt vmcnt({4+NPF})", "s_barrier",
           "s_add_u32 s40, s40, 16384", "s_and_b32 s40, s40, 0xffff",
           f"v_add_u32 v{VKA}, s40, v{VKL}",
           "s_cmp_eq_u32 s39, 6", "s_cselect_b32 s35, s29, s35", "s_cselect_b32 s36, s30, s36",
           "s_cmp_eq_u32 s39, 7", "s_cselect_b32 s35, s28, s35", "s_cselect_b32 s36, s31, s36",
           "s_add_u32 s43, s42, 0x10000"]
    it(0, pre=pre, extra=dma_stage("s42", "s43") + [pf + ["s_add_u32 s42, s42, 16384", "s_and_b32 s42, s42, 0xffff", "s_add_u32 s41, s40, 0x10000"]])
    it(1)
    a(f"v_add_u32 v{VVA}, s41, v{VL16}")
    a.lab("L2_it2")
    for u in range(2, 8): it(u)
    a("s_add_u32 s39, s39, 1")
    a("s_cmp_lt_u32 s39, 8")
    a("s_cbranch_scc1 L2_loop")
    it(0, rdk=False)
    it(1, qk=False, rdk=False)
    a("s_waitcnt lgkmcnt(0)")
    a("s_nop 1")
    Sp = S[3]
    a(sm32(O, VB[1], Sp)); a(sm16(Sp)); a(sm32(O, VB[1]+4, Sp+8)); a(sm16(Sp+8))
    a("s_waitcnt vmcnt(0)")
    a("s_barrier")
    QB, KC, KP, VC, VP = S[3], KB[0], KB[1], VB[0], VB[1]
    a("s_sub_u32 s46, s34, 2048")
    a("s_add_u32 s47, s46, 0x10000")
    a("s_cmp_eq_u32 s24, 0")
    a(f"s_cselect_b32 s46, {65536+16384}, s46")
    a(f"s_cselect_b32 s47, {65536+16384+2048}, s47")
    a("s_nop 5")
    a(f"v_mul_f32 v{VM}, 0, v{O}")
    for i in range(1, 16): a(f"v_fma_f32 v{VM}, v{O+i}, 0, v{VM}")
    a(f"v_add_f32 v{VM}, v{VM}, v{L}")
    a(f"v_mov_b32 v{VT}, {f2u(2.0**64):#x}")
    a(f"v_cmp_nlt_f32 vcc, v{VM}, v{VT}")
    a("s_nop 4")
    a("s_cbranch_vccnz L2_slow")
    a.lab("L2_fin")
    stamp(a, 5)
    a(f"v_add_u32 v{VKA}, s34, v{VKL}")
    a(f"v_add_u32 v{VVA}, s34, v{VL16}")
    a(f"v_add_u32 v{VM}, s46, v{VKL}")
    a(f"v_add_u32 v{VPF}, s47, v{VL16}")
    a(f"ds_read_b128 {vr(QB)}, v{VVA} offset:16384")
    a(f"ds_read_b128 {vr(KC)}, v{VKA}")
    a(f"ds_read_b128 {vr(KP)}, v{VM}")
    a(f"ds_read_b128 {vr(QB+4)}, v{VVA} offset:{16384+1024}")
    a(f"ds_read_b128 {vr(KC+4)}, v{VKA} offset:1024")
    a(f"ds_read_b128 {vr(KP+4)}, v{VM} offset:1024")
    a(f"v_add_u32 v{VVA}, 0x10000, v{VVA}")
    a(f"ds_read_b128 {vr(VP)}, v{VPF}")
    a(f"ds_read_b128 {vr(VP+4)}, v{VPF} offset:1024")
    a(f"ds_read_b128 {vr(VC)}, v{VVA}")
    a(f"ds_read_b128 {vr(VC+4)}, v{VVA} offset:1024")
    finish("s37", S[2])
    a(f"v_mov_b32 v{VT}, {NEGBIG:#x}")
    def lanemask(r, prev):
        m = 0
        for l in range(64):
            q = l & 31; hh = l >> 5
            key = kperm(8*(r//4) + 4*hh + r % 4)
            d = q - key + (32 if prev else 0)
            if 0 <= d <= 14 and d % 2 == 0: m |= 1 << l
        return m
    k = 0
    for prev in (0, 1):
        for r in range(16):
            m = lanemask(r, prev)
            sp = 48 + 2*(k % 4); k += 1
            a(f"s_mov_b32 s{sp}, {m & 0xffffffff:#x}")
            a(f"s_mov_b32 s{sp+1}, {m >> 32:#x}")
            if prev: a(f"s_and_b64 s[{sp}:{sp+1}], s[{sp}:{sp+1}], s[44:45]")
            a(f"v_cndmask_b32 v{S[prev]+r}, v{VT}, 0, s[{sp}:{sp+1}]")
    a("s_waitcnt lgkmcnt(0)")
    a("s_nop 0")
    a(mfma(S[0], KC, QB)); a(mfma(S[1], KP, QB))
    a(mfma(S[0], KC+4, QB+4)); a(mfma(S[1], KP+4, QB+4))
    for i in range(16): a(f"v_mov_b32 v{O+i}, 0")
    for i in range(4): a(f"v_mov_b32 v{L+i}, 0")
    vals = [S[0]+r for r in range(16)] + [S[1]+r for r in range(16)]
    a(f"v_max3_f32 v{VM}, v{vals[0]}, v{vals[1]}, v{vals[2]}")
    a(f"v_max3_f32 v{VT}, v{vals[3]}, v{vals[4]}, v{vals[5]}")
    for i in range(6, 30, 4):
        a(f"v_max3_f32 v{VM}, v{VM}, v{vals[i]}, v{vals[i+1]}")
        a(f"v_max3_f32 v{VT}, v{VT}, v{vals[i+2]}, v{vals[i+3]}")
    a(f"v_max3_f32 v{VM}, v{VM}, v{vals[30]}, v{vals[31]}")
    xhalf_max()
    for v in vals: a(f"v_sub_f32 v{v}, v{v}, v{VM}")
    for v in vals: a(f"v_exp_f32 v{v}, v{v}")
    a("s_nop 1")
    a(sm32(O, VC, S[0])); a(sm16(S[0]))
    a(sm32(O, VC+4, S[0]+8)); a(sm16(S[0]+8))
    a(sm32(O, VP, S[1])); a(sm16(S[1]))
    a(sm32(O, VP+4, S[1]+8)); a(sm16(S[1]+8))
    a("s_nop 15")
    finish("s38", S[3])
    dump(a, 1, "s24")
    a.lab("L2_end")
    a("s_endpgm")
    a.lab("L2_slow")
    a(f"s_add_u32 s35, s26, {KF}")
    a(f"s_add_u32 s36, s26, {VF}")
    a(f"v_mov_b32 v{VM}, 0xff800000")
    a("s_mov_b32 s39, 0")
    a.lab("L2_s1")
    a("s_add_u32 s41, s35, s39")
    ld(KB[0], "s41", 0, VKL); ld(KB[0]+4, "s41", 1024, VKL)
    a("s_waitcnt vmcnt(0)")
    a(mfma(S[0], KB[0], Q, "0")); a(mfma(S[0], KB[0]+4, Q+4))
    a("s_nop 15")
    for i in range(0, 16, 2): a(f"v_max3_f32 v{VM}, v{VM}, v{s0+i}, v{s0+i+1}")
    a("s_add_u32 s39, s39, 2048")
    a(f"s_cmp_lt_u32 s39, {64*2048}")
    a("s_cbranch_scc1 L2_s1")
    a(f"v_mov_b32 v{VT}, v{VM}")
    xhalf_max()
    for i in range(16): a(f"v_sub_f32 v{NEG+i}, 0, v{VM}")
    for i in range(16): a(f"v_mov_b32 v{O+i}, 0")
    for i in range(4): a(f"v_mov_b32 v{L+i}, 0")
    a("s_mov_b32 s39, 0")
    a.lab("L2_s2")
    a("s_add_u32 s41, s35, s39")
    ld(KB[0], "s41", 0, VKL); ld(KB[0]+4, "s41", 1024, VKL)
    a("s_add_u32 s41, s36, s39")
    ld(VB[0], "s41"); ld(VB[0]+4, "s41", 1024)
    a("s_waitcnt vmcnt(0)")
    a(mfma(S[0], KB[0], Q, NEG)); a(mfma(S[0], KB[0]+4, Q+4))
    a("s_nop 15")
    for i in range(16): a(f"v_exp_f32 v{s0+i}, v{s0+i}")
    a("s_nop 1")
    a(sm32(O, VB[0], s0)); a(sm16(s0)); a(sm32(O, VB[0]+4, s0+8)); a(sm16(s0+8))
    a("s_nop 7")
    a("s_add_u32 s39, s39, 2048")
    a(f"s_cmp_lt_u32 s39, {64*2048}")
    a("s_cbranch_scc1 L2_s2")
    a("s_nop 15")
    a("s_branch L2_fin")
    return a.text(), kd(N, NV), f"; @launch kernel={N} grid=(256,1,1) block=(512,1,1) lds=131072"

def k3():
    a = A(); N = NAME + "_kernel"
    head(a, N)
    VL16, VWD0, VWD1, VOB, VOA, VWB, VWA, VST = 1, 8, 9, 10, 11, 12, 16, 20
    F = [24, 56]; ACC = 88; NV = 152
    def Of(f, mt): return F[f] + 4*mt
    def Wf(f, nb): return F[f] + 16 + 4*nb
    def acc(mt, nb): return ACC + (mt*4 + nb)*4
    SLOT = 32768
    a("s_cmp_ge_u32 s2, 256")
    a("s_cbranch_scc1 L3_end")
    stamp(a, 0); rstamp(a, 1)
    a("s_and_b32 s20, s2, 7")
    a("s_lshr_b32 s21, s2, 3")
    a("s_lshr_b32 s22, s20, 2")
    a("s_mul_i32 s23, s22, 24")
    a("s_add_u32 s23, s23, 16")
    a("s_load_dwordx2 s[4:5], s[0:1], s23")
    a("s_load_dwordx2 s[6:7], s[0:1], 64")
    a("s_load_dwordx2 s[36:37], s[0:1], 48")
    a("s_and_b32 s24, s20, 3")
    a("s_lshl_b32 s24, s24, 2")
    a("s_and_b32 s25, s21, 3")
    a("s_add_u32 s24, s24, s25")
    a("s_lshr_b32 s25, s21, 2")
    a("v_lshrrev_b32 v1, 6, v0")
    a("v_and_b32 v0, 63, v0")
    a("v_readfirstlane_b32 s26, v1")
    a(f"v_lshlrev_b32 v{VL16}, 4, v0")
    a("s_nop 2")
    a("s_cmp_lt_u32 s26, 4")
    a("s_cbranch_scc1 L3_compute")
    a("s_sub_u32 s26, s26, 4")
    a("v_lshrrev_b32 v2, 4, v0")
    a("v_and_b32 v3, 15, v0")
    a("v_lshlrev_b32 v4, 1, v2")
    a("v_xor_b32 v3, v3, v4")
    a("v_lshlrev_b32 v3, 4, v3")
    a(f"v_lshl_add_u32 v{VWD0}, v2, 11, v3")
    a(f"v_xor_b32 v{VWD1}, 128, v{VWD0}")
    a(f"v_add_u32 v{VWD1}, 8192, v{VWD1}")
    a("s_lshl_b32 s27, s22, 22")
    a("s_lshl_b32 s28, s24, 2")
    a("s_add_u32 s28, s28, s26")
    a("s_lshl_b32 s28, s28, 16")
    a("s_add_u32 s27, s27, s28")
    a(f"s_add_u32 s27, s27, {OF}")
    a("s_lshl_b32 s28, s26, 15")
    a("s_lshl_b32 s29, s25, 8")
    a("s_add_u32 s28, s28, s29")
    a("s_add_u32 s30, s28, 16384")
    a("s_lshl_b32 s29, s26, 12")
    a("s_waitcnt lgkmcnt(0)")
    srd(a, 8, 6, WS_BYTES)
    srd(a, 12, 4, 2 << 20)
    def dma(slot):
        a(f"s_add_u32 m0, s29, {slot + 16384}")
        a("s_nop 0")
        a(f"buffer_load_dwordx4 v{VWD0}, s[12:15], s28 offen lds")
        a("s_add_u32 m0, m0, 1024")
        a("s_nop 0")
        a(f"buffer_load_dwordx4 v{VWD1}, s[12:15], s28 offen lds")
        a("s_add_u32 m0, m0, 1024")
        a(f"s_add_u32 s28, s28, {64*2048}")
        a(f"buffer_load_dwordx4 v{VWD0}, s[12:15], s30 offen lds")
        a("s_add_u32 m0, m0, 1024")
        a("s_nop 0")
        a(f"buffer_load_dwordx4 v{VWD1}, s[12:15], s30 offen lds")
        a(f"s_add_u32 m0, s29, {slot}")
        a(f"s_add_u32 s30, s30, {64*2048}")
        for j in range(4):
            a(f"buffer_load_dwordx4 v{VL16}, s[8:11], s27 offen offset:{j*1024} lds")
        a("s_add_u32 s27, s27, 4096")
    for st in range(4): dma(st*SLOT)
    stamp(a, 2)
    a("s_waitcnt vmcnt(24)")
    a("s_barrier")
    stamp(a, 3)
    a("s_mov_b32 s35, 0")
    a.lab("L3_ld")
    for t in range(4):
        a("s_waitcnt vmcnt(16)")
        a("s_barrier")
        dma(t*SLOT)
    a("s_add_u32 s35, s35, 1")
    a("s_cmp_lt_u32 s35, 3")
    a("s_cbranch_scc1 L3_ld")
    for n in (16, 8, 0):
        a(f"s_waitcnt vmcnt({n})")
        a("s_barrier")
    stamp(a, 4); stamp(a, 5)
    a("s_add_u32 s26, s26, 4")
    dump(a, 2, "s26")
    a("s_endpgm")
    a.lab("L3_compute")
    a("s_and_b32 s31, s26, 1")
    a("s_lshr_b32 s32, s26, 1")
    a("v_and_b32 v2, 15, v0")
    a("v_lshrrev_b32 v3, 4, v0")
    a("s_lshl_b32 s33, s31, 13")
    a("v_lshlrev_b32 v4, 4, v2")
    a("v_lshl_add_u32 v4, v3, 9, v4")
    a(f"v_add_u32 v{VOB}, s33, v4")
    a(f"v_mov_b32 v{VOA}, v{VOB}")
    a("v_bfe_u32 v4, v0, 2, 3")
    a("v_lshrrev_b32 v5, 5, v0")
    a("v_lshl_add_u32 v5, v5, 4, v4")
    a("v_lshlrev_b32 v5, 8, v5")
    a("v_and_b32 v6, 3, v0")
    a("v_lshl_add_u32 v5, v6, 3, v5")
    a("v_add_u32 v5, 16384, v5")
    a("s_lshl_b32 s33, s32, 2")
    a("v_xor_b32 v4, s33, v4")
    a(f"v_lshl_add_u32 v{VWB}, v4, 5, v5")
    for nb in range(1, 4): a(f"v_xor_b32 v{VWB+nb}, {nb*32}, v{VWB}")
    for nb in range(4): a(f"v_mov_b32 v{VWA+nb}, v{VWB+nb}")
    for i in range(64): a(f"v_mov_b32 v{ACC+i}, 0")
    a("s_mov_b32 s33, 0")
    a("s_mov_b32 s35, 0")
    a("s_waitcnt lgkmcnt(0)")
    srd(a, 16, 36, 8 << 20)
    def rdO(f, ks, mt): return [f"ds_read_b128 {vr(Of(f,mt))}, v{VOA} offset:{(mt>>1)*4096 + ks*2048 + (mt&1)*256}"]
    def rdW(f, ks, nb): return [f"ds_read_b64_tr_b16 {vr(Wf(f,nb),2)}, v{VWA+nb} offset:{ks*8192}",
                                f"ds_read_b64_tr_b16 {vr(Wf(f,nb)+2,2)}, v{VWA+nb} offset:{ks*8192+2048}"]
    def reads(f, ks):
        return [rdO(f, ks, 0)] + [rdW(f, ks, nb) for nb in range(4)] + [rdO(f, ks, mt) for mt in (1, 2, 3)]
    def mm(f):
        return [mfma16(acc(mt, nb), Wf(f, nb), Of(f, mt)) for mt in range(4) for nb in range(4)]
    stamp(a, 2)
    a("s_barrier")
    stamp(a, 3)
    for grp in reads(0, 0):
        for t in grp: a(t)
    a("s_branch L3_mid")
    a.raw(".p2align 6")
    a.lab("L3_loop")
    for t in spread(mm(1), reads(0, 0), 0, 1): a(t)
    a.lab("L3_mid")
    a("s_waitcnt lgkmcnt(0)")
    upd = [[f"s_add_u32 s33, s33, {SLOT}", f"s_and_b32 s33, s33, {4*SLOT-1:#x}"], ["s_add_u32 s35, s35, 1", f"v_add_u32 v{VOA}, s33, v{VOB}"]]
    upd += [[f"v_add_u32 v{VWA+nb}, s33, v{VWB+nb}" for nb in (0, 1)], [f"v_add_u32 v{VWA+nb}, s33, v{VWB+nb}" for nb in (2, 3)]]
    upd += [["s_cmp_lt_u32 s35, 16", "s_waitcnt lgkmcnt(0)"], ["s_barrier"]]
    for t in spread(mm(0), reads(1, 1) + upd, 0, 1): a(t)
    a("s_cbranch_scc1 L3_loop")
    for t in mm(1): a(t)
    stamp(a, 4)
    a("s_mul_i32 s41, s26, 9216")
    a("v_mul_u32_u24 v4, 144, v2")
    a("v_lshl_add_u32 v4, v3, 3, v4")
    a("v_add_u32 v4, s41, v4")
    a("v_lshrrev_b32 v5, 3, v0")
    a("v_mul_u32_u24 v6, 144, v5")
    a("v_and_b32 v7, 7, v0")
    a("v_lshl_add_u32 v6, v7, 4, v6")
    a("v_add_u32 v6, s41, v6")
    a("v_lshlrev_b32 v5, 12, v5")
    a(f"v_lshl_add_u32 v{VST}, v7, 4, v5")
    a("s_lshl_b32 s40, s24, 19")
    a("s_lshl_b32 s41, s31, 18")
    a("s_add_u32 s40, s40, s41")
    a("s_lshl_b32 s41, s22, 11")
    a("s_add_u32 s40, s40, s41")
    a("s_lshl_b32 s41, s25, 8")
    a("s_add_u32 s40, s40, s41")
    a("s_lshl_b32 s41, s32, 7")
    a("s_add_u32 s40, s40, s41")
    for mt in range(4):
        for nb in range(4):
            b = acc(mt, nb); t0 = F[0] + 2*(mt*4 + nb)
            a(f"v_cvt_pk_bf16_f32 v{t0}, v{b}, v{b+1}")
            a(f"v_cvt_pk_bf16_f32 v{t0+1}, v{b+2}, v{b+3}")
            a(f"ds_write_b64 v4, {vr(t0,2)} offset:{mt*16*144 + nb*32}")
        a(f"ds_read_b128 {vr(F[1]+8*mt)}, v6 offset:{mt*16*144}")
        a(f"ds_read_b128 {vr(F[1]+8*mt+4)}, v6 offset:{mt*16*144 + 8*144}")
        if mt >= 1:
            a("s_waitcnt lgkmcnt(6)")
            for h in range(2):
                a(f"buffer_store_dwordx4 {vr(F[1]+8*(mt-1)+4*h)}, v{VST}, s[16:19], s40 offen{OPT['st3']}")
                a(f"s_add_u32 s40, s40, {8*4096}")
    a("s_waitcnt lgkmcnt(0)")
    for h in range(2):
        a(f"buffer_store_dwordx4 {vr(F[1]+24+4*h)}, v{VST}, s[16:19], s40 offen{OPT['st3']}")
        a(f"s_add_u32 s40, s40, {8*4096}")
    stamp(a, 5)
    dump(a, 2, "s26")
    a.lab("L3_end")
    a("s_endpgm")
    return a.text(), kd(N, NV), f"; @launch kernel={N} grid=(256,1,1) block=(512,1,1) lds=131072"

def main():
    ks = [k1(), k2(), k3()]
    hdr = open("cdna_kernels/" + NAME + ".s.ref").read().split("\n")
    top = [l for l in hdr if l.startswith(";") and "@launch" not in l and "Override" not in l and "grid=ceil" not in l]
    out = "\n".join(top) + "\n" + "\n".join(k[2] for k in ks) + "\n"
    out += '.amdgcn_target "amdgcn-amd-amdhsa--gfx950"\n.text\n'
    for k in ks: out += k[0]
    out += '.section .rodata,"a"\n'
    for k in ks: out += k[1]
    open(sys.argv[1], "w").write(out)

main()
```

```python
import struct, math, sys

NAME = "concat_heads__mha_block__sliding_local_dilated__prompt"
OPT = dict(st1=" sc1", st2=" sc1", st3="", dbg="0", pf1="1", pf3="1", ord1="0", dlt="4", nx="0", ph="2", s2e="0", prio="1", k2x="", cpf="1")
for a in sys.argv[2:]:
    k, v = a.split("=", 1)
    OPT[k] = v

def f2u(x): return struct.unpack("<I", struct.pack("<f", x))[0]
QSCALE = f2u(math.log2(math.e) / math.sqrt(32.0))
NEGBIG = f2u(-1e30)

QF, KF, VF, OF = 0, 8 << 20, 16 << 20, 24 << 20
WS_BYTES = 32 << 20

class A:
    def __init__(s): s.l = []
    def __call__(s, t): s.l.append("    " + t)
    def lab(s, t): s.l.append(t + ":")
    def raw(s, t): s.l.append(t)
    def text(s): return "\n".join(s.l) + "\n"

def vr(b, n=4): return f"v[{b}:{b+n-1}]"
def mfma(d, a, b, c=None):
    cc = vr(d, 16) if c is None else (c if isinstance(c, str) else vr(c, 16))
    return f"v_mfma_f32_32x32x16_bf16 {vr(d,16)}, {vr(a)}, {vr(b)}, {cc}"

def mfma16(d, a, b):
    return f"v_mfma_f32_16x16x32_bf16 {vr(d)}, {vr(a)}, {vr(b)}, {vr(d)}"

def spread(main, fill, start=0, every=1, per=1):
    out = []; k = 0
    for i, m in enumerate(main):
        out.append(m)
        if i >= start and (i - start) % every == 0:
            for _ in range(per):
                if k < len(fill):
                    out += fill[k]; k += 1
    while k < len(fill):
        out += fill[k]; k += 1
    return out

def interleave(main, fill, pattern):
    out = []; k = 0
    for i, m in enumerate(main):
        for _ in range(pattern[i] if i < len(pattern) else 0):
            if k < len(fill):
                out += fill[k]; k += 1
        out.append(m)
    while k < len(fill):
        out += fill[k]; k += 1
    return out

def kd(name, vgpr, sgpr=96):
    acc = (vgpr + 3) // 4 * 4
    return f""".p2align 6
.amdhsa_kernel {name}
  .amdhsa_next_free_vgpr {vgpr}
  .amdhsa_next_free_sgpr {sgpr}
  .amdhsa_accum_offset {acc}
  .amdhsa_group_segment_fixed_size 0
  .amdhsa_kernarg_size 72
  .amdhsa_user_sgpr_count 2
  .amdhsa_user_sgpr_kernarg_segment_ptr 1
  .amdhsa_system_sgpr_workgroup_id_x 1
.end_amdhsa_kernel
"""

DBG = OPT["dbg"] == "1"
def stamp(a, n):
    if DBG:
        a(f"s_memtime s[{64+2*n}:{65+2*n}]")
def rstamp(a, n):
    if DBG:
        a(f"s_memrealtime s[{64+2*n}:{65+2*n}]")
def dump(a, kidx, wave_sgpr, nst=8):
    if not DBG: return
    a("s_load_dwordx2 s[88:89], s[0:1], 64")
    a("s_waitcnt lgkmcnt(0) vmcnt(0)")
    a(f"s_memtime s[{64+2*(nst-2)}:{65+2*(nst-2)}]")
    a(f"s_memrealtime s[{64+2*(nst-1)}:{65+2*(nst-1)}]")
    a("s_waitcnt lgkmcnt(0)")
    a("s_mov_b32 s90, 0x8000000")
    a("s_mov_b32 s91, 0x00020000")
    a("s_lshl_b32 s92, s2, 3")
    a(f"s_add_u32 s92, s92, {wave_sgpr}")
    a("s_lshl_b32 s92, s92, 6")
    a(f"s_add_u32 s92, s92, {(64+kidx) << 20}")
    a("v_mov_b32 v2, 0")
    for n in range(nst):
        a(f"v_mov_b32 v3, s{64+2*n}")
        a(f"buffer_store_dword v3, v2, s[88:91], s92 offen offset:{4*n}")
        a("s_nop 1")

_cp = [0]
def codepf(a, start, end, vtmp, lane="v0"):
    if OPT["cpf"] != "1": return
    _cp[0] += 1
    l = f"Lcp{_cp[0]}"
    a("s_getpc_b64 s[56:57]")
    a.lab(l)
    a(f"s_add_u32 s56, s56, {start}-{l}")
    a(f"s_addc_u32 s57, s57, ({start}-{l})>>32")
    a(f"v_lshlrev_b32 v{vtmp}, 7, {lane}")
    a(f"v_min_u32 v{vtmp}, {end}-{start}-4, v{vtmp}")
    a(f"global_load_dword v{vtmp}, v{vtmp}, s[56:57]")

def head(a, name):
    a.raw(f".globl {name}\n.p2align 8\n.type {name},@function\n{name}:")

def srd(a, d, base, nbytes):
    a(f"s_mov_b32 s{d}, s{base}")
    a(f"s_mov_b32 s{d+1}, s{base+1}")
    a(f"s_mov_b32 s{d+2}, {nbytes:#x}")
    a(f"s_mov_b32 s{d+3}, 0x00020000")

def place(main, fill, per=2, start=0):
    out = []; k = 0
    for i, m in enumerate(main):
        out.append(m)
        if i >= start:
            out += fill[k:k+per]; k += per
    out += fill[k:]
    return out

def k1():
    a = A(); N = "qkv_kernel"
    head(a, N)
    XS, WS, WSL = 32768, 98304, 12288
    VD, VXB, VXA, VWB, VWA, VST, VPX, VPW, VPD = 10, 18, 20, 22, 24, 26, 27, 28, 29
    F = [32, 72]; ACC = 112; NV = 208
    PF = OPT["pf1"] == "1"
    DLT = int(OPT["dlt"])
    def A_(f, mt): return F[f] + 4*mt
    def B_(f, nb): return F[f] + 16 + 4*nb
    def acc(mt, nb): return ACC + (mt*6 + nb)*4
    a("s_cmp_ge_u32 s2, 256")
    a("s_cbranch_scc1 L1_end")
    stamp(a, 0); rstamp(a, 1)
    a("s_and_b32 s20, s2, 7")
    a("s_lshr_b32 s21, s2, 3")
    a("s_lshr_b32 s22, s20, 2")
    a("s_mul_i32 s23, s22, 24")
    a("s_load_dwordx4 s[4:7], s[0:1], s23")
    a("s_load_dwordx2 s[36:37], s[0:1], 64")
    a("v_lshrrev_b32 v1, 6, v0")
    a("v_and_b32 v0, 63, v0")
    a("v_readfirstlane_b32 s26, v1")
    a("s_and_b32 s24, s20, 1")
    a("s_lshl_b32 s24, s24, 2")
    a("s_and_b32 s25, s21, 3")
    a("s_add_u32 s24, s24, s25")
    a("s_bfe_u32 s25, s20, 0x10001")
    a("s_lshl_b32 s25, s25, 3")
    a("s_lshr_b32 s27, s21, 2")
    if OPT["nx"] != "0": a(f"s_xor_b32 s27, s27, {OPT['nx']}")
    a("s_add_u32 s25, s25, s27")
    a("s_and_b32 s31, s26, 3")
    a("s_lshr_b32 s32, s26, 2")
    PH = OPT["ph"]
    if PH == "0": a("s_mov_b32 s44, 0")
    elif PH == "1":
        a("s_lshl_b32 s44, s20, 1")
    elif PH == "2":
        a("s_lshl_b32 s44, s20, 1")
        a("s_and_b32 s45, s21, 1")
        a("s_add_u32 s44, s44, s45")
    elif PH == "3":
        a("s_lshl_b32 s44, s22, 1")
        a("s_and_b32 s45, s20, 1")
        a("s_add_u32 s44, s44, s45")
        a("s_lshl_b32 s44, s44, 2")
        a("s_and_b32 s45, s21, 3")
        a("s_add_u32 s44, s44, s45")
    elif PH == "4":
        a("s_lshl_b32 s44, s22, 1")
        a("s_and_b32 s45, s20, 1")
        a("s_add_u32 s44, s44, s45")
        a("s_lshl_b32 s44, s44, 2")
    a("v_lshrrev_b32 v2, 3, v0")
    a("v_and_b32 v3, 7, v0")
    a("v_lshrrev_b32 v4, 4, v0")

    def rdA(f, ks, mt): return [f"ds_read_b128 {vr(A_(f,mt))}, v{VXA+ks} offset:{mt*2048}"]
    def rdB(f, nb):
        o = (nb//2)*4096
        return [f"ds_read_b64_tr_b16 {vr(B_(f,nb),2)}, v{VWA+nb%2} offset:{o}",
                f"ds_read_b64_tr_b16 {vr(B_(f,nb)+2,2)}, v{VWA+nb%2} offset:{o+512}"]
    def reads(f, ks):
        r = rdB(f, 0)
        for mt in range(4): r += rdA(f, ks, mt)
        for nb in range(1, 6): r += rdB(f, nb)
        return r
    def mm(f):
        r = []
        for nb in range(6):
            for mt in range(4):
                if nb < 4: r.append(mfma16(acc(mt, nb), B_(f, nb), A_(f, mt)))
                else:      r.append(mfma16(acc(mt, nb), A_(f, mt), B_(f, nb)))
        return r

    def common_setup():
        srd(a, 16, 36, WS_BYTES)
        a("v_and_b32 v2, 15, v0")
        a("v_lshrrev_b32 v3, 4, v0")
        a("v_bfe_u32 v4, v0, 1, 3")
        a("s_lshl_b32 s33, s31, 13")
        a("v_lshlrev_b32 v5, 7, v2")
        a("v_add_u32 v5, s33, v5")
        a("v_xor_b32 v6, v3, v4")
        a(f"v_lshl_add_u32 v{VXB}, v6, 4, v5")
        a(f"v_xor_b32 v{VXB+1}, 64, v{VXB}")
        a(f"v_mov_b32 v{VXA}, v{VXB}")
        a(f"v_mov_b32 v{VXA+1}, v{VXB+1}")
        a("v_bfe_u32 v4, v0, 2, 2")
        a("v_lshl_add_u32 v4, v3, 3, v4")
        a("v_lshlrev_b32 v4, 7, v4")
        a("v_and_b32 v6, 3, v0")
        a("v_lshl_add_u32 v4, v6, 3, v4")
        a("v_bfe_u32 v5, v0, 3, 2")
        a("s_lshl_b32 s33, s32, 1")
        a("v_xor_b32 v5, s33, v5")
        a(f"v_lshl_add_u32 v{VWB}, v5, 5, v4")
        a(f"v_xor_b32 v{VWB+1}, 32, v{VWB}")
        a(f"v_add_u32 v{VWA}, {WS}, v{VWB}")
        a(f"v_add_u32 v{VWA+1}, {WS}, v{VWB+1}")
        a("v_lshlrev_b32 v4, 4, v2")
        a(f"v_lshl_add_u32 v{VST}, v3, 9, v4")
        for i in range(96): a(f"v_mov_b32 v{ACC+i}, 0")
        a("s_mov_b32 s33, 0")
        a(f"s_mov_b32 s34, {WS}")
        a("s_mov_b32 s35, 0")

    wupd = [f"s_add_u32 s34, s34, {WSL}", f"s_cmp_eq_u32 s34, {WS+5*WSL}", f"s_cselect_b32 s34, {WS}, s34",
            f"v_add_u32 v{VWA}, s34, v{VWB}", f"v_add_u32 v{VWA+1}, s34, v{VWB+1}", "s_add_u32 s35, s35, 1"]
    xupd = [f"s_add_u32 s33, s33, {XS}", f"s_cmp_eq_u32 s33, {3*XS}", "s_cselect_b32 s33, 0, s33",
            f"v_add_u32 v{VXA}, s33, v{VXB}", f"v_add_u32 v{VXA+1}, s33, v{VXB+1}"]

    def mix(dma, other):
        out = []; o = list(other)
        for m, l in dma:
            out.append(m)
            out.append(o.pop(0) if o else "s_nop 0")
            out.append(l)
        return out + o

    def event(tag):
        a.lab(tag)
        a("s_mov_b32 s49, 0x7fff")
        if OPT["cpf"] == "1":
            a("s_cmp_eq_u32 s31, 3")
            a(f"s_cbranch_scc1 {tag}c")
        a(f"buffer_load_dword v{VPD}, v{VPW}, s[12:15], s50 offen")
        a(f"s_branch {tag}r")
        if OPT["cpf"] == "1":
            a.lab(tag + "c")
            codepf(a, "attn_kernel", "L2_slow0", VPD)
            a(f"s_branch {tag}r")

    a("s_cmp_lg_u32 s32, 0")
    a("s_cbranch_scc1 L1_W")
    for cls in ("X", "W"):
        P = "L1" + cls
        if cls == "X":
            a("v_lshlrev_b32 v5, 11, v2")
            a("v_xor_b32 v6, v3, v4")
            a("v_lshl_add_u32 v6, v6, 4, v5")
            a("v_xor_b32 v7, 64, v6")
            a(f"v_mov_b32 v{VD}, v6")
            a(f"v_add_u32 v{VD+1}, 16384, v7")
            a(f"v_add_u32 v{VD+2}, 32768, v6")
            a(f"v_add_u32 v{VD+3}, 49152, v7")
            a("s_lshl_b32 s27, s24, 19")
            a("s_lshl_b32 s28, s31, 16")
            a("s_add_u32 s45, s27, s28")
            a("s_lshl_b32 s46, s44, 7")
            a("s_add_u32 s27, s45, s46")
            a("s_add_u32 s28, s27, 0x40000")
            a("s_lshl_b32 s29, s31, 12")
            a(f"s_add_u32 s30, s29, {6*16384}")
            a("s_waitcnt lgkmcnt(0)")
            if OPT["s2e"] == "1": stamp(a, 2)
            srd(a, 8, 4, 4 << 20)
            def grp(par):
                so = "s27" if par == 0 else "s28"
                d = [(f"s_add_u32 m0, s29, {j*1024}", f"buffer_load_dwordx4 v{VD+j}, s[8:11], {so} offen lds") for j in range(4)]
                post = ["s_add_u32 s29, s29, 16384"]
                if par == 0: post += ["s_add_u32 s46, s46, 128", "s_and_b32 s46, s46, 0x7ff", "s_add_u32 s27, s45, s46"]
                if par == 1: post += ["s_add_u32 s28, s27, 0x40000", "s_cmp_eq_u32 s29, s30", f"s_cselect_b32 s38, {6*16384}, 0", "s_sub_u32 s29, s29, s38"]
                return d, post
            NG = 4
        else:
            a.lab("L1_W")
            if OPT["cpf"] == "1":
                a("s_cmp_lg_u32 s26, 7")
                a("s_cbranch_scc1 L1_nocp")
                codepf(a, "qkv_kernel", "L1_end", VPD)
                a.lab("L1_nocp")
            a("v_mul_u32_u24 v5, 6144, v2")
            a("v_and_b32 v6, 1, v4")
            a("v_lshlrev_b32 v6, 1, v6")
            a("s_and_b32 s33, s26, 1")
            a("s_lshl_b32 s33, s33, 2")
            a("v_xor_b32 v6, v3, v6")
            a("v_xor_b32 v6, s33, v6")
            a(f"v_lshl_add_u32 v{VD}, v6, 4, v5")
            a(f"v_add_u32 v{VD+1}, 2048, v{VD}")
            a(f"v_add_u32 v{VD+2}, 4096, v{VD}")
            if PF:
                a(f"v_mul_u32_u24 v{VPW}, 6144, v0")
                a("v_cmp_gt_u32 vcc, 32, v0")
                a("v_mov_b32 v7, 0x7fffff00")
                a("s_lshl_b32 s50, s20, 2")
                a(f"v_cndmask_b32 v{VPW}, v7, v{VPW}, vcc")
                a("s_add_u32 s50, s50, s21")
                a("s_and_b32 s50, s50, 31")
                a(f"s_mul_i32 s50, s50, {32*6144}")
                a("s_lshl_b32 s51, s31, 11")
                a("s_add_u32 s50, s50, s51")
                a("s_bfe_u32 s51, s20, 0x10001")
                a("s_lshl_b32 s51, s51, 10")
                a("s_add_u32 s50, s50, s51")
                a("s_add_u32 s50, s50, 384")
                a(f"s_max_u32 s49, s21, {4+DLT}")
                a(f"s_sub_u32 s49, s49, {4+DLT}")
                a("s_cmp_lt_u32 s21, 5")
                a("s_cselect_b32 s49, 0x7fff, s49")
                a("s_cmp_eq_u32 s31, 3")
                a(f"s_cselect_b32 s49, {26 if OPT['cpf'] == '1' else 0x7fff}, s49")
            a("s_lshl_b32 s27, s25, 7")
            a(f"s_mul_i32 s28, s31, {8*6144}")
            a("s_add_u32 s27, s27, s28")
            a(f"s_mul_i32 s28, s44, {64*6144}")
            a("s_add_u32 s27, s27, s28")
            a("s_lshl_b32 s29, s31, 10")
            a(f"s_add_u32 s29, s29, {WS}")
            a(f"s_add_u32 s30, s29, {5*WSL}")
            a("s_waitcnt lgkmcnt(0)")
            if OPT["s2e"] == "1": stamp(a, 2)
            srd(a, 12, 6, 6 << 20)
            def grp(par):
                d = [(f"s_add_u32 m0, s29, {g*4096}", f"buffer_load_dwordx4 v{VD+g}, s[12:15], s27 offen lds") for g in range(3)]
                post = [f"s_add_u32 s27, s27, {32*6144}", f"s_add_u32 s29, s29, {WSL}",
                        "s_cmp_eq_u32 s29, s30", f"s_cselect_b32 s38, {5*WSL}, 0", "s_sub_u32 s29, s29, s38"]
                if par == 1: post += [f"s_cmp_ge_u32 s27, {6<<20:#x}", f"s_cselect_b32 s38, {6<<20:#x}, 0", "s_sub_u32 s27, s27, s38"]
                return d, post
            NG = 3
        def emit_grp(par):
            d, post = grp(par)
            for t in mix(d, []) + post: a(t)
        first = 2 if cls == "X" else 1
        for n in range(first): emit_grp(n & 1)
        common_setup()
        for n in range(first, 4): emit_grp(n & 1)
        npf = 0
        if cls == "W" and PF:
            a("s_cmp_eq_u32 s49, 0")
            a(f"s_cbranch_scc1 {P}_e0")
            a.lab(f"{P}_e0r")
        if OPT["s2e"] != "1": stamp(a, 2)
        a(f"s_waitcnt vmcnt({(4-first)*NG + npf})")
        a("s_barrier")
        stamp(a, 3)
        d, post = grp(0)
        for t in reads(0, 0) + mix(d, []) + post + wupd: a(t)
        if cls == "W": a(f"s_waitcnt vmcnt({3*NG + npf})")
        a("s_waitcnt lgkmcnt(0)")
        a("s_barrier")
        a(f"s_branch {P}_odd")
        a.raw(".p2align 6")
        a.lab(f"{P}_loop")
        for par in range(2):
            if par == 1: a.lab(f"{P}_odd")
            d, post = grp(par)
            rd = reads(par, par)
            tail = list(post) + wupd
            if par == 1:
                tail += xupd
                if cls == "X": tail += ["s_cmp_lt_u32 s35, 28", f"s_cselect_b32 s10, {4<<20:#x}, 0"]
                else: tail += ["s_cmp_lt_u32 s35, 28", f"s_cselect_b32 s14, {6<<20:#x}, 0"]
            fill = rd[:8] + mix(d, rd[8:]) + tail
            seq = place(mm(1-par), fill, 2, 0)
            for t in seq: a(t)
            if cls == "W" and PF:
                a("s_cmp_ge_u32 s35, s49")
                a(f"s_cbranch_scc1 {P}_e{par+1}")
                a.lab(f"{P}_e{par+1}r")
            if par == 1: a("s_cmp_lt_u32 s35, 32")
            if cls == "W": a(f"s_waitcnt vmcnt({3*NG}) lgkmcnt(0)")
            elif par == 1: a(f"s_waitcnt vmcnt({2*NG}) lgkmcnt(0)")
            else: a("s_waitcnt lgkmcnt(0)")
            a("s_barrier")
        a(f"s_cbranch_scc1 {P}_loop")
        a("s_branch L1_epi")
        if cls == "W" and PF:
            for k in range(3): event(f"{P}_e{k}")
    a.lab("L1_epi")
    for t in mm(1): a(t)
    stamp(a, 4)
    a("s_lshl_b32 s40, s22, 22")
    a("s_lshl_b32 s41, s25, 1")
    a("s_add_u32 s41, s41, s32")
    a("s_lshl_b32 s41, s41, 17")
    a("s_add_u32 s40, s40, s41")
    a("s_lshl_b32 s41, s24, 14")
    a("s_add_u32 s40, s40, s41")
    a("s_lshl_b32 s41, s31, 12")
    a("s_add_u32 s40, s40, s41")
    a(f"s_add_u32 s41, s40, {KF}")
    a(f"s_add_u32 s42, s40, {VF}")
    a(f"s_mov_b32 s43, {QSCALE:#x}")
    n = 0
    jobs = []
    for T in range(2):
        for sg in range(2): jobs.append((1, acc(2*T+sg, 2), acc(2*T+sg, 3), T*2048 + sg*256))
    for T in range(2):
        for sg in range(2): jobs.append((0, acc(2*T+sg, 0), acc(2*T+sg, 1), T*2048 + sg*256))
    for T in range(2):
        for u in range(2):  jobs.append((2, acc(2*T, 4+u), acc(2*T+1, 4+u), T*2048 + u*256))
    for seg, b0, b1, off in jobs:
        t0 = F[0] + 4*(n % 8); n += 1
        if seg == 0:
            for b in (b0, b1):
                for r in range(4): a(f"v_mul_f32 v{b+r}, s43, v{b+r}")
        a(f"v_cvt_pk_bf16_f32 v{t0}, v{b0}, v{b0+1}")
        a(f"v_cvt_pk_bf16_f32 v{t0+1}, v{b0+2}, v{b0+3}")
        a(f"v_cvt_pk_bf16_f32 v{t0+2}, v{b1}, v{b1+1}")
        a(f"v_cvt_pk_bf16_f32 v{t0+3}, v{b1+2}, v{b1+3}")
        a(f"buffer_store_dwordx4 {vr(t0)}, v{VST}, s[16:19], s{40+seg} offen offset:{off}{OPT['st1']}")
    stamp(a, 5)
    dump(a, 0, "s26")
    a.lab("L1_end")
    a("s_endpgm")
    return a.text(), kd(N, NV), f"; @launch kernel={N} grid=(256,1,1) block=(512,1,1) lds=159744"

def kperm(rho):
    return ((rho >> 2) & 1) * 16 + (rho >> 3) * 4 + (rho & 3)

def k2():
    a = A(); N = "attn_kernel"
    head(a, N)
    VL16, VKA, VVA, VIDX, VM, VT, VKL = 1, 2, 3, 4, 5, 6, 7
    ONES = 8; Q = [12, 20]; NEG = [28, 44]; O = [60, 76]; L = [92, 96]; KB = [100, 108]; VB = [116, 124]; S = [132, 148, 164, 180]
    NV = 196
    PF = OPT["pf3"] == "1"
    def sm32(d, av, b): return f"v_smfmac_f32_32x32x32_bf16 {vr(d,16)}, {vr(av)}, {vr(b,8)}, v{VIDX}"
    def sm16(l, b): return f"v_smfmac_f32_16x16x64_bf16 {vr(l)}, {vr(ONES)}, {vr(b,8)}, v{VIDX}"
    def ld(d, soff, off=0, v=VL16): a(f"buffer_load_dwordx4 {vr(d)}, v{v}, s[8:11], {soff} offen offset:{off}")
    def xhalf_max():
        a(f"v_max_f32 v{VM}, v{VM}, v{VT}")
        a("s_nop 0")
        a(f"v_mov_b32 v{VT}, v{VM}")
        a("s_nop 1")
        a(f"v_permlane32_swap_b32 v{VM}, v{VT}")
        a("s_nop 1")
        a(f"v_max_f32 v{VM}, v{VM}, v{VT}")
    def maxof(vals):
        a(f"v_max3_f32 v{VM}, v{vals[0]}, v{vals[1]}, v{vals[2]}")
        a(f"v_max3_f32 v{VT}, v{vals[3]}, v{vals[4]}, v{vals[5]}")
        for i in range(6, len(vals) - 2, 4):
            a(f"v_max3_f32 v{VM}, v{VM}, v{vals[i]}, v{vals[i+1]}")
            a(f"v_max3_f32 v{VT}, v{VT}, v{vals[i+2]}, v{vals[i+3]}")
        a(f"v_max3_f32 v{VM}, v{VM}, v{vals[-2]}, v{vals[-1]}")
        xhalf_max()
    def finish(soff, off, T, o, l):
        a(f"v_rcp_f32 v{VT}, v{l}")
        a("s_nop 0")
        for i in range(16): a(f"v_mul_f32 v{o+i}, v{o+i}, v{VT}")
        for i in range(8): a(f"v_cvt_pk_bf16_f32 v{T+i}, v{o+2*i}, v{o+2*i+1}")
        a(f"buffer_store_dwordx4 {vr(T)}, v{VL16}, s[8:11], {soff} offen{OPT['st2']}")
        a(f"buffer_store_dwordx4 {vr(T+4)}, v{VL16}, s[8:11], {soff} offen offset:1024{OPT['st2']}")
    def consts():
        a(f"v_mov_b32 v{VIDX}, 0xdddddddd")
        a("v_bfe_u32 v5, v0, 2, 1")
        a("v_cmp_eq_u32 vcc, 0, v5")
        a("v_mov_b32 v6, 0x3f803f80")
        a("s_nop 0")
        a(f"v_cndmask_b32 v{ONES}, 0, v6, vcc")
        a(f"v_cndmask_b32 v{ONES+1}, 0, v6, vcc")
        a(f"v_cndmask_b32 v{ONES+2}, v6, 0, vcc")
        a(f"v_cndmask_b32 v{ONES+3}, v6, 0, vcc")
    a("s_cmp_ge_u32 s2, 256")
    a("s_cbranch_scc1 L2_end")
    stamp(a, 0); rstamp(a, 1)
    a("s_load_dwordx2 s[4:5], s[0:1], 64")
    a("s_and_b32 s20, s2, 7")
    a("s_lshr_b32 s21, s2, 3")
    a("s_lshr_b32 s22, s20, 2")
    a("s_mul_i32 s22, s22, 24")
    a("s_add_u32 s22, s22, 16")
    a("s_load_dwordx2 s[6:7], s[0:1], s22")
    a("v_lshrrev_b32 v1, 6, v0")
    a("v_and_b32 v0, 63, v0")
    a("v_readfirstlane_b32 s24, v1")
    a("s_lshl_b32 s22, s20, 2")
    a("s_lshr_b32 s23, s21, 3")
    a("s_add_u32 s22, s22, s23")
    a("s_and_b32 s23, s21, 7")
    a(f"v_lshlrev_b32 v{VL16}, 4, v0")
    a("s_and_b32 s28, s24, 3")
    a("s_lshl_b32 s25, s23, 3")
    a("s_lshl_b32 s29, s28, 1")
    a("s_add_u32 s25, s25, s29")
    a("s_lshl_b32 s26, s22, 17")
    a("s_lshl_b32 s27, s25, 11")
    a("s_add_u32 s27, s27, s26")
    a("v_bfe_u32 v5, v0, 2, 1")
    a("v_and_b32 v6, 0x23, v0")
    a("v_lshl_or_b32 v6, v5, 4, v6")
    a("v_bfe_u32 v5, v0, 3, 2")
    a("v_lshl_or_b32 v6, v5, 2, v6")
    a(f"v_lshlrev_b32 v{VKL}, 4, v6")
    a(f"s_add_u32 s33, s26, {KF}")
    a("s_lshl_b32 s37, s25, 16")
    a("s_lshl_b32 s38, s22, 11")
    a("s_add_u32 s37, s37, s38")
    a(f"s_add_u32 s37, s37, {OF}")
    a("s_cmp_ge_u32 s24, 4")
    a("s_cbranch_scc1 L2_help")
    a("s_waitcnt lgkmcnt(0)")
    srd(a, 8, 4, WS_BYTES)
    ld(Q[0], "s27"); ld(KB[0], "s33", 0, VKL); ld(Q[0]+4, "s27", 1024); ld(KB[0]+4, "s33", 1024, VKL)
    ld(Q[1], "s27", 2048); ld(Q[1]+4, "s27", 3072)
    ld(KB[1], "s33", 2048, VKL); ld(KB[1]+4, "s33", 3072, VKL)
    consts()
    a("s_add_u32 s38, s37, 0x10000")
    a(f"v_mov_b32 v{VKA}, v{VKL}")
    a(f"v_add_u32 v{VVA}, 0x10000, v{VL16}")
    for i in range(40): a(f"v_mov_b32 v{O[0]+i}, 0")
    for i in range(16): a(f"v_mov_b32 v{S[3]+i}, 0")
    for i in range(8): a(f"v_mov_b32 v{VB[1]+i}, 0")
    a("s_mov_b32 s39, 0")
    a("s_mov_b32 s40, 0")
    stamp(a, 2)
    a("s_waitcnt vmcnt(4)")
    a(mfma(S[0], KB[0], Q[0], "0")); a(mfma(S[0], KB[0]+4, Q[0]+4))
    a("s_waitcnt vmcnt(2)")
    a(mfma(S[1], KB[0], Q[1], "0")); a(mfma(S[1], KB[0]+4, Q[1]+4))
    stamp(a, 3)
    a("s_nop 8")
    maxof([S[0]+r for r in range(16)])
    for i in range(16): a(f"v_sub_f32 v{NEG[0]+i}, 0, v{VM}")
    for i in range(16): a(f"v_sub_f32 v{S[0]+i}, v{S[0]+i}, v{VM}")
    maxof([S[1]+r for r in range(16)])
    for i in range(16): a(f"v_sub_f32 v{NEG[1]+i}, 0, v{VM}")
    a("s_waitcnt vmcnt(0)")
    a("s_barrier")
    stamp(a, 4)
    a("s_branch L2_it3")

    def item(p, qk=True, rd=True, pre=None):
        n = (p - 3) % 16
        i = n >> 1; qt = n & 1
        Sn, Sc, Sp = S[(n+1) % 4], S[n % 4], S[(n-1) % 4]
        qn = (n+1) & 1; kbu = KB[((n+1) >> 1) % 2]
        qp = (n-1) & 1; vbu = VB[((n-1) >> 1) % 2]
        r = []
        if qt == 1:
            a("s_waitcnt lgkmcnt(0)")
            if pre:
                for t in pre: a(t)
            kt = (i + 2) % 8
            r = [f"ds_read_b128 {vr(KB[i % 2])}, v{VKA} offset:{kt*2048}", f"ds_read_b128 {vr(KB[i % 2]+4)}, v{VKA} offset:{kt*2048+1024}"]
        else:
            r = [f"ds_read_b128 {vr(VB[i % 2])}, v{VVA} offset:{i*2048}", f"ds_read_b128 {vr(VB[i % 2]+4)}, v{VVA} offset:{i*2048+1024}"]
        if not rd: r = []
        ex = [f"v_exp_f32 v{Sc+k}, v{Sc+k}" for k in range(16)]
        seq = []
        if qk: seq.append(mfma(Sn, kbu, Q[qn], NEG[qn]))
        seq += r[:1] + ex[0:3]
        if qk: seq.append(mfma(Sn, kbu+4, Q[qn]+4))
        seq += r[1:] + ex[3:6]
        seq.append(sm32(O[qp], vbu, Sp))
        seq += ex[6:9]
        seq.append(sm16(L[qp], Sp))
        seq += ex[9:10]
        seq.append(sm32(O[qp], vbu+4, Sp+8))
        seq += ex[10:13]
        seq.append(sm16(L[qp], Sp+8))
        seq += ex[13:16]
        for t in seq: a(t)

    a.raw(".p2align 6")
    a.lab("L2_loop")
    item(0, pre=["s_barrier", f"v_add_u32 v{VKA}, s40, v{VKL}"])
    item(1); item(2)
    a(f"v_add_u32 v{VVA}, s41, v{VL16}")
    a.lab("L2_it3")
    for p in range(3, 16): item(p)
    a("s_add_u32 s40, s40, 16384")
    a("s_and_b32 s40, s40, 0xffff")
    a("s_add_u32 s41, s40, 0x10000")
    a("s_add_u32 s39, s39, 1")
    a("s_cmp_lt_u32 s39, 8")
    a("s_cbranch_scc1 L2_loop")
    item(0, rd=False)
    item(1)
    item(2, qk=False, rd=False)
    a("s_nop 1")
    Sp = S[3]
    a(sm32(O[1], VB[1], Sp)); a(sm16(L[1], Sp)); a(sm32(O[1], VB[1]+4, Sp+8)); a(sm16(L[1], Sp+8))
    a("s_nop 4")
    stamp(a, 5)
    for qt in range(2):
        a(f"v_mul_f32 v{VM}, 0, v{O[qt]}")
        for i in range(1, 16): a(f"v_fma_f32 v{VM}, v{O[qt]+i}, 0, v{VM}")
        a(f"v_add_f32 v{VM}, v{VM}, v{L[qt]}")
        a(f"v_mov_b32 v{VT}, {f2u(2.0**64):#x}")
        a(f"v_cmp_nlt_f32 vcc, v{VM}, v{VT}")
        a("s_nop 4")
        a(f"s_cbranch_vccnz L2_slow{qt}")
        a.lab(f"L2_fin{qt}")
        finish("s37" if qt == 0 else "s38", 0, S[1+qt], O[qt], L[qt])
    dump(a, 1, "s24")
    a.lab("L2_end")
    a("s_endpgm")

    a.lab("L2_help")
    MC, MP, MP0, SC, SP, OB, LB = 12, 28, 44, 60, 76, 92, 108
    QB = [112, 120]; KX = [128, 136, 144]; VX = [152, 160, 168]; VPF = 176
    a("s_setprio 3")
    a("s_lshl_b32 s34, s28, 12")
    a("s_add_u32 s35, s33, s34")
    a(f"s_add_u32 s36, s35, {VF-KF}")
    a("s_waitcnt lgkmcnt(0)")
    srd(a, 8, 4, WS_BYTES)
    def dma_stage(st):
        for base, so in ((0, "s35"), (65536, "s36")):
            a(f"s_add_u32 m0, s34, {base + (st % 4)*16384}")
            a("s_nop 0")
            for j in range(4):
                a(f"buffer_load_dwordx4 v{VL16}, s[8:11], {so} offen offset:{j*1024} lds")
            a(f"s_add_u32 {so}, {so}, 16384")
    dma_stage(0)
    srd(a, 16, 6, 2 << 20)
    consts()
    a(f"s_add_u32 s28, s27, {4<<20}")
    a(f"s_add_u32 s29, s28, {KF}")
    a(f"s_add_u32 s30, s28, {VF}")
    a("s_cmp_eq_u32 s25, 0")
    a("s_cselect_b32 s32, 0, 2048")
    a("s_cselect_b64 s[44:45], 0, -1")
    a("s_sub_u32 s31, s29, s32")
    a("s_sub_u32 s32, s30, s32")
    a(f"s_add_u32 s37, s37, {4<<20}")
    a("s_add_u32 s38, s37, 0x10000")
    if PF:
        a(f"v_lshlrev_b32 v{VPF}, 7, v0")
        a("v_cmp_gt_u32 vcc, 32, v0")
        a("v_mov_b32 v5, 0x7fffff00")
        a("s_lshl_b32 s47, s21, 16")
        a(f"v_cndmask_b32 v{VPF}, v5, v{VPF}, vcc")
        a("s_lshl_b32 s46, s34, 2")
        a("s_add_u32 s47, s47, s46")
    def pf():
        if PF:
            a(f"buffer_load_dword v{VPF+1}, v{VPF}, s[16:19], s47 offen")
            a("s_add_u32 s47, s47, 4096")
    dma_stage(1)
    a(f"v_mov_b32 v{VT}, {NEGBIG:#x}")
    def lanemask(r, prev):
        m = 0
        for l in range(64):
            q = l & 31; hh = l >> 5
            key = kperm(8*(r//4) + 4*hh + r % 4)
            d = q - key + (32 if prev else 0)
            if 0 <= d <= 14 and d % 2 == 0: m |= 1 << l
        return m
    k = 0
    for prev in (0, 1):
        for r in range(16):
            m = lanemask(r, prev)
            sp = 48 + 2*(k % 4); k += 1
            a(f"s_mov_b32 s{sp}, {m & 0xffffffff:#x}")
            a(f"s_mov_b32 s{sp+1}, {m >> 32:#x}")
            a(f"v_cndmask_b32 v{(MP if prev else MC)+r}, v{VT}, 0, s[{sp}:{sp+1}]")
            if prev: a(f"v_cndmask_b32 v{MP0+r}, v{VT}, v{MP+r}, s[44:45]")
    stamp(a, 2); stamp(a, 3)
    a("s_waitcnt vmcnt(8)")
    a("s_barrier")
    stamp(a, 4)
    dma_stage(2)
    def bcomp(t):
        kc, kp, vc, vp = KX[t+1], KX[t], VX[t+1], VX[t]
        for i in range(20): a(f"v_mov_b32 v{OB+i}, 0")
        a(mfma(SC, kc, QB[t], MC)); a(mfma(SP, kp, QB[t], MP0 if t == 0 else MP))
        a(mfma(SC, kc+4, QB[t]+4)); a(mfma(SP, kp+4, QB[t]+4))
        a("s_nop 10")
        vals = [SC+r for r in range(16)] + [SP+r for r in range(16)]
        maxof(vals)
        for v in vals: a(f"v_sub_f32 v{v}, v{v}, v{VM}")
        for v in vals: a(f"v_exp_f32 v{v}, v{v}")
        a("s_nop 1")
        a(sm32(OB, vc, SC)); a(sm16(LB, SC)); a(sm32(OB, vc+4, SC+8)); a(sm16(LB, SC+8))
        a(sm32(OB, vp, SP)); a(sm16(LB, SP)); a(sm16(LB, SP+8)); a(sm32(OB, vp+4, SP+8))
        a("s_nop 12")
        finish("s37" if t == 0 else "s38", 0, QB[t], OB, LB)
    for b in range(1, 8):
        extra = {1: 0, 2: 16, 3: 1, 4: 3, 5: 3, 6: 1}.get(b, 0) if PF else {2: 16, 4: 2, 5: 2}.get(b, 0)
        a(f"s_waitcnt vmcnt({8 + extra if b < 7 else 0})")
        a("s_barrier")
        if b <= 5: dma_stage(b + 2)
        if b == 1:
            for t in range(2): ld(QB[t], "s28", t*2048); ld(QB[t]+4, "s28", t*2048+1024)
            ld(KX[0], "s31", 0, VKL); ld(KX[0]+4, "s31", 1024, VKL)
            for t in range(2): ld(KX[t+1], "s29", t*2048, VKL); ld(KX[t+1]+4, "s29", t*2048+1024, VKL)
            ld(VX[0], "s32"); ld(VX[0]+4, "s32", 1024)
            for t in range(2): ld(VX[t+1], "s30", t*2048); ld(VX[t+1]+4, "s30", t*2048+1024)
        if 2 <= b <= 5: pf()
        if b == 6: codepf(a, NAME + "_kernel", "L3_end", VPF+2)
        if b == 3: bcomp(0)
        if b == 4: bcomp(1)
    stamp(a, 5)
    dump(a, 1, "s24")
    a("s_endpgm")

    s0 = S[0]
    for qt in range(2):
        a.lab(f"L2_slow{qt}")
        a(f"s_add_u32 s36, s26, {VF}")
        a(f"v_mov_b32 v{VM}, 0xff800000")
        a("s_mov_b32 s39, 0")
        a.lab(f"L2_s1{qt}")
        a("s_add_u32 s41, s33, s39")
        ld(KB[0], "s41", 0, VKL); ld(KB[0]+4, "s41", 1024, VKL)
        a("s_waitcnt vmcnt(0)")
        a(mfma(s0, KB[0], Q[qt], "0")); a(mfma(s0, KB[0]+4, Q[qt]+4))
        a("s_nop 15")
        for i in range(0, 16, 2): a(f"v_max3_f32 v{VM}, v{VM}, v{s0+i}, v{s0+i+1}")
        a("s_add_u32 s39, s39, 2048")
        a(f"s_cmp_lt_u32 s39, {64*2048}")
        a(f"s_cbranch_scc1 L2_s1{qt}")
        a(f"v_mov_b32 v{VT}, v{VM}")
        xhalf_max()
        for i in range(16): a(f"v_sub_f32 v{NEG[qt]+i}, 0, v{VM}")
        for i in range(16): a(f"v_mov_b32 v{O[qt]+i}, 0")
        for i in range(4): a(f"v_mov_b32 v{L[qt]+i}, 0")
        a("s_mov_b32 s39, 0")
        a.lab(f"L2_s2{qt}")
        a("s_add_u32 s41, s33, s39")
        ld(KB[0], "s41", 0, VKL); ld(KB[0]+4, "s41", 1024, VKL)
        a("s_add_u32 s41, s36, s39")
        ld(VB[0], "s41"); ld(VB[0]+4, "s41", 1024)
        a("s_waitcnt vmcnt(0)")
        a(mfma(s0, KB[0], Q[qt], NEG[qt])); a(mfma(s0, KB[0]+4, Q[qt]+4))
        a("s_nop 15")
        for i in range(16): a(f"v_exp_f32 v{s0+i}, v{s0+i}")
        a("s_nop 1")
        a(sm32(O[qt], VB[0], s0)); a(sm16(L[qt], s0)); a(sm32(O[qt], VB[0]+4, s0+8)); a(sm16(L[qt], s0+8))
        a("s_nop 7")
        a("s_add_u32 s39, s39, 2048")
        a(f"s_cmp_lt_u32 s39, {64*2048}")
        a(f"s_cbranch_scc1 L2_s2{qt}")
        a("s_nop 15")
        a(f"s_branch L2_fin{qt}")
    return a.text(), kd(N, NV), f"; @launch kernel={N} grid=(256,1,1) block=(512,1,1) lds=131072"

def k3():
    a = A(); N = NAME + "_kernel"
    head(a, N)
    VL16, VWD0, VWD1, VOB, VOA, VWB, VWA, VST = 1, 8, 9, 10, 11, 12, 16, 20
    F = [24, 56]; ACC = 88; NV = 152
    def Of(f, mt): return F[f] + 4*mt
    def Wf(f, nb): return F[f] + 16 + 4*nb
    def acc(mt, nb): return ACC + (mt*4 + nb)*4
    SLOT = 32768
    a("s_cmp_ge_u32 s2, 256")
    a("s_cbranch_scc1 L3_end")
    stamp(a, 0); rstamp(a, 1)
    a("s_and_b32 s20, s2, 7")
    a("s_lshr_b32 s21, s2, 3")
    a("s_lshr_b32 s22, s20, 2")
    a("s_mul_i32 s23, s22, 24")
    a("s_add_u32 s23, s23, 16")
    a("s_load_dwordx2 s[4:5], s[0:1], s23")
    a("s_load_dwordx2 s[6:7], s[0:1], 64")
    a("s_load_dwordx2 s[36:37], s[0:1], 48")
    a("s_and_b32 s24, s20, 3")
    a("s_lshl_b32 s24, s24, 2")
    a("s_and_b32 s25, s21, 3")
    a("s_add_u32 s24, s24, s25")
    a("s_lshr_b32 s25, s21, 2")
    a("v_lshrrev_b32 v1, 6, v0")
    a("v_and_b32 v0, 63, v0")
    a("v_readfirstlane_b32 s26, v1")
    a(f"v_lshlrev_b32 v{VL16}, 4, v0")
    a("s_nop 2")
    a("s_cmp_lt_u32 s26, 4")
    a("s_cbranch_scc1 L3_compute")
    a("s_sub_u32 s26, s26, 4")
    a("v_lshrrev_b32 v2, 4, v0")
    a("v_and_b32 v3, 15, v0")
    a("v_lshlrev_b32 v4, 1, v2")
    a("v_xor_b32 v3, v3, v4")
    a("v_lshlrev_b32 v3, 4, v3")
    a(f"v_lshl_add_u32 v{VWD0}, v2, 11, v3")
    a(f"v_xor_b32 v{VWD1}, 128, v{VWD0}")
    a(f"v_add_u32 v{VWD1}, 8192, v{VWD1}")
    a("s_lshl_b32 s27, s22, 22")
    a("s_lshl_b32 s28, s24, 2")
    a("s_add_u32 s28, s28, s26")
    a("s_lshl_b32 s28, s28, 16")
    a("s_add_u32 s27, s27, s28")
    a(f"s_add_u32 s27, s27, {OF}")
    a("s_lshl_b32 s28, s26, 15")
    a("s_lshl_b32 s29, s25, 8")
    a("s_add_u32 s28, s28, s29")
    a("s_add_u32 s30, s28, 16384")
    a("s_lshl_b32 s29, s26, 12")
    a("s_waitcnt lgkmcnt(0)")
    srd(a, 8, 6, WS_BYTES)
    srd(a, 12, 4, 2 << 20)
    def dma(slot):
        a(f"s_add_u32 m0, s29, {slot + 16384}")
        a("s_nop 0")
        a(f"buffer_load_dwordx4 v{VWD0}, s[12:15], s28 offen lds")
        a("s_add_u32 m0, m0, 1024")
        a("s_nop 0")
        a(f"buffer_load_dwordx4 v{VWD1}, s[12:15], s28 offen lds")
        a("s_add_u32 m0, m0, 1024")
        a(f"s_add_u32 s28, s28, {64*2048}")
        a(f"buffer_load_dwordx4 v{VWD0}, s[12:15], s30 offen lds")
        a("s_add_u32 m0, m0, 1024")
        a("s_nop 0")
        a(f"buffer_load_dwordx4 v{VWD1}, s[12:15], s30 offen lds")
        a(f"s_add_u32 m0, s29, {slot}")
        a(f"s_add_u32 s30, s30, {64*2048}")
        for j in range(4):
            a(f"buffer_load_dwordx4 v{VL16}, s[8:11], s27 offen offset:{j*1024} lds")
        a("s_add_u32 s27, s27, 4096")
    for st in range(4): dma(st*SLOT)
    stamp(a, 2)
    a("s_waitcnt vmcnt(24)")
    a("s_barrier")
    stamp(a, 3)
    a("s_mov_b32 s35, 0")
    a.lab("L3_ld")
    for t in range(4):
        a("s_waitcnt vmcnt(16)")
        a("s_barrier")
        dma(t*SLOT)
    a("s_add_u32 s35, s35, 1")
    a("s_cmp_lt_u32 s35, 3")
    a("s_cbranch_scc1 L3_ld")
    for n in (16, 8, 0):
        a(f"s_waitcnt vmcnt({n})")
        a("s_barrier")
    stamp(a, 4); stamp(a, 5)
    a("s_add_u32 s26, s26, 4")
    dump(a, 2, "s26")
    a("s_endpgm")
    a.lab("L3_compute")
    a("s_and_b32 s31, s26, 1")
    a("s_lshr_b32 s32, s26, 1")
    a("v_and_b32 v2, 15, v0")
    a("v_lshrrev_b32 v3, 4, v0")
    a("s_lshl_b32 s33, s31, 13")
    a("v_lshlrev_b32 v4, 4, v2")
    a("v_lshl_add_u32 v4, v3, 9, v4")
    a(f"v_add_u32 v{VOB}, s33, v4")
    a(f"v_mov_b32 v{VOA}, v{VOB}")
    a("v_bfe_u32 v4, v0, 2, 3")
    a("v_lshrrev_b32 v5, 5, v0")
    a("v_lshl_add_u32 v5, v5, 4, v4")
    a("v_lshlrev_b32 v5, 8, v5")
    a("v_and_b32 v6, 3, v0")
    a("v_lshl_add_u32 v5, v6, 3, v5")
    a("v_add_u32 v5, 16384, v5")
    a("s_lshl_b32 s33, s32, 2")
    a("v_xor_b32 v4, s33, v4")
    a(f"v_lshl_add_u32 v{VWB}, v4, 5, v5")
    for nb in range(1, 4): a(f"v_xor_b32 v{VWB+nb}, {nb*32}, v{VWB}")
    for nb in range(4): a(f"v_mov_b32 v{VWA+nb}, v{VWB+nb}")
    for i in range(64): a(f"v_mov_b32 v{ACC+i}, 0")
    a("s_mov_b32 s33, 0")
    a("s_mov_b32 s35, 0")
    a("s_waitcnt lgkmcnt(0)")
    srd(a, 16, 36, 8 << 20)
    def rdO(f, ks, mt): return [f"ds_read_b128 {vr(Of(f,mt))}, v{VOA} offset:{(mt>>1)*4096 + ks*2048 + (mt&1)*256}"]
    def rdW(f, ks, nb): return [f"ds_read_b64_tr_b16 {vr(Wf(f,nb),2)}, v{VWA+nb} offset:{ks*8192}",
                                f"ds_read_b64_tr_b16 {vr(Wf(f,nb)+2,2)}, v{VWA+nb} offset:{ks*8192+2048}"]
    def reads(f, ks):
        return [rdO(f, ks, 0)] + [rdW(f, ks, nb) for nb in range(4)] + [rdO(f, ks, mt) for mt in (1, 2, 3)]
    def mm(f):
        return [mfma16(acc(mt, nb), Wf(f, nb), Of(f, mt)) for mt in range(4) for nb in range(4)]
    stamp(a, 2)
    a("s_barrier")
    stamp(a, 3)
    for grp in reads(0, 0):
        for t in grp: a(t)
    a("s_branch L3_mid")
    a.raw(".p2align 6")
    a.lab("L3_loop")
    for t in spread(mm(1), reads(0, 0), 0, 1): a(t)
    a.lab("L3_mid")
    a("s_waitcnt lgkmcnt(0)")
    upd = [[f"s_add_u32 s33, s33, {SLOT}", f"s_and_b32 s33, s33, {4*SLOT-1:#x}"], ["s_add_u32 s35, s35, 1", f"v_add_u32 v{VOA}, s33, v{VOB}"]]
    upd += [[f"v_add_u32 v{VWA+nb}, s33, v{VWB+nb}" for nb in (0, 1)], [f"v_add_u32 v{VWA+nb}, s33, v{VWB+nb}" for nb in (2, 3)]]
    upd += [["s_cmp_lt_u32 s35, 16", "s_waitcnt lgkmcnt(0)"], ["s_barrier"]]
    for t in spread(mm(0), reads(1, 1) + upd, 0, 1): a(t)
    a("s_cbranch_scc1 L3_loop")
    for t in mm(1): a(t)
    stamp(a, 4)
    a("s_mul_i32 s41, s26, 9216")
    a("v_mul_u32_u24 v4, 144, v2")
    a("v_lshl_add_u32 v4, v3, 3, v4")
    a("v_add_u32 v4, s41, v4")
    a("v_lshrrev_b32 v5, 3, v0")
    a("v_mul_u32_u24 v6, 144, v5")
    a("v_and_b32 v7, 7, v0")
    a("v_lshl_add_u32 v6, v7, 4, v6")
    a("v_add_u32 v6, s41, v6")
    a("v_lshlrev_b32 v5, 12, v5")
    a(f"v_lshl_add_u32 v{VST}, v7, 4, v5")
    a("s_lshl_b32 s40, s24, 19")
    a("s_lshl_b32 s41, s31, 18")
    a("s_add_u32 s40, s40, s41")
    a("s_lshl_b32 s41, s22, 11")
    a("s_add_u32 s40, s40, s41")
    a("s_lshl_b32 s41, s25, 8")
    a("s_add_u32 s40, s40, s41")
    a("s_lshl_b32 s41, s32, 7")
    a("s_add_u32 s40, s40, s41")
    for mt in range(4):
        for nb in range(4):
            b = acc(mt, nb); t0 = F[0] + 2*(mt*4 + nb)
            a(f"v_cvt_pk_bf16_f32 v{t0}, v{b}, v{b+1}")
            a(f"v_cvt_pk_bf16_f32 v{t0+1}, v{b+2}, v{b+3}")
            a(f"ds_write_b64 v4, {vr(t0,2)} offset:{mt*16*144 + nb*32}")
        a(f"ds_read_b128 {vr(F[1]+8*mt)}, v6 offset:{mt*16*144}")
        a(f"ds_read_b128 {vr(F[1]+8*mt+4)}, v6 offset:{mt*16*144 + 8*144}")
        if mt >= 1:
            a("s_waitcnt lgkmcnt(6)")
            for h in range(2):
                a(f"buffer_store_dwordx4 {vr(F[1]+8*(mt-1)+4*h)}, v{VST}, s[16:19], s40 offen{OPT['st3']}")
                a(f"s_add_u32 s40, s40, {8*4096}")
    a("s_waitcnt lgkmcnt(0)")
    for h in range(2):
        a(f"buffer_store_dwordx4 {vr(F[1]+24+4*h)}, v{VST}, s[16:19], s40 offen{OPT['st3']}")
        a(f"s_add_u32 s40, s40, {8*4096}")
    stamp(a, 5)
    dump(a, 2, "s26")
    a.lab("L3_end")
    a("s_endpgm")
    return a.text(), kd(N, NV), f"; @launch kernel={N} grid=(256,1,1) block=(512,1,1) lds=131072"

def main():
    ks = [k1(), k2(), k3()]
    hdr = open("cdna_kernels/" + NAME + ".s.ref").read().split("\n")
    top = [l for l in hdr if l.startswith(";") and "@launch" not in l and "Override" not in l and "grid=ceil" not in l]
    out = "\n".join(top) + "\n" + "\n".join(k[2] for k in ks) + "\n"
    out += '.amdgcn_target "amdgcn-amd-amdhsa--gfx950"\n.text\n'
    for k in ks: out += k[0]
    out += '.section .rodata,"a"\n'
    for k in ks: out += k[1]
    open(sys.argv[1], "w").write(out)

main()
```

```python
import struct, math, sys

NAME = "concat_heads__mha_block__sliding_local_dilated__prompt"
OPT = dict(st1=" sc1", st2=" sc1", st3="", dbg="0", pf1="1", pf3="1", ord1="0", dlt="4", nx="0", ph="2", s2e="0", prio="1", k2x="", cpf="1", hprio="0", trip="0", k1x="", tlb="1", bslots="23456")
for a in sys.argv[2:]:
    k, v = a.split("=", 1)
    OPT[k] = v

def f2u(x): return struct.unpack("<I", struct.pack("<f", x))[0]
QSCALE = f2u(math.log2(math.e) / math.sqrt(32.0))
NEGBIG = f2u(-1e30)

QF, KF, VF, OF = 0, 8 << 20, 16 << 20, 24 << 20
WS_BYTES = 32 << 20

class A:
    def __init__(s): s.l = []
    def __call__(s, t): s.l.append("    " + t)
    def lab(s, t): s.l.append(t + ":")
    def raw(s, t): s.l.append(t)
    def text(s): return "\n".join(s.l) + "\n"

def vr(b, n=4): return f"v[{b}:{b+n-1}]"
def mfma(d, a, b, c=None):
    cc = vr(d, 16) if c is None else (c if isinstance(c, str) else vr(c, 16))
    return f"v_mfma_f32_32x32x16_bf16 {vr(d,16)}, {vr(a)}, {vr(b)}, {cc}"

def mfma16(d, a, b):
    return f"v_mfma_f32_16x16x32_bf16 {vr(d)}, {vr(a)}, {vr(b)}, {vr(d)}"

def spread(main, fill, start=0, every=1, per=1):
    out = []; k = 0
    for i, m in enumerate(main):
        out.append(m)
        if i >= start and (i - start) % every == 0:
            for _ in range(per):
                if k < len(fill):
                    out += fill[k]; k += 1
    while k < len(fill):
        out += fill[k]; k += 1
    return out

def interleave(main, fill, pattern):
    out = []; k = 0
    for i, m in enumerate(main):
        for _ in range(pattern[i] if i < len(pattern) else 0):
            if k < len(fill):
                out += fill[k]; k += 1
        out.append(m)
    while k < len(fill):
        out += fill[k]; k += 1
    return out

def kd(name, vgpr, sgpr=96):
    acc = (vgpr + 3) // 4 * 4
    return f""".p2align 6
.amdhsa_kernel {name}
  .amdhsa_next_free_vgpr {vgpr}
  .amdhsa_next_free_sgpr {sgpr}
  .amdhsa_accum_offset {acc}
  .amdhsa_group_segment_fixed_size 0
  .amdhsa_kernarg_size 72
  .amdhsa_user_sgpr_count 2
  .amdhsa_user_sgpr_kernarg_segment_ptr 1
  .amdhsa_system_sgpr_workgroup_id_x 1
.end_amdhsa_kernel
"""

DBG = OPT["dbg"] == "1"
def stamp(a, n):
    if DBG:
        a(f"s_memtime s[{64+2*n}:{65+2*n}]")
def rstamp(a, n):
    if DBG:
        a(f"s_memrealtime s[{64+2*n}:{65+2*n}]")
def dump(a, kidx, wave_sgpr, nst=8):
    if not DBG: return
    a("s_load_dwordx2 s[88:89], s[0:1], 64")
    a("s_waitcnt lgkmcnt(0) vmcnt(0)")
    a(f"s_memtime s[{64+2*(nst-2)}:{65+2*(nst-2)}]")
    a(f"s_memrealtime s[{64+2*(nst-1)}:{65+2*(nst-1)}]")
    a("s_waitcnt lgkmcnt(0)")
    a("s_mov_b32 s90, 0x8000000")
    a("s_mov_b32 s91, 0x00020000")
    a("s_lshl_b32 s92, s2, 3")
    a(f"s_add_u32 s92, s92, {wave_sgpr}")
    a("s_lshl_b32 s92, s92, 6")
    a(f"s_add_u32 s92, s92, {(64+kidx) << 20}")
    a("v_mov_b32 v2, 0")
    for n in range(nst):
        a(f"v_mov_b32 v3, s{64+2*n}")
        a(f"buffer_store_dword v3, v2, s[88:91], s92 offen offset:{4*n}")
        a("s_nop 1")

_cp = [0]
def codepf(a, start, end, vtmp, lane="v0"):
    if OPT["cpf"] != "1": return
    _cp[0] += 1
    l = f"Lcp{_cp[0]}"
    a("s_getpc_b64 s[56:57]")
    a.lab(l)
    a(f"s_add_u32 s56, s56, {start}-{l}")
    a(f"s_addc_u32 s57, s57, ({start}-{l})>>32")
    a(f"v_lshlrev_b32 v{vtmp}, 7, {lane}")
    a(f"v_min_u32 v{vtmp}, {end}-{start}-4, v{vtmp}")
    a(f"global_load_dword v{vtmp}, v{vtmp}, s[56:57]")

def head(a, name):
    a.raw(f".globl {name}\n.p2align 8\n.type {name},@function\n{name}:")

def srd(a, d, base, nbytes):
    a(f"s_mov_b32 s{d}, s{base}")
    a(f"s_mov_b32 s{d+1}, s{base+1}")
    a(f"s_mov_b32 s{d+2}, {nbytes:#x}")
    a(f"s_mov_b32 s{d+3}, 0x00020000")

def place(main, fill, per=2, start=0):
    out = []; k = 0
    for i, m in enumerate(main):
        out.append(m)
        if i >= start:
            out += fill[k:k+per]; k += per
    out += fill[k:]
    return out

def sched(M, rd, d, post, late, late_dma=False):
    n = len(M)
    gaps = [[] for _ in range(n)]
    if late_dma: rg = list(range(len(rd))); dg = [len(rd) + 2*k for k in range(len(d))]
    else:
        dg = [1 + 4*k for k in range(len(d))]; rg = [g for g in range(n) if g not in dg][:len(rd)]
    for g, t in zip(rg, rd): gaps[g].append(t)
    for g, (m_, l_) in zip(dg, d):
        gaps[g-1].append(m_); gaps[g].append(l_)
    def runs(ops):
        out = []
        for t in ops:
            if t.startswith("s_cselect") : out[-1].append(t)
            else: out.append([t])
        return out
    def put(run, g0):
        g = g0
        while g < n - 1 and len(gaps[g]) + len(run) > 3: g += 1
        gaps[g] += run
        return g
    g = (dg[len(d)-1] if d else 0)
    for r in runs(post): g = put(r, g)
    g = 0
    for r in runs(late):
        if r[0].startswith("v_"): g = max(g, rg[-1] if rg else 0)
        g = put(r, g)
    seq = []
    for i, m_ in enumerate(M):
        seq.append(m_); seq += gaps[i]
    return seq

def k1():
    a = A(); N = "qkv_kernel"
    head(a, N)
    XS, WS, WSL = 32768, 98304, 12288
    VD, VXB, VXA, VWB, VWA, VST, VPX, VPW, VPD = 10, 18, 20, 22, 24, 26, 27, 28, 29
    F = [32, 72]; ACC = 112; NV = 208
    PF = OPT["pf1"] == "1"
    DLT = int(OPT["dlt"])
    def A_(f, mt): return F[f] + 4*mt
    def B_(f, nb): return F[f] + 16 + 4*nb
    def acc(mt, nb): return ACC + (mt*6 + nb)*4
    a("s_cmp_ge_u32 s2, 256")
    a("s_cbranch_scc1 L1_end")
    stamp(a, 0); rstamp(a, 1)
    a("s_and_b32 s20, s2, 7")
    a("s_lshr_b32 s21, s2, 3")
    a("s_lshr_b32 s22, s20, 2")
    a("s_mul_i32 s23, s22, 24")
    a("s_load_dwordx4 s[4:7], s[0:1], s23")
    a("s_load_dwordx2 s[36:37], s[0:1], 64")
    a("v_lshrrev_b32 v1, 6, v0")
    a("v_and_b32 v0, 63, v0")
    a("v_readfirstlane_b32 s26, v1")
    a("s_and_b32 s24, s20, 1")
    a("s_lshl_b32 s24, s24, 2")
    a("s_and_b32 s25, s21, 3")
    a("s_add_u32 s24, s24, s25")
    a("s_bfe_u32 s25, s20, 0x10001")
    a("s_lshl_b32 s25, s25, 3")
    a("s_lshr_b32 s27, s21, 2")
    if OPT["nx"] != "0": a(f"s_xor_b32 s27, s27, {OPT['nx']}")
    a("s_add_u32 s25, s25, s27")
    a("s_and_b32 s31, s26, 3")
    a("s_lshr_b32 s32, s26, 2")
    PH = OPT["ph"]
    if PH == "0": a("s_mov_b32 s44, 0")
    elif PH == "1":
        a("s_lshl_b32 s44, s20, 1")
    elif PH == "2":
        a("s_lshl_b32 s44, s20, 1")
        a("s_and_b32 s45, s21, 1")
        a("s_add_u32 s44, s44, s45")
    elif PH == "3":
        a("s_lshl_b32 s44, s22, 1")
        a("s_and_b32 s45, s20, 1")
        a("s_add_u32 s44, s44, s45")
        a("s_lshl_b32 s44, s44, 2")
        a("s_and_b32 s45, s21, 3")
        a("s_add_u32 s44, s44, s45")
    elif PH == "4":
        a("s_lshl_b32 s44, s22, 1")
        a("s_and_b32 s45, s20, 1")
        a("s_add_u32 s44, s44, s45")
        a("s_lshl_b32 s44, s44, 2")
    a("v_lshrrev_b32 v2, 3, v0")
    a("v_and_b32 v3, 7, v0")
    a("v_lshrrev_b32 v4, 4, v0")

    def rdA(f, ks, mt): return [f"ds_read_b128 {vr(A_(f,mt))}, v{VXA+ks} offset:{mt*2048}"]
    def rdB(f, nb):
        o = (nb//2)*4096
        return [f"ds_read_b64_tr_b16 {vr(B_(f,nb),2)}, v{VWA+nb%2} offset:{o}",
                f"ds_read_b64_tr_b16 {vr(B_(f,nb)+2,2)}, v{VWA+nb%2} offset:{o+512}"]
    def reads(f, ks):
        r = rdB(f, 0)
        for mt in range(4): r += rdA(f, ks, mt)
        for nb in range(1, 6): r += rdB(f, nb)
        return r
    def mm(f):
        r = []
        for nb in range(6):
            for mt in range(4):
                if nb < 4: r.append(mfma16(acc(mt, nb), B_(f, nb), A_(f, mt)))
                else:      r.append(mfma16(acc(mt, nb), A_(f, mt), B_(f, nb)))
        return r

    def common_setup():
        srd(a, 16, 36, WS_BYTES)
        a("v_and_b32 v2, 15, v0")
        a("v_lshrrev_b32 v3, 4, v0")
        a("v_bfe_u32 v4, v0, 1, 3")
        a("s_lshl_b32 s33, s31, 13")
        a("v_lshlrev_b32 v5, 7, v2")
        a("v_add_u32 v5, s33, v5")
        a("v_xor_b32 v6, v3, v4")
        a(f"v_lshl_add_u32 v{VXB}, v6, 4, v5")
        a(f"v_xor_b32 v{VXB+1}, 64, v{VXB}")
        a(f"v_mov_b32 v{VXA}, v{VXB}")
        a(f"v_mov_b32 v{VXA+1}, v{VXB+1}")
        a("v_bfe_u32 v4, v0, 2, 2")
        a("v_lshl_add_u32 v4, v3, 3, v4")
        a("v_lshlrev_b32 v4, 7, v4")
        a("v_and_b32 v6, 3, v0")
        a("v_lshl_add_u32 v4, v6, 3, v4")
        a("v_bfe_u32 v5, v0, 3, 2")
        a("s_lshl_b32 s33, s32, 1")
        a("v_xor_b32 v5, s33, v5")
        a(f"v_lshl_add_u32 v{VWB}, v5, 5, v4")
        a(f"v_xor_b32 v{VWB+1}, 32, v{VWB}")
        a(f"v_add_u32 v{VWA}, {WS}, v{VWB}")
        a(f"v_add_u32 v{VWA+1}, {WS}, v{VWB+1}")
        a("v_lshlrev_b32 v4, 4, v2")
        a(f"v_lshl_add_u32 v{VST}, v3, 9, v4")
        for i in range(96): a(f"v_mov_b32 v{ACC+i}, 0")
        a("s_lshl_b32 s40, s22, 22")
        a("s_lshl_b32 s41, s25, 1")
        a("s_add_u32 s41, s41, s32")
        a("s_lshl_b32 s41, s41, 17")
        a("s_add_u32 s40, s40, s41")
        a("s_lshl_b32 s41, s24, 14")
        a("s_add_u32 s40, s40, s41")
        a("s_lshl_b32 s41, s31, 12")
        a("s_add_u32 s40, s40, s41")
        a(f"s_add_u32 s41, s40, {KF}")
        a(f"s_add_u32 s42, s40, {VF}")
        a(f"s_mov_b32 s43, {QSCALE:#x}")
        a("s_mov_b32 s33, 0")
        a(f"s_mov_b32 s34, {WS}")
        a("s_mov_b32 s35, 0")

    wupd = [f"s_add_u32 s34, s34, {WSL}", f"s_cmp_eq_u32 s34, {WS+5*WSL}", f"s_cselect_b32 s34, {WS}, s34",
            f"v_add_u32 v{VWA}, s34, v{VWB}", f"v_add_u32 v{VWA+1}, s34, v{VWB+1}", "s_add_u32 s35, s35, 1"]
    xupd = [f"s_add_u32 s33, s33, {XS}", f"s_cmp_eq_u32 s33, {3*XS}", "s_cselect_b32 s33, 0, s33",
            f"v_add_u32 v{VXA}, s33, v{VXB}", f"v_add_u32 v{VXA+1}, s33, v{VXB+1}"]

    def mix(dma, other):
        out = []; o = list(other)
        for m, l in dma:
            out.append(m)
            out.append(o.pop(0) if o else "s_nop 0")
            out.append(l)
        return out + o

    def event(tag):
        a.lab(tag)
        a("s_mov_b32 s49, 0x7fff")
        if OPT["cpf"] == "1":
            a("s_cmp_eq_u32 s31, 3")
            a(f"s_cbranch_scc1 {tag}c")
        a(f"buffer_load_dword v{VPD}, v{VPW}, s[12:15], s50 offen")
        a(f"s_branch {tag}r")
        if OPT["cpf"] == "1":
            a.lab(tag + "c")
            codepf(a, "attn_kernel", "L2_slow0", 31)
            if OPT["tlb"] == "1":
                a("v_lshlrev_b32 v30, 21, v0")
                a("buffer_load_dword v30, v30, s[16:19], 0 offen")
            a(f"s_branch {tag}r")

    a("s_cmp_lg_u32 s32, 0")
    a("s_cbranch_scc1 L1_W")
    for cls in ("X", "W"):
        P = "L1" + cls
        if cls == "X":
            a("v_lshlrev_b32 v5, 11, v2")
            a("v_xor_b32 v6, v3, v4")
            a("v_lshl_add_u32 v6, v6, 4, v5")
            a("v_xor_b32 v7, 64, v6")
            a(f"v_mov_b32 v{VD}, v6")
            a(f"v_add_u32 v{VD+1}, 16384, v7")
            a(f"v_add_u32 v{VD+2}, 32768, v6")
            a(f"v_add_u32 v{VD+3}, 49152, v7")
            a("s_lshl_b32 s27, s24, 19")
            a("s_lshl_b32 s28, s31, 16")
            a("s_add_u32 s45, s27, s28")
            a("s_lshl_b32 s46, s44, 7")
            a("s_add_u32 s27, s45, s46")
            a("s_add_u32 s28, s27, 0x40000")
            a("s_lshl_b32 s29, s31, 12")
            a(f"s_add_u32 s30, s29, {6*16384}")
            a("s_waitcnt lgkmcnt(0)")
            if OPT["s2e"] == "1": stamp(a, 2)
            srd(a, 8, 4, 4 << 20)
            def grp(par):
                so = "s27" if par == 0 else "s28"
                d = [(f"s_add_u32 m0, s29, {j*1024}", f"buffer_load_dwordx4 v{VD+j}, s[8:11], {so} offen lds") for j in range(4)]
                post = ["s_add_u32 s29, s29, 16384"]
                if par == 0: post += ["s_add_u32 s46, s46, 128", "s_and_b32 s46, s46, 0x7ff", "s_add_u32 s27, s45, s46"]
                if par == 1: post += ["s_add_u32 s28, s27, 0x40000", "s_cmp_eq_u32 s29, s30", f"s_cselect_b32 s38, {6*16384}, 0", "s_sub_u32 s29, s29, s38"]
                return d, post
            NG = 4
        else:
            a.lab("L1_W")
            if OPT["cpf"] == "1":
                a("s_cmp_lg_u32 s26, 7")
                a("s_cbranch_scc1 L1_nocp")
                codepf(a, "qkv_kernel", "L1_end", VPD)
                a.lab("L1_nocp")
            a("v_mul_u32_u24 v5, 6144, v2")
            a("v_and_b32 v6, 1, v4")
            a("v_lshlrev_b32 v6, 1, v6")
            a("s_and_b32 s33, s26, 1")
            a("s_lshl_b32 s33, s33, 2")
            a("v_xor_b32 v6, v3, v6")
            a("v_xor_b32 v6, s33, v6")
            a(f"v_lshl_add_u32 v{VD}, v6, 4, v5")
            a(f"v_add_u32 v{VD+1}, 2048, v{VD}")
            a(f"v_add_u32 v{VD+2}, 4096, v{VD}")
            if PF:
                a(f"v_mul_u32_u24 v{VPW}, 6144, v0")
                a("v_cmp_gt_u32 vcc, 32, v0")
                a("v_mov_b32 v7, 0x7fffff00")
                a("s_lshl_b32 s50, s20, 2")
                a(f"v_cndmask_b32 v{VPW}, v7, v{VPW}, vcc")
                a("s_add_u32 s50, s50, s21")
                a("s_and_b32 s50, s50, 31")
                a(f"s_mul_i32 s50, s50, {32*6144}")
                a("s_lshl_b32 s51, s31, 11")
                a("s_add_u32 s50, s50, s51")
                a("s_bfe_u32 s51, s20, 0x10001")
                a("s_lshl_b32 s51, s51, 10")
                a("s_add_u32 s50, s50, s51")
                a("s_add_u32 s50, s50, 384")
                a(f"s_max_u32 s49, s21, {4+DLT}")
                a(f"s_sub_u32 s49, s49, {4+DLT}")
                a("s_cmp_lt_u32 s21, 5")
                a("s_cselect_b32 s49, 0x7fff, s49")
                a("s_cmp_eq_u32 s31, 3")
                a(f"s_cselect_b32 s49, {26 if OPT['cpf'] == '1' else 0x7fff}, s49")
            a("s_lshl_b32 s27, s25, 7")
            a(f"s_mul_i32 s28, s31, {8*6144}")
            a("s_add_u32 s27, s27, s28")
            a(f"s_mul_i32 s28, s44, {64*6144}")
            a("s_add_u32 s27, s27, s28")
            a("s_lshl_b32 s29, s31, 10")
            a(f"s_add_u32 s29, s29, {WS}")
            a(f"s_add_u32 s30, s29, {5*WSL}")
            a("s_waitcnt lgkmcnt(0)")
            if OPT["s2e"] == "1": stamp(a, 2)
            srd(a, 12, 6, 6 << 20)
            def grp(par):
                d = [(f"s_add_u32 m0, s29, {g*4096}", f"buffer_load_dwordx4 v{VD+g}, s[12:15], s27 offen lds") for g in range(3)]
                post = [f"s_add_u32 s27, s27, {32*6144}", f"s_add_u32 s29, s29, {WSL}",
                        "s_cmp_eq_u32 s29, s30", f"s_cselect_b32 s38, {5*WSL}, 0", "s_sub_u32 s29, s29, s38"]
                if par == 1: post += [f"s_cmp_ge_u32 s27, {6<<20:#x}", f"s_cselect_b32 s38, {6<<20:#x}, 0", "s_sub_u32 s27, s27, s38"]
                return d, post
            NG = 3
        def emit_grp(par):
            d, post = grp(par)
            for t in mix(d, []) + post: a(t)
        first = 2 if cls == "X" else 1
        for n in range(first): emit_grp(n & 1)
        common_setup()
        for n in range(first, 4): emit_grp(n & 1)
        npf = 0
        if cls == "W" and PF:
            a("s_cmp_eq_u32 s49, 0")
            a(f"s_cbranch_scc1 {P}_e0")
            a.lab(f"{P}_e0r")
        if OPT["s2e"] != "1": stamp(a, 2)
        a(f"s_waitcnt vmcnt({(4-first)*NG + npf})")
        a("s_barrier")
        stamp(a, 3)
        d, post = grp(0)
        for t in reads(0, 0) + mix(d, []) + post + wupd: a(t)
        if cls == "W": a(f"s_waitcnt vmcnt({3*NG + npf})")
        a("s_waitcnt lgkmcnt(0)")
        a("s_barrier")
        a(f"s_branch {P}_odd")
        a.raw(".p2align 6")
        a.lab(f"{P}_loop")
        for par in range(2):
            if par == 1: a.lab(f"{P}_odd")
            d, post = grp(par)
            rd = reads(par, par)
            tail = list(post) + wupd
            if par == 1:
                tail += xupd
                sup = ["s_cmp_lt_u32 s35, 28", f"s_cselect_b32 s10, {4<<20:#x}, 0" if cls == "X" else f"s_cselect_b32 s14, {6<<20:#x}, 0"]
                tail += sup; post = list(post) + sup
            X = OPT["k1x"]
            if "d" in X: d = []
            if "r" in X: rd = []
            fill = rd[:8] + mix(d, rd[8:]) + tail
            if "o" not in X:
                late = [t for t in tail if t not in post]
                late = [t for t in late if not t.startswith("v_")] + [t for t in late if t.startswith("v_")]
                seq = sched(mm(1-par), rd, d, list(post), late, late_dma=("l" in X))
            elif "1" in X: seq = place(mm(1-par), fill, 2, 2)
            elif "3" in X: seq = place(mm(1-par), fill, 3, 0)
            elif "f" in X: seq = rd[:4] + place(mm(1-par), fill[4:], 2, 0)
            else: seq = place(mm(1-par), fill, 2, 0)
            if "p" in X: seq = ["s_setprio 1"] + seq[:len(seq)-8] + ["s_setprio 0"] + seq[len(seq)-8:]
            if "P" in X and cls == "W": seq = ["s_setprio 1"] + seq
            for t in seq: a(t)
            if cls == "W" and PF:
                a("s_cmp_ge_u32 s35, s49")
                a(f"s_cbranch_scc1 {P}_e{par+1}")
                a.lab(f"{P}_e{par+1}r")
            if par == 1: a("s_cmp_lt_u32 s35, 32")
            if cls == "W": a(f"s_waitcnt vmcnt({3*NG}) lgkmcnt(0)")
            elif par == 1: a(f"s_waitcnt vmcnt({2*NG}) lgkmcnt(0)")
            else: a("s_waitcnt lgkmcnt(0)")
            if "b" not in X and not ("h" in X and par == 0): a("s_barrier")
        if OPT["trip"] == "1":
            a("s_cselect_b32 s62, 1, 0")
            a("s_cmp_lg_u32 s35, 4")
            a(f"s_cbranch_scc1 {P}_t1")
            stamp(a, 2)
            a.lab(f"{P}_t1")
            a("s_cmp_lg_u32 s62, 0")
        a(f"s_cbranch_scc1 {P}_loop")
        a("s_branch L1_epi")
        if cls == "W" and PF:
            for k in range(3): event(f"{P}_e{k}")
    a.lab("L1_epi")
    for t in mm(1): a(t)
    stamp(a, 4)
    a("s_nop 4")
    n = 0
    jobs = []
    for T in range(2):
        for sg in range(2): jobs.append((1, acc(2*T+sg, 2), acc(2*T+sg, 3), T*2048 + sg*256))
    for T in range(2):
        for sg in range(2): jobs.append((0, acc(2*T+sg, 0), acc(2*T+sg, 1), T*2048 + sg*256))
    for T in range(2):
        for u in range(2):  jobs.append((2, acc(2*T, 4+u), acc(2*T+1, 4+u), T*2048 + u*256))
    for seg, b0, b1, off in jobs:
        t0 = F[0] + 4*(n % 8); n += 1
        if seg == 0:
            for b in (b0, b1):
                for r in range(4): a(f"v_mul_f32 v{b+r}, s43, v{b+r}")
        a(f"v_cvt_pk_bf16_f32 v{t0}, v{b0}, v{b0+1}")
        a(f"v_cvt_pk_bf16_f32 v{t0+1}, v{b0+2}, v{b0+3}")
        a(f"v_cvt_pk_bf16_f32 v{t0+2}, v{b1}, v{b1+1}")
        a(f"v_cvt_pk_bf16_f32 v{t0+3}, v{b1+2}, v{b1+3}")
        a(f"buffer_store_dwordx4 {vr(t0)}, v{VST}, s[16:19], s{40+seg} offen offset:{off}{OPT['st1']}")
    stamp(a, 5)
    dump(a, 0, "s26")
    a.lab("L1_end")
    a("s_endpgm")
    return a.text(), kd(N, NV), f"; @launch kernel={N} grid=(256,1,1) block=(512,1,1) lds=159744"

def kperm(rho):
    return ((rho >> 2) & 1) * 16 + (rho >> 3) * 4 + (rho & 3)

def k2():
    a = A(); N = "attn_kernel"
    head(a, N)
    VL16, VKA, VVA, VIDX, VM, VT, VKL = 1, 2, 3, 4, 5, 6, 7
    ONES = 8; Q = [12, 20]; NEG = [28, 44]; O = [60, 76]; L = [92, 96]; KB = [100, 108]; VB = [116, 124]; S = [132, 148, 164, 180]
    NV = 200
    PF = OPT["pf3"] == "1"
    def sm32(d, av, b): return f"v_smfmac_f32_32x32x32_bf16 {vr(d,16)}, {vr(av)}, {vr(b,8)}, v{VIDX}"
    def sm16(l, b): return f"v_smfmac_f32_16x16x64_bf16 {vr(l)}, {vr(ONES)}, {vr(b,8)}, v{VIDX}"
    def ld(d, soff, off=0, v=VL16): a(f"buffer_load_dwordx4 {vr(d)}, v{v}, s[8:11], {soff} offen offset:{off}")
    def xhalf_max():
        a(f"v_max_f32 v{VM}, v{VM}, v{VT}")
        a("s_nop 0")
        a(f"v_mov_b32 v{VT}, v{VM}")
        a("s_nop 1")
        a(f"v_permlane32_swap_b32 v{VM}, v{VT}")
        a("s_nop 1")
        a(f"v_max_f32 v{VM}, v{VM}, v{VT}")
    def maxof(vals):
        a(f"v_max3_f32 v{VM}, v{vals[0]}, v{vals[1]}, v{vals[2]}")
        a(f"v_max3_f32 v{VT}, v{vals[3]}, v{vals[4]}, v{vals[5]}")
        for i in range(6, len(vals) - 2, 4):
            a(f"v_max3_f32 v{VM}, v{VM}, v{vals[i]}, v{vals[i+1]}")
            a(f"v_max3_f32 v{VT}, v{VT}, v{vals[i+2]}, v{vals[i+3]}")
        a(f"v_max3_f32 v{VM}, v{VM}, v{vals[-2]}, v{vals[-1]}")
        xhalf_max()
    def finish(soff, off, T, o, l):
        a(f"v_rcp_f32 v{VT}, v{l}")
        a("s_nop 0")
        for i in range(16): a(f"v_mul_f32 v{o+i}, v{o+i}, v{VT}")
        for i in range(8): a(f"v_cvt_pk_bf16_f32 v{T+i}, v{o+2*i}, v{o+2*i+1}")
        a(f"buffer_store_dwordx4 {vr(T)}, v{VL16}, s[8:11], {soff} offen{OPT['st2']}")
        a(f"buffer_store_dwordx4 {vr(T+4)}, v{VL16}, s[8:11], {soff} offen offset:1024{OPT['st2']}")
    def consts():
        a(f"v_mov_b32 v{VIDX}, 0xdddddddd")
        a("v_bfe_u32 v5, v0, 2, 1")
        a("v_cmp_eq_u32 vcc, 0, v5")
        a("v_mov_b32 v6, 0x3f803f80")
        a("s_nop 0")
        a(f"v_cndmask_b32 v{ONES}, 0, v6, vcc")
        a(f"v_cndmask_b32 v{ONES+1}, 0, v6, vcc")
        a(f"v_cndmask_b32 v{ONES+2}, v6, 0, vcc")
        a(f"v_cndmask_b32 v{ONES+3}, v6, 0, vcc")
    a("s_cmp_ge_u32 s2, 256")
    a("s_cbranch_scc1 L2_end")
    stamp(a, 0); rstamp(a, 1)
    a("s_load_dwordx2 s[4:5], s[0:1], 64")
    a("s_and_b32 s20, s2, 7")
    a("s_lshr_b32 s21, s2, 3")
    a("s_lshr_b32 s22, s20, 2")
    a("s_mul_i32 s22, s22, 24")
    a("s_add_u32 s22, s22, 16")
    a("s_load_dwordx2 s[6:7], s[0:1], s22")
    a("s_load_dwordx2 s[58:59], s[0:1], 48")
    a("v_lshrrev_b32 v1, 6, v0")
    a("v_and_b32 v0, 63, v0")
    a("v_readfirstlane_b32 s24, v1")
    a("s_lshl_b32 s22, s20, 2")
    a("s_lshr_b32 s23, s21, 3")
    a("s_add_u32 s22, s22, s23")
    a("s_and_b32 s23, s21, 7")
    a(f"v_lshlrev_b32 v{VL16}, 4, v0")
    a("s_and_b32 s28, s24, 3")
    a("s_lshl_b32 s25, s23, 3")
    a("s_lshl_b32 s29, s28, 1")
    a("s_add_u32 s25, s25, s29")
    a("s_lshl_b32 s26, s22, 17")
    a("s_lshl_b32 s27, s25, 11")
    a("s_add_u32 s27, s27, s26")
    a("v_bfe_u32 v5, v0, 2, 1")
    a("v_and_b32 v6, 0x23, v0")
    a("v_lshl_or_b32 v6, v5, 4, v6")
    a("v_bfe_u32 v5, v0, 3, 2")
    a("v_lshl_or_b32 v6, v5, 2, v6")
    a(f"v_lshlrev_b32 v{VKL}, 4, v6")
    a(f"s_add_u32 s33, s26, {KF}")
    a("s_lshl_b32 s37, s25, 16")
    a("s_lshl_b32 s38, s22, 11")
    a("s_add_u32 s37, s37, s38")
    a(f"s_add_u32 s37, s37, {OF}")
    a("s_cmp_ge_u32 s24, 4")
    a("s_cbranch_scc1 L2_help")
    a("s_waitcnt lgkmcnt(0)")
    srd(a, 8, 4, WS_BYTES)
    ld(Q[0], "s27"); ld(KB[0], "s33", 0, VKL); ld(Q[0]+4, "s27", 1024); ld(KB[0]+4, "s33", 1024, VKL)
    ld(Q[1], "s27", 2048); ld(Q[1]+4, "s27", 3072)
    ld(KB[1], "s33", 2048, VKL); ld(KB[1]+4, "s33", 3072, VKL)
    consts()
    a("s_add_u32 s38, s37, 0x10000")
    a(f"v_mov_b32 v{VKA}, v{VKL}")
    a(f"v_add_u32 v{VVA}, 0x10000, v{VL16}")
    for i in range(40): a(f"v_mov_b32 v{O[0]+i}, 0")
    for i in range(16): a(f"v_mov_b32 v{S[3]+i}, 0")
    for i in range(8): a(f"v_mov_b32 v{VB[1]+i}, 0")
    a("s_mov_b32 s39, 0")
    a("s_mov_b32 s40, 0")
    stamp(a, 2)
    a("s_waitcnt vmcnt(4)")
    a(mfma(S[0], KB[0], Q[0], "0")); a(mfma(S[0], KB[0]+4, Q[0]+4))
    a("s_waitcnt vmcnt(2)")
    a(mfma(S[1], KB[0], Q[1], "0")); a(mfma(S[1], KB[0]+4, Q[1]+4))
    stamp(a, 3)
    a("s_nop 8")
    maxof([S[0]+r for r in range(16)])
    for i in range(16): a(f"v_sub_f32 v{NEG[0]+i}, 0, v{VM}")
    for i in range(16): a(f"v_sub_f32 v{S[0]+i}, v{S[0]+i}, v{VM}")
    maxof([S[1]+r for r in range(16)])
    for i in range(16): a(f"v_sub_f32 v{NEG[1]+i}, 0, v{VM}")
    a("s_waitcnt vmcnt(0)")
    a("s_barrier")
    stamp(a, 4)
    if OPT["tlb"] == "1": a(f"buffer_load_dword v196, v{VL16}, s[8:11], s37 offen")
    a("s_branch L2_it3")

    def item(p, qk=True, rd=True, pre=None, post=None):
        n = (p - 3) % 16
        i = n >> 1; qt = n & 1
        Sn, Sc, Sp = S[(n+1) % 4], S[n % 4], S[(n-1) % 4]
        qn = (n+1) & 1; kbu = KB[((n+1) >> 1) % 2]
        qp = (n-1) & 1; vbu = VB[((n-1) >> 1) % 2]
        if qt == 1:
            kt = (i + 2) % 8
            r = [f"ds_read_b128 {vr(KB[i % 2])}, v{VKA} offset:{kt*2048}", f"ds_read_b128 {vr(KB[i % 2]+4)}, v{VKA} offset:{kt*2048+1024}"]
        else:
            r = [f"ds_read_b128 {vr(VB[i % 2])}, v{VVA} offset:{i*2048}", f"ds_read_b128 {vr(VB[i % 2]+4)}, v{VVA} offset:{i*2048+1024}"]
        if not rd or "r" in OPT["k2x"]: r = []
        ex = [f"v_exp_f32 v{Sc+k}, v{Sc+k}" for k in range(16)]
        post = list(post or [])
        seq = []
        if qk: seq.append(mfma(Sn, kbu, Q[qn], NEG[qn]))
        seq += post[0:1] + ex[0:3]
        if qk: seq.append(mfma(Sn, kbu+4, Q[qn]+4))
        seq += ["s_waitcnt lgkmcnt(0)"] + list(pre or []) + ex[3:6]
        seq.append(sm32(O[qp], vbu, Sp))
        seq += r[:1] + ex[6:9]
        seq.append(sm16(L[qp], Sp))
        seq += post[1:3] + ex[9:10]
        seq.append(sm32(O[qp], vbu+4, Sp+8))
        seq += r[1:] + ex[10:13]
        seq.append(sm16(L[qp], Sp+8))
        seq += post[3:] + ex[13:16]
        for t in seq: a(t)

    a.raw(".p2align 6")
    a.lab("L2_loop")
    item(0, pre=["s_barrier", f"v_add_u32 v{VKA}, s40, v{VKL}"])
    item(1); item(2)
    a(f"v_add_u32 v{VVA}, s41, v{VL16}")
    a.lab("L2_it3")
    for p in range(3, 15): item(p)
    item(15, post=["s_add_u32 s40, s40, 16384", "s_and_b32 s40, s40, 0xffff", "s_add_u32 s41, s40, 0x10000", "s_add_u32 s39, s39, 1", "s_cmp_lt_u32 s39, 8"])
    a("s_cbranch_scc1 L2_loop")
    item(0, rd=False)
    item(1)
    item(2, qk=False, rd=False)
    a("s_nop 1")
    Sp = S[3]
    a(sm32(O[1], VB[1], Sp)); a(sm16(L[1], Sp)); a(sm32(O[1], VB[1]+4, Sp+8)); a(sm16(L[1], Sp+8))
    a("s_nop 4")
    stamp(a, 5)
    for qt in range(2):
        a(f"v_mul_f32 v{VM}, 0, v{O[qt]}")
        for i in range(1, 16): a(f"v_fma_f32 v{VM}, v{O[qt]+i}, 0, v{VM}")
        a(f"v_add_f32 v{VM}, v{VM}, v{L[qt]}")
        a(f"v_mov_b32 v{VT}, {f2u(2.0**64):#x}")
        a(f"v_cmp_nlt_f32 vcc, v{VM}, v{VT}")
        a("s_nop 4")
        a(f"s_cbranch_vccnz L2_slow{qt}")
        a.lab(f"L2_fin{qt}")
        finish("s37" if qt == 0 else "s38", 0, S[1+qt], O[qt], L[qt])
    dump(a, 1, "s24")
    a.lab("L2_end")
    a("s_endpgm")

    a.lab("L2_help")
    MC, MP, MP0, SC, SP, OB, LB = 12, 28, 44, 60, 76, [92, 112], [108, 128]
    QB = [132, 140]; KX = [148, 156, 164]; VX = [172, 180, 188]; VPF = 2
    a("s_lshl_b32 s34, s28, 12")
    a("s_add_u32 s35, s33, s34")
    a(f"s_add_u32 s36, s35, {VF-KF}")
    a("s_waitcnt lgkmcnt(0)")
    srd(a, 8, 4, WS_BYTES)
    srd(a, 16, 6, 2 << 20)
    def dma_stage(st):
        for base, so in ((0, "s35"), (65536, "s36")):
            a(f"s_add_u32 m0, s34, {base + (st % 4)*16384}")
            a("s_nop 0")
            for j in range(4):
                a(f"buffer_load_dwordx4 v{VL16}, s[8:11], {so} offen offset:{j*1024} lds")
            a(f"s_add_u32 {so}, {so}, 16384")
    dma_stage(0)
    consts()
    a(f"s_add_u32 s28, s27, {4<<20}")
    a(f"s_add_u32 s29, s28, {KF}")
    a(f"s_add_u32 s30, s28, {VF}")
    a("s_cmp_eq_u32 s25, 0")
    a("s_cselect_b32 s32, 0, 2048")
    a("s_cselect_b64 s[44:45], 0, -1")
    a("s_sub_u32 s31, s29, s32")
    a("s_sub_u32 s32, s30, s32")
    a(f"s_add_u32 s37, s37, {4<<20}")
    a("s_add_u32 s38, s37, 0x10000")
    if PF:
        a(f"v_lshlrev_b32 v{VPF}, 7, v0")
        a("v_cmp_gt_u32 vcc, 32, v0")
        a("v_mov_b32 v5, 0x7fffff00")
        a("s_lshl_b32 s47, s21, 16")
        a(f"v_cndmask_b32 v{VPF}, v5, v{VPF}, vcc")
        a("s_lshl_b32 s46, s34, 2")
        a("s_add_u32 s47, s47, s46")
    def pf():
        if PF:
            a(f"buffer_load_dword v{VPF+1}, v{VPF}, s[16:19], s47 offen")
            a("s_add_u32 s47, s47, 4096")
    for i in range(40): a(f"v_mov_b32 v{OB[0]+i}, 0")
    a(f"v_mov_b32 v{VT}, {NEGBIG:#x}")
    def lanemask(r, prev):
        m = 0
        for l in range(64):
            q = l & 31; hh = l >> 5
            key = kperm(8*(r//4) + 4*hh + r % 4)
            d = q - key + (32 if prev else 0)
            if 0 <= d <= 14 and d % 2 == 0: m |= 1 << l
        return m
    def masks(prev):
        k = 0
        for r in range(16):
            m = lanemask(r, prev)
            sp = 48 + 2*(k % 4); k += 1
            a(f"s_mov_b32 s{sp}, {m & 0xffffffff:#x}")
            a(f"s_mov_b32 s{sp+1}, {m >> 32:#x}")
            a(f"v_cndmask_b32 v{(MP if prev else MC)+r}, v{VT}, 0, s[{sp}:{sp+1}]")
            if prev: a(f"v_cndmask_b32 v{MP0+r}, v{VT}, v{MP+r}, s[44:45]")
    masks(0)
    stamp(a, 2); stamp(a, 3)
    a("s_waitcnt vmcnt(0)")
    a("s_barrier")
    stamp(a, 4)
    dma_stage(1)
    dma_stage(2)
    masks(1)
    if OPT["hprio"] != "0": a(f"s_setprio {OPT['hprio']}")
    def bcomp(t):
        keep = a.l; a.l = []
        kc, kp, vc, vp = KX[t+1], KX[t], VX[t+1], VX[t]
        ob, lb = OB[t], LB[t]
        a(mfma(SC, kc, QB[t], MC)); a(mfma(SP, kp, QB[t], MP0 if t == 0 else MP))
        a(mfma(SC, kc+4, QB[t]+4)); a(mfma(SP, kp+4, QB[t]+4))
        a("s_nop 10")
        vals = [SC+r for r in range(16)] + [SP+r for r in range(16)]
        maxof(vals)
        for v in vals: a(f"v_sub_f32 v{v}, v{v}, v{VM}")
        for v in vals: a(f"v_exp_f32 v{v}, v{v}")
        a("s_nop 1")
        a(sm32(ob, vc, SC)); a(sm16(lb, SC)); a(sm32(ob, vc+4, SC+8)); a(sm16(lb, SC+8))
        a(sm32(ob, vp, SP)); a(sm16(lb, SP)); a(sm16(lb, SP+8)); a(sm32(ob, vp+4, SP+8))
        a("s_nop 12")
        finish("s37" if t == 0 else "s38", 0, QB[t], ob, lb)
        out = a.l; a.l = keep
        return out
    work = [] if "B" in OPT["k2x"] else bcomp(0) + bcomp(1)
    def cost(t): return 2 if "v_exp" in t else (3 if "mfma" in t else 1)
    tot = sum(cost(t) for t in work)
    slots = [int(c) for c in OPT["bslots"]]
    chunks = {b: [] for b in range(8)}
    acc_ = 0
    for t in work:
        chunks[slots[min(len(slots) - 1, acc_ * len(slots) // tot)]].append(t)
        acc_ += cost(t)
    issued = ["s1"]*8 + ["s2"]*8
    for b in range(1, 8):
        need = f"s{b}"
        last = max(i for i, x in enumerate(issued) if x == need or (b == slots[0] and x == "B"))
        a(f"s_waitcnt vmcnt({len(issued) - 1 - last})")
        a("s_barrier")
        if b <= 5:
            dma_stage(b + 2); issued += [f"s{b+2}"]*8
        if b == 1:
            for t in range(2): ld(QB[t], "s28", t*2048); ld(QB[t]+4, "s28", t*2048+1024)
            ld(KX[0], "s31", 0, VKL); ld(KX[0]+4, "s31", 1024, VKL)
            for t in range(2): ld(KX[t+1], "s29", t*2048, VKL); ld(KX[t+1]+4, "s29", t*2048+1024, VKL)
            ld(VX[0], "s32"); ld(VX[0]+4, "s32", 1024)
            for t in range(2): ld(VX[t+1], "s30", t*2048); ld(VX[t+1]+4, "s30", t*2048+1024)
            issued += ["B"]*16
        if 2 <= b <= 5 and PF:
            pf(); issued += ["p"]
        if b == 6 and OPT["cpf"] == "1":
            codepf(a, NAME + "_kernel", "L3_end", 197); issued += ["p"]
        if b == 6 and OPT["tlb"] == "1":
            srd(a, 16, 58, 8 << 20)
            a(f"v_lshlrev_b32 v198, 21, v0")
            a(f"buffer_load_dword v198, v198, s[16:19], 0 offen"); issued += ["p"]
        for t in chunks[b]:
            a.l.append(t)
            if "buffer_store" in t: issued += ["st"]
    stamp(a, 5)
    dump(a, 1, "s24")
    a("s_endpgm")

    s0 = S[0]
    for qt in range(2):
        a.lab(f"L2_slow{qt}")
        a(f"s_add_u32 s36, s26, {VF}")
        a(f"v_mov_b32 v{VM}, 0xff800000")
        a("s_mov_b32 s39, 0")
        a.lab(f"L2_s1{qt}")
        a("s_add_u32 s41, s33, s39")
        ld(KB[0], "s41", 0, VKL); ld(KB[0]+4, "s41", 1024, VKL)
        a("s_waitcnt vmcnt(0)")
        a(mfma(s0, KB[0], Q[qt], "0")); a(mfma(s0, KB[0]+4, Q[qt]+4))
        a("s_nop 15")
        for i in range(0, 16, 2): a(f"v_max3_f32 v{VM}, v{VM}, v{s0+i}, v{s0+i+1}")
        a("s_add_u32 s39, s39, 2048")
        a(f"s_cmp_lt_u32 s39, {64*2048}")
        a(f"s_cbranch_scc1 L2_s1{qt}")
        a(f"v_mov_b32 v{VT}, v{VM}")
        xhalf_max()
        for i in range(16): a(f"v_sub_f32 v{NEG[qt]+i}, 0, v{VM}")
        for i in range(16): a(f"v_mov_b32 v{O[qt]+i}, 0")
        for i in range(4): a(f"v_mov_b32 v{L[qt]+i}, 0")
        a("s_mov_b32 s39, 0")
        a.lab(f"L2_s2{qt}")
        a("s_add_u32 s41, s33, s39")
        ld(KB[0], "s41", 0, VKL); ld(KB[0]+4, "s41", 1024, VKL)
        a("s_add_u32 s41, s36, s39")
        ld(VB[0], "s41"); ld(VB[0]+4, "s41", 1024)
        a("s_waitcnt vmcnt(0)")
        a(mfma(s0, KB[0], Q[qt], NEG[qt])); a(mfma(s0, KB[0]+4, Q[qt]+4))
        a("s_nop 15")
        for i in range(16): a(f"v_exp_f32 v{s0+i}, v{s0+i}")
        a("s_nop 1")
        a(sm32(O[qt], VB[0], s0)); a(sm16(L[qt], s0)); a(sm32(O[qt], VB[0]+4, s0+8)); a(sm16(L[qt], s0+8))
        a("s_nop 7")
        a("s_add_u32 s39, s39, 2048")
        a(f"s_cmp_lt_u32 s39, {64*2048}")
        a(f"s_cbranch_scc1 L2_s2{qt}")
        a("s_nop 15")
        a(f"s_branch L2_fin{qt}")
    return a.text(), kd(N, NV), f"; @launch kernel={N} grid=(256,1,1) block=(512,1,1) lds=131072"

def k3():
    a = A(); N = NAME + "_kernel"
    head(a, N)
    VL16, VWD0, VWD1, VOB, VOA, VWB, VWA, VST = 1, 8, 9, 10, 11, 12, 16, 20
    F = [24, 56]; ACC = 88; NV = 152
    def Of(f, mt): return F[f] + 4*mt
    def Wf(f, nb): return F[f] + 16 + 4*nb
    def acc(mt, nb): return ACC + (mt*4 + nb)*4
    SLOT = 32768
    a("s_cmp_ge_u32 s2, 256")
    a("s_cbranch_scc1 L3_end")
    stamp(a, 0); rstamp(a, 1)
    a("s_and_b32 s20, s2, 7")
    a("s_lshr_b32 s21, s2, 3")
    a("s_lshr_b32 s22, s20, 2")
    a("s_mul_i32 s23, s22, 24")
    a("s_add_u32 s23, s23, 16")
    a("s_load_dwordx2 s[4:5], s[0:1], s23")
    a("s_load_dwordx2 s[6:7], s[0:1], 64")
    a("s_load_dwordx2 s[36:37], s[0:1], 48")
    a("s_and_b32 s24, s20, 3")
    a("s_lshl_b32 s24, s24, 2")
    a("s_and_b32 s25, s21, 3")
    a("s_add_u32 s24, s24, s25")
    a("s_lshr_b32 s25, s21, 2")
    a("v_lshrrev_b32 v1, 6, v0")
    a("v_and_b32 v0, 63, v0")
    a("v_readfirstlane_b32 s26, v1")
    a(f"v_lshlrev_b32 v{VL16}, 4, v0")
    a("s_nop 2")
    a("s_cmp_lt_u32 s26, 4")
    a("s_cbranch_scc1 L3_compute")
    a("s_sub_u32 s26, s26, 4")
    a("v_lshrrev_b32 v2, 4, v0")
    a("v_and_b32 v3, 15, v0")
    a("v_lshlrev_b32 v4, 1, v2")
    a("v_xor_b32 v3, v3, v4")
    a("v_lshlrev_b32 v3, 4, v3")
    a(f"v_lshl_add_u32 v{VWD0}, v2, 11, v3")
    a(f"v_xor_b32 v{VWD1}, 128, v{VWD0}")
    a(f"v_add_u32 v{VWD1}, 8192, v{VWD1}")
    a("s_lshl_b32 s27, s22, 22")
    a("s_lshl_b32 s28, s24, 2")
    a("s_add_u32 s28, s28, s26")
    a("s_lshl_b32 s28, s28, 16")
    a("s_add_u32 s27, s27, s28")
    a(f"s_add_u32 s27, s27, {OF}")
    a("s_lshl_b32 s28, s26, 15")
    a("s_lshl_b32 s29, s25, 8")
    a("s_add_u32 s28, s28, s29")
    a("s_add_u32 s30, s28, 16384")
    a("s_lshl_b32 s29, s26, 12")
    a("s_waitcnt lgkmcnt(0)")
    srd(a, 8, 6, WS_BYTES)
    srd(a, 12, 4, 2 << 20)
    def dma(slot):
        a(f"s_add_u32 m0, s29, {slot + 16384}")
        a("s_nop 0")
        a(f"buffer_load_dwordx4 v{VWD0}, s[12:15], s28 offen lds")
        a("s_add_u32 m0, m0, 1024")
        a("s_nop 0")
        a(f"buffer_load_dwordx4 v{VWD1}, s[12:15], s28 offen lds")
        a("s_add_u32 m0, m0, 1024")
        a(f"s_add_u32 s28, s28, {64*2048}")
        a(f"buffer_load_dwordx4 v{VWD0}, s[12:15], s30 offen lds")
        a("s_add_u32 m0, m0, 1024")
        a("s_nop 0")
        a(f"buffer_load_dwordx4 v{VWD1}, s[12:15], s30 offen lds")
        a(f"s_add_u32 m0, s29, {slot}")
        a(f"s_add_u32 s30, s30, {64*2048}")
        for j in range(4):
            a(f"buffer_load_dwordx4 v{VL16}, s[8:11], s27 offen offset:{j*1024} lds")
        a("s_add_u32 s27, s27, 4096")
    for st in range(4): dma(st*SLOT)
    stamp(a, 2)
    a("s_waitcnt vmcnt(24)")
    a("s_barrier")
    stamp(a, 3)
    a("s_mov_b32 s35, 0")
    a.lab("L3_ld")
    for t in range(4):
        a("s_waitcnt vmcnt(16)")
        a("s_barrier")
        dma(t*SLOT)
    a("s_add_u32 s35, s35, 1")
    a("s_cmp_lt_u32 s35, 3")
    a("s_cbranch_scc1 L3_ld")
    for n in (16, 8, 0):
        a(f"s_waitcnt vmcnt({n})")
        a("s_barrier")
    stamp(a, 4); stamp(a, 5)
    a("s_add_u32 s26, s26, 4")
    dump(a, 2, "s26")
    a("s_endpgm")
    a.lab("L3_compute")
    a("s_and_b32 s31, s26, 1")
    a("s_lshr_b32 s32, s26, 1")
    a("v_and_b32 v2, 15, v0")
    a("v_lshrrev_b32 v3, 4, v0")
    a("s_lshl_b32 s33, s31, 13")
    a("v_lshlrev_b32 v4, 4, v2")
    a("v_lshl_add_u32 v4, v3, 9, v4")
    a(f"v_add_u32 v{VOB}, s33, v4")
    a(f"v_mov_b32 v{VOA}, v{VOB}")
    a("v_bfe_u32 v4, v0, 2, 3")
    a("v_lshrrev_b32 v5, 5, v0")
    a("v_lshl_add_u32 v5, v5, 4, v4")
    a("v_lshlrev_b32 v5, 8, v5")
    a("v_and_b32 v6, 3, v0")
    a("v_lshl_add_u32 v5, v6, 3, v5")
    a("v_add_u32 v5, 16384, v5")
    a("s_lshl_b32 s33, s32, 2")
    a("v_xor_b32 v4, s33, v4")
    a(f"v_lshl_add_u32 v{VWB}, v4, 5, v5")
    for nb in range(1, 4): a(f"v_xor_b32 v{VWB+nb}, {nb*32}, v{VWB}")
    for nb in range(4): a(f"v_mov_b32 v{VWA+nb}, v{VWB+nb}")
    for i in range(64): a(f"v_mov_b32 v{ACC+i}, 0")
    a("s_mov_b32 s33, 0")
    a("s_mov_b32 s35, 0")
    a("s_waitcnt lgkmcnt(0)")
    srd(a, 16, 36, 8 << 20)
    a("s_lshl_b32 s40, s24, 19")
    a("s_lshl_b32 s41, s31, 18")
    a("s_add_u32 s40, s40, s41")
    a("s_lshl_b32 s41, s22, 11")
    a("s_add_u32 s40, s40, s41")
    a("s_lshl_b32 s41, s25, 8")
    a("s_add_u32 s40, s40, s41")
    a("s_lshl_b32 s41, s32, 7")
    a("s_add_u32 s40, s40, s41")
    def rdO(f, ks, mt): return [f"ds_read_b128 {vr(Of(f,mt))}, v{VOA} offset:{(mt>>1)*4096 + ks*2048 + (mt&1)*256}"]
    def rdW(f, ks, nb): return [f"ds_read_b64_tr_b16 {vr(Wf(f,nb),2)}, v{VWA+nb} offset:{ks*8192}",
                                f"ds_read_b64_tr_b16 {vr(Wf(f,nb)+2,2)}, v{VWA+nb} offset:{ks*8192+2048}"]
    def reads(f, ks):
        return [rdO(f, ks, 0)] + [rdW(f, ks, nb) for nb in range(4)] + [rdO(f, ks, mt) for mt in (1, 2, 3)]
    def mm(f):
        return [mfma16(acc(mt, nb), Wf(f, nb), Of(f, mt)) for mt in range(4) for nb in range(4)]
    stamp(a, 2)
    a("s_barrier")
    stamp(a, 3)
    for grp in reads(0, 0):
        for t in grp: a(t)
    a("s_branch L3_mid")
    a.raw(".p2align 6")
    a.lab("L3_loop")
    flat = lambda g: [[t] for x in g for t in x]
    for t in spread(mm(1), flat(reads(0, 0)), 0, 1): a(t)
    a.lab("L3_mid")
    a("s_waitcnt lgkmcnt(0)")
    fl = flat(reads(1, 1))
    fl[0] += [f"s_add_u32 s33, s33, {SLOT}", f"s_and_b32 s33, s33, {4*SLOT-1:#x}"]
    fl[1] += ["s_add_u32 s35, s35, 1", "s_cmp_lt_u32 s35, 16"]
    fl[9] += [f"v_add_u32 v{VWA}, s33, v{VWB}"]
    fl[10] += [f"v_add_u32 v{VWA+1}, s33, v{VWB+1}"]
    fl[11] += [f"v_add_u32 v{VWA+2}, s33, v{VWB+2}"]
    fl += [[f"v_add_u32 v{VWA+3}, s33, v{VWB+3}", f"v_add_u32 v{VOA}, s33, v{VOB}"], [], [], ["s_waitcnt lgkmcnt(0)", "s_barrier"]]
    for t in spread(mm(0), fl, 0, 1): a(t)
    a("s_cbranch_scc1 L3_loop")
    for t in mm(1): a(t)
    stamp(a, 4)
    a("s_mul_i32 s41, s26, 9216")
    a("v_mul_u32_u24 v4, 144, v2")
    a("v_lshl_add_u32 v4, v3, 3, v4")
    a("v_add_u32 v4, s41, v4")
    a("v_lshrrev_b32 v5, 3, v0")
    a("v_mul_u32_u24 v6, 144, v5")
    a("v_and_b32 v7, 7, v0")
    a("v_lshl_add_u32 v6, v7, 4, v6")
    a("v_add_u32 v6, s41, v6")
    a("v_lshlrev_b32 v5, 12, v5")
    a(f"v_lshl_add_u32 v{VST}, v7, 4, v5")
    for mt in range(4):
        for nb in range(4):
            b = acc(mt, nb); t0 = F[0] + 2*(mt*4 + nb)
            a(f"v_cvt_pk_bf16_f32 v{t0}, v{b}, v{b+1}")
            a(f"v_cvt_pk_bf16_f32 v{t0+1}, v{b+2}, v{b+3}")
            a(f"ds_write_b64 v4, {vr(t0,2)} offset:{mt*16*144 + nb*32}")
        a(f"ds_read_b128 {vr(F[1]+8*mt)}, v6 offset:{mt*16*144}")
        a(f"ds_read_b128 {vr(F[1]+8*mt+4)}, v6 offset:{mt*16*144 + 8*144}")
        if mt >= 1:
            a("s_waitcnt lgkmcnt(6)")
            for h in range(2):
                a(f"buffer_store_dwordx4 {vr(F[1]+8*(mt-1)+4*h)}, v{VST}, s[16:19], s40 offen{OPT['st3']}")
                a(f"s_add_u32 s40, s40, {8*4096}")
    a("s_waitcnt lgkmcnt(0)")
    for h in range(2):
        a(f"buffer_store_dwordx4 {vr(F[1]+24+4*h)}, v{VST}, s[16:19], s40 offen{OPT['st3']}")
        a(f"s_add_u32 s40, s40, {8*4096}")
    stamp(a, 5)
    dump(a, 2, "s26")
    a.lab("L3_end")
    a("s_endpgm")
    return a.text(), kd(N, NV), f"; @launch kernel={N} grid=(256,1,1) block=(512,1,1) lds=131072"

def main():
    ks = [k1(), k2(), k3()]
    hdr = open("cdna_kernels/" + NAME + ".s.ref").read().split("\n")
    top = [l for l in hdr if l.startswith(";") and "@launch" not in l and "Override" not in l and "grid=ceil" not in l]
    out = "\n".join(top) + "\n" + "\n".join(k[2] for k in ks) + "\n"
    out += '.amdgcn_target "amdgcn-amd-amdhsa--gfx950"\n.text\n'
    for k in ks: out += k[0]
    out += '.section .rodata,"a"\n'
    for k in ks: out += k[1]
    open(sys.argv[1], "w").write(out)

main()
```

```python
import sys
def gen(name, body, reps, waves, nv=128, loops=200, grid=256, lds=0, pre=""):
    s = f"""; @launch grid=({grid},1,1) block=({waves*64},1,1) lds={lds}
.amdgcn_target "amdgcn-amd-amdhsa--gfx950"
.text
.globl mb_kernel
.p2align 8
.type mb_kernel,@function
mb_kernel:
    s_load_dwordx2 s[4:5], s[0:1], 0
    s_load_dwordx2 s[6:7], s[0:1], 8
    s_waitcnt lgkmcnt(0)
    s_mov_b32 s12, s6
    s_mov_b32 s13, s7
    s_mov_b32 s14, 0x400000
    s_mov_b32 s15, 0x00020000
    v_lshrrev_b32 v1, 6, v0
    s_mul_i32 s3, s2, {waves}
    v_add_u32 v1, s3, v1
    v_lshlrev_b32 v1, 2, v1
"""
    for i in range(2, nv):
        s += f"    v_mov_b32 v{i}, 0.5\n"
    s += pre
    s += f"""    s_mov_b32 s20, {loops}
    s_barrier
    s_memtime s[16:17]
    s_waitcnt lgkmcnt(0)
.p2align 6
L_loop:
"""
    for r in range(reps):
        s += body
    s += f"""    s_sub_u32 s20, s20, 1
    s_cmp_lg_u32 s20, 0
    s_cbranch_scc1 L_loop
    s_nop 15
    s_memtime s[18:19]
    s_waitcnt lgkmcnt(0)
    s_sub_u32 s18, s18, s16
    v_mov_b32 v2, s18
    buffer_store_dword v2, v1, s[12:15], 0 offen
    s_waitcnt vmcnt(0)
    s_endpgm
.section .rodata,"a"
.p2align 6
.amdhsa_kernel mb_kernel
  .amdhsa_next_free_vgpr {nv}
  .amdhsa_next_free_sgpr 40
  .amdhsa_accum_offset {nv}
  .amdhsa_group_segment_fixed_size 0
  .amdhsa_kernarg_size 16
  .amdhsa_user_sgpr_count 2
  .amdhsa_user_sgpr_kernarg_segment_ptr 1
  .amdhsa_system_sgpr_workgroup_id_x 1
.end_amdhsa_kernel
"""
    open(name, "w").write(s)

def lines(fmt, n, base=8, step=1):
    return "".join("    " + fmt.format(d=base+i*step, d1=base+i*step+1, a=64+i*step, a1=64+i*step+1) + "\n" for i in range(n))

if __name__ == "__main__":
    files = []
    tests = {
     "add": lines("v_add_f32 v{d}, v{a}, v{a}", 16),
     "exp": lines("v_exp_f32 v{d}, v{a}", 16),
     "cvt": lines("v_cvt_pk_bf16_f32 v{d}, v{a}, v{a1}", 16),
     "pkadd": lines("v_pk_add_f32 v[{d}:{d1}], v[{a}:{a1}], v[{a}:{a1}]", 16, step=2),
     "pkfma": lines("v_pk_fma_f32 v[{d}:{d1}], v[{a}:{a1}], v[{a}:{a1}], v[{a}:{a1}]", 16, step=2),
     "max3": lines("v_max3_f32 v{d}, v{a}, v{a1}, v{a}", 16),
     "fma": lines("v_fma_f32 v{d}, v{a}, v{a1}, v{a}", 16),
     "expadd": "".join(f"    v_exp_f32 v{8+i}, v{64+i}\n    v_add_f32 v{32+i}, v{64+i}, v{64+i}\n" for i in range(8)),
     "expsalu": "".join(f"    v_exp_f32 v{8+i}, v{64+i}\n    s_add_u32 s22, s23, 1\n" for i in range(8)),
     "addsalu": "".join(f"    v_add_f32 v{8+i}, v{64+i}, v{64+i}\n    s_add_u32 s22, s23, 1\n" for i in range(8)),
    }
    for nm, body in tests.items():
        for w in (4, 8, 16):
            fn = f"t_{nm}_w{w}.s"
            gen(fn, body, 4, w)
            files.append(fn)
    print(" ".join(files))
```

```python
from gen_valu import gen
files = []
def M(i): return f"    v_mfma_f32_16x16x32_bf16 v[{32+4*i}:{35+4*i}], v[8:11], v[12:15], v[{32+4*i}:{35+4*i}]\n"
def M32(i): return f"    v_mfma_f32_32x32x16_bf16 v[{32+16*i}:{47+16*i}], v[8:11], v[12:15], v[{32+16*i}:{47+16*i}]\n"
S = "    s_add_u32 s22, s23, 1\n"
def R(i): return f"    ds_read_b128 v[{140+4*(i%8)}:{143+4*(i%8)}], v3 offset:{(i%8)*1024}\n"
def T(i): return f"    ds_read_b64_tr_b16 v[{140+2*(i%16)}:{141+2*(i%16)}], v3 offset:{(i%8)*1024}\n"
V = "    v_add_u32 v180, s22, v181\n"
W = "    s_waitcnt lgkmcnt(0)\n"
def block(pattern):
    return "".join(M(i) + pattern(i) for i in range(24)) + W
fl = [T(0), T(1), R(0), R(1), R(2), R(3)] + [T(i) for i in range(2, 12)]
oth = [S]*20 + [V]*4
def clustered(nm, first=False):
    f = fl + oth; out = ""; g = 24 // nm; per = -(-len(f) // g)
    for k in range(g):
        out += "".join(M(k*nm + j) for j in range(nm))
        out += "".join(f[k*per:(k+1)*per])
    return out + W
tests = {
 "m": block(lambda i: ""),
 "s1": block(lambda i: S),
 "s2": block(lambda i: S+S),
 "s3": block(lambda i: S+S+S),
 "v1": block(lambda i: V),
 "r16x1": block(lambda i: fl[i] if i < 16 else ""),
 "r8x2": block(lambda i: fl[2*i] + fl[2*i+1] if i < 8 else ""),
 "r16s": block(lambda i: (fl[i] if i < 16 else "") + oth[i]),
 "c2": clustered(2), "c4": clustered(4), "c8": clustered(8), "c12": clustered(12), "c24": clustered(24),
 "m32": "".join(M32(i%6) + "".join((fl+oth)[(i*40)//12:((i+1)*40)//12]) for i in range(12)) + W,
}
for nm, body in tests.items():
    for w in (4, 8):
        fn = f"g_{nm}_w{w}.s"
        gen(fn, body, 2, w, nv=192, loops=100, lds=16384, pre="    v_and_b32 v3, 63, v0\n    v_lshlrev_b32 v3, 4, v3\n")
        files.append(fn)
open("files.txt", "w").write(" ".join(files))
```

```python
import struct, math, sys

NAME = "concat_heads__mha_block__sliding_local_dilated__prompt"
OPT = dict(st1=" sc1", st2=" sc1", st3=" sc1", dbg="0", pf1="1", pf3="1", ord1="0", dlt="4", nx="0", ph="2", s2e="0", prio="1", k2x="", cpf="1", hprio="0", trip="0", k1x="", tlb="1", dk="0", bslots="23456")
for a in sys.argv[2:]:
    k, v = a.split("=", 1)
    OPT[k] = v

def f2u(x): return struct.unpack("<I", struct.pack("<f", x))[0]
QSCALE = f2u(math.log2(math.e) / math.sqrt(32.0))
NEGBIG = f2u(-1e30)

QF, KF, VF, OF = 0, 8 << 20, 16 << 20, 24 << 20
WS_BYTES = 32 << 20

class A:
    def __init__(s): s.l = []
    def __call__(s, t): s.l.append("    " + t)
    def lab(s, t): s.l.append(t + ":")
    def raw(s, t): s.l.append(t)
    def text(s): return "\n".join(s.l) + "\n"

def vr(b, n=4): return f"v[{b}:{b+n-1}]"
def mfma(d, a, b, c=None):
    cc = vr(d, 16) if c is None else (c if isinstance(c, str) else vr(c, 16))
    return f"v_mfma_f32_32x32x16_bf16 {vr(d,16)}, {vr(a)}, {vr(b)}, {cc}"

def mfma16(d, a, b):
    return f"v_mfma_f32_16x16x32_bf16 {vr(d)}, {vr(a)}, {vr(b)}, {vr(d)}"

def spread(main, fill, start=0, every=1, per=1):
    out = []; k = 0
    for i, m in enumerate(main):
        out.append(m)
        if i >= start and (i - start) % every == 0:
            for _ in range(per):
                if k < len(fill):
                    out += fill[k]; k += 1
    while k < len(fill):
        out += fill[k]; k += 1
    return out

def interleave(main, fill, pattern):
    out = []; k = 0
    for i, m in enumerate(main):
        for _ in range(pattern[i] if i < len(pattern) else 0):
            if k < len(fill):
                out += fill[k]; k += 1
        out.append(m)
    while k < len(fill):
        out += fill[k]; k += 1
    return out

def kd(name, vgpr, sgpr=96):
    acc = (vgpr + 3) // 4 * 4
    return f""".p2align 6
.amdhsa_kernel {name}
  .amdhsa_next_free_vgpr {vgpr}
  .amdhsa_next_free_sgpr {sgpr}
  .amdhsa_accum_offset {acc}
  .amdhsa_group_segment_fixed_size 0
  .amdhsa_kernarg_size 72
  .amdhsa_user_sgpr_count 2
  .amdhsa_user_sgpr_kernarg_segment_ptr 1
  .amdhsa_system_sgpr_workgroup_id_x 1
.end_amdhsa_kernel
"""

_cp = [0]
DBG = OPT["dbg"] in ("1", "2")
def stamp(a, n):
    if DBG:
        a(f"s_memtime s[{64+2*n}:{65+2*n}]")
def rstamp(a, n):
    if DBG:
        a(f"s_memrealtime s[{64+2*n}:{65+2*n}]")
def dump(a, kidx, wave_sgpr, nst=8):
    if not DBG: return
    if OPT["dbg"] == "2":
        if kidx != int(OPT["dk"]): return
        _cp[0] += 1
        sk = f"Ldbg{_cp[0]}"
        a("s_load_dwordx2 s[88:89], s[0:1], 56")
        a("s_waitcnt lgkmcnt(0) vmcnt(0)")
        a(f"s_memtime s[{64+2*(nst-2)}:{65+2*(nst-2)}]")
        a(f"s_memrealtime s[{64+2*(nst-1)}:{65+2*(nst-1)}]")
        a("s_waitcnt lgkmcnt(0)")
        a(f"s_sub_u32 s88, s88, {512*kidx}")
        a("s_subb_u32 s89, s89, 0")
        a("s_mov_b32 s90, 64")
        a("s_mov_b32 s91, 0x00020000")
        a("s_lshl_b32 s92, s2, 3")
        a(f"s_add_u32 s92, s92, {wave_sgpr}")
        a("s_cmp_eq_u32 s92, 805")
        a("s_cselect_b32 s93, 32, 0x1000")
        a("s_cmp_eq_u32 s92, 0")
        a("s_cselect_b32 s92, 0, s93")
        a("v_mov_b32 v2, 0")
        for n in range(2, nst):
            base = 64 if n < nst-1 else 66
            a(f"s_sub_u32 s93, s{64+2*n}, s{base}")
            a("v_mov_b32 v3, s93")
            a(f"buffer_store_dword v3, v2, s[88:91], s92 offen offset:{4*(n-2)}")
            a("s_nop 1")
        return
    a("s_load_dwordx2 s[88:89], s[0:1], 64")
    a("s_waitcnt lgkmcnt(0) vmcnt(0)")
    a(f"s_memtime s[{64+2*(nst-2)}:{65+2*(nst-2)}]")
    a(f"s_memrealtime s[{64+2*(nst-1)}:{65+2*(nst-1)}]")
    a("s_waitcnt lgkmcnt(0)")
    a("s_mov_b32 s90, 0x8000000")
    a("s_mov_b32 s91, 0x00020000")
    a("s_lshl_b32 s92, s2, 3")
    a(f"s_add_u32 s92, s92, {wave_sgpr}")
    a("s_lshl_b32 s92, s92, 6")
    a(f"s_add_u32 s92, s92, {(64+kidx) << 20}")
    a("v_mov_b32 v2, 0")
    for n in range(nst):
        a(f"v_mov_b32 v3, s{64+2*n}")
        a(f"buffer_store_dword v3, v2, s[88:91], s92 offen offset:{4*n}")
        a("s_nop 1")

def codepf(a, start, end, vtmp, lane="v0"):
    if OPT["cpf"] != "1": return
    _cp[0] += 1
    l = f"Lcp{_cp[0]}"
    a("s_getpc_b64 s[56:57]")
    a.lab(l)
    a(f"s_add_u32 s56, s56, {start}-{l}")
    a(f"s_addc_u32 s57, s57, ({start}-{l})>>32")
    a(f"v_lshlrev_b32 v{vtmp}, 7, {lane}")
    a(f"v_min_u32 v{vtmp}, {end}-{start}-4, v{vtmp}")
    a(f"global_load_dword v{vtmp}, v{vtmp}, s[56:57]")

def head(a, name):
    a.raw(f".globl {name}\n.p2align 8\n.type {name},@function\n{name}:")

def srd(a, d, base, nbytes):
    a(f"s_mov_b32 s{d}, s{base}")
    a(f"s_mov_b32 s{d+1}, s{base+1}")
    a(f"s_mov_b32 s{d+2}, {nbytes:#x}")
    a(f"s_mov_b32 s{d+3}, 0x00020000")

def place(main, fill, per=2, start=0):
    out = []; k = 0
    for i, m in enumerate(main):
        out.append(m)
        if i >= start:
            out += fill[k:k+per]; k += per
    out += fill[k:]
    return out

def sched(M, rd, d, post, late, late_dma=False):
    n = len(M)
    gaps = [[] for _ in range(n)]
    if late_dma: rg = list(range(len(rd))); dg = [len(rd) + 2*k for k in range(len(d))]
    else:
        dg = [1 + 4*k for k in range(len(d))]; rg = [g for g in range(n) if g not in dg][:len(rd)]
    for g, t in zip(rg, rd): gaps[g].append(t)
    for g, (m_, l_) in zip(dg, d):
        gaps[g-1].append(m_); gaps[g].append(l_)
    def runs(ops):
        out = []
        for t in ops:
            if t.startswith("s_cselect") : out[-1].append(t)
            else: out.append([t])
        return out
    def put(run, g0):
        g = g0
        while g < n - 1 and len(gaps[g]) + len(run) > 3: g += 1
        gaps[g] += run
        return g
    g = (dg[len(d)-1] if d else 0)
    for r in runs(post): g = put(r, g)
    g = 0
    for r in runs(late):
        if r[0].startswith("v_"): g = max(g, rg[-1] if rg else 0)
        g = put(r, g)
    seq = []
    for i, m_ in enumerate(M):
        seq.append(m_); seq += gaps[i]
    return seq

def k1():
    a = A(); N = "qkv_kernel"
    head(a, N)
    XS, WS, WSL = 32768, 98304, 12288
    VD, VXB, VXA, VWB, VWA, VST, VPX, VPW, VPD = 10, 18, 20, 22, 24, 26, 27, 28, 29
    F = [32, 72]; ACC = 112; NV = 208
    PF = OPT["pf1"] == "1"
    DLT = int(OPT["dlt"])
    def A_(f, mt): return F[f] + 4*mt
    def B_(f, nb): return F[f] + 16 + 4*nb
    def acc(mt, nb): return ACC + (mt*6 + nb)*4
    a("s_cmp_ge_u32 s2, 256")
    a("s_cbranch_scc1 L1_end")
    stamp(a, 0); rstamp(a, 1)
    a("s_and_b32 s20, s2, 7")
    a("s_lshr_b32 s21, s2, 3")
    a("s_lshr_b32 s22, s20, 2")
    a("s_mul_i32 s23, s22, 24")
    a("s_load_dwordx4 s[4:7], s[0:1], s23")
    a("s_load_dwordx2 s[36:37], s[0:1], 64")
    a("v_lshrrev_b32 v1, 6, v0")
    a("v_and_b32 v0, 63, v0")
    a("v_readfirstlane_b32 s26, v1")
    a("s_and_b32 s24, s20, 1")
    a("s_lshl_b32 s24, s24, 2")
    a("s_and_b32 s25, s21, 3")
    a("s_add_u32 s24, s24, s25")
    a("s_bfe_u32 s25, s20, 0x10001")
    a("s_lshl_b32 s25, s25, 3")
    a("s_lshr_b32 s27, s21, 2")
    if OPT["nx"] != "0": a(f"s_xor_b32 s27, s27, {OPT['nx']}")
    a("s_add_u32 s25, s25, s27")
    a("s_and_b32 s31, s26, 3")
    a("s_lshr_b32 s32, s26, 2")
    PH = OPT["ph"]
    if PH == "0": a("s_mov_b32 s44, 0")
    elif PH == "1":
        a("s_lshl_b32 s44, s20, 1")
    elif PH == "2":
        a("s_lshl_b32 s44, s20, 1")
        a("s_and_b32 s45, s21, 1")
        a("s_add_u32 s44, s44, s45")
    elif PH == "3":
        a("s_lshl_b32 s44, s22, 1")
        a("s_and_b32 s45, s20, 1")
        a("s_add_u32 s44, s44, s45")
        a("s_lshl_b32 s44, s44, 2")
        a("s_and_b32 s45, s21, 3")
        a("s_add_u32 s44, s44, s45")
    elif PH == "4":
        a("s_lshl_b32 s44, s22, 1")
        a("s_and_b32 s45, s20, 1")
        a("s_add_u32 s44, s44, s45")
        a("s_lshl_b32 s44, s44, 2")
    a("v_lshrrev_b32 v2, 3, v0")
    a("v_and_b32 v3, 7, v0")
    a("v_lshrrev_b32 v4, 4, v0")

    def rdA(f, ks, mt): return [f"ds_read_b128 {vr(A_(f,mt))}, v{VXA+ks} offset:{mt*2048}"]
    def rdB(f, nb):
        o = (nb//2)*4096
        return [f"ds_read_b64_tr_b16 {vr(B_(f,nb),2)}, v{VWA+nb%2} offset:{o}",
                f"ds_read_b64_tr_b16 {vr(B_(f,nb)+2,2)}, v{VWA+nb%2} offset:{o+512}"]
    def reads(f, ks):
        r = rdB(f, 0)
        for mt in range(4): r += rdA(f, ks, mt)
        for nb in range(1, 6): r += rdB(f, nb)
        return r
    def mm(f):
        r = []
        for nb in range(6):
            for mt in range(4):
                if nb < 4: r.append(mfma16(acc(mt, nb), B_(f, nb), A_(f, mt)))
                else:      r.append(mfma16(acc(mt, nb), A_(f, mt), B_(f, nb)))
        return r

    def common_setup():
        srd(a, 16, 36, WS_BYTES)
        a("v_and_b32 v2, 15, v0")
        a("v_lshrrev_b32 v3, 4, v0")
        a("v_bfe_u32 v4, v0, 1, 3")
        a("s_lshl_b32 s33, s31, 13")
        a("v_lshlrev_b32 v5, 7, v2")
        a("v_add_u32 v5, s33, v5")
        a("v_xor_b32 v6, v3, v4")
        a(f"v_lshl_add_u32 v{VXB}, v6, 4, v5")
        a(f"v_xor_b32 v{VXB+1}, 64, v{VXB}")
        a(f"v_mov_b32 v{VXA}, v{VXB}")
        a(f"v_mov_b32 v{VXA+1}, v{VXB+1}")
        a("v_bfe_u32 v4, v0, 2, 2")
        a("v_lshl_add_u32 v4, v3, 3, v4")
        a("v_lshlrev_b32 v4, 7, v4")
        a("v_and_b32 v6, 3, v0")
        a("v_lshl_add_u32 v4, v6, 3, v4")
        a("v_bfe_u32 v5, v0, 3, 2")
        a("s_lshl_b32 s33, s32, 1")
        a("v_xor_b32 v5, s33, v5")
        a(f"v_lshl_add_u32 v{VWB}, v5, 5, v4")
        a(f"v_xor_b32 v{VWB+1}, 32, v{VWB}")
        a(f"v_add_u32 v{VWA}, {WS}, v{VWB}")
        a(f"v_add_u32 v{VWA+1}, {WS}, v{VWB+1}")
        a("v_lshlrev_b32 v4, 4, v2")
        a(f"v_lshl_add_u32 v{VST}, v3, 9, v4")
        for i in range(96): a(f"v_mov_b32 v{ACC+i}, 0")
        a("s_lshl_b32 s40, s22, 22")
        a("s_lshl_b32 s41, s25, 1")
        a("s_add_u32 s41, s41, s32")
        a("s_lshl_b32 s41, s41, 17")
        a("s_add_u32 s40, s40, s41")
        a("s_lshl_b32 s41, s24, 14")
        a("s_add_u32 s40, s40, s41")
        a("s_lshl_b32 s41, s31, 12")
        a("s_add_u32 s40, s40, s41")
        a(f"s_add_u32 s41, s40, {KF}")
        a(f"s_add_u32 s42, s40, {VF}")
        a(f"s_mov_b32 s43, {QSCALE:#x}")
        a("s_mov_b32 s33, 0")
        a(f"s_mov_b32 s34, {WS}")
        a("s_mov_b32 s35, 0")

    wupd = [f"s_add_u32 s34, s34, {WSL}", f"s_cmp_eq_u32 s34, {WS+5*WSL}", f"s_cselect_b32 s34, {WS}, s34",
            f"v_add_u32 v{VWA}, s34, v{VWB}", f"v_add_u32 v{VWA+1}, s34, v{VWB+1}", "s_add_u32 s35, s35, 1"]
    xupd = [f"s_add_u32 s33, s33, {XS}", f"s_cmp_eq_u32 s33, {3*XS}", "s_cselect_b32 s33, 0, s33",
            f"v_add_u32 v{VXA}, s33, v{VXB}", f"v_add_u32 v{VXA+1}, s33, v{VXB+1}"]

    def mix(dma, other):
        out = []; o = list(other)
        for m, l in dma:
            out.append(m)
            out.append(o.pop(0) if o else "s_nop 0")
            out.append(l)
        return out + o

    def event(tag):
        a.lab(tag)
        a("s_mov_b32 s49, 0x7fff")
        if OPT["cpf"] == "1":
            a("s_cmp_eq_u32 s31, 3")
            a(f"s_cbranch_scc1 {tag}c")
        a(f"buffer_load_dword v{VPD}, v{VPW}, s[12:15], s50 offen")
        a(f"s_branch {tag}r")
        if OPT["cpf"] == "1":
            a.lab(tag + "c")
            codepf(a, "attn_kernel", "L2_slow0", 31)
            if OPT["tlb"] == "1":
                a("v_lshlrev_b32 v30, 21, v0")
                a("buffer_load_dword v30, v30, s[16:19], 0 offen")
            a(f"s_branch {tag}r")

    a("s_cmp_lg_u32 s32, 0")
    a("s_cbranch_scc1 L1_W")
    for cls in ("X", "W"):
        P = "L1" + cls
        if cls == "X":
            a("v_lshlrev_b32 v5, 11, v2")
            a("v_xor_b32 v6, v3, v4")
            a("v_lshl_add_u32 v6, v6, 4, v5")
            a("v_xor_b32 v7, 64, v6")
            a(f"v_mov_b32 v{VD}, v6")
            a(f"v_add_u32 v{VD+1}, 16384, v7")
            a(f"v_add_u32 v{VD+2}, 32768, v6")
            a(f"v_add_u32 v{VD+3}, 49152, v7")
            a("s_lshl_b32 s27, s24, 19")
            a("s_lshl_b32 s28, s31, 16")
            a("s_add_u32 s45, s27, s28")
            a("s_lshl_b32 s46, s44, 7")
            a("s_add_u32 s27, s45, s46")
            a("s_add_u32 s28, s27, 0x40000")
            a("s_lshl_b32 s29, s31, 12")
            a(f"s_add_u32 s30, s29, {6*16384}")
            a("s_waitcnt lgkmcnt(0)")
            if OPT["s2e"] == "1": stamp(a, 2)
            srd(a, 8, 4, 4 << 20)
            def grp(par):
                so = "s27" if par == 0 else "s28"
                d = [(f"s_add_u32 m0, s29, {j*1024}", f"buffer_load_dwordx4 v{VD+j}, s[8:11], {so} offen lds") for j in range(4)]
                post = ["s_add_u32 s29, s29, 16384"]
                if par == 0: post += ["s_add_u32 s46, s46, 128", "s_and_b32 s46, s46, 0x7ff", "s_add_u32 s27, s45, s46"]
                if par == 1: post += ["s_add_u32 s28, s27, 0x40000", "s_cmp_eq_u32 s29, s30", f"s_cselect_b32 s38, {6*16384}, 0", "s_sub_u32 s29, s29, s38"]
                return d, post
            NG = 4
        else:
            a.lab("L1_W")
            if OPT["cpf"] == "1":
                a("s_cmp_lg_u32 s26, 7")
                a("s_cbranch_scc1 L1_nocp")
                codepf(a, "qkv_kernel", "L1_end", VPD)
                a.lab("L1_nocp")
            a("v_mul_u32_u24 v5, 6144, v2")
            a("v_and_b32 v6, 1, v4")
            a("v_lshlrev_b32 v6, 1, v6")
            a("s_and_b32 s33, s26, 1")
            a("s_lshl_b32 s33, s33, 2")
            a("v_xor_b32 v6, v3, v6")
            a("v_xor_b32 v6, s33, v6")
            a(f"v_lshl_add_u32 v{VD}, v6, 4, v5")
            a(f"v_add_u32 v{VD+1}, 2048, v{VD}")
            a(f"v_add_u32 v{VD+2}, 4096, v{VD}")
            if PF:
                a(f"v_mul_u32_u24 v{VPW}, 6144, v0")
                a("v_cmp_gt_u32 vcc, 32, v0")
                a("v_mov_b32 v7, 0x7fffff00")
                a("s_lshl_b32 s50, s20, 2")
                a(f"v_cndmask_b32 v{VPW}, v7, v{VPW}, vcc")
                a("s_add_u32 s50, s50, s21")
                a("s_and_b32 s50, s50, 31")
                a(f"s_mul_i32 s50, s50, {32*6144}")
                a("s_lshl_b32 s51, s31, 11")
                a("s_add_u32 s50, s50, s51")
                a("s_bfe_u32 s51, s20, 0x10001")
                a("s_lshl_b32 s51, s51, 10")
                a("s_add_u32 s50, s50, s51")
                a("s_add_u32 s50, s50, 384")
                a(f"s_max_u32 s49, s21, {4+DLT}")
                a(f"s_sub_u32 s49, s49, {4+DLT}")
                a("s_cmp_lt_u32 s21, 5")
                a("s_cselect_b32 s49, 0x7fff, s49")
                a("s_cmp_eq_u32 s31, 3")
                a(f"s_cselect_b32 s49, {26 if OPT['cpf'] == '1' else 0x7fff}, s49")
            a("s_lshl_b32 s27, s25, 7")
            a(f"s_mul_i32 s28, s31, {8*6144}")
            a("s_add_u32 s27, s27, s28")
            a(f"s_mul_i32 s28, s44, {64*6144}")
            a("s_add_u32 s27, s27, s28")
            a("s_lshl_b32 s29, s31, 10")
            a(f"s_add_u32 s29, s29, {WS}")
            a(f"s_add_u32 s30, s29, {5*WSL}")
            a("s_waitcnt lgkmcnt(0)")
            if OPT["s2e"] == "1": stamp(a, 2)
            srd(a, 12, 6, 6 << 20)
            def grp(par):
                d = [(f"s_add_u32 m0, s29, {g*4096}", f"buffer_load_dwordx4 v{VD+g}, s[12:15], s27 offen lds") for g in range(3)]
                post = [f"s_add_u32 s27, s27, {32*6144}", f"s_add_u32 s29, s29, {WSL}",
                        "s_cmp_eq_u32 s29, s30", f"s_cselect_b32 s38, {5*WSL}, 0", "s_sub_u32 s29, s29, s38"]
                if par == 1: post += [f"s_cmp_ge_u32 s27, {6<<20:#x}", f"s_cselect_b32 s38, {6<<20:#x}, 0", "s_sub_u32 s27, s27, s38"]
                return d, post
            NG = 3
        def emit_grp(par):
            d, post = grp(par)
            for t in mix(d, []) + post: a(t)
        first = 2 if cls == "X" else 1
        for n in range(first): emit_grp(n & 1)
        common_setup()
        for n in range(first, 4): emit_grp(n & 1)
        npf = 0
        if cls == "W" and PF:
            a("s_cmp_eq_u32 s49, 0")
            a(f"s_cbranch_scc1 {P}_e0")
            a.lab(f"{P}_e0r")
        if OPT["s2e"] != "1": stamp(a, 2)
        a(f"s_waitcnt vmcnt({(4-first)*NG + npf})")
        a("s_barrier")
        stamp(a, 3)
        d, post = grp(0)
        for t in reads(0, 0) + mix(d, []) + post + wupd: a(t)
        if cls == "W": a(f"s_waitcnt vmcnt({3*NG + npf})")
        a("s_waitcnt lgkmcnt(0)")
        a("s_barrier")
        a(f"s_branch {P}_odd")
        a.raw(".p2align 6")
        a.lab(f"{P}_loop")
        for par in range(2):
            if par == 1: a.lab(f"{P}_odd")
            d, post = grp(par)
            rd = reads(par, par)
            tail = list(post) + wupd
            if par == 1:
                tail += xupd
                sup = ["s_cmp_lt_u32 s35, 28", f"s_cselect_b32 s10, {4<<20:#x}, 0" if cls == "X" else f"s_cselect_b32 s14, {6<<20:#x}, 0"]
                tail += sup; post = list(post) + sup
            X = OPT["k1x"]
            if "d" in X: d = []
            if "r" in X: rd = []
            fill = rd[:8] + mix(d, rd[8:]) + tail
            if "o" not in X:
                late = [t for t in tail if t not in post]
                late = [t for t in late if not t.startswith("v_")] + [t for t in late if t.startswith("v_")]
                seq = sched(mm(1-par), rd, d, list(post), late, late_dma=("l" in X))
            elif "1" in X: seq = place(mm(1-par), fill, 2, 2)
            elif "3" in X: seq = place(mm(1-par), fill, 3, 0)
            elif "f" in X: seq = rd[:4] + place(mm(1-par), fill[4:], 2, 0)
            else: seq = place(mm(1-par), fill, 2, 0)
            if "p" in X: seq = ["s_setprio 1"] + seq[:len(seq)-8] + ["s_setprio 0"] + seq[len(seq)-8:]
            if "P" in X and cls == "W": seq = ["s_setprio 1"] + seq
            for t in seq: a(t)
            if cls == "W" and PF:
                a("s_cmp_ge_u32 s35, s49")
                a(f"s_cbranch_scc1 {P}_e{par+1}")
                a.lab(f"{P}_e{par+1}r")
            if par == 1: a("s_cmp_lt_u32 s35, 32")
            if cls == "W": a(f"s_waitcnt vmcnt({3*NG}) lgkmcnt(0)")
            elif par == 1: a(f"s_waitcnt vmcnt({2*NG}) lgkmcnt(0)")
            else: a("s_waitcnt lgkmcnt(0)")
            if "b" not in X and not ("h" in X and par == 0): a("s_barrier")
        if OPT["trip"] == "1":
            a("s_cselect_b32 s62, 1, 0")
            a("s_cmp_lg_u32 s35, 4")
            a(f"s_cbranch_scc1 {P}_t1")
            stamp(a, 2)
            a.lab(f"{P}_t1")
            a("s_cmp_lg_u32 s62, 0")
        a(f"s_cbranch_scc1 {P}_loop")
        a("s_branch L1_epi")
        if cls == "W" and PF:
            for k in range(3): event(f"{P}_e{k}")
    a.lab("L1_epi")
    for t in mm(1): a(t)
    stamp(a, 4)
    a("s_nop 4")
    n = 0
    jobs = []
    for T in range(2):
        for sg in range(2): jobs.append((1, acc(2*T+sg, 2), acc(2*T+sg, 3), T*2048 + sg*256))
    for T in range(2):
        for sg in range(2): jobs.append((0, acc(2*T+sg, 0), acc(2*T+sg, 1), T*2048 + sg*256))
    for T in range(2):
        for u in range(2):  jobs.append((2, acc(2*T, 4+u), acc(2*T+1, 4+u), T*2048 + u*256))
    for seg, b0, b1, off in jobs:
        t0 = F[0] + 4*(n % 8); n += 1
        if seg == 0:
            for b in (b0, b1):
                for r in range(4): a(f"v_mul_f32 v{b+r}, s43, v{b+r}")
        a(f"v_cvt_pk_bf16_f32 v{t0}, v{b0}, v{b0+1}")
        a(f"v_cvt_pk_bf16_f32 v{t0+1}, v{b0+2}, v{b0+3}")
        a(f"v_cvt_pk_bf16_f32 v{t0+2}, v{b1}, v{b1+1}")
        a(f"v_cvt_pk_bf16_f32 v{t0+3}, v{b1+2}, v{b1+3}")
        a(f"buffer_store_dwordx4 {vr(t0)}, v{VST}, s[16:19], s{40+seg} offen offset:{off}{OPT['st1']}")
    stamp(a, 5)
    dump(a, 0, "s26")
    a.lab("L1_end")
    a("s_endpgm")
    return a.text(), kd(N, NV), f"; @launch kernel={N} grid=(256,1,1) block=(512,1,1) lds=159744"

def kperm(rho):
    return ((rho >> 2) & 1) * 16 + (rho >> 3) * 4 + (rho & 3)

def k2():
    a = A(); N = "attn_kernel"
    head(a, N)
    VL16, VKA, VVA, VIDX, VM, VT, VKL = 1, 2, 3, 4, 5, 6, 7
    ONES = 8; Q = [12, 20]; NEG = [28, 44]; O = [60, 76]; L = [92, 96]; KB = [100, 108]; VB = [116, 124]; S = [132, 148, 164, 180]
    NV = 200
    PF = OPT["pf3"] == "1"
    def sm32(d, av, b): return f"v_smfmac_f32_32x32x32_bf16 {vr(d,16)}, {vr(av)}, {vr(b,8)}, v{VIDX}"
    def sm16(l, b): return f"v_smfmac_f32_16x16x64_bf16 {vr(l)}, {vr(ONES)}, {vr(b,8)}, v{VIDX}"
    def ld(d, soff, off=0, v=VL16): a(f"buffer_load_dwordx4 {vr(d)}, v{v}, s[8:11], {soff} offen offset:{off}")
    def xhalf_max():
        a(f"v_max_f32 v{VM}, v{VM}, v{VT}")
        a("s_nop 0")
        a(f"v_mov_b32 v{VT}, v{VM}")
        a("s_nop 1")
        a(f"v_permlane32_swap_b32 v{VM}, v{VT}")
        a("s_nop 1")
        a(f"v_max_f32 v{VM}, v{VM}, v{VT}")
    def maxof(vals):
        a(f"v_max3_f32 v{VM}, v{vals[0]}, v{vals[1]}, v{vals[2]}")
        a(f"v_max3_f32 v{VT}, v{vals[3]}, v{vals[4]}, v{vals[5]}")
        for i in range(6, len(vals) - 2, 4):
            a(f"v_max3_f32 v{VM}, v{VM}, v{vals[i]}, v{vals[i+1]}")
            a(f"v_max3_f32 v{VT}, v{VT}, v{vals[i+2]}, v{vals[i+3]}")
        a(f"v_max3_f32 v{VM}, v{VM}, v{vals[-2]}, v{vals[-1]}")
        xhalf_max()
    def finish(soff, off, T, o, l):
        a(f"v_rcp_f32 v{VT}, v{l}")
        a("s_nop 0")
        for i in range(16): a(f"v_mul_f32 v{o+i}, v{o+i}, v{VT}")
        for i in range(8): a(f"v_cvt_pk_bf16_f32 v{T+i}, v{o+2*i}, v{o+2*i+1}")
        a(f"buffer_store_dwordx4 {vr(T)}, v{VL16}, s[8:11], {soff} offen{OPT['st2']}")
        a(f"buffer_store_dwordx4 {vr(T+4)}, v{VL16}, s[8:11], {soff} offen offset:1024{OPT['st2']}")
    def consts():
        a(f"v_mov_b32 v{VIDX}, 0xdddddddd")
        a("v_bfe_u32 v5, v0, 2, 1")
        a("v_cmp_eq_u32 vcc, 0, v5")
        a("v_mov_b32 v6, 0x3f803f80")
        a("s_nop 0")
        a(f"v_cndmask_b32 v{ONES}, 0, v6, vcc")
        a(f"v_cndmask_b32 v{ONES+1}, 0, v6, vcc")
        a(f"v_cndmask_b32 v{ONES+2}, v6, 0, vcc")
        a(f"v_cndmask_b32 v{ONES+3}, v6, 0, vcc")
    a("s_cmp_ge_u32 s2, 256")
    a("s_cbranch_scc1 L2_end")
    stamp(a, 0); rstamp(a, 1)
    a("s_load_dwordx2 s[4:5], s[0:1], 64")
    a("s_and_b32 s20, s2, 7")
    a("s_lshr_b32 s21, s2, 3")
    a("s_lshr_b32 s22, s20, 2")
    a("s_mul_i32 s22, s22, 24")
    a("s_add_u32 s22, s22, 16")
    a("s_load_dwordx2 s[6:7], s[0:1], s22")
    a("s_load_dwordx2 s[58:59], s[0:1], 48")
    a("v_lshrrev_b32 v1, 6, v0")
    a("v_and_b32 v0, 63, v0")
    a("v_readfirstlane_b32 s24, v1")
    a("s_lshl_b32 s22, s20, 2")
    a("s_lshr_b32 s23, s21, 3")
    a("s_add_u32 s22, s22, s23")
    a("s_and_b32 s23, s21, 7")
    a(f"v_lshlrev_b32 v{VL16}, 4, v0")
    a("s_and_b32 s28, s24, 3")
    a("s_lshl_b32 s25, s23, 3")
    a("s_lshl_b32 s29, s28, 1")
    a("s_add_u32 s25, s25, s29")
    a("s_lshl_b32 s26, s22, 17")
    a("s_lshl_b32 s27, s25, 11")
    a("s_add_u32 s27, s27, s26")
    a("v_bfe_u32 v5, v0, 2, 1")
    a("v_and_b32 v6, 0x23, v0")
    a("v_lshl_or_b32 v6, v5, 4, v6")
    a("v_bfe_u32 v5, v0, 3, 2")
    a("v_lshl_or_b32 v6, v5, 2, v6")
    a(f"v_lshlrev_b32 v{VKL}, 4, v6")
    a(f"s_add_u32 s33, s26, {KF}")
    a("s_lshl_b32 s37, s25, 16")
    a("s_lshl_b32 s38, s22, 11")
    a("s_add_u32 s37, s37, s38")
    a(f"s_add_u32 s37, s37, {OF}")
    a("s_cmp_ge_u32 s24, 4")
    a("s_cbranch_scc1 L2_help")
    a("s_waitcnt lgkmcnt(0)")
    srd(a, 8, 4, WS_BYTES)
    ld(Q[0], "s27"); ld(KB[0], "s33", 0, VKL); ld(Q[0]+4, "s27", 1024); ld(KB[0]+4, "s33", 1024, VKL)
    ld(Q[1], "s27", 2048); ld(Q[1]+4, "s27", 3072)
    ld(KB[1], "s33", 2048, VKL); ld(KB[1]+4, "s33", 3072, VKL)
    consts()
    a("s_add_u32 s38, s37, 0x10000")
    a(f"v_mov_b32 v{VKA}, v{VKL}")
    a(f"v_add_u32 v{VVA}, 0x10000, v{VL16}")
    for i in range(40): a(f"v_mov_b32 v{O[0]+i}, 0")
    for i in range(16): a(f"v_mov_b32 v{S[3]+i}, 0")
    for i in range(8): a(f"v_mov_b32 v{VB[1]+i}, 0")
    a("s_mov_b32 s39, 0")
    a("s_mov_b32 s40, 0")
    stamp(a, 2)
    a("s_waitcnt vmcnt(4)")
    a(mfma(S[0], KB[0], Q[0], "0")); a(mfma(S[0], KB[0]+4, Q[0]+4))
    a("s_waitcnt vmcnt(2)")
    a(mfma(S[1], KB[0], Q[1], "0")); a(mfma(S[1], KB[0]+4, Q[1]+4))
    stamp(a, 3)
    a("s_nop 8")
    maxof([S[0]+r for r in range(16)])
    for i in range(16): a(f"v_sub_f32 v{NEG[0]+i}, 0, v{VM}")
    for i in range(16): a(f"v_sub_f32 v{S[0]+i}, v{S[0]+i}, v{VM}")
    maxof([S[1]+r for r in range(16)])
    for i in range(16): a(f"v_sub_f32 v{NEG[1]+i}, 0, v{VM}")
    a("s_waitcnt vmcnt(0)")
    a("s_barrier")
    stamp(a, 4)
    if OPT["tlb"] == "1": a(f"buffer_load_dword v196, v{VL16}, s[8:11], s37 offen")
    a("s_branch L2_it3")

    def item(p, qk=True, rd=True, pre=None, post=None):
        n = (p - 3) % 16
        i = n >> 1; qt = n & 1
        Sn, Sc, Sp = S[(n+1) % 4], S[n % 4], S[(n-1) % 4]
        qn = (n+1) & 1; kbu = KB[((n+1) >> 1) % 2]
        qp = (n-1) & 1; vbu = VB[((n-1) >> 1) % 2]
        if qt == 1:
            kt = (i + 2) % 8
            r = [f"ds_read_b128 {vr(KB[i % 2])}, v{VKA} offset:{kt*2048}", f"ds_read_b128 {vr(KB[i % 2]+4)}, v{VKA} offset:{kt*2048+1024}"]
        else:
            r = [f"ds_read_b128 {vr(VB[i % 2])}, v{VVA} offset:{i*2048}", f"ds_read_b128 {vr(VB[i % 2]+4)}, v{VVA} offset:{i*2048+1024}"]
        if not rd or "r" in OPT["k2x"]: r = []
        ex = [f"v_exp_f32 v{Sc+k}, v{Sc+k}" for k in range(16)]
        post = list(post or [])
        seq = []
        if qk: seq.append(mfma(Sn, kbu, Q[qn], NEG[qn]))
        seq += post[0:1] + ex[0:3]
        if qk: seq.append(mfma(Sn, kbu+4, Q[qn]+4))
        seq += ["s_waitcnt lgkmcnt(0)"] + list(pre or []) + ex[3:6]
        seq.append(sm32(O[qp], vbu, Sp))
        seq += r[:1] + ex[6:9]
        seq.append(sm16(L[qp], Sp))
        seq += post[1:3] + ex[9:10]
        seq.append(sm32(O[qp], vbu+4, Sp+8))
        seq += r[1:] + ex[10:13]
        seq.append(sm16(L[qp], Sp+8))
        seq += post[3:] + ex[13:16]
        for t in seq: a(t)

    a.raw(".p2align 6")
    a.lab("L2_loop")
    item(0, pre=["s_barrier", f"v_add_u32 v{VKA}, s40, v{VKL}"])
    item(1); item(2)
    a(f"v_add_u32 v{VVA}, s41, v{VL16}")
    a.lab("L2_it3")
    for p in range(3, 15): item(p)
    item(15, post=["s_add_u32 s40, s40, 16384", "s_and_b32 s40, s40, 0xffff", "s_add_u32 s41, s40, 0x10000", "s_add_u32 s39, s39, 1", "s_cmp_lt_u32 s39, 8"])
    a("s_cbranch_scc1 L2_loop")
    item(0, rd=False)
    item(1)
    item(2, qk=False, rd=False)
    a("s_nop 1")
    Sp = S[3]
    a(sm32(O[1], VB[1], Sp)); a(sm16(L[1], Sp)); a(sm32(O[1], VB[1]+4, Sp+8)); a(sm16(L[1], Sp+8))
    a("s_nop 4")
    stamp(a, 5)
    for qt in range(2):
        a(f"v_mul_f32 v{VM}, 0, v{O[qt]}")
        for i in range(1, 16): a(f"v_fma_f32 v{VM}, v{O[qt]+i}, 0, v{VM}")
        a(f"v_add_f32 v{VM}, v{VM}, v{L[qt]}")
        a(f"v_mov_b32 v{VT}, {f2u(2.0**64):#x}")
        a(f"v_cmp_nlt_f32 vcc, v{VM}, v{VT}")
        a("s_nop 4")
        a(f"s_cbranch_vccnz L2_slow{qt}")
        a.lab(f"L2_fin{qt}")
        finish("s37" if qt == 0 else "s38", 0, S[1+qt], O[qt], L[qt])
    dump(a, 1, "s24")
    a.lab("L2_end")
    a("s_endpgm")

    a.lab("L2_help")
    MC, MP, MP0, SC, SP, OB, LB = 12, 28, 44, 60, 76, [92, 112], [108, 128]
    QB = [132, 140]; KX = [148, 156, 164]; VX = [172, 180, 188]; VPF = 2
    a("s_lshl_b32 s34, s28, 12")
    a("s_add_u32 s35, s33, s34")
    a(f"s_add_u32 s36, s35, {VF-KF}")
    a("s_waitcnt lgkmcnt(0)")
    srd(a, 8, 4, WS_BYTES)
    srd(a, 16, 6, 2 << 20)
    def dma_stage(st):
        for base, so in ((0, "s35"), (65536, "s36")):
            a(f"s_add_u32 m0, s34, {base + (st % 4)*16384}")
            a("s_nop 0")
            for j in range(4):
                a(f"buffer_load_dwordx4 v{VL16}, s[8:11], {so} offen offset:{j*1024} lds")
            a(f"s_add_u32 {so}, {so}, 16384")
    dma_stage(0)
    consts()
    a(f"s_add_u32 s28, s27, {4<<20}")
    a(f"s_add_u32 s29, s28, {KF}")
    a(f"s_add_u32 s30, s28, {VF}")
    a("s_cmp_eq_u32 s25, 0")
    a("s_cselect_b32 s32, 0, 2048")
    a("s_cselect_b64 s[44:45], 0, -1")
    a("s_sub_u32 s31, s29, s32")
    a("s_sub_u32 s32, s30, s32")
    a(f"s_add_u32 s37, s37, {4<<20}")
    a("s_add_u32 s38, s37, 0x10000")
    if PF:
        a(f"v_lshlrev_b32 v{VPF}, 7, v0")
        a("v_cmp_gt_u32 vcc, 32, v0")
        a("v_mov_b32 v5, 0x7fffff00")
        a("s_lshl_b32 s47, s21, 16")
        a(f"v_cndmask_b32 v{VPF}, v5, v{VPF}, vcc")
        a("s_lshl_b32 s46, s34, 2")
        a("s_add_u32 s47, s47, s46")
    def pf():
        if PF:
            a(f"buffer_load_dword v{VPF+1}, v{VPF}, s[16:19], s47 offen")
            a("s_add_u32 s47, s47, 4096")
    for i in range(40): a(f"v_mov_b32 v{OB[0]+i}, 0")
    a(f"v_mov_b32 v{VT}, {NEGBIG:#x}")
    def lanemask(r, prev):
        m = 0
        for l in range(64):
            q = l & 31; hh = l >> 5
            key = kperm(8*(r//4) + 4*hh + r % 4)
            d = q - key + (32 if prev else 0)
            if 0 <= d <= 14 and d % 2 == 0: m |= 1 << l
        return m
    def masks(prev):
        k = 0
        for r in range(16):
            m = lanemask(r, prev)
            sp = 48 + 2*(k % 4); k += 1
            a(f"s_mov_b32 s{sp}, {m & 0xffffffff:#x}")
            a(f"s_mov_b32 s{sp+1}, {m >> 32:#x}")
            a(f"v_cndmask_b32 v{(MP if prev else MC)+r}, v{VT}, 0, s[{sp}:{sp+1}]")
            if prev: a(f"v_cndmask_b32 v{MP0+r}, v{VT}, v{MP+r}, s[44:45]")
    masks(0)
    stamp(a, 2); stamp(a, 3)
    a("s_waitcnt vmcnt(0)")
    a("s_barrier")
    stamp(a, 4)
    dma_stage(1)
    dma_stage(2)
    masks(1)
    if OPT["hprio"] != "0": a(f"s_setprio {OPT['hprio']}")
    def bcomp(t):
        keep = a.l; a.l = []
        kc, kp, vc, vp = KX[t+1], KX[t], VX[t+1], VX[t]
        ob, lb = OB[t], LB[t]
        a(mfma(SC, kc, QB[t], MC)); a(mfma(SP, kp, QB[t], MP0 if t == 0 else MP))
        a(mfma(SC, kc+4, QB[t]+4)); a(mfma(SP, kp+4, QB[t]+4))
        a("s_nop 10")
        vals = [SC+r for r in range(16)] + [SP+r for r in range(16)]
        maxof(vals)
        for v in vals: a(f"v_sub_f32 v{v}, v{v}, v{VM}")
        for v in vals: a(f"v_exp_f32 v{v}, v{v}")
        a("s_nop 1")
        a(sm32(ob, vc, SC)); a(sm16(lb, SC)); a(sm32(ob, vc+4, SC+8)); a(sm16(lb, SC+8))
        a(sm32(ob, vp, SP)); a(sm16(lb, SP)); a(sm16(lb, SP+8)); a(sm32(ob, vp+4, SP+8))
        a("s_nop 12")
        finish("s37" if t == 0 else "s38", 0, QB[t], ob, lb)
        out = a.l; a.l = keep
        return out
    work = [] if "B" in OPT["k2x"] else bcomp(0) + bcomp(1)
    def cost(t): return 2 if "v_exp" in t else (3 if "mfma" in t else 1)
    tot = sum(cost(t) for t in work)
    slots = [int(c) for c in OPT["bslots"]]
    chunks = {b: [] for b in range(8)}
    acc_ = 0
    for t in work:
        chunks[slots[min(len(slots) - 1, acc_ * len(slots) // tot)]].append(t)
        acc_ += cost(t)
    issued = ["s1"]*8 + ["s2"]*8
    for b in range(1, 8):
        need = f"s{b}"
        last = max(i for i, x in enumerate(issued) if x == need or (b == slots[0] and x == "B"))
        a(f"s_waitcnt vmcnt({len(issued) - 1 - last})")
        a("s_barrier")
        if b <= 5:
            dma_stage(b + 2); issued += [f"s{b+2}"]*8
        if b == 1:
            for t in range(2): ld(QB[t], "s28", t*2048); ld(QB[t]+4, "s28", t*2048+1024)
            ld(KX[0], "s31", 0, VKL); ld(KX[0]+4, "s31", 1024, VKL)
            for t in range(2): ld(KX[t+1], "s29", t*2048, VKL); ld(KX[t+1]+4, "s29", t*2048+1024, VKL)
            ld(VX[0], "s32"); ld(VX[0]+4, "s32", 1024)
            for t in range(2): ld(VX[t+1], "s30", t*2048); ld(VX[t+1]+4, "s30", t*2048+1024)
            issued += ["B"]*16
        if 2 <= b <= 5 and PF:
            pf(); issued += ["p"]
        if b == 6 and OPT["cpf"] == "1":
            codepf(a, NAME + "_kernel", "L3_end", 197); issued += ["p"]
        if b == 6 and OPT["tlb"] == "1":
            srd(a, 16, 58, 8 << 20)
            a(f"v_lshlrev_b32 v198, 21, v0")
            a(f"buffer_load_dword v198, v198, s[16:19], 0 offen"); issued += ["p"]
        for t in chunks[b]:
            a.l.append(t)
            if "buffer_store" in t: issued += ["st"]
    stamp(a, 5)
    dump(a, 1, "s24")
    a("s_endpgm")

    s0 = S[0]
    for qt in range(2):
        a.lab(f"L2_slow{qt}")
        a(f"s_add_u32 s36, s26, {VF}")
        a(f"v_mov_b32 v{VM}, 0xff800000")
        a("s_mov_b32 s39, 0")
        a.lab(f"L2_s1{qt}")
        a("s_add_u32 s41, s33, s39")
        ld(KB[0], "s41", 0, VKL); ld(KB[0]+4, "s41", 1024, VKL)
        a("s_waitcnt vmcnt(0)")
        a(mfma(s0, KB[0], Q[qt], "0")); a(mfma(s0, KB[0]+4, Q[qt]+4))
        a("s_nop 15")
        for i in range(0, 16, 2): a(f"v_max3_f32 v{VM}, v{VM}, v{s0+i}, v{s0+i+1}")
        a("s_add_u32 s39, s39, 2048")
        a(f"s_cmp_lt_u32 s39, {64*2048}")
        a(f"s_cbranch_scc1 L2_s1{qt}")
        a(f"v_mov_b32 v{VT}, v{VM}")
        xhalf_max()
        for i in range(16): a(f"v_sub_f32 v{NEG[qt]+i}, 0, v{VM}")
        for i in range(16): a(f"v_mov_b32 v{O[qt]+i}, 0")
        for i in range(4): a(f"v_mov_b32 v{L[qt]+i}, 0")
        a("s_mov_b32 s39, 0")
        a.lab(f"L2_s2{qt}")
        a("s_add_u32 s41, s33, s39")
        ld(KB[0], "s41", 0, VKL); ld(KB[0]+4, "s41", 1024, VKL)
        a("s_add_u32 s41, s36, s39")
        ld(VB[0], "s41"); ld(VB[0]+4, "s41", 1024)
        a("s_waitcnt vmcnt(0)")
        a(mfma(s0, KB[0], Q[qt], NEG[qt])); a(mfma(s0, KB[0]+4, Q[qt]+4))
        a("s_nop 15")
        for i in range(16): a(f"v_exp_f32 v{s0+i}, v{s0+i}")
        a("s_nop 1")
        a(sm32(O[qt], VB[0], s0)); a(sm16(L[qt], s0)); a(sm32(O[qt], VB[0]+4, s0+8)); a(sm16(L[qt], s0+8))
        a("s_nop 7")
        a("s_add_u32 s39, s39, 2048")
        a(f"s_cmp_lt_u32 s39, {64*2048}")
        a(f"s_cbranch_scc1 L2_s2{qt}")
        a("s_nop 15")
        a(f"s_branch L2_fin{qt}")
    return a.text(), kd(N, NV), f"; @launch kernel={N} grid=(256,1,1) block=(512,1,1) lds=131072"

def k3():
    a = A(); N = NAME + "_kernel"
    head(a, N)
    VL16, VWD0, VWD1, VOB, VOA, VWB, VWA, VST = 1, 8, 9, 10, 11, 12, 16, 20
    F = [24, 56]; ACC = 88; NV = 152
    def Of(f, mt): return F[f] + 4*mt
    def Wf(f, nb): return F[f] + 16 + 4*nb
    def acc(mt, nb): return ACC + (mt*4 + nb)*4
    SLOT = 32768
    a("s_cmp_ge_u32 s2, 256")
    a("s_cbranch_scc1 L3_end")
    stamp(a, 0); rstamp(a, 1)
    a("s_and_b32 s20, s2, 7")
    a("s_lshr_b32 s21, s2, 3")
    a("s_lshr_b32 s22, s20, 2")
    a("s_mul_i32 s23, s22, 24")
    a("s_add_u32 s23, s23, 16")
    a("s_load_dwordx2 s[4:5], s[0:1], s23")
    a("s_load_dwordx2 s[6:7], s[0:1], 64")
    a("s_load_dwordx2 s[36:37], s[0:1], 48")
    a("s_and_b32 s24, s20, 3")
    a("s_lshl_b32 s24, s24, 2")
    a("s_and_b32 s25, s21, 3")
    a("s_add_u32 s24, s24, s25")
    a("s_lshr_b32 s25, s21, 2")
    a("v_lshrrev_b32 v1, 6, v0")
    a("v_and_b32 v0, 63, v0")
    a("v_readfirstlane_b32 s26, v1")
    a(f"v_lshlrev_b32 v{VL16}, 4, v0")
    a("s_nop 2")
    a("s_cmp_lt_u32 s26, 4")
    a("s_cbranch_scc1 L3_compute")
    a("s_sub_u32 s26, s26, 4")
    a("v_lshrrev_b32 v2, 4, v0")
    a("v_and_b32 v3, 15, v0")
    a("v_lshlrev_b32 v4, 1, v2")
    a("v_xor_b32 v3, v3, v4")
    a("v_lshlrev_b32 v3, 4, v3")
    a(f"v_lshl_add_u32 v{VWD0}, v2, 11, v3")
    a(f"v_xor_b32 v{VWD1}, 128, v{VWD0}")
    a(f"v_add_u32 v{VWD1}, 8192, v{VWD1}")
    a("s_lshl_b32 s27, s22, 22")
    a("s_lshl_b32 s28, s24, 2")
    a("s_add_u32 s28, s28, s26")
    a("s_lshl_b32 s28, s28, 16")
    a("s_add_u32 s27, s27, s28")
    a(f"s_add_u32 s27, s27, {OF}")
    a("s_lshl_b32 s28, s26, 15")
    a("s_lshl_b32 s29, s25, 8")
    a("s_add_u32 s28, s28, s29")
    a("s_add_u32 s30, s28, 16384")
    a("s_lshl_b32 s29, s26, 12")
    a("s_waitcnt lgkmcnt(0)")
    srd(a, 8, 6, WS_BYTES)
    srd(a, 12, 4, 2 << 20)
    def dma(slot):
        a(f"s_add_u32 m0, s29, {slot + 16384}")
        a("s_nop 0")
        a(f"buffer_load_dwordx4 v{VWD0}, s[12:15], s28 offen lds")
        a("s_add_u32 m0, m0, 1024")
        a("s_nop 0")
        a(f"buffer_load_dwordx4 v{VWD1}, s[12:15], s28 offen lds")
        a("s_add_u32 m0, m0, 1024")
        a(f"s_add_u32 s28, s28, {64*2048}")
        a(f"buffer_load_dwordx4 v{VWD0}, s[12:15], s30 offen lds")
        a("s_add_u32 m0, m0, 1024")
        a("s_nop 0")
        a(f"buffer_load_dwordx4 v{VWD1}, s[12:15], s30 offen lds")
        a(f"s_add_u32 m0, s29, {slot}")
        a(f"s_add_u32 s30, s30, {64*2048}")
        for j in range(4):
            a(f"buffer_load_dwordx4 v{VL16}, s[8:11], s27 offen offset:{j*1024} lds")
        a("s_add_u32 s27, s27, 4096")
    for st in range(4): dma(st*SLOT)
    stamp(a, 2)
    a("s_waitcnt vmcnt(24)")
    a("s_barrier")
    stamp(a, 3)
    a("s_mov_b32 s35, 0")
    a.lab("L3_ld")
    for t in range(4):
        a("s_waitcnt vmcnt(16)")
        a("s_barrier")
        dma(t*SLOT)
    a("s_add_u32 s35, s35, 1")
    a("s_cmp_lt_u32 s35, 3")
    a("s_cbranch_scc1 L3_ld")
    for n in (16, 8, 0):
        a(f"s_waitcnt vmcnt({n})")
        a("s_barrier")
    stamp(a, 4); stamp(a, 5)
    a("s_add_u32 s26, s26, 4")
    dump(a, 2, "s26")
    a("s_endpgm")
    a.lab("L3_compute")
    a("s_and_b32 s31, s26, 1")
    a("s_lshr_b32 s32, s26, 1")
    a("v_and_b32 v2, 15, v0")
    a("v_lshrrev_b32 v3, 4, v0")
    a("s_lshl_b32 s33, s31, 13")
    a("v_lshlrev_b32 v4, 4, v2")
    a("v_lshl_add_u32 v4, v3, 9, v4")
    a(f"v_add_u32 v{VOB}, s33, v4")
    a(f"v_mov_b32 v{VOA}, v{VOB}")
    a("v_bfe_u32 v4, v0, 2, 3")
    a("v_lshrrev_b32 v5, 5, v0")
    a("v_lshl_add_u32 v5, v5, 4, v4")
    a("v_lshlrev_b32 v5, 8, v5")
    a("v_and_b32 v6, 3, v0")
    a("v_lshl_add_u32 v5, v6, 3, v5")
    a("v_add_u32 v5, 16384, v5")
    a("s_lshl_b32 s33, s32, 2")
    a("v_xor_b32 v4, s33, v4")
    a(f"v_lshl_add_u32 v{VWB}, v4, 5, v5")
    for nb in range(1, 4): a(f"v_xor_b32 v{VWB+nb}, {nb*32}, v{VWB}")
    for nb in range(4): a(f"v_mov_b32 v{VWA+nb}, v{VWB+nb}")
    for i in range(64): a(f"v_mov_b32 v{ACC+i}, 0")
    a("s_mov_b32 s33, 0")
    a("s_mov_b32 s35, 0")
    a("s_waitcnt lgkmcnt(0)")
    srd(a, 16, 36, 8 << 20)
    a("s_lshl_b32 s40, s24, 19")
    a("s_lshl_b32 s41, s31, 18")
    a("s_add_u32 s40, s40, s41")
    a("s_lshl_b32 s41, s22, 11")
    a("s_add_u32 s40, s40, s41")
    a("s_lshl_b32 s41, s25, 8")
    a("s_add_u32 s40, s40, s41")
    a("s_lshl_b32 s41, s32, 7")
    a("s_add_u32 s40, s40, s41")
    def rdO(f, ks, mt): return [f"ds_read_b128 {vr(Of(f,mt))}, v{VOA} offset:{(mt>>1)*4096 + ks*2048 + (mt&1)*256}"]
    def rdW(f, ks, nb): return [f"ds_read_b64_tr_b16 {vr(Wf(f,nb),2)}, v{VWA+nb} offset:{ks*8192}",
                                f"ds_read_b64_tr_b16 {vr(Wf(f,nb)+2,2)}, v{VWA+nb} offset:{ks*8192+2048}"]
    def reads(f, ks):
        return [rdO(f, ks, 0)] + [rdW(f, ks, nb) for nb in range(4)] + [rdO(f, ks, mt) for mt in (1, 2, 3)]
    def mm(f):
        return [mfma16(acc(mt, nb), Wf(f, nb), Of(f, mt)) for mt in range(4) for nb in range(4)]
    stamp(a, 2)
    a("s_barrier")
    stamp(a, 3)
    for grp in reads(0, 0):
        for t in grp: a(t)
    a("s_branch L3_mid")
    a.raw(".p2align 6")
    a.lab("L3_loop")
    flat = lambda g: [[t] for x in g for t in x]
    for t in spread(mm(1), flat(reads(0, 0)), 0, 1): a(t)
    a.lab("L3_mid")
    a("s_waitcnt lgkmcnt(0)")
    fl = flat(reads(1, 1))
    fl[0] += [f"s_add_u32 s33, s33, {SLOT}", f"s_and_b32 s33, s33, {4*SLOT-1:#x}"]
    fl[1] += ["s_add_u32 s35, s35, 1", "s_cmp_lt_u32 s35, 16"]
    fl[9] += [f"v_add_u32 v{VWA}, s33, v{VWB}"]
    fl[10] += [f"v_add_u32 v{VWA+1}, s33, v{VWB+1}"]
    fl[11] += [f"v_add_u32 v{VWA+2}, s33, v{VWB+2}"]
    fl += [[f"v_add_u32 v{VWA+3}, s33, v{VWB+3}", f"v_add_u32 v{VOA}, s33, v{VOB}"], [], [], ["s_waitcnt lgkmcnt(0)", "s_barrier"]]
    for t in spread(mm(0), fl, 0, 1): a(t)
    a("s_cbranch_scc1 L3_loop")
    for t in mm(1): a(t)
    stamp(a, 4)
    a("s_mul_i32 s41, s26, 9216")
    a("v_mul_u32_u24 v4, 144, v2")
    a("v_lshl_add_u32 v4, v3, 3, v4")
    a("v_add_u32 v4, s41, v4")
    a("v_lshrrev_b32 v5, 3, v0")
    a("v_mul_u32_u24 v6, 144, v5")
    a("v_and_b32 v7, 7, v0")
    a("v_lshl_add_u32 v6, v7, 4, v6")
    a("v_add_u32 v6, s41, v6")
    a("v_lshlrev_b32 v5, 12, v5")
    a(f"v_lshl_add_u32 v{VST}, v7, 4, v5")
    for mt in range(4):
        for nb in range(4):
            b = acc(mt, nb); t0 = F[0] + 2*(mt*4 + nb)
            a(f"v_cvt_pk_bf16_f32 v{t0}, v{b}, v{b+1}")
            a(f"v_cvt_pk_bf16_f32 v{t0+1}, v{b+2}, v{b+3}")
            a(f"ds_write_b64 v4, {vr(t0,2)} offset:{mt*16*144 + nb*32}")
        a(f"ds_read_b128 {vr(F[1]+8*mt)}, v6 offset:{mt*16*144}")
        a(f"ds_read_b128 {vr(F[1]+8*mt+4)}, v6 offset:{mt*16*144 + 8*144}")
        if mt >= 1:
            a("s_waitcnt lgkmcnt(6)")
            for h in range(2):
                a(f"buffer_store_dwordx4 {vr(F[1]+8*(mt-1)+4*h)}, v{VST}, s[16:19], s40 offen{OPT['st3']}")
                a(f"s_add_u32 s40, s40, {8*4096}")
    a("s_waitcnt lgkmcnt(0)")
    for h in range(2):
        a(f"buffer_store_dwordx4 {vr(F[1]+24+4*h)}, v{VST}, s[16:19], s40 offen{OPT['st3']}")
        a(f"s_add_u32 s40, s40, {8*4096}")
    stamp(a, 5)
    dump(a, 2, "s26")
    a.lab("L3_end")
    a("s_endpgm")
    return a.text(), kd(N, NV), f"; @launch kernel={N} grid=(256,1,1) block=(512,1,1) lds=131072"

def main():
    ks = [k1(), k2(), k3()]
    hdr = open("cdna_kernels/" + NAME + ".s.ref").read().split("\n")
    top = [l for l in hdr if l.startswith(";") and "@launch" not in l and "Override" not in l and "grid=ceil" not in l]
    out = "\n".join(top) + "\n" + "\n".join(k[2] for k in ks) + "\n"
    out += '.amdgcn_target "amdgcn-amd-amdhsa--gfx950"\n.text\n'
    for k in ks: out += k[0]
    out += '.section .rodata,"a"\n'
    for k in ks: out += k[1]
    open(sys.argv[1], "w").write(out)

main()
```

```python
import struct, math, sys

NAME = "concat_heads__mha_block__sliding_local_dilated__prompt"
OPT = dict(st1=" sc1", st2=" sc1", st3=" sc1", dbg="0", pf1="1", pf3="1", ord1="0", dlt="4", nx="0", ph="2", s2e="0", prio="1", k2x="", cpf="1", hprio="0", trip="0", k1x="", tlb="1", dk="0", bslots="23456")
for a in sys.argv[2:]:
    k, v = a.split("=", 1)
    OPT[k] = v

def f2u(x): return struct.unpack("<I", struct.pack("<f", x))[0]
QSCALE = f2u(math.log2(math.e) / math.sqrt(32.0))
NEGBIG = f2u(-1e30)

QF, KF, VF, OF = 0, 8 << 20, 16 << 20, 24 << 20
WS_BYTES = 32 << 20

class A:
    def __init__(s): s.l = []
    def __call__(s, t): s.l.append("    " + t)
    def lab(s, t): s.l.append(t + ":")
    def raw(s, t): s.l.append(t)
    def text(s): return "\n".join(s.l) + "\n"

def vr(b, n=4): return f"v[{b}:{b+n-1}]"
def mfma(d, a, b, c=None):
    cc = vr(d, 16) if c is None else (c if isinstance(c, str) else vr(c, 16))
    return f"v_mfma_f32_32x32x16_bf16 {vr(d,16)}, {vr(a)}, {vr(b)}, {cc}"

def mfma16(d, a, b):
    return f"v_mfma_f32_16x16x32_bf16 {vr(d)}, {vr(a)}, {vr(b)}, {vr(d)}"

def spread(main, fill, start=0, every=1, per=1):
    out = []; k = 0
    for i, m in enumerate(main):
        out.append(m)
        if i >= start and (i - start) % every == 0:
            for _ in range(per):
                if k < len(fill):
                    out += fill[k]; k += 1
    while k < len(fill):
        out += fill[k]; k += 1
    return out

def interleave(main, fill, pattern):
    out = []; k = 0
    for i, m in enumerate(main):
        for _ in range(pattern[i] if i < len(pattern) else 0):
            if k < len(fill):
                out += fill[k]; k += 1
        out.append(m)
    while k < len(fill):
        out += fill[k]; k += 1
    return out

def kd(name, vgpr, sgpr=96):
    acc = (vgpr + 3) // 4 * 4
    return f""".p2align 6
.amdhsa_kernel {name}
  .amdhsa_next_free_vgpr {vgpr}
  .amdhsa_next_free_sgpr {sgpr}
  .amdhsa_accum_offset {acc}
  .amdhsa_group_segment_fixed_size 0
  .amdhsa_kernarg_size 72
  .amdhsa_user_sgpr_count 2
  .amdhsa_user_sgpr_kernarg_segment_ptr 1
  .amdhsa_system_sgpr_workgroup_id_x 1
.end_amdhsa_kernel
"""

_cp = [0]
DBG = OPT["dbg"] in ("1", "2", "3")
def stamp(a, n):
    if DBG:
        a(f"s_memtime s[{64+2*n}:{65+2*n}]")
def rstamp(a, n):
    if DBG:
        a(f"s_memrealtime s[{64+2*n}:{65+2*n}]")
def dump(a, kidx, wave_sgpr, nst=8):
    if not DBG: return
    if OPT["dbg"] == "2":
        if kidx != int(OPT["dk"]): return
        _cp[0] += 1
        sk = f"Ldbg{_cp[0]}"
        a("s_load_dwordx2 s[88:89], s[0:1], 56")
        a("s_waitcnt lgkmcnt(0) vmcnt(0)")
        a(f"s_memtime s[{64+2*(nst-2)}:{65+2*(nst-2)}]")
        a(f"s_memrealtime s[{64+2*(nst-1)}:{65+2*(nst-1)}]")
        a("s_waitcnt lgkmcnt(0)")
        a(f"s_sub_u32 s88, s88, {512*kidx}")
        a("s_subb_u32 s89, s89, 0")
        a("s_mov_b32 s90, 64")
        a("s_mov_b32 s91, 0x00020000")
        a("s_lshl_b32 s92, s2, 3")
        a(f"s_add_u32 s92, s92, {wave_sgpr}")
        a("s_cmp_eq_u32 s92, 805")
        a("s_cselect_b32 s93, 32, 0x1000")
        a("s_cmp_eq_u32 s92, 0")
        a("s_cselect_b32 s92, 0, s93")
        a("v_mov_b32 v2, 0")
        for n in range(2, nst):
            base = 64 if n < nst-1 else 66
            a(f"s_sub_u32 s93, s{64+2*n}, s{base}")
            a("v_mov_b32 v3, s93")
            a(f"buffer_store_dword v3, v2, s[88:91], s92 offen offset:{4*(n-2)}")
            a("s_nop 1")
        return
    a("s_load_dwordx2 s[88:89], s[0:1], 64")
    a("s_waitcnt lgkmcnt(0) vmcnt(0)")
    a(f"s_memtime s[{64+2*(nst-2)}:{65+2*(nst-2)}]")
    a(f"s_memrealtime s[{64+2*(nst-1)}:{65+2*(nst-1)}]")
    a("s_waitcnt lgkmcnt(0)")
    a("s_mov_b32 s90, 0x8000000")
    a("s_mov_b32 s91, 0x00020000")
    a("s_lshl_b32 s92, s2, 3")
    a(f"s_add_u32 s92, s92, {wave_sgpr}")
    a("s_lshl_b32 s92, s92, 6")
    a(f"s_add_u32 s92, s92, {(64+kidx) << 20}")
    a("v_mov_b32 v2, 0")
    for n in range(nst):
        a(f"v_mov_b32 v3, s{64+2*n}")
        a(f"buffer_store_dword v3, v2, s[88:91], s92 offen offset:{4*n}")
        a("s_nop 1")
    if OPT["dbg"] == "3" and kidx == 2:
        _cp[0] += 1
        sk = f"Ldbg{_cp[0]}"
        a("s_lshl_b32 s92, s2, 3")
        a(f"s_add_u32 s92, s92, {wave_sgpr}")
        a(f"s_cmp_lg_u32 s92, {OPT['dk']}")
        a(f"s_cbranch_scc1 {sk}")
        a(f"s_add_u32 s88, s88, {(64 << 20) + int(OPT['dk'])*64}")
        a("s_addc_u32 s89, s89, 0")
        a("s_load_dwordx8 s[40:47], s[88:89], 0")
        a("s_add_u32 s88, s88, 0x100000")
        a("s_addc_u32 s89, s89, 0")
        a("s_load_dwordx8 s[48:55], s[88:89], 0")
        a("s_load_dwordx2 s[88:89], s[0:1], 56")
        a("s_waitcnt lgkmcnt(0)")
        a("s_mov_b32 s90, 64")
        k = 0
        for b, st in ((40, 1), (48, 1), (64, 2)):
            for n, ref in ((3, b), (4, b), (6, b), (1, 41), (7, 41)):
                a(f"s_sub_u32 s93, s{b+st*n}, s{ref}")
                a("v_mov_b32 v3, s93")
                a(f"buffer_store_dword v3, v2, s[88:91], 0 offen offset:{4*k}")
                a("s_nop 1")
                k += 1
        a.lab(sk)

def codepf(a, start, end, vtmp, lane="v0"):
    if OPT["cpf"] != "1": return
    _cp[0] += 1
    l = f"Lcp{_cp[0]}"
    a("s_getpc_b64 s[56:57]")
    a.lab(l)
    a(f"s_add_u32 s56, s56, {start}-{l}")
    a(f"s_addc_u32 s57, s57, ({start}-{l})>>32")
    a(f"v_lshlrev_b32 v{vtmp}, 7, {lane}")
    a(f"v_min_u32 v{vtmp}, {end}-{start}-4, v{vtmp}")
    a(f"global_load_dword v{vtmp}, v{vtmp}, s[56:57]")

def head(a, name):
    a.raw(f".globl {name}\n.p2align 8\n.type {name},@function\n{name}:")

def srd(a, d, base, nbytes):
    a(f"s_mov_b32 s{d}, s{base}")
    a(f"s_mov_b32 s{d+1}, s{base+1}")
    a(f"s_mov_b32 s{d+2}, {nbytes:#x}")
    a(f"s_mov_b32 s{d+3}, 0x00020000")

def place(main, fill, per=2, start=0):
    out = []; k = 0
    for i, m in enumerate(main):
        out.append(m)
        if i >= start:
            out += fill[k:k+per]; k += per
    out += fill[k:]
    return out

def sched(M, rd, d, post, late, late_dma=False):
    n = len(M)
    gaps = [[] for _ in range(n)]
    if late_dma: rg = list(range(len(rd))); dg = [len(rd) + 2*k for k in range(len(d))]
    else:
        dg = [1 + 4*k for k in range(len(d))]; rg = [g for g in range(n) if g not in dg][:len(rd)]
    for g, t in zip(rg, rd): gaps[g].append(t)
    for g, (m_, l_) in zip(dg, d):
        gaps[g-1].append(m_); gaps[g].append(l_)
    def runs(ops):
        out = []
        for t in ops:
            if t.startswith("s_cselect") : out[-1].append(t)
            else: out.append([t])
        return out
    def put(run, g0):
        g = g0
        while g < n - 1 and len(gaps[g]) + len(run) > 3: g += 1
        gaps[g] += run
        return g
    g = (dg[len(d)-1] if d else 0)
    for r in runs(post): g = put(r, g)
    g = 0
    for r in runs(late):
        if r[0].startswith("v_"): g = max(g, rg[-1] if rg else 0)
        g = put(r, g)
    seq = []
    for i, m_ in enumerate(M):
        seq.append(m_); seq += gaps[i]
    return seq

def k1():
    a = A(); N = "qkv_kernel"
    head(a, N)
    XS, WS, WSL = 32768, 98304, 12288
    VD, VXB, VXA, VWB, VWA, VST, VPX, VPW, VPD = 10, 18, 20, 22, 24, 26, 27, 28, 29
    F = [32, 72]; ACC = 112; NV = 208
    PF = OPT["pf1"] == "1"
    DLT = int(OPT["dlt"])
    def A_(f, mt): return F[f] + 4*mt
    def B_(f, nb): return F[f] + 16 + 4*nb
    def acc(mt, nb): return ACC + (mt*6 + nb)*4
    a("s_cmp_ge_u32 s2, 256")
    a("s_cbranch_scc1 L1_end")
    stamp(a, 0); rstamp(a, 1)
    a("s_and_b32 s20, s2, 7")
    a("s_lshr_b32 s21, s2, 3")
    a("s_lshr_b32 s22, s20, 2")
    a("s_mul_i32 s23, s22, 24")
    a("s_load_dwordx4 s[4:7], s[0:1], s23")
    a("s_load_dwordx2 s[36:37], s[0:1], 64")
    a("v_lshrrev_b32 v1, 6, v0")
    a("v_and_b32 v0, 63, v0")
    a("v_readfirstlane_b32 s26, v1")
    a("s_and_b32 s24, s20, 1")
    a("s_lshl_b32 s24, s24, 2")
    a("s_and_b32 s25, s21, 3")
    a("s_add_u32 s24, s24, s25")
    a("s_bfe_u32 s25, s20, 0x10001")
    a("s_lshl_b32 s25, s25, 3")
    a("s_lshr_b32 s27, s21, 2")
    if OPT["nx"] != "0": a(f"s_xor_b32 s27, s27, {OPT['nx']}")
    a("s_add_u32 s25, s25, s27")
    a("s_and_b32 s31, s26, 3")
    a("s_lshr_b32 s32, s26, 2")
    PH = OPT["ph"]
    if PH == "0": a("s_mov_b32 s44, 0")
    elif PH == "1":
        a("s_lshl_b32 s44, s20, 1")
    elif PH == "2":
        a("s_lshl_b32 s44, s20, 1")
        a("s_and_b32 s45, s21, 1")
        a("s_add_u32 s44, s44, s45")
    elif PH == "3":
        a("s_lshl_b32 s44, s22, 1")
        a("s_and_b32 s45, s20, 1")
        a("s_add_u32 s44, s44, s45")
        a("s_lshl_b32 s44, s44, 2")
        a("s_and_b32 s45, s21, 3")
        a("s_add_u32 s44, s44, s45")
    elif PH == "4":
        a("s_lshl_b32 s44, s22, 1")
        a("s_and_b32 s45, s20, 1")
        a("s_add_u32 s44, s44, s45")
        a("s_lshl_b32 s44, s44, 2")
    a("v_lshrrev_b32 v2, 3, v0")
    a("v_and_b32 v3, 7, v0")
    a("v_lshrrev_b32 v4, 4, v0")

    def rdA(f, ks, mt): return [f"ds_read_b128 {vr(A_(f,mt))}, v{VXA+ks} offset:{mt*2048}"]
    def rdB(f, nb):
        o = (nb//2)*4096
        return [f"ds_read_b64_tr_b16 {vr(B_(f,nb),2)}, v{VWA+nb%2} offset:{o}",
                f"ds_read_b64_tr_b16 {vr(B_(f,nb)+2,2)}, v{VWA+nb%2} offset:{o+512}"]
    def reads(f, ks):
        r = rdB(f, 0)
        for mt in range(4): r += rdA(f, ks, mt)
        for nb in range(1, 6): r += rdB(f, nb)
        return r
    def mm(f):
        r = []
        for nb in range(6):
            for mt in range(4):
                if nb < 4: r.append(mfma16(acc(mt, nb), B_(f, nb), A_(f, mt)))
                else:      r.append(mfma16(acc(mt, nb), A_(f, mt), B_(f, nb)))
        return r

    def common_setup():
        srd(a, 16, 36, WS_BYTES)
        a("v_and_b32 v2, 15, v0")
        a("v_lshrrev_b32 v3, 4, v0")
        a("v_bfe_u32 v4, v0, 1, 3")
        a("s_lshl_b32 s33, s31, 13")
        a("v_lshlrev_b32 v5, 7, v2")
        a("v_add_u32 v5, s33, v5")
        a("v_xor_b32 v6, v3, v4")
        a(f"v_lshl_add_u32 v{VXB}, v6, 4, v5")
        a(f"v_xor_b32 v{VXB+1}, 64, v{VXB}")
        a(f"v_mov_b32 v{VXA}, v{VXB}")
        a(f"v_mov_b32 v{VXA+1}, v{VXB+1}")
        a("v_bfe_u32 v4, v0, 2, 2")
        a("v_lshl_add_u32 v4, v3, 3, v4")
        a("v_lshlrev_b32 v4, 7, v4")
        a("v_and_b32 v6, 3, v0")
        a("v_lshl_add_u32 v4, v6, 3, v4")
        a("v_bfe_u32 v5, v0, 3, 2")
        a("s_lshl_b32 s33, s32, 1")
        a("v_xor_b32 v5, s33, v5")
        a(f"v_lshl_add_u32 v{VWB}, v5, 5, v4")
        a(f"v_xor_b32 v{VWB+1}, 32, v{VWB}")
        a(f"v_add_u32 v{VWA}, {WS}, v{VWB}")
        a(f"v_add_u32 v{VWA+1}, {WS}, v{VWB+1}")
        a("v_lshlrev_b32 v4, 4, v2")
        a(f"v_lshl_add_u32 v{VST}, v3, 9, v4")
        for i in range(96): a(f"v_mov_b32 v{ACC+i}, 0")
        a("s_lshl_b32 s40, s22, 22")
        a("s_lshl_b32 s41, s25, 1")
        a("s_add_u32 s41, s41, s32")
        a("s_lshl_b32 s41, s41, 17")
        a("s_add_u32 s40, s40, s41")
        a("s_lshl_b32 s41, s24, 14")
        a("s_add_u32 s40, s40, s41")
        a("s_lshl_b32 s41, s31, 12")
        a("s_add_u32 s40, s40, s41")
        a(f"s_add_u32 s41, s40, {KF}")
        a(f"s_add_u32 s42, s40, {VF}")
        a(f"s_mov_b32 s43, {QSCALE:#x}")
        a("s_mov_b32 s33, 0")
        a(f"s_mov_b32 s34, {WS}")
        a("s_mov_b32 s35, 0")

    wupd = [f"s_add_u32 s34, s34, {WSL}", f"s_cmp_eq_u32 s34, {WS+5*WSL}", f"s_cselect_b32 s34, {WS}, s34",
            f"v_add_u32 v{VWA}, s34, v{VWB}", f"v_add_u32 v{VWA+1}, s34, v{VWB+1}", "s_add_u32 s35, s35, 1"]
    xupd = [f"s_add_u32 s33, s33, {XS}", f"s_cmp_eq_u32 s33, {3*XS}", "s_cselect_b32 s33, 0, s33",
            f"v_add_u32 v{VXA}, s33, v{VXB}", f"v_add_u32 v{VXA+1}, s33, v{VXB+1}"]

    def mix(dma, other):
        out = []; o = list(other)
        for m, l in dma:
            out.append(m)
            out.append(o.pop(0) if o else "s_nop 0")
            out.append(l)
        return out + o

    def event(tag):
        a.lab(tag)
        a("s_mov_b32 s49, 0x7fff")
        if OPT["cpf"] == "1":
            a("s_cmp_eq_u32 s31, 3")
            a(f"s_cbranch_scc1 {tag}c")
        a(f"buffer_load_dword v{VPD}, v{VPW}, s[12:15], s50 offen")
        a(f"s_branch {tag}r")
        if OPT["cpf"] == "1":
            a.lab(tag + "c")
            codepf(a, "attn_kernel", "L2_slow0", 31)
            if OPT["tlb"] == "1":
                a("v_lshlrev_b32 v30, 21, v0")
                a("buffer_load_dword v30, v30, s[16:19], 0 offen")
            a(f"s_branch {tag}r")

    a("s_cmp_lg_u32 s32, 0")
    a("s_cbranch_scc1 L1_W")
    for cls in ("X", "W"):
        P = "L1" + cls
        if cls == "X":
            a("v_lshlrev_b32 v5, 11, v2")
            a("v_xor_b32 v6, v3, v4")
            a("v_lshl_add_u32 v6, v6, 4, v5")
            a("v_xor_b32 v7, 64, v6")
            a(f"v_mov_b32 v{VD}, v6")
            a(f"v_add_u32 v{VD+1}, 16384, v7")
            a(f"v_add_u32 v{VD+2}, 32768, v6")
            a(f"v_add_u32 v{VD+3}, 49152, v7")
            a("s_lshl_b32 s27, s24, 19")
            a("s_lshl_b32 s28, s31, 16")
            a("s_add_u32 s45, s27, s28")
            a("s_lshl_b32 s46, s44, 7")
            a("s_add_u32 s27, s45, s46")
            a("s_add_u32 s28, s27, 0x40000")
            a("s_lshl_b32 s29, s31, 12")
            a(f"s_add_u32 s30, s29, {6*16384}")
            a("s_waitcnt lgkmcnt(0)")
            if OPT["s2e"] == "1": stamp(a, 2)
            srd(a, 8, 4, 4 << 20)
            def grp(par):
                so = "s27" if par == 0 else "s28"
                d = [(f"s_add_u32 m0, s29, {j*1024}", f"buffer_load_dwordx4 v{VD+j}, s[8:11], {so} offen lds") for j in range(4)]
                post = ["s_add_u32 s29, s29, 16384"]
                if par == 0: post += ["s_add_u32 s46, s46, 128", "s_and_b32 s46, s46, 0x7ff", "s_add_u32 s27, s45, s46"]
                if par == 1: post += ["s_add_u32 s28, s27, 0x40000", "s_cmp_eq_u32 s29, s30", f"s_cselect_b32 s38, {6*16384}, 0", "s_sub_u32 s29, s29, s38"]
                return d, post
            NG = 4
        else:
            a.lab("L1_W")
            if OPT["cpf"] == "1":
                a("s_cmp_lg_u32 s26, 7")
                a("s_cbranch_scc1 L1_nocp")
                codepf(a, "qkv_kernel", "L1_end", VPD)
                a.lab("L1_nocp")
            a("v_mul_u32_u24 v5, 6144, v2")
            a("v_and_b32 v6, 1, v4")
            a("v_lshlrev_b32 v6, 1, v6")
            a("s_and_b32 s33, s26, 1")
            a("s_lshl_b32 s33, s33, 2")
            a("v_xor_b32 v6, v3, v6")
            a("v_xor_b32 v6, s33, v6")
            a(f"v_lshl_add_u32 v{VD}, v6, 4, v5")
            a(f"v_add_u32 v{VD+1}, 2048, v{VD}")
            a(f"v_add_u32 v{VD+2}, 4096, v{VD}")
            if PF:
                a(f"v_mul_u32_u24 v{VPW}, 6144, v0")
                a("v_cmp_gt_u32 vcc, 32, v0")
                a("v_mov_b32 v7, 0x7fffff00")
                a("s_lshl_b32 s50, s20, 2")
                a(f"v_cndmask_b32 v{VPW}, v7, v{VPW}, vcc")
                a("s_add_u32 s50, s50, s21")
                a("s_and_b32 s50, s50, 31")
                a(f"s_mul_i32 s50, s50, {32*6144}")
                a("s_lshl_b32 s51, s31, 11")
                a("s_add_u32 s50, s50, s51")
                a("s_bfe_u32 s51, s20, 0x10001")
                a("s_lshl_b32 s51, s51, 10")
                a("s_add_u32 s50, s50, s51")
                a("s_add_u32 s50, s50, 384")
                a(f"s_max_u32 s49, s21, {4+DLT}")
                a(f"s_sub_u32 s49, s49, {4+DLT}")
                a("s_cmp_lt_u32 s21, 5")
                a("s_cselect_b32 s49, 0x7fff, s49")
                a("s_cmp_eq_u32 s31, 3")
                a(f"s_cselect_b32 s49, {26 if OPT['cpf'] == '1' else 0x7fff}, s49")
            a("s_lshl_b32 s27, s25, 7")
            a(f"s_mul_i32 s28, s31, {8*6144}")
            a("s_add_u32 s27, s27, s28")
            a(f"s_mul_i32 s28, s44, {64*6144}")
            a("s_add_u32 s27, s27, s28")
            a("s_lshl_b32 s29, s31, 10")
            a(f"s_add_u32 s29, s29, {WS}")
            a(f"s_add_u32 s30, s29, {5*WSL}")
            a("s_waitcnt lgkmcnt(0)")
            if OPT["s2e"] == "1": stamp(a, 2)
            srd(a, 12, 6, 6 << 20)
            def grp(par):
                d = [(f"s_add_u32 m0, s29, {g*4096}", f"buffer_load_dwordx4 v{VD+g}, s[12:15], s27 offen lds") for g in range(3)]
                post = [f"s_add_u32 s27, s27, {32*6144}", f"s_add_u32 s29, s29, {WSL}",
                        "s_cmp_eq_u32 s29, s30", f"s_cselect_b32 s38, {5*WSL}, 0", "s_sub_u32 s29, s29, s38"]
                if par == 1: post += [f"s_cmp_ge_u32 s27, {6<<20:#x}", f"s_cselect_b32 s38, {6<<20:#x}, 0", "s_sub_u32 s27, s27, s38"]
                return d, post
            NG = 3
        def emit_grp(par):
            d, post = grp(par)
            for t in mix(d, []) + post: a(t)
        first = 2 if cls == "X" else 1
        for n in range(first): emit_grp(n & 1)
        common_setup()
        for n in range(first, 4): emit_grp(n & 1)
        npf = 0
        if cls == "W" and PF:
            a("s_cmp_eq_u32 s49, 0")
            a(f"s_cbranch_scc1 {P}_e0")
            a.lab(f"{P}_e0r")
        if OPT["s2e"] != "1": stamp(a, 2)
        a(f"s_waitcnt vmcnt({(4-first)*NG + npf})")
        a("s_barrier")
        stamp(a, 3)
        d, post = grp(0)
        for t in reads(0, 0) + mix(d, []) + post + wupd: a(t)
        if cls == "W": a(f"s_waitcnt vmcnt({3*NG + npf})")
        a("s_waitcnt lgkmcnt(0)")
        a("s_barrier")
        a(f"s_branch {P}_odd")
        a.raw(".p2align 6")
        a.lab(f"{P}_loop")
        for par in range(2):
            if par == 1: a.lab(f"{P}_odd")
            d, post = grp(par)
            rd = reads(par, par)
            tail = list(post) + wupd
            if par == 1:
                tail += xupd
                sup = ["s_cmp_lt_u32 s35, 28", f"s_cselect_b32 s10, {4<<20:#x}, 0" if cls == "X" else f"s_cselect_b32 s14, {6<<20:#x}, 0"]
                tail += sup; post = list(post) + sup
            X = OPT["k1x"]
            if "d" in X: d = []
            if "r" in X: rd = []
            fill = rd[:8] + mix(d, rd[8:]) + tail
            if "o" not in X:
                late = [t for t in tail if t not in post]
                late = [t for t in late if not t.startswith("v_")] + [t for t in late if t.startswith("v_")]
                seq = sched(mm(1-par), rd, d, list(post), late, late_dma=("l" in X))
            elif "1" in X: seq = place(mm(1-par), fill, 2, 2)
            elif "3" in X: seq = place(mm(1-par), fill, 3, 0)
            elif "f" in X: seq = rd[:4] + place(mm(1-par), fill[4:], 2, 0)
            else: seq = place(mm(1-par), fill, 2, 0)
            if "p" in X: seq = ["s_setprio 1"] + seq[:len(seq)-8] + ["s_setprio 0"] + seq[len(seq)-8:]
            if "P" in X and cls == "W": seq = ["s_setprio 1"] + seq
            for t in seq: a(t)
            if cls == "W" and PF:
                a("s_cmp_ge_u32 s35, s49")
                a(f"s_cbranch_scc1 {P}_e{par+1}")
                a.lab(f"{P}_e{par+1}r")
            if par == 1: a("s_cmp_lt_u32 s35, 32")
            if cls == "W": a(f"s_waitcnt vmcnt({3*NG}) lgkmcnt(0)")
            elif par == 1: a(f"s_waitcnt vmcnt({2*NG}) lgkmcnt(0)")
            else: a("s_waitcnt lgkmcnt(0)")
            if "b" not in X and not ("h" in X and par == 0): a("s_barrier")
        if OPT["trip"] == "1":
            a("s_cselect_b32 s62, 1, 0")
            a("s_cmp_lg_u32 s35, 4")
            a(f"s_cbranch_scc1 {P}_t1")
            stamp(a, 2)
            a.lab(f"{P}_t1")
            a("s_cmp_lg_u32 s62, 0")
        a(f"s_cbranch_scc1 {P}_loop")
        a("s_branch L1_epi")
        if cls == "W" and PF:
            for k in range(3): event(f"{P}_e{k}")
    a.lab("L1_epi")
    for t in mm(1): a(t)
    stamp(a, 4)
    a("s_nop 4")
    n = 0
    jobs = []
    for T in range(2):
        for sg in range(2): jobs.append((1, acc(2*T+sg, 2), acc(2*T+sg, 3), T*2048 + sg*256))
    for T in range(2):
        for sg in range(2): jobs.append((0, acc(2*T+sg, 0), acc(2*T+sg, 1), T*2048 + sg*256))
    for T in range(2):
        for u in range(2):  jobs.append((2, acc(2*T, 4+u), acc(2*T+1, 4+u), T*2048 + u*256))
    for seg, b0, b1, off in jobs:
        t0 = F[0] + 4*(n % 8); n += 1
        if seg == 0:
            for b in (b0, b1):
                for r in range(4): a(f"v_mul_f32 v{b+r}, s43, v{b+r}")
        a(f"v_cvt_pk_bf16_f32 v{t0}, v{b0}, v{b0+1}")
        a(f"v_cvt_pk_bf16_f32 v{t0+1}, v{b0+2}, v{b0+3}")
        a(f"v_cvt_pk_bf16_f32 v{t0+2}, v{b1}, v{b1+1}")
        a(f"v_cvt_pk_bf16_f32 v{t0+3}, v{b1+2}, v{b1+3}")
        a(f"buffer_store_dwordx4 {vr(t0)}, v{VST}, s[16:19], s{40+seg} offen offset:{off}{OPT['st1']}")
    stamp(a, 5)
    dump(a, 0, "s26")
    a.lab("L1_end")
    a("s_endpgm")
    return a.text(), kd(N, NV), f"; @launch kernel={N} grid=(256,1,1) block=(512,1,1) lds=159744"

def kperm(rho):
    return ((rho >> 2) & 1) * 16 + (rho >> 3) * 4 + (rho & 3)

def k2():
    a = A(); N = "attn_kernel"
    head(a, N)
    VL16, VKA, VVA, VIDX, VM, VT, VKL = 1, 2, 3, 4, 5, 6, 7
    ONES = 8; Q = [12, 20]; NEG = [28, 44]; O = [60, 76]; L = [92, 96]; KB = [100, 108]; VB = [116, 124]; S = [132, 148, 164, 180]
    NV = 200
    PF = OPT["pf3"] == "1"
    def sm32(d, av, b): return f"v_smfmac_f32_32x32x32_bf16 {vr(d,16)}, {vr(av)}, {vr(b,8)}, v{VIDX}"
    def sm16(l, b): return f"v_smfmac_f32_16x16x64_bf16 {vr(l)}, {vr(ONES)}, {vr(b,8)}, v{VIDX}"
    def ld(d, soff, off=0, v=VL16): a(f"buffer_load_dwordx4 {vr(d)}, v{v}, s[8:11], {soff} offen offset:{off}")
    def xhalf_max():
        a(f"v_max_f32 v{VM}, v{VM}, v{VT}")
        a("s_nop 0")
        a(f"v_mov_b32 v{VT}, v{VM}")
        a("s_nop 1")
        a(f"v_permlane32_swap_b32 v{VM}, v{VT}")
        a("s_nop 1")
        a(f"v_max_f32 v{VM}, v{VM}, v{VT}")
    def maxof(vals):
        a(f"v_max3_f32 v{VM}, v{vals[0]}, v{vals[1]}, v{vals[2]}")
        a(f"v_max3_f32 v{VT}, v{vals[3]}, v{vals[4]}, v{vals[5]}")
        for i in range(6, len(vals) - 2, 4):
            a(f"v_max3_f32 v{VM}, v{VM}, v{vals[i]}, v{vals[i+1]}")
            a(f"v_max3_f32 v{VT}, v{VT}, v{vals[i+2]}, v{vals[i+3]}")
        a(f"v_max3_f32 v{VM}, v{VM}, v{vals[-2]}, v{vals[-1]}")
        xhalf_max()
    def finish(soff, off, T, o, l):
        a(f"v_rcp_f32 v{VT}, v{l}")
        a("s_nop 0")
        for i in range(16): a(f"v_mul_f32 v{o+i}, v{o+i}, v{VT}")
        for i in range(8): a(f"v_cvt_pk_bf16_f32 v{T+i}, v{o+2*i}, v{o+2*i+1}")
        a(f"buffer_store_dwordx4 {vr(T)}, v{VL16}, s[8:11], {soff} offen{OPT['st2']}")
        a(f"buffer_store_dwordx4 {vr(T+4)}, v{VL16}, s[8:11], {soff} offen offset:1024{OPT['st2']}")
    def consts():
        a(f"v_mov_b32 v{VIDX}, 0xdddddddd")
        a("v_bfe_u32 v5, v0, 2, 1")
        a("v_cmp_eq_u32 vcc, 0, v5")
        a("v_mov_b32 v6, 0x3f803f80")
        a("s_nop 0")
        a(f"v_cndmask_b32 v{ONES}, 0, v6, vcc")
        a(f"v_cndmask_b32 v{ONES+1}, 0, v6, vcc")
        a(f"v_cndmask_b32 v{ONES+2}, v6, 0, vcc")
        a(f"v_cndmask_b32 v{ONES+3}, v6, 0, vcc")
    a("s_cmp_ge_u32 s2, 256")
    a("s_cbranch_scc1 L2_end")
    stamp(a, 0); rstamp(a, 1)
    a("s_load_dwordx2 s[4:5], s[0:1], 64")
    a("s_and_b32 s20, s2, 7")
    a("s_lshr_b32 s21, s2, 3")
    a("s_lshr_b32 s22, s20, 2")
    a("s_mul_i32 s22, s22, 24")
    a("s_add_u32 s22, s22, 16")
    a("s_load_dwordx2 s[6:7], s[0:1], s22")
    a("s_load_dwordx2 s[58:59], s[0:1], 48")
    a("v_lshrrev_b32 v1, 6, v0")
    a("v_and_b32 v0, 63, v0")
    a("v_readfirstlane_b32 s24, v1")
    a("s_lshl_b32 s22, s20, 2")
    a("s_lshr_b32 s23, s21, 3")
    a("s_add_u32 s22, s22, s23")
    a("s_and_b32 s23, s21, 7")
    a(f"v_lshlrev_b32 v{VL16}, 4, v0")
    a("s_and_b32 s28, s24, 3")
    a("s_lshl_b32 s25, s23, 3")
    a("s_lshl_b32 s29, s28, 1")
    a("s_add_u32 s25, s25, s29")
    a("s_lshl_b32 s26, s22, 17")
    a("s_lshl_b32 s27, s25, 11")
    a("s_add_u32 s27, s27, s26")
    a("v_bfe_u32 v5, v0, 2, 1")
    a("v_and_b32 v6, 0x23, v0")
    a("v_lshl_or_b32 v6, v5, 4, v6")
    a("v_bfe_u32 v5, v0, 3, 2")
    a("v_lshl_or_b32 v6, v5, 2, v6")
    a(f"v_lshlrev_b32 v{VKL}, 4, v6")
    a(f"s_add_u32 s33, s26, {KF}")
    a("s_lshl_b32 s37, s25, 16")
    a("s_lshl_b32 s38, s22, 11")
    a("s_add_u32 s37, s37, s38")
    a(f"s_add_u32 s37, s37, {OF}")
    a("s_cmp_ge_u32 s24, 4")
    a("s_cbranch_scc1 L2_help")
    a("s_waitcnt lgkmcnt(0)")
    srd(a, 8, 4, WS_BYTES)
    ld(Q[0], "s27"); ld(KB[0], "s33", 0, VKL); ld(Q[0]+4, "s27", 1024); ld(KB[0]+4, "s33", 1024, VKL)
    ld(Q[1], "s27", 2048); ld(Q[1]+4, "s27", 3072)
    ld(KB[1], "s33", 2048, VKL); ld(KB[1]+4, "s33", 3072, VKL)
    consts()
    a("s_add_u32 s38, s37, 0x10000")
    a(f"v_mov_b32 v{VKA}, v{VKL}")
    a(f"v_add_u32 v{VVA}, 0x10000, v{VL16}")
    for i in range(40): a(f"v_mov_b32 v{O[0]+i}, 0")
    for i in range(16): a(f"v_mov_b32 v{S[3]+i}, 0")
    for i in range(8): a(f"v_mov_b32 v{VB[1]+i}, 0")
    a("s_mov_b32 s39, 0")
    a("s_mov_b32 s40, 0")
    stamp(a, 2)
    a("s_waitcnt vmcnt(4)")
    a(mfma(S[0], KB[0], Q[0], "0")); a(mfma(S[0], KB[0]+4, Q[0]+4))
    a("s_waitcnt vmcnt(2)")
    a(mfma(S[1], KB[0], Q[1], "0")); a(mfma(S[1], KB[0]+4, Q[1]+4))
    stamp(a, 3)
    a("s_nop 8")
    maxof([S[0]+r for r in range(16)])
    for i in range(16): a(f"v_sub_f32 v{NEG[0]+i}, 0, v{VM}")
    for i in range(16): a(f"v_sub_f32 v{S[0]+i}, v{S[0]+i}, v{VM}")
    maxof([S[1]+r for r in range(16)])
    for i in range(16): a(f"v_sub_f32 v{NEG[1]+i}, 0, v{VM}")
    a("s_waitcnt vmcnt(0)")
    a("s_barrier")
    stamp(a, 4)
    if OPT["tlb"] == "1": a(f"buffer_load_dword v196, v{VL16}, s[8:11], s37 offen")
    a("s_branch L2_it3")

    def item(p, qk=True, rd=True, pre=None, post=None):
        n = (p - 3) % 16
        i = n >> 1; qt = n & 1
        Sn, Sc, Sp = S[(n+1) % 4], S[n % 4], S[(n-1) % 4]
        qn = (n+1) & 1; kbu = KB[((n+1) >> 1) % 2]
        qp = (n-1) & 1; vbu = VB[((n-1) >> 1) % 2]
        if qt == 1:
            kt = (i + 2) % 8
            r = [f"ds_read_b128 {vr(KB[i % 2])}, v{VKA} offset:{kt*2048}", f"ds_read_b128 {vr(KB[i % 2]+4)}, v{VKA} offset:{kt*2048+1024}"]
        else:
            r = [f"ds_read_b128 {vr(VB[i % 2])}, v{VVA} offset:{i*2048}", f"ds_read_b128 {vr(VB[i % 2]+4)}, v{VVA} offset:{i*2048+1024}"]
        if not rd or "r" in OPT["k2x"]: r = []
        ex = [f"v_exp_f32 v{Sc+k}, v{Sc+k}" for k in range(16)]
        post = list(post or [])
        seq = []
        if qk: seq.append(mfma(Sn, kbu, Q[qn], NEG[qn]))
        seq += post[0:1] + ex[0:3]
        if qk: seq.append(mfma(Sn, kbu+4, Q[qn]+4))
        seq += ["s_waitcnt lgkmcnt(0)"] + list(pre or []) + ex[3:6]
        seq.append(sm32(O[qp], vbu, Sp))
        seq += r[:1] + ex[6:9]
        seq.append(sm16(L[qp], Sp))
        seq += post[1:3] + ex[9:10]
        seq.append(sm32(O[qp], vbu+4, Sp+8))
        seq += r[1:] + ex[10:13]
        seq.append(sm16(L[qp], Sp+8))
        seq += post[3:] + ex[13:16]
        for t in seq: a(t)

    a.raw(".p2align 6")
    a.lab("L2_loop")
    item(0, pre=["s_barrier", f"v_add_u32 v{VKA}, s40, v{VKL}"])
    item(1); item(2)
    a(f"v_add_u32 v{VVA}, s41, v{VL16}")
    a.lab("L2_it3")
    for p in range(3, 15): item(p)
    item(15, post=["s_add_u32 s40, s40, 16384", "s_and_b32 s40, s40, 0xffff", "s_add_u32 s41, s40, 0x10000", "s_add_u32 s39, s39, 1", "s_cmp_lt_u32 s39, 8"])
    a("s_cbranch_scc1 L2_loop")
    item(0, rd=False)
    item(1)
    item(2, qk=False, rd=False)
    a("s_nop 1")
    Sp = S[3]
    a(sm32(O[1], VB[1], Sp)); a(sm16(L[1], Sp)); a(sm32(O[1], VB[1]+4, Sp+8)); a(sm16(L[1], Sp+8))
    a("s_nop 4")
    stamp(a, 5)
    for qt in range(2):
        a(f"v_mul_f32 v{VM}, 0, v{O[qt]}")
        for i in range(1, 16): a(f"v_fma_f32 v{VM}, v{O[qt]+i}, 0, v{VM}")
        a(f"v_add_f32 v{VM}, v{VM}, v{L[qt]}")
        a(f"v_mov_b32 v{VT}, {f2u(2.0**64):#x}")
        a(f"v_cmp_nlt_f32 vcc, v{VM}, v{VT}")
        a("s_nop 4")
        a(f"s_cbranch_vccnz L2_slow{qt}")
        a.lab(f"L2_fin{qt}")
        finish("s37" if qt == 0 else "s38", 0, S[1+qt], O[qt], L[qt])
    dump(a, 1, "s24")
    a.lab("L2_end")
    a("s_endpgm")

    a.lab("L2_help")
    MC, MP, MP0, SC, SP, OB, LB = 12, 28, 44, 60, 76, [92, 112], [108, 128]
    QB = [132, 140]; KX = [148, 156, 164]; VX = [172, 180, 188]; VPF = 2
    a("s_lshl_b32 s34, s28, 12")
    a("s_add_u32 s35, s33, s34")
    a(f"s_add_u32 s36, s35, {VF-KF}")
    a("s_waitcnt lgkmcnt(0)")
    srd(a, 8, 4, WS_BYTES)
    srd(a, 16, 6, 2 << 20)
    def dma_stage(st):
        for base, so in ((0, "s35"), (65536, "s36")):
            a(f"s_add_u32 m0, s34, {base + (st % 4)*16384}")
            a("s_nop 0")
            for j in range(4):
                a(f"buffer_load_dwordx4 v{VL16}, s[8:11], {so} offen offset:{j*1024} lds")
            a(f"s_add_u32 {so}, {so}, 16384")
    dma_stage(0)
    consts()
    a(f"s_add_u32 s28, s27, {4<<20}")
    a(f"s_add_u32 s29, s28, {KF}")
    a(f"s_add_u32 s30, s28, {VF}")
    a("s_cmp_eq_u32 s25, 0")
    a("s_cselect_b32 s32, 0, 2048")
    a("s_cselect_b64 s[44:45], 0, -1")
    a("s_sub_u32 s31, s29, s32")
    a("s_sub_u32 s32, s30, s32")
    a(f"s_add_u32 s37, s37, {4<<20}")
    a("s_add_u32 s38, s37, 0x10000")
    if PF:
        a(f"v_lshlrev_b32 v{VPF}, 7, v0")
        a("v_cmp_gt_u32 vcc, 32, v0")
        a("v_mov_b32 v5, 0x7fffff00")
        a("s_lshl_b32 s47, s21, 16")
        a(f"v_cndmask_b32 v{VPF}, v5, v{VPF}, vcc")
        a("s_lshl_b32 s46, s34, 2")
        a("s_add_u32 s47, s47, s46")
    def pf():
        if PF:
            a(f"buffer_load_dword v{VPF+1}, v{VPF}, s[16:19], s47 offen")
            a("s_add_u32 s47, s47, 4096")
    for i in range(40): a(f"v_mov_b32 v{OB[0]+i}, 0")
    a(f"v_mov_b32 v{VT}, {NEGBIG:#x}")
    def lanemask(r, prev):
        m = 0
        for l in range(64):
            q = l & 31; hh = l >> 5
            key = kperm(8*(r//4) + 4*hh + r % 4)
            d = q - key + (32 if prev else 0)
            if 0 <= d <= 14 and d % 2 == 0: m |= 1 << l
        return m
    def masks(prev):
        k = 0
        for r in range(16):
            m = lanemask(r, prev)
            sp = 48 + 2*(k % 4); k += 1
            a(f"s_mov_b32 s{sp}, {m & 0xffffffff:#x}")
            a(f"s_mov_b32 s{sp+1}, {m >> 32:#x}")
            a(f"v_cndmask_b32 v{(MP if prev else MC)+r}, v{VT}, 0, s[{sp}:{sp+1}]")
            if prev: a(f"v_cndmask_b32 v{MP0+r}, v{VT}, v{MP+r}, s[44:45]")
    masks(0)
    stamp(a, 2); stamp(a, 3)
    a("s_waitcnt vmcnt(0)")
    a("s_barrier")
    stamp(a, 4)
    dma_stage(1)
    dma_stage(2)
    masks(1)
    if OPT["hprio"] != "0": a(f"s_setprio {OPT['hprio']}")
    def bcomp(t):
        keep = a.l; a.l = []
        kc, kp, vc, vp = KX[t+1], KX[t], VX[t+1], VX[t]
        ob, lb = OB[t], LB[t]
        a(mfma(SC, kc, QB[t], MC)); a(mfma(SP, kp, QB[t], MP0 if t == 0 else MP))
        a(mfma(SC, kc+4, QB[t]+4)); a(mfma(SP, kp+4, QB[t]+4))
        a("s_nop 10")
        vals = [SC+r for r in range(16)] + [SP+r for r in range(16)]
        maxof(vals)
        for v in vals: a(f"v_sub_f32 v{v}, v{v}, v{VM}")
        for v in vals: a(f"v_exp_f32 v{v}, v{v}")
        a("s_nop 1")
        a(sm32(ob, vc, SC)); a(sm16(lb, SC)); a(sm32(ob, vc+4, SC+8)); a(sm16(lb, SC+8))
        a(sm32(ob, vp, SP)); a(sm16(lb, SP)); a(sm16(lb, SP+8)); a(sm32(ob, vp+4, SP+8))
        a("s_nop 12")
        finish("s37" if t == 0 else "s38", 0, QB[t], ob, lb)
        out = a.l; a.l = keep
        return out
    work = [] if "B" in OPT["k2x"] else bcomp(0) + bcomp(1)
    def cost(t): return 2 if "v_exp" in t else (3 if "mfma" in t else 1)
    tot = sum(cost(t) for t in work)
    slots = [int(c) for c in OPT["bslots"]]
    chunks = {b: [] for b in range(8)}
    acc_ = 0
    for t in work:
        chunks[slots[min(len(slots) - 1, acc_ * len(slots) // tot)]].append(t)
        acc_ += cost(t)
    issued = ["s1"]*8 + ["s2"]*8
    for b in range(1, 8):
        need = f"s{b}"
        last = max(i for i, x in enumerate(issued) if x == need or (b == slots[0] and x == "B"))
        a(f"s_waitcnt vmcnt({len(issued) - 1 - last})")
        a("s_barrier")
        if b <= 5:
            dma_stage(b + 2); issued += [f"s{b+2}"]*8
        if b == 1:
            for t in range(2): ld(QB[t], "s28", t*2048); ld(QB[t]+4, "s28", t*2048+1024)
            ld(KX[0], "s31", 0, VKL); ld(KX[0]+4, "s31", 1024, VKL)
            for t in range(2): ld(KX[t+1], "s29", t*2048, VKL); ld(KX[t+1]+4, "s29", t*2048+1024, VKL)
            ld(VX[0], "s32"); ld(VX[0]+4, "s32", 1024)
            for t in range(2): ld(VX[t+1], "s30", t*2048); ld(VX[t+1]+4, "s30", t*2048+1024)
            issued += ["B"]*16
        if 2 <= b <= 5 and PF:
            pf(); issued += ["p"]
        if b == 6 and OPT["cpf"] == "1":
            codepf(a, NAME + "_kernel", "L3_end", 197); issued += ["p"]
        if b == 6 and OPT["tlb"] == "1":
            srd(a, 16, 58, 8 << 20)
            a(f"v_lshlrev_b32 v198, 21, v0")
            a(f"buffer_load_dword v198, v198, s[16:19], 0 offen"); issued += ["p"]
        for t in chunks[b]:
            a.l.append(t)
            if "buffer_store" in t: issued += ["st"]
    stamp(a, 5)
    dump(a, 1, "s24")
    a("s_endpgm")

    s0 = S[0]
    for qt in range(2):
        a.lab(f"L2_slow{qt}")
        a(f"s_add_u32 s36, s26, {VF}")
        a(f"v_mov_b32 v{VM}, 0xff800000")
        a("s_mov_b32 s39, 0")
        a.lab(f"L2_s1{qt}")
        a("s_add_u32 s41, s33, s39")
        ld(KB[0], "s41", 0, VKL); ld(KB[0]+4, "s41", 1024, VKL)
        a("s_waitcnt vmcnt(0)")
        a(mfma(s0, KB[0], Q[qt], "0")); a(mfma(s0, KB[0]+4, Q[qt]+4))
        a("s_nop 15")
        for i in range(0, 16, 2): a(f"v_max3_f32 v{VM}, v{VM}, v{s0+i}, v{s0+i+1}")
        a("s_add_u32 s39, s39, 2048")
        a(f"s_cmp_lt_u32 s39, {64*2048}")
        a(f"s_cbranch_scc1 L2_s1{qt}")
        a(f"v_mov_b32 v{VT}, v{VM}")
        xhalf_max()
        for i in range(16): a(f"v_sub_f32 v{NEG[qt]+i}, 0, v{VM}")
        for i in range(16): a(f"v_mov_b32 v{O[qt]+i}, 0")
        for i in range(4): a(f"v_mov_b32 v{L[qt]+i}, 0")
        a("s_mov_b32 s39, 0")
        a.lab(f"L2_s2{qt}")
        a("s_add_u32 s41, s33, s39")
        ld(KB[0], "s41", 0, VKL); ld(KB[0]+4, "s41", 1024, VKL)
        a("s_add_u32 s41, s36, s39")
        ld(VB[0], "s41"); ld(VB[0]+4, "s41", 1024)
        a("s_waitcnt vmcnt(0)")
        a(mfma(s0, KB[0], Q[qt], NEG[qt])); a(mfma(s0, KB[0]+4, Q[qt]+4))
        a("s_nop 15")
        for i in range(16): a(f"v_exp_f32 v{s0+i}, v{s0+i}")
        a("s_nop 1")
        a(sm32(O[qt], VB[0], s0)); a(sm16(L[qt], s0)); a(sm32(O[qt], VB[0]+4, s0+8)); a(sm16(L[qt], s0+8))
        a("s_nop 7")
        a("s_add_u32 s39, s39, 2048")
        a(f"s_cmp_lt_u32 s39, {64*2048}")
        a(f"s_cbranch_scc1 L2_s2{qt}")
        a("s_nop 15")
        a(f"s_branch L2_fin{qt}")
    return a.text(), kd(N, NV), f"; @launch kernel={N} grid=(256,1,1) block=(512,1,1) lds=131072"

def k3():
    a = A(); N = NAME + "_kernel"
    head(a, N)
    VL16, VWD0, VWD1, VOB, VOA, VWB, VWA, VST = 1, 8, 9, 10, 11, 12, 16, 20
    F = [24, 56]; ACC = 88; NV = 152
    def Of(f, mt): return F[f] + 4*mt
    def Wf(f, nb): return F[f] + 16 + 4*nb
    def acc(mt, nb): return ACC + (mt*4 + nb)*4
    SLOT = 32768
    a("s_cmp_ge_u32 s2, 256")
    a("s_cbranch_scc1 L3_end")
    stamp(a, 0); rstamp(a, 1)
    a("s_and_b32 s20, s2, 7")
    a("s_lshr_b32 s21, s2, 3")
    a("s_lshr_b32 s22, s20, 2")
    a("s_mul_i32 s23, s22, 24")
    a("s_add_u32 s23, s23, 16")
    a("s_load_dwordx2 s[4:5], s[0:1], s23")
    a("s_load_dwordx2 s[6:7], s[0:1], 64")
    a("s_load_dwordx2 s[36:37], s[0:1], 48")
    a("s_and_b32 s24, s20, 3")
    a("s_lshl_b32 s24, s24, 2")
    a("s_and_b32 s25, s21, 3")
    a("s_add_u32 s24, s24, s25")
    a("s_lshr_b32 s25, s21, 2")
    a("v_lshrrev_b32 v1, 6, v0")
    a("v_and_b32 v0, 63, v0")
    a("v_readfirstlane_b32 s26, v1")
    a(f"v_lshlrev_b32 v{VL16}, 4, v0")
    a("s_nop 2")
    a("s_cmp_lt_u32 s26, 4")
    a("s_cbranch_scc1 L3_compute")
    a("s_sub_u32 s26, s26, 4")
    a("v_lshrrev_b32 v2, 4, v0")
    a("v_and_b32 v3, 15, v0")
    a("v_lshlrev_b32 v4, 1, v2")
    a("v_xor_b32 v3, v3, v4")
    a("v_lshlrev_b32 v3, 4, v3")
    a(f"v_lshl_add_u32 v{VWD0}, v2, 11, v3")
    a(f"v_xor_b32 v{VWD1}, 128, v{VWD0}")
    a(f"v_add_u32 v{VWD1}, 8192, v{VWD1}")
    a("s_lshl_b32 s27, s22, 22")
    a("s_lshl_b32 s28, s24, 2")
    a("s_add_u32 s28, s28, s26")
    a("s_lshl_b32 s28, s28, 16")
    a("s_add_u32 s27, s27, s28")
    a(f"s_add_u32 s27, s27, {OF}")
    a("s_lshl_b32 s28, s26, 15")
    a("s_lshl_b32 s29, s25, 8")
    a("s_add_u32 s28, s28, s29")
    a("s_add_u32 s30, s28, 16384")
    a("s_lshl_b32 s29, s26, 12")
    a("s_waitcnt lgkmcnt(0)")
    srd(a, 8, 6, WS_BYTES)
    srd(a, 12, 4, 2 << 20)
    def dma(slot):
        a(f"s_add_u32 m0, s29, {slot + 16384}")
        a("s_nop 0")
        a(f"buffer_load_dwordx4 v{VWD0}, s[12:15], s28 offen lds")
        a("s_add_u32 m0, m0, 1024")
        a("s_nop 0")
        a(f"buffer_load_dwordx4 v{VWD1}, s[12:15], s28 offen lds")
        a("s_add_u32 m0, m0, 1024")
        a(f"s_add_u32 s28, s28, {64*2048}")
        a(f"buffer_load_dwordx4 v{VWD0}, s[12:15], s30 offen lds")
        a("s_add_u32 m0, m0, 1024")
        a("s_nop 0")
        a(f"buffer_load_dwordx4 v{VWD1}, s[12:15], s30 offen lds")
        a(f"s_add_u32 m0, s29, {slot}")
        a(f"s_add_u32 s30, s30, {64*2048}")
        for j in range(4):
            a(f"buffer_load_dwordx4 v{VL16}, s[8:11], s27 offen offset:{j*1024} lds")
        a("s_add_u32 s27, s27, 4096")
    for st in range(4): dma(st*SLOT)
    stamp(a, 2)
    a("s_waitcnt vmcnt(24)")
    a("s_barrier")
    stamp(a, 3)
    a("s_mov_b32 s35, 0")
    a.lab("L3_ld")
    for t in range(4):
        a("s_waitcnt vmcnt(16)")
        a("s_barrier")
        dma(t*SLOT)
    a("s_add_u32 s35, s35, 1")
    a("s_cmp_lt_u32 s35, 3")
    a("s_cbranch_scc1 L3_ld")
    for n in (16, 8, 0):
        a(f"s_waitcnt vmcnt({n})")
        a("s_barrier")
    stamp(a, 4); stamp(a, 5)
    a("s_add_u32 s26, s26, 4")
    dump(a, 2, "s26")
    a("s_endpgm")
    a.lab("L3_compute")
    a("s_and_b32 s31, s26, 1")
    a("s_lshr_b32 s32, s26, 1")
    a("v_and_b32 v2, 15, v0")
    a("v_lshrrev_b32 v3, 4, v0")
    a("s_lshl_b32 s33, s31, 13")
    a("v_lshlrev_b32 v4, 4, v2")
    a("v_lshl_add_u32 v4, v3, 9, v4")
    a(f"v_add_u32 v{VOB}, s33, v4")
    a(f"v_mov_b32 v{VOA}, v{VOB}")
    a("v_bfe_u32 v4, v0, 2, 3")
    a("v_lshrrev_b32 v5, 5, v0")
    a("v_lshl_add_u32 v5, v5, 4, v4")
    a("v_lshlrev_b32 v5, 8, v5")
    a("v_and_b32 v6, 3, v0")
    a("v_lshl_add_u32 v5, v6, 3, v5")
    a("v_add_u32 v5, 16384, v5")
    a("s_lshl_b32 s33, s32, 2")
    a("v_xor_b32 v4, s33, v4")
    a(f"v_lshl_add_u32 v{VWB}, v4, 5, v5")
    for nb in range(1, 4): a(f"v_xor_b32 v{VWB+nb}, {nb*32}, v{VWB}")
    for nb in range(4): a(f"v_mov_b32 v{VWA+nb}, v{VWB+nb}")
    for i in range(64): a(f"v_mov_b32 v{ACC+i}, 0")
    a("s_mov_b32 s33, 0")
    a("s_mov_b32 s35, 0")
    a("s_waitcnt lgkmcnt(0)")
    srd(a, 16, 36, 8 << 20)
    a("s_lshl_b32 s40, s24, 19")
    a("s_lshl_b32 s41, s31, 18")
    a("s_add_u32 s40, s40, s41")
    a("s_lshl_b32 s41, s22, 11")
    a("s_add_u32 s40, s40, s41")
    a("s_lshl_b32 s41, s25, 8")
    a("s_add_u32 s40, s40, s41")
    a("s_lshl_b32 s41, s32, 7")
    a("s_add_u32 s40, s40, s41")
    def rdO(f, ks, mt): return [f"ds_read_b128 {vr(Of(f,mt))}, v{VOA} offset:{(mt>>1)*4096 + ks*2048 + (mt&1)*256}"]
    def rdW(f, ks, nb): return [f"ds_read_b64_tr_b16 {vr(Wf(f,nb),2)}, v{VWA+nb} offset:{ks*8192}",
                                f"ds_read_b64_tr_b16 {vr(Wf(f,nb)+2,2)}, v{VWA+nb} offset:{ks*8192+2048}"]
    def reads(f, ks):
        return [rdO(f, ks, 0)] + [rdW(f, ks, nb) for nb in range(4)] + [rdO(f, ks, mt) for mt in (1, 2, 3)]
    def mm(f):
        return [mfma16(acc(mt, nb), Wf(f, nb), Of(f, mt)) for mt in range(4) for nb in range(4)]
    stamp(a, 2)
    a("s_barrier")
    stamp(a, 3)
    for grp in reads(0, 0):
        for t in grp: a(t)
    a("s_branch L3_mid")
    a.raw(".p2align 6")
    a.lab("L3_loop")
    flat = lambda g: [[t] for x in g for t in x]
    for t in spread(mm(1), flat(reads(0, 0)), 0, 1): a(t)
    a.lab("L3_mid")
    a("s_waitcnt lgkmcnt(0)")
    fl = flat(reads(1, 1))
    fl[0] += [f"s_add_u32 s33, s33, {SLOT}", f"s_and_b32 s33, s33, {4*SLOT-1:#x}"]
    fl[1] += ["s_add_u32 s35, s35, 1", "s_cmp_lt_u32 s35, 16"]
    fl[9] += [f"v_add_u32 v{VWA}, s33, v{VWB}"]
    fl[10] += [f"v_add_u32 v{VWA+1}, s33, v{VWB+1}"]
    fl[11] += [f"v_add_u32 v{VWA+2}, s33, v{VWB+2}"]
    fl += [[f"v_add_u32 v{VWA+3}, s33, v{VWB+3}", f"v_add_u32 v{VOA}, s33, v{VOB}"], [], [], ["s_waitcnt lgkmcnt(0)", "s_barrier"]]
    for t in spread(mm(0), fl, 0, 1): a(t)
    a("s_cbranch_scc1 L3_loop")
    for t in mm(1): a(t)
    stamp(a, 4)
    a("s_mul_i32 s41, s26, 9216")
    a("v_mul_u32_u24 v4, 144, v2")
    a("v_lshl_add_u32 v4, v3, 3, v4")
    a("v_add_u32 v4, s41, v4")
    a("v_lshrrev_b32 v5, 3, v0")
    a("v_mul_u32_u24 v6, 144, v5")
    a("v_and_b32 v7, 7, v0")
    a("v_lshl_add_u32 v6, v7, 4, v6")
    a("v_add_u32 v6, s41, v6")
    a("v_lshlrev_b32 v5, 12, v5")
    a(f"v_lshl_add_u32 v{VST}, v7, 4, v5")
    for mt in range(4):
        for nb in range(4):
            b = acc(mt, nb); t0 = F[0] + 2*(mt*4 + nb)
            a(f"v_cvt_pk_bf16_f32 v{t0}, v{b}, v{b+1}")
            a(f"v_cvt_pk_bf16_f32 v{t0+1}, v{b+2}, v{b+3}")
            a(f"ds_write_b64 v4, {vr(t0,2)} offset:{mt*16*144 + nb*32}")
        a(f"ds_read_b128 {vr(F[1]+8*mt)}, v6 offset:{mt*16*144}")
        a(f"ds_read_b128 {vr(F[1]+8*mt+4)}, v6 offset:{mt*16*144 + 8*144}")
        if mt >= 1:
            a("s_waitcnt lgkmcnt(6)")
            for h in range(2):
                a(f"buffer_store_dwordx4 {vr(F[1]+8*(mt-1)+4*h)}, v{VST}, s[16:19], s40 offen{OPT['st3']}")
                a(f"s_add_u32 s40, s40, {8*4096}")
    a("s_waitcnt lgkmcnt(0)")
    for h in range(2):
        a(f"buffer_store_dwordx4 {vr(F[1]+24+4*h)}, v{VST}, s[16:19], s40 offen{OPT['st3']}")
        a(f"s_add_u32 s40, s40, {8*4096}")
    stamp(a, 5)
    dump(a, 2, "s26")
    a.lab("L3_end")
    a("s_endpgm")
    return a.text(), kd(N, NV), f"; @launch kernel={N} grid=(256,1,1) block=(512,1,1) lds=131072"

def main():
    ks = [k1(), k2(), k3()]
    hdr = open("cdna_kernels/" + NAME + ".s.ref").read().split("\n")
    top = [l for l in hdr if l.startswith(";") and "@launch" not in l and "Override" not in l and "grid=ceil" not in l]
    out = "\n".join(top) + "\n" + "\n".join(k[2] for k in ks) + "\n"
    out += '.amdgcn_target "amdgcn-amd-amdhsa--gfx950"\n.text\n'
    for k in ks: out += k[0]
    out += '.section .rodata,"a"\n'
    for k in ks: out += k[1]
    open(sys.argv[1], "w").write(out)

main()
```

```python
import struct, math, sys

NAME = "concat_heads__mha_block__sliding_local_dilated__prompt"
OPT = dict(st1=" sc1", st2=" sc1", st3=" sc1", dbg="0", pf1="1", pf3="1", ord1="0", dlt="4", nx="0", ph="2", s2e="0", prio="1", k2x="", cpf="1", hprio="0", trip="0", k1x="", tlb="1", dk="0", spin="", bslots="23456")
for a in sys.argv[2:]:
    k, v = a.split("=", 1)
    OPT[k] = v

def f2u(x): return struct.unpack("<I", struct.pack("<f", x))[0]
QSCALE = f2u(math.log2(math.e) / math.sqrt(32.0))
NEGBIG = f2u(-1e30)

QF, KF, VF, OF = 0, 8 << 20, 16 << 20, 24 << 20
WS_BYTES = 32 << 20

class A:
    def __init__(s): s.l = []
    def __call__(s, t): s.l.append("    " + t)
    def lab(s, t): s.l.append(t + ":")
    def raw(s, t): s.l.append(t)
    def text(s): return "\n".join(s.l) + "\n"

def vr(b, n=4): return f"v[{b}:{b+n-1}]"
def mfma(d, a, b, c=None):
    cc = vr(d, 16) if c is None else (c if isinstance(c, str) else vr(c, 16))
    return f"v_mfma_f32_32x32x16_bf16 {vr(d,16)}, {vr(a)}, {vr(b)}, {cc}"

def mfma16(d, a, b):
    return f"v_mfma_f32_16x16x32_bf16 {vr(d)}, {vr(a)}, {vr(b)}, {vr(d)}"

def spread(main, fill, start=0, every=1, per=1):
    out = []; k = 0
    for i, m in enumerate(main):
        out.append(m)
        if i >= start and (i - start) % every == 0:
            for _ in range(per):
                if k < len(fill):
                    out += fill[k]; k += 1
    while k < len(fill):
        out += fill[k]; k += 1
    return out

def interleave(main, fill, pattern):
    out = []; k = 0
    for i, m in enumerate(main):
        for _ in range(pattern[i] if i < len(pattern) else 0):
            if k < len(fill):
                out += fill[k]; k += 1
        out.append(m)
    while k < len(fill):
        out += fill[k]; k += 1
    return out

def kd(name, vgpr, sgpr=96):
    acc = (vgpr + 3) // 4 * 4
    return f""".p2align 6
.amdhsa_kernel {name}
  .amdhsa_next_free_vgpr {vgpr}
  .amdhsa_next_free_sgpr {sgpr}
  .amdhsa_accum_offset {acc}
  .amdhsa_group_segment_fixed_size 0
  .amdhsa_kernarg_size 72
  .amdhsa_user_sgpr_count 2
  .amdhsa_user_sgpr_kernarg_segment_ptr 1
  .amdhsa_system_sgpr_workgroup_id_x 1
.end_amdhsa_kernel
"""

_cp = [0]
DBG = OPT["dbg"] in ("1", "2", "3")
def stamp(a, n):
    if DBG:
        a(f"s_memtime s[{64+2*n}:{65+2*n}]")
def rstamp(a, n):
    if DBG:
        a(f"s_memrealtime s[{64+2*n}:{65+2*n}]")
def dump(a, kidx, wave_sgpr, nst=8):
    if not DBG: return
    if OPT["dbg"] == "2":
        if kidx != int(OPT["dk"]): return
        _cp[0] += 1
        sk = f"Ldbg{_cp[0]}"
        a("s_load_dwordx2 s[88:89], s[0:1], 56")
        a("s_waitcnt lgkmcnt(0) vmcnt(0)")
        a(f"s_memtime s[{64+2*(nst-2)}:{65+2*(nst-2)}]")
        a(f"s_memrealtime s[{64+2*(nst-1)}:{65+2*(nst-1)}]")
        a("s_waitcnt lgkmcnt(0)")
        a(f"s_sub_u32 s88, s88, {512*kidx}")
        a("s_subb_u32 s89, s89, 0")
        a("s_mov_b32 s90, 64")
        a("s_mov_b32 s91, 0x00020000")
        a("s_lshl_b32 s92, s2, 3")
        a(f"s_add_u32 s92, s92, {wave_sgpr}")
        a("s_cmp_eq_u32 s92, 805")
        a("s_cselect_b32 s93, 32, 0x1000")
        a("s_cmp_eq_u32 s92, 0")
        a("s_cselect_b32 s92, 0, s93")
        a("v_mov_b32 v2, 0")
        for n in range(2, nst):
            base = 64 if n < nst-1 else 66
            a(f"s_sub_u32 s93, s{64+2*n}, s{base}")
            a("v_mov_b32 v3, s93")
            a(f"buffer_store_dword v3, v2, s[88:91], s92 offen offset:{4*(n-2)}")
            a("s_nop 1")
        return
    a("s_load_dwordx2 s[88:89], s[0:1], 64")
    a("s_waitcnt lgkmcnt(0) vmcnt(0)")
    a(f"s_memtime s[{64+2*(nst-2)}:{65+2*(nst-2)}]")
    a(f"s_memrealtime s[{64+2*(nst-1)}:{65+2*(nst-1)}]")
    a("s_waitcnt lgkmcnt(0)")
    a("s_mov_b32 s90, 0x8000000")
    a("s_mov_b32 s91, 0x00020000")
    a("s_lshl_b32 s92, s2, 3")
    a(f"s_add_u32 s92, s92, {wave_sgpr}")
    a("s_lshl_b32 s92, s92, 6")
    a(f"s_add_u32 s92, s92, {(64+kidx) << 20}")
    a("v_mov_b32 v2, 0")
    for n in range(nst):
        a(f"v_mov_b32 v3, s{64+2*n}")
        a(f"buffer_store_dword v3, v2, s[88:91], s92 offen offset:{4*n}")
        a("s_nop 1")
    if OPT["dbg"] == "3" and kidx == 2:
        _cp[0] += 1
        sk = f"Ldbg{_cp[0]}"
        a("s_lshl_b32 s92, s2, 3")
        a(f"s_add_u32 s92, s92, {wave_sgpr}")
        a(f"s_cmp_lg_u32 s92, {OPT['dk']}")
        a(f"s_cbranch_scc1 {sk}")
        a(f"s_add_u32 s88, s88, {(64 << 20) + int(OPT['dk'])*64}")
        a("s_addc_u32 s89, s89, 0")
        a("s_load_dwordx8 s[40:47], s[88:89], 0")
        a("s_add_u32 s88, s88, 0x100000")
        a("s_addc_u32 s89, s89, 0")
        a("s_load_dwordx8 s[48:55], s[88:89], 0")
        a("s_load_dwordx2 s[88:89], s[0:1], 56")
        a("s_waitcnt lgkmcnt(0)")
        a("s_mov_b32 s90, 64")
        k = 0
        for b, st in ((40, 1), (48, 1), (64, 2)):
            for n, ref in ((3, b), (4, b), (6, b), (1, 41), (7, 41)):
                a(f"s_sub_u32 s93, s{b+st*n}, s{ref}")
                a("v_mov_b32 v3, s93")
                a(f"buffer_store_dword v3, v2, s[88:91], 0 offen offset:{4*k}")
                a("s_nop 1")
                k += 1
        if OPT["spin"] != "":
            q, mult, unit = OPT["spin"].split(",")
            x, y = q.split("-")
            a(f"s_sub_u32 s93, s{x}, s{y}")
            a(f"s_mul_i32 s93, s93, {mult}")
            ins = "s_memrealtime" if unit == "r" else "s_memtime"
            a(f"{ins} s[60:61]")
            a("s_waitcnt lgkmcnt(0)")
            a.lab(sk + "s")
            a(f"{ins} s[62:63]")
            a("s_waitcnt lgkmcnt(0)")
            a("s_sub_u32 s62, s62, s60")
            a("s_cmp_lt_u32 s62, s93")
            a(f"s_cbranch_scc1 {sk}s")
        a.lab(sk)

def codepf(a, start, end, vtmp, lane="v0"):
    if OPT["cpf"] != "1": return
    _cp[0] += 1
    l = f"Lcp{_cp[0]}"
    a("s_getpc_b64 s[56:57]")
    a.lab(l)
    a(f"s_add_u32 s56, s56, {start}-{l}")
    a(f"s_addc_u32 s57, s57, ({start}-{l})>>32")
    a(f"v_lshlrev_b32 v{vtmp}, 7, {lane}")
    a(f"v_min_u32 v{vtmp}, {end}-{start}-4, v{vtmp}")
    a(f"global_load_dword v{vtmp}, v{vtmp}, s[56:57]")

def head(a, name):
    a.raw(f".globl {name}\n.p2align 8\n.type {name},@function\n{name}:")

def srd(a, d, base, nbytes):
    a(f"s_mov_b32 s{d}, s{base}")
    a(f"s_mov_b32 s{d+1}, s{base+1}")
    a(f"s_mov_b32 s{d+2}, {nbytes:#x}")
    a(f"s_mov_b32 s{d+3}, 0x00020000")

def place(main, fill, per=2, start=0):
    out = []; k = 0
    for i, m in enumerate(main):
        out.append(m)
        if i >= start:
            out += fill[k:k+per]; k += per
    out += fill[k:]
    return out

def sched(M, rd, d, post, late, late_dma=False):
    n = len(M)
    gaps = [[] for _ in range(n)]
    if late_dma: rg = list(range(len(rd))); dg = [len(rd) + 2*k for k in range(len(d))]
    else:
        dg = [1 + 4*k for k in range(len(d))]; rg = [g for g in range(n) if g not in dg][:len(rd)]
    for g, t in zip(rg, rd): gaps[g].append(t)
    for g, (m_, l_) in zip(dg, d):
        gaps[g-1].append(m_); gaps[g].append(l_)
    def runs(ops):
        out = []
        for t in ops:
            if t.startswith("s_cselect") : out[-1].append(t)
            else: out.append([t])
        return out
    def put(run, g0):
        g = g0
        while g < n - 1 and len(gaps[g]) + len(run) > 3: g += 1
        gaps[g] += run
        return g
    g = (dg[len(d)-1] if d else 0)
    for r in runs(post): g = put(r, g)
    g = 0
    for r in runs(late):
        if r[0].startswith("v_"): g = max(g, rg[-1] if rg else 0)
        g = put(r, g)
    seq = []
    for i, m_ in enumerate(M):
        seq.append(m_); seq += gaps[i]
    return seq

def k1():
    a = A(); N = "qkv_kernel"
    head(a, N)
    XS, WS, WSL = 32768, 98304, 12288
    VD, VXB, VXA, VWB, VWA, VST, VPX, VPW, VPD = 10, 18, 20, 22, 24, 26, 27, 28, 29
    F = [32, 72]; ACC = 112; NV = 208
    PF = OPT["pf1"] == "1"
    DLT = int(OPT["dlt"])
    def A_(f, mt): return F[f] + 4*mt
    def B_(f, nb): return F[f] + 16 + 4*nb
    def acc(mt, nb): return ACC + (mt*6 + nb)*4
    a("s_cmp_ge_u32 s2, 256")
    a("s_cbranch_scc1 L1_end")
    stamp(a, 0); rstamp(a, 1)
    a("s_and_b32 s20, s2, 7")
    a("s_lshr_b32 s21, s2, 3")
    a("s_lshr_b32 s22, s20, 2")
    a("s_mul_i32 s23, s22, 24")
    a("s_load_dwordx4 s[4:7], s[0:1], s23")
    a("s_load_dwordx2 s[36:37], s[0:1], 64")
    a("v_lshrrev_b32 v1, 6, v0")
    a("v_and_b32 v0, 63, v0")
    a("v_readfirstlane_b32 s26, v1")
    a("s_and_b32 s24, s20, 1")
    a("s_lshl_b32 s24, s24, 2")
    a("s_and_b32 s25, s21, 3")
    a("s_add_u32 s24, s24, s25")
    a("s_bfe_u32 s25, s20, 0x10001")
    a("s_lshl_b32 s25, s25, 3")
    a("s_lshr_b32 s27, s21, 2")
    if OPT["nx"] != "0": a(f"s_xor_b32 s27, s27, {OPT['nx']}")
    a("s_add_u32 s25, s25, s27")
    a("s_and_b32 s31, s26, 3")
    a("s_lshr_b32 s32, s26, 2")
    PH = OPT["ph"]
    if PH == "0": a("s_mov_b32 s44, 0")
    elif PH == "1":
        a("s_lshl_b32 s44, s20, 1")
    elif PH == "2":
        a("s_lshl_b32 s44, s20, 1")
        a("s_and_b32 s45, s21, 1")
        a("s_add_u32 s44, s44, s45")
    elif PH == "3":
        a("s_lshl_b32 s44, s22, 1")
        a("s_and_b32 s45, s20, 1")
        a("s_add_u32 s44, s44, s45")
        a("s_lshl_b32 s44, s44, 2")
        a("s_and_b32 s45, s21, 3")
        a("s_add_u32 s44, s44, s45")
    elif PH == "4":
        a("s_lshl_b32 s44, s22, 1")
        a("s_and_b32 s45, s20, 1")
        a("s_add_u32 s44, s44, s45")
        a("s_lshl_b32 s44, s44, 2")
    a("v_lshrrev_b32 v2, 3, v0")
    a("v_and_b32 v3, 7, v0")
    a("v_lshrrev_b32 v4, 4, v0")

    def rdA(f, ks, mt): return [f"ds_read_b128 {vr(A_(f,mt))}, v{VXA+ks} offset:{mt*2048}"]
    def rdB(f, nb):
        o = (nb//2)*4096
        return [f"ds_read_b64_tr_b16 {vr(B_(f,nb),2)}, v{VWA+nb%2} offset:{o}",
                f"ds_read_b64_tr_b16 {vr(B_(f,nb)+2,2)}, v{VWA+nb%2} offset:{o+512}"]
    def reads(f, ks):
        r = rdB(f, 0)
        for mt in range(4): r += rdA(f, ks, mt)
        for nb in range(1, 6): r += rdB(f, nb)
        return r
    def mm(f):
        r = []
        for nb in range(6):
            for mt in range(4):
                if nb < 4: r.append(mfma16(acc(mt, nb), B_(f, nb), A_(f, mt)))
                else:      r.append(mfma16(acc(mt, nb), A_(f, mt), B_(f, nb)))
        return r

    def common_setup():
        srd(a, 16, 36, WS_BYTES)
        a("v_and_b32 v2, 15, v0")
        a("v_lshrrev_b32 v3, 4, v0")
        a("v_bfe_u32 v4, v0, 1, 3")
        a("s_lshl_b32 s33, s31, 13")
        a("v_lshlrev_b32 v5, 7, v2")
        a("v_add_u32 v5, s33, v5")
        a("v_xor_b32 v6, v3, v4")
        a(f"v_lshl_add_u32 v{VXB}, v6, 4, v5")
        a(f"v_xor_b32 v{VXB+1}, 64, v{VXB}")
        a(f"v_mov_b32 v{VXA}, v{VXB}")
        a(f"v_mov_b32 v{VXA+1}, v{VXB+1}")
        a("v_bfe_u32 v4, v0, 2, 2")
        a("v_lshl_add_u32 v4, v3, 3, v4")
        a("v_lshlrev_b32 v4, 7, v4")
        a("v_and_b32 v6, 3, v0")
        a("v_lshl_add_u32 v4, v6, 3, v4")
        a("v_bfe_u32 v5, v0, 3, 2")
        a("s_lshl_b32 s33, s32, 1")
        a("v_xor_b32 v5, s33, v5")
        a(f"v_lshl_add_u32 v{VWB}, v5, 5, v4")
        a(f"v_xor_b32 v{VWB+1}, 32, v{VWB}")
        a(f"v_add_u32 v{VWA}, {WS}, v{VWB}")
        a(f"v_add_u32 v{VWA+1}, {WS}, v{VWB+1}")
        a("v_lshlrev_b32 v4, 4, v2")
        a(f"v_lshl_add_u32 v{VST}, v3, 9, v4")
        for i in range(96): a(f"v_mov_b32 v{ACC+i}, 0")
        a("s_lshl_b32 s40, s22, 22")
        a("s_lshl_b32 s41, s25, 1")
        a("s_add_u32 s41, s41, s32")
        a("s_lshl_b32 s41, s41, 17")
        a("s_add_u32 s40, s40, s41")
        a("s_lshl_b32 s41, s24, 14")
        a("s_add_u32 s40, s40, s41")
        a("s_lshl_b32 s41, s31, 12")
        a("s_add_u32 s40, s40, s41")
        a(f"s_add_u32 s41, s40, {KF}")
        a(f"s_add_u32 s42, s40, {VF}")
        a(f"s_mov_b32 s43, {QSCALE:#x}")
        a("s_mov_b32 s33, 0")
        a(f"s_mov_b32 s34, {WS}")
        a("s_mov_b32 s35, 0")

    wupd = [f"s_add_u32 s34, s34, {WSL}", f"s_cmp_eq_u32 s34, {WS+5*WSL}", f"s_cselect_b32 s34, {WS}, s34",
            f"v_add_u32 v{VWA}, s34, v{VWB}", f"v_add_u32 v{VWA+1}, s34, v{VWB+1}", "s_add_u32 s35, s35, 1"]
    xupd = [f"s_add_u32 s33, s33, {XS}", f"s_cmp_eq_u32 s33, {3*XS}", "s_cselect_b32 s33, 0, s33",
            f"v_add_u32 v{VXA}, s33, v{VXB}", f"v_add_u32 v{VXA+1}, s33, v{VXB+1}"]

    def mix(dma, other):
        out = []; o = list(other)
        for m, l in dma:
            out.append(m)
            out.append(o.pop(0) if o else "s_nop 0")
            out.append(l)
        return out + o

    def event(tag):
        a.lab(tag)
        a("s_mov_b32 s49, 0x7fff")
        if OPT["cpf"] == "1":
            a("s_cmp_eq_u32 s31, 3")
            a(f"s_cbranch_scc1 {tag}c")
        a(f"buffer_load_dword v{VPD}, v{VPW}, s[12:15], s50 offen")
        a(f"s_branch {tag}r")
        if OPT["cpf"] == "1":
            a.lab(tag + "c")
            codepf(a, "attn_kernel", "L2_slow0", 31)
            if OPT["tlb"] == "1":
                a("v_lshlrev_b32 v30, 21, v0")
                a("buffer_load_dword v30, v30, s[16:19], 0 offen")
            a(f"s_branch {tag}r")

    a("s_cmp_lg_u32 s32, 0")
    a("s_cbranch_scc1 L1_W")
    for cls in ("X", "W"):
        P = "L1" + cls
        if cls == "X":
            a("v_lshlrev_b32 v5, 11, v2")
            a("v_xor_b32 v6, v3, v4")
            a("v_lshl_add_u32 v6, v6, 4, v5")
            a("v_xor_b32 v7, 64, v6")
            a(f"v_mov_b32 v{VD}, v6")
            a(f"v_add_u32 v{VD+1}, 16384, v7")
            a(f"v_add_u32 v{VD+2}, 32768, v6")
            a(f"v_add_u32 v{VD+3}, 49152, v7")
            a("s_lshl_b32 s27, s24, 19")
            a("s_lshl_b32 s28, s31, 16")
            a("s_add_u32 s45, s27, s28")
            a("s_lshl_b32 s46, s44, 7")
            a("s_add_u32 s27, s45, s46")
            a("s_add_u32 s28, s27, 0x40000")
            a("s_lshl_b32 s29, s31, 12")
            a(f"s_add_u32 s30, s29, {6*16384}")
            a("s_waitcnt lgkmcnt(0)")
            if OPT["s2e"] == "1": stamp(a, 2)
            srd(a, 8, 4, 4 << 20)
            def grp(par):
                so = "s27" if par == 0 else "s28"
                d = [(f"s_add_u32 m0, s29, {j*1024}", f"buffer_load_dwordx4 v{VD+j}, s[8:11], {so} offen lds") for j in range(4)]
                post = ["s_add_u32 s29, s29, 16384"]
                if par == 0: post += ["s_add_u32 s46, s46, 128", "s_and_b32 s46, s46, 0x7ff", "s_add_u32 s27, s45, s46"]
                if par == 1: post += ["s_add_u32 s28, s27, 0x40000", "s_cmp_eq_u32 s29, s30", f"s_cselect_b32 s38, {6*16384}, 0", "s_sub_u32 s29, s29, s38"]
                return d, post
            NG = 4
        else:
            a.lab("L1_W")
            if OPT["cpf"] == "1":
                a("s_cmp_lg_u32 s26, 7")
                a("s_cbranch_scc1 L1_nocp")
                codepf(a, "qkv_kernel", "L1_end", VPD)
                a.lab("L1_nocp")
            a("v_mul_u32_u24 v5, 6144, v2")
            a("v_and_b32 v6, 1, v4")
            a("v_lshlrev_b32 v6, 1, v6")
            a("s_and_b32 s33, s26, 1")
            a("s_lshl_b32 s33, s33, 2")
            a("v_xor_b32 v6, v3, v6")
            a("v_xor_b32 v6, s33, v6")
            a(f"v_lshl_add_u32 v{VD}, v6, 4, v5")
            a(f"v_add_u32 v{VD+1}, 2048, v{VD}")
            a(f"v_add_u32 v{VD+2}, 4096, v{VD}")
            if PF:
                a(f"v_mul_u32_u24 v{VPW}, 6144, v0")
                a("v_cmp_gt_u32 vcc, 32, v0")
                a("v_mov_b32 v7, 0x7fffff00")
                a("s_lshl_b32 s50, s20, 2")
                a(f"v_cndmask_b32 v{VPW}, v7, v{VPW}, vcc")
                a("s_add_u32 s50, s50, s21")
                a("s_and_b32 s50, s50, 31")
                a(f"s_mul_i32 s50, s50, {32*6144}")
                a("s_lshl_b32 s51, s31, 11")
                a("s_add_u32 s50, s50, s51")
                a("s_bfe_u32 s51, s20, 0x10001")
                a("s_lshl_b32 s51, s51, 10")
                a("s_add_u32 s50, s50, s51")
                a("s_add_u32 s50, s50, 384")
                a(f"s_max_u32 s49, s21, {4+DLT}")
                a(f"s_sub_u32 s49, s49, {4+DLT}")
                a("s_cmp_lt_u32 s21, 5")
                a("s_cselect_b32 s49, 0x7fff, s49")
                a("s_cmp_eq_u32 s31, 3")
                a(f"s_cselect_b32 s49, {26 if OPT['cpf'] == '1' else 0x7fff}, s49")
            a("s_lshl_b32 s27, s25, 7")
            a(f"s_mul_i32 s28, s31, {8*6144}")
            a("s_add_u32 s27, s27, s28")
            a(f"s_mul_i32 s28, s44, {64*6144}")
            a("s_add_u32 s27, s27, s28")
            a("s_lshl_b32 s29, s31, 10")
            a(f"s_add_u32 s29, s29, {WS}")
            a(f"s_add_u32 s30, s29, {5*WSL}")
            a("s_waitcnt lgkmcnt(0)")
            if OPT["s2e"] == "1": stamp(a, 2)
            srd(a, 12, 6, 6 << 20)
            def grp(par):
                d = [(f"s_add_u32 m0, s29, {g*4096}", f"buffer_load_dwordx4 v{VD+g}, s[12:15], s27 offen lds") for g in range(3)]
                post = [f"s_add_u32 s27, s27, {32*6144}", f"s_add_u32 s29, s29, {WSL}",
                        "s_cmp_eq_u32 s29, s30", f"s_cselect_b32 s38, {5*WSL}, 0", "s_sub_u32 s29, s29, s38"]
                if par == 1: post += [f"s_cmp_ge_u32 s27, {6<<20:#x}", f"s_cselect_b32 s38, {6<<20:#x}, 0", "s_sub_u32 s27, s27, s38"]
                return d, post
            NG = 3
        def emit_grp(par):
            d, post = grp(par)
            for t in mix(d, []) + post: a(t)
        first = 2 if cls == "X" else 1
        for n in range(first): emit_grp(n & 1)
        common_setup()
        for n in range(first, 4): emit_grp(n & 1)
        npf = 0
        if cls == "W" and PF:
            a("s_cmp_eq_u32 s49, 0")
            a(f"s_cbranch_scc1 {P}_e0")
            a.lab(f"{P}_e0r")
        if OPT["s2e"] != "1": stamp(a, 2)
        a(f"s_waitcnt vmcnt({(4-first)*NG + npf})")
        a("s_barrier")
        stamp(a, 3)
        d, post = grp(0)
        for t in reads(0, 0) + mix(d, []) + post + wupd: a(t)
        if cls == "W": a(f"s_waitcnt vmcnt({3*NG + npf})")
        a("s_waitcnt lgkmcnt(0)")
        a("s_barrier")
        a(f"s_branch {P}_odd")
        a.raw(".p2align 6")
        a.lab(f"{P}_loop")
        for par in range(2):
            if par == 1: a.lab(f"{P}_odd")
            d, post = grp(par)
            rd = reads(par, par)
            tail = list(post) + wupd
            if par == 1:
                tail += xupd
                sup = ["s_cmp_lt_u32 s35, 28", f"s_cselect_b32 s10, {4<<20:#x}, 0" if cls == "X" else f"s_cselect_b32 s14, {6<<20:#x}, 0"]
                tail += sup; post = list(post) + sup
            X = OPT["k1x"]
            if "d" in X: d = []
            if "r" in X: rd = []
            fill = rd[:8] + mix(d, rd[8:]) + tail
            if "o" not in X:
                late = [t for t in tail if t not in post]
                late = [t for t in late if not t.startswith("v_")] + [t for t in late if t.startswith("v_")]
                seq = sched(mm(1-par), rd, d, list(post), late, late_dma=("l" in X))
            elif "1" in X: seq = place(mm(1-par), fill, 2, 2)
            elif "3" in X: seq = place(mm(1-par), fill, 3, 0)
            elif "f" in X: seq = rd[:4] + place(mm(1-par), fill[4:], 2, 0)
            else: seq = place(mm(1-par), fill, 2, 0)
            if "p" in X: seq = ["s_setprio 1"] + seq[:len(seq)-8] + ["s_setprio 0"] + seq[len(seq)-8:]
            if "P" in X and cls == "W": seq = ["s_setprio 1"] + seq
            for t in seq: a(t)
            if cls == "W" and PF:
                a("s_cmp_ge_u32 s35, s49")
                a(f"s_cbranch_scc1 {P}_e{par+1}")
                a.lab(f"{P}_e{par+1}r")
            if par == 1: a("s_cmp_lt_u32 s35, 32")
            if cls == "W": a(f"s_waitcnt vmcnt({3*NG}) lgkmcnt(0)")
            elif par == 1: a(f"s_waitcnt vmcnt({2*NG}) lgkmcnt(0)")
            else: a("s_waitcnt lgkmcnt(0)")
            if "b" not in X and not ("h" in X and par == 0): a("s_barrier")
        if OPT["trip"] == "1":
            a("s_cselect_b32 s62, 1, 0")
            a("s_cmp_lg_u32 s35, 4")
            a(f"s_cbranch_scc1 {P}_t1")
            stamp(a, 2)
            a.lab(f"{P}_t1")
            a("s_cmp_lg_u32 s62, 0")
        a(f"s_cbranch_scc1 {P}_loop")
        a("s_branch L1_epi")
        if cls == "W" and PF:
            for k in range(3): event(f"{P}_e{k}")
    a.lab("L1_epi")
    for t in mm(1): a(t)
    stamp(a, 4)
    a("s_nop 4")
    n = 0
    jobs = []
    for T in range(2):
        for sg in range(2): jobs.append((1, acc(2*T+sg, 2), acc(2*T+sg, 3), T*2048 + sg*256))
    for T in range(2):
        for sg in range(2): jobs.append((0, acc(2*T+sg, 0), acc(2*T+sg, 1), T*2048 + sg*256))
    for T in range(2):
        for u in range(2):  jobs.append((2, acc(2*T, 4+u), acc(2*T+1, 4+u), T*2048 + u*256))
    for seg, b0, b1, off in jobs:
        t0 = F[0] + 4*(n % 8); n += 1
        if seg == 0:
            for b in (b0, b1):
                for r in range(4): a(f"v_mul_f32 v{b+r}, s43, v{b+r}")
        a(f"v_cvt_pk_bf16_f32 v{t0}, v{b0}, v{b0+1}")
        a(f"v_cvt_pk_bf16_f32 v{t0+1}, v{b0+2}, v{b0+3}")
        a(f"v_cvt_pk_bf16_f32 v{t0+2}, v{b1}, v{b1+1}")
        a(f"v_cvt_pk_bf16_f32 v{t0+3}, v{b1+2}, v{b1+3}")
        a(f"buffer_store_dwordx4 {vr(t0)}, v{VST}, s[16:19], s{40+seg} offen offset:{off}{OPT['st1']}")
    stamp(a, 5)
    dump(a, 0, "s26")
    a.lab("L1_end")
    a("s_endpgm")
    return a.text(), kd(N, NV), f"; @launch kernel={N} grid=(256,1,1) block=(512,1,1) lds=159744"

def kperm(rho):
    return ((rho >> 2) & 1) * 16 + (rho >> 3) * 4 + (rho & 3)

def k2():
    a = A(); N = "attn_kernel"
    head(a, N)
    VL16, VKA, VVA, VIDX, VM, VT, VKL = 1, 2, 3, 4, 5, 6, 7
    ONES = 8; Q = [12, 20]; NEG = [28, 44]; O = [60, 76]; L = [92, 96]; KB = [100, 108]; VB = [116, 124]; S = [132, 148, 164, 180]
    NV = 200
    PF = OPT["pf3"] == "1"
    def sm32(d, av, b): return f"v_smfmac_f32_32x32x32_bf16 {vr(d,16)}, {vr(av)}, {vr(b,8)}, v{VIDX}"
    def sm16(l, b): return f"v_smfmac_f32_16x16x64_bf16 {vr(l)}, {vr(ONES)}, {vr(b,8)}, v{VIDX}"
    def ld(d, soff, off=0, v=VL16): a(f"buffer_load_dwordx4 {vr(d)}, v{v}, s[8:11], {soff} offen offset:{off}")
    def xhalf_max():
        a(f"v_max_f32 v{VM}, v{VM}, v{VT}")
        a("s_nop 0")
        a(f"v_mov_b32 v{VT}, v{VM}")
        a("s_nop 1")
        a(f"v_permlane32_swap_b32 v{VM}, v{VT}")
        a("s_nop 1")
        a(f"v_max_f32 v{VM}, v{VM}, v{VT}")
    def maxof(vals):
        a(f"v_max3_f32 v{VM}, v{vals[0]}, v{vals[1]}, v{vals[2]}")
        a(f"v_max3_f32 v{VT}, v{vals[3]}, v{vals[4]}, v{vals[5]}")
        for i in range(6, len(vals) - 2, 4):
            a(f"v_max3_f32 v{VM}, v{VM}, v{vals[i]}, v{vals[i+1]}")
            a(f"v_max3_f32 v{VT}, v{VT}, v{vals[i+2]}, v{vals[i+3]}")
        a(f"v_max3_f32 v{VM}, v{VM}, v{vals[-2]}, v{vals[-1]}")
        xhalf_max()
    def finish(soff, off, T, o, l):
        a(f"v_rcp_f32 v{VT}, v{l}")
        a("s_nop 0")
        for i in range(16): a(f"v_mul_f32 v{o+i}, v{o+i}, v{VT}")
        for i in range(8): a(f"v_cvt_pk_bf16_f32 v{T+i}, v{o+2*i}, v{o+2*i+1}")
        a(f"buffer_store_dwordx4 {vr(T)}, v{VL16}, s[8:11], {soff} offen{OPT['st2']}")
        a(f"buffer_store_dwordx4 {vr(T+4)}, v{VL16}, s[8:11], {soff} offen offset:1024{OPT['st2']}")
    def consts():
        a(f"v_mov_b32 v{VIDX}, 0xdddddddd")
        a("v_bfe_u32 v5, v0, 2, 1")
        a("v_cmp_eq_u32 vcc, 0, v5")
        a("v_mov_b32 v6, 0x3f803f80")
        a("s_nop 0")
        a(f"v_cndmask_b32 v{ONES}, 0, v6, vcc")
        a(f"v_cndmask_b32 v{ONES+1}, 0, v6, vcc")
        a(f"v_cndmask_b32 v{ONES+2}, v6, 0, vcc")
        a(f"v_cndmask_b32 v{ONES+3}, v6, 0, vcc")
    a("s_cmp_ge_u32 s2, 256")
    a("s_cbranch_scc1 L2_end")
    stamp(a, 0); rstamp(a, 1)
    a("s_load_dwordx2 s[4:5], s[0:1], 64")
    a("s_and_b32 s20, s2, 7")
    a("s_lshr_b32 s21, s2, 3")
    a("s_lshr_b32 s22, s20, 2")
    a("s_mul_i32 s22, s22, 24")
    a("s_add_u32 s22, s22, 16")
    a("s_load_dwordx2 s[6:7], s[0:1], s22")
    a("s_load_dwordx2 s[58:59], s[0:1], 48")
    a("v_lshrrev_b32 v1, 6, v0")
    a("v_and_b32 v0, 63, v0")
    a("v_readfirstlane_b32 s24, v1")
    a("s_lshl_b32 s22, s20, 2")
    a("s_lshr_b32 s23, s21, 3")
    a("s_add_u32 s22, s22, s23")
    a("s_and_b32 s23, s21, 7")
    a(f"v_lshlrev_b32 v{VL16}, 4, v0")
    a("s_and_b32 s28, s24, 3")
    a("s_lshl_b32 s25, s23, 3")
    a("s_lshl_b32 s29, s28, 1")
    a("s_add_u32 s25, s25, s29")
    a("s_lshl_b32 s26, s22, 17")
    a("s_lshl_b32 s27, s25, 11")
    a("s_add_u32 s27, s27, s26")
    a("v_bfe_u32 v5, v0, 2, 1")
    a("v_and_b32 v6, 0x23, v0")
    a("v_lshl_or_b32 v6, v5, 4, v6")
    a("v_bfe_u32 v5, v0, 3, 2")
    a("v_lshl_or_b32 v6, v5, 2, v6")
    a(f"v_lshlrev_b32 v{VKL}, 4, v6")
    a(f"s_add_u32 s33, s26, {KF}")
    a("s_lshl_b32 s37, s25, 16")
    a("s_lshl_b32 s38, s22, 11")
    a("s_add_u32 s37, s37, s38")
    a(f"s_add_u32 s37, s37, {OF}")
    a("s_cmp_ge_u32 s24, 4")
    a("s_cbranch_scc1 L2_help")
    a("s_waitcnt lgkmcnt(0)")
    srd(a, 8, 4, WS_BYTES)
    ld(Q[0], "s27"); ld(KB[0], "s33", 0, VKL); ld(Q[0]+4, "s27", 1024); ld(KB[0]+4, "s33", 1024, VKL)
    ld(Q[1], "s27", 2048); ld(Q[1]+4, "s27", 3072)
    ld(KB[1], "s33", 2048, VKL); ld(KB[1]+4, "s33", 3072, VKL)
    consts()
    a("s_add_u32 s38, s37, 0x10000")
    a(f"v_mov_b32 v{VKA}, v{VKL}")
    a(f"v_add_u32 v{VVA}, 0x10000, v{VL16}")
    for i in range(40): a(f"v_mov_b32 v{O[0]+i}, 0")
    for i in range(16): a(f"v_mov_b32 v{S[3]+i}, 0")
    for i in range(8): a(f"v_mov_b32 v{VB[1]+i}, 0")
    a("s_mov_b32 s39, 0")
    a("s_mov_b32 s40, 0")
    stamp(a, 2)
    a("s_waitcnt vmcnt(4)")
    a(mfma(S[0], KB[0], Q[0], "0")); a(mfma(S[0], KB[0]+4, Q[0]+4))
    a("s_waitcnt vmcnt(2)")
    a(mfma(S[1], KB[0], Q[1], "0")); a(mfma(S[1], KB[0]+4, Q[1]+4))
    stamp(a, 3)
    a("s_nop 8")
    maxof([S[0]+r for r in range(16)])
    for i in range(16): a(f"v_sub_f32 v{NEG[0]+i}, 0, v{VM}")
    for i in range(16): a(f"v_sub_f32 v{S[0]+i}, v{S[0]+i}, v{VM}")
    maxof([S[1]+r for r in range(16)])
    for i in range(16): a(f"v_sub_f32 v{NEG[1]+i}, 0, v{VM}")
    a("s_waitcnt vmcnt(0)")
    a("s_barrier")
    stamp(a, 4)
    if OPT["tlb"] == "1": a(f"buffer_load_dword v196, v{VL16}, s[8:11], s37 offen")
    a("s_branch L2_it3")

    def item(p, qk=True, rd=True, pre=None, post=None):
        n = (p - 3) % 16
        i = n >> 1; qt = n & 1
        Sn, Sc, Sp = S[(n+1) % 4], S[n % 4], S[(n-1) % 4]
        qn = (n+1) & 1; kbu = KB[((n+1) >> 1) % 2]
        qp = (n-1) & 1; vbu = VB[((n-1) >> 1) % 2]
        if qt == 1:
            kt = (i + 2) % 8
            r = [f"ds_read_b128 {vr(KB[i % 2])}, v{VKA} offset:{kt*2048}", f"ds_read_b128 {vr(KB[i % 2]+4)}, v{VKA} offset:{kt*2048+1024}"]
        else:
            r = [f"ds_read_b128 {vr(VB[i % 2])}, v{VVA} offset:{i*2048}", f"ds_read_b128 {vr(VB[i % 2]+4)}, v{VVA} offset:{i*2048+1024}"]
        if not rd or "r" in OPT["k2x"]: r = []
        ex = [f"v_exp_f32 v{Sc+k}, v{Sc+k}" for k in range(16)]
        post = list(post or [])
        seq = []
        if qk: seq.append(mfma(Sn, kbu, Q[qn], NEG[qn]))
        seq += post[0:1] + ex[0:3]
        if qk: seq.append(mfma(Sn, kbu+4, Q[qn]+4))
        seq += ["s_waitcnt lgkmcnt(0)"] + list(pre or []) + ex[3:6]
        seq.append(sm32(O[qp], vbu, Sp))
        seq += r[:1] + ex[6:9]
        seq.append(sm16(L[qp], Sp))
        seq += post[1:3] + ex[9:10]
        seq.append(sm32(O[qp], vbu+4, Sp+8))
        seq += r[1:] + ex[10:13]
        seq.append(sm16(L[qp], Sp+8))
        seq += post[3:] + ex[13:16]
        for t in seq: a(t)

    a.raw(".p2align 6")
    a.lab("L2_loop")
    item(0, pre=["s_barrier", f"v_add_u32 v{VKA}, s40, v{VKL}"])
    item(1); item(2)
    a(f"v_add_u32 v{VVA}, s41, v{VL16}")
    a.lab("L2_it3")
    for p in range(3, 15): item(p)
    item(15, post=["s_add_u32 s40, s40, 16384", "s_and_b32 s40, s40, 0xffff", "s_add_u32 s41, s40, 0x10000", "s_add_u32 s39, s39, 1", "s_cmp_lt_u32 s39, 8"])
    a("s_cbranch_scc1 L2_loop")
    item(0, rd=False)
    item(1)
    item(2, qk=False, rd=False)
    a("s_nop 1")
    Sp = S[3]
    a(sm32(O[1], VB[1], Sp)); a(sm16(L[1], Sp)); a(sm32(O[1], VB[1]+4, Sp+8)); a(sm16(L[1], Sp+8))
    a("s_nop 4")
    stamp(a, 5)
    for qt in range(2):
        a(f"v_mul_f32 v{VM}, 0, v{O[qt]}")
        for i in range(1, 16): a(f"v_fma_f32 v{VM}, v{O[qt]+i}, 0, v{VM}")
        a(f"v_add_f32 v{VM}, v{VM}, v{L[qt]}")
        a(f"v_mov_b32 v{VT}, {f2u(2.0**64):#x}")
        a(f"v_cmp_nlt_f32 vcc, v{VM}, v{VT}")
        a("s_nop 4")
        a(f"s_cbranch_vccnz L2_slow{qt}")
        a.lab(f"L2_fin{qt}")
        finish("s37" if qt == 0 else "s38", 0, S[1+qt], O[qt], L[qt])
    dump(a, 1, "s24")
    a.lab("L2_end")
    a("s_endpgm")

    a.lab("L2_help")
    MC, MP, MP0, SC, SP, OB, LB = 12, 28, 44, 60, 76, [92, 112], [108, 128]
    QB = [132, 140]; KX = [148, 156, 164]; VX = [172, 180, 188]; VPF = 2
    a("s_lshl_b32 s34, s28, 12")
    a("s_add_u32 s35, s33, s34")
    a(f"s_add_u32 s36, s35, {VF-KF}")
    a("s_waitcnt lgkmcnt(0)")
    srd(a, 8, 4, WS_BYTES)
    srd(a, 16, 6, 2 << 20)
    def dma_stage(st):
        for base, so in ((0, "s35"), (65536, "s36")):
            a(f"s_add_u32 m0, s34, {base + (st % 4)*16384}")
            a("s_nop 0")
            for j in range(4):
                a(f"buffer_load_dwordx4 v{VL16}, s[8:11], {so} offen offset:{j*1024} lds")
            a(f"s_add_u32 {so}, {so}, 16384")
    dma_stage(0)
    consts()
    a(f"s_add_u32 s28, s27, {4<<20}")
    a(f"s_add_u32 s29, s28, {KF}")
    a(f"s_add_u32 s30, s28, {VF}")
    a("s_cmp_eq_u32 s25, 0")
    a("s_cselect_b32 s32, 0, 2048")
    a("s_cselect_b64 s[44:45], 0, -1")
    a("s_sub_u32 s31, s29, s32")
    a("s_sub_u32 s32, s30, s32")
    a(f"s_add_u32 s37, s37, {4<<20}")
    a("s_add_u32 s38, s37, 0x10000")
    if PF:
        a(f"v_lshlrev_b32 v{VPF}, 7, v0")
        a("v_cmp_gt_u32 vcc, 32, v0")
        a("v_mov_b32 v5, 0x7fffff00")
        a("s_lshl_b32 s47, s21, 16")
        a(f"v_cndmask_b32 v{VPF}, v5, v{VPF}, vcc")
        a("s_lshl_b32 s46, s34, 2")
        a("s_add_u32 s47, s47, s46")
    def pf():
        if PF:
            a(f"buffer_load_dword v{VPF+1}, v{VPF}, s[16:19], s47 offen")
            a("s_add_u32 s47, s47, 4096")
    for i in range(40): a(f"v_mov_b32 v{OB[0]+i}, 0")
    a(f"v_mov_b32 v{VT}, {NEGBIG:#x}")
    def lanemask(r, prev):
        m = 0
        for l in range(64):
            q = l & 31; hh = l >> 5
            key = kperm(8*(r//4) + 4*hh + r % 4)
            d = q - key + (32 if prev else 0)
            if 0 <= d <= 14 and d % 2 == 0: m |= 1 << l
        return m
    def masks(prev):
        k = 0
        for r in range(16):
            m = lanemask(r, prev)
            sp = 48 + 2*(k % 4); k += 1
            a(f"s_mov_b32 s{sp}, {m & 0xffffffff:#x}")
            a(f"s_mov_b32 s{sp+1}, {m >> 32:#x}")
            a(f"v_cndmask_b32 v{(MP if prev else MC)+r}, v{VT}, 0, s[{sp}:{sp+1}]")
            if prev: a(f"v_cndmask_b32 v{MP0+r}, v{VT}, v{MP+r}, s[44:45]")
    masks(0)
    stamp(a, 2); stamp(a, 3)
    a("s_waitcnt vmcnt(0)")
    a("s_barrier")
    stamp(a, 4)
    dma_stage(1)
    dma_stage(2)
    masks(1)
    if OPT["hprio"] != "0": a(f"s_setprio {OPT['hprio']}")
    def bcomp(t):
        keep = a.l; a.l = []
        kc, kp, vc, vp = KX[t+1], KX[t], VX[t+1], VX[t]
        ob, lb = OB[t], LB[t]
        a(mfma(SC, kc, QB[t], MC)); a(mfma(SP, kp, QB[t], MP0 if t == 0 else MP))
        a(mfma(SC, kc+4, QB[t]+4)); a(mfma(SP, kp+4, QB[t]+4))
        a("s_nop 10")
        vals = [SC+r for r in range(16)] + [SP+r for r in range(16)]
        maxof(vals)
        for v in vals: a(f"v_sub_f32 v{v}, v{v}, v{VM}")
        for v in vals: a(f"v_exp_f32 v{v}, v{v}")
        a("s_nop 1")
        a(sm32(ob, vc, SC)); a(sm16(lb, SC)); a(sm32(ob, vc+4, SC+8)); a(sm16(lb, SC+8))
        a(sm32(ob, vp, SP)); a(sm16(lb, SP)); a(sm16(lb, SP+8)); a(sm32(ob, vp+4, SP+8))
        a("s_nop 12")
        finish("s37" if t == 0 else "s38", 0, QB[t], ob, lb)
        out = a.l; a.l = keep
        return out
    work = [] if "B" in OPT["k2x"] else bcomp(0) + bcomp(1)
    def cost(t): return 2 if "v_exp" in t else (3 if "mfma" in t else 1)
    tot = sum(cost(t) for t in work)
    slots = [int(c) for c in OPT["bslots"]]
    chunks = {b: [] for b in range(8)}
    acc_ = 0
    for t in work:
        chunks[slots[min(len(slots) - 1, acc_ * len(slots) // tot)]].append(t)
        acc_ += cost(t)
    issued = ["s1"]*8 + ["s2"]*8
    for b in range(1, 8):
        need = f"s{b}"
        last = max(i for i, x in enumerate(issued) if x == need or (b == slots[0] and x == "B"))
        a(f"s_waitcnt vmcnt({len(issued) - 1 - last})")
        a("s_barrier")
        if b <= 5:
            dma_stage(b + 2); issued += [f"s{b+2}"]*8
        if b == 1:
            for t in range(2): ld(QB[t], "s28", t*2048); ld(QB[t]+4, "s28", t*2048+1024)
            ld(KX[0], "s31", 0, VKL); ld(KX[0]+4, "s31", 1024, VKL)
            for t in range(2): ld(KX[t+1], "s29", t*2048, VKL); ld(KX[t+1]+4, "s29", t*2048+1024, VKL)
            ld(VX[0], "s32"); ld(VX[0]+4, "s32", 1024)
            for t in range(2): ld(VX[t+1], "s30", t*2048); ld(VX[t+1]+4, "s30", t*2048+1024)
            issued += ["B"]*16
        if 2 <= b <= 5 and PF:
            pf(); issued += ["p"]
        if b == 6 and OPT["cpf"] == "1":
            codepf(a, NAME + "_kernel", "L3_end", 197); issued += ["p"]
        if b == 6 and OPT["tlb"] == "1":
            srd(a, 16, 58, 8 << 20)
            a(f"v_lshlrev_b32 v198, 21, v0")
            a(f"buffer_load_dword v198, v198, s[16:19], 0 offen"); issued += ["p"]
        for t in chunks[b]:
            a.l.append(t)
            if "buffer_store" in t: issued += ["st"]
    stamp(a, 5)
    dump(a, 1, "s24")
    a("s_endpgm")

    s0 = S[0]
    for qt in range(2):
        a.lab(f"L2_slow{qt}")
        a(f"s_add_u32 s36, s26, {VF}")
        a(f"v_mov_b32 v{VM}, 0xff800000")
        a("s_mov_b32 s39, 0")
        a.lab(f"L2_s1{qt}")
        a("s_add_u32 s41, s33, s39")
        ld(KB[0], "s41", 0, VKL); ld(KB[0]+4, "s41", 1024, VKL)
        a("s_waitcnt vmcnt(0)")
        a(mfma(s0, KB[0], Q[qt], "0")); a(mfma(s0, KB[0]+4, Q[qt]+4))
        a("s_nop 15")
        for i in range(0, 16, 2): a(f"v_max3_f32 v{VM}, v{VM}, v{s0+i}, v{s0+i+1}")
        a("s_add_u32 s39, s39, 2048")
        a(f"s_cmp_lt_u32 s39, {64*2048}")
        a(f"s_cbranch_scc1 L2_s1{qt}")
        a(f"v_mov_b32 v{VT}, v{VM}")
        xhalf_max()
        for i in range(16): a(f"v_sub_f32 v{NEG[qt]+i}, 0, v{VM}")
        for i in range(16): a(f"v_mov_b32 v{O[qt]+i}, 0")
        for i in range(4): a(f"v_mov_b32 v{L[qt]+i}, 0")
        a("s_mov_b32 s39, 0")
        a.lab(f"L2_s2{qt}")
        a("s_add_u32 s41, s33, s39")
        ld(KB[0], "s41", 0, VKL); ld(KB[0]+4, "s41", 1024, VKL)
        a("s_add_u32 s41, s36, s39")
        ld(VB[0], "s41"); ld(VB[0]+4, "s41", 1024)
        a("s_waitcnt vmcnt(0)")
        a(mfma(s0, KB[0], Q[qt], NEG[qt])); a(mfma(s0, KB[0]+4, Q[qt]+4))
        a("s_nop 15")
        for i in range(16): a(f"v_exp_f32 v{s0+i}, v{s0+i}")
        a("s_nop 1")
        a(sm32(O[qt], VB[0], s0)); a(sm16(L[qt], s0)); a(sm32(O[qt], VB[0]+4, s0+8)); a(sm16(L[qt], s0+8))
        a("s_nop 7")
        a("s_add_u32 s39, s39, 2048")
        a(f"s_cmp_lt_u32 s39, {64*2048}")
        a(f"s_cbranch_scc1 L2_s2{qt}")
        a("s_nop 15")
        a(f"s_branch L2_fin{qt}")
    return a.text(), kd(N, NV), f"; @launch kernel={N} grid=(256,1,1) block=(512,1,1) lds=131072"

def k3():
    a = A(); N = NAME + "_kernel"
    head(a, N)
    VL16, VWD0, VWD1, VOB, VOA, VWB, VWA, VST = 1, 8, 9, 10, 11, 12, 16, 20
    F = [24, 56]; ACC = 88; NV = 152
    def Of(f, mt): return F[f] + 4*mt
    def Wf(f, nb): return F[f] + 16 + 4*nb
    def acc(mt, nb): return ACC + (mt*4 + nb)*4
    SLOT = 32768
    a("s_cmp_ge_u32 s2, 256")
    a("s_cbranch_scc1 L3_end")
    stamp(a, 0); rstamp(a, 1)
    a("s_and_b32 s20, s2, 7")
    a("s_lshr_b32 s21, s2, 3")
    a("s_lshr_b32 s22, s20, 2")
    a("s_mul_i32 s23, s22, 24")
    a("s_add_u32 s23, s23, 16")
    a("s_load_dwordx2 s[4:5], s[0:1], s23")
    a("s_load_dwordx2 s[6:7], s[0:1], 64")
    a("s_load_dwordx2 s[36:37], s[0:1], 48")
    a("s_and_b32 s24, s20, 3")
    a("s_lshl_b32 s24, s24, 2")
    a("s_and_b32 s25, s21, 3")
    a("s_add_u32 s24, s24, s25")
    a("s_lshr_b32 s25, s21, 2")
    a("v_lshrrev_b32 v1, 6, v0")
    a("v_and_b32 v0, 63, v0")
    a("v_readfirstlane_b32 s26, v1")
    a(f"v_lshlrev_b32 v{VL16}, 4, v0")
    a("s_nop 2")
    a("s_cmp_lt_u32 s26, 4")
    a("s_cbranch_scc1 L3_compute")
    a("s_sub_u32 s26, s26, 4")
    a("v_lshrrev_b32 v2, 4, v0")
    a("v_and_b32 v3, 15, v0")
    a("v_lshlrev_b32 v4, 1, v2")
    a("v_xor_b32 v3, v3, v4")
    a("v_lshlrev_b32 v3, 4, v3")
    a(f"v_lshl_add_u32 v{VWD0}, v2, 11, v3")
    a(f"v_xor_b32 v{VWD1}, 128, v{VWD0}")
    a(f"v_add_u32 v{VWD1}, 8192, v{VWD1}")
    a("s_lshl_b32 s27, s22, 22")
    a("s_lshl_b32 s28, s24, 2")
    a("s_add_u32 s28, s28, s26")
    a("s_lshl_b32 s28, s28, 16")
    a("s_add_u32 s27, s27, s28")
    a(f"s_add_u32 s27, s27, {OF}")
    a("s_lshl_b32 s28, s26, 15")
    a("s_lshl_b32 s29, s25, 8")
    a("s_add_u32 s28, s28, s29")
    a("s_add_u32 s30, s28, 16384")
    a("s_lshl_b32 s29, s26, 12")
    a("s_waitcnt lgkmcnt(0)")
    srd(a, 8, 6, WS_BYTES)
    srd(a, 12, 4, 2 << 20)
    def dma(slot):
        a(f"s_add_u32 m0, s29, {slot + 16384}")
        a("s_nop 0")
        a(f"buffer_load_dwordx4 v{VWD0}, s[12:15], s28 offen lds")
        a("s_add_u32 m0, m0, 1024")
        a("s_nop 0")
        a(f"buffer_load_dwordx4 v{VWD1}, s[12:15], s28 offen lds")
        a("s_add_u32 m0, m0, 1024")
        a(f"s_add_u32 s28, s28, {64*2048}")
        a(f"buffer_load_dwordx4 v{VWD0}, s[12:15], s30 offen lds")
        a("s_add_u32 m0, m0, 1024")
        a("s_nop 0")
        a(f"buffer_load_dwordx4 v{VWD1}, s[12:15], s30 offen lds")
        a(f"s_add_u32 m0, s29, {slot}")
        a(f"s_add_u32 s30, s30, {64*2048}")
        for j in range(4):
            a(f"buffer_load_dwordx4 v{VL16}, s[8:11], s27 offen offset:{j*1024} lds")
        a("s_add_u32 s27, s27, 4096")
    for st in range(4): dma(st*SLOT)
    stamp(a, 2)
    a("s_waitcnt vmcnt(24)")
    a("s_barrier")
    stamp(a, 3)
    a("s_mov_b32 s35, 0")
    a.lab("L3_ld")
    for t in range(4):
        a("s_waitcnt vmcnt(16)")
        a("s_barrier")
        dma(t*SLOT)
    a("s_add_u32 s35, s35, 1")
    a("s_cmp_lt_u32 s35, 3")
    a("s_cbranch_scc1 L3_ld")
    for n in (16, 8, 0):
        a(f"s_waitcnt vmcnt({n})")
        a("s_barrier")
    stamp(a, 4); stamp(a, 5)
    a("s_add_u32 s26, s26, 4")
    dump(a, 2, "s26")
    a("s_endpgm")
    a.lab("L3_compute")
    a("s_and_b32 s31, s26, 1")
    a("s_lshr_b32 s32, s26, 1")
    a("v_and_b32 v2, 15, v0")
    a("v_lshrrev_b32 v3, 4, v0")
    a("s_lshl_b32 s33, s31, 13")
    a("v_lshlrev_b32 v4, 4, v2")
    a("v_lshl_add_u32 v4, v3, 9, v4")
    a(f"v_add_u32 v{VOB}, s33, v4")
    a(f"v_mov_b32 v{VOA}, v{VOB}")
    a("v_bfe_u32 v4, v0, 2, 3")
    a("v_lshrrev_b32 v5, 5, v0")
    a("v_lshl_add_u32 v5, v5, 4, v4")
    a("v_lshlrev_b32 v5, 8, v5")
    a("v_and_b32 v6, 3, v0")
    a("v_lshl_add_u32 v5, v6, 3, v5")
    a("v_add_u32 v5, 16384, v5")
    a("s_lshl_b32 s33, s32, 2")
    a("v_xor_b32 v4, s33, v4")
    a(f"v_lshl_add_u32 v{VWB}, v4, 5, v5")
    for nb in range(1, 4): a(f"v_xor_b32 v{VWB+nb}, {nb*32}, v{VWB}")
    for nb in range(4): a(f"v_mov_b32 v{VWA+nb}, v{VWB+nb}")
    for i in range(64): a(f"v_mov_b32 v{ACC+i}, 0")
    a("s_mov_b32 s33, 0")
    a("s_mov_b32 s35, 0")
    a("s_waitcnt lgkmcnt(0)")
    srd(a, 16, 36, 8 << 20)
    a("s_lshl_b32 s40, s24, 19")
    a("s_lshl_b32 s41, s31, 18")
    a("s_add_u32 s40, s40, s41")
    a("s_lshl_b32 s41, s22, 11")
    a("s_add_u32 s40, s40, s41")
    a("s_lshl_b32 s41, s25, 8")
    a("s_add_u32 s40, s40, s41")
    a("s_lshl_b32 s41, s32, 7")
    a("s_add_u32 s40, s40, s41")
    def rdO(f, ks, mt): return [f"ds_read_b128 {vr(Of(f,mt))}, v{VOA} offset:{(mt>>1)*4096 + ks*2048 + (mt&1)*256}"]
    def rdW(f, ks, nb): return [f"ds_read_b64_tr_b16 {vr(Wf(f,nb),2)}, v{VWA+nb} offset:{ks*8192}",
                                f"ds_read_b64_tr_b16 {vr(Wf(f,nb)+2,2)}, v{VWA+nb} offset:{ks*8192+2048}"]
    def reads(f, ks):
        return [rdO(f, ks, 0)] + [rdW(f, ks, nb) for nb in range(4)] + [rdO(f, ks, mt) for mt in (1, 2, 3)]
    def mm(f):
        return [mfma16(acc(mt, nb), Wf(f, nb), Of(f, mt)) for mt in range(4) for nb in range(4)]
    stamp(a, 2)
    a("s_barrier")
    stamp(a, 3)
    for grp in reads(0, 0):
        for t in grp: a(t)
    a("s_branch L3_mid")
    a.raw(".p2align 6")
    a.lab("L3_loop")
    flat = lambda g: [[t] for x in g for t in x]
    for t in spread(mm(1), flat(reads(0, 0)), 0, 1): a(t)
    a.lab("L3_mid")
    a("s_waitcnt lgkmcnt(0)")
    fl = flat(reads(1, 1))
    fl[0] += [f"s_add_u32 s33, s33, {SLOT}", f"s_and_b32 s33, s33, {4*SLOT-1:#x}"]
    fl[1] += ["s_add_u32 s35, s35, 1", "s_cmp_lt_u32 s35, 16"]
    fl[9] += [f"v_add_u32 v{VWA}, s33, v{VWB}"]
    fl[10] += [f"v_add_u32 v{VWA+1}, s33, v{VWB+1}"]
    fl[11] += [f"v_add_u32 v{VWA+2}, s33, v{VWB+2}"]
    fl += [[f"v_add_u32 v{VWA+3}, s33, v{VWB+3}", f"v_add_u32 v{VOA}, s33, v{VOB}"], [], [], ["s_waitcnt lgkmcnt(0)", "s_barrier"]]
    for t in spread(mm(0), fl, 0, 1): a(t)
    a("s_cbranch_scc1 L3_loop")
    for t in mm(1): a(t)
    stamp(a, 4)
    a("s_mul_i32 s41, s26, 9216")
    a("v_mul_u32_u24 v4, 144, v2")
    a("v_lshl_add_u32 v4, v3, 3, v4")
    a("v_add_u32 v4, s41, v4")
    a("v_lshrrev_b32 v5, 3, v0")
    a("v_mul_u32_u24 v6, 144, v5")
    a("v_and_b32 v7, 7, v0")
    a("v_lshl_add_u32 v6, v7, 4, v6")
    a("v_add_u32 v6, s41, v6")
    a("v_lshlrev_b32 v5, 12, v5")
    a(f"v_lshl_add_u32 v{VST}, v7, 4, v5")
    for mt in range(4):
        for nb in range(4):
            b = acc(mt, nb); t0 = F[0] + 2*(mt*4 + nb)
            a(f"v_cvt_pk_bf16_f32 v{t0}, v{b}, v{b+1}")
            a(f"v_cvt_pk_bf16_f32 v{t0+1}, v{b+2}, v{b+3}")
            a(f"ds_write_b64 v4, {vr(t0,2)} offset:{mt*16*144 + nb*32}")
        a(f"ds_read_b128 {vr(F[1]+8*mt)}, v6 offset:{mt*16*144}")
        a(f"ds_read_b128 {vr(F[1]+8*mt+4)}, v6 offset:{mt*16*144 + 8*144}")
        if mt >= 1:
            a("s_waitcnt lgkmcnt(6)")
            for h in range(2):
                a(f"buffer_store_dwordx4 {vr(F[1]+8*(mt-1)+4*h)}, v{VST}, s[16:19], s40 offen{OPT['st3']}")
                a(f"s_add_u32 s40, s40, {8*4096}")
    a("s_waitcnt lgkmcnt(0)")
    for h in range(2):
        a(f"buffer_store_dwordx4 {vr(F[1]+24+4*h)}, v{VST}, s[16:19], s40 offen{OPT['st3']}")
        a(f"s_add_u32 s40, s40, {8*4096}")
    stamp(a, 5)
    dump(a, 2, "s26")
    a.lab("L3_end")
    a("s_endpgm")
    return a.text(), kd(N, NV), f"; @launch kernel={N} grid=(256,1,1) block=(512,1,1) lds=131072"

def main():
    ks = [k1(), k2(), k3()]
    hdr = open("cdna_kernels/" + NAME + ".s.ref").read().split("\n")
    top = [l for l in hdr if l.startswith(";") and "@launch" not in l and "Override" not in l and "grid=ceil" not in l]
    out = "\n".join(top) + "\n" + "\n".join(k[2] for k in ks) + "\n"
    out += '.amdgcn_target "amdgcn-amd-amdhsa--gfx950"\n.text\n'
    for k in ks: out += k[0]
    out += '.section .rodata,"a"\n'
    for k in ks: out += k[1]
    open(sys.argv[1], "w").write(out)

main()
```

```python
import struct, math, sys

NAME = "concat_heads__mha_block__sliding_local_dilated__prompt"
OPT = dict(st1=" sc1", st2=" sc1", st3=" sc1", dbg="0", pf1="1", pf3="1", ord1="0", dlt="4", nx="0", ph="2", s2e="0", prio="1", k2x="", cpf="1", hprio="0", trip="0", k1x="", tlb="1", dk="0", spin="", bslots="2345", pst="0", wfirst="1", slp="2", fsh="5", pfs="2345", opf="0", la="5", fm="g", aslp="8", bslp="20", osc=" sc1")
for a in sys.argv[2:]:
    k, v = a.split("=", 1)
    OPT[k] = v

def f2u(x): return struct.unpack("<I", struct.pack("<f", x))[0]
QSCALE = f2u(math.log2(math.e) / math.sqrt(32.0))
NEGBIG = f2u(-1e30)

QF, KF, VF, OF = 0, 8 << 20, 16 << 20, 24 << 20
WS_BYTES = 33 << 20

class A:
    def __init__(s): s.l = []
    def __call__(s, t): s.l.append("    " + t)
    def lab(s, t): s.l.append(t + ":")
    def raw(s, t): s.l.append(t)
    def text(s): return "\n".join(s.l) + "\n"

def vr(b, n=4): return f"v[{b}:{b+n-1}]"
def mfma(d, a, b, c=None):
    cc = vr(d, 16) if c is None else (c if isinstance(c, str) else vr(c, 16))
    return f"v_mfma_f32_32x32x16_bf16 {vr(d,16)}, {vr(a)}, {vr(b)}, {cc}"

def mfma16(d, a, b):
    return f"v_mfma_f32_16x16x32_bf16 {vr(d)}, {vr(a)}, {vr(b)}, {vr(d)}"

def spread(main, fill, start=0, every=1, per=1):
    out = []; k = 0
    for i, m in enumerate(main):
        out.append(m)
        if i >= start and (i - start) % every == 0:
            for _ in range(per):
                if k < len(fill):
                    out += fill[k]; k += 1
    while k < len(fill):
        out += fill[k]; k += 1
    return out

def interleave(main, fill, pattern):
    out = []; k = 0
    for i, m in enumerate(main):
        for _ in range(pattern[i] if i < len(pattern) else 0):
            if k < len(fill):
                out += fill[k]; k += 1
        out.append(m)
    while k < len(fill):
        out += fill[k]; k += 1
    return out

def kd(name, vgpr, sgpr=96):
    acc = (vgpr + 3) // 4 * 4
    return f""".p2align 6
.amdhsa_kernel {name}
  .amdhsa_next_free_vgpr {vgpr}
  .amdhsa_next_free_sgpr {sgpr}
  .amdhsa_accum_offset {acc}
  .amdhsa_group_segment_fixed_size 0
  .amdhsa_kernarg_size 72
  .amdhsa_user_sgpr_count 2
  .amdhsa_user_sgpr_kernarg_segment_ptr 1
  .amdhsa_system_sgpr_workgroup_id_x 1
.end_amdhsa_kernel
"""

_cp = [0]
DBG = OPT["dbg"] in ("1", "2", "3")
def stamp(a, n):
    if DBG:
        a(f"s_memtime s[{64+2*n}:{65+2*n}]")
def rstamp(a, n):
    if DBG:
        a(f"s_memrealtime s[{64+2*n}:{65+2*n}]")
def dump(a, kidx, wave_sgpr, nst=8):
    if not DBG: return
    if OPT["dbg"] == "2":
        if kidx != int(OPT["dk"]): return
        _cp[0] += 1
        sk = f"Ldbg{_cp[0]}"
        a("s_load_dwordx2 s[88:89], s[0:1], 56")
        a("s_waitcnt lgkmcnt(0) vmcnt(0)")
        a(f"s_memtime s[{64+2*(nst-2)}:{65+2*(nst-2)}]")
        a(f"s_memrealtime s[{64+2*(nst-1)}:{65+2*(nst-1)}]")
        a("s_waitcnt lgkmcnt(0)")
        a(f"s_sub_u32 s88, s88, {512*kidx}")
        a("s_subb_u32 s89, s89, 0")
        a("s_mov_b32 s90, 64")
        a("s_mov_b32 s91, 0x00020000")
        a("s_lshl_b32 s92, s2, 3")
        a(f"s_add_u32 s92, s92, {wave_sgpr}")
        a("s_cmp_eq_u32 s92, 805")
        a("s_cselect_b32 s93, 32, 0x1000")
        a("s_cmp_eq_u32 s92, 0")
        a("s_cselect_b32 s92, 0, s93")
        a("v_mov_b32 v2, 0")
        for n in range(2, nst):
            base = 64 if n < nst-1 else 66
            a(f"s_sub_u32 s93, s{64+2*n}, s{base}")
            a("v_mov_b32 v3, s93")
            a(f"buffer_store_dword v3, v2, s[88:91], s92 offen offset:{4*(n-2)}")
            a("s_nop 1")
        return
    a("s_load_dwordx2 s[88:89], s[0:1], 64")
    a("s_waitcnt lgkmcnt(0) vmcnt(0)")
    a(f"s_memtime s[{64+2*(nst-2)}:{65+2*(nst-2)}]")
    a(f"s_memrealtime s[{64+2*(nst-1)}:{65+2*(nst-1)}]")
    a("s_waitcnt lgkmcnt(0)")
    a("s_mov_b32 s90, 0x8000000")
    a("s_mov_b32 s91, 0x00020000")
    a("s_lshl_b32 s92, s2, 3")
    a(f"s_add_u32 s92, s92, {wave_sgpr}")
    a("s_lshl_b32 s92, s92, 6")
    a(f"s_add_u32 s92, s92, {(64+kidx) << 20}")
    a("v_mov_b32 v2, 0")
    for n in range(nst):
        a(f"v_mov_b32 v3, s{64+2*n}")
        a(f"buffer_store_dword v3, v2, s[88:91], s92 offen offset:{4*n}")
        a("s_nop 1")
    if OPT["dbg"] == "3" and kidx == 2:
        _cp[0] += 1
        sk = f"Ldbg{_cp[0]}"
        a("s_lshl_b32 s92, s2, 3")
        a(f"s_add_u32 s92, s92, {wave_sgpr}")
        a(f"s_cmp_lg_u32 s92, {OPT['dk']}")
        a(f"s_cbranch_scc1 {sk}")
        a(f"s_add_u32 s88, s88, {(64 << 20) + int(OPT['dk'])*64}")
        a("s_addc_u32 s89, s89, 0")
        a("s_load_dwordx8 s[40:47], s[88:89], 0")
        a("s_add_u32 s88, s88, 0x100000")
        a("s_addc_u32 s89, s89, 0")
        a("s_load_dwordx8 s[48:55], s[88:89], 0")
        a("s_load_dwordx2 s[88:89], s[0:1], 56")
        a("s_waitcnt lgkmcnt(0)")
        a("s_mov_b32 s90, 64")
        k = 0
        for b, st in ((40, 1), (48, 1), (64, 2)):
            for n, ref in ((3, b), (4, b), (6, b), (1, 41), (7, 41)):
                a(f"s_sub_u32 s93, s{b+st*n}, s{ref}")
                a("v_mov_b32 v3, s93")
                a(f"buffer_store_dword v3, v2, s[88:91], 0 offen offset:{4*k}")
                a("s_nop 1")
                k += 1
        if OPT["spin"] != "":
            q, mult, unit = OPT["spin"].split(",")
            x, y = q.split("-")
            a(f"s_sub_u32 s93, s{x}, s{y}")
            a(f"s_mul_i32 s93, s93, {mult}")
            ins = "s_memrealtime" if unit == "r" else "s_memtime"
            a(f"{ins} s[60:61]")
            a("s_waitcnt lgkmcnt(0)")
            a.lab(sk + "s")
            a(f"{ins} s[62:63]")
            a("s_waitcnt lgkmcnt(0)")
            a("s_sub_u32 s62, s62, s60")
            a("s_cmp_lt_u32 s62, s93")
            a(f"s_cbranch_scc1 {sk}s")
        a.lab(sk)

def codepf(a, start, end, vtmp, lane="v0"):
    if OPT["cpf"] != "1": return
    _cp[0] += 1
    l = f"Lcp{_cp[0]}"
    a("s_getpc_b64 s[56:57]")
    a.lab(l)
    a(f"s_add_u32 s56, s56, {start}-{l}")
    a(f"s_addc_u32 s57, s57, ({start}-{l})>>32")
    a(f"v_lshlrev_b32 v{vtmp}, 7, {lane}")
    a(f"v_min_u32 v{vtmp}, {end}-{start}-4, v{vtmp}")
    a(f"global_load_dword v{vtmp}, v{vtmp}, s[56:57]")

def head(a, name):
    a.raw(f".globl {name}\n.p2align 8\n.type {name},@function\n{name}:")

def srd(a, d, base, nbytes):
    a(f"s_mov_b32 s{d}, s{base}")
    a(f"s_mov_b32 s{d+1}, s{base+1}")
    a(f"s_mov_b32 s{d+2}, {nbytes:#x}")
    a(f"s_mov_b32 s{d+3}, 0x00020000")

def place(main, fill, per=2, start=0):
    out = []; k = 0
    for i, m in enumerate(main):
        out.append(m)
        if i >= start:
            out += fill[k:k+per]; k += per
    out += fill[k:]
    return out

def sched(M, rd, d, post, late, late_dma=False):
    n = len(M)
    gaps = [[] for _ in range(n)]
    if late_dma: rg = list(range(len(rd))); dg = [len(rd) + 2*k for k in range(len(d))]
    else:
        dg = [1 + 4*k for k in range(len(d))]; rg = [g for g in range(n) if g not in dg][:len(rd)]
    for g, t in zip(rg, rd): gaps[g].append(t)
    for g, (m_, l_) in zip(dg, d):
        gaps[g-1].append(m_); gaps[g].append(l_)
    def runs(ops):
        out = []
        for t in ops:
            if t.startswith("s_cselect") : out[-1].append(t)
            else: out.append([t])
        return out
    def put(run, g0):
        g = g0
        while g < n - 1 and len(gaps[g]) + len(run) > 3: g += 1
        gaps[g] += run
        return g
    g = (dg[len(d)-1] if d else 0)
    for r in runs(post): g = put(r, g)
    g = 0
    for r in runs(late):
        if r[0].startswith("v_"): g = max(g, rg[-1] if rg else 0)
        g = put(r, g)
    seq = []
    for i, m_ in enumerate(M):
        seq.append(m_); seq += gaps[i]
    return seq

def k1():
    a = A(); N = "qkv_kernel"
    head(a, N)
    XS, WS, WSL = 32768, 98304, 12288
    VD, VXB, VXA, VWB, VWA, VST, VPX, VPW, VPD = 10, 18, 20, 22, 24, 26, 27, 28, 29
    F = [32, 72]; ACC = 112; NV = 208
    PF = OPT["pf1"] == "1"
    DLT = int(OPT["dlt"])
    def A_(f, mt): return F[f] + 4*mt
    def B_(f, nb): return F[f] + 16 + 4*nb
    def acc(mt, nb): return ACC + (mt*6 + nb)*4
    a("s_cmp_ge_u32 s2, 256")
    a("s_cbranch_scc1 L1_end")
    stamp(a, 0); rstamp(a, 1)
    a("s_and_b32 s20, s2, 7")
    a("s_lshr_b32 s21, s2, 3")
    a("s_lshr_b32 s22, s20, 2")
    a("s_mul_i32 s23, s22, 24")
    a("s_load_dwordx4 s[4:7], s[0:1], s23")
    a("s_load_dwordx2 s[36:37], s[0:1], 64")
    a("v_lshrrev_b32 v1, 6, v0")
    a("v_and_b32 v0, 63, v0")
    a("v_readfirstlane_b32 s26, v1")
    a("s_and_b32 s24, s20, 1")
    a("s_lshl_b32 s24, s24, 2")
    a("s_and_b32 s25, s21, 3")
    a("s_add_u32 s24, s24, s25")
    a("s_bfe_u32 s25, s20, 0x10001")
    a("s_lshl_b32 s25, s25, 3")
    a("s_lshr_b32 s27, s21, 2")
    if OPT["nx"] != "0": a(f"s_xor_b32 s27, s27, {OPT['nx']}")
    a("s_add_u32 s25, s25, s27")
    a("s_and_b32 s31, s26, 3")
    a("s_lshr_b32 s32, s26, 2")
    PH = OPT["ph"]
    if PH == "0": a("s_mov_b32 s44, 0")
    elif PH == "1":
        a("s_lshl_b32 s44, s20, 1")
    elif PH == "2":
        a("s_lshl_b32 s44, s20, 1")
        a("s_and_b32 s45, s21, 1")
        a("s_add_u32 s44, s44, s45")
    elif PH == "3":
        a("s_lshl_b32 s44, s22, 1")
        a("s_and_b32 s45, s20, 1")
        a("s_add_u32 s44, s44, s45")
        a("s_lshl_b32 s44, s44, 2")
        a("s_and_b32 s45, s21, 3")
        a("s_add_u32 s44, s44, s45")
    elif PH == "4":
        a("s_lshl_b32 s44, s22, 1")
        a("s_and_b32 s45, s20, 1")
        a("s_add_u32 s44, s44, s45")
        a("s_lshl_b32 s44, s44, 2")
    a("v_lshrrev_b32 v2, 3, v0")
    a("v_and_b32 v3, 7, v0")
    a("v_lshrrev_b32 v4, 4, v0")

    def rdA(f, ks, mt): return [f"ds_read_b128 {vr(A_(f,mt))}, v{VXA+ks} offset:{mt*2048}"]
    def rdB(f, nb):
        o = (nb//2)*4096
        return [f"ds_read_b64_tr_b16 {vr(B_(f,nb),2)}, v{VWA+nb%2} offset:{o}",
                f"ds_read_b64_tr_b16 {vr(B_(f,nb)+2,2)}, v{VWA+nb%2} offset:{o+512}"]
    def reads(f, ks):
        r = rdB(f, 0)
        for mt in range(4): r += rdA(f, ks, mt)
        for nb in range(1, 6): r += rdB(f, nb)
        return r
    def mm(f):
        r = []
        for nb in range(6):
            for mt in range(4):
                if nb < 4: r.append(mfma16(acc(mt, nb), B_(f, nb), A_(f, mt)))
                else:      r.append(mfma16(acc(mt, nb), A_(f, mt), B_(f, nb)))
        return r

    def common_setup():
        srd(a, 16, 36, WS_BYTES)
        a("v_and_b32 v2, 15, v0")
        a("v_lshrrev_b32 v3, 4, v0")
        a("v_bfe_u32 v4, v0, 1, 3")
        a("s_lshl_b32 s33, s31, 13")
        a("v_lshlrev_b32 v5, 7, v2")
        a("v_add_u32 v5, s33, v5")
        a("v_xor_b32 v6, v3, v4")
        a(f"v_lshl_add_u32 v{VXB}, v6, 4, v5")
        a(f"v_xor_b32 v{VXB+1}, 64, v{VXB}")
        a(f"v_mov_b32 v{VXA}, v{VXB}")
        a(f"v_mov_b32 v{VXA+1}, v{VXB+1}")
        a("v_bfe_u32 v4, v0, 2, 2")
        a("v_lshl_add_u32 v4, v3, 3, v4")
        a("v_lshlrev_b32 v4, 7, v4")
        a("v_and_b32 v6, 3, v0")
        a("v_lshl_add_u32 v4, v6, 3, v4")
        a("v_bfe_u32 v5, v0, 3, 2")
        a("s_lshl_b32 s33, s32, 1")
        a("v_xor_b32 v5, s33, v5")
        a(f"v_lshl_add_u32 v{VWB}, v5, 5, v4")
        a(f"v_xor_b32 v{VWB+1}, 32, v{VWB}")
        a(f"v_add_u32 v{VWA}, {WS}, v{VWB}")
        a(f"v_add_u32 v{VWA+1}, {WS}, v{VWB+1}")
        a("v_lshlrev_b32 v4, 4, v2")
        a(f"v_lshl_add_u32 v{VST}, v3, 9, v4")
        for i in range(96): a(f"v_mov_b32 v{ACC+i}, 0")
        a("s_lshl_b32 s40, s22, 22")
        a("s_lshl_b32 s41, s25, 1")
        a("s_add_u32 s41, s41, s32")
        a("s_lshl_b32 s41, s41, 17")
        a("s_add_u32 s40, s40, s41")
        a("s_lshl_b32 s41, s24, 14")
        a("s_add_u32 s40, s40, s41")
        a("s_lshl_b32 s41, s31, 12")
        a("s_add_u32 s40, s40, s41")
        a(f"s_add_u32 s41, s40, {KF}")
        a(f"s_add_u32 s42, s40, {VF}")
        a(f"s_mov_b32 s43, {QSCALE:#x}")
        a("s_mov_b32 s33, 0")
        a(f"s_mov_b32 s34, {WS}")
        a("s_mov_b32 s35, 0")

    wupd = [f"s_add_u32 s34, s34, {WSL}", f"s_cmp_eq_u32 s34, {WS+5*WSL}", f"s_cselect_b32 s34, {WS}, s34",
            f"v_add_u32 v{VWA}, s34, v{VWB}", f"v_add_u32 v{VWA+1}, s34, v{VWB+1}", "s_add_u32 s35, s35, 1"]
    xupd = [f"s_add_u32 s33, s33, {XS}", f"s_cmp_eq_u32 s33, {3*XS}", "s_cselect_b32 s33, 0, s33",
            f"v_add_u32 v{VXA}, s33, v{VXB}", f"v_add_u32 v{VXA+1}, s33, v{VXB+1}"]

    def mix(dma, other):
        out = []; o = list(other)
        for m, l in dma:
            out.append(m)
            out.append(o.pop(0) if o else "s_nop 0")
            out.append(l)
        return out + o

    def event(tag):
        a.lab(tag)
        a("s_mov_b32 s49, 0x7fff")
        if OPT["cpf"] == "1":
            a("s_cmp_eq_u32 s31, 3")
            a(f"s_cbranch_scc1 {tag}c")
        a(f"buffer_load_dword v{VPD}, v{VPW}, s[12:15], s50 offen")
        a(f"s_branch {tag}r")
        if OPT["cpf"] == "1":
            a.lab(tag + "c")
            codepf(a, NAME + "_kernel", "L2_help", 31)
            codepf(a, "L2_help", "L2_slow0", 9)
            if OPT["tlb"] == "1":
                a("v_lshlrev_b32 v30, 21, v0")
                a("buffer_load_dword v30, v30, s[16:19], 0 offen")
            a(f"s_branch {tag}r")

    a("s_cmp_lg_u32 s32, 0")
    a("s_cbranch_scc1 L1_W")
    for cls in ("X", "W"):
        P = "L1" + cls
        if cls == "X":
            a("v_lshlrev_b32 v5, 11, v2")
            a("v_xor_b32 v6, v3, v4")
            a("v_lshl_add_u32 v6, v6, 4, v5")
            a("v_xor_b32 v7, 64, v6")
            a(f"v_mov_b32 v{VD}, v6")
            a(f"v_add_u32 v{VD+1}, 16384, v7")
            a(f"v_add_u32 v{VD+2}, 32768, v6")
            a(f"v_add_u32 v{VD+3}, 49152, v7")
            a("s_lshl_b32 s27, s24, 19")
            a("s_lshl_b32 s28, s31, 16")
            a("s_add_u32 s45, s27, s28")
            a("s_lshl_b32 s46, s44, 7")
            a("s_add_u32 s27, s45, s46")
            a("s_add_u32 s28, s27, 0x40000")
            a("s_lshl_b32 s29, s31, 12")
            a(f"s_add_u32 s30, s29, {6*16384}")
            a("s_waitcnt lgkmcnt(0)")
            if OPT["s2e"] == "1": stamp(a, 2)
            srd(a, 8, 4, 4 << 20)
            def grp(par):
                so = "s27" if par == 0 else "s28"
                d = [(f"s_add_u32 m0, s29, {j*1024}", f"buffer_load_dwordx4 v{VD+j}, s[8:11], {so} offen lds") for j in range(4)]
                post = ["s_add_u32 s29, s29, 16384"]
                if par == 0: post += ["s_add_u32 s46, s46, 128", "s_and_b32 s46, s46, 0x7ff", "s_add_u32 s27, s45, s46"]
                if par == 1: post += ["s_add_u32 s28, s27, 0x40000", "s_cmp_eq_u32 s29, s30", f"s_cselect_b32 s38, {6*16384}, 0", "s_sub_u32 s29, s29, s38"]
                return d, post
            NG = 4
        else:
            a.lab("L1_W")
            if OPT["cpf"] == "1":
                a("s_cmp_lg_u32 s26, 7")
                a("s_cbranch_scc1 L1_nocp")
                codepf(a, "qkv_kernel", "L1_end", VPD)
                a.lab("L1_nocp")
            a("v_mul_u32_u24 v5, 6144, v2")
            a("v_and_b32 v6, 1, v4")
            a("v_lshlrev_b32 v6, 1, v6")
            a("s_and_b32 s33, s26, 1")
            a("s_lshl_b32 s33, s33, 2")
            a("v_xor_b32 v6, v3, v6")
            a("v_xor_b32 v6, s33, v6")
            a(f"v_lshl_add_u32 v{VD}, v6, 4, v5")
            a(f"v_add_u32 v{VD+1}, 2048, v{VD}")
            a(f"v_add_u32 v{VD+2}, 4096, v{VD}")
            if PF:
                a(f"v_mul_u32_u24 v{VPW}, 6144, v0")
                a("v_cmp_gt_u32 vcc, 32, v0")
                a("v_mov_b32 v7, 0x7fffff00")
                a("s_lshl_b32 s50, s20, 2")
                a(f"v_cndmask_b32 v{VPW}, v7, v{VPW}, vcc")
                a("s_add_u32 s50, s50, s21")
                a("s_and_b32 s50, s50, 31")
                a(f"s_mul_i32 s50, s50, {32*6144}")
                a("s_lshl_b32 s51, s31, 11")
                a("s_add_u32 s50, s50, s51")
                a("s_bfe_u32 s51, s20, 0x10001")
                a("s_lshl_b32 s51, s51, 10")
                a("s_add_u32 s50, s50, s51")
                a("s_add_u32 s50, s50, 384")
                a(f"s_max_u32 s49, s21, {4+DLT}")
                a(f"s_sub_u32 s49, s49, {4+DLT}")
                a("s_cmp_lt_u32 s21, 5")
                a("s_cselect_b32 s49, 0x7fff, s49")
                a("s_cmp_eq_u32 s31, 3")
                a(f"s_cselect_b32 s49, {26 if OPT['cpf'] == '1' else 0x7fff}, s49")
            a("s_lshl_b32 s27, s25, 7")
            a(f"s_mul_i32 s28, s31, {8*6144}")
            a("s_add_u32 s27, s27, s28")
            a(f"s_mul_i32 s28, s44, {64*6144}")
            a("s_add_u32 s27, s27, s28")
            a("s_lshl_b32 s29, s31, 10")
            a(f"s_add_u32 s29, s29, {WS}")
            a(f"s_add_u32 s30, s29, {5*WSL}")
            a("s_waitcnt lgkmcnt(0)")
            if OPT["s2e"] == "1": stamp(a, 2)
            srd(a, 12, 6, 6 << 20)
            def grp(par):
                d = [(f"s_add_u32 m0, s29, {g*4096}", f"buffer_load_dwordx4 v{VD+g}, s[12:15], s27 offen lds") for g in range(3)]
                post = [f"s_add_u32 s27, s27, {32*6144}", f"s_add_u32 s29, s29, {WSL}",
                        "s_cmp_eq_u32 s29, s30", f"s_cselect_b32 s38, {5*WSL}, 0", "s_sub_u32 s29, s29, s38"]
                if par == 1: post += [f"s_cmp_ge_u32 s27, {6<<20:#x}", f"s_cselect_b32 s38, {6<<20:#x}, 0", "s_sub_u32 s27, s27, s38"]
                return d, post
            NG = 3
        def emit_grp(par):
            d, post = grp(par)
            for t in mix(d, []) + post: a(t)
        first = 2 if cls == "X" else 1
        for n in range(first): emit_grp(n & 1)
        common_setup()
        for n in range(first, 4): emit_grp(n & 1)
        npf = 0
        if cls == "W" and PF:
            a("s_cmp_eq_u32 s49, 0")
            a(f"s_cbranch_scc1 {P}_e0")
            a.lab(f"{P}_e0r")
        if OPT["s2e"] != "1": stamp(a, 2)
        a(f"s_waitcnt vmcnt({(4-first)*NG + npf})")
        a("s_barrier")
        stamp(a, 3)
        if cls == "X":
            a(f"v_lshlrev_b32 v8, {OPT['fsh']}, v0")
            a("v_mov_b32 v9, 0")
            a(f"s_lshl_b32 s47, s2, {int(OPT['fsh'])+3}")
            a(f"s_add_u32 s47, s47, {32 << 20}")
            a("s_cmp_eq_u32 s31, 0")
            a("s_cselect_b64 exec, 0xff, 0")
            a("s_cbranch_execz L1_nofl")
            a("buffer_store_dword v9, v8, s[16:19], s47 offen sc1")
            a.lab("L1_nofl")
            a("s_mov_b64 exec, -1")
        d, post = grp(0)
        for t in reads(0, 0) + mix(d, []) + post + wupd: a(t)
        if cls == "W": a(f"s_waitcnt vmcnt({3*NG + npf})")
        a("s_waitcnt lgkmcnt(0)")
        a("s_barrier")
        a(f"s_branch {P}_odd")
        a.raw(".p2align 6")
        a.lab(f"{P}_loop")
        for par in range(2):
            if par == 1: a.lab(f"{P}_odd")
            d, post = grp(par)
            rd = reads(par, par)
            tail = list(post) + wupd
            if par == 1:
                tail += xupd
                sup = ["s_cmp_lt_u32 s35, 28", f"s_cselect_b32 s10, {4<<20:#x}, 0" if cls == "X" else f"s_cselect_b32 s14, {6<<20:#x}, 0"]
                tail += sup; post = list(post) + sup
            X = OPT["k1x"]
            if "d" in X: d = []
            if "r" in X: rd = []
            fill = rd[:8] + mix(d, rd[8:]) + tail
            if "o" not in X:
                late = [t for t in tail if t not in post]
                late = [t for t in late if not t.startswith("v_")] + [t for t in late if t.startswith("v_")]
                seq = sched(mm(1-par), rd, d, list(post), late, late_dma=("l" in X))
            elif "1" in X: seq = place(mm(1-par), fill, 2, 2)
            elif "3" in X: seq = place(mm(1-par), fill, 3, 0)
            elif "f" in X: seq = rd[:4] + place(mm(1-par), fill[4:], 2, 0)
            else: seq = place(mm(1-par), fill, 2, 0)
            if "p" in X: seq = ["s_setprio 1"] + seq[:len(seq)-8] + ["s_setprio 0"] + seq[len(seq)-8:]
            if "P" in X and cls == "W": seq = ["s_setprio 1"] + seq
            for t in seq: a(t)
            if cls == "W" and PF:
                a("s_cmp_ge_u32 s35, s49")
                a(f"s_cbranch_scc1 {P}_e{par+1}")
                a.lab(f"{P}_e{par+1}r")
            if par == 1: a("s_cmp_lt_u32 s35, 32")
            if cls == "W": a(f"s_waitcnt vmcnt({3*NG}) lgkmcnt(0)")
            elif par == 1: a(f"s_waitcnt vmcnt({2*NG}) lgkmcnt(0)")
            else: a("s_waitcnt lgkmcnt(0)")
            if "b" not in X and not ("h" in X and par == 0): a("s_barrier")
        if OPT["trip"] == "1":
            a("s_cselect_b32 s62, 1, 0")
            a("s_cmp_lg_u32 s35, 4")
            a(f"s_cbranch_scc1 {P}_t1")
            stamp(a, 2)
            a.lab(f"{P}_t1")
            a("s_cmp_lg_u32 s62, 0")
        a(f"s_cbranch_scc1 {P}_loop")
        a("s_branch L1_epi")
        if cls == "W" and PF:
            for k in range(3): event(f"{P}_e{k}")
    a.lab("L1_epi")
    for t in mm(1): a(t)
    stamp(a, 4)
    a("s_nop 4")
    n = 0
    jobs = []
    for T in range(2):
        for sg in range(2): jobs.append((1, acc(2*T+sg, 2), acc(2*T+sg, 3), T*2048 + sg*256))
    for T in range(2):
        for sg in range(2): jobs.append((0, acc(2*T+sg, 0), acc(2*T+sg, 1), T*2048 + sg*256))
    for T in range(2):
        for u in range(2):  jobs.append((2, acc(2*T, 4+u), acc(2*T+1, 4+u), T*2048 + u*256))
    for seg, b0, b1, off in jobs:
        t0 = F[0] + 4*(n % 8); n += 1
        if seg == 0:
            for b in (b0, b1):
                for r in range(4): a(f"v_mul_f32 v{b+r}, s43, v{b+r}")
        a(f"v_cvt_pk_bf16_f32 v{t0}, v{b0}, v{b0+1}")
        a(f"v_cvt_pk_bf16_f32 v{t0+1}, v{b0+2}, v{b0+3}")
        a(f"v_cvt_pk_bf16_f32 v{t0+2}, v{b1}, v{b1+1}")
        a(f"v_cvt_pk_bf16_f32 v{t0+3}, v{b1+2}, v{b1+3}")
        a(f"buffer_store_dwordx4 {vr(t0)}, v{VST}, s[16:19], s{40+seg} offen offset:{off}{OPT['st1']}")
    stamp(a, 5)
    dump(a, 0, "s26")
    a.lab("L1_end")
    a("s_endpgm")
    return a.text(), kd(N, NV), f"; @launch kernel={N} grid=(256,1,1) block=(512,1,1) lds=159744"

def kperm(rho):
    return ((rho >> 2) & 1) * 16 + (rho >> 3) * 4 + (rho & 3)

FL = 32 << 20
SLOTS = [131072, 0, 65536, 32768, 98304]
FSH = int(OPT['fsh'])

def k2():
    a = A(); N = NAME + "_kernel"
    head(a, N)
    VL16, VKA, VVA, VIDX, VM, VT, VKL = 1, 2, 3, 4, 5, 6, 7
    ONES = 8; Q = [12, 20]; NEG = [28, 44]; O = [60, 76]; L = [92, 96]; KB = [100, 108]; VB = [116, 124]; S = [132, 148, 164, 180]
    NV = 200
    PF = OPT["pf3"] == "1"
    def sm32(d, av, b): return f"v_smfmac_f32_32x32x32_bf16 {vr(d,16)}, {vr(av)}, {vr(b,8)}, v{VIDX}"
    def sm16(l, b): return f"v_smfmac_f32_16x16x64_bf16 {vr(l)}, {vr(ONES)}, {vr(b,8)}, v{VIDX}"
    def ld(d, soff, off=0, v=VL16): a(f"buffer_load_dwordx4 {vr(d)}, v{v}, s[8:11], {soff} offen offset:{off}")
    def xhalf_max():
        a(f"v_max_f32 v{VM}, v{VM}, v{VT}")
        a("s_nop 0")
        a(f"v_mov_b32 v{VT}, v{VM}")
        a("s_nop 1")
        a(f"v_permlane32_swap_b32 v{VM}, v{VT}")
        a("s_nop 1")
        a(f"v_max_f32 v{VM}, v{VM}, v{VT}")
    def maxof(vals):
        a(f"v_max3_f32 v{VM}, v{vals[0]}, v{vals[1]}, v{vals[2]}")
        a(f"v_max3_f32 v{VT}, v{vals[3]}, v{vals[4]}, v{vals[5]}")
        for i in range(6, len(vals) - 2, 4):
            a(f"v_max3_f32 v{VM}, v{VM}, v{vals[i]}, v{vals[i+1]}")
            a(f"v_max3_f32 v{VT}, v{VT}, v{vals[i+2]}, v{vals[i+3]}")
        a(f"v_max3_f32 v{VM}, v{VM}, v{vals[-2]}, v{vals[-1]}")
        xhalf_max()
    def finish(soff, off, T, o, l):
        a(f"v_rcp_f32 v{VT}, v{l}")
        a("s_nop 0")
        for i in range(16): a(f"v_mul_f32 v{o+i}, v{o+i}, v{VT}")
        for i in range(8): a(f"v_cvt_pk_bf16_f32 v{T+i}, v{o+2*i}, v{o+2*i+1}")
        a(f"buffer_store_dwordx4 {vr(T)}, v{VL16}, s[8:11], {soff} offen{OPT['st2']}")
        a(f"buffer_store_dwordx4 {vr(T+4)}, v{VL16}, s[8:11], {soff} offen offset:1024{OPT['st2']}")
    def consts():
        a(f"v_mov_b32 v{VIDX}, 0xdddddddd")
        a("v_bfe_u32 v5, v0, 2, 1")
        a("v_cmp_eq_u32 vcc, 0, v5")
        a("v_mov_b32 v6, 0x3f803f80")
        a("s_nop 0")
        a(f"v_cndmask_b32 v{ONES}, 0, v6, vcc")
        a(f"v_cndmask_b32 v{ONES+1}, 0, v6, vcc")
        a(f"v_cndmask_b32 v{ONES+2}, v6, 0, vcc")
        a(f"v_cndmask_b32 v{ONES+3}, v6, 0, vcc")
    a("s_cmp_ge_u32 s2, 256")
    a("s_cbranch_scc1 L2_end")
    stamp(a, 0); rstamp(a, 1)
    a("s_load_dwordx2 s[4:5], s[0:1], 64")
    a("s_and_b32 s20, s2, 7")
    a("s_lshr_b32 s21, s2, 3")
    a("s_lshr_b32 s60, s21, 4")
    a("s_mul_i32 s22, s60, 24")
    a("s_add_u32 s22, s22, 16")
    a("s_load_dwordx2 s[6:7], s[0:1], s22")
    a("s_load_dwordx2 s[58:59], s[0:1], 48")
    a("v_lshrrev_b32 v1, 6, v0")
    a("v_and_b32 v0, 63, v0")
    a("v_readfirstlane_b32 s24, v1")
    a("s_lshl_b32 s22, s20, 2")
    a("s_lshr_b32 s23, s21, 3")
    a("s_add_u32 s22, s22, s23")
    a("s_and_b32 s23, s21, 7")
    a(f"v_lshlrev_b32 v{VL16}, 4, v0")
    a("s_and_b32 s28, s24, 3")
    a("s_lshl_b32 s25, s23, 3")
    a("s_lshl_b32 s29, s28, 1")
    a("s_add_u32 s25, s25, s29")
    a("s_lshl_b32 s26, s22, 17")
    a("s_lshl_b32 s27, s25, 11")
    a("s_add_u32 s27, s27, s26")
    a("v_bfe_u32 v5, v0, 2, 1")
    a("v_and_b32 v6, 0x23, v0")
    a("v_lshl_or_b32 v6, v5, 4, v6")
    a("v_bfe_u32 v5, v0, 3, 2")
    a("v_lshl_or_b32 v6, v5, 2, v6")
    a(f"v_lshlrev_b32 v{VKL}, 4, v6")
    a(f"s_add_u32 s33, s26, {KF}")
    a("s_lshl_b32 s37, s25, 16")
    a("s_lshl_b32 s38, s22, 11")
    a("s_add_u32 s37, s37, s38")
    a(f"s_add_u32 s37, s37, {OF}")
    a("s_lshr_b32 s61, s20, 1")
    a("s_lshl_b32 s61, s61, 2")
    a("s_and_b32 s62, s21, 3")
    a("s_add_u32 s61, s61, s62")
    a("s_and_b32 s62, s20, 1")
    a("s_lshl_b32 s62, s62, 2")
    a("s_bfe_u32 s63, s21, 0x20002")
    a("s_add_u32 s62, s62, s63")
    if OPT["fm"] == "w": a("s_lshl_b32 s63, s25, 4")
    else: a("s_lshl_b32 s63, s23, 5")
    a("s_add_u32 s63, s63, s22")
    a(f"s_lshl_b32 s63, s63, {FSH}")
    a(f"s_add_u32 s63, s63, {FL}")
    a("s_cmp_ge_u32 s24, 4")
    a("s_cbranch_scc1 L2_help")
    a("s_waitcnt lgkmcnt(0)")
    srd(a, 8, 4, WS_BYTES)
    ld(Q[0], "s27"); ld(KB[0], "s33", 0, VKL); ld(Q[0]+4, "s27", 1024); ld(KB[0]+4, "s33", 1024, VKL)
    ld(Q[1], "s27", 2048); ld(Q[1]+4, "s27", 3072)
    ld(KB[1], "s33", 2048, VKL); ld(KB[1]+4, "s33", 3072, VKL)
    consts()
    a("s_add_u32 s38, s37, 0x10000")
    a(f"v_mov_b32 v{VKA}, v{VKL}")
    a(f"v_add_u32 v{VVA}, 0x10000, v{VL16}")
    for i in range(40): a(f"v_mov_b32 v{O[0]+i}, 0")
    for i in range(16): a(f"v_mov_b32 v{S[3]+i}, 0")
    for i in range(8): a(f"v_mov_b32 v{VB[1]+i}, 0")
    a("s_mov_b32 s39, 0")
    a("s_mov_b32 s40, 0")
    if OPT["pst"] != "1": stamp(a, 2)
    a("s_waitcnt vmcnt(4)")
    a(mfma(S[0], KB[0], Q[0], "0")); a(mfma(S[0], KB[0]+4, Q[0]+4))
    a("s_waitcnt vmcnt(2)")
    a(mfma(S[1], KB[0], Q[1], "0")); a(mfma(S[1], KB[0]+4, Q[1]+4))
    if OPT["pst"] != "1": stamp(a, 3)
    a("s_nop 8")
    maxof([S[0]+r for r in range(16)])
    for i in range(16): a(f"v_sub_f32 v{NEG[0]+i}, 0, v{VM}")
    for i in range(16): a(f"v_sub_f32 v{S[0]+i}, v{S[0]+i}, v{VM}")
    maxof([S[1]+r for r in range(16)])
    for i in range(16): a(f"v_sub_f32 v{NEG[1]+i}, 0, v{VM}")
    a("s_waitcnt vmcnt(0)")
    a("s_barrier")
    if OPT["pst"] != "1": stamp(a, 4)
    if OPT["tlb"] == "1": a(f"buffer_load_dword v196, v{VL16}, s[8:11], s37 offen")
    a("s_branch L2_it3")

    def item(p, qk=True, rd=True, pre=None, post=None):
        n = (p - 3) % 16
        i = n >> 1; qt = n & 1
        Sn, Sc, Sp = S[(n+1) % 4], S[n % 4], S[(n-1) % 4]
        qn = (n+1) & 1; kbu = KB[((n+1) >> 1) % 2]
        qp = (n-1) & 1; vbu = VB[((n-1) >> 1) % 2]
        if qt == 1:
            kt = (i + 2) % 8
            r = [f"ds_read_b128 {vr(KB[i % 2])}, v{VKA} offset:{kt*2048}", f"ds_read_b128 {vr(KB[i % 2]+4)}, v{VKA} offset:{kt*2048+1024}"]
        else:
            r = [f"ds_read_b128 {vr(VB[i % 2])}, v{VVA} offset:{i*2048}", f"ds_read_b128 {vr(VB[i % 2]+4)}, v{VVA} offset:{i*2048+1024}"]
        if not rd or "r" in OPT["k2x"]: r = []
        ex = [f"v_exp_f32 v{Sc+k}, v{Sc+k}" for k in range(16)]
        post = list(post or [])
        seq = []
        if qk: seq.append(mfma(Sn, kbu, Q[qn], NEG[qn]))
        seq += post[0:1] + ex[0:3]
        if qk: seq.append(mfma(Sn, kbu+4, Q[qn]+4))
        seq += ["s_waitcnt lgkmcnt(0)"] + list(pre or []) + ex[3:6]
        seq.append(sm32(O[qp], vbu, Sp))
        seq += r[:1] + ex[6:9]
        seq.append(sm16(L[qp], Sp))
        seq += post[1:3] + ex[9:10]
        seq.append(sm32(O[qp], vbu+4, Sp+8))
        seq += r[1:] + ex[10:13]
        seq.append(sm16(L[qp], Sp+8))
        seq += post[3:] + ex[13:16]
        for t in seq: a(t)

    a.raw(".p2align 6")
    a.lab("L2_loop")
    item(0, pre=["s_barrier", f"v_add_u32 v{VKA}, s40, v{VKL}"])
    item(1); item(2)
    a(f"v_add_u32 v{VVA}, s41, v{VL16}")
    a.lab("L2_it3")
    for p in range(3, 15): item(p)
    item(15, post=["s_add_u32 s40, s40, 16384", "s_and_b32 s40, s40, 0xffff", "s_add_u32 s41, s40, 0x10000", "s_add_u32 s39, s39, 1", "s_cmp_lt_u32 s39, 8"])
    if OPT["trip"] != "0":
        a("s_cselect_b32 s57, 1, 0")
        for n, tr in zip((2, 3, 4), OPT["trip"].split(",")):
            a(f"s_cmp_lg_u32 s39, {int(tr)+1}")
            a(f"s_cbranch_scc1 L2_t{n}")
            stamp(a, n)
            a.lab(f"L2_t{n}")
        a("s_cmp_lg_u32 s57, 0")
    a("s_cbranch_scc1 L2_loop")
    item(0, rd=False)
    item(1)
    item(2, qk=False, rd=False)
    a("s_nop 1")
    Sp = S[3]
    a(sm32(O[1], VB[1], Sp)); a(sm16(L[1], Sp)); a(sm32(O[1], VB[1]+4, Sp+8)); a(sm16(L[1], Sp+8))
    a("s_nop 4")
    stamp(a, 5)
    for qt in range(2):
        a(f"v_mul_f32 v{VM}, 0, v{O[qt]}")
        for i in range(1, 16): a(f"v_fma_f32 v{VM}, v{O[qt]+i}, 0, v{VM}")
        a(f"v_add_f32 v{VM}, v{VM}, v{L[qt]}")
        a(f"v_mov_b32 v{VT}, {f2u(2.0**64):#x}")
        a(f"v_cmp_nlt_f32 vcc, v{VM}, v{VT}")
        a("s_nop 4")
        a(f"s_cbranch_vccnz L2_slow{qt}")
        a.lab(f"L2_fin{qt}")
        finish("s37" if qt == 0 else "s38", 0, S[1+qt], O[qt], L[qt])
    VOB, VOA, VWB, VWA, VST = 10, 11, 12, 16, 20
    F = [24, 56]; ACC = 88
    def Of(f, mt): return F[f] + 4*mt
    def Wf(f, nb): return F[f] + 16 + 4*nb
    def acc(mt, nb): return ACC + (mt*4 + nb)*4
    a("s_and_b32 s31, s24, 1")
    a("s_lshr_b32 s32, s24, 1")
    a("v_and_b32 v2, 15, v0")
    a("v_lshrrev_b32 v3, 4, v0")
    a("s_lshl_b32 s33, s31, 13")
    a("v_lshlrev_b32 v4, 4, v2")
    a("v_lshl_add_u32 v4, v3, 9, v4")
    a(f"v_add_u32 v{VOB}, s33, v4")
    a(f"v_add_u32 v{VOA}, {SLOTS[0]}, v{VOB}")
    a("v_bfe_u32 v4, v0, 2, 3")
    a("v_lshrrev_b32 v5, 5, v0")
    a("v_lshl_add_u32 v5, v5, 4, v4")
    a("v_lshlrev_b32 v5, 8, v5")
    a("v_and_b32 v6, 3, v0")
    a("v_lshl_add_u32 v5, v6, 3, v5")
    a("v_add_u32 v5, 16384, v5")
    a("s_lshl_b32 s33, s32, 2")
    a("v_xor_b32 v4, s33, v4")
    a(f"v_lshl_add_u32 v{VWB}, v4, 5, v5")
    for nb in range(1, 4): a(f"v_xor_b32 v{VWB+nb}, {nb*32}, v{VWB}")
    for nb in range(4): a(f"v_add_u32 v{VWA+nb}, {SLOTS[0]}, v{VWB+nb}")
    for i in range(64): a(f"v_mov_b32 v{ACC+i}, 0")
    for i in range(5): a(f"s_mov_b32 s{44+i}, {SLOTS[(i+1) % 5]}")
    a("s_mov_b32 s35, 0")
    srd(a, 16, 58, 8 << 20)
    a("s_lshl_b32 s40, s61, 19")
    a("s_lshl_b32 s41, s31, 18")
    a("s_add_u32 s40, s40, s41")
    a("s_lshl_b32 s41, s60, 11")
    a("s_add_u32 s40, s40, s41")
    a("s_lshl_b32 s41, s62, 8")
    a("s_add_u32 s40, s40, s41")
    a("s_lshl_b32 s41, s32, 7")
    a("s_add_u32 s40, s40, s41")
    def rdO(f, ks, mt): return [f"ds_read_b128 {vr(Of(f,mt))}, v{VOA} offset:{(mt>>1)*4096 + ks*2048 + (mt&1)*256}"]
    def rdW(f, ks, nb): return [f"ds_read_b64_tr_b16 {vr(Wf(f,nb),2)}, v{VWA+nb} offset:{ks*8192}",
                                f"ds_read_b64_tr_b16 {vr(Wf(f,nb)+2,2)}, v{VWA+nb} offset:{ks*8192+2048}"]
    def reads(f, ks):
        return [rdO(f, ks, 0)] + [rdW(f, ks, nb) for nb in range(4)] + [rdO(f, ks, mt) for mt in (1, 2, 3)]
    def mm(f):
        return [mfma16(acc(mt, nb), Wf(f, nb), Of(f, mt)) for mt in range(4) for nb in range(4)]
    a("s_waitcnt vmcnt(0)")
    if OPT["fm"] == "w":
        a("v_mov_b32 v4, 0")
        a("v_mov_b32 v5, 1")
        a("s_mov_b64 exec, 1")
        a("buffer_store_dword v5, v4, s[8:11], s63 offen sc1")
        a("s_mov_b64 exec, -1")
    if OPT["pst"] == "1": stamp(a, 2)
    a("s_barrier")
    if OPT["fm"] != "w": a("s_barrier")
    a("s_barrier")
    if OPT["pst"] == "1": stamp(a, 3)
    flat = lambda g: [t for x in g for t in x]
    def block(f, rd, extra):
        M = mm(f)
        a("s_waitcnt lgkmcnt(3)")
        for i, m_ in enumerate(M):
            if i in (4, 8, 12): a(f"s_waitcnt lgkmcnt({min(15, (2 - (i//4 - 1)) + min(i, len(rd)))})")
            a(m_)
            if i < len(rd): a(rd[i])
            for t in extra.get(i, []): a(t)
    for t in flat(reads(0, 0)): a(t)
    a("s_branch L3_mid")
    a.raw(".p2align 6")
    a.lab("L3_loop")
    block(1, flat(reads(0, 0)), {})
    a.lab("L3_mid")
    block(0, flat(reads(1, 1)), {0: (["s_barrier"] if OPT["la"] == "4" else []) + ["s_mov_b32 s33, s44"], 15: (["s_waitcnt lgkmcnt(0)", "s_barrier"] if OPT["la"] == "5" else []), 1: ["s_mov_b32 s44, s45", "s_mov_b32 s45, s46"],
                                 2: ["s_mov_b32 s46, s47", "s_mov_b32 s47, s48"], 3: ["s_mov_b32 s48, s33"],
                                 5: ["s_add_u32 s35, s35, 1", "s_cmp_lt_u32 s35, 16"],
                                 9: [f"v_add_u32 v{VWA}, s33, v{VWB}"], 10: [f"v_add_u32 v{VWA+1}, s33, v{VWB+1}"],
                                 11: [f"v_add_u32 v{VWA+2}, s33, v{VWB+2}"], 12: [f"v_add_u32 v{VWA+3}, s33, v{VWB+3}"], 13: [f"v_add_u32 v{VOA}, s33, v{VOB}"]})
    a("s_cbranch_scc1 L3_loop")
    block(1, [], {})
    if OPT["pst"] == "1": stamp(a, 4)
    a("s_mul_i32 s41, s24, 9216")
    a("v_mul_u32_u24 v4, 144, v2")
    a("v_lshl_add_u32 v4, v3, 3, v4")
    a("v_add_u32 v4, s41, v4")
    a("v_lshrrev_b32 v5, 3, v0")
    a("v_mul_u32_u24 v6, 144, v5")
    a("v_and_b32 v7, 7, v0")
    a("v_lshl_add_u32 v6, v7, 4, v6")
    a("v_add_u32 v6, s41, v6")
    a("v_lshlrev_b32 v5, 12, v5")
    a(f"v_lshl_add_u32 v{VST}, v7, 4, v5")
    for mt in range(4):
        for nb in range(4):
            b = acc(mt, nb); t0 = F[0] + 2*(mt*4 + nb)
            a(f"v_cvt_pk_bf16_f32 v{t0}, v{b}, v{b+1}")
            a(f"v_cvt_pk_bf16_f32 v{t0+1}, v{b+2}, v{b+3}")
            a(f"ds_write_b64 v4, {vr(t0,2)} offset:{mt*16*144 + nb*32}")
        a(f"ds_read_b128 {vr(F[1]+8*mt)}, v6 offset:{mt*16*144}")
        a(f"ds_read_b128 {vr(F[1]+8*mt+4)}, v6 offset:{mt*16*144 + 8*144}")
        if mt >= 1:
            a("s_waitcnt lgkmcnt(6)")
            for h in range(2):
                a(f"buffer_store_dwordx4 {vr(F[1]+8*(mt-1)+4*h)}, v{VST}, s[16:19], s40 offen{OPT['st3']}")
                a(f"s_add_u32 s40, s40, {8*4096}")
    a("s_waitcnt lgkmcnt(0)")
    for h in range(2):
        a(f"buffer_store_dwordx4 {vr(F[1]+24+4*h)}, v{VST}, s[16:19], s40 offen{OPT['st3']}")
        a(f"s_add_u32 s40, s40, {8*4096}")
    dump(a, 1, "s24")
    a.lab("L2_end")
    a("s_endpgm")

    a.lab("L2_help")
    MC, MP, MP0, SC, SP, OB, LB = 12, 28, 44, 60, 76, [92, 112], [108, 128]
    QB = [132, 140]; KX = [148, 156, 164]; VX = [172, 180, 188]; VPF = 2
    a("s_lshl_b32 s34, s28, 12")
    a("s_add_u32 s35, s33, s34")
    a(f"s_add_u32 s36, s35, {VF-KF}")
    a("s_waitcnt lgkmcnt(0)")
    srd(a, 8, 4, WS_BYTES)
    srd(a, 16, 6, 2 << 20)
    def dma_stage(st):
        for base, so in ((0, "s35"), (65536, "s36")):
            a(f"s_add_u32 m0, s34, {base + (st % 4)*16384}")
            a("s_nop 0")
            for j in range(4):
                a(f"buffer_load_dwordx4 v{VL16}, s[8:11], {so} offen offset:{j*1024} lds")
            a(f"s_add_u32 {so}, {so}, 16384")
    dma_stage(0)
    consts()
    a(f"s_add_u32 s28, s27, {4<<20}")
    a(f"s_add_u32 s29, s28, {KF}")
    a(f"s_add_u32 s30, s28, {VF}")
    a("s_cmp_eq_u32 s25, 0")
    a("s_cselect_b32 s32, 0, 2048")
    a("s_cselect_b64 s[44:45], 0, -1")
    a("s_sub_u32 s31, s29, s32")
    a("s_sub_u32 s32, s30, s32")
    a(f"s_add_u32 s37, s37, {4<<20}")
    a("s_add_u32 s38, s37, 0x10000")
    if PF:
        a("v_lshrrev_b32 v5, 3, v0")
        a("v_lshlrev_b32 v5, 11, v5")
        a("v_and_b32 v6, 7, v0")
        a(f"v_lshl_add_u32 v{VPF}, v6, 7, v5")
        a("v_cmp_gt_u32 vcc, 32, v0")
        a("v_mov_b32 v5, 0x7fffff00")
        a("s_and_b32 s47, s21, 15")
        a("s_lshl_b32 s47, s47, 17")
        a(f"v_cndmask_b32 v{VPF}, v5, v{VPF}, vcc")
        a("s_lshl_b32 s46, s34, 3")
        a("s_add_u32 s47, s47, s46")
        a("s_and_b32 s46, s20, 1")
        a("s_lshl_b32 s46, s46, 10")
        a("s_add_u32 s47, s47, s46")
    def pf():
        if PF:
            a(f"buffer_load_dword v{VPF+1}, v{VPF}, s[16:19], s47 offen")
            a("s_add_u32 s47, s47, 8192")
    VWD0, VWD1, VFL, VFD = 196, 197, 198, 199
    def dma_w(st):
        sl = SLOTS[st % 5] + 16384
        a(f"s_add_u32 m0, s34, {sl}")
        a("s_nop 0")
        a(f"buffer_load_dwordx4 v{VWD0}, s[16:19], s40 offen lds")
        a("s_add_u32 m0, m0, 1024")
        a("s_nop 0")
        a(f"buffer_load_dwordx4 v{VWD1}, s[16:19], s40 offen lds")
        a("s_add_u32 m0, m0, 1024")
        a(f"s_add_u32 s40, s40, {64*2048}")
        a(f"buffer_load_dwordx4 v{VWD0}, s[16:19], s41 offen lds")
        a("s_add_u32 m0, m0, 1024")
        a("s_nop 0")
        a(f"buffer_load_dwordx4 v{VWD1}, s[16:19], s41 offen lds")
        a(f"s_add_u32 s41, s41, {64*2048}")
    def dma_o(st):
        a(f"s_add_u32 m0, s34, {SLOTS[st % 5]}")
        a("s_nop 0")
        for j in range(4):
            a(f"buffer_load_dwordx4 v{VL16}, s[8:11], s39 offen offset:{j*1024}{OPT['osc']} lds")
        a("s_add_u32 s39, s39, 4096")
    def poll(tag):
        a("s_mov_b32 s43, 0")
        a.lab(tag)
        a(f"buffer_load_dword v{VFD}, v{VFL}, s[8:11], s42 offen sc1")
        a("s_add_u32 s43, s43, 1")
        a("s_waitcnt vmcnt(0)")
        a(f"v_cmp_ne_u32 vcc, 1, v{VFD}")
        a("s_cmp_gt_u32 s43, 0x200000")
        a(f"s_cbranch_scc1 {tag}x")
        a("s_nop 2")
        a(f"s_cbranch_vccz {tag}x")
        a(f"s_sleep {OPT['slp']}")
        a(f"s_branch {tag}")
        a.lab(tag + "x")
    for i in range(40): a(f"v_mov_b32 v{OB[0]+i}, 0")
    a(f"v_mov_b32 v{VT}, {NEGBIG:#x}")
    def lanemask(r, prev):
        m = 0
        for l in range(64):
            q = l & 31; hh = l >> 5
            key = kperm(8*(r//4) + 4*hh + r % 4)
            d = q - key + (32 if prev else 0)
            if 0 <= d <= 14 and d % 2 == 0: m |= 1 << l
        return m
    def masks(prev):
        k = 0
        for r in range(16):
            m = lanemask(r, prev)
            sp = 48 + 2*(k % 4); k += 1
            a(f"s_mov_b32 s{sp}, {m & 0xffffffff:#x}")
            a(f"s_mov_b32 s{sp+1}, {m >> 32:#x}")
            a(f"v_cndmask_b32 v{(MP if prev else MC)+r}, v{VT}, 0, s[{sp}:{sp+1}]")
            if prev: a(f"v_cndmask_b32 v{MP0+r}, v{VT}, v{MP+r}, s[44:45]")
    masks(0)
    a("s_waitcnt vmcnt(0)")
    a("s_barrier")
    dma_stage(1)
    dma_stage(2)
    masks(1)
    if OPT["hprio"] != "0": a(f"s_setprio {OPT['hprio']}")
    def bcomp(t):
        keep = a.l; a.l = []
        kc, kp, vc, vp = KX[t+1], KX[t], VX[t+1], VX[t]
        ob, lb = OB[t], LB[t]
        a(mfma(SC, kc, QB[t], MC)); a(mfma(SP, kp, QB[t], MP0 if t == 0 else MP))
        a(mfma(SC, kc+4, QB[t]+4)); a(mfma(SP, kp+4, QB[t]+4))
        a("s_nop 10")
        vals = [SC+r for r in range(16)] + [SP+r for r in range(16)]
        maxof(vals)
        for v in vals: a(f"v_sub_f32 v{v}, v{v}, v{VM}")
        for v in vals: a(f"v_exp_f32 v{v}, v{v}")
        a("s_nop 1")
        a(sm32(ob, vc, SC)); a(sm16(lb, SC)); a(sm32(ob, vc+4, SC+8)); a(sm16(lb, SC+8))
        a(sm32(ob, vp, SP)); a(sm16(lb, SP)); a(sm16(lb, SP+8)); a(sm32(ob, vp+4, SP+8))
        a("s_nop 12")
        finish("s37" if t == 0 else "s38", 0, QB[t], ob, lb)
        out = a.l; a.l = keep
        return out
    work = [] if "B" in OPT["k2x"] else bcomp(0) + bcomp(1)
    def cost(t): return 2 if "v_exp" in t else (3 if "mfma" in t else 1)
    tot = sum(cost(t) for t in work)
    slots = [int(c) for c in OPT["bslots"]]
    chunks = {b: [] for b in range(8)}
    acc_ = 0
    for t in work:
        chunks[slots[min(len(slots) - 1, acc_ * len(slots) // tot)]].append(t)
        acc_ += cost(t)
    def psetup():
        a("v_lshrrev_b32 v5, 4, v0")
        a("v_and_b32 v199, 15, v0")
        a(f"v_lshlrev_b32 v{VWD0}, 1, v5")
        a(f"v_xor_b32 v199, v199, v{VWD0}")
        a("v_lshlrev_b32 v199, 4, v199")
        a(f"v_lshl_add_u32 v{VWD0}, v5, 11, v199")
        a(f"v_xor_b32 v{VWD1}, 128, v{VWD0}")
        a(f"v_add_u32 v{VWD1}, 8192, v{VWD1}")
        a(f"v_and_b32 v{VFL}, 31, v0")
        a(f"v_lshlrev_b32 v{VFL}, {FSH}, v{VFL}")
        a("s_lshl_b32 s39, s60, 22")
        a("s_lshl_b32 s40, s61, 18")
        a("s_add_u32 s39, s39, s40")
        a("s_lshl_b32 s40, s34, 4")
        a("s_add_u32 s39, s39, s40")
        a(f"s_add_u32 s39, s39, {OF}")
        a("s_lshl_b32 s40, s34, 3")
        a("s_lshl_b32 s41, s62, 8")
        a("s_add_u32 s40, s40, s41")
        a("s_add_u32 s41, s40, 16384")
        if OPT["fm"] == "w":
            a("s_lshl_b32 s42, s60, 5")
            a("s_lshl_b32 s43, s61, 1")
            a("s_add_u32 s42, s42, s43")
            a("s_lshr_b32 s43, s34, 13")
        else:
            a("s_lshl_b32 s42, s60, 3")
            a("s_lshr_b32 s43, s61, 1")
        a("s_add_u32 s42, s42, s43")
        a(f"s_lshl_b32 s42, s42, {5+FSH}")
        a(f"s_add_u32 s42, s42, {FL}")
    def publish(off, tag):
        if OPT["fm"] == "w":
            if off == 0: return
            off *= 4
            if work: wait_for(["st"])
            issued.append("f")
        else:
            a("s_cmp_lg_u32 s24, 4")
            a(f"s_cbranch_scc1 {tag}")
        a("v_mov_b32 v5, 0")
        a("v_mov_b32 v6, 1")
        a(f"s_add_u32 s43, s63, {off}")
        a("s_mov_b64 exec, 1")
        a("buffer_store_dword v6, v5, s[8:11], s43 offen sc1")
        a("s_mov_b64 exec, -1")
        a.lab(tag)
    issued = ["s1"]*8 + ["s2"]*8
    def wait_for(tags):
        last = max(i for i, x in enumerate(issued) if x in tags)
        a(f"s_waitcnt vmcnt({min(63, len(issued) - 1 - last)})")
    BF = min(7, slots[-1] + (1 if OPT['fm'] == 'w' else 2))
    for b in range(1, 8):
        wait_for([f"s{b}"] + (["st"] if b == BF and work and OPT["fm"] != "w" else []))
        a("s_barrier")
        if b <= 5:
            dma_stage(b + 2); issued += [f"s{b+2}"]*8
        if b == 1:
            for t in range(2): ld(QB[t], "s28", t*2048); ld(QB[t]+4, "s28", t*2048+1024)
            ld(KX[0], "s31", 0, VKL); ld(KX[0]+4, "s31", 1024, VKL)
            for t in range(2): ld(KX[t+1], "s29", t*2048, VKL); ld(KX[t+1]+4, "s29", t*2048+1024, VKL)
            ld(VX[0], "s32"); ld(VX[0]+4, "s32", 1024)
            for t in range(2): ld(VX[t+1], "s30", t*2048); ld(VX[t+1]+4, "s30", t*2048+1024)
            issued += ["B"]*16
            psetup()
        if b == slots[0] and work: wait_for(["B"])
        if b == BF: publish(256 << FSH, "L2_pubB")
        for c in OPT['pfs']:
            if int(c) == b and PF:
                pf(); issued += ["p"]
        if b == 5 and OPT["tlb"] == "1":
            srd(a, 12, 58, 8 << 20)
            a(f"v_lshlrev_b32 v{VFD}, 21, v0")
            a(f"buffer_load_dword v{VFD}, v{VFD}, s[12:15], 0 offen"); issued += ["p"]
        if b >= 6:
            if b == 6:
                dma_w(0); issued += ["w0"]*4
            dma_w(b - 5); issued += [f"w{b-5}"]*4
        for t in chunks[b]:
            a.l.append(t)
            if "buffer_store" in t: issued += ["st"]
    a("s_cmp_eq_u32 s60, 0")
    a("s_cbranch_scc1 L2_ldA")
    base_issued = list(issued)
    for typ in ("B", "A"):
        issued[:] = base_issued
        if typ == "A": a.lab("L2_ldA")
        if typ == "B":
            a(f"s_sleep {OPT['bslp']}")
            poll("L2_pB"); issued[:] = []
            if OPT["opf"] == "1":
                a(f"v_lshlrev_b32 v{VFL}, 7, v0")
                a("s_and_b32 s43, s62, 3")
                a("s_lshl_b32 s43, s43, 14")
                a("s_add_u32 s43, s43, s39")
            for st in range(3):
                dma_o(st); issued += [f"o{st}"]*4
            if OPT["opf"] == "1":
                a(f"buffer_load_dword v{VFD}, v{VFL}, s[8:11], s43 offen sc1")
                a("s_add_u32 s43, s43, 8192")
                a(f"buffer_load_dword v{VFD}, v{VFL}, s[8:11], s43 offen sc1")
                issued += ["p"]*2
            a("s_barrier")
            publish(0, "L2_pubA1")
            stamp(a, 2); stamp(a, 3)
            if OPT["fm"] != "w": a("s_barrier")
            wait_for(["o0"])
            a("s_barrier")
            dma_w(3); dma_o(3); issued += ["w3"]*4 + ["o3"]*4
        else:
            a("s_barrier")
            publish(0, "L2_pubA0")
            stamp(a, 2)
            dma_w(3)
            if OPT["la"] == "5": dma_w(4)
            if OPT["fm"] != "w":
                a("s_cmp_lg_u32 s24, 5")
                a("s_cbranch_scc1 L2_pAx")
            if OPT["aslp"] != "0": a(f"s_sleep {OPT['aslp']}")
            poll("L2_pA"); issued[:] = []
            if OPT["fm"] != "w": a("s_barrier")
            stamp(a, 3)
            for st in range(2):
                dma_o(st); issued += [f"o{st}"]*4
            wait_for(["o0"])
            a("s_barrier")
            for st in range(2, 4):
                dma_o(st); issued += [f"o{st}"]*4
        stamp(a, 4)
        LA = int(OPT["la"])
        if LA == 5:
            if typ == "B":
                dma_w(4); issued += ["w4"]*4
            dma_o(4); issued += ["o4"]*4
        for t in range(15):
            wait_for([f"o{t+1}", f"w{t+1}"])
            a("s_barrier")
            if t + LA < 16:
                dma_w(t + LA); dma_o(t + LA); issued += [f"w{t+LA}"]*4 + [f"o{t+LA}"]*4
        stamp(a, 5)
        dump(a, 1, "s24")
        a("s_endpgm")

    s0 = S[0]
    for qt in range(2):
        a.lab(f"L2_slow{qt}")
        a(f"s_add_u32 s36, s26, {VF}")
        a(f"v_mov_b32 v{VM}, 0xff800000")
        a("s_mov_b32 s39, 0")
        a.lab(f"L2_s1{qt}")
        a("s_add_u32 s41, s33, s39")
        ld(KB[0], "s41", 0, VKL); ld(KB[0]+4, "s41", 1024, VKL)
        a("s_waitcnt vmcnt(0)")
        a(mfma(s0, KB[0], Q[qt], "0")); a(mfma(s0, KB[0]+4, Q[qt]+4))
        a("s_nop 15")
        for i in range(0, 16, 2): a(f"v_max3_f32 v{VM}, v{VM}, v{s0+i}, v{s0+i+1}")
        a("s_add_u32 s39, s39, 2048")
        a(f"s_cmp_lt_u32 s39, {64*2048}")
        a(f"s_cbranch_scc1 L2_s1{qt}")
        a(f"v_mov_b32 v{VT}, v{VM}")
        xhalf_max()
        for i in range(16): a(f"v_sub_f32 v{NEG[qt]+i}, 0, v{VM}")
        for i in range(16): a(f"v_mov_b32 v{O[qt]+i}, 0")
        for i in range(4): a(f"v_mov_b32 v{L[qt]+i}, 0")
        a("s_mov_b32 s39, 0")
        a.lab(f"L2_s2{qt}")
        a("s_add_u32 s41, s33, s39")
        ld(KB[0], "s41", 0, VKL); ld(KB[0]+4, "s41", 1024, VKL)
        a("s_add_u32 s41, s36, s39")
        ld(VB[0], "s41"); ld(VB[0]+4, "s41", 1024)
        a("s_waitcnt vmcnt(0)")
        a(mfma(s0, KB[0], Q[qt], NEG[qt])); a(mfma(s0, KB[0]+4, Q[qt]+4))
        a("s_nop 15")
        for i in range(16): a(f"v_exp_f32 v{s0+i}, v{s0+i}")
        a("s_nop 1")
        a(sm32(O[qt], VB[0], s0)); a(sm16(L[qt], s0)); a(sm32(O[qt], VB[0]+4, s0+8)); a(sm16(L[qt], s0+8))
        a("s_nop 7")
        a("s_add_u32 s39, s39, 2048")
        a(f"s_cmp_lt_u32 s39, {64*2048}")
        a(f"s_cbranch_scc1 L2_s2{qt}")
        a("s_nop 15")
        a(f"s_branch L2_fin{qt}")
    return a.text(), kd(N, NV), f"; @launch kernel={N} grid=(256,1,1) block=(512,1,1) lds=163840"


def main():
    ks = [k1(), k2()]
    hdr = open("cdna_kernels/" + NAME + ".s.ref").read().split("\n")
    top = [l for l in hdr if l.startswith(";") and "@launch" not in l and "Override" not in l and "grid=ceil" not in l]
    out = "\n".join(top) + "\n" + "\n".join(k[2] for k in ks) + "\n"
    out += '.amdgcn_target "amdgcn-amd-amdhsa--gfx950"\n.text\n'
    for k in ks: out += k[0]
    out += '.section .rodata,"a"\n'
    for k in ks: out += k[1]
    open(sys.argv[1], "w").write(out)

main()
```

```python
import struct, math, sys

NAME = "concat_heads__mha_block__sliding_local_dilated__prompt"
OPT = dict(st1=" sc1", st2=" sc1", st3=" sc1", dbg="0", pf1="1", pf3="1", ord1="0", dlt="4", nx="0", ph="8", pf0="2", pfm="255", xl="4", s2e="0", prio="1", k2x="", cpf="1", hprio="0", trip="0", k1x="", tlb="1", dk="0", spin="", bslots="345", pst="0", wfirst="1", slp="10", fsh="5", pfs="2345", opf="0", la="5", mix="1", qs="0", qp="1", bl="2", xslp="0", single="0", df="1", rt="1", pub="3", od="3", pa="1", fm="g", aslp="8", bslp="1", osc=" sc1")
for a in sys.argv[2:]:
    k, v = a.split("=", 1)
    OPT[k] = v

def f2u(x): return struct.unpack("<I", struct.pack("<f", x))[0]
QSCALE = f2u(math.log2(math.e) / math.sqrt(32.0))
NEGBIG = f2u(-1e30)

QF, KF, VF, OF = 0, 8 << 20, 16 << 20, 24 << 20
WS_BYTES = 33 << 20

class A:
    def __init__(s): s.l = []
    def __call__(s, t): s.l.append("    " + t)
    def lab(s, t): s.l.append(t + ":")
    def raw(s, t): s.l.append(t)
    def text(s): return "\n".join(s.l) + "\n"

def vr(b, n=4): return f"v[{b}:{b+n-1}]"
def mfma(d, a, b, c=None):
    cc = vr(d, 16) if c is None else (c if isinstance(c, str) else vr(c, 16))
    return f"v_mfma_f32_32x32x16_bf16 {vr(d,16)}, {vr(a)}, {vr(b)}, {cc}"

def mfma16(d, a, b):
    return f"v_mfma_f32_16x16x32_bf16 {vr(d)}, {vr(a)}, {vr(b)}, {vr(d)}"

def spread(main, fill, start=0, every=1, per=1):
    out = []; k = 0
    for i, m in enumerate(main):
        out.append(m)
        if i >= start and (i - start) % every == 0:
            for _ in range(per):
                if k < len(fill):
                    out += fill[k]; k += 1
    while k < len(fill):
        out += fill[k]; k += 1
    return out

def interleave(main, fill, pattern):
    out = []; k = 0
    for i, m in enumerate(main):
        for _ in range(pattern[i] if i < len(pattern) else 0):
            if k < len(fill):
                out += fill[k]; k += 1
        out.append(m)
    while k < len(fill):
        out += fill[k]; k += 1
    return out

def kd(name, vgpr, sgpr=96):
    acc = (vgpr + 3) // 4 * 4
    return f""".p2align 6
.amdhsa_kernel {name}
  .amdhsa_next_free_vgpr {vgpr}
  .amdhsa_next_free_sgpr {sgpr}
  .amdhsa_accum_offset {acc}
  .amdhsa_group_segment_fixed_size 0
  .amdhsa_kernarg_size 72
  .amdhsa_user_sgpr_count 2
  .amdhsa_user_sgpr_kernarg_segment_ptr 1
  .amdhsa_system_sgpr_workgroup_id_x 1
.end_amdhsa_kernel
"""

_cp = [0]
DBG = OPT["dbg"] in ("1", "2", "3")
def stamp(a, n):
    if DBG:
        a(f"{'s_memrealtime' if OPT['rt'] == '1' and n >= 2 else 's_memtime'} s[{64+2*n}:{65+2*n}]")
def rstamp(a, n):
    if DBG:
        a(f"s_memrealtime s[{64+2*n}:{65+2*n}]")
def dump(a, kidx, wave_sgpr, nst=8):
    if not DBG: return
    if OPT["dbg"] == "2":
        if kidx != int(OPT["dk"]): return
        _cp[0] += 1
        sk = f"Ldbg{_cp[0]}"
        a("s_load_dwordx2 s[88:89], s[0:1], 56")
        a("s_waitcnt lgkmcnt(0) vmcnt(0)")
        a(f"s_memtime s[{64+2*(nst-2)}:{65+2*(nst-2)}]")
        a(f"s_memrealtime s[{64+2*(nst-1)}:{65+2*(nst-1)}]")
        a("s_waitcnt lgkmcnt(0)")
        a(f"s_sub_u32 s88, s88, {512*kidx}")
        a("s_subb_u32 s89, s89, 0")
        a("s_mov_b32 s90, 64")
        a("s_mov_b32 s91, 0x00020000")
        a("s_lshl_b32 s92, s2, 3")
        a(f"s_add_u32 s92, s92, {wave_sgpr}")
        a("s_cmp_eq_u32 s92, 805")
        a("s_cselect_b32 s93, 32, 0x1000")
        a("s_cmp_eq_u32 s92, 0")
        a("s_cselect_b32 s92, 0, s93")
        a("v_mov_b32 v2, 0")
        for n in range(2, nst):
            base = 64 if n < nst-1 else 66
            a(f"s_sub_u32 s93, s{64+2*n}, s{base}")
            a("v_mov_b32 v3, s93")
            a(f"buffer_store_dword v3, v2, s[88:91], s92 offen offset:{4*(n-2)}")
            a("s_nop 1")
        return
    a("s_load_dwordx2 s[88:89], s[0:1], 64")
    a("s_waitcnt lgkmcnt(0) vmcnt(0)")
    a(f"s_memtime s[{64+2*(nst-2)}:{65+2*(nst-2)}]")
    a(f"s_memrealtime s[{64+2*(nst-1)}:{65+2*(nst-1)}]")
    a("s_waitcnt lgkmcnt(0)")
    a("s_mov_b32 s90, 0x8000000")
    a("s_mov_b32 s91, 0x00020000")
    a("s_lshl_b32 s92, s2, 3")
    a(f"s_add_u32 s92, s92, {wave_sgpr}")
    a("s_lshl_b32 s92, s92, 6")
    a(f"s_add_u32 s92, s92, {(64+kidx) << 20}")
    a("v_mov_b32 v2, 0")
    for n in range(nst):
        a(f"v_mov_b32 v3, s{64+2*n}")
        a(f"buffer_store_dword v3, v2, s[88:91], s92 offen offset:{4*n}")
        a("s_nop 1")
    if OPT["dbg"] == "3" and kidx == 2:
        _cp[0] += 1
        sk = f"Ldbg{_cp[0]}"
        a("s_lshl_b32 s92, s2, 3")
        a(f"s_add_u32 s92, s92, {wave_sgpr}")
        a(f"s_cmp_lg_u32 s92, {OPT['dk']}")
        a(f"s_cbranch_scc1 {sk}")
        a(f"s_add_u32 s88, s88, {(64 << 20) + int(OPT['dk'])*64}")
        a("s_addc_u32 s89, s89, 0")
        a("s_load_dwordx8 s[40:47], s[88:89], 0")
        a("s_add_u32 s88, s88, 0x100000")
        a("s_addc_u32 s89, s89, 0")
        a("s_load_dwordx8 s[48:55], s[88:89], 0")
        a("s_load_dwordx2 s[88:89], s[0:1], 56")
        a("s_waitcnt lgkmcnt(0)")
        a("s_mov_b32 s90, 64")
        k = 0
        for b, st in ((40, 1), (48, 1), (64, 2)):
            for n, ref in ((3, b), (4, b), (6, b), (1, 41), (7, 41)):
                a(f"s_sub_u32 s93, s{b+st*n}, s{ref}")
                a("v_mov_b32 v3, s93")
                a(f"buffer_store_dword v3, v2, s[88:91], 0 offen offset:{4*k}")
                a("s_nop 1")
                k += 1
        if OPT["spin"] != "":
            q, mult, unit = OPT["spin"].split(",")
            x, y = q.split("-")
            a(f"s_sub_u32 s93, s{x}, s{y}")
            a(f"s_mul_i32 s93, s93, {mult}")
            ins = "s_memrealtime" if unit == "r" else "s_memtime"
            a(f"{ins} s[60:61]")
            a("s_waitcnt lgkmcnt(0)")
            a.lab(sk + "s")
            a(f"{ins} s[62:63]")
            a("s_waitcnt lgkmcnt(0)")
            a("s_sub_u32 s62, s62, s60")
            a("s_cmp_lt_u32 s62, s93")
            a(f"s_cbranch_scc1 {sk}s")
        a.lab(sk)

def codepf(a, start, end, vtmp, lane="v0"):
    if OPT["cpf"] != "1": return
    _cp[0] += 1
    l = f"Lcp{_cp[0]}"
    a("s_getpc_b64 s[56:57]")
    a.lab(l)
    a(f"s_add_u32 s56, s56, {start}-{l}")
    a(f"s_addc_u32 s57, s57, ({start}-{l})>>32")
    a(f"v_lshlrev_b32 v{vtmp}, 7, {lane}")
    a(f"v_min_u32 v{vtmp}, ({end})-({start})-4, v{vtmp}")
    a(f"global_load_dword v{vtmp}, v{vtmp}, s[56:57]")

def head(a, name):
    a.raw(f".globl {name}\n.p2align 8\n.type {name},@function\n{name}:")

def srd(a, d, base, nbytes):
    a(f"s_mov_b32 s{d}, s{base}")
    a(f"s_mov_b32 s{d+1}, s{base+1}")
    a(f"s_mov_b32 s{d+2}, {nbytes:#x}")
    a(f"s_mov_b32 s{d+3}, 0x00020000")

def place(main, fill, per=2, start=0):
    out = []; k = 0
    for i, m in enumerate(main):
        out.append(m)
        if i >= start:
            out += fill[k:k+per]; k += per
    out += fill[k:]
    return out

def sched(M, rd, d, post, late, late_dma=False):
    n = len(M)
    gaps = [[] for _ in range(n)]
    if late_dma: rg = list(range(len(rd))); dg = [len(rd) + 2*k for k in range(len(d))]
    else:
        dg = [1 + 4*k for k in range(len(d))]; rg = [g for g in range(n) if g not in dg][:len(rd)]
    for g, t in zip(rg, rd): gaps[g].append(t)
    for g, (m_, l_) in zip(dg, d):
        gaps[g-1].append(m_); gaps[g].append(l_)
    def runs(ops):
        out = []
        for t in ops:
            if t.startswith("s_cselect") : out[-1].append(t)
            else: out.append([t])
        return out
    def put(run, g0):
        g = g0
        while g < n - 1 and len(gaps[g]) + len(run) > 3: g += 1
        gaps[g] += run
        return g
    g = (dg[len(d)-1] if d else 0)
    for r in runs(post): g = put(r, g)
    g = 0
    for r in runs(late):
        if r[0].startswith("v_"): g = max(g, rg[-1] if rg else 0)
        g = put(r, g)
    seq = []
    for i, m_ in enumerate(M):
        seq.append(m_); seq += gaps[i]
    return seq

FL = 32 << 20
FSH = int(OPT['fsh'])
PK1 = 208

def k1(a):
    N = NAME + "_kernel"
    head(a, N)
    XS, WS, WSL = 32768, 98304, 12288
    VD, VXB, VXA, VWB, VWA, VST, VPX, VPW, VPD = 10, 18, 20, 22, 24, 26, 27, 28, 29
    F = [32, 72]; ACC = 112; NV = 208
    PF = OPT["pf1"] == "1"
    DLT = int(OPT["dlt"]); PST = 2
    def A_(f, mt): return F[f] + 4*mt
    def B_(f, nb): return F[f] + 16 + 4*nb
    def acc(mt, nb): return ACC + (mt*6 + nb)*4
    a("s_cmp_ge_u32 s2, 256")
    a("s_cbranch_scc1 L2_end")
    stamp(a, 0); rstamp(a, 1)
    a("s_and_b32 s20, s2, 7")
    a("s_lshr_b32 s21, s2, 3")
    MIX = OPT["mix"] == "1"
    if MIX: a("s_lshr_b32 s22, s21, 4")
    else: a("s_lshr_b32 s22, s20, 2")
    a("s_mul_i32 s23, s22, 24")
    a("s_load_dwordx4 s[4:7], s[0:1], s23")
    a("s_load_dwordx4 s[96:99], s[0:1], 56")
    a("s_load_dwordx4 s[88:91], s[0:1], 0")
    a("v_lshrrev_b32 v1, 6, v0")
    a("v_and_b32 v0, 63, v0")
    a("v_readfirstlane_b32 s26, v1")
    a("s_and_b32 s24, s20, 1")
    a("s_lshl_b32 s24, s24, 2")
    a("s_and_b32 s25, s21, 3")
    a("s_add_u32 s24, s24, s25")
    if MIX:
        a("s_lshr_b32 s25, s20, 1")
        a("s_xor_b32 s53, s25, s22")
        a("s_lshl_b32 s25, s53, 2")
        a("s_bfe_u32 s27, s21, 0x20002")
    else:
        a("s_bfe_u32 s25, s20, 0x10001")
        a("s_lshl_b32 s25, s25, 3")
        a("s_lshr_b32 s27, s21, 2")
    a("s_add_u32 s25, s25, s27")
    a("s_and_b32 s31, s26, 3")
    a("s_lshr_b32 s32, s26, 2")
    PH = OPT["ph"]
    if PH == "0": a("s_mov_b32 s44, 0")
    elif PH == "1":
        a("s_lshl_b32 s44, s20, 1")
    elif PH == "2":
        a("s_lshl_b32 s44, s20, 1")
        a("s_and_b32 s45, s21, 1")
        a("s_add_u32 s44, s44, s45")
    elif PH in ("6", "7", "8"):
        a("s_lshr_b32 s54, s20, 1")
        a("s_lshl_b32 s54, s54, 2")
        a("s_and_b32 s45, s20, 1")
        a("s_mul_i32 s45, s45, 10")
        a("s_add_u32 s54, s54, s45")
        a("s_and_b32 s54, s54, 15")
        if PH == "6": a("s_and_b32 s45, s21, 1")
        elif PH == "7": a("s_mov_b32 s45, s22")
        else: a("s_mov_b32 s45, 0")
        a("s_add_u32 s44, s54, s45")
    elif PH == "5":
        a("s_lshl_b32 s44, s20, 1")
        a("s_add_u32 s44, s44, s22")
    elif PH == "3":
        a("s_lshl_b32 s44, s22, 1")
        a("s_and_b32 s45, s20, 1")
        a("s_add_u32 s44, s44, s45")
        a("s_lshl_b32 s44, s44, 2")
        a("s_and_b32 s45, s21, 3")
        a("s_add_u32 s44, s44, s45")
    elif PH == "4":
        a("s_lshl_b32 s44, s22, 1")
        a("s_and_b32 s45, s20, 1")
        a("s_add_u32 s44, s44, s45")
        a("s_lshl_b32 s44, s44, 2")
    a("v_lshrrev_b32 v2, 3, v0")
    a("v_and_b32 v3, 7, v0")
    a("v_lshrrev_b32 v4, 4, v0")

    def rdA(f, ks, mt): return [f"ds_read_b128 {vr(A_(f,mt))}, v{VXA+ks} offset:{mt*2048}"]
    def rdB(f, nb):
        o = (nb//2)*4096
        return [f"ds_read_b64_tr_b16 {vr(B_(f,nb),2)}, v{VWA+nb%2} offset:{o}",
                f"ds_read_b64_tr_b16 {vr(B_(f,nb)+2,2)}, v{VWA+nb%2} offset:{o+512}"]
    def reads(f, ks):
        r = rdB(f, 0)
        for mt in range(4): r += rdA(f, ks, mt)
        for nb in range(1, 6): r += rdB(f, nb)
        return r
    def mm(f):
        r = []
        for nb in range(6):
            for mt in range(4):
                if nb < 4: r.append(mfma16(acc(mt, nb), B_(f, nb), A_(f, mt)))
                else:      r.append(mfma16(acc(mt, nb), A_(f, mt), B_(f, nb)))
        return r

    def common_setup():
        srd(a, 16, 98, WS_BYTES)
        a("v_and_b32 v2, 15, v0")
        a("v_lshrrev_b32 v3, 4, v0")
        a("v_bfe_u32 v4, v0, 1, 3")
        a("s_lshl_b32 s33, s31, 13")
        a("v_lshlrev_b32 v5, 7, v2")
        a("v_add_u32 v5, s33, v5")
        a("v_xor_b32 v6, v3, v4")
        a(f"v_lshl_add_u32 v{VXB}, v6, 4, v5")
        a(f"v_xor_b32 v{VXB+1}, 64, v{VXB}")
        a(f"v_mov_b32 v{VXA}, v{VXB}")
        a(f"v_mov_b32 v{VXA+1}, v{VXB+1}")
        a("v_bfe_u32 v4, v0, 2, 2")
        a("v_lshl_add_u32 v4, v3, 3, v4")
        a("v_lshlrev_b32 v4, 7, v4")
        a("v_and_b32 v6, 3, v0")
        a("v_lshl_add_u32 v4, v6, 3, v4")
        a("v_bfe_u32 v5, v0, 3, 2")
        a("s_lshl_b32 s33, s32, 1")
        a("v_xor_b32 v5, s33, v5")
        a(f"v_lshl_add_u32 v{VWB}, v5, 5, v4")
        a(f"v_xor_b32 v{VWB+1}, 32, v{VWB}")
        a(f"v_add_u32 v{VWA}, {WS}, v{VWB}")
        a(f"v_add_u32 v{VWA+1}, {WS}, v{VWB+1}")
        a("v_lshlrev_b32 v4, 4, v2")
        a(f"v_lshl_add_u32 v{VST}, v3, 9, v4")
        for i in range(96): a(f"v_mov_b32 v{ACC+i}, 0")
        a("s_lshl_b32 s40, s22, 22")
        a("s_lshl_b32 s41, s25, 1")
        a("s_add_u32 s41, s41, s32")
        a("s_lshl_b32 s41, s41, 17")
        a("s_add_u32 s40, s40, s41")
        a("s_lshl_b32 s41, s24, 14")
        a("s_add_u32 s40, s40, s41")
        a("s_lshl_b32 s41, s31, 12")
        a("s_add_u32 s40, s40, s41")
        a(f"s_add_u32 s41, s40, {KF}")
        a(f"s_add_u32 s42, s40, {VF}")
        a(f"s_mov_b32 s43, {QSCALE:#x}")
        a("s_lshl_b32 s95, s25, 3")
        a("s_add_u32 s95, s95, s24")
        a("s_lshl_b32 s94, s95, 2")
        a("s_add_u32 s94, s94, s31")
        a("s_add_u32 s94, s94, 1408")
        a("s_add_u32 s95, s95, 1280")
        a("s_cmp_eq_u32 s22, 0")
        a("s_cselect_b32 s95, s95, s94")
        a(f"s_lshl_b32 s95, s95, {FSH}")
        a(f"s_add_u32 s95, s95, {FL}")
        srd(a, 80, 96, 256)
        a("s_mov_b32 s33, 0")
        a(f"s_mov_b32 s34, {WS}")
        a("s_mov_b32 s35, 0")

    wupd = [f"s_add_u32 s34, s34, {WSL}", f"s_cmp_eq_u32 s34, {WS+5*WSL}", f"s_cselect_b32 s34, {WS}, s34",
            f"v_add_u32 v{VWA}, s34, v{VWB}", f"v_add_u32 v{VWA+1}, s34, v{VWB+1}", "s_add_u32 s35, s35, 1"]
    xupd = [f"s_add_u32 s33, s33, {XS}", f"s_cmp_eq_u32 s33, {3*XS}", "s_cselect_b32 s33, 0, s33",
            f"v_add_u32 v{VXA}, s33, v{VXB}", f"v_add_u32 v{VXA+1}, s33, v{VXB+1}"]

    def mix(dma, other):
        out = []; o = list(other)
        for m, l in dma:
            out.append(m)
            out.append(o.pop(0) if o else "s_nop 0")
            out.append(l)
        return out + o

    def event(tag):
        a.lab(tag)
        a("s_add_u32 s48, s54, s51")
        a("s_and_b32 s48, s48, 15")
        a("s_mul_i32 s48, s48, s52")
        a("s_add_u32 s48, s48, s50")
        a(f"buffer_load_dword v{VPD}, v{VPW}, s[84:87], s48 offen")
        a(f"s_add_u32 s51, s51, {PST}")
        a("s_lshl_b32 s49, s51, 1")
        a("s_max_u32 s49, s49, s39")
        a("s_sub_u32 s49, s49, s39")
        a("s_cmp_lt_u32 s51, 16")
        a(f"s_cbranch_scc1 {tag}r")
        a("s_mov_b32 s49, 0x7fff")
        if OPT["cpf"] == "1":
            a("s_cmp_lg_u32 s31, 3")
            a(f"s_cbranch_scc1 {tag}r")
            codepf(a, "L1_epi", "L1_epi+8192", 31)
            codepf(a, "L1_epi+8192", "L1_epi+16384", 9)
            codepf(a, "L1_epi+16384", "L2_slow0", 8)
        a(f"s_branch {tag}r")

    a("s_cmp_lg_u32 s32, 0")
    a("s_cbranch_scc1 L1_W")
    for cls in ("X", "W"):
        P = "L1" + cls
        if cls == "X":
            a("v_lshlrev_b32 v5, 11, v2")
            a("v_xor_b32 v6, v3, v4")
            a("v_lshl_add_u32 v6, v6, 4, v5")
            a("v_xor_b32 v7, 64, v6")
            a(f"v_mov_b32 v{VD}, v6")
            a(f"v_add_u32 v{VD+1}, 16384, v7")
            a(f"v_add_u32 v{VD+2}, 32768, v6")
            a(f"v_add_u32 v{VD+3}, 49152, v7")
            a("s_lshl_b32 s27, s24, 19")
            a("s_lshl_b32 s28, s31, 16")
            a("s_add_u32 s45, s27, s28")
            a("s_lshl_b32 s46, s44, 7")
            a("s_add_u32 s27, s45, s46")
            a("s_add_u32 s28, s27, 0x40000")
            a("s_lshl_b32 s29, s31, 12")
            a(f"s_add_u32 s30, s29, {6*16384}")
            a("s_waitcnt lgkmcnt(0)")
            if OPT["s2e"] == "1": stamp(a, 2)
            srd(a, 8, 4, 4 << 20)
            def grp(par):
                so = "s27" if par == 0 else "s28"
                d = [(f"s_add_u32 m0, s29, {j*1024}", f"buffer_load_dwordx4 v{VD+j}, s[8:11], {so} offen lds") for j in range(4)]
                post = ["s_add_u32 s29, s29, 16384"]
                if par == 0: post += ["s_add_u32 s46, s46, 128", "s_and_b32 s46, s46, 0x7ff", "s_add_u32 s27, s45, s46"]
                if par == 1: post += ["s_add_u32 s28, s27, 0x40000", "s_cmp_eq_u32 s29, s30", f"s_cselect_b32 s38, {6*16384}, 0", "s_sub_u32 s29, s29, s38"]
                return d, post
            NG = 4
        else:
            a.lab("L1_W")
            if OPT["cpf"] == "1":
                a("s_cmp_lg_u32 s26, 7")
                a("s_cbranch_scc1 L1_nocp")
                codepf(a, N, "L1_epi", VPD)
                a.lab("L1_nocp")
            a("v_mul_u32_u24 v5, 6144, v2")
            a("v_and_b32 v6, 1, v4")
            a("v_lshlrev_b32 v6, 1, v6")
            a("s_and_b32 s33, s26, 1")
            a("s_lshl_b32 s33, s33, 2")
            a("v_xor_b32 v6, v3, v6")
            a("v_xor_b32 v6, s33, v6")
            a(f"v_lshl_add_u32 v{VD}, v6, 4, v5")
            a(f"v_add_u32 v{VD+1}, 2048, v{VD}")
            a(f"v_add_u32 v{VD+2}, 4096, v{VD}")
            a("s_lshl_b32 s27, s25, 7")
            a(f"s_mul_i32 s28, s31, {8*6144}")
            a("s_add_u32 s27, s27, s28")
            a(f"s_mul_i32 s28, s44, {64*6144}")
            a("s_add_u32 s27, s27, s28")
            a("s_lshl_b32 s29, s31, 10")
            a(f"s_add_u32 s29, s29, {WS}")
            a(f"s_add_u32 s30, s29, {5*WSL}")
            a("s_waitcnt lgkmcnt(0)")
            if OPT["s2e"] == "1": stamp(a, 2)
            srd(a, 12, 6, 6 << 20)
            def pfsetup():
                a("s_and_b32 s47, s21, 7")
                a("s_bfe_u32 s51, s21, 0x10003")
                a(f"s_add_u32 s51, s51, {OPT['pf0']}")
                a("v_lshlrev_b32 v5, 11, v0")
                a("v_lshrrev_b32 v6, 2, v0")
                a("v_mul_u32_u24 v6, 6144, v6")
                a("v_and_b32 v7, 3, v0")
                a("v_lshl_add_u32 v6, v7, 7, v6")
                a("v_mul_u32_u24 v7, 6144, v0")
                a("s_cmp_lt_u32 s47, 4")
                a("s_cselect_b64 s[56:57], -1, 0")
                a("s_cselect_b32 s84, s88, s90")
                a("s_cselect_b32 s85, s89, s91")
                a(f"s_mov_b32 s86, {6<<20:#x}")
                a(f"s_cselect_b32 s86, {4<<20:#x}, s86")
                a("s_mov_b32 s87, 0x00020000")
                a(f"s_mov_b32 s52, {64*6144}")
                a("s_cselect_b32 s52, 128, s52")
                a(f"v_cndmask_b32 v{VPW}, v6, v5, s[56:57]")
                a("s_and_b32 s48, s20, 1")
                a("s_lshl_b32 s48, s48, 2")
                a("s_add_u32 s48, s48, s47")
                a("s_lshl_b32 s48, s48, 2")
                a("s_add_u32 s48, s48, s31")
                a("s_lshl_b32 s48, s48, 17")
                a("s_lshr_b32 s50, s20, 1")
                a("s_lshl_b32 s50, s50, 9")
                a("s_and_b32 s55, s47, 3")
                a("s_lshl_b32 s55, s55, 11")
                a("s_add_u32 s50, s50, s55")
                a(f"s_mul_i32 s55, s31, {16*6144}")
                a("s_add_u32 s50, s50, s55")
                a("s_cmp_lt_u32 s47, 4")
                a("s_cselect_b32 s50, s48, s50")
                a("s_and_b32 s48, s53, 2")
                a("s_lshl_b32 s48, s48, 9")
                a("s_lshl_b32 s55, s31, 11")
                a("s_add_u32 s48, s48, s55")
                a("s_add_u32 s48, s48, 384")
                a("s_bitcmp1_b32 s53, 0")
                a("s_cselect_b32 s90, s90, s6")
                a("s_cselect_b32 s91, s91, s7")
                a("s_cmp_eq_u32 s47, 7")
                a("s_cselect_b64 s[56:57], -1, 0")
                a("s_cselect_b32 s50, s48, s50")
                a("s_cselect_b32 s84, s90, s84")
                a("s_cselect_b32 s85, s91, s85")
                a("s_cselect_b32 s55, 3, 0")
                a(f"s_cselect_b32 s39, {4+DLT+int(OPT['xl'])}, {4+DLT}")
                a(f"v_cndmask_b32 v{VPW}, v{VPW}, v7, s[56:57]")
                a("s_and_b32 s48, s55, s31")
                a("s_cmp_eq_u32 s48, 3")
                a("s_cselect_b32 s86, 0, s86")
                if OPT["pfm"] != "255":
                    a(f"s_lshr_b32 s48, {OPT['pfm']}, s47")
                    a("s_and_b32 s48, s48, 1")
                    a("s_cselect_b32 s86, s86, 0")
                a("s_lshl_b32 s49, s51, 1")
                a("s_max_u32 s49, s49, s39")
                a("s_sub_u32 s49, s49, s39")
                a("s_cmp_eq_u32 s22, 0")
                a("s_cselect_b32 s49, 0x7fff, s49")
            def grp(par):
                d = [(f"s_add_u32 m0, s29, {g*4096}", f"buffer_load_dwordx4 v{VD+g}, s[12:15], s27 offen lds") for g in range(3)]
                post = [f"s_add_u32 s27, s27, {32*6144}", f"s_add_u32 s29, s29, {WSL}",
                        "s_cmp_eq_u32 s29, s30", f"s_cselect_b32 s38, {5*WSL}, 0", "s_sub_u32 s29, s29, s38"]
                if par == 1: post += [f"s_cmp_ge_u32 s27, {6<<20:#x}", f"s_cselect_b32 s38, {6<<20:#x}, 0", "s_sub_u32 s27, s27, s38"]
                return d, post
            NG = 3
        def emit_grp(par):
            d, post = grp(par)
            for t in mix(d, []) + post: a(t)
        first = 2 if cls == "X" else 1
        for n in range(first): emit_grp(n & 1)
        common_setup()
        if cls == "W" and PF: pfsetup()
        if cls == "X":
            a(f"v_lshlrev_b32 v8, {FSH}, v0")
            a("v_mov_b32 v9, 0")
            a(f"s_lshl_b32 s47, s2, {3+FSH}")
            a(f"s_add_u32 s47, s47, {FL}")
            a("s_cmp_eq_u32 s31, 0")
            a("s_cselect_b64 exec, 0xff, 0")
            a("s_cbranch_execz L1_nofl")
            a("buffer_store_dword v9, v8, s[16:19], s47 offen sc1")
            a.lab("L1_nofl")
            a("s_mov_b64 exec, -1")
        for n in range(first, 4): emit_grp(n & 1)
        npf = 0
        if cls == "W" and PF:
            a("s_cmp_eq_u32 s49, 0")
            a(f"s_cbranch_scc1 {P}_e0")
            a.lab(f"{P}_e0r")
        a(f"s_waitcnt vmcnt({(4-first)*NG + npf})")
        a("s_barrier")
        if cls == "X":
            a("v_mov_b32 v8, 1")
            a("s_cmp_eq_u32 s31, 0")
            a("s_cselect_b64 exec, 1, 0")
            a("s_cbranch_execz L1_noat")
            a("buffer_atomic_add v8, v9, s[80:83], 0 offen sc1")
            a.lab("L1_noat")
            a("s_mov_b64 exec, -1")
        d, post = grp(0)
        for t in reads(0, 0) + mix(d, []) + post + wupd: a(t)
        if cls == "W": a(f"s_waitcnt vmcnt({3*NG + npf})")
        a("s_waitcnt lgkmcnt(0)")
        a("s_barrier")
        a(f"s_branch {P}_odd")
        a.raw(".p2align 6")
        a.lab(f"{P}_loop")
        for par in range(2):
            if par == 1: a.lab(f"{P}_odd")
            d, post = grp(par)
            rd = reads(par, par)
            tail = list(post) + wupd
            if par == 1:
                tail += xupd
                sup = ["s_cmp_lt_u32 s35, 28", f"s_cselect_b32 s10, {4<<20:#x}, 0" if cls == "X" else f"s_cselect_b32 s14, {6<<20:#x}, 0"]
                tail += sup; post = list(post) + sup
            X = OPT["k1x"]
            if "d" in X: d = []
            if "r" in X: rd = []
            fill = rd[:8] + mix(d, rd[8:]) + tail
            if "o" not in X:
                late = [t for t in tail if t not in post]
                late = [t for t in late if not t.startswith("v_")] + [t for t in late if t.startswith("v_")]
                seq = sched(mm(1-par), rd, d, list(post), late, late_dma=("l" in X))
            elif "1" in X: seq = place(mm(1-par), fill, 2, 2)
            elif "3" in X: seq = place(mm(1-par), fill, 3, 0)
            elif "f" in X: seq = rd[:4] + place(mm(1-par), fill[4:], 2, 0)
            else: seq = place(mm(1-par), fill, 2, 0)
            if "p" in X: seq = ["s_setprio 1"] + seq[:len(seq)-8] + ["s_setprio 0"] + seq[len(seq)-8:]
            if "P" in X and cls == "W": seq = ["s_setprio 1"] + seq
            for t in seq: a(t)
            if cls == "W" and PF:
                a("s_cmp_ge_u32 s35, s49")
                a(f"s_cbranch_scc1 {P}_e{par+1}")
                a.lab(f"{P}_e{par+1}r")
            if par == 1: a("s_cmp_lt_u32 s35, 32")
            if cls == "W": a(f"s_waitcnt vmcnt({3*NG}) lgkmcnt(0)")
            elif par == 1: a(f"s_waitcnt vmcnt({2*NG}) lgkmcnt(0)")
            else: a("s_waitcnt lgkmcnt(0)")
            if "b" not in X and not ("h" in X and par == 0): a("s_barrier")
        if OPT["trip"] == "1":
            a("s_cselect_b32 s62, 1, 0")
            a("s_cmp_lg_u32 s35, 4")
            a(f"s_cbranch_scc1 {P}_t1")
            stamp(a, 2)
            a.lab(f"{P}_t1")
            a("s_cmp_lg_u32 s62, 0")
        a(f"s_cbranch_scc1 {P}_loop")
        a("s_branch L1_epi")
        if cls == "W" and PF:
            for k in range(3): event(f"{P}_e{k}")
    a.lab("L1_epi")
    a("v_mov_b32 v9, 0")
    a("buffer_load_dword v8, v9, s[80:83], 0 offen sc1")
    for t in mm(1): a(t)
    if OPT["pst"] == "0": stamp(a, 2)
    a("s_waitcnt vmcnt(0)")
    a("s_barrier")
    jobs = []
    for T in range(2):
        for sg in range(2): jobs.append((1, acc(2*T+sg, 2), acc(2*T+sg, 3), T*2048 + sg*256))
    for T in range(2):
        for sg in range(2): jobs.append((0, acc(2*T+sg, 0), acc(2*T+sg, 1), T*2048 + sg*256))
    for T in range(2):
        for u in range(2):  jobs.append((2, acc(2*T, 4+u), acc(2*T+1, 4+u), T*2048 + u*256))
    a("s_mul_i32 s33, s31, 12288")
    a("v_lshlrev_b32 v10, 4, v0")
    a("v_add_u32 v10, s33, v10")
    DF = OPT["df"]
    if DF == "2": a("s_cmp_lg_u32 s22, 0")
    elif DF == "1": a("s_and_b32 s33, s22, s32")
    else: a("s_cmp_lg_u32 s22, s22")
    a("s_cbranch_scc1 L1_epB")
    for typ in ("A", "B"):
        if typ == "B": a.lab("L1_epB")
        for n, (seg, b0, b1, off) in enumerate(jobs):
            t0 = PK1 + 4*n
            if seg == 0:
                for b in (b0, b1):
                    for r in range(4): a(f"v_mul_f32 v{b+r}, s43, v{b+r}")
            a(f"v_cvt_pk_bf16_f32 v{t0}, v{b0}, v{b0+1}")
            a(f"v_cvt_pk_bf16_f32 v{t0+1}, v{b0+2}, v{b0+3}")
            a(f"v_cvt_pk_bf16_f32 v{t0+2}, v{b1}, v{b1+1}")
            a(f"v_cvt_pk_bf16_f32 v{t0+3}, v{b1+2}, v{b1+3}")
            if typ == "A": a(f"buffer_store_dwordx4 {vr(t0)}, v{VST}, s[16:19], s{40+seg} offen offset:{off} sc1")
        if typ == "A": a("s_branch L1_done")
    a("s_cmp_lg_u32 s32, 0")
    a("s_cbranch_scc1 L1_done")
    for n in range(12): a(f"ds_write_b128 v10, {vr(PK1+4*n)} offset:{n*1024}")
    a.lab("L1_done")
    a(f"v_mov_b32 v200, v{VST}")
    a("v_mov_b32 v201, v10")
    a("v_mov_b32 v202, v8")
    a("s_mov_b32 s92, s40")
    a("s_mov_b32 s93, s41")
    a("s_mov_b32 s94, s42")
    a("s_mov_b32 s24, s26")
    return [(seg, off) for seg, _, _, off in jobs]

def kperm(rho):
    return ((rho >> 2) & 1) * 16 + (rho >> 3) * 4 + (rho & 3)

SLOTS = [131072, 0, 65536, 32768, 98304]

def k2(a, jobs):
    N = NAME + "_kernel"
    VL16, VKA, VVA, VIDX, VM, VT, VKL = 1, 2, 3, 4, 5, 6, 7
    ONES = 8; Q = [12, 20]; NEG = [28, 44]; O = [60, 76]; L = [92, 96]; KB = [100, 108]; VB = [116, 124]; S = [132, 148, 164, 180]
    NV = 256
    PF = OPT["pf3"] == "1"
    def sm32(d, av, b): return f"v_smfmac_f32_32x32x32_bf16 {vr(d,16)}, {vr(av)}, {vr(b,8)}, v{VIDX}"
    def sm16(l, b): return f"v_smfmac_f32_16x16x64_bf16 {vr(l)}, {vr(ONES)}, {vr(b,8)}, v{VIDX}"
    def ld(d, soff, off=0, v=VL16): a(f"buffer_load_dwordx4 {vr(d)}, v{v}, s[8:11], {soff} offen offset:{off} sc1")
    def xhalf_max():
        a(f"v_max_f32 v{VM}, v{VM}, v{VT}")
        a("s_nop 0")
        a(f"v_mov_b32 v{VT}, v{VM}")
        a("s_nop 1")
        a(f"v_permlane32_swap_b32 v{VM}, v{VT}")
        a("s_nop 1")
        a(f"v_max_f32 v{VM}, v{VM}, v{VT}")
    def maxof(vals):
        a(f"v_max3_f32 v{VM}, v{vals[0]}, v{vals[1]}, v{vals[2]}")
        a(f"v_max3_f32 v{VT}, v{vals[3]}, v{vals[4]}, v{vals[5]}")
        for i in range(6, len(vals) - 2, 4):
            a(f"v_max3_f32 v{VM}, v{VM}, v{vals[i]}, v{vals[i+1]}")
            a(f"v_max3_f32 v{VT}, v{VT}, v{vals[i+2]}, v{vals[i+3]}")
        a(f"v_max3_f32 v{VM}, v{VM}, v{vals[-2]}, v{vals[-1]}")
        xhalf_max()
    def finish(soff, off, T, o, l):
        a(f"v_rcp_f32 v{VT}, v{l}")
        a("s_nop 0")
        for i in range(16): a(f"v_mul_f32 v{o+i}, v{o+i}, v{VT}")
        for i in range(8): a(f"v_cvt_pk_bf16_f32 v{T+i}, v{o+2*i}, v{o+2*i+1}")
        a(f"buffer_store_dwordx4 {vr(T)}, v{VL16}, s[8:11], {soff} offen{OPT['st2']}")
        a(f"buffer_store_dwordx4 {vr(T+4)}, v{VL16}, s[8:11], {soff} offen offset:1024{OPT['st2']}")
    def consts():
        a(f"v_mov_b32 v{VIDX}, 0xdddddddd")
        a("v_bfe_u32 v5, v0, 2, 1")
        a("v_cmp_eq_u32 vcc, 0, v5")
        a("v_mov_b32 v6, 0x3f803f80")
        a("s_nop 0")
        a(f"v_cndmask_b32 v{ONES}, 0, v6, vcc")
        a(f"v_cndmask_b32 v{ONES+1}, 0, v6, vcc")
        a(f"v_cndmask_b32 v{ONES+2}, v6, 0, vcc")
        a(f"v_cndmask_b32 v{ONES+3}, v6, 0, vcc")
    a("s_lshr_b32 s60, s21, 4")
    a("s_mul_i32 s22, s60, 24")
    a("s_add_u32 s22, s22, 16")
    a("s_load_dwordx2 s[6:7], s[0:1], s22")
    a("s_load_dwordx2 s[58:59], s[0:1], 48")
    a("s_lshl_b32 s22, s20, 2")
    a("s_lshr_b32 s23, s21, 3")
    a("s_add_u32 s22, s22, s23")
    a("s_and_b32 s23, s21, 7")
    a(f"v_lshlrev_b32 v{VL16}, 4, v0")
    a("s_and_b32 s28, s24, 3")
    a("s_lshl_b32 s25, s23, 3")
    a("s_lshl_b32 s29, s28, 1")
    a("s_add_u32 s25, s25, s29")
    a("s_lshl_b32 s26, s22, 17")
    a("s_lshl_b32 s27, s25, 11")
    a("s_add_u32 s27, s27, s26")
    a("v_bfe_u32 v5, v0, 2, 1")
    a("v_and_b32 v6, 0x23, v0")
    a("v_lshl_or_b32 v6, v5, 4, v6")
    a("v_bfe_u32 v5, v0, 3, 2")
    a("v_lshl_or_b32 v6, v5, 2, v6")
    a(f"v_lshlrev_b32 v{VKL}, 4, v6")
    a(f"s_add_u32 s33, s26, {KF}")
    a("s_lshl_b32 s37, s25, 16")
    a("s_lshl_b32 s38, s22, 11")
    a("s_add_u32 s37, s37, s38")
    a(f"s_add_u32 s37, s37, {OF}")
    a("s_lshr_b32 s61, s20, 1")
    a("s_lshl_b32 s61, s61, 2")
    a("s_and_b32 s62, s21, 3")
    a("s_add_u32 s61, s61, s62")
    a("s_and_b32 s62, s20, 1")
    a("s_lshl_b32 s62, s62, 2")
    a("s_bfe_u32 s63, s21, 0x20002")
    a("s_add_u32 s62, s62, s63")
    a("s_lshl_b32 s63, s23, 5")
    a("s_add_u32 s63, s63, s22")
    a(f"s_lshl_b32 s63, s63, {FSH}")
    a(f"s_add_u32 s63, s63, {FL}")
    a("s_cmp_ge_u32 s24, 4")
    a("s_cbranch_scc1 L2_help")
    srd(a, 8, 98, WS_BYTES)
    consts()
    a("s_add_u32 s38, s37, 0x10000")
    a(f"v_mov_b32 v{VKA}, v{VKL}")
    a(f"v_add_u32 v{VVA}, 0x10000, v{VL16}")
    for i in range(40): a(f"v_mov_b32 v{O[0]+i}, 0")
    for i in range(16): a(f"v_mov_b32 v{S[3]+i}, 0")
    for i in range(8): a(f"v_mov_b32 v{VB[1]+i}, 0")
    a("s_mov_b32 s39, 0")
    a("s_mov_b32 s40, 0")
    a("s_waitcnt lgkmcnt(0)")
    if OPT["df"] == "1":
        a("s_cmp_lg_u32 s60, 0")
        a("s_cbranch_scc1 L2_x1")
    a("s_waitcnt vmcnt(0)")
    a.lab("L2_x1")
    a("s_barrier")
    if OPT["pst"] == "0": stamp(a, 3)
    a("s_barrier")
    if OPT["pst"] == "0": stamp(a, 4)
    ld(Q[0], "s27"); ld(KB[0], "s33", 0, VKL); ld(Q[0]+4, "s27", 1024); ld(KB[0]+4, "s33", 1024, VKL)
    ld(Q[1], "s27", 2048); ld(Q[1]+4, "s27", 3072)
    ld(KB[1], "s33", 2048, VKL); ld(KB[1]+4, "s33", 3072, VKL)
    a("s_waitcnt vmcnt(4)")
    a(mfma(S[0], KB[0], Q[0], "0")); a(mfma(S[0], KB[0]+4, Q[0]+4))
    a("s_waitcnt vmcnt(2)")
    a(mfma(S[1], KB[0], Q[1], "0")); a(mfma(S[1], KB[0]+4, Q[1]+4))
    a("s_nop 8")
    maxof([S[0]+r for r in range(16)])
    for i in range(16): a(f"v_sub_f32 v{NEG[0]+i}, 0, v{VM}")
    for i in range(16): a(f"v_sub_f32 v{S[0]+i}, v{S[0]+i}, v{VM}")
    maxof([S[1]+r for r in range(16)])
    for i in range(16): a(f"v_sub_f32 v{NEG[1]+i}, 0, v{VM}")
    a("s_waitcnt vmcnt(0)")
    a("s_barrier")
    if OPT["pst"] == "0": stamp(a, 5)
    if OPT["pst"] == "2":
        stamp(a, 2); a("s_memtime s[72:73]")
    if OPT["tlb"] == "1": a(f"buffer_load_dword v196, v{VL16}, s[8:11], s37 offen")
    a("s_branch L2_it3")

    def item(p, qk=True, rd=True, pre=None, post=None):
        n = (p - 3) % 16
        i = n >> 1; qt = n & 1
        Sn, Sc, Sp = S[(n+1) % 4], S[n % 4], S[(n-1) % 4]
        qn = (n+1) & 1; kbu = KB[((n+1) >> 1) % 2]
        qp = (n-1) & 1; vbu = VB[((n-1) >> 1) % 2]
        if qt == 1:
            kt = (i + 2) % 8
            r = [f"ds_read_b128 {vr(KB[i % 2])}, v{VKA} offset:{kt*2048}", f"ds_read_b128 {vr(KB[i % 2]+4)}, v{VKA} offset:{kt*2048+1024}"]
        else:
            r = [f"ds_read_b128 {vr(VB[i % 2])}, v{VVA} offset:{i*2048}", f"ds_read_b128 {vr(VB[i % 2]+4)}, v{VVA} offset:{i*2048+1024}"]
        if not rd or "r" in OPT["k2x"]: r = []
        ex = [f"v_exp_f32 v{Sc+k}, v{Sc+k}" for k in range(16)]
        post = list(post or [])
        seq = []
        if qk: seq.append(mfma(Sn, kbu, Q[qn], NEG[qn]))
        seq += post[0:1] + ex[0:3]
        if qk: seq.append(mfma(Sn, kbu+4, Q[qn]+4))
        seq += ["s_waitcnt lgkmcnt(0)"] + list(pre or []) + ex[3:6]
        seq.append(sm32(O[qp], vbu, Sp))
        seq += r[:1] + ex[6:9]
        seq.append(sm16(L[qp], Sp))
        seq += post[1:3] + ex[9:10]
        seq.append(sm32(O[qp], vbu+4, Sp+8))
        seq += r[1:] + ex[10:13]
        seq.append(sm16(L[qp], Sp+8))
        seq += post[3:] + ex[13:16]
        for t in seq: a(t)

    a.raw(".p2align 6")
    a.lab("L2_loop")
    item(0, pre=["s_barrier", f"v_add_u32 v{VKA}, s40, v{VKL}"])
    item(1); item(2)
    a(f"v_add_u32 v{VVA}, s41, v{VL16}")
    a.lab("L2_it3")
    for p in range(3, 15): item(p)
    item(15, post=["s_add_u32 s40, s40, 16384", "s_and_b32 s40, s40, 0xffff", "s_add_u32 s41, s40, 0x10000", "s_add_u32 s39, s39, 1", "s_cmp_lt_u32 s39, 8"])
    if OPT["trip"] != "0":
        a("s_cselect_b32 s57, 1, 0")
        for n, tr in zip((2, 3, 4), OPT["trip"].split(",")):
            a(f"s_cmp_lg_u32 s39, {int(tr)+1}")
            a(f"s_cbranch_scc1 L2_t{n}")
            stamp(a, n)
            a.lab(f"L2_t{n}")
        a("s_cmp_lg_u32 s57, 0")
    a("s_cbranch_scc1 L2_loop")
    item(0, rd=False)
    item(1)
    item(2, qk=False, rd=False)
    a("s_nop 1")
    Sp = S[3]
    a(sm32(O[1], VB[1], Sp)); a(sm16(L[1], Sp)); a(sm32(O[1], VB[1]+4, Sp+8)); a(sm16(L[1], Sp+8))
    a("s_nop 4")
    if OPT["pst"] == "1": stamp(a, 5)
    if OPT["pst"] == "2":
        stamp(a, 3); a("s_memtime s[74:75]")
    for qt in range(2):
        a(f"v_mul_f32 v{VM}, 0, v{O[qt]}")
        for i in range(1, 16): a(f"v_fma_f32 v{VM}, v{O[qt]+i}, 0, v{VM}")
        a(f"v_add_f32 v{VM}, v{VM}, v{L[qt]}")
        a(f"v_mov_b32 v{VT}, {f2u(2.0**64):#x}")
        a(f"v_cmp_nlt_f32 vcc, v{VM}, v{VT}")
        a("s_nop 4")
        a(f"s_cbranch_vccnz L2_slow{qt}")
        a.lab(f"L2_fin{qt}")
        finish("s37" if qt == 0 else "s38", 0, S[1+qt], O[qt], L[qt])
    VOB, VOA, VWB, VWA, VST = 10, 11, 12, 16, 20
    F = [24, 56]; ACC = 88
    def Of(f, mt): return F[f] + 4*mt
    def Wf(f, nb): return F[f] + 16 + 4*nb
    def acc(mt, nb): return ACC + (mt*4 + nb)*4
    a("s_and_b32 s31, s24, 1")
    a("s_lshr_b32 s32, s24, 1")
    a("v_and_b32 v2, 15, v0")
    a("v_lshrrev_b32 v3, 4, v0")
    a("s_lshl_b32 s33, s31, 13")
    a("v_lshlrev_b32 v4, 4, v2")
    a("v_lshl_add_u32 v4, v3, 9, v4")
    a(f"v_add_u32 v{VOB}, s33, v4")
    a(f"v_add_u32 v{VOA}, {SLOTS[0]}, v{VOB}")
    a("v_bfe_u32 v4, v0, 2, 3")
    a("v_lshrrev_b32 v5, 5, v0")
    a("v_lshl_add_u32 v5, v5, 4, v4")
    a("v_lshlrev_b32 v5, 8, v5")
    a("v_and_b32 v6, 3, v0")
    a("v_lshl_add_u32 v5, v6, 3, v5")
    a("v_add_u32 v5, 16384, v5")
    a("s_lshl_b32 s33, s32, 2")
    a("v_xor_b32 v4, s33, v4")
    a(f"v_lshl_add_u32 v{VWB}, v4, 5, v5")
    for nb in range(1, 4): a(f"v_xor_b32 v{VWB+nb}, {nb*32}, v{VWB}")
    for nb in range(4): a(f"v_add_u32 v{VWA+nb}, {SLOTS[0]}, v{VWB+nb}")
    for i in range(64): a(f"v_mov_b32 v{ACC+i}, 0")
    for i in range(5): a(f"s_mov_b32 s{44+i}, {SLOTS[(i+1) % 5]}")
    a("s_mov_b32 s35, 0")
    srd(a, 16, 58, 8 << 20)
    a("s_lshl_b32 s40, s61, 19")
    a("s_lshl_b32 s41, s31, 18")
    a("s_add_u32 s40, s40, s41")
    a("s_lshl_b32 s41, s60, 11")
    a("s_add_u32 s40, s40, s41")
    a("s_lshl_b32 s41, s62, 8")
    a("s_add_u32 s40, s40, s41")
    a("s_lshl_b32 s41, s32, 7")
    a("s_add_u32 s40, s40, s41")
    def rdO(f, ks, mt): return [f"ds_read_b128 {vr(Of(f,mt))}, v{VOA} offset:{(mt>>1)*4096 + ks*2048 + (mt&1)*256}"]
    def rdW(f, ks, nb): return [f"ds_read_b64_tr_b16 {vr(Wf(f,nb),2)}, v{VWA+nb} offset:{ks*8192}",
                                f"ds_read_b64_tr_b16 {vr(Wf(f,nb)+2,2)}, v{VWA+nb} offset:{ks*8192+2048}"]
    def reads(f, ks):
        return [rdO(f, ks, 0)] + [rdW(f, ks, nb) for nb in range(4)] + [rdO(f, ks, mt) for mt in (1, 2, 3)]
    def mm(f):
        return [mfma16(acc(mt, nb), Wf(f, nb), Of(f, mt)) for mt in range(4) for nb in range(4)]
    a("s_waitcnt vmcnt(0)")
    if OPT["pst"] == "1": stamp(a, 2)
    a("s_barrier")
    a("s_barrier")
    a("s_barrier")
    if OPT["pst"] == "1": stamp(a, 3)
    flat = lambda g: [t for x in g for t in x]
    def block(f, rd, extra):
        M = mm(f)
        a("s_waitcnt lgkmcnt(3)")
        for i, m_ in enumerate(M):
            if i in (4, 8, 12): a(f"s_waitcnt lgkmcnt({min(15, (2 - (i//4 - 1)) + min(i, len(rd)))})")
            a(m_)
            if i < len(rd): a(rd[i])
            for t in extra.get(i, []): a(t)
    for t in flat(reads(0, 0)): a(t)
    a("s_branch L3_mid")
    a.raw(".p2align 6")
    a.lab("L3_loop")
    block(1, flat(reads(0, 0)), {})
    a.lab("L3_mid")
    block(0, flat(reads(1, 1)), {0: (["s_barrier"] if OPT["la"] == "4" else []) + ["s_mov_b32 s33, s44"], 15: (["s_waitcnt lgkmcnt(0)", "s_barrier"] if OPT["la"] == "5" else []), 1: ["s_mov_b32 s44, s45", "s_mov_b32 s45, s46"],
                                 2: ["s_mov_b32 s46, s47", "s_mov_b32 s47, s48"], 3: ["s_mov_b32 s48, s33"],
                                 5: ["s_add_u32 s35, s35, 1", "s_cmp_lt_u32 s35, 16"],
                                 9: [f"v_add_u32 v{VWA}, s33, v{VWB}"], 10: [f"v_add_u32 v{VWA+1}, s33, v{VWB+1}"],
                                 11: [f"v_add_u32 v{VWA+2}, s33, v{VWB+2}"], 12: [f"v_add_u32 v{VWA+3}, s33, v{VWB+3}"], 13: [f"v_add_u32 v{VOA}, s33, v{VOB}"]})
    a("s_cbranch_scc1 L3_loop")
    block(1, [], {})
    if OPT["pst"] == "1": stamp(a, 4)
    a("s_mul_i32 s41, s24, 9216")
    a("v_mul_u32_u24 v4, 144, v2")
    a("v_lshl_add_u32 v4, v3, 3, v4")
    a("v_add_u32 v4, s41, v4")
    a("v_lshrrev_b32 v5, 3, v0")
    a("v_mul_u32_u24 v6, 144, v5")
    a("v_and_b32 v7, 7, v0")
    a("v_lshl_add_u32 v6, v7, 4, v6")
    a("v_add_u32 v6, s41, v6")
    a("v_lshlrev_b32 v5, 12, v5")
    a(f"v_lshl_add_u32 v{VST}, v7, 4, v5")
    for mt in range(4):
        for nb in range(4):
            b = acc(mt, nb); t0 = F[0] + 2*(mt*4 + nb)
            a(f"v_cvt_pk_bf16_f32 v{t0}, v{b}, v{b+1}")
            a(f"v_cvt_pk_bf16_f32 v{t0+1}, v{b+2}, v{b+3}")
            a(f"ds_write_b64 v4, {vr(t0,2)} offset:{mt*16*144 + nb*32}")
        a(f"ds_read_b128 {vr(F[1]+8*mt)}, v6 offset:{mt*16*144}")
        a(f"ds_read_b128 {vr(F[1]+8*mt+4)}, v6 offset:{mt*16*144 + 8*144}")
        if mt >= 1:
            a("s_waitcnt lgkmcnt(6)")
            for h in range(2):
                a(f"buffer_store_dwordx4 {vr(F[1]+8*(mt-1)+4*h)}, v{VST}, s[16:19], s40 offen{OPT['st3']}")
                a(f"s_add_u32 s40, s40, {8*4096}")
    a("s_waitcnt lgkmcnt(0)")
    for h in range(2):
        a(f"buffer_store_dwordx4 {vr(F[1]+24+4*h)}, v{VST}, s[16:19], s40 offen{OPT['st3']}")
        a(f"s_add_u32 s40, s40, {8*4096}")
    dump(a, 0, "s24")
    a.lab("L2_end")
    a("s_endpgm")

    a.lab("L2_help")
    issued = []
    MC, MP, MP0, SC, SP, OB, LB = 12, 28, 44, 60, 76, [92, 112], [108, 128]
    QB = [132, 140]; KX = [148, 156, 164]; VX = [172, 180, 188]; VPF = 2
    a("s_lshl_b32 s34, s28, 12")
    a("s_add_u32 s35, s33, s34")
    a(f"s_add_u32 s36, s35, {VF-KF}")
    srd(a, 8, 98, WS_BYTES)
    def dma_stage(st):
        for base, so in ((0, "s35"), (65536, "s36")):
            a(f"s_add_u32 m0, s34, {base + (st % 4)*16384}")
            a("s_nop 0")
            for j in range(4):
                a(f"buffer_load_dwordx4 v{VL16}, s[8:11], {so} offen offset:{j*1024} sc1 lds")
            a(f"s_add_u32 {so}, {so}, 16384")
        issued.extend([f"s{st}"]*8)
    def late1():
        consts()
        a(f"s_add_u32 s28, s27, {4<<20}")
        a(f"s_add_u32 s29, s28, {KF}")
        a(f"s_add_u32 s30, s28, {VF}")
        a("s_cmp_eq_u32 s25, 0")
        a("s_cselect_b32 s32, 0, 2048")
        a("s_cselect_b64 s[44:45], 0, -1")
        a("s_sub_u32 s31, s29, s32")
        a("s_sub_u32 s32, s30, s32")
        a(f"s_add_u32 s37, s37, {4<<20}")
        a("s_add_u32 s38, s37, 0x10000")
        if PF:
            a("v_lshrrev_b32 v5, 3, v0")
            a("v_lshlrev_b32 v5, 11, v5")
            a("v_and_b32 v6, 7, v0")
            a(f"v_lshl_add_u32 v{VPF}, v6, 7, v5")
            a("v_cmp_gt_u32 vcc, 32, v0")
            a("v_mov_b32 v5, 0x7fffff00")
            a("s_and_b32 s47, s21, 15")
            a("s_lshl_b32 s47, s47, 17")
            a(f"v_cndmask_b32 v{VPF}, v5, v{VPF}, vcc")
            a("s_lshl_b32 s46, s34, 3")
            a("s_add_u32 s47, s47, s46")
            a("s_and_b32 s46, s20, 1")
            a("s_lshl_b32 s46, s46, 10")
            a("s_add_u32 s47, s47, s46")
    def pf():
        if PF:
            a(f"buffer_load_dword v{VPF+1}, v{VPF}, s[16:19], s47 offen")
            a("s_add_u32 s47, s47, 8192")
    VWD0, VWD1, VFL, VFD = 196, 197, 198, 199
    def dma_w(st):
        sl = SLOTS[st % 5] + 16384
        a(f"s_add_u32 m0, s34, {sl}")
        a("s_nop 0")
        a(f"buffer_load_dwordx4 v{VWD0}, s[16:19], s40 offen lds")
        a("s_add_u32 m0, m0, 1024")
        a("s_nop 0")
        a(f"buffer_load_dwordx4 v{VWD1}, s[16:19], s40 offen lds")
        a("s_add_u32 m0, m0, 1024")
        a(f"s_add_u32 s40, s40, {64*2048}")
        a(f"buffer_load_dwordx4 v{VWD0}, s[16:19], s41 offen lds")
        a("s_add_u32 m0, m0, 1024")
        a("s_nop 0")
        a(f"buffer_load_dwordx4 v{VWD1}, s[16:19], s41 offen lds")
        a(f"s_add_u32 s41, s41, {64*2048}")
    def dma_o(st):
        a(f"s_add_u32 m0, s34, {SLOTS[st % 5]}")
        a("s_nop 0")
        for j in range(4):
            a(f"buffer_load_dwordx4 v{VL16}, s[8:11], s39 offen offset:{j*1024}{OPT['osc']} lds")
        a("s_add_u32 s39, s39, 4096")
    def poll(tag, voff, soff, srd_="s[8:11]", val=1):
        a("s_mov_b32 s43, 0")
        a.lab(tag)
        a(f"buffer_load_dword v{VFD}, v{voff}, {srd_}, {soff} offen sc1")
        a("s_add_u32 s43, s43, 1")
        a("s_waitcnt vmcnt(0)")
        a(f"v_cmp_ne_u32 vcc, {val}, v{VFD}")
        a("s_cmp_gt_u32 s43, 0x200000")
        a(f"s_cbranch_scc1 {tag}x")
        a("s_nop 2")
        a(f"s_cbranch_vccz {tag}x")
        a(f"s_sleep {OPT['slp']}")
        a(f"s_branch {tag}")
        a.lab(tag + "x")
    def lanemask(r, prev):
        m = 0
        for l in range(64):
            q = l & 31; hh = l >> 5
            key = kperm(8*(r//4) + 4*hh + r % 4)
            d = q - key + (32 if prev else 0)
            if 0 <= d <= 14 and d % 2 == 0: m |= 1 << l
        return m
    def masks(prev):
        k = 0
        a(f"v_mov_b32 v{VT}, {NEGBIG:#x}")
        for i in range(20): a(f"v_mov_b32 v{OB[prev]+i}, 0")
        for r in range(16):
            m = lanemask(r, prev)
            sp = 48 + 2*(k % 4); k += 1
            a(f"s_mov_b32 s{sp}, {m & 0xffffffff:#x}")
            a(f"s_mov_b32 s{sp+1}, {m >> 32:#x}")
            a(f"v_cndmask_b32 v{(MP if prev else MC)+r}, v{VT}, 0, s[{sp}:{sp+1}]")
            if prev: a(f"v_cndmask_b32 v{MP0+r}, v{VT}, v{MP+r}, s[44:45]")
    def bcomp(t):
        keep = a.l; a.l = []
        kc, kp, vc, vp = KX[t+1], KX[t], VX[t+1], VX[t]
        ob, lb = OB[t], LB[t]
        a(mfma(SC, kc, QB[t], MC)); a(mfma(SP, kp, QB[t], MP0 if t == 0 else MP))
        a(mfma(SC, kc+4, QB[t]+4)); a(mfma(SP, kp+4, QB[t]+4))
        a("s_nop 10")
        vals = [SC+r for r in range(16)] + [SP+r for r in range(16)]
        maxof(vals)
        for v in vals: a(f"v_sub_f32 v{v}, v{v}, v{VM}")
        for v in vals: a(f"v_exp_f32 v{v}, v{v}")
        a("s_nop 1")
        a(sm32(ob, vc, SC)); a(sm16(lb, SC)); a(sm32(ob, vc+4, SC+8)); a(sm16(lb, SC+8))
        a(sm32(ob, vp, SP)); a(sm16(lb, SP)); a(sm16(lb, SP+8)); a(sm32(ob, vp+4, SP+8))
        a("s_nop 12")
        finish("s37" if t == 0 else "s38", 0, QB[t], ob, lb)
        out = a.l; a.l = keep
        return out
    work = [] if "B" in OPT["k2x"] else bcomp(0) + bcomp(1)
    def cost(t): return 2 if "v_exp" in t else (3 if "mfma" in t else 1)
    tot = sum(cost(t) for t in work)
    slots = [int(c) for c in OPT["bslots"]]
    chunks = {b: [] for b in range(8)}
    acc_ = 0
    for t in work:
        chunks[slots[min(len(slots) - 1, acc_ * len(slots) // tot)]].append(t)
        acc_ += cost(t)
    def psetup():
        a("v_lshrrev_b32 v5, 4, v0")
        a("v_and_b32 v199, 15, v0")
        a(f"v_lshlrev_b32 v{VWD0}, 1, v5")
        a(f"v_xor_b32 v199, v199, v{VWD0}")
        a("v_lshlrev_b32 v199, 4, v199")
        a(f"v_lshl_add_u32 v{VWD0}, v5, 11, v199")
        a(f"v_xor_b32 v{VWD1}, 128, v{VWD0}")
        a(f"v_add_u32 v{VWD1}, 8192, v{VWD1}")
        a(f"v_and_b32 v{VFL}, 31, v0")
        a(f"v_lshlrev_b32 v{VFL}, {FSH}, v{VFL}")
        a("s_lshl_b32 s39, s60, 22")
        a("s_lshl_b32 s40, s61, 18")
        a("s_add_u32 s39, s39, s40")
        a("s_lshl_b32 s40, s34, 4")
        a("s_add_u32 s39, s39, s40")
        a(f"s_add_u32 s39, s39, {OF}")
        a("s_lshl_b32 s40, s34, 3")
        a("s_lshl_b32 s41, s62, 8")
        a("s_add_u32 s40, s40, s41")
        a("s_add_u32 s41, s40, 16384")
        a("s_lshl_b32 s42, s61, 1")
        a("s_lshr_b32 s43, s34, 13")
        a("s_add_u32 s42, s42, s43")
        a("s_add_u32 s42, s42, 8")
        a("s_lshr_b32 s43, s61, 1")
        a("s_cmp_eq_u32 s60, 0")
        a("s_cselect_b32 s42, s43, s42")
        a(f"s_lshl_b32 s42, s42, {5+FSH}")
        a(f"s_add_u32 s42, s42, {FL}")
        a("s_lshl_b32 s89, s25, 4")
        a("s_add_u32 s89, s89, s22")
        a("s_add_u32 s89, s89, 256")
        a(f"s_lshl_b32 s89, s89, {FSH}")
        a(f"s_add_u32 s89, s89, {FL}")
    def publish(base, tag=None):
        if tag:
            a("s_cmp_lg_u32 s24, 4")
            a(f"s_cbranch_scc1 {tag}")
        a("s_mov_b64 exec, 1")
        a(f"buffer_store_dword v204, v203, s[8:11], {base} offen sc1")
        a("s_mov_b64 exec, -1")
        if tag: a.lab(tag)
        else: issued.append("f")
    def wait_for(tags):
        idx_ = [i for i, x in enumerate(issued) if x in tags]
        if idx_: a(f"s_waitcnt vmcnt({min(63, len(issued) - 1 - max(idx_))})")
    a("v_mov_b32 v203, 0")
    a("v_mov_b32 v204, 1")
    a("v_and_b32 v205, 7, v0")
    a(f"v_lshlrev_b32 v205, {FSH}, v205")
    a("s_lshr_b32 s84, s22, 1")
    a(f"s_lshl_b32 s84, s84, {3+FSH}")
    a(f"s_add_u32 s84, s84, {FL + (1280 << FSH)}")
    def late2():
        a("s_lshr_b32 s85, s22, 1")
        a("s_lshl_b32 s85, s85, 5")
        a("s_lshr_b32 s43, s25, 1")
        a("s_add_u32 s85, s85, s43")
        a("s_add_u32 s85, s85, 1407")
        a(f"s_lshl_b32 s85, s85, {FSH}")
        a(f"s_add_u32 s85, s85, {FL}")
        a("v_and_b32 v207, 1, v0")
        a("v_and_b32 v206, 1, s44")
        a("v_xor_b32 v206, 1, v206")
        a("v_or_b32 v207, v207, v206")
        a(f"v_lshlrev_b32 v207, {FSH}, v207")
    a("s_waitcnt vmcnt(0) lgkmcnt(0)")
    srd(a, 16, 6, 2 << 20)
    a("s_barrier")
    a("s_cmp_eq_u32 s60, 0")
    a("s_cbranch_scc1 L2_hA")
    BF = min(7, slots[-1] + 1)
    QS = [int(c) for c in OPT["qs"]]
    QP = int(OPT["qp"]); BL = int(OPT["bl"])
    PX = 132
    for typ in ("B", "A"):
        T_ = "L2" + typ
        issued[:] = []
        if typ == "A":
            a.lab("L2_hA")
            publish("s95", T_ + "_p1")
        else:
            if OPT["df"] == "2":
                for n in range(12): a(f"ds_read_b128 {vr(PX+4*n)}, v201 offset:{n*1024}")
            if OPT["df"] == "0": publish("s95")
        a("s_cmp_lg_u32 s24, 5")
        a(f"s_cbranch_scc1 {T_}_qx")
        a("v_cmp_ne_u32 vcc, 0x100, v202")
        a("s_nop 4")
        a(f"s_cbranch_vccz {T_}_cx")
        poll(T_ + "_c", 203, "0", "s[80:83]", "0x100")
        if OPT["xslp"] != "0": a(f"s_sleep {OPT['xslp']}")
        poll(T_ + "_q", 205, "s84")
        a("s_waitcnt lgkmcnt(0)")
        a("s_barrier")
        dma_stage(0)
        a("s_waitcnt vmcnt(0)")
        a("s_barrier")
        dma_stage(1); dma_stage(2)
        qst = []
        if typ == "B":
            for n, (seg, off) in enumerate(jobs if OPT["df"] != "0" else []):
                qst.append(f"buffer_store_dwordx4 {vr(PK1+4*n)}, v200, s[8:11], s{92+seg} offen offset:{off} sc1")
            for n, (seg, off) in enumerate(jobs if OPT["df"] == "2" else []):
                qst.append(f"buffer_store_dwordx4 {vr(PX+4*n)}, v200, s[8:11], s{86+seg} offen offset:{off} sc1")
            for sg in range(3): a(f"s_sub_u32 s{86+sg}, s{92+sg}, 0x20000")
        def qstores(b):
            k = [i for i, x in enumerate(QS) if x == b]
            per = -(-len(qst) // len(QS))
            for i in k:
                for t in qst[i*per:(i+1)*per]:
                    a(t); issued.append("q")
        qstores(0)
        late1(); late2(); masks(0)
        for b in range(1, 8):
            wait_for([f"s{b}"])
            a("s_barrier")
            if b <= 5: dma_stage(b + 2)
            qstores(b)
            if b == QP and typ == "B" and OPT["df"] != "0":
                wait_for(["q"]); publish("s95")
            if b == 1:
                masks(1); psetup()
            if b == BL:
                poll(T_ + "_b", 207, "s85"); issued[:] = []
                for t in range(2): ld(QB[t], "s28", t*2048); ld(QB[t]+4, "s28", t*2048+1024)
                ld(KX[0], "s31", 0, VKL); ld(KX[0]+4, "s31", 1024, VKL)
                for t in range(2): ld(KX[t+1], "s29", t*2048, VKL); ld(KX[t+1]+4, "s29", t*2048+1024, VKL)
                ld(VX[0], "s32"); ld(VX[0]+4, "s32", 1024)
                for t in range(2): ld(VX[t+1], "s30", t*2048); ld(VX[t+1]+4, "s30", t*2048+1024)
                issued.extend(["B"]*16)
            if b == slots[0]: wait_for(["B"])
            if b == BF:
                wait_for(["st"]); publish("s89")
            for c in OPT['pfs']:
                if int(c) == b and PF:
                    pf(); issued.append("p")
            if b == 5 and OPT["tlb"] == "1":
                srd(a, 12, 58, 8 << 20)
                a("v_lshlrev_b32 v206, 21, v0")
                a("buffer_load_dword v206, v206, s[12:15], 0 offen"); issued.append("p")
            if b >= 6:
                if b == 6:
                    dma_w(0); issued.extend(["w0"]*4)
                dma_w(b - 5); issued.extend([f"w{b-5}"]*4)
            for t in chunks[b]:
                a.l.append(t)
                if "buffer_store" in t: issued.append("st")
        if typ == "B":
            a(f"s_sleep {OPT['bslp']}")
            poll(T_ + "_o", VFL, "s42"); issued[:] = []
            for st in range(3):
                dma_o(st); issued.extend([f"o{st}"]*4)
            a("s_barrier")
            publish("s63", T_ + "_p3")
            a("s_barrier")
            wait_for(["o0"])
            a("s_barrier")
            for st in (3, 4):
                dma_w(st); dma_o(st); issued.extend([f"w{st}"]*4 + [f"o{st}"]*4)
        else:
            a("s_barrier")
            publish("s63", T_ + "_p3")
            dma_w(3); dma_w(4)
            a("s_cmp_lg_u32 s24, 5")
            a(f"s_cbranch_scc1 {T_}_ox")
            if OPT["aslp"] != "0": a(f"s_sleep {OPT['aslp']}")
            poll(T_ + "_o", VFL, "s42"); issued[:] = []
            a("s_barrier")
            for st in range(2):
                dma_o(st); issued.extend([f"o{st}"]*4)
            wait_for(["o0"])
            a("s_barrier")
            for st in range(2, 5):
                dma_o(st); issued.extend([f"o{st}"]*4)
        for t in range(15):
            wait_for([f"o{t+1}", f"w{t+1}"])
            a("s_barrier")
            if t + 5 < 16:
                dma_w(t + 5); dma_o(t + 5); issued.extend([f"w{t+5}"]*4 + [f"o{t+5}"]*4)
        for n in (2, 3, 4, 5): stamp(a, n)
        dump(a, 0, "s24")
        a("s_endpgm")

    s0 = S[0]
    for qt in range(2):
        a.lab(f"L2_slow{qt}")
        a(f"s_add_u32 s36, s26, {VF}")
        a(f"v_mov_b32 v{VM}, 0xff800000")
        a("s_mov_b32 s39, 0")
        a.lab(f"L2_s1{qt}")
        a("s_add_u32 s41, s33, s39")
        ld(KB[0], "s41", 0, VKL); ld(KB[0]+4, "s41", 1024, VKL)
        a("s_waitcnt vmcnt(0)")
        a(mfma(s0, KB[0], Q[qt], "0")); a(mfma(s0, KB[0]+4, Q[qt]+4))
        a("s_nop 15")
        for i in range(0, 16, 2): a(f"v_max3_f32 v{VM}, v{VM}, v{s0+i}, v{s0+i+1}")
        a("s_add_u32 s39, s39, 2048")
        a(f"s_cmp_lt_u32 s39, {64*2048}")
        a(f"s_cbranch_scc1 L2_s1{qt}")
        a(f"v_mov_b32 v{VT}, v{VM}")
        xhalf_max()
        for i in range(16): a(f"v_sub_f32 v{NEG[qt]+i}, 0, v{VM}")
        for i in range(16): a(f"v_mov_b32 v{O[qt]+i}, 0")
        for i in range(4): a(f"v_mov_b32 v{L[qt]+i}, 0")
        a("s_mov_b32 s39, 0")
        a.lab(f"L2_s2{qt}")
        a("s_add_u32 s41, s33, s39")
        ld(KB[0], "s41", 0, VKL); ld(KB[0]+4, "s41", 1024, VKL)
        a("s_add_u32 s41, s36, s39")
        ld(VB[0], "s41"); ld(VB[0]+4, "s41", 1024)
        a("s_waitcnt vmcnt(0)")
        a(mfma(s0, KB[0], Q[qt], NEG[qt])); a(mfma(s0, KB[0]+4, Q[qt]+4))
        a("s_nop 15")
        for i in range(16): a(f"v_exp_f32 v{s0+i}, v{s0+i}")
        a("s_nop 1")
        a(sm32(O[qt], VB[0], s0)); a(sm16(L[qt], s0)); a(sm32(O[qt], VB[0]+4, s0+8)); a(sm16(L[qt], s0+8))
        a("s_nop 7")
        a("s_add_u32 s39, s39, 2048")
        a(f"s_cmp_lt_u32 s39, {64*2048}")
        a(f"s_cbranch_scc1 L2_s2{qt}")
        a("s_nop 15")
        a(f"s_branch L2_fin{qt}")
    return kd(N, NV, 102), f"; @launch kernel={N} grid=(256,1,1) block=(512,1,1) lds=163840"


def main():
    a = A()
    jobs = k1(a)
    desc, launch = k2(a, jobs)
    if OPT["single"] == "1": launch = "; @launch grid=(256,1,1) block=(512,1,1) lds=163840"
    hdr = open("cdna_kernels/" + NAME + ".s.ref").read().split("\n")
    top = [l for l in hdr if l.startswith(";") and "@launch" not in l and "Override" not in l and "grid=ceil" not in l]
    out = "\n".join(top) + "\n" + launch + "\n"
    out += '.amdgcn_target "amdgcn-amd-amdhsa--gfx950"\n.text\n' + a.text()
    out += '.section .rodata,"a"\n' + desc
    open(sys.argv[1], "w").write(out)

main()
```

```python
import struct, math, sys

NAME = "concat_heads__mha_block__sliding_local_dilated__prompt"
OPT = dict(st1=" sc1", st2=" sc1", st3=" sc1", dbg="0", pf1="1", pf3="1", ord1="0", dlt="4", nx="0", ph="8", pf0="2", pfm="255", xl="4", s2e="0", prio="1", k2x="", cpf="1", hprio="0", trip="0", k1x="", tlb="1", dk="0", spin="", bslots="345", pst="0", wfirst="1", slp="10", fsh="5", pfs="2345", opf="0", la="5", mix="1", qs="0", qp="1", bl="2", xslp="0", single="0", df="1", rt="1", pub="3", od="3", pa="1", fm="g", aslp="8", bslp="1", osc=" sc1")
for a in sys.argv[2:]:
    k, v = a.split("=", 1)
    OPT[k] = v

def f2u(x): return struct.unpack("<I", struct.pack("<f", x))[0]
QSCALE = f2u(math.log2(math.e) / math.sqrt(32.0))
NEGBIG = f2u(-1e30)

QF, KF, VF, OF = 0, 8 << 20, 16 << 20, 24 << 20
WS_BYTES = 33 << 20

class A:
    def __init__(s): s.l = []
    def __call__(s, t): s.l.append("    " + t)
    def lab(s, t): s.l.append(t + ":")
    def raw(s, t): s.l.append(t)
    def text(s): return "\n".join(s.l) + "\n"

def vr(b, n=4): return f"v[{b}:{b+n-1}]"
def mfma(d, a, b, c=None):
    cc = vr(d, 16) if c is None else (c if isinstance(c, str) else vr(c, 16))
    return f"v_mfma_f32_32x32x16_bf16 {vr(d,16)}, {vr(a)}, {vr(b)}, {cc}"

def mfma16(d, a, b):
    return f"v_mfma_f32_16x16x32_bf16 {vr(d)}, {vr(a)}, {vr(b)}, {vr(d)}"

def spread(main, fill, start=0, every=1, per=1):
    out = []; k = 0
    for i, m in enumerate(main):
        out.append(m)
        if i >= start and (i - start) % every == 0:
            for _ in range(per):
                if k < len(fill):
                    out += fill[k]; k += 1
    while k < len(fill):
        out += fill[k]; k += 1
    return out

def interleave(main, fill, pattern):
    out = []; k = 0
    for i, m in enumerate(main):
        for _ in range(pattern[i] if i < len(pattern) else 0):
            if k < len(fill):
                out += fill[k]; k += 1
        out.append(m)
    while k < len(fill):
        out += fill[k]; k += 1
    return out

def kd(name, vgpr, sgpr=96):
    acc = (vgpr + 3) // 4 * 4
    return f""".p2align 6
.amdhsa_kernel {name}
  .amdhsa_next_free_vgpr {vgpr}
  .amdhsa_next_free_sgpr {sgpr}
  .amdhsa_accum_offset {acc}
  .amdhsa_group_segment_fixed_size 0
  .amdhsa_kernarg_size 72
  .amdhsa_user_sgpr_count 2
  .amdhsa_user_sgpr_kernarg_segment_ptr 1
  .amdhsa_system_sgpr_workgroup_id_x 1
.end_amdhsa_kernel
"""

_cp = [0]
DBG = OPT["dbg"] in ("1", "2", "3", "4")
def stamp(a, n):
    if DBG:
        a(f"{'s_memrealtime' if OPT['rt'] == '1' and n >= 2 else 's_memtime'} s[{64+2*n}:{65+2*n}]")
def rstamp(a, n):
    if DBG:
        a(f"s_memrealtime s[{64+2*n}:{65+2*n}]")
def dump(a, kidx, wave_sgpr, nst=8):
    if not DBG: return
    if OPT["dbg"] == "4":
        _cp[0] += 1
        sk = f"Ldbg{_cp[0]}"
        a("s_lshl_b32 s92, s2, 3")
        a(f"s_add_u32 s92, s92, {wave_sgpr}")
        a(f"s_cmp_lg_u32 s92, {OPT['dk']}")
        a(f"s_cbranch_scc1 {sk}")
        a("s_waitcnt vmcnt(0)")
        a("s_memrealtime s[78:79]")
        a("s_waitcnt lgkmcnt(0)")
        a(f"s_sub_u32 s93, s{64+2*int(OPT['spin'])}, s66")
        a.lab(sk + "s")
        a("s_memrealtime s[62:63]")
        a("s_waitcnt lgkmcnt(0)")
        a("s_sub_u32 s62, s62, s78")
        a("s_cmp_lt_u32 s62, s93")
        a(f"s_cbranch_scc1 {sk}s")
        a.lab(sk)
        return
    if OPT["dbg"] == "2":
        if kidx != int(OPT["dk"]): return
        _cp[0] += 1
        sk = f"Ldbg{_cp[0]}"
        a("s_load_dwordx2 s[88:89], s[0:1], 56")
        a("s_waitcnt lgkmcnt(0) vmcnt(0)")
        a(f"s_memtime s[{64+2*(nst-2)}:{65+2*(nst-2)}]")
        a(f"s_memrealtime s[{64+2*(nst-1)}:{65+2*(nst-1)}]")
        a("s_waitcnt lgkmcnt(0)")
        a(f"s_sub_u32 s88, s88, {512*kidx}")
        a("s_subb_u32 s89, s89, 0")
        a("s_mov_b32 s90, 64")
        a("s_mov_b32 s91, 0x00020000")
        a("s_lshl_b32 s92, s2, 3")
        a(f"s_add_u32 s92, s92, {wave_sgpr}")
        a("s_cmp_eq_u32 s92, 805")
        a("s_cselect_b32 s93, 32, 0x1000")
        a("s_cmp_eq_u32 s92, 0")
        a("s_cselect_b32 s92, 0, s93")
        a("v_mov_b32 v2, 0")
        for n in range(2, nst):
            base = 64 if n < nst-1 else 66
            a(f"s_sub_u32 s93, s{64+2*n}, s{base}")
            a("v_mov_b32 v3, s93")
            a(f"buffer_store_dword v3, v2, s[88:91], s92 offen offset:{4*(n-2)}")
            a("s_nop 1")
        return
    a("s_load_dwordx2 s[88:89], s[0:1], 64")
    a("s_waitcnt lgkmcnt(0) vmcnt(0)")
    a(f"s_memtime s[{64+2*(nst-2)}:{65+2*(nst-2)}]")
    a(f"s_memrealtime s[{64+2*(nst-1)}:{65+2*(nst-1)}]")
    a("s_waitcnt lgkmcnt(0)")
    a("s_mov_b32 s90, 0x8000000")
    a("s_mov_b32 s91, 0x00020000")
    a("s_lshl_b32 s92, s2, 3")
    a(f"s_add_u32 s92, s92, {wave_sgpr}")
    a("s_lshl_b32 s92, s92, 6")
    a(f"s_add_u32 s92, s92, {(64+kidx) << 20}")
    a("v_mov_b32 v2, 0")
    for n in range(nst):
        a(f"v_mov_b32 v3, s{64+2*n}")
        a(f"buffer_store_dword v3, v2, s[88:91], s92 offen offset:{4*n}")
        a("s_nop 1")
    if OPT["dbg"] == "3" and kidx == 2:
        _cp[0] += 1
        sk = f"Ldbg{_cp[0]}"
        a("s_lshl_b32 s92, s2, 3")
        a(f"s_add_u32 s92, s92, {wave_sgpr}")
        a(f"s_cmp_lg_u32 s92, {OPT['dk']}")
        a(f"s_cbranch_scc1 {sk}")
        a(f"s_add_u32 s88, s88, {(64 << 20) + int(OPT['dk'])*64}")
        a("s_addc_u32 s89, s89, 0")
        a("s_load_dwordx8 s[40:47], s[88:89], 0")
        a("s_add_u32 s88, s88, 0x100000")
        a("s_addc_u32 s89, s89, 0")
        a("s_load_dwordx8 s[48:55], s[88:89], 0")
        a("s_load_dwordx2 s[88:89], s[0:1], 56")
        a("s_waitcnt lgkmcnt(0)")
        a("s_mov_b32 s90, 64")
        k = 0
        for b, st in ((40, 1), (48, 1), (64, 2)):
            for n, ref in ((3, b), (4, b), (6, b), (1, 41), (7, 41)):
                a(f"s_sub_u32 s93, s{b+st*n}, s{ref}")
                a("v_mov_b32 v3, s93")
                a(f"buffer_store_dword v3, v2, s[88:91], 0 offen offset:{4*k}")
                a("s_nop 1")
                k += 1
        if OPT["spin"] != "":
            q, mult, unit = OPT["spin"].split(",")
            x, y = q.split("-")
            a(f"s_sub_u32 s93, s{x}, s{y}")
            a(f"s_mul_i32 s93, s93, {mult}")
            ins = "s_memrealtime" if unit == "r" else "s_memtime"
            a(f"{ins} s[60:61]")
            a("s_waitcnt lgkmcnt(0)")
            a.lab(sk + "s")
            a(f"{ins} s[62:63]")
            a("s_waitcnt lgkmcnt(0)")
            a("s_sub_u32 s62, s62, s60")
            a("s_cmp_lt_u32 s62, s93")
            a(f"s_cbranch_scc1 {sk}s")
        a.lab(sk)

def codepf(a, start, end, vtmp, lane="v0"):
    if OPT["cpf"] != "1": return
    _cp[0] += 1
    l = f"Lcp{_cp[0]}"
    a("s_getpc_b64 s[56:57]")
    a.lab(l)
    a(f"s_add_u32 s56, s56, {start}-{l}")
    a(f"s_addc_u32 s57, s57, ({start}-{l})>>32")
    a(f"v_lshlrev_b32 v{vtmp}, 7, {lane}")
    a(f"v_min_u32 v{vtmp}, ({end})-({start})-4, v{vtmp}")
    a(f"global_load_dword v{vtmp}, v{vtmp}, s[56:57]")

def head(a, name):
    a.raw(f".globl {name}\n.p2align 8\n.type {name},@function\n{name}:")

def srd(a, d, base, nbytes):
    a(f"s_mov_b32 s{d}, s{base}")
    a(f"s_mov_b32 s{d+1}, s{base+1}")
    a(f"s_mov_b32 s{d+2}, {nbytes:#x}")
    a(f"s_mov_b32 s{d+3}, 0x00020000")

def place(main, fill, per=2, start=0):
    out = []; k = 0
    for i, m in enumerate(main):
        out.append(m)
        if i >= start:
            out += fill[k:k+per]; k += per
    out += fill[k:]
    return out

def sched(M, rd, d, post, late, late_dma=False):
    n = len(M)
    gaps = [[] for _ in range(n)]
    if late_dma: rg = list(range(len(rd))); dg = [len(rd) + 2*k for k in range(len(d))]
    else:
        dg = [1 + 4*k for k in range(len(d))]; rg = [g for g in range(n) if g not in dg][:len(rd)]
    for g, t in zip(rg, rd): gaps[g].append(t)
    for g, (m_, l_) in zip(dg, d):
        gaps[g-1].append(m_); gaps[g].append(l_)
    def runs(ops):
        out = []
        for t in ops:
            if t.startswith("s_cselect") : out[-1].append(t)
            else: out.append([t])
        return out
    def put(run, g0):
        g = g0
        while g < n - 1 and len(gaps[g]) + len(run) > 3: g += 1
        gaps[g] += run
        return g
    g = (dg[len(d)-1] if d else 0)
    for r in runs(post): g = put(r, g)
    g = 0
    for r in runs(late):
        if r[0].startswith("v_"): g = max(g, rg[-1] if rg else 0)
        g = put(r, g)
    seq = []
    for i, m_ in enumerate(M):
        seq.append(m_); seq += gaps[i]
    return seq

FL = 32 << 20
FSH = int(OPT['fsh'])
PK1 = 208

def k1(a):
    N = NAME + "_kernel"
    head(a, N)
    XS, WS, WSL = 32768, 98304, 12288
    VD, VXB, VXA, VWB, VWA, VST, VPX, VPW, VPD = 10, 18, 20, 22, 24, 26, 27, 28, 29
    F = [32, 72]; ACC = 112; NV = 208
    PF = OPT["pf1"] == "1"
    DLT = int(OPT["dlt"]); PST = 2
    def A_(f, mt): return F[f] + 4*mt
    def B_(f, nb): return F[f] + 16 + 4*nb
    def acc(mt, nb): return ACC + (mt*6 + nb)*4
    a("s_cmp_ge_u32 s2, 256")
    a("s_cbranch_scc1 L2_end")
    stamp(a, 0); rstamp(a, 1)
    a("s_and_b32 s20, s2, 7")
    a("s_lshr_b32 s21, s2, 3")
    MIX = OPT["mix"] == "1"
    if MIX: a("s_lshr_b32 s22, s21, 4")
    else: a("s_lshr_b32 s22, s20, 2")
    a("s_mul_i32 s23, s22, 24")
    a("s_load_dwordx4 s[4:7], s[0:1], s23")
    a("s_load_dwordx4 s[96:99], s[0:1], 56")
    a("s_load_dwordx4 s[88:91], s[0:1], 0")
    a("v_lshrrev_b32 v1, 6, v0")
    a("v_and_b32 v0, 63, v0")
    a("v_readfirstlane_b32 s26, v1")
    a("s_and_b32 s24, s20, 1")
    a("s_lshl_b32 s24, s24, 2")
    a("s_and_b32 s25, s21, 3")
    a("s_add_u32 s24, s24, s25")
    if MIX:
        a("s_lshr_b32 s25, s20, 1")
        a("s_xor_b32 s53, s25, s22")
        a("s_lshl_b32 s25, s53, 2")
        a("s_bfe_u32 s27, s21, 0x20002")
    else:
        a("s_bfe_u32 s25, s20, 0x10001")
        a("s_lshl_b32 s25, s25, 3")
        a("s_lshr_b32 s27, s21, 2")
    a("s_add_u32 s25, s25, s27")
    a("s_and_b32 s31, s26, 3")
    a("s_lshr_b32 s32, s26, 2")
    PH = OPT["ph"]
    if PH == "0": a("s_mov_b32 s44, 0")
    elif PH == "1":
        a("s_lshl_b32 s44, s20, 1")
    elif PH == "2":
        a("s_lshl_b32 s44, s20, 1")
        a("s_and_b32 s45, s21, 1")
        a("s_add_u32 s44, s44, s45")
    elif PH in ("6", "7", "8"):
        a("s_lshr_b32 s54, s20, 1")
        a("s_lshl_b32 s54, s54, 2")
        a("s_and_b32 s45, s20, 1")
        a("s_mul_i32 s45, s45, 10")
        a("s_add_u32 s54, s54, s45")
        a("s_and_b32 s54, s54, 15")
        if PH == "6": a("s_and_b32 s45, s21, 1")
        elif PH == "7": a("s_mov_b32 s45, s22")
        else: a("s_mov_b32 s45, 0")
        a("s_add_u32 s44, s54, s45")
    elif PH == "5":
        a("s_lshl_b32 s44, s20, 1")
        a("s_add_u32 s44, s44, s22")
    elif PH == "3":
        a("s_lshl_b32 s44, s22, 1")
        a("s_and_b32 s45, s20, 1")
        a("s_add_u32 s44, s44, s45")
        a("s_lshl_b32 s44, s44, 2")
        a("s_and_b32 s45, s21, 3")
        a("s_add_u32 s44, s44, s45")
    elif PH == "4":
        a("s_lshl_b32 s44, s22, 1")
        a("s_and_b32 s45, s20, 1")
        a("s_add_u32 s44, s44, s45")
        a("s_lshl_b32 s44, s44, 2")
    a("v_lshrrev_b32 v2, 3, v0")
    a("v_and_b32 v3, 7, v0")
    a("v_lshrrev_b32 v4, 4, v0")

    def rdA(f, ks, mt): return [f"ds_read_b128 {vr(A_(f,mt))}, v{VXA+ks} offset:{mt*2048}"]
    def rdB(f, nb):
        o = (nb//2)*4096
        return [f"ds_read_b64_tr_b16 {vr(B_(f,nb),2)}, v{VWA+nb%2} offset:{o}",
                f"ds_read_b64_tr_b16 {vr(B_(f,nb)+2,2)}, v{VWA+nb%2} offset:{o+512}"]
    def reads(f, ks):
        r = rdB(f, 0)
        for mt in range(4): r += rdA(f, ks, mt)
        for nb in range(1, 6): r += rdB(f, nb)
        return r
    def mm(f):
        r = []
        for nb in range(6):
            for mt in range(4):
                if nb < 4: r.append(mfma16(acc(mt, nb), B_(f, nb), A_(f, mt)))
                else:      r.append(mfma16(acc(mt, nb), A_(f, mt), B_(f, nb)))
        return r

    def common_setup():
        srd(a, 16, 98, WS_BYTES)
        a("v_and_b32 v2, 15, v0")
        a("v_lshrrev_b32 v3, 4, v0")
        a("v_bfe_u32 v4, v0, 1, 3")
        a("s_lshl_b32 s33, s31, 13")
        a("v_lshlrev_b32 v5, 7, v2")
        a("v_add_u32 v5, s33, v5")
        a("v_xor_b32 v6, v3, v4")
        a(f"v_lshl_add_u32 v{VXB}, v6, 4, v5")
        a(f"v_xor_b32 v{VXB+1}, 64, v{VXB}")
        a(f"v_mov_b32 v{VXA}, v{VXB}")
        a(f"v_mov_b32 v{VXA+1}, v{VXB+1}")
        a("v_bfe_u32 v4, v0, 2, 2")
        a("v_lshl_add_u32 v4, v3, 3, v4")
        a("v_lshlrev_b32 v4, 7, v4")
        a("v_and_b32 v6, 3, v0")
        a("v_lshl_add_u32 v4, v6, 3, v4")
        a("v_bfe_u32 v5, v0, 3, 2")
        a("s_lshl_b32 s33, s32, 1")
        a("v_xor_b32 v5, s33, v5")
        a(f"v_lshl_add_u32 v{VWB}, v5, 5, v4")
        a(f"v_xor_b32 v{VWB+1}, 32, v{VWB}")
        a(f"v_add_u32 v{VWA}, {WS}, v{VWB}")
        a(f"v_add_u32 v{VWA+1}, {WS}, v{VWB+1}")
        a("v_lshlrev_b32 v4, 4, v2")
        a(f"v_lshl_add_u32 v{VST}, v3, 9, v4")
        for i in range(96): a(f"v_mov_b32 v{ACC+i}, 0")
        a("s_lshl_b32 s40, s22, 22")
        a("s_lshl_b32 s41, s25, 1")
        a("s_add_u32 s41, s41, s32")
        a("s_lshl_b32 s41, s41, 17")
        a("s_add_u32 s40, s40, s41")
        a("s_lshl_b32 s41, s24, 14")
        a("s_add_u32 s40, s40, s41")
        a("s_lshl_b32 s41, s31, 12")
        a("s_add_u32 s40, s40, s41")
        a(f"s_add_u32 s41, s40, {KF}")
        a(f"s_add_u32 s42, s40, {VF}")
        a(f"s_mov_b32 s43, {QSCALE:#x}")
        a("s_lshl_b32 s95, s25, 3")
        a("s_add_u32 s95, s95, s24")
        a("s_lshl_b32 s94, s95, 2")
        a("s_add_u32 s94, s94, s31")
        a("s_add_u32 s94, s94, 1408")
        a("s_add_u32 s95, s95, 1280")
        a("s_cmp_eq_u32 s22, 0")
        a("s_cselect_b32 s95, s95, s94")
        a(f"s_lshl_b32 s95, s95, {FSH}")
        a(f"s_add_u32 s95, s95, {FL}")
        srd(a, 80, 96, 256)
        a("s_mov_b32 s33, 0")
        a(f"s_mov_b32 s34, {WS}")
        a("s_mov_b32 s35, 0")

    wupd = [f"s_add_u32 s34, s34, {WSL}", f"s_cmp_eq_u32 s34, {WS+5*WSL}", f"s_cselect_b32 s34, {WS}, s34",
            f"v_add_u32 v{VWA}, s34, v{VWB}", f"v_add_u32 v{VWA+1}, s34, v{VWB+1}", "s_add_u32 s35, s35, 1"]
    xupd = [f"s_add_u32 s33, s33, {XS}", f"s_cmp_eq_u32 s33, {3*XS}", "s_cselect_b32 s33, 0, s33",
            f"v_add_u32 v{VXA}, s33, v{VXB}", f"v_add_u32 v{VXA+1}, s33, v{VXB+1}"]

    def mix(dma, other):
        out = []; o = list(other)
        for m, l in dma:
            out.append(m)
            out.append(o.pop(0) if o else "s_nop 0")
            out.append(l)
        return out + o

    def event(tag):
        a.lab(tag)
        a("s_add_u32 s48, s54, s51")
        a("s_and_b32 s48, s48, 15")
        a("s_mul_i32 s48, s48, s52")
        a("s_add_u32 s48, s48, s50")
        a(f"buffer_load_dword v{VPD}, v{VPW}, s[84:87], s48 offen")
        a(f"s_add_u32 s51, s51, {PST}")
        a("s_lshl_b32 s49, s51, 1")
        a("s_max_u32 s49, s49, s39")
        a("s_sub_u32 s49, s49, s39")
        a("s_cmp_lt_u32 s51, 16")
        a(f"s_cbranch_scc1 {tag}r")
        a("s_mov_b32 s49, 0x7fff")
        if OPT["cpf"] == "1":
            a("s_cmp_lg_u32 s31, 3")
            a(f"s_cbranch_scc1 {tag}r")
            codepf(a, "L1_epi", "L1_epi+8192", 31)
            codepf(a, "L1_epi+8192", "L1_epi+16384", 9)
            codepf(a, "L1_epi+16384", "L2_slow0", 8)
        a(f"s_branch {tag}r")

    a("s_cmp_lg_u32 s32, 0")
    a("s_cbranch_scc1 L1_W")
    for cls in ("X", "W"):
        P = "L1" + cls
        if cls == "X":
            a("v_lshlrev_b32 v5, 11, v2")
            a("v_xor_b32 v6, v3, v4")
            a("v_lshl_add_u32 v6, v6, 4, v5")
            a("v_xor_b32 v7, 64, v6")
            a(f"v_mov_b32 v{VD}, v6")
            a(f"v_add_u32 v{VD+1}, 16384, v7")
            a(f"v_add_u32 v{VD+2}, 32768, v6")
            a(f"v_add_u32 v{VD+3}, 49152, v7")
            a("s_lshl_b32 s27, s24, 19")
            a("s_lshl_b32 s28, s31, 16")
            a("s_add_u32 s45, s27, s28")
            a("s_lshl_b32 s46, s44, 7")
            a("s_add_u32 s27, s45, s46")
            a("s_add_u32 s28, s27, 0x40000")
            a("s_lshl_b32 s29, s31, 12")
            a(f"s_add_u32 s30, s29, {6*16384}")
            a("s_waitcnt lgkmcnt(0)")
            if OPT["s2e"] == "1": stamp(a, 2)
            srd(a, 8, 4, 4 << 20)
            def grp(par):
                so = "s27" if par == 0 else "s28"
                d = [(f"s_add_u32 m0, s29, {j*1024}", f"buffer_load_dwordx4 v{VD+j}, s[8:11], {so} offen lds") for j in range(4)]
                post = ["s_add_u32 s29, s29, 16384"]
                if par == 0: post += ["s_add_u32 s46, s46, 128", "s_and_b32 s46, s46, 0x7ff", "s_add_u32 s27, s45, s46"]
                if par == 1: post += ["s_add_u32 s28, s27, 0x40000", "s_cmp_eq_u32 s29, s30", f"s_cselect_b32 s38, {6*16384}, 0", "s_sub_u32 s29, s29, s38"]
                return d, post
            NG = 4
        else:
            a.lab("L1_W")
            if OPT["cpf"] == "1":
                a("s_cmp_lg_u32 s26, 7")
                a("s_cbranch_scc1 L1_nocp")
                codepf(a, N, "L1_epi", VPD)
                a.lab("L1_nocp")
            a("v_mul_u32_u24 v5, 6144, v2")
            a("v_and_b32 v6, 1, v4")
            a("v_lshlrev_b32 v6, 1, v6")
            a("s_and_b32 s33, s26, 1")
            a("s_lshl_b32 s33, s33, 2")
            a("v_xor_b32 v6, v3, v6")
            a("v_xor_b32 v6, s33, v6")
            a(f"v_lshl_add_u32 v{VD}, v6, 4, v5")
            a(f"v_add_u32 v{VD+1}, 2048, v{VD}")
            a(f"v_add_u32 v{VD+2}, 4096, v{VD}")
            a("s_lshl_b32 s27, s25, 7")
            a(f"s_mul_i32 s28, s31, {8*6144}")
            a("s_add_u32 s27, s27, s28")
            a(f"s_mul_i32 s28, s44, {64*6144}")
            a("s_add_u32 s27, s27, s28")
            a("s_lshl_b32 s29, s31, 10")
            a(f"s_add_u32 s29, s29, {WS}")
            a(f"s_add_u32 s30, s29, {5*WSL}")
            a("s_waitcnt lgkmcnt(0)")
            if OPT["s2e"] == "1": stamp(a, 2)
            srd(a, 12, 6, 6 << 20)
            def pfsetup():
                a("s_and_b32 s47, s21, 7")
                a("s_bfe_u32 s51, s21, 0x10003")
                a(f"s_add_u32 s51, s51, {OPT['pf0']}")
                a("v_lshlrev_b32 v5, 11, v0")
                a("v_lshrrev_b32 v6, 2, v0")
                a("v_mul_u32_u24 v6, 6144, v6")
                a("v_and_b32 v7, 3, v0")
                a("v_lshl_add_u32 v6, v7, 7, v6")
                a("v_mul_u32_u24 v7, 6144, v0")
                a("s_cmp_lt_u32 s47, 4")
                a("s_cselect_b64 s[56:57], -1, 0")
                a("s_cselect_b32 s84, s88, s90")
                a("s_cselect_b32 s85, s89, s91")
                a(f"s_mov_b32 s86, {6<<20:#x}")
                a(f"s_cselect_b32 s86, {4<<20:#x}, s86")
                a("s_mov_b32 s87, 0x00020000")
                a(f"s_mov_b32 s52, {64*6144}")
                a("s_cselect_b32 s52, 128, s52")
                a(f"v_cndmask_b32 v{VPW}, v6, v5, s[56:57]")
                a("s_and_b32 s48, s20, 1")
                a("s_lshl_b32 s48, s48, 2")
                a("s_add_u32 s48, s48, s47")
                a("s_lshl_b32 s48, s48, 2")
                a("s_add_u32 s48, s48, s31")
                a("s_lshl_b32 s48, s48, 17")
                a("s_lshr_b32 s50, s20, 1")
                a("s_lshl_b32 s50, s50, 9")
                a("s_and_b32 s55, s47, 3")
                a("s_lshl_b32 s55, s55, 11")
                a("s_add_u32 s50, s50, s55")
                a(f"s_mul_i32 s55, s31, {16*6144}")
                a("s_add_u32 s50, s50, s55")
                a("s_cmp_lt_u32 s47, 4")
                a("s_cselect_b32 s50, s48, s50")
                a("s_and_b32 s48, s53, 2")
                a("s_lshl_b32 s48, s48, 9")
                a("s_lshl_b32 s55, s31, 11")
                a("s_add_u32 s48, s48, s55")
                a("s_add_u32 s48, s48, 384")
                a("s_bitcmp1_b32 s53, 0")
                a("s_cselect_b32 s90, s90, s6")
                a("s_cselect_b32 s91, s91, s7")
                a("s_cmp_eq_u32 s47, 7")
                a("s_cselect_b64 s[56:57], -1, 0")
                a("s_cselect_b32 s50, s48, s50")
                a("s_cselect_b32 s84, s90, s84")
                a("s_cselect_b32 s85, s91, s85")
                a("s_cselect_b32 s55, 3, 0")
                a(f"s_cselect_b32 s39, {4+DLT+int(OPT['xl'])}, {4+DLT}")
                a(f"v_cndmask_b32 v{VPW}, v{VPW}, v7, s[56:57]")
                a("s_and_b32 s48, s55, s31")
                a("s_cmp_eq_u32 s48, 3")
                a("s_cselect_b32 s86, 0, s86")
                if OPT["pfm"] != "255":
                    a(f"s_lshr_b32 s48, {OPT['pfm']}, s47")
                    a("s_and_b32 s48, s48, 1")
                    a("s_cselect_b32 s86, s86, 0")
                a("s_lshl_b32 s49, s51, 1")
                a("s_max_u32 s49, s49, s39")
                a("s_sub_u32 s49, s49, s39")
                a("s_cmp_eq_u32 s22, 0")
                a("s_cselect_b32 s49, 0x7fff, s49")
            def grp(par):
                d = [(f"s_add_u32 m0, s29, {g*4096}", f"buffer_load_dwordx4 v{VD+g}, s[12:15], s27 offen lds") for g in range(3)]
                post = [f"s_add_u32 s27, s27, {32*6144}", f"s_add_u32 s29, s29, {WSL}",
                        "s_cmp_eq_u32 s29, s30", f"s_cselect_b32 s38, {5*WSL}, 0", "s_sub_u32 s29, s29, s38"]
                if par == 1: post += [f"s_cmp_ge_u32 s27, {6<<20:#x}", f"s_cselect_b32 s38, {6<<20:#x}, 0", "s_sub_u32 s27, s27, s38"]
                return d, post
            NG = 3
        def emit_grp(par):
            d, post = grp(par)
            for t in mix(d, []) + post: a(t)
        first = 2 if cls == "X" else 1
        for n in range(first): emit_grp(n & 1)
        common_setup()
        if cls == "W" and PF: pfsetup()
        if cls == "X":
            a(f"v_lshlrev_b32 v8, {FSH}, v0")
            a("v_mov_b32 v9, 0")
            a(f"s_lshl_b32 s47, s2, {3+FSH}")
            a(f"s_add_u32 s47, s47, {FL}")
            a("s_cmp_eq_u32 s31, 0")
            a("s_cselect_b64 exec, 0xff, 0")
            a("s_cbranch_execz L1_nofl")
            a("buffer_store_dword v9, v8, s[16:19], s47 offen sc1")
            a.lab("L1_nofl")
            a("s_mov_b64 exec, -1")
        for n in range(first, 4): emit_grp(n & 1)
        npf = 0
        if cls == "W" and PF:
            a("s_cmp_eq_u32 s49, 0")
            a(f"s_cbranch_scc1 {P}_e0")
            a.lab(f"{P}_e0r")
        a(f"s_waitcnt vmcnt({(4-first)*NG + npf})")
        a("s_barrier")
        if cls == "X":
            a("v_mov_b32 v8, 1")
            a("s_cmp_eq_u32 s31, 0")
            a("s_cselect_b64 exec, 1, 0")
            a("s_cbranch_execz L1_noat")
            a("buffer_atomic_add v8, v9, s[80:83], 0 offen sc1")
            a.lab("L1_noat")
            a("s_mov_b64 exec, -1")
        d, post = grp(0)
        for t in reads(0, 0) + mix(d, []) + post + wupd: a(t)
        if cls == "W": a(f"s_waitcnt vmcnt({3*NG + npf})")
        a("s_waitcnt lgkmcnt(0)")
        a("s_barrier")
        a(f"s_branch {P}_odd")
        a.raw(".p2align 6")
        a.lab(f"{P}_loop")
        for par in range(2):
            if par == 1: a.lab(f"{P}_odd")
            d, post = grp(par)
            rd = reads(par, par)
            tail = list(post) + wupd
            if par == 1:
                tail += xupd
                sup = ["s_cmp_lt_u32 s35, 28", f"s_cselect_b32 s10, {4<<20:#x}, 0" if cls == "X" else f"s_cselect_b32 s14, {6<<20:#x}, 0"]
                tail += sup; post = list(post) + sup
            X = OPT["k1x"]
            if "d" in X: d = []
            if "r" in X: rd = []
            fill = rd[:8] + mix(d, rd[8:]) + tail
            if "o" not in X:
                late = [t for t in tail if t not in post]
                late = [t for t in late if not t.startswith("v_")] + [t for t in late if t.startswith("v_")]
                seq = sched(mm(1-par), rd, d, list(post), late, late_dma=("l" in X))
            elif "1" in X: seq = place(mm(1-par), fill, 2, 2)
            elif "3" in X: seq = place(mm(1-par), fill, 3, 0)
            elif "f" in X: seq = rd[:4] + place(mm(1-par), fill[4:], 2, 0)
            else: seq = place(mm(1-par), fill, 2, 0)
            if "p" in X: seq = ["s_setprio 1"] + seq[:len(seq)-8] + ["s_setprio 0"] + seq[len(seq)-8:]
            if "P" in X and cls == "W": seq = ["s_setprio 1"] + seq
            for t in seq: a(t)
            if cls == "W" and PF:
                a("s_cmp_ge_u32 s35, s49")
                a(f"s_cbranch_scc1 {P}_e{par+1}")
                a.lab(f"{P}_e{par+1}r")
            if par == 1: a("s_cmp_lt_u32 s35, 32")
            if cls == "W": a(f"s_waitcnt vmcnt({3*NG}) lgkmcnt(0)")
            elif par == 1: a(f"s_waitcnt vmcnt({2*NG}) lgkmcnt(0)")
            else: a("s_waitcnt lgkmcnt(0)")
            if "b" not in X and not ("h" in X and par == 0): a("s_barrier")
        if OPT["trip"] == "1":
            a("s_cselect_b32 s62, 1, 0")
            a("s_cmp_lg_u32 s35, 4")
            a(f"s_cbranch_scc1 {P}_t1")
            stamp(a, 2)
            a.lab(f"{P}_t1")
            a("s_cmp_lg_u32 s62, 0")
        a(f"s_cbranch_scc1 {P}_loop")
        a("s_branch L1_epi")
        if cls == "W" and PF:
            for k in range(3): event(f"{P}_e{k}")
    a.lab("L1_epi")
    a("v_mov_b32 v9, 0")
    a("buffer_load_dword v8, v9, s[80:83], 0 offen sc1")
    for t in mm(1): a(t)
    if OPT["pst"] == "0": stamp(a, 2)
    a("s_waitcnt vmcnt(0)")
    a("s_barrier")
    jobs = []
    for T in range(2):
        for sg in range(2): jobs.append((1, acc(2*T+sg, 2), acc(2*T+sg, 3), T*2048 + sg*256))
    for T in range(2):
        for sg in range(2): jobs.append((0, acc(2*T+sg, 0), acc(2*T+sg, 1), T*2048 + sg*256))
    for T in range(2):
        for u in range(2):  jobs.append((2, acc(2*T, 4+u), acc(2*T+1, 4+u), T*2048 + u*256))
    a("s_mul_i32 s33, s31, 12288")
    a("v_lshlrev_b32 v10, 4, v0")
    a("v_add_u32 v10, s33, v10")
    DF = OPT["df"]
    if DF == "2": a("s_cmp_lg_u32 s22, 0")
    elif DF == "1": a("s_and_b32 s33, s22, s32")
    else: a("s_cmp_lg_u32 s22, s22")
    a("s_cbranch_scc1 L1_epB")
    for typ in ("A", "B"):
        if typ == "B": a.lab("L1_epB")
        for n, (seg, b0, b1, off) in enumerate(jobs):
            t0 = PK1 + 4*n
            if seg == 0:
                for b in (b0, b1):
                    for r in range(4): a(f"v_mul_f32 v{b+r}, s43, v{b+r}")
            a(f"v_cvt_pk_bf16_f32 v{t0}, v{b0}, v{b0+1}")
            a(f"v_cvt_pk_bf16_f32 v{t0+1}, v{b0+2}, v{b0+3}")
            a(f"v_cvt_pk_bf16_f32 v{t0+2}, v{b1}, v{b1+1}")
            a(f"v_cvt_pk_bf16_f32 v{t0+3}, v{b1+2}, v{b1+3}")
            if typ == "A": a(f"buffer_store_dwordx4 {vr(t0)}, v{VST}, s[16:19], s{40+seg} offen offset:{off} sc1")
        if typ == "A": a("s_branch L1_done")
    a("s_cmp_lg_u32 s32, 0")
    a("s_cbranch_scc1 L1_done")
    for n in range(12): a(f"ds_write_b128 v10, {vr(PK1+4*n)} offset:{n*1024}")
    a.lab("L1_done")
    a(f"v_mov_b32 v200, v{VST}")
    a("v_mov_b32 v201, v10")
    a("v_mov_b32 v202, v8")
    a("s_mov_b32 s92, s40")
    a("s_mov_b32 s93, s41")
    a("s_mov_b32 s94, s42")
    a("s_mov_b32 s24, s26")
    return [(seg, off) for seg, _, _, off in jobs]

def kperm(rho):
    return ((rho >> 2) & 1) * 16 + (rho >> 3) * 4 + (rho & 3)

SLOTS = [131072, 0, 65536, 32768, 98304]

def k2(a, jobs):
    N = NAME + "_kernel"
    VL16, VKA, VVA, VIDX, VM, VT, VKL = 1, 2, 3, 4, 5, 6, 7
    ONES = 8; Q = [12, 20]; NEG = [28, 44]; O = [60, 76]; L = [92, 96]; KB = [100, 108]; VB = [116, 124]; S = [132, 148, 164, 180]
    NV = 256
    PF = OPT["pf3"] == "1"
    def sm32(d, av, b): return f"v_smfmac_f32_32x32x32_bf16 {vr(d,16)}, {vr(av)}, {vr(b,8)}, v{VIDX}"
    def sm16(l, b): return f"v_smfmac_f32_16x16x64_bf16 {vr(l)}, {vr(ONES)}, {vr(b,8)}, v{VIDX}"
    def ld(d, soff, off=0, v=VL16): a(f"buffer_load_dwordx4 {vr(d)}, v{v}, s[8:11], {soff} offen offset:{off} sc1")
    def xhalf_max():
        a(f"v_max_f32 v{VM}, v{VM}, v{VT}")
        a("s_nop 0")
        a(f"v_mov_b32 v{VT}, v{VM}")
        a("s_nop 1")
        a(f"v_permlane32_swap_b32 v{VM}, v{VT}")
        a("s_nop 1")
        a(f"v_max_f32 v{VM}, v{VM}, v{VT}")
    def maxof(vals):
        a(f"v_max3_f32 v{VM}, v{vals[0]}, v{vals[1]}, v{vals[2]}")
        a(f"v_max3_f32 v{VT}, v{vals[3]}, v{vals[4]}, v{vals[5]}")
        for i in range(6, len(vals) - 2, 4):
            a(f"v_max3_f32 v{VM}, v{VM}, v{vals[i]}, v{vals[i+1]}")
            a(f"v_max3_f32 v{VT}, v{VT}, v{vals[i+2]}, v{vals[i+3]}")
        a(f"v_max3_f32 v{VM}, v{VM}, v{vals[-2]}, v{vals[-1]}")
        xhalf_max()
    def finish(soff, off, T, o, l):
        a(f"v_rcp_f32 v{VT}, v{l}")
        a("s_nop 0")
        for i in range(16): a(f"v_mul_f32 v{o+i}, v{o+i}, v{VT}")
        for i in range(8): a(f"v_cvt_pk_bf16_f32 v{T+i}, v{o+2*i}, v{o+2*i+1}")
        a(f"buffer_store_dwordx4 {vr(T)}, v{VL16}, s[8:11], {soff} offen{OPT['st2']}")
        a(f"buffer_store_dwordx4 {vr(T+4)}, v{VL16}, s[8:11], {soff} offen offset:1024{OPT['st2']}")
    def consts():
        a(f"v_mov_b32 v{VIDX}, 0xdddddddd")
        a("v_bfe_u32 v5, v0, 2, 1")
        a("v_cmp_eq_u32 vcc, 0, v5")
        a("v_mov_b32 v6, 0x3f803f80")
        a("s_nop 0")
        a(f"v_cndmask_b32 v{ONES}, 0, v6, vcc")
        a(f"v_cndmask_b32 v{ONES+1}, 0, v6, vcc")
        a(f"v_cndmask_b32 v{ONES+2}, v6, 0, vcc")
        a(f"v_cndmask_b32 v{ONES+3}, v6, 0, vcc")
    a("s_lshr_b32 s60, s21, 4")
    a("s_mul_i32 s22, s60, 24")
    a("s_add_u32 s22, s22, 16")
    a("s_load_dwordx2 s[6:7], s[0:1], s22")
    a("s_load_dwordx2 s[58:59], s[0:1], 48")
    a("s_lshl_b32 s22, s20, 2")
    a("s_lshr_b32 s23, s21, 3")
    a("s_add_u32 s22, s22, s23")
    a("s_and_b32 s23, s21, 7")
    a(f"v_lshlrev_b32 v{VL16}, 4, v0")
    a("s_and_b32 s28, s24, 3")
    a("s_lshl_b32 s25, s23, 3")
    a("s_lshl_b32 s29, s28, 1")
    a("s_add_u32 s25, s25, s29")
    a("s_lshl_b32 s26, s22, 17")
    a("s_lshl_b32 s27, s25, 11")
    a("s_add_u32 s27, s27, s26")
    a("v_bfe_u32 v5, v0, 2, 1")
    a("v_and_b32 v6, 0x23, v0")
    a("v_lshl_or_b32 v6, v5, 4, v6")
    a("v_bfe_u32 v5, v0, 3, 2")
    a("v_lshl_or_b32 v6, v5, 2, v6")
    a(f"v_lshlrev_b32 v{VKL}, 4, v6")
    a(f"s_add_u32 s33, s26, {KF}")
    a("s_lshl_b32 s37, s25, 16")
    a("s_lshl_b32 s38, s22, 11")
    a("s_add_u32 s37, s37, s38")
    a(f"s_add_u32 s37, s37, {OF}")
    a("s_lshr_b32 s61, s20, 1")
    a("s_lshl_b32 s61, s61, 2")
    a("s_and_b32 s62, s21, 3")
    a("s_add_u32 s61, s61, s62")
    a("s_and_b32 s62, s20, 1")
    a("s_lshl_b32 s62, s62, 2")
    a("s_bfe_u32 s63, s21, 0x20002")
    a("s_add_u32 s62, s62, s63")
    a("s_lshl_b32 s63, s23, 5")
    a("s_add_u32 s63, s63, s22")
    a(f"s_lshl_b32 s63, s63, {FSH}")
    a(f"s_add_u32 s63, s63, {FL}")
    a("s_cmp_ge_u32 s24, 4")
    a("s_cbranch_scc1 L2_help")
    srd(a, 8, 98, WS_BYTES)
    consts()
    a("s_add_u32 s38, s37, 0x10000")
    a(f"v_mov_b32 v{VKA}, v{VKL}")
    a(f"v_add_u32 v{VVA}, 0x10000, v{VL16}")
    for i in range(40): a(f"v_mov_b32 v{O[0]+i}, 0")
    for i in range(16): a(f"v_mov_b32 v{S[3]+i}, 0")
    for i in range(8): a(f"v_mov_b32 v{VB[1]+i}, 0")
    a("s_mov_b32 s39, 0")
    a("s_mov_b32 s40, 0")
    a("s_waitcnt lgkmcnt(0)")
    if OPT["df"] == "1":
        a("s_cmp_lg_u32 s60, 0")
        a("s_cbranch_scc1 L2_x1")
    a("s_waitcnt vmcnt(0)")
    a.lab("L2_x1")
    a("s_barrier")
    if OPT["pst"] == "0": stamp(a, 3)
    a("s_barrier")
    if OPT["pst"] == "0": stamp(a, 4)
    ld(Q[0], "s27"); ld(KB[0], "s33", 0, VKL); ld(Q[0]+4, "s27", 1024); ld(KB[0]+4, "s33", 1024, VKL)
    ld(Q[1], "s27", 2048); ld(Q[1]+4, "s27", 3072)
    ld(KB[1], "s33", 2048, VKL); ld(KB[1]+4, "s33", 3072, VKL)
    a("s_waitcnt vmcnt(4)")
    a(mfma(S[0], KB[0], Q[0], "0")); a(mfma(S[0], KB[0]+4, Q[0]+4))
    a("s_waitcnt vmcnt(2)")
    a(mfma(S[1], KB[0], Q[1], "0")); a(mfma(S[1], KB[0]+4, Q[1]+4))
    a("s_nop 8")
    maxof([S[0]+r for r in range(16)])
    for i in range(16): a(f"v_sub_f32 v{NEG[0]+i}, 0, v{VM}")
    for i in range(16): a(f"v_sub_f32 v{S[0]+i}, v{S[0]+i}, v{VM}")
    maxof([S[1]+r for r in range(16)])
    for i in range(16): a(f"v_sub_f32 v{NEG[1]+i}, 0, v{VM}")
    a("s_waitcnt vmcnt(0)")
    a("s_barrier")
    if OPT["pst"] == "0": stamp(a, 5)
    if OPT["pst"] == "2":
        stamp(a, 2); a("s_memtime s[72:73]")
    if OPT["tlb"] == "1": a(f"buffer_load_dword v196, v{VL16}, s[8:11], s37 offen")
    a("s_branch L2_it3")

    def item(p, qk=True, rd=True, pre=None, post=None):
        n = (p - 3) % 16
        i = n >> 1; qt = n & 1
        Sn, Sc, Sp = S[(n+1) % 4], S[n % 4], S[(n-1) % 4]
        qn = (n+1) & 1; kbu = KB[((n+1) >> 1) % 2]
        qp = (n-1) & 1; vbu = VB[((n-1) >> 1) % 2]
        if qt == 1:
            kt = (i + 2) % 8
            r = [f"ds_read_b128 {vr(KB[i % 2])}, v{VKA} offset:{kt*2048}", f"ds_read_b128 {vr(KB[i % 2]+4)}, v{VKA} offset:{kt*2048+1024}"]
        else:
            r = [f"ds_read_b128 {vr(VB[i % 2])}, v{VVA} offset:{i*2048}", f"ds_read_b128 {vr(VB[i % 2]+4)}, v{VVA} offset:{i*2048+1024}"]
        if not rd or "r" in OPT["k2x"]: r = []
        ex = [f"v_exp_f32 v{Sc+k}, v{Sc+k}" for k in range(16)]
        post = list(post or [])
        seq = []
        if qk: seq.append(mfma(Sn, kbu, Q[qn], NEG[qn]))
        seq += post[0:1] + ex[0:3]
        if qk: seq.append(mfma(Sn, kbu+4, Q[qn]+4))
        seq += ["s_waitcnt lgkmcnt(0)"] + list(pre or []) + ex[3:6]
        seq.append(sm32(O[qp], vbu, Sp))
        seq += r[:1] + ex[6:9]
        seq.append(sm16(L[qp], Sp))
        seq += post[1:3] + ex[9:10]
        seq.append(sm32(O[qp], vbu+4, Sp+8))
        seq += r[1:] + ex[10:13]
        seq.append(sm16(L[qp], Sp+8))
        seq += post[3:] + ex[13:16]
        for t in seq: a(t)

    a.raw(".p2align 6")
    a.lab("L2_loop")
    item(0, pre=["s_barrier", f"v_add_u32 v{VKA}, s40, v{VKL}"])
    item(1); item(2)
    a(f"v_add_u32 v{VVA}, s41, v{VL16}")
    a.lab("L2_it3")
    for p in range(3, 15): item(p)
    item(15, post=["s_add_u32 s40, s40, 16384", "s_and_b32 s40, s40, 0xffff", "s_add_u32 s41, s40, 0x10000", "s_add_u32 s39, s39, 1", "s_cmp_lt_u32 s39, 8"])
    if OPT["trip"] != "0":
        a("s_cselect_b32 s57, 1, 0")
        for n, tr in zip((2, 3, 4), OPT["trip"].split(",")):
            a(f"s_cmp_lg_u32 s39, {int(tr)+1}")
            a(f"s_cbranch_scc1 L2_t{n}")
            stamp(a, n)
            a.lab(f"L2_t{n}")
        a("s_cmp_lg_u32 s57, 0")
    a("s_cbranch_scc1 L2_loop")
    item(0, rd=False)
    item(1)
    item(2, qk=False, rd=False)
    a("s_nop 1")
    Sp = S[3]
    a(sm32(O[1], VB[1], Sp)); a(sm16(L[1], Sp)); a(sm32(O[1], VB[1]+4, Sp+8)); a(sm16(L[1], Sp+8))
    a("s_nop 4")
    if OPT["pst"] == "1": stamp(a, 5)
    if OPT["pst"] == "2":
        stamp(a, 3); a("s_memtime s[74:75]")
    for qt in range(2):
        a(f"v_mul_f32 v{VM}, 0, v{O[qt]}")
        for i in range(1, 16): a(f"v_fma_f32 v{VM}, v{O[qt]+i}, 0, v{VM}")
        a(f"v_add_f32 v{VM}, v{VM}, v{L[qt]}")
        a(f"v_mov_b32 v{VT}, {f2u(2.0**64):#x}")
        a(f"v_cmp_nlt_f32 vcc, v{VM}, v{VT}")
        a("s_nop 4")
        a(f"s_cbranch_vccnz L2_slow{qt}")
        a.lab(f"L2_fin{qt}")
        finish("s37" if qt == 0 else "s38", 0, S[1+qt], O[qt], L[qt])
    VOB, VOA, VWB, VWA, VST = 10, 11, 12, 16, 20
    F = [24, 56]; ACC = 88
    def Of(f, mt): return F[f] + 4*mt
    def Wf(f, nb): return F[f] + 16 + 4*nb
    def acc(mt, nb): return ACC + (mt*4 + nb)*4
    a("s_and_b32 s31, s24, 1")
    a("s_lshr_b32 s32, s24, 1")
    a("v_and_b32 v2, 15, v0")
    a("v_lshrrev_b32 v3, 4, v0")
    a("s_lshl_b32 s33, s31, 13")
    a("v_lshlrev_b32 v4, 4, v2")
    a("v_lshl_add_u32 v4, v3, 9, v4")
    a(f"v_add_u32 v{VOB}, s33, v4")
    a(f"v_add_u32 v{VOA}, {SLOTS[0]}, v{VOB}")
    a("v_bfe_u32 v4, v0, 2, 3")
    a("v_lshrrev_b32 v5, 5, v0")
    a("v_lshl_add_u32 v5, v5, 4, v4")
    a("v_lshlrev_b32 v5, 8, v5")
    a("v_and_b32 v6, 3, v0")
    a("v_lshl_add_u32 v5, v6, 3, v5")
    a("v_add_u32 v5, 16384, v5")
    a("s_lshl_b32 s33, s32, 2")
    a("v_xor_b32 v4, s33, v4")
    a(f"v_lshl_add_u32 v{VWB}, v4, 5, v5")
    for nb in range(1, 4): a(f"v_xor_b32 v{VWB+nb}, {nb*32}, v{VWB}")
    for nb in range(4): a(f"v_add_u32 v{VWA+nb}, {SLOTS[0]}, v{VWB+nb}")
    for i in range(64): a(f"v_mov_b32 v{ACC+i}, 0")
    for i in range(5): a(f"s_mov_b32 s{44+i}, {SLOTS[(i+1) % 5]}")
    a("s_mov_b32 s35, 0")
    srd(a, 16, 58, 8 << 20)
    a("s_lshl_b32 s40, s61, 19")
    a("s_lshl_b32 s41, s31, 18")
    a("s_add_u32 s40, s40, s41")
    a("s_lshl_b32 s41, s60, 11")
    a("s_add_u32 s40, s40, s41")
    a("s_lshl_b32 s41, s62, 8")
    a("s_add_u32 s40, s40, s41")
    a("s_lshl_b32 s41, s32, 7")
    a("s_add_u32 s40, s40, s41")
    def rdO(f, ks, mt): return [f"ds_read_b128 {vr(Of(f,mt))}, v{VOA} offset:{(mt>>1)*4096 + ks*2048 + (mt&1)*256}"]
    def rdW(f, ks, nb): return [f"ds_read_b64_tr_b16 {vr(Wf(f,nb),2)}, v{VWA+nb} offset:{ks*8192}",
                                f"ds_read_b64_tr_b16 {vr(Wf(f,nb)+2,2)}, v{VWA+nb} offset:{ks*8192+2048}"]
    def reads(f, ks):
        return [rdO(f, ks, 0)] + [rdW(f, ks, nb) for nb in range(4)] + [rdO(f, ks, mt) for mt in (1, 2, 3)]
    def mm(f):
        return [mfma16(acc(mt, nb), Wf(f, nb), Of(f, mt)) for mt in range(4) for nb in range(4)]
    a("s_waitcnt vmcnt(0)")
    if OPT["pst"] == "1": stamp(a, 2)
    a("s_barrier")
    a("s_barrier")
    a("s_barrier")
    if OPT["pst"] == "1": stamp(a, 3)
    flat = lambda g: [t for x in g for t in x]
    def block(f, rd, extra):
        M = mm(f)
        a("s_waitcnt lgkmcnt(3)")
        for i, m_ in enumerate(M):
            if i in (4, 8, 12): a(f"s_waitcnt lgkmcnt({min(15, (2 - (i//4 - 1)) + min(i, len(rd)))})")
            a(m_)
            if i < len(rd): a(rd[i])
            for t in extra.get(i, []): a(t)
    for t in flat(reads(0, 0)): a(t)
    a("s_branch L3_mid")
    a.raw(".p2align 6")
    a.lab("L3_loop")
    block(1, flat(reads(0, 0)), {})
    a.lab("L3_mid")
    block(0, flat(reads(1, 1)), {0: (["s_barrier"] if OPT["la"] == "4" else []) + ["s_mov_b32 s33, s44"], 15: (["s_waitcnt lgkmcnt(0)", "s_barrier"] if OPT["la"] == "5" else []), 1: ["s_mov_b32 s44, s45", "s_mov_b32 s45, s46"],
                                 2: ["s_mov_b32 s46, s47", "s_mov_b32 s47, s48"], 3: ["s_mov_b32 s48, s33"],
                                 5: ["s_add_u32 s35, s35, 1", "s_cmp_lt_u32 s35, 16"],
                                 9: [f"v_add_u32 v{VWA}, s33, v{VWB}"], 10: [f"v_add_u32 v{VWA+1}, s33, v{VWB+1}"],
                                 11: [f"v_add_u32 v{VWA+2}, s33, v{VWB+2}"], 12: [f"v_add_u32 v{VWA+3}, s33, v{VWB+3}"], 13: [f"v_add_u32 v{VOA}, s33, v{VOB}"]})
    a("s_cbranch_scc1 L3_loop")
    block(1, [], {})
    if OPT["pst"] == "1": stamp(a, 4)
    a("s_mul_i32 s41, s24, 9216")
    a("v_mul_u32_u24 v4, 144, v2")
    a("v_lshl_add_u32 v4, v3, 3, v4")
    a("v_add_u32 v4, s41, v4")
    a("v_lshrrev_b32 v5, 3, v0")
    a("v_mul_u32_u24 v6, 144, v5")
    a("v_and_b32 v7, 7, v0")
    a("v_lshl_add_u32 v6, v7, 4, v6")
    a("v_add_u32 v6, s41, v6")
    a("v_lshlrev_b32 v5, 12, v5")
    a(f"v_lshl_add_u32 v{VST}, v7, 4, v5")
    for mt in range(4):
        for nb in range(4):
            b = acc(mt, nb); t0 = F[0] + 2*(mt*4 + nb)
            a(f"v_cvt_pk_bf16_f32 v{t0}, v{b}, v{b+1}")
            a(f"v_cvt_pk_bf16_f32 v{t0+1}, v{b+2}, v{b+3}")
            a(f"ds_write_b64 v4, {vr(t0,2)} offset:{mt*16*144 + nb*32}")
        a(f"ds_read_b128 {vr(F[1]+8*mt)}, v6 offset:{mt*16*144}")
        a(f"ds_read_b128 {vr(F[1]+8*mt+4)}, v6 offset:{mt*16*144 + 8*144}")
        if mt >= 1:
            a("s_waitcnt lgkmcnt(6)")
            for h in range(2):
                a(f"buffer_store_dwordx4 {vr(F[1]+8*(mt-1)+4*h)}, v{VST}, s[16:19], s40 offen{OPT['st3']}")
                a(f"s_add_u32 s40, s40, {8*4096}")
    a("s_waitcnt lgkmcnt(0)")
    for h in range(2):
        a(f"buffer_store_dwordx4 {vr(F[1]+24+4*h)}, v{VST}, s[16:19], s40 offen{OPT['st3']}")
        a(f"s_add_u32 s40, s40, {8*4096}")
    dump(a, 0, "s24")
    a.lab("L2_end")
    a("s_endpgm")

    a.lab("L2_help")
    issued = []
    MC, MP, MP0, SC, SP, OB, LB = 12, 28, 44, 60, 76, [92, 112], [108, 128]
    QB = [132, 140]; KX = [148, 156, 164]; VX = [172, 180, 188]; VPF = 2
    a("s_lshl_b32 s34, s28, 12")
    a("s_add_u32 s35, s33, s34")
    a(f"s_add_u32 s36, s35, {VF-KF}")
    srd(a, 8, 98, WS_BYTES)
    def dma_stage(st):
        for base, so in ((0, "s35"), (65536, "s36")):
            a(f"s_add_u32 m0, s34, {base + (st % 4)*16384}")
            a("s_nop 0")
            for j in range(4):
                a(f"buffer_load_dwordx4 v{VL16}, s[8:11], {so} offen offset:{j*1024} sc1 lds")
            a(f"s_add_u32 {so}, {so}, 16384")
        issued.extend([f"s{st}"]*8)
    def late1():
        consts()
        a(f"s_add_u32 s28, s27, {4<<20}")
        a(f"s_add_u32 s29, s28, {KF}")
        a(f"s_add_u32 s30, s28, {VF}")
        a("s_cmp_eq_u32 s25, 0")
        a("s_cselect_b32 s32, 0, 2048")
        a("s_cselect_b64 s[44:45], 0, -1")
        a("s_sub_u32 s31, s29, s32")
        a("s_sub_u32 s32, s30, s32")
        a(f"s_add_u32 s37, s37, {4<<20}")
        a("s_add_u32 s38, s37, 0x10000")
        if PF:
            a("v_lshrrev_b32 v5, 3, v0")
            a("v_lshlrev_b32 v5, 11, v5")
            a("v_and_b32 v6, 7, v0")
            a(f"v_lshl_add_u32 v{VPF}, v6, 7, v5")
            a("v_cmp_gt_u32 vcc, 32, v0")
            a("v_mov_b32 v5, 0x7fffff00")
            a("s_and_b32 s47, s21, 15")
            a("s_lshl_b32 s47, s47, 17")
            a(f"v_cndmask_b32 v{VPF}, v5, v{VPF}, vcc")
            a("s_lshl_b32 s46, s34, 3")
            a("s_add_u32 s47, s47, s46")
            a("s_and_b32 s46, s20, 1")
            a("s_lshl_b32 s46, s46, 10")
            a("s_add_u32 s47, s47, s46")
    def pf():
        if PF:
            a(f"buffer_load_dword v{VPF+1}, v{VPF}, s[16:19], s47 offen")
            a("s_add_u32 s47, s47, 8192")
    VWD0, VWD1, VFL, VFD = 196, 197, 198, 199
    def dma_w(st):
        sl = SLOTS[st % 5] + 16384
        a(f"s_add_u32 m0, s34, {sl}")
        a("s_nop 0")
        a(f"buffer_load_dwordx4 v{VWD0}, s[16:19], s40 offen lds")
        a("s_add_u32 m0, m0, 1024")
        a("s_nop 0")
        a(f"buffer_load_dwordx4 v{VWD1}, s[16:19], s40 offen lds")
        a("s_add_u32 m0, m0, 1024")
        a(f"s_add_u32 s40, s40, {64*2048}")
        a(f"buffer_load_dwordx4 v{VWD0}, s[16:19], s41 offen lds")
        a("s_add_u32 m0, m0, 1024")
        a("s_nop 0")
        a(f"buffer_load_dwordx4 v{VWD1}, s[16:19], s41 offen lds")
        a(f"s_add_u32 s41, s41, {64*2048}")
    def dma_o(st):
        a(f"s_add_u32 m0, s34, {SLOTS[st % 5]}")
        a("s_nop 0")
        for j in range(4):
            a(f"buffer_load_dwordx4 v{VL16}, s[8:11], s39 offen offset:{j*1024}{OPT['osc']} lds")
        a("s_add_u32 s39, s39, 4096")
    def poll(tag, voff, soff, srd_="s[8:11]", val=1, cmp_="ne"):
        a("s_mov_b32 s43, 0")
        a.lab(tag)
        a(f"buffer_load_dword v{VFD}, v{voff}, {srd_}, {soff} offen sc1")
        a("s_add_u32 s43, s43, 1")
        a("s_waitcnt vmcnt(0)")
        a(f"v_cmp_{cmp_}_u32 vcc, {val}, v{VFD}")
        a("s_cmp_gt_u32 s43, 0x200000")
        a(f"s_cbranch_scc1 {tag}x")
        a("s_nop 2")
        a(f"s_cbranch_vccz {tag}x")
        a(f"s_sleep {OPT['slp']}")
        a(f"s_branch {tag}")
        a.lab(tag + "x")
    def lanemask(r, prev):
        m = 0
        for l in range(64):
            q = l & 31; hh = l >> 5
            key = kperm(8*(r//4) + 4*hh + r % 4)
            d = q - key + (32 if prev else 0)
            if 0 <= d <= 14 and d % 2 == 0: m |= 1 << l
        return m
    def masks(prev):
        k = 0
        a(f"v_mov_b32 v{VT}, {NEGBIG:#x}")
        for i in range(20): a(f"v_mov_b32 v{OB[prev]+i}, 0")
        for r in range(16):
            m = lanemask(r, prev)
            sp = 48 + 2*(k % 4); k += 1
            a(f"s_mov_b32 s{sp}, {m & 0xffffffff:#x}")
            a(f"s_mov_b32 s{sp+1}, {m >> 32:#x}")
            a(f"v_cndmask_b32 v{(MP if prev else MC)+r}, v{VT}, 0, s[{sp}:{sp+1}]")
            if prev: a(f"v_cndmask_b32 v{MP0+r}, v{VT}, v{MP+r}, s[44:45]")
    def bcomp(t):
        keep = a.l; a.l = []
        kc, kp, vc, vp = KX[t+1], KX[t], VX[t+1], VX[t]
        ob, lb = OB[t], LB[t]
        a(mfma(SC, kc, QB[t], MC)); a(mfma(SP, kp, QB[t], MP0 if t == 0 else MP))
        a(mfma(SC, kc+4, QB[t]+4)); a(mfma(SP, kp+4, QB[t]+4))
        a("s_nop 10")
        vals = [SC+r for r in range(16)] + [SP+r for r in range(16)]
        maxof(vals)
        for v in vals: a(f"v_sub_f32 v{v}, v{v}, v{VM}")
        for v in vals: a(f"v_exp_f32 v{v}, v{v}")
        a("s_nop 1")
        a(sm32(ob, vc, SC)); a(sm16(lb, SC)); a(sm32(ob, vc+4, SC+8)); a(sm16(lb, SC+8))
        a(sm32(ob, vp, SP)); a(sm16(lb, SP)); a(sm16(lb, SP+8)); a(sm32(ob, vp+4, SP+8))
        a("s_nop 12")
        finish("s37" if t == 0 else "s38", 0, QB[t], ob, lb)
        out = a.l; a.l = keep
        return out
    work = [] if "B" in OPT["k2x"] else bcomp(0) + bcomp(1)
    def cost(t): return 2 if "v_exp" in t else (3 if "mfma" in t else 1)
    tot = sum(cost(t) for t in work)
    slots = [int(c) for c in OPT["bslots"]]
    chunks = {b: [] for b in range(8)}
    acc_ = 0
    for t in work:
        chunks[slots[min(len(slots) - 1, acc_ * len(slots) // tot)]].append(t)
        acc_ += cost(t)
    def psetup():
        a("v_lshrrev_b32 v5, 4, v0")
        a("v_and_b32 v199, 15, v0")
        a(f"v_lshlrev_b32 v{VWD0}, 1, v5")
        a(f"v_xor_b32 v199, v199, v{VWD0}")
        a("v_lshlrev_b32 v199, 4, v199")
        a(f"v_lshl_add_u32 v{VWD0}, v5, 11, v199")
        a(f"v_xor_b32 v{VWD1}, 128, v{VWD0}")
        a(f"v_add_u32 v{VWD1}, 8192, v{VWD1}")
        a(f"v_and_b32 v{VFL}, 31, v0")
        a(f"v_lshlrev_b32 v{VFL}, {FSH}, v{VFL}")
        a("s_lshl_b32 s39, s60, 22")
        a("s_lshl_b32 s40, s61, 18")
        a("s_add_u32 s39, s39, s40")
        a("s_lshl_b32 s40, s34, 4")
        a("s_add_u32 s39, s39, s40")
        a(f"s_add_u32 s39, s39, {OF}")
        a("s_lshl_b32 s40, s34, 3")
        a("s_lshl_b32 s41, s62, 8")
        a("s_add_u32 s40, s40, s41")
        a("s_add_u32 s41, s40, 16384")
        a("s_lshl_b32 s42, s61, 1")
        a("s_lshr_b32 s43, s34, 13")
        a("s_add_u32 s42, s42, s43")
        a("s_add_u32 s42, s42, 8")
        a("s_lshr_b32 s43, s61, 1")
        a("s_cmp_eq_u32 s60, 0")
        a("s_cselect_b32 s42, s43, s42")
        a(f"s_lshl_b32 s42, s42, {5+FSH}")
        a(f"s_add_u32 s42, s42, {FL}")
        a("s_lshl_b32 s89, s25, 4")
        a("s_add_u32 s89, s89, s22")
        a("s_add_u32 s89, s89, 256")
        a(f"s_lshl_b32 s89, s89, {FSH}")
        a(f"s_add_u32 s89, s89, {FL}")
    def publish(base, tag=None):
        if tag:
            a("s_cmp_lg_u32 s24, 4")
            a(f"s_cbranch_scc1 {tag}")
        a("s_mov_b64 exec, 1")
        a(f"buffer_store_dword v204, v203, s[8:11], {base} offen sc1")
        a("s_mov_b64 exec, -1")
        if tag: a.lab(tag)
        else: issued.append("f")
    def wait_for(tags):
        idx_ = [i for i, x in enumerate(issued) if x in tags]
        if idx_: a(f"s_waitcnt vmcnt({min(63, len(issued) - 1 - max(idx_))})")
    a("v_mov_b32 v203, 0")
    a("v_mov_b32 v204, 1")
    a("v_and_b32 v205, 7, v0")
    a(f"v_lshlrev_b32 v205, {FSH}, v205")
    a("s_lshr_b32 s84, s22, 1")
    a(f"s_lshl_b32 s84, s84, {3+FSH}")
    a(f"s_add_u32 s84, s84, {FL + (1280 << FSH)}")
    def late2():
        a("s_lshr_b32 s85, s22, 1")
        a("s_lshl_b32 s85, s85, 5")
        a("s_lshr_b32 s43, s25, 1")
        a("s_add_u32 s85, s85, s43")
        a("s_add_u32 s85, s85, 1407")
        a(f"s_lshl_b32 s85, s85, {FSH}")
        a(f"s_add_u32 s85, s85, {FL}")
        a("v_and_b32 v207, 1, v0")
        a("v_and_b32 v206, 1, s44")
        a("v_xor_b32 v206, 1, v206")
        a("v_or_b32 v207, v207, v206")
        a(f"v_lshlrev_b32 v207, {FSH}, v207")
    a("s_waitcnt vmcnt(0) lgkmcnt(0)")
    srd(a, 16, 6, 2 << 20)
    a("s_barrier")
    a("s_cmp_eq_u32 s60, 0")
    a("s_cbranch_scc1 L2_hA")
    BF = min(7, slots[-1] + 1)
    QS = [int(c) for c in OPT["qs"]]
    QP = int(OPT["qp"]); BL = int(OPT["bl"])
    PX = 132
    for typ in ("B", "A"):
        T_ = "L2" + typ
        issued[:] = []
        if typ == "A":
            a.lab("L2_hA")
            publish("s95", T_ + "_p1")
        else:
            if OPT["df"] == "2":
                for n in range(12): a(f"ds_read_b128 {vr(PX+4*n)}, v201 offset:{n*1024}")
            if OPT["df"] == "0": publish("s95")
        a("s_cmp_lg_u32 s24, 5")
        a(f"s_cbranch_scc1 {T_}_qx")
        a("v_cmp_gt_u32 vcc, 0x100, v202")
        a("s_nop 4")
        a(f"s_cbranch_vccz {T_}_cx")
        poll(T_ + "_c", 203, "0", "s[80:83]", "0x100", "gt")
        if OPT["xslp"] != "0": a(f"s_sleep {OPT['xslp']}")
        poll(T_ + "_q", 205, "s84")
        a("s_waitcnt lgkmcnt(0)")
        a("s_barrier")
        dma_stage(0)
        a("s_waitcnt vmcnt(0)")
        a("s_barrier")
        dma_stage(1); dma_stage(2)
        qst = []
        if typ == "B":
            for n, (seg, off) in enumerate(jobs if OPT["df"] != "0" else []):
                qst.append(f"buffer_store_dwordx4 {vr(PK1+4*n)}, v200, s[8:11], s{92+seg} offen offset:{off} sc1")
            for n, (seg, off) in enumerate(jobs if OPT["df"] == "2" else []):
                qst.append(f"buffer_store_dwordx4 {vr(PX+4*n)}, v200, s[8:11], s{86+seg} offen offset:{off} sc1")
            for sg in range(3): a(f"s_sub_u32 s{86+sg}, s{92+sg}, 0x20000")
        def qstores(b):
            k = [i for i, x in enumerate(QS) if x == b]
            per = -(-len(qst) // len(QS))
            for i in k:
                for t in qst[i*per:(i+1)*per]:
                    a(t); issued.append("q")
        qstores(0)
        late1(); late2(); masks(0)
        for b in range(1, 8):
            wait_for([f"s{b}"])
            a("s_barrier")
            if b <= 5: dma_stage(b + 2)
            qstores(b)
            if b == QP and typ == "B" and OPT["df"] != "0":
                wait_for(["q"]); publish("s95")
            if b == 1:
                masks(1); psetup()
            if b == BL:
                poll(T_ + "_b", 207, "s85"); issued[:] = []
                for t in range(2): ld(QB[t], "s28", t*2048); ld(QB[t]+4, "s28", t*2048+1024)
                ld(KX[0], "s31", 0, VKL); ld(KX[0]+4, "s31", 1024, VKL)
                for t in range(2): ld(KX[t+1], "s29", t*2048, VKL); ld(KX[t+1]+4, "s29", t*2048+1024, VKL)
                ld(VX[0], "s32"); ld(VX[0]+4, "s32", 1024)
                for t in range(2): ld(VX[t+1], "s30", t*2048); ld(VX[t+1]+4, "s30", t*2048+1024)
                issued.extend(["B"]*16)
            if b == slots[0]: wait_for(["B"])
            if b == BF:
                wait_for(["st"]); publish("s89")
            for c in OPT['pfs']:
                if int(c) == b and PF:
                    pf(); issued.append("p")
            if b == 5 and OPT["tlb"] == "1":
                srd(a, 12, 58, 8 << 20)
                a("v_lshlrev_b32 v206, 21, v0")
                a("buffer_load_dword v206, v206, s[12:15], 0 offen"); issued.append("p")
            if b >= 6:
                if b == 6:
                    dma_w(0); issued.extend(["w0"]*4)
                dma_w(b - 5); issued.extend([f"w{b-5}"]*4)
            for t in chunks[b]:
                a.l.append(t)
                if "buffer_store" in t: issued.append("st")
        if typ == "B":
            a(f"s_sleep {OPT['bslp']}")
            poll(T_ + "_o", VFL, "s42"); issued[:] = []
            for st in range(3):
                dma_o(st); issued.extend([f"o{st}"]*4)
            a("s_barrier")
            publish("s63", T_ + "_p3")
            a("s_barrier")
            wait_for(["o0"])
            a("s_barrier")
            for st in (3, 4):
                dma_w(st); dma_o(st); issued.extend([f"w{st}"]*4 + [f"o{st}"]*4)
        else:
            a("s_barrier")
            publish("s63", T_ + "_p3")
            dma_w(3); dma_w(4)
            a("s_cmp_lg_u32 s24, 5")
            a(f"s_cbranch_scc1 {T_}_ox")
            if OPT["aslp"] != "0": a(f"s_sleep {OPT['aslp']}")
            poll(T_ + "_o", VFL, "s42"); issued[:] = []
            a("s_barrier")
            for st in range(2):
                dma_o(st); issued.extend([f"o{st}"]*4)
            wait_for(["o0"])
            a("s_barrier")
            for st in range(2, 5):
                dma_o(st); issued.extend([f"o{st}"]*4)
        for t in range(15):
            wait_for([f"o{t+1}", f"w{t+1}"])
            a("s_barrier")
            if t + 5 < 16:
                dma_w(t + 5); dma_o(t + 5); issued.extend([f"w{t+5}"]*4 + [f"o{t+5}"]*4)
        for n in (2, 3, 4, 5): stamp(a, n)
        dump(a, 0, "s24")
        a("s_endpgm")

    s0 = S[0]
    for qt in range(2):
        a.lab(f"L2_slow{qt}")
        a(f"s_add_u32 s36, s26, {VF}")
        a(f"v_mov_b32 v{VM}, 0xff800000")
        a("s_mov_b32 s39, 0")
        a.lab(f"L2_s1{qt}")
        a("s_add_u32 s41, s33, s39")
        ld(KB[0], "s41", 0, VKL); ld(KB[0]+4, "s41", 1024, VKL)
        a("s_waitcnt vmcnt(0)")
        a(mfma(s0, KB[0], Q[qt], "0")); a(mfma(s0, KB[0]+4, Q[qt]+4))
        a("s_nop 15")
        for i in range(0, 16, 2): a(f"v_max3_f32 v{VM}, v{VM}, v{s0+i}, v{s0+i+1}")
        a("s_add_u32 s39, s39, 2048")
        a(f"s_cmp_lt_u32 s39, {64*2048}")
        a(f"s_cbranch_scc1 L2_s1{qt}")
        a(f"v_mov_b32 v{VT}, v{VM}")
        xhalf_max()
        for i in range(16): a(f"v_sub_f32 v{NEG[qt]+i}, 0, v{VM}")
        for i in range(16): a(f"v_mov_b32 v{O[qt]+i}, 0")
        for i in range(4): a(f"v_mov_b32 v{L[qt]+i}, 0")
        a("s_mov_b32 s39, 0")
        a.lab(f"L2_s2{qt}")
        a("s_add_u32 s41, s33, s39")
        ld(KB[0], "s41", 0, VKL); ld(KB[0]+4, "s41", 1024, VKL)
        a("s_add_u32 s41, s36, s39")
        ld(VB[0], "s41"); ld(VB[0]+4, "s41", 1024)
        a("s_waitcnt vmcnt(0)")
        a(mfma(s0, KB[0], Q[qt], NEG[qt])); a(mfma(s0, KB[0]+4, Q[qt]+4))
        a("s_nop 15")
        for i in range(16): a(f"v_exp_f32 v{s0+i}, v{s0+i}")
        a("s_nop 1")
        a(sm32(O[qt], VB[0], s0)); a(sm16(L[qt], s0)); a(sm32(O[qt], VB[0]+4, s0+8)); a(sm16(L[qt], s0+8))
        a("s_nop 7")
        a("s_add_u32 s39, s39, 2048")
        a(f"s_cmp_lt_u32 s39, {64*2048}")
        a(f"s_cbranch_scc1 L2_s2{qt}")
        a("s_nop 15")
        a(f"s_branch L2_fin{qt}")
    return kd(N, NV, 102), f"; @launch kernel={N} grid=(256,1,1) block=(512,1,1) lds=163840"


def main():
    a = A()
    jobs = k1(a)
    desc, launch = k2(a, jobs)
    if OPT["single"] == "1": launch = "; @launch grid=(256,1,1) block=(512,1,1) lds=163840"
    hdr = open("cdna_kernels/" + NAME + ".s.ref").read().split("\n")
    top = [l for l in hdr if l.startswith(";") and "@launch" not in l and "Override" not in l and "grid=ceil" not in l]
    out = "\n".join(top) + "\n" + launch + "\n"
    out += '.amdgcn_target "amdgcn-amd-amdhsa--gfx950"\n.text\n' + a.text()
    out += '.section .rodata,"a"\n' + desc
    open(sys.argv[1], "w").write(out)

main()
```

```python
import struct, math, sys

NAME = "concat_heads__mha_block__sliding_local_dilated__prompt"
OPT = dict(st1=" sc1", st2=" sc1", st3=" sc1", dbg="0", pf1="1", pf3="1", ord1="0", dlt="4", nx="0", ph="8", pf0="2", pfm="255", xl="4", pfe="8", cpb="20", s2e="0", prio="1", k2x="", cpf="1", hprio="0", trip="0", k1x="", tlb="1", dk="0", spin="", bslots="345", pst="0", wfirst="1", slp="10", fsh="5", pfs="2345", opf="0", la="5", mix="1", qs="0", qp="1", bl="2", xslp="0", single="0", df="1", rt="1", pub="3", od="3", pa="1", fm="g", aslp="8", bslp="1", osc=" sc1")
for a in sys.argv[2:]:
    k, v = a.split("=", 1)
    OPT[k] = v

def f2u(x): return struct.unpack("<I", struct.pack("<f", x))[0]
QSCALE = f2u(math.log2(math.e) / math.sqrt(32.0))
NEGBIG = f2u(-1e30)

QF, KF, VF, OF = 0, 8 << 20, 16 << 20, 24 << 20
WS_BYTES = 33 << 20

class A:
    def __init__(s): s.l = []
    def __call__(s, t): s.l.append("    " + t)
    def lab(s, t): s.l.append(t + ":")
    def raw(s, t): s.l.append(t)
    def text(s): return "\n".join(s.l) + "\n"

def vr(b, n=4): return f"v[{b}:{b+n-1}]"
def mfma(d, a, b, c=None):
    cc = vr(d, 16) if c is None else (c if isinstance(c, str) else vr(c, 16))
    return f"v_mfma_f32_32x32x16_bf16 {vr(d,16)}, {vr(a)}, {vr(b)}, {cc}"

def mfma16(d, a, b):
    return f"v_mfma_f32_16x16x32_bf16 {vr(d)}, {vr(a)}, {vr(b)}, {vr(d)}"

def spread(main, fill, start=0, every=1, per=1):
    out = []; k = 0
    for i, m in enumerate(main):
        out.append(m)
        if i >= start and (i - start) % every == 0:
            for _ in range(per):
                if k < len(fill):
                    out += fill[k]; k += 1
    while k < len(fill):
        out += fill[k]; k += 1
    return out

def interleave(main, fill, pattern):
    out = []; k = 0
    for i, m in enumerate(main):
        for _ in range(pattern[i] if i < len(pattern) else 0):
            if k < len(fill):
                out += fill[k]; k += 1
        out.append(m)
    while k < len(fill):
        out += fill[k]; k += 1
    return out

def kd(name, vgpr, sgpr=96):
    acc = (vgpr + 3) // 4 * 4
    return f""".p2align 6
.amdhsa_kernel {name}
  .amdhsa_next_free_vgpr {vgpr}
  .amdhsa_next_free_sgpr {sgpr}
  .amdhsa_accum_offset {acc}
  .amdhsa_group_segment_fixed_size 0
  .amdhsa_kernarg_size 72
  .amdhsa_user_sgpr_count 2
  .amdhsa_user_sgpr_kernarg_segment_ptr 1
  .amdhsa_system_sgpr_workgroup_id_x 1
.end_amdhsa_kernel
"""

_cp = [0]
DBG = OPT["dbg"] in ("1", "2", "3", "4")
def stamp(a, n):
    if DBG:
        a(f"{'s_memrealtime' if OPT['rt'] == '1' and n >= 2 else 's_memtime'} s[{64+2*n}:{65+2*n}]")
def rstamp(a, n):
    if DBG:
        a(f"s_memrealtime s[{64+2*n}:{65+2*n}]")
def dump(a, kidx, wave_sgpr, nst=8):
    if not DBG: return
    if OPT["dbg"] == "4":
        _cp[0] += 1
        sk = f"Ldbg{_cp[0]}"
        a("s_lshl_b32 s92, s2, 3")
        a(f"s_add_u32 s92, s92, {wave_sgpr}")
        a(f"s_cmp_lg_u32 s92, {OPT['dk']}")
        a(f"s_cbranch_scc1 {sk}")
        a("s_waitcnt vmcnt(0)")
        a("s_memrealtime s[78:79]")
        a("s_waitcnt lgkmcnt(0)")
        a(f"s_sub_u32 s93, s{64+2*int(OPT['spin'])}, s66")
        a.lab(sk + "s")
        a("s_memrealtime s[62:63]")
        a("s_waitcnt lgkmcnt(0)")
        a("s_sub_u32 s62, s62, s78")
        a("s_cmp_lt_u32 s62, s93")
        a(f"s_cbranch_scc1 {sk}s")
        a.lab(sk)
        return
    if OPT["dbg"] == "2":
        if kidx != int(OPT["dk"]): return
        _cp[0] += 1
        sk = f"Ldbg{_cp[0]}"
        a("s_load_dwordx2 s[88:89], s[0:1], 56")
        a("s_waitcnt lgkmcnt(0) vmcnt(0)")
        a(f"s_memtime s[{64+2*(nst-2)}:{65+2*(nst-2)}]")
        a(f"s_memrealtime s[{64+2*(nst-1)}:{65+2*(nst-1)}]")
        a("s_waitcnt lgkmcnt(0)")
        a(f"s_sub_u32 s88, s88, {512*kidx}")
        a("s_subb_u32 s89, s89, 0")
        a("s_mov_b32 s90, 64")
        a("s_mov_b32 s91, 0x00020000")
        a("s_lshl_b32 s92, s2, 3")
        a(f"s_add_u32 s92, s92, {wave_sgpr}")
        a("s_cmp_eq_u32 s92, 805")
        a("s_cselect_b32 s93, 32, 0x1000")
        a("s_cmp_eq_u32 s92, 0")
        a("s_cselect_b32 s92, 0, s93")
        a("v_mov_b32 v2, 0")
        for n in range(2, nst):
            base = 64 if n < nst-1 else 66
            a(f"s_sub_u32 s93, s{64+2*n}, s{base}")
            a("v_mov_b32 v3, s93")
            a(f"buffer_store_dword v3, v2, s[88:91], s92 offen offset:{4*(n-2)}")
            a("s_nop 1")
        return
    a("s_load_dwordx2 s[88:89], s[0:1], 64")
    a("s_waitcnt lgkmcnt(0) vmcnt(0)")
    a(f"s_memtime s[{64+2*(nst-2)}:{65+2*(nst-2)}]")
    a(f"s_memrealtime s[{64+2*(nst-1)}:{65+2*(nst-1)}]")
    a("s_waitcnt lgkmcnt(0)")
    a("s_mov_b32 s90, 0x8000000")
    a("s_mov_b32 s91, 0x00020000")
    a("s_lshl_b32 s92, s2, 3")
    a(f"s_add_u32 s92, s92, {wave_sgpr}")
    a("s_lshl_b32 s92, s92, 6")
    a(f"s_add_u32 s92, s92, {(64+kidx) << 20}")
    a("v_mov_b32 v2, 0")
    for n in range(nst):
        a(f"v_mov_b32 v3, s{64+2*n}")
        a(f"buffer_store_dword v3, v2, s[88:91], s92 offen offset:{4*n}")
        a("s_nop 1")
    if OPT["dbg"] == "3" and kidx == 2:
        _cp[0] += 1
        sk = f"Ldbg{_cp[0]}"
        a("s_lshl_b32 s92, s2, 3")
        a(f"s_add_u32 s92, s92, {wave_sgpr}")
        a(f"s_cmp_lg_u32 s92, {OPT['dk']}")
        a(f"s_cbranch_scc1 {sk}")
        a(f"s_add_u32 s88, s88, {(64 << 20) + int(OPT['dk'])*64}")
        a("s_addc_u32 s89, s89, 0")
        a("s_load_dwordx8 s[40:47], s[88:89], 0")
        a("s_add_u32 s88, s88, 0x100000")
        a("s_addc_u32 s89, s89, 0")
        a("s_load_dwordx8 s[48:55], s[88:89], 0")
        a("s_load_dwordx2 s[88:89], s[0:1], 56")
        a("s_waitcnt lgkmcnt(0)")
        a("s_mov_b32 s90, 64")
        k = 0
        for b, st in ((40, 1), (48, 1), (64, 2)):
            for n, ref in ((3, b), (4, b), (6, b), (1, 41), (7, 41)):
                a(f"s_sub_u32 s93, s{b+st*n}, s{ref}")
                a("v_mov_b32 v3, s93")
                a(f"buffer_store_dword v3, v2, s[88:91], 0 offen offset:{4*k}")
                a("s_nop 1")
                k += 1
        if OPT["spin"] != "":
            q, mult, unit = OPT["spin"].split(",")
            x, y = q.split("-")
            a(f"s_sub_u32 s93, s{x}, s{y}")
            a(f"s_mul_i32 s93, s93, {mult}")
            ins = "s_memrealtime" if unit == "r" else "s_memtime"
            a(f"{ins} s[60:61]")
            a("s_waitcnt lgkmcnt(0)")
            a.lab(sk + "s")
            a(f"{ins} s[62:63]")
            a("s_waitcnt lgkmcnt(0)")
            a("s_sub_u32 s62, s62, s60")
            a("s_cmp_lt_u32 s62, s93")
            a(f"s_cbranch_scc1 {sk}s")
        a.lab(sk)

def codepf(a, start, end, vtmp, lane="v0"):
    if OPT["cpf"] != "1": return
    _cp[0] += 1
    l = f"Lcp{_cp[0]}"
    a("s_getpc_b64 s[56:57]")
    a.lab(l)
    a(f"s_add_u32 s56, s56, {start}-{l}")
    a(f"s_addc_u32 s57, s57, ({start}-{l})>>32")
    a(f"v_lshlrev_b32 v{vtmp}, 7, {lane}")
    a(f"v_min_u32 v{vtmp}, ({end})-({start})-4, v{vtmp}")
    a(f"global_load_dword v{vtmp}, v{vtmp}, s[56:57]")

def head(a, name):
    a.raw(f".globl {name}\n.p2align 8\n.type {name},@function\n{name}:")

def srd(a, d, base, nbytes):
    a(f"s_mov_b32 s{d}, s{base}")
    a(f"s_mov_b32 s{d+1}, s{base+1}")
    a(f"s_mov_b32 s{d+2}, {nbytes:#x}")
    a(f"s_mov_b32 s{d+3}, 0x00020000")

def place(main, fill, per=2, start=0):
    out = []; k = 0
    for i, m in enumerate(main):
        out.append(m)
        if i >= start:
            out += fill[k:k+per]; k += per
    out += fill[k:]
    return out

def sched(M, rd, d, post, late, late_dma=False):
    n = len(M)
    gaps = [[] for _ in range(n)]
    if late_dma: rg = list(range(len(rd))); dg = [len(rd) + 2*k for k in range(len(d))]
    else:
        dg = [1 + 4*k for k in range(len(d))]; rg = [g for g in range(n) if g not in dg][:len(rd)]
    for g, t in zip(rg, rd): gaps[g].append(t)
    for g, (m_, l_) in zip(dg, d):
        gaps[g-1].append(m_); gaps[g].append(l_)
    def runs(ops):
        out = []
        for t in ops:
            if t.startswith("s_cselect") : out[-1].append(t)
            else: out.append([t])
        return out
    def put(run, g0):
        g = g0
        while g < n - 1 and len(gaps[g]) + len(run) > 3: g += 1
        gaps[g] += run
        return g
    g = (dg[len(d)-1] if d else 0)
    for r in runs(post): g = put(r, g)
    g = 0
    for r in runs(late):
        if r[0].startswith("v_"): g = max(g, rg[-1] if rg else 0)
        g = put(r, g)
    seq = []
    for i, m_ in enumerate(M):
        seq.append(m_); seq += gaps[i]
    return seq

FL = 32 << 20
FSH = int(OPT['fsh'])
PK1 = 208

def k1(a):
    N = NAME + "_kernel"
    head(a, N)
    XS, WS, WSL = 32768, 98304, 12288
    VD, VXB, VXA, VWB, VWA, VST, VPX, VPW, VPD = 10, 18, 20, 22, 24, 26, 27, 28, 29
    F = [32, 72]; ACC = 112; NV = 208
    PF = OPT["pf1"] == "1"
    DLT = int(OPT["dlt"]); PST = 2
    def A_(f, mt): return F[f] + 4*mt
    def B_(f, nb): return F[f] + 16 + 4*nb
    def acc(mt, nb): return ACC + (mt*6 + nb)*4
    a("s_cmp_ge_u32 s2, 256")
    a("s_cbranch_scc1 L2_end")
    stamp(a, 0); rstamp(a, 1)
    a("s_and_b32 s20, s2, 7")
    a("s_lshr_b32 s21, s2, 3")
    MIX = OPT["mix"] == "1"
    if MIX: a("s_lshr_b32 s22, s21, 4")
    else: a("s_lshr_b32 s22, s20, 2")
    a("s_mul_i32 s23, s22, 24")
    a("s_load_dwordx4 s[4:7], s[0:1], s23")
    a("s_load_dwordx4 s[96:99], s[0:1], 56")
    a("s_load_dwordx4 s[88:91], s[0:1], 0")
    a("v_lshrrev_b32 v1, 6, v0")
    a("v_and_b32 v0, 63, v0")
    a("v_readfirstlane_b32 s26, v1")
    a("s_and_b32 s24, s20, 1")
    a("s_lshl_b32 s24, s24, 2")
    a("s_and_b32 s25, s21, 3")
    a("s_add_u32 s24, s24, s25")
    if MIX:
        a("s_lshr_b32 s25, s20, 1")
        a("s_xor_b32 s53, s25, s22")
        a("s_lshl_b32 s25, s53, 2")
        a("s_bfe_u32 s27, s21, 0x20002")
    else:
        a("s_bfe_u32 s25, s20, 0x10001")
        a("s_lshl_b32 s25, s25, 3")
        a("s_lshr_b32 s27, s21, 2")
    a("s_add_u32 s25, s25, s27")
    a("s_and_b32 s31, s26, 3")
    a("s_lshr_b32 s32, s26, 2")
    PH = OPT["ph"]
    if PH == "0": a("s_mov_b32 s44, 0")
    elif PH == "1":
        a("s_lshl_b32 s44, s20, 1")
    elif PH == "2":
        a("s_lshl_b32 s44, s20, 1")
        a("s_and_b32 s45, s21, 1")
        a("s_add_u32 s44, s44, s45")
    elif PH in ("6", "7", "8"):
        a("s_lshr_b32 s54, s20, 1")
        a("s_lshl_b32 s54, s54, 2")
        a("s_and_b32 s45, s20, 1")
        a("s_mul_i32 s45, s45, 10")
        a("s_add_u32 s54, s54, s45")
        a("s_and_b32 s54, s54, 15")
        if PH == "6": a("s_and_b32 s45, s21, 1")
        elif PH == "7": a("s_mov_b32 s45, s22")
        else: a("s_mov_b32 s45, 0")
        a("s_add_u32 s44, s54, s45")
    elif PH == "5":
        a("s_lshl_b32 s44, s20, 1")
        a("s_add_u32 s44, s44, s22")
    elif PH == "3":
        a("s_lshl_b32 s44, s22, 1")
        a("s_and_b32 s45, s20, 1")
        a("s_add_u32 s44, s44, s45")
        a("s_lshl_b32 s44, s44, 2")
        a("s_and_b32 s45, s21, 3")
        a("s_add_u32 s44, s44, s45")
    elif PH == "4":
        a("s_lshl_b32 s44, s22, 1")
        a("s_and_b32 s45, s20, 1")
        a("s_add_u32 s44, s44, s45")
        a("s_lshl_b32 s44, s44, 2")
    a("v_lshrrev_b32 v2, 3, v0")
    a("v_and_b32 v3, 7, v0")
    a("v_lshrrev_b32 v4, 4, v0")

    def rdA(f, ks, mt): return [f"ds_read_b128 {vr(A_(f,mt))}, v{VXA+ks} offset:{mt*2048}"]
    def rdB(f, nb):
        o = (nb//2)*4096
        return [f"ds_read_b64_tr_b16 {vr(B_(f,nb),2)}, v{VWA+nb%2} offset:{o}",
                f"ds_read_b64_tr_b16 {vr(B_(f,nb)+2,2)}, v{VWA+nb%2} offset:{o+512}"]
    def reads(f, ks):
        r = rdB(f, 0)
        for mt in range(4): r += rdA(f, ks, mt)
        for nb in range(1, 6): r += rdB(f, nb)
        return r
    def mm(f):
        r = []
        for nb in range(6):
            for mt in range(4):
                if nb < 4: r.append(mfma16(acc(mt, nb), B_(f, nb), A_(f, mt)))
                else:      r.append(mfma16(acc(mt, nb), A_(f, mt), B_(f, nb)))
        return r

    def common_setup():
        srd(a, 16, 98, WS_BYTES)
        a("v_and_b32 v2, 15, v0")
        a("v_lshrrev_b32 v3, 4, v0")
        a("v_bfe_u32 v4, v0, 1, 3")
        a("s_lshl_b32 s33, s31, 13")
        a("v_lshlrev_b32 v5, 7, v2")
        a("v_add_u32 v5, s33, v5")
        a("v_xor_b32 v6, v3, v4")
        a(f"v_lshl_add_u32 v{VXB}, v6, 4, v5")
        a(f"v_xor_b32 v{VXB+1}, 64, v{VXB}")
        a(f"v_mov_b32 v{VXA}, v{VXB}")
        a(f"v_mov_b32 v{VXA+1}, v{VXB+1}")
        a("v_bfe_u32 v4, v0, 2, 2")
        a("v_lshl_add_u32 v4, v3, 3, v4")
        a("v_lshlrev_b32 v4, 7, v4")
        a("v_and_b32 v6, 3, v0")
        a("v_lshl_add_u32 v4, v6, 3, v4")
        a("v_bfe_u32 v5, v0, 3, 2")
        a("s_lshl_b32 s33, s32, 1")
        a("v_xor_b32 v5, s33, v5")
        a(f"v_lshl_add_u32 v{VWB}, v5, 5, v4")
        a(f"v_xor_b32 v{VWB+1}, 32, v{VWB}")
        a(f"v_add_u32 v{VWA}, {WS}, v{VWB}")
        a(f"v_add_u32 v{VWA+1}, {WS}, v{VWB+1}")
        a("v_lshlrev_b32 v4, 4, v2")
        a(f"v_lshl_add_u32 v{VST}, v3, 9, v4")
        for i in range(96): a(f"v_mov_b32 v{ACC+i}, 0")
        a("s_lshl_b32 s40, s22, 22")
        a("s_lshl_b32 s41, s25, 1")
        a("s_add_u32 s41, s41, s32")
        a("s_lshl_b32 s41, s41, 17")
        a("s_add_u32 s40, s40, s41")
        a("s_lshl_b32 s41, s24, 14")
        a("s_add_u32 s40, s40, s41")
        a("s_lshl_b32 s41, s31, 12")
        a("s_add_u32 s40, s40, s41")
        a(f"s_add_u32 s41, s40, {KF}")
        a(f"s_add_u32 s42, s40, {VF}")
        a(f"s_mov_b32 s43, {QSCALE:#x}")
        a("s_lshl_b32 s95, s25, 3")
        a("s_add_u32 s95, s95, s24")
        a("s_lshl_b32 s94, s95, 2")
        a("s_add_u32 s94, s94, s31")
        a("s_add_u32 s94, s94, 1408")
        a("s_add_u32 s95, s95, 1280")
        a("s_cmp_eq_u32 s22, 0")
        a("s_cselect_b32 s95, s95, s94")
        a(f"s_lshl_b32 s95, s95, {FSH}")
        a(f"s_add_u32 s95, s95, {FL}")
        srd(a, 80, 96, 256)
        a("s_mov_b32 s33, 0")
        a(f"s_mov_b32 s34, {WS}")
        a("s_mov_b32 s35, 0")

    wupd = [f"s_add_u32 s34, s34, {WSL}", f"s_cmp_eq_u32 s34, {WS+5*WSL}", f"s_cselect_b32 s34, {WS}, s34",
            f"v_add_u32 v{VWA}, s34, v{VWB}", f"v_add_u32 v{VWA+1}, s34, v{VWB+1}", "s_add_u32 s35, s35, 1"]
    xupd = [f"s_add_u32 s33, s33, {XS}", f"s_cmp_eq_u32 s33, {3*XS}", "s_cselect_b32 s33, 0, s33",
            f"v_add_u32 v{VXA}, s33, v{VXB}", f"v_add_u32 v{VXA+1}, s33, v{VXB+1}"]

    def mix(dma, other):
        out = []; o = list(other)
        for m, l in dma:
            out.append(m)
            out.append(o.pop(0) if o else "s_nop 0")
            out.append(l)
        return out + o

    def event(tag):
        a.lab(tag)
        if OPT["cpf"] == "1":
            a("s_cmp_ge_u32 s51, 0x100")
            a(f"s_cbranch_scc1 {tag}c")
        a("s_add_u32 s48, s54, s51")
        a("s_and_b32 s48, s48, 15")
        a("s_mul_i32 s48, s48, s52")
        a("s_add_u32 s48, s48, s50")
        a(f"buffer_load_dword v{VPD}, v{VPW}, s[84:87], s48 offen")
        a(f"s_add_u32 s51, s51, {PST}")
        a("s_lshl_b32 s49, s51, 1")
        a("s_max_u32 s49, s49, s39")
        a("s_sub_u32 s49, s49, s39")
        a(f"s_cmp_lt_u32 s51, {OPT['pfe']}")
        a(f"s_cbranch_scc1 {tag}r")
        a("s_mov_b32 s49, 0x7fff")
        if OPT["cpf"] == "1":
            a("s_cmp_eq_u32 s31, 3")
            a(f"s_cselect_b32 s49, {OPT['cpb']}, s49")
            a("s_mov_b32 s51, 0x100")
        a(f"s_branch {tag}r")
        if OPT["cpf"] == "1":
            a.lab(tag + "c")
            a("s_mov_b32 s49, 0x7fff")
            codepf(a, "L1_epi", "L1_epi+8192", 31)
            codepf(a, "L1_epi+8192", "L1_epi+16384", 9)
            codepf(a, "L1_epi+16384", "L2_slow0", 8)
            a(f"s_branch {tag}r")

    a("s_cmp_lg_u32 s32, 0")
    a("s_cbranch_scc1 L1_W")
    for cls in ("X", "W"):
        P = "L1" + cls
        if cls == "X":
            a("v_lshlrev_b32 v5, 11, v2")
            a("v_xor_b32 v6, v3, v4")
            a("v_lshl_add_u32 v6, v6, 4, v5")
            a("v_xor_b32 v7, 64, v6")
            a(f"v_mov_b32 v{VD}, v6")
            a(f"v_add_u32 v{VD+1}, 16384, v7")
            a(f"v_add_u32 v{VD+2}, 32768, v6")
            a(f"v_add_u32 v{VD+3}, 49152, v7")
            a("s_lshl_b32 s27, s24, 19")
            a("s_lshl_b32 s28, s31, 16")
            a("s_add_u32 s45, s27, s28")
            a("s_lshl_b32 s46, s44, 7")
            a("s_add_u32 s27, s45, s46")
            a("s_add_u32 s28, s27, 0x40000")
            a("s_lshl_b32 s29, s31, 12")
            a(f"s_add_u32 s30, s29, {6*16384}")
            a("s_waitcnt lgkmcnt(0)")
            if OPT["s2e"] == "1": stamp(a, 2)
            srd(a, 8, 4, 4 << 20)
            def grp(par):
                so = "s27" if par == 0 else "s28"
                d = [(f"s_add_u32 m0, s29, {j*1024}", f"buffer_load_dwordx4 v{VD+j}, s[8:11], {so} offen lds") for j in range(4)]
                post = ["s_add_u32 s29, s29, 16384"]
                if par == 0: post += ["s_add_u32 s46, s46, 128", "s_and_b32 s46, s46, 0x7ff", "s_add_u32 s27, s45, s46"]
                if par == 1: post += ["s_add_u32 s28, s27, 0x40000", "s_cmp_eq_u32 s29, s30", f"s_cselect_b32 s38, {6*16384}, 0", "s_sub_u32 s29, s29, s38"]
                return d, post
            NG = 4
        else:
            a.lab("L1_W")
            if OPT["cpf"] == "1":
                a("s_cmp_lg_u32 s26, 7")
                a("s_cbranch_scc1 L1_nocp")
                codepf(a, N, "L1_epi", VPD)
                a.lab("L1_nocp")
            a("v_mul_u32_u24 v5, 6144, v2")
            a("v_and_b32 v6, 1, v4")
            a("v_lshlrev_b32 v6, 1, v6")
            a("s_and_b32 s33, s26, 1")
            a("s_lshl_b32 s33, s33, 2")
            a("v_xor_b32 v6, v3, v6")
            a("v_xor_b32 v6, s33, v6")
            a(f"v_lshl_add_u32 v{VD}, v6, 4, v5")
            a(f"v_add_u32 v{VD+1}, 2048, v{VD}")
            a(f"v_add_u32 v{VD+2}, 4096, v{VD}")
            a("s_lshl_b32 s27, s25, 7")
            a(f"s_mul_i32 s28, s31, {8*6144}")
            a("s_add_u32 s27, s27, s28")
            a(f"s_mul_i32 s28, s44, {64*6144}")
            a("s_add_u32 s27, s27, s28")
            a("s_lshl_b32 s29, s31, 10")
            a(f"s_add_u32 s29, s29, {WS}")
            a(f"s_add_u32 s30, s29, {5*WSL}")
            a("s_waitcnt lgkmcnt(0)")
            if OPT["s2e"] == "1": stamp(a, 2)
            srd(a, 12, 6, 6 << 20)
            def pfsetup():
                a("s_and_b32 s47, s21, 7")
                a("s_bfe_u32 s51, s21, 0x10003")
                a(f"s_add_u32 s51, s51, {OPT['pf0']}")
                a("v_lshlrev_b32 v5, 11, v0")
                a("v_lshrrev_b32 v6, 2, v0")
                a("v_mul_u32_u24 v6, 6144, v6")
                a("v_and_b32 v7, 3, v0")
                a("v_lshl_add_u32 v6, v7, 7, v6")
                a("v_mul_u32_u24 v7, 6144, v0")
                a("s_cmp_lt_u32 s47, 4")
                a("s_cselect_b64 s[56:57], -1, 0")
                a("s_cselect_b32 s84, s88, s90")
                a("s_cselect_b32 s85, s89, s91")
                a(f"s_mov_b32 s86, {6<<20:#x}")
                a(f"s_cselect_b32 s86, {4<<20:#x}, s86")
                a("s_mov_b32 s87, 0x00020000")
                a(f"s_mov_b32 s52, {64*6144}")
                a("s_cselect_b32 s52, 128, s52")
                a(f"v_cndmask_b32 v{VPW}, v6, v5, s[56:57]")
                a("s_and_b32 s48, s20, 1")
                a("s_lshl_b32 s48, s48, 2")
                a("s_add_u32 s48, s48, s47")
                a("s_lshl_b32 s48, s48, 2")
                a("s_add_u32 s48, s48, s31")
                a("s_lshl_b32 s48, s48, 17")
                a("s_lshr_b32 s50, s20, 1")
                a("s_lshl_b32 s50, s50, 9")
                a("s_and_b32 s55, s47, 3")
                a("s_lshl_b32 s55, s55, 11")
                a("s_add_u32 s50, s50, s55")
                a(f"s_mul_i32 s55, s31, {16*6144}")
                a("s_add_u32 s50, s50, s55")
                a("s_cmp_lt_u32 s47, 4")
                a("s_cselect_b32 s50, s48, s50")
                a("s_and_b32 s48, s53, 2")
                a("s_lshl_b32 s48, s48, 9")
                a("s_lshl_b32 s55, s31, 11")
                a("s_add_u32 s48, s48, s55")
                a("s_add_u32 s48, s48, 384")
                a("s_bitcmp1_b32 s53, 0")
                a("s_cselect_b32 s90, s90, s6")
                a("s_cselect_b32 s91, s91, s7")
                a("s_cmp_eq_u32 s47, 7")
                a("s_cselect_b64 s[56:57], -1, 0")
                a("s_cselect_b32 s50, s48, s50")
                a("s_cselect_b32 s84, s90, s84")
                a("s_cselect_b32 s85, s91, s85")
                a("s_cselect_b32 s55, 3, 0")
                a(f"s_cselect_b32 s39, {4+DLT+int(OPT['xl'])}, {4+DLT}")
                a(f"v_cndmask_b32 v{VPW}, v{VPW}, v7, s[56:57]")
                a("s_and_b32 s48, s55, s31")
                a("s_cmp_eq_u32 s48, 3")
                a("s_cselect_b32 s86, 0, s86")
                if OPT["pfm"] != "255":
                    a(f"s_lshr_b32 s48, {OPT['pfm']}, s47")
                    a("s_and_b32 s48, s48, 1")
                    a("s_cselect_b32 s86, s86, 0")
                a("s_lshl_b32 s49, s51, 1")
                a("s_max_u32 s49, s49, s39")
                a("s_sub_u32 s49, s49, s39")
                a("s_cmp_eq_u32 s22, 0")
                a("s_cselect_b32 s49, 0x7fff, s49")
            def grp(par):
                d = [(f"s_add_u32 m0, s29, {g*4096}", f"buffer_load_dwordx4 v{VD+g}, s[12:15], s27 offen lds") for g in range(3)]
                post = [f"s_add_u32 s27, s27, {32*6144}", f"s_add_u32 s29, s29, {WSL}",
                        "s_cmp_eq_u32 s29, s30", f"s_cselect_b32 s38, {5*WSL}, 0", "s_sub_u32 s29, s29, s38"]
                if par == 1: post += [f"s_cmp_ge_u32 s27, {6<<20:#x}", f"s_cselect_b32 s38, {6<<20:#x}, 0", "s_sub_u32 s27, s27, s38"]
                return d, post
            NG = 3
        def emit_grp(par):
            d, post = grp(par)
            for t in mix(d, []) + post: a(t)
        first = 2 if cls == "X" else 1
        for n in range(first): emit_grp(n & 1)
        common_setup()
        if cls == "W" and PF: pfsetup()
        if cls == "X":
            a(f"v_lshlrev_b32 v8, {FSH}, v0")
            a("v_mov_b32 v9, 0")
            a(f"s_lshl_b32 s47, s2, {3+FSH}")
            a(f"s_add_u32 s47, s47, {FL}")
            a("s_cmp_eq_u32 s31, 0")
            a("s_cselect_b64 exec, 0xff, 0")
            a("s_cbranch_execz L1_nofl")
            a("buffer_store_dword v9, v8, s[16:19], s47 offen sc1")
            a.lab("L1_nofl")
            a("s_mov_b64 exec, -1")
        for n in range(first, 4): emit_grp(n & 1)
        npf = 0
        if cls == "W" and PF:
            a("s_cmp_eq_u32 s49, 0")
            a(f"s_cbranch_scc1 {P}_e0")
            a.lab(f"{P}_e0r")
        a(f"s_waitcnt vmcnt({(4-first)*NG + npf})")
        a("s_barrier")
        if cls == "X":
            a("v_mov_b32 v8, 1")
            a("s_cmp_eq_u32 s31, 0")
            a("s_cselect_b64 exec, 1, 0")
            a("s_cbranch_execz L1_noat")
            a("buffer_atomic_add v8, v9, s[80:83], 0 offen sc1")
            a.lab("L1_noat")
            a("s_mov_b64 exec, -1")
        d, post = grp(0)
        for t in reads(0, 0) + mix(d, []) + post + wupd: a(t)
        if cls == "W": a(f"s_waitcnt vmcnt({3*NG + npf})")
        a("s_waitcnt lgkmcnt(0)")
        a("s_barrier")
        a(f"s_branch {P}_odd")
        a.raw(".p2align 6")
        a.lab(f"{P}_loop")
        for par in range(2):
            if par == 1: a.lab(f"{P}_odd")
            d, post = grp(par)
            rd = reads(par, par)
            tail = list(post) + wupd
            if par == 1:
                tail += xupd
            X = OPT["k1x"]
            if "d" in X: d = []
            if "r" in X: rd = []
            fill = rd[:8] + mix(d, rd[8:]) + tail
            if "o" not in X:
                late = [t for t in tail if t not in post]
                late = [t for t in late if not t.startswith("v_")] + [t for t in late if t.startswith("v_")]
                seq = sched(mm(1-par), rd, d, list(post), late, late_dma=("l" in X))
            elif "1" in X: seq = place(mm(1-par), fill, 2, 2)
            elif "3" in X: seq = place(mm(1-par), fill, 3, 0)
            elif "f" in X: seq = rd[:4] + place(mm(1-par), fill[4:], 2, 0)
            else: seq = place(mm(1-par), fill, 2, 0)
            if "p" in X: seq = ["s_setprio 1"] + seq[:len(seq)-8] + ["s_setprio 0"] + seq[len(seq)-8:]
            if "P" in X and cls == "W": seq = ["s_setprio 1"] + seq
            for t in seq: a(t)
            if cls == "W" and PF:
                a("s_cmp_ge_u32 s35, s49")
                a(f"s_cbranch_scc1 {P}_e{par+1}")
                a.lab(f"{P}_e{par+1}r")
            if par == 1: a("s_cmp_lt_u32 s35, 28")
            if cls == "W": a(f"s_waitcnt vmcnt({3*NG}) lgkmcnt(0)")
            elif par == 1: a(f"s_waitcnt vmcnt({2*NG}) lgkmcnt(0)")
            else: a("s_waitcnt lgkmcnt(0)")
            if "b" not in X and not ("h" in X and par == 0): a("s_barrier")
        if OPT["trip"] == "1":
            a("s_cselect_b32 s62, 1, 0")
            a("s_cmp_lg_u32 s35, 4")
            a(f"s_cbranch_scc1 {P}_t1")
            stamp(a, 2)
            a.lab(f"{P}_t1")
            a("s_cmp_lg_u32 s62, 0")
        a(f"s_cbranch_scc1 {P}_loop")
        a("s_branch L1_epi")
        if cls == "W" and PF:
            for k in range(3): event(f"{P}_e{k}")
    a.lab("L1_epi")
    a("v_mov_b32 v9, 0")
    a("s_mov_b32 s44, s43")
    a("s_mov_b32 s45, s43")
    a(f"v_add_u32 v{VWA}, {WS}, v{VWB}")
    a(f"v_add_u32 v{VWA+1}, {WS}, v{VWB+1}")
    a("s_and_b32 s33, s22, s32")
    a(f"s_cselect_b32 s18, 0, s18")
    XF = lambda sl, mt: (32 if sl < 2 else 72 - 32) + 16*sl + 4*mt
    WBUF = [64, 240, 248, 104]
    def tx(sl): return [f"ds_read_b128 {vr(XF(sl, mt))}, v{(VXA if sl < 2 else VXB) + (sl & 1)} offset:{mt*2048}" for mt in range(4)]
    def tw(gi):
        seg, sl = G[gi]; b = WBUF[gi % 4]; o = ((28 + sl) % 5)*WSL + seg*4096
        return [f"ds_read_b64_tr_b16 {vr(b+4*u+2*i,2)}, v{VWA+u} offset:{o+512*i}" for u in range(2) for i in range(2)]
    def tm(gi):
        seg, sl = G[gi]; b = WBUF[gi % 4]; r = []
        for u in range(2):
            for mt in range(4):
                if seg < 2: r.append(mfma16(acc(mt, 2*seg+u), b+4*u, XF(sl, mt)))
                else:       r.append(mfma16(acc(mt, 2*seg+u), XF(sl, mt), b+4*u))
        return r
    G = [(0, 0), (1, 0), (0, 1), (0, 2), (0, 3), (1, 1), (1, 2), (1, 3), (2, 0), (2, 1), (2, 2), (2, 3)]
    jobs = []
    for T in range(2):
        for sg in range(2): jobs.append((1, acc(2*T+sg, 2), acc(2*T+sg, 3), T*2048 + sg*256))
    for T in range(2):
        for sg in range(2): jobs.append((0, acc(2*T+sg, 0), acc(2*T+sg, 1), T*2048 + sg*256))
    for T in range(2):
        for u in range(2):  jobs.append((2, acc(2*T, 4+u), acc(2*T+1, 4+u), T*2048 + u*256))
    def conv(n):
        seg, b0, b1, off = jobs[n]; t0 = PK1 + 4*n; r = []
        if seg == 0: r += [f"v_pk_mul_f32 v[{b+q}:{b+q+1}], v[{b+q}:{b+q+1}], s[44:45]" for b in (b0, b1) for q in (0, 2)]
        r += [f"v_cvt_pk_bf16_f32 v{t0}, v{b0}, v{b0+1}", f"v_cvt_pk_bf16_f32 v{t0+1}, v{b0+2}, v{b0+3}",
              f"v_cvt_pk_bf16_f32 v{t0+2}, v{b1}, v{b1+1}", f"v_cvt_pk_bf16_f32 v{t0+3}, v{b1+2}, v{b1+3}",
              f"buffer_store_dwordx4 {vr(t0)}, v{VST}, s[16:19], s{40+seg} offen offset:{off} sc1"]
        return r
    lds = []
    def emit(M, rd, tags, other, skip=0):
        o = list(other)
        for i, m_ in enumerate(M):
            a(m_)
            n_ = 2
            if i < len(rd):
                a(rd[i]); lds.append(tags[i]); n_ = 1
            if i >= skip:
                for _ in range(n_):
                    if o and not (i < len(rd) and o[0].startswith("buffer")): a(o.pop(0))
        return o
    def need(tags):
        last = max(i for i, x in enumerate(lds) if x in tags)
        a(f"s_waitcnt lgkmcnt({min(15, len(lds) - 1 - last)})")
    emit(mm(1), tx(0) + tw(0) + tw(1) + tx(1), ["x0"]*4 + ["w0"]*4 + ["w1"]*4 + ["x1"]*4, [])
    a("s_waitcnt vmcnt(6)")
    a("s_barrier")
    need(["x0", "w0"])
    emit(tm(0), tw(2), ["w2"]*4, [])
    a("s_waitcnt vmcnt(0)")
    a("s_barrier")
    a("s_cmp_lg_u32 s26, 5")
    a("s_cbranch_scc1 L1_noc")
    a("buffer_load_dword v8, v9, s[80:83], 0 offen sc1")
    a.lab("L1_noc")
    need(["w1"])
    emit(tm(1), tx(2) + tw(3), ["x2"]*4 + ["w3"]*4, [])
    need(["w2", "x1"])
    emit(tm(2), tx(3) + tw(4), ["x3"]*4 + ["w4"]*4, [])
    pend = []
    for gi in range(3, 12):
        need([f"w{gi}", f"x{G[gi][1]}"])
        had = len(pend) >= 6
        if gi == 5: pend += [t for n in range(4, 8) for t in conv(n)]
        if gi == 8: pend += [t for n in range(4) for t in conv(n)]
        rd = tw(gi + 2) if gi + 2 < 12 else []
        pend = emit(tm(gi), rd, [f"w{gi+2}"]*4, pend, skip=(3 if gi == 5 else (3 if gi == 8 and not had else 0)))
    if OPT["pst"] == "0": stamp(a, 2)
    for t in pend: a(t)
    a("s_nop 3")
    for n in (8, 10, 9, 11):
        for t in conv(n): a(t)
    a.lab("L1_done")
    a(f"v_mov_b32 v200, v{VST}")
    a("s_mov_b32 s92, s40")
    a("s_mov_b32 s93, s41")
    a("s_mov_b32 s94, s42")
    a("s_mov_b32 s24, s26")
    return [(seg, off) for seg, _, _, off in jobs]

def kperm(rho):
    return ((rho >> 2) & 1) * 16 + (rho >> 3) * 4 + (rho & 3)

SLOTS = [131072, 0, 65536, 32768, 98304]

def k2(a, jobs):
    N = NAME + "_kernel"
    VL16, VKA, VVA, VIDX, VM, VT, VKL = 1, 2, 3, 4, 5, 6, 7
    ONES = 8; Q = [12, 20]; NEG = [28, 44]; O = [60, 76]; L = [92, 96]; KB = [100, 108]; VB = [116, 124]; S = [132, 148, 164, 180]
    NV = 256
    PF = OPT["pf3"] == "1"
    def sm32(d, av, b): return f"v_smfmac_f32_32x32x32_bf16 {vr(d,16)}, {vr(av)}, {vr(b,8)}, v{VIDX}"
    def sm16(l, b): return f"v_smfmac_f32_16x16x64_bf16 {vr(l)}, {vr(ONES)}, {vr(b,8)}, v{VIDX}"
    def ld(d, soff, off=0, v=VL16): a(f"buffer_load_dwordx4 {vr(d)}, v{v}, s[8:11], {soff} offen offset:{off} sc1")
    def xhalf_max():
        a(f"v_max_f32 v{VM}, v{VM}, v{VT}")
        a("s_nop 0")
        a(f"v_mov_b32 v{VT}, v{VM}")
        a("s_nop 1")
        a(f"v_permlane32_swap_b32 v{VM}, v{VT}")
        a("s_nop 1")
        a(f"v_max_f32 v{VM}, v{VM}, v{VT}")
    def maxof(vals):
        a(f"v_max3_f32 v{VM}, v{vals[0]}, v{vals[1]}, v{vals[2]}")
        a(f"v_max3_f32 v{VT}, v{vals[3]}, v{vals[4]}, v{vals[5]}")
        for i in range(6, len(vals) - 2, 4):
            a(f"v_max3_f32 v{VM}, v{VM}, v{vals[i]}, v{vals[i+1]}")
            a(f"v_max3_f32 v{VT}, v{VT}, v{vals[i+2]}, v{vals[i+3]}")
        a(f"v_max3_f32 v{VM}, v{VM}, v{vals[-2]}, v{vals[-1]}")
        xhalf_max()
    def finish(soff, off, T, o, l):
        a(f"v_rcp_f32 v{VT}, v{l}")
        a("s_nop 0")
        for i in range(16): a(f"v_mul_f32 v{o+i}, v{o+i}, v{VT}")
        for i in range(8): a(f"v_cvt_pk_bf16_f32 v{T+i}, v{o+2*i}, v{o+2*i+1}")
        a(f"buffer_store_dwordx4 {vr(T)}, v{VL16}, s[8:11], {soff} offen{OPT['st2']}")
        a(f"buffer_store_dwordx4 {vr(T+4)}, v{VL16}, s[8:11], {soff} offen offset:1024{OPT['st2']}")
    def consts():
        a(f"v_mov_b32 v{VIDX}, 0xdddddddd")
        a("v_bfe_u32 v5, v0, 2, 1")
        a("v_cmp_eq_u32 vcc, 0, v5")
        a("v_mov_b32 v6, 0x3f803f80")
        a("s_nop 0")
        a(f"v_cndmask_b32 v{ONES}, 0, v6, vcc")
        a(f"v_cndmask_b32 v{ONES+1}, 0, v6, vcc")
        a(f"v_cndmask_b32 v{ONES+2}, v6, 0, vcc")
        a(f"v_cndmask_b32 v{ONES+3}, v6, 0, vcc")
    a("s_lshr_b32 s60, s21, 4")
    a("s_mul_i32 s22, s60, 24")
    a("s_add_u32 s22, s22, 16")
    a("s_load_dwordx2 s[6:7], s[0:1], s22")
    a("s_load_dwordx2 s[58:59], s[0:1], 48")
    a("s_lshl_b32 s22, s20, 2")
    a("s_lshr_b32 s23, s21, 3")
    a("s_add_u32 s22, s22, s23")
    a("s_and_b32 s23, s21, 7")
    a(f"v_lshlrev_b32 v{VL16}, 4, v0")
    a("s_and_b32 s28, s24, 3")
    a("s_lshl_b32 s25, s23, 3")
    a("s_lshl_b32 s29, s28, 1")
    a("s_add_u32 s25, s25, s29")
    a("s_lshl_b32 s26, s22, 17")
    a("s_lshl_b32 s27, s25, 11")
    a("s_add_u32 s27, s27, s26")
    a("v_bfe_u32 v5, v0, 2, 1")
    a("v_and_b32 v6, 0x23, v0")
    a("v_lshl_or_b32 v6, v5, 4, v6")
    a("v_bfe_u32 v5, v0, 3, 2")
    a("v_lshl_or_b32 v6, v5, 2, v6")
    a(f"v_lshlrev_b32 v{VKL}, 4, v6")
    a(f"s_add_u32 s33, s26, {KF}")
    a("s_lshl_b32 s37, s25, 16")
    a("s_lshl_b32 s38, s22, 11")
    a("s_add_u32 s37, s37, s38")
    a(f"s_add_u32 s37, s37, {OF}")
    a("s_lshr_b32 s61, s20, 1")
    a("s_lshl_b32 s61, s61, 2")
    a("s_and_b32 s62, s21, 3")
    a("s_add_u32 s61, s61, s62")
    a("s_and_b32 s62, s20, 1")
    a("s_lshl_b32 s62, s62, 2")
    a("s_bfe_u32 s63, s21, 0x20002")
    a("s_add_u32 s62, s62, s63")
    a("s_lshl_b32 s63, s23, 5")
    a("s_add_u32 s63, s63, s22")
    a(f"s_lshl_b32 s63, s63, {FSH}")
    a(f"s_add_u32 s63, s63, {FL}")
    a("s_cmp_ge_u32 s24, 4")
    a("s_cbranch_scc1 L2_help")
    srd(a, 8, 98, WS_BYTES)
    consts()
    a("s_add_u32 s38, s37, 0x10000")
    a(f"v_mov_b32 v{VKA}, v{VKL}")
    a(f"v_add_u32 v{VVA}, 0x10000, v{VL16}")
    for i in range(40): a(f"v_mov_b32 v{O[0]+i}, 0")
    for i in range(16): a(f"v_mov_b32 v{S[3]+i}, 0")
    for i in range(8): a(f"v_mov_b32 v{VB[1]+i}, 0")
    a("s_mov_b32 s39, 0")
    a("s_mov_b32 s40, 0")
    a("s_waitcnt lgkmcnt(0)")
    if OPT["df"] == "1":
        a("s_cmp_lg_u32 s60, 0")
        a("s_cbranch_scc1 L2_x1")
    a("s_waitcnt vmcnt(0)")
    a.lab("L2_x1")
    a("s_barrier")
    if OPT["pst"] == "0": stamp(a, 3)
    a("s_barrier")
    if OPT["pst"] == "0": stamp(a, 4)
    ld(Q[0], "s27"); ld(KB[0], "s33", 0, VKL); ld(Q[0]+4, "s27", 1024); ld(KB[0]+4, "s33", 1024, VKL)
    ld(Q[1], "s27", 2048); ld(Q[1]+4, "s27", 3072)
    ld(KB[1], "s33", 2048, VKL); ld(KB[1]+4, "s33", 3072, VKL)
    a("s_waitcnt vmcnt(4)")
    a(mfma(S[0], KB[0], Q[0], "0")); a(mfma(S[0], KB[0]+4, Q[0]+4))
    a("s_waitcnt vmcnt(2)")
    a(mfma(S[1], KB[0], Q[1], "0")); a(mfma(S[1], KB[0]+4, Q[1]+4))
    a("s_nop 8")
    maxof([S[0]+r for r in range(16)])
    for i in range(16): a(f"v_sub_f32 v{NEG[0]+i}, 0, v{VM}")
    for i in range(16): a(f"v_sub_f32 v{S[0]+i}, v{S[0]+i}, v{VM}")
    maxof([S[1]+r for r in range(16)])
    for i in range(16): a(f"v_sub_f32 v{NEG[1]+i}, 0, v{VM}")
    a("s_waitcnt vmcnt(0)")
    a("s_barrier")
    if OPT["pst"] == "0": stamp(a, 5)
    if OPT["pst"] == "2":
        stamp(a, 2); a("s_memtime s[72:73]")
    if OPT["tlb"] == "1": a(f"buffer_load_dword v196, v{VL16}, s[8:11], s37 offen")
    a("s_branch L2_it3")

    def item(p, qk=True, rd=True, pre=None, post=None):
        n = (p - 3) % 16
        i = n >> 1; qt = n & 1
        Sn, Sc, Sp = S[(n+1) % 4], S[n % 4], S[(n-1) % 4]
        qn = (n+1) & 1; kbu = KB[((n+1) >> 1) % 2]
        qp = (n-1) & 1; vbu = VB[((n-1) >> 1) % 2]
        if qt == 1:
            kt = (i + 2) % 8
            r = [f"ds_read_b128 {vr(KB[i % 2])}, v{VKA} offset:{kt*2048}", f"ds_read_b128 {vr(KB[i % 2]+4)}, v{VKA} offset:{kt*2048+1024}"]
        else:
            r = [f"ds_read_b128 {vr(VB[i % 2])}, v{VVA} offset:{i*2048}", f"ds_read_b128 {vr(VB[i % 2]+4)}, v{VVA} offset:{i*2048+1024}"]
        if not rd or "r" in OPT["k2x"]: r = []
        ex = [f"v_exp_f32 v{Sc+k}, v{Sc+k}" for k in range(16)]
        post = list(post or [])
        seq = []
        if qk: seq.append(mfma(Sn, kbu, Q[qn], NEG[qn]))
        seq += post[0:1] + ex[0:3]
        if qk: seq.append(mfma(Sn, kbu+4, Q[qn]+4))
        seq += ["s_waitcnt lgkmcnt(0)"] + list(pre or []) + ex[3:6]
        seq.append(sm32(O[qp], vbu, Sp))
        seq += r[:1] + ex[6:9]
        seq.append(sm16(L[qp], Sp))
        seq += post[1:3] + ex[9:10]
        seq.append(sm32(O[qp], vbu+4, Sp+8))
        seq += r[1:] + ex[10:13]
        seq.append(sm16(L[qp], Sp+8))
        seq += post[3:] + ex[13:16]
        for t in seq: a(t)

    a.raw(".p2align 6")
    a.lab("L2_loop")
    item(0, pre=["s_barrier", f"v_add_u32 v{VKA}, s40, v{VKL}"])
    item(1); item(2)
    a(f"v_add_u32 v{VVA}, s41, v{VL16}")
    a.lab("L2_it3")
    for p in range(3, 15): item(p)
    item(15, post=["s_add_u32 s40, s40, 16384", "s_and_b32 s40, s40, 0xffff", "s_add_u32 s41, s40, 0x10000", "s_add_u32 s39, s39, 1", "s_cmp_lt_u32 s39, 8"])
    if OPT["trip"] != "0":
        a("s_cselect_b32 s57, 1, 0")
        for n, tr in zip((2, 3, 4), OPT["trip"].split(",")):
            a(f"s_cmp_lg_u32 s39, {int(tr)+1}")
            a(f"s_cbranch_scc1 L2_t{n}")
            stamp(a, n)
            a.lab(f"L2_t{n}")
        a("s_cmp_lg_u32 s57, 0")
    a("s_cbranch_scc1 L2_loop")
    item(0, rd=False)
    item(1)
    item(2, qk=False, rd=False)
    a("s_nop 1")
    Sp = S[3]
    a(sm32(O[1], VB[1], Sp)); a(sm16(L[1], Sp)); a(sm32(O[1], VB[1]+4, Sp+8)); a(sm16(L[1], Sp+8))
    a("s_nop 4")
    if OPT["pst"] == "1": stamp(a, 5)
    if OPT["pst"] == "2":
        stamp(a, 3); a("s_memtime s[74:75]")
    for qt in range(2):
        a(f"v_mul_f32 v{VM}, 0, v{O[qt]}")
        for i in range(1, 16): a(f"v_fma_f32 v{VM}, v{O[qt]+i}, 0, v{VM}")
        a(f"v_add_f32 v{VM}, v{VM}, v{L[qt]}")
        a(f"v_mov_b32 v{VT}, {f2u(2.0**64):#x}")
        a(f"v_cmp_nlt_f32 vcc, v{VM}, v{VT}")
        a("s_nop 4")
        a(f"s_cbranch_vccnz L2_slow{qt}")
        a.lab(f"L2_fin{qt}")
        finish("s37" if qt == 0 else "s38", 0, S[1+qt], O[qt], L[qt])
    VOB, VOA, VWB, VWA, VST = 10, 11, 12, 16, 20
    F = [24, 56]; ACC = 88
    def Of(f, mt): return F[f] + 4*mt
    def Wf(f, nb): return F[f] + 16 + 4*nb
    def acc(mt, nb): return ACC + (mt*4 + nb)*4
    a("s_and_b32 s31, s24, 1")
    a("s_lshr_b32 s32, s24, 1")
    a("v_and_b32 v2, 15, v0")
    a("v_lshrrev_b32 v3, 4, v0")
    a("s_lshl_b32 s33, s31, 13")
    a("v_lshlrev_b32 v4, 4, v2")
    a("v_lshl_add_u32 v4, v3, 9, v4")
    a(f"v_add_u32 v{VOB}, s33, v4")
    a(f"v_add_u32 v{VOA}, {SLOTS[0]}, v{VOB}")
    a("v_bfe_u32 v4, v0, 2, 3")
    a("v_lshrrev_b32 v5, 5, v0")
    a("v_lshl_add_u32 v5, v5, 4, v4")
    a("v_lshlrev_b32 v5, 8, v5")
    a("v_and_b32 v6, 3, v0")
    a("v_lshl_add_u32 v5, v6, 3, v5")
    a("v_add_u32 v5, 16384, v5")
    a("s_lshl_b32 s33, s32, 2")
    a("v_xor_b32 v4, s33, v4")
    a(f"v_lshl_add_u32 v{VWB}, v4, 5, v5")
    for nb in range(1, 4): a(f"v_xor_b32 v{VWB+nb}, {nb*32}, v{VWB}")
    for nb in range(4): a(f"v_add_u32 v{VWA+nb}, {SLOTS[0]}, v{VWB+nb}")
    for i in range(64): a(f"v_mov_b32 v{ACC+i}, 0")
    for i in range(5): a(f"s_mov_b32 s{44+i}, {SLOTS[(i+1) % 5]}")
    a("s_mov_b32 s35, 0")
    srd(a, 16, 58, 8 << 20)
    a("s_lshl_b32 s40, s61, 19")
    a("s_lshl_b32 s41, s31, 18")
    a("s_add_u32 s40, s40, s41")
    a("s_lshl_b32 s41, s60, 11")
    a("s_add_u32 s40, s40, s41")
    a("s_lshl_b32 s41, s62, 8")
    a("s_add_u32 s40, s40, s41")
    a("s_lshl_b32 s41, s32, 7")
    a("s_add_u32 s40, s40, s41")
    def rdO(f, ks, mt): return [f"ds_read_b128 {vr(Of(f,mt))}, v{VOA} offset:{(mt>>1)*4096 + ks*2048 + (mt&1)*256}"]
    def rdW(f, ks, nb): return [f"ds_read_b64_tr_b16 {vr(Wf(f,nb),2)}, v{VWA+nb} offset:{ks*8192}",
                                f"ds_read_b64_tr_b16 {vr(Wf(f,nb)+2,2)}, v{VWA+nb} offset:{ks*8192+2048}"]
    def reads(f, ks):
        return [rdO(f, ks, 0)] + [rdW(f, ks, nb) for nb in range(4)] + [rdO(f, ks, mt) for mt in (1, 2, 3)]
    def mm(f):
        return [mfma16(acc(mt, nb), Wf(f, nb), Of(f, mt)) for mt in range(4) for nb in range(4)]
    a("s_waitcnt vmcnt(0)")
    if OPT["pst"] == "1": stamp(a, 2)
    a("s_barrier")
    a("s_barrier")
    a("s_barrier")
    if OPT["pst"] == "1": stamp(a, 3)
    flat = lambda g: [t for x in g for t in x]
    def block(f, rd, extra):
        M = mm(f)
        a("s_waitcnt lgkmcnt(3)")
        for i, m_ in enumerate(M):
            if i in (4, 8, 12): a(f"s_waitcnt lgkmcnt({min(15, (2 - (i//4 - 1)) + min(i, len(rd)))})")
            a(m_)
            if i < len(rd): a(rd[i])
            for t in extra.get(i, []): a(t)
    for t in flat(reads(0, 0)): a(t)
    a("s_branch L3_mid")
    a.raw(".p2align 6")
    a.lab("L3_loop")
    block(1, flat(reads(0, 0)), {})
    a.lab("L3_mid")
    block(0, flat(reads(1, 1)), {0: (["s_barrier"] if OPT["la"] == "4" else []) + ["s_mov_b32 s33, s44"], 15: (["s_waitcnt lgkmcnt(0)", "s_barrier"] if OPT["la"] == "5" else []), 1: ["s_mov_b32 s44, s45", "s_mov_b32 s45, s46"],
                                 2: ["s_mov_b32 s46, s47", "s_mov_b32 s47, s48"], 3: ["s_mov_b32 s48, s33"],
                                 5: ["s_add_u32 s35, s35, 1", "s_cmp_lt_u32 s35, 16"],
                                 9: [f"v_add_u32 v{VWA}, s33, v{VWB}"], 10: [f"v_add_u32 v{VWA+1}, s33, v{VWB+1}"],
                                 11: [f"v_add_u32 v{VWA+2}, s33, v{VWB+2}"], 12: [f"v_add_u32 v{VWA+3}, s33, v{VWB+3}"], 13: [f"v_add_u32 v{VOA}, s33, v{VOB}"]})
    a("s_cbranch_scc1 L3_loop")
    block(1, [], {})
    if OPT["pst"] == "1": stamp(a, 4)
    a("s_mul_i32 s41, s24, 9216")
    a("v_mul_u32_u24 v4, 144, v2")
    a("v_lshl_add_u32 v4, v3, 3, v4")
    a("v_add_u32 v4, s41, v4")
    a("v_lshrrev_b32 v5, 3, v0")
    a("v_mul_u32_u24 v6, 144, v5")
    a("v_and_b32 v7, 7, v0")
    a("v_lshl_add_u32 v6, v7, 4, v6")
    a("v_add_u32 v6, s41, v6")
    a("v_lshlrev_b32 v5, 12, v5")
    a(f"v_lshl_add_u32 v{VST}, v7, 4, v5")
    for mt in range(4):
        for nb in range(4):
            b = acc(mt, nb); t0 = F[0] + 2*(mt*4 + nb)
            a(f"v_cvt_pk_bf16_f32 v{t0}, v{b}, v{b+1}")
            a(f"v_cvt_pk_bf16_f32 v{t0+1}, v{b+2}, v{b+3}")
            a(f"ds_write_b64 v4, {vr(t0,2)} offset:{mt*16*144 + nb*32}")
        a(f"ds_read_b128 {vr(F[1]+8*mt)}, v6 offset:{mt*16*144}")
        a(f"ds_read_b128 {vr(F[1]+8*mt+4)}, v6 offset:{mt*16*144 + 8*144}")
        if mt >= 1:
            a("s_waitcnt lgkmcnt(6)")
            for h in range(2):
                a(f"buffer_store_dwordx4 {vr(F[1]+8*(mt-1)+4*h)}, v{VST}, s[16:19], s40 offen{OPT['st3']}")
                a(f"s_add_u32 s40, s40, {8*4096}")
    a("s_waitcnt lgkmcnt(0)")
    for h in range(2):
        a(f"buffer_store_dwordx4 {vr(F[1]+24+4*h)}, v{VST}, s[16:19], s40 offen{OPT['st3']}")
        a(f"s_add_u32 s40, s40, {8*4096}")
    dump(a, 0, "s24")
    a.lab("L2_end")
    a("s_endpgm")

    a.lab("L2_help")
    issued = []
    MC, MP, MP0, SC, SP, OB, LB = 12, 28, 44, 60, 76, [92, 112], [108, 128]
    QB = [132, 140]; KX = [148, 156, 164]; VX = [172, 180, 188]; VPF = 2
    a("s_lshl_b32 s34, s28, 12")
    a("s_add_u32 s35, s33, s34")
    a(f"s_add_u32 s36, s35, {VF-KF}")
    srd(a, 8, 98, WS_BYTES)
    def dma_stage(st):
        for base, so in ((0, "s35"), (65536, "s36")):
            a(f"s_add_u32 m0, s34, {base + (st % 4)*16384}")
            a("s_nop 0")
            for j in range(4):
                a(f"buffer_load_dwordx4 v{VL16}, s[8:11], {so} offen offset:{j*1024} sc1 lds")
            a(f"s_add_u32 {so}, {so}, 16384")
        issued.extend([f"s{st}"]*8)
    def late1():
        consts()
        a(f"s_add_u32 s28, s27, {4<<20}")
        a(f"s_add_u32 s29, s28, {KF}")
        a(f"s_add_u32 s30, s28, {VF}")
        a("s_cmp_eq_u32 s25, 0")
        a("s_cselect_b32 s32, 0, 2048")
        a("s_cselect_b64 s[44:45], 0, -1")
        a("s_sub_u32 s31, s29, s32")
        a("s_sub_u32 s32, s30, s32")
        a(f"s_add_u32 s37, s37, {4<<20}")
        a("s_add_u32 s38, s37, 0x10000")
        if PF:
            a("v_lshrrev_b32 v5, 3, v0")
            a("v_lshlrev_b32 v5, 11, v5")
            a("v_and_b32 v6, 7, v0")
            a(f"v_lshl_add_u32 v{VPF}, v6, 7, v5")
            a("v_cmp_gt_u32 vcc, 32, v0")
            a("v_mov_b32 v5, 0x7fffff00")
            a("s_and_b32 s47, s21, 15")
            a("s_lshl_b32 s47, s47, 17")
            a(f"v_cndmask_b32 v{VPF}, v5, v{VPF}, vcc")
            a("s_lshl_b32 s46, s34, 3")
            a("s_add_u32 s47, s47, s46")
            a("s_and_b32 s46, s20, 1")
            a("s_lshl_b32 s46, s46, 10")
            a("s_add_u32 s47, s47, s46")
    def pf():
        if PF:
            a(f"buffer_load_dword v{VPF+1}, v{VPF}, s[16:19], s47 offen")
            a("s_add_u32 s47, s47, 8192")
    VWD0, VWD1, VFL, VFD = 196, 197, 198, 199
    def dma_w(st):
        sl = SLOTS[st % 5] + 16384
        a(f"s_add_u32 m0, s34, {sl}")
        a("s_nop 0")
        a(f"buffer_load_dwordx4 v{VWD0}, s[16:19], s40 offen lds")
        a("s_add_u32 m0, m0, 1024")
        a("s_nop 0")
        a(f"buffer_load_dwordx4 v{VWD1}, s[16:19], s40 offen lds")
        a("s_add_u32 m0, m0, 1024")
        a(f"s_add_u32 s40, s40, {64*2048}")
        a(f"buffer_load_dwordx4 v{VWD0}, s[16:19], s41 offen lds")
        a("s_add_u32 m0, m0, 1024")
        a("s_nop 0")
        a(f"buffer_load_dwordx4 v{VWD1}, s[16:19], s41 offen lds")
        a(f"s_add_u32 s41, s41, {64*2048}")
    def dma_o(st):
        a(f"s_add_u32 m0, s34, {SLOTS[st % 5]}")
        a("s_nop 0")
        for j in range(4):
            a(f"buffer_load_dwordx4 v{VL16}, s[8:11], s39 offen offset:{j*1024}{OPT['osc']} lds")
        a("s_add_u32 s39, s39, 4096")
    def poll(tag, voff, soff, srd_="s[8:11]", val=1, cmp_="ne"):
        a("s_mov_b32 s43, 0")
        a.lab(tag)
        a(f"buffer_load_dword v{VFD}, v{voff}, {srd_}, {soff} offen sc1")
        a("s_add_u32 s43, s43, 1")
        a("s_waitcnt vmcnt(0)")
        a(f"v_cmp_{cmp_}_u32 vcc, {val}, v{VFD}")
        a("s_cmp_gt_u32 s43, 0x200000")
        a(f"s_cbranch_scc1 {tag}x")
        a("s_nop 2")
        a(f"s_cbranch_vccz {tag}x")
        a(f"s_sleep {OPT['slp']}")
        a(f"s_branch {tag}")
        a.lab(tag + "x")
    def lanemask(r, prev):
        m = 0
        for l in range(64):
            q = l & 31; hh = l >> 5
            key = kperm(8*(r//4) + 4*hh + r % 4)
            d = q - key + (32 if prev else 0)
            if 0 <= d <= 14 and d % 2 == 0: m |= 1 << l
        return m
    def masks(prev):
        k = 0
        a(f"v_mov_b32 v{VT}, {NEGBIG:#x}")
        for i in range(20): a(f"v_mov_b32 v{OB[prev]+i}, 0")
        for r in range(16):
            m = lanemask(r, prev)
            sp = 48 + 2*(k % 4); k += 1
            a(f"s_mov_b32 s{sp}, {m & 0xffffffff:#x}")
            a(f"s_mov_b32 s{sp+1}, {m >> 32:#x}")
            a(f"v_cndmask_b32 v{(MP if prev else MC)+r}, v{VT}, 0, s[{sp}:{sp+1}]")
            if prev: a(f"v_cndmask_b32 v{MP0+r}, v{VT}, v{MP+r}, s[44:45]")
    def bcomp(t):
        keep = a.l; a.l = []
        kc, kp, vc, vp = KX[t+1], KX[t], VX[t+1], VX[t]
        ob, lb = OB[t], LB[t]
        a(mfma(SC, kc, QB[t], MC)); a(mfma(SP, kp, QB[t], MP0 if t == 0 else MP))
        a(mfma(SC, kc+4, QB[t]+4)); a(mfma(SP, kp+4, QB[t]+4))
        a("s_nop 10")
        vals = [SC+r for r in range(16)] + [SP+r for r in range(16)]
        maxof(vals)
        for v in vals: a(f"v_sub_f32 v{v}, v{v}, v{VM}")
        for v in vals: a(f"v_exp_f32 v{v}, v{v}")
        a("s_nop 1")
        a(sm32(ob, vc, SC)); a(sm16(lb, SC)); a(sm32(ob, vc+4, SC+8)); a(sm16(lb, SC+8))
        a(sm32(ob, vp, SP)); a(sm16(lb, SP)); a(sm16(lb, SP+8)); a(sm32(ob, vp+4, SP+8))
        a("s_nop 12")
        finish("s37" if t == 0 else "s38", 0, QB[t], ob, lb)
        out = a.l; a.l = keep
        return out
    work = [] if "B" in OPT["k2x"] else bcomp(0) + bcomp(1)
    def cost(t): return 2 if "v_exp" in t else (3 if "mfma" in t else 1)
    tot = sum(cost(t) for t in work)
    slots = [int(c) for c in OPT["bslots"]]
    chunks = {b: [] for b in range(8)}
    acc_ = 0
    for t in work:
        chunks[slots[min(len(slots) - 1, acc_ * len(slots) // tot)]].append(t)
        acc_ += cost(t)
    def psetup():
        a("v_lshrrev_b32 v5, 4, v0")
        a("v_and_b32 v199, 15, v0")
        a(f"v_lshlrev_b32 v{VWD0}, 1, v5")
        a(f"v_xor_b32 v199, v199, v{VWD0}")
        a("v_lshlrev_b32 v199, 4, v199")
        a(f"v_lshl_add_u32 v{VWD0}, v5, 11, v199")
        a(f"v_xor_b32 v{VWD1}, 128, v{VWD0}")
        a(f"v_add_u32 v{VWD1}, 8192, v{VWD1}")
        a(f"v_and_b32 v{VFL}, 31, v0")
        a(f"v_lshlrev_b32 v{VFL}, {FSH}, v{VFL}")
        a("s_lshl_b32 s39, s60, 22")
        a("s_lshl_b32 s40, s61, 18")
        a("s_add_u32 s39, s39, s40")
        a("s_lshl_b32 s40, s34, 4")
        a("s_add_u32 s39, s39, s40")
        a(f"s_add_u32 s39, s39, {OF}")
        a("s_lshl_b32 s40, s34, 3")
        a("s_lshl_b32 s41, s62, 8")
        a("s_add_u32 s40, s40, s41")
        a("s_add_u32 s41, s40, 16384")
        a("s_lshl_b32 s42, s61, 1")
        a("s_lshr_b32 s43, s34, 13")
        a("s_add_u32 s42, s42, s43")
        a("s_add_u32 s42, s42, 8")
        a("s_lshr_b32 s43, s61, 1")
        a("s_cmp_eq_u32 s60, 0")
        a("s_cselect_b32 s42, s43, s42")
        a(f"s_lshl_b32 s42, s42, {5+FSH}")
        a(f"s_add_u32 s42, s42, {FL}")
        a("s_lshl_b32 s89, s25, 4")
        a("s_add_u32 s89, s89, s22")
        a("s_add_u32 s89, s89, 256")
        a(f"s_lshl_b32 s89, s89, {FSH}")
        a(f"s_add_u32 s89, s89, {FL}")
    def publish(base, tag=None):
        if tag:
            a("s_cmp_lg_u32 s24, 4")
            a(f"s_cbranch_scc1 {tag}")
        a("s_mov_b64 exec, 1")
        a(f"buffer_store_dword v204, v203, s[8:11], {base} offen sc1")
        a("s_mov_b64 exec, -1")
        if tag: a.lab(tag)
        else: issued.append("f")
    def wait_for(tags):
        idx_ = [i for i, x in enumerate(issued) if x in tags]
        if idx_: a(f"s_waitcnt vmcnt({min(63, len(issued) - 1 - max(idx_))})")
    a("v_mov_b32 v203, 0")
    a("v_mov_b32 v204, 1")
    a("v_and_b32 v205, 7, v0")
    a(f"v_lshlrev_b32 v205, {FSH}, v205")
    a("s_lshr_b32 s84, s22, 1")
    a(f"s_lshl_b32 s84, s84, {3+FSH}")
    a(f"s_add_u32 s84, s84, {FL + (1280 << FSH)}")
    def late2():
        a("s_lshr_b32 s85, s22, 1")
        a("s_lshl_b32 s85, s85, 5")
        a("s_lshr_b32 s43, s25, 1")
        a("s_add_u32 s85, s85, s43")
        a("s_add_u32 s85, s85, 1407")
        a(f"s_lshl_b32 s85, s85, {FSH}")
        a(f"s_add_u32 s85, s85, {FL}")
        a("v_and_b32 v207, 1, v0")
        a("v_and_b32 v206, 1, s44")
        a("v_xor_b32 v206, 1, v206")
        a("v_or_b32 v207, v207, v206")
        a(f"v_lshlrev_b32 v207, {FSH}, v207")
    a("s_waitcnt vmcnt(0) lgkmcnt(0)")
    a("v_mov_b32 v202, v8")
    srd(a, 16, 6, 2 << 20)
    a("s_barrier")
    a("s_cmp_eq_u32 s60, 0")
    a("s_cbranch_scc1 L2_hA")
    BF = min(7, slots[-1] + 1)
    QS = [int(c) for c in OPT["qs"]]
    QP = int(OPT["qp"]); BL = int(OPT["bl"])
    PX = 132
    for typ in ("B", "A"):
        T_ = "L2" + typ
        issued[:] = []
        if typ == "A":
            a.lab("L2_hA")
            publish("s95", T_ + "_p1")
        else:
            if OPT["df"] == "2":
                for n in range(12): a(f"ds_read_b128 {vr(PX+4*n)}, v201 offset:{n*1024}")
            if OPT["df"] == "0": publish("s95")
        a("s_cmp_lg_u32 s24, 5")
        a(f"s_cbranch_scc1 {T_}_qx")
        a("v_cmp_gt_u32 vcc, 0x100, v202")
        a("s_nop 4")
        a(f"s_cbranch_vccz {T_}_cx")
        poll(T_ + "_c", 203, "0", "s[80:83]", "0x100", "gt")
        if OPT["xslp"] != "0": a(f"s_sleep {OPT['xslp']}")
        poll(T_ + "_q", 205, "s84")
        a("s_waitcnt lgkmcnt(0)")
        a("s_barrier")
        dma_stage(0)
        a("s_waitcnt vmcnt(0)")
        a("s_barrier")
        dma_stage(1); dma_stage(2)
        qst = []
        if typ == "B":
            for n, (seg, off) in enumerate(jobs if OPT["df"] != "0" else []):
                qst.append(f"buffer_store_dwordx4 {vr(PK1+4*n)}, v200, s[8:11], s{92+seg} offen offset:{off} sc1")
            for n, (seg, off) in enumerate(jobs if OPT["df"] == "2" else []):
                qst.append(f"buffer_store_dwordx4 {vr(PX+4*n)}, v200, s[8:11], s{86+seg} offen offset:{off} sc1")
            for sg in range(3): a(f"s_sub_u32 s{86+sg}, s{92+sg}, 0x20000")
        def qstores(b):
            k = [i for i, x in enumerate(QS) if x == b]
            per = -(-len(qst) // len(QS))
            for i in k:
                for t in qst[i*per:(i+1)*per]:
                    a(t); issued.append("q")
        qstores(0)
        late1(); late2(); masks(0)
        for b in range(1, 8):
            wait_for([f"s{b}"])
            a("s_barrier")
            if b <= 5: dma_stage(b + 2)
            qstores(b)
            if b == QP and typ == "B" and OPT["df"] != "0":
                wait_for(["q"]); publish("s95")
            if b == 1:
                masks(1); psetup()
            if b == BL:
                poll(T_ + "_b", 207, "s85"); issued[:] = []
                for t in range(2): ld(QB[t], "s28", t*2048); ld(QB[t]+4, "s28", t*2048+1024)
                ld(KX[0], "s31", 0, VKL); ld(KX[0]+4, "s31", 1024, VKL)
                for t in range(2): ld(KX[t+1], "s29", t*2048, VKL); ld(KX[t+1]+4, "s29", t*2048+1024, VKL)
                ld(VX[0], "s32"); ld(VX[0]+4, "s32", 1024)
                for t in range(2): ld(VX[t+1], "s30", t*2048); ld(VX[t+1]+4, "s30", t*2048+1024)
                issued.extend(["B"]*16)
            if b == slots[0]: wait_for(["B"])
            if b == BF:
                wait_for(["st"]); publish("s89")
            for c in OPT['pfs']:
                if int(c) == b and PF:
                    pf(); issued.append("p")
            if b == 5 and OPT["tlb"] == "1":
                srd(a, 12, 58, 8 << 20)
                a("v_lshlrev_b32 v206, 21, v0")
                a("buffer_load_dword v206, v206, s[12:15], 0 offen"); issued.append("p")
            if b >= 6:
                if b == 6:
                    dma_w(0); issued.extend(["w0"]*4)
                dma_w(b - 5); issued.extend([f"w{b-5}"]*4)
            for t in chunks[b]:
                a.l.append(t)
                if "buffer_store" in t: issued.append("st")
        if typ == "B":
            a(f"s_sleep {OPT['bslp']}")
            poll(T_ + "_o", VFL, "s42"); issued[:] = []
            for st in range(3):
                dma_o(st); issued.extend([f"o{st}"]*4)
            a("s_barrier")
            publish("s63", T_ + "_p3")
            a("s_barrier")
            wait_for(["o0"])
            a("s_barrier")
            for st in (3, 4):
                dma_w(st); dma_o(st); issued.extend([f"w{st}"]*4 + [f"o{st}"]*4)
        else:
            a("s_barrier")
            publish("s63", T_ + "_p3")
            dma_w(3); dma_w(4)
            a("s_cmp_lg_u32 s24, 5")
            a(f"s_cbranch_scc1 {T_}_ox")
            if OPT["aslp"] != "0": a(f"s_sleep {OPT['aslp']}")
            poll(T_ + "_o", VFL, "s42"); issued[:] = []
            a("s_barrier")
            for st in range(2):
                dma_o(st); issued.extend([f"o{st}"]*4)
            wait_for(["o0"])
            a("s_barrier")
            for st in range(2, 5):
                dma_o(st); issued.extend([f"o{st}"]*4)
        for t in range(15):
            wait_for([f"o{t+1}", f"w{t+1}"])
            a("s_barrier")
            if t + 5 < 16:
                dma_w(t + 5); dma_o(t + 5); issued.extend([f"w{t+5}"]*4 + [f"o{t+5}"]*4)
        for n in (2, 3, 4, 5): stamp(a, n)
        dump(a, 0, "s24")
        a("s_endpgm")

    s0 = S[0]
    for qt in range(2):
        a.lab(f"L2_slow{qt}")
        a(f"s_add_u32 s36, s26, {VF}")
        a(f"v_mov_b32 v{VM}, 0xff800000")
        a("s_mov_b32 s39, 0")
        a.lab(f"L2_s1{qt}")
        a("s_add_u32 s41, s33, s39")
        ld(KB[0], "s41", 0, VKL); ld(KB[0]+4, "s41", 1024, VKL)
        a("s_waitcnt vmcnt(0)")
        a(mfma(s0, KB[0], Q[qt], "0")); a(mfma(s0, KB[0]+4, Q[qt]+4))
        a("s_nop 15")
        for i in range(0, 16, 2): a(f"v_max3_f32 v{VM}, v{VM}, v{s0+i}, v{s0+i+1}")
        a("s_add_u32 s39, s39, 2048")
        a(f"s_cmp_lt_u32 s39, {64*2048}")
        a(f"s_cbranch_scc1 L2_s1{qt}")
        a(f"v_mov_b32 v{VT}, v{VM}")
        xhalf_max()
        for i in range(16): a(f"v_sub_f32 v{NEG[qt]+i}, 0, v{VM}")
        for i in range(16): a(f"v_mov_b32 v{O[qt]+i}, 0")
        for i in range(4): a(f"v_mov_b32 v{L[qt]+i}, 0")
        a("s_mov_b32 s39, 0")
        a.lab(f"L2_s2{qt}")
        a("s_add_u32 s41, s33, s39")
        ld(KB[0], "s41", 0, VKL); ld(KB[0]+4, "s41", 1024, VKL)
        a("s_add_u32 s41, s36, s39")
        ld(VB[0], "s41"); ld(VB[0]+4, "s41", 1024)
        a("s_waitcnt vmcnt(0)")
        a(mfma(s0, KB[0], Q[qt], NEG[qt])); a(mfma(s0, KB[0]+4, Q[qt]+4))
        a("s_nop 15")
        for i in range(16): a(f"v_exp_f32 v{s0+i}, v{s0+i}")
        a("s_nop 1")
        a(sm32(O[qt], VB[0], s0)); a(sm16(L[qt], s0)); a(sm32(O[qt], VB[0]+4, s0+8)); a(sm16(L[qt], s0+8))
        a("s_nop 7")
        a("s_add_u32 s39, s39, 2048")
        a(f"s_cmp_lt_u32 s39, {64*2048}")
        a(f"s_cbranch_scc1 L2_s2{qt}")
        a("s_nop 15")
        a(f"s_branch L2_fin{qt}")
    return kd(N, NV, 102), f"; @launch kernel={N} grid=(256,1,1) block=(512,1,1) lds=163840"


def main():
    a = A()
    jobs = k1(a)
    desc, launch = k2(a, jobs)
    if OPT["single"] == "1": launch = "; @launch grid=(256,1,1) block=(512,1,1) lds=163840"
    hdr = open("cdna_kernels/" + NAME + ".s.ref").read().split("\n")
    top = [l for l in hdr if l.startswith(";") and "@launch" not in l and "Override" not in l and "grid=ceil" not in l]
    out = "\n".join(top) + "\n" + launch + "\n"
    out += '.amdgcn_target "amdgcn-amd-amdhsa--gfx950"\n.text\n' + a.text()
    out += '.section .rodata,"a"\n' + desc
    open(sys.argv[1], "w").write(out)

main()
```

```python
import struct, math, sys

NAME = "concat_heads__mha_block__sliding_local_dilated__prompt"
OPT = dict(st1=" sc1", st2=" sc1", st3=" sc1", dbg="0", pf1="1", pf3="1", ord1="0", dlt="4", nx="0", ph="8", pf0="2", pfm="255", xl="4", pfe="8", cpb="16", s2e="0", prio="1", k2x="", cpf="1", hprio="0", trip="0", k1x="", tlb="1", dk="0", spin="", bslots="345", pst="0", wfirst="1", slp="10", fsh="5", pfs="2345", opf="0", la="5", hp0="0", wp="1", cp="2", adp="0", xord="20361475", k3x="", mix="1", qs="0", qp="1", bl="2", xslp="0", single="0", df="1", rt="1", pub="3", od="3", pa="1", fm="g", aslp="8", bslp="1", osc=" sc1")
for a in sys.argv[2:]:
    k, v = a.split("=", 1)
    OPT[k] = v

def f2u(x): return struct.unpack("<I", struct.pack("<f", x))[0]
QSCALE = f2u(math.log2(math.e) / math.sqrt(32.0))
NEGBIG = f2u(-1e30)

QF, KF, VF, OF = 0, 8 << 20, 16 << 20, 24 << 20
WS_BYTES = 33 << 20

class A:
    def __init__(s): s.l = []
    def __call__(s, t): s.l.append("    " + t)
    def lab(s, t): s.l.append(t + ":")
    def raw(s, t): s.l.append(t)
    def text(s): return "\n".join(s.l) + "\n"

def vr(b, n=4): return f"v[{b}:{b+n-1}]"
def mfma(d, a, b, c=None):
    cc = vr(d, 16) if c is None else (c if isinstance(c, str) else vr(c, 16))
    return f"v_mfma_f32_32x32x16_bf16 {vr(d,16)}, {vr(a)}, {vr(b)}, {cc}"

def mfma16(d, a, b):
    return f"v_mfma_f32_16x16x32_bf16 {vr(d)}, {vr(a)}, {vr(b)}, {vr(d)}"

def spread(main, fill, start=0, every=1, per=1):
    out = []; k = 0
    for i, m in enumerate(main):
        out.append(m)
        if i >= start and (i - start) % every == 0:
            for _ in range(per):
                if k < len(fill):
                    out += fill[k]; k += 1
    while k < len(fill):
        out += fill[k]; k += 1
    return out

def interleave(main, fill, pattern):
    out = []; k = 0
    for i, m in enumerate(main):
        for _ in range(pattern[i] if i < len(pattern) else 0):
            if k < len(fill):
                out += fill[k]; k += 1
        out.append(m)
    while k < len(fill):
        out += fill[k]; k += 1
    return out

def kd(name, vgpr, sgpr=96):
    acc = (vgpr + 3) // 4 * 4
    return f""".p2align 6
.amdhsa_kernel {name}
  .amdhsa_next_free_vgpr {vgpr}
  .amdhsa_next_free_sgpr {sgpr}
  .amdhsa_accum_offset {acc}
  .amdhsa_group_segment_fixed_size 0
  .amdhsa_kernarg_size 72
  .amdhsa_user_sgpr_count 2
  .amdhsa_user_sgpr_kernarg_segment_ptr 1
  .amdhsa_system_sgpr_workgroup_id_x 1
.end_amdhsa_kernel
"""

_cp = [0]
DBG = OPT["dbg"] in ("1", "2", "3", "4")
def stamp(a, n):
    if DBG:
        a(f"{'s_memrealtime' if OPT['rt'] == '1' and n >= 2 else 's_memtime'} s[{64+2*n}:{65+2*n}]")
def rstamp(a, n):
    if DBG:
        a(f"s_memrealtime s[{64+2*n}:{65+2*n}]")
def dump(a, kidx, wave_sgpr, nst=8):
    if not DBG: return
    if OPT["dbg"] == "4":
        _cp[0] += 1
        sk = f"Ldbg{_cp[0]}"
        a("s_lshl_b32 s92, s2, 3")
        a(f"s_add_u32 s92, s92, {wave_sgpr}")
        a(f"s_cmp_lg_u32 s92, {OPT['dk']}")
        a(f"s_cbranch_scc1 {sk}")
        a("s_waitcnt vmcnt(0)")
        a("s_memrealtime s[78:79]")
        a("s_waitcnt lgkmcnt(0)")
        a(f"s_sub_u32 s93, s{64+2*int(OPT['spin'])}, s66")
        a.lab(sk + "s")
        a("s_memrealtime s[62:63]")
        a("s_waitcnt lgkmcnt(0)")
        a("s_sub_u32 s62, s62, s78")
        a("s_cmp_lt_u32 s62, s93")
        a(f"s_cbranch_scc1 {sk}s")
        a.lab(sk)
        return
    if OPT["dbg"] == "2":
        if kidx != int(OPT["dk"]): return
        _cp[0] += 1
        sk = f"Ldbg{_cp[0]}"
        a("s_load_dwordx2 s[88:89], s[0:1], 56")
        a("s_waitcnt lgkmcnt(0) vmcnt(0)")
        a(f"s_memtime s[{64+2*(nst-2)}:{65+2*(nst-2)}]")
        a(f"s_memrealtime s[{64+2*(nst-1)}:{65+2*(nst-1)}]")
        a("s_waitcnt lgkmcnt(0)")
        a(f"s_sub_u32 s88, s88, {512*kidx}")
        a("s_subb_u32 s89, s89, 0")
        a("s_mov_b32 s90, 64")
        a("s_mov_b32 s91, 0x00020000")
        a("s_lshl_b32 s92, s2, 3")
        a(f"s_add_u32 s92, s92, {wave_sgpr}")
        a("s_cmp_eq_u32 s92, 805")
        a("s_cselect_b32 s93, 32, 0x1000")
        a("s_cmp_eq_u32 s92, 0")
        a("s_cselect_b32 s92, 0, s93")
        a("v_mov_b32 v2, 0")
        for n in range(2, nst):
            base = 64 if n < nst-1 else 66
            a(f"s_sub_u32 s93, s{64+2*n}, s{base}")
            a("v_mov_b32 v3, s93")
            a(f"buffer_store_dword v3, v2, s[88:91], s92 offen offset:{4*(n-2)}")
            a("s_nop 1")
        return
    a("s_load_dwordx2 s[88:89], s[0:1], 64")
    a("s_waitcnt lgkmcnt(0) vmcnt(0)")
    a(f"s_memtime s[{64+2*(nst-2)}:{65+2*(nst-2)}]")
    a(f"s_memrealtime s[{64+2*(nst-1)}:{65+2*(nst-1)}]")
    a("s_waitcnt lgkmcnt(0)")
    a("s_mov_b32 s90, 0x8000000")
    a("s_mov_b32 s91, 0x00020000")
    a("s_lshl_b32 s92, s2, 3")
    a(f"s_add_u32 s92, s92, {wave_sgpr}")
    a("s_lshl_b32 s92, s92, 6")
    a(f"s_add_u32 s92, s92, {(64+kidx) << 20}")
    a("v_mov_b32 v2, 0")
    for n in range(nst):
        a(f"v_mov_b32 v3, s{64+2*n}")
        a(f"buffer_store_dword v3, v2, s[88:91], s92 offen offset:{4*n}")
        a("s_nop 1")
    if OPT["dbg"] == "3" and kidx == 2:
        _cp[0] += 1
        sk = f"Ldbg{_cp[0]}"
        a("s_lshl_b32 s92, s2, 3")
        a(f"s_add_u32 s92, s92, {wave_sgpr}")
        a(f"s_cmp_lg_u32 s92, {OPT['dk']}")
        a(f"s_cbranch_scc1 {sk}")
        a(f"s_add_u32 s88, s88, {(64 << 20) + int(OPT['dk'])*64}")
        a("s_addc_u32 s89, s89, 0")
        a("s_load_dwordx8 s[40:47], s[88:89], 0")
        a("s_add_u32 s88, s88, 0x100000")
        a("s_addc_u32 s89, s89, 0")
        a("s_load_dwordx8 s[48:55], s[88:89], 0")
        a("s_load_dwordx2 s[88:89], s[0:1], 56")
        a("s_waitcnt lgkmcnt(0)")
        a("s_mov_b32 s90, 64")
        k = 0
        for b, st in ((40, 1), (48, 1), (64, 2)):
            for n, ref in ((3, b), (4, b), (6, b), (1, 41), (7, 41)):
                a(f"s_sub_u32 s93, s{b+st*n}, s{ref}")
                a("v_mov_b32 v3, s93")
                a(f"buffer_store_dword v3, v2, s[88:91], 0 offen offset:{4*k}")
                a("s_nop 1")
                k += 1
        if OPT["spin"] != "":
            q, mult, unit = OPT["spin"].split(",")
            x, y = q.split("-")
            a(f"s_sub_u32 s93, s{x}, s{y}")
            a(f"s_mul_i32 s93, s93, {mult}")
            ins = "s_memrealtime" if unit == "r" else "s_memtime"
            a(f"{ins} s[60:61]")
            a("s_waitcnt lgkmcnt(0)")
            a.lab(sk + "s")
            a(f"{ins} s[62:63]")
            a("s_waitcnt lgkmcnt(0)")
            a("s_sub_u32 s62, s62, s60")
            a("s_cmp_lt_u32 s62, s93")
            a(f"s_cbranch_scc1 {sk}s")
        a.lab(sk)

def codepf(a, start, end, vtmp, lane="v0"):
    if OPT["cpf"] != "1": return
    _cp[0] += 1
    l = f"Lcp{_cp[0]}"
    a("s_getpc_b64 s[56:57]")
    a.lab(l)
    a(f"s_add_u32 s56, s56, {start}-{l}")
    a(f"s_addc_u32 s57, s57, ({start}-{l})>>32")
    a(f"v_lshlrev_b32 v{vtmp}, 7, {lane}")
    a(f"v_min_u32 v{vtmp}, ({end})-({start})-4, v{vtmp}")
    a(f"global_load_dword v{vtmp}, v{vtmp}, s[56:57]")

def head(a, name):
    a.raw(f".globl {name}\n.p2align 8\n.type {name},@function\n{name}:")

def srd(a, d, base, nbytes):
    a(f"s_mov_b32 s{d}, s{base}")
    a(f"s_mov_b32 s{d+1}, s{base+1}")
    a(f"s_mov_b32 s{d+2}, {nbytes:#x}")
    a(f"s_mov_b32 s{d+3}, 0x00020000")

def place(main, fill, per=2, start=0):
    out = []; k = 0
    for i, m in enumerate(main):
        out.append(m)
        if i >= start:
            out += fill[k:k+per]; k += per
    out += fill[k:]
    return out

def sched(M, rd, d, post, late, late_dma=False):
    n = len(M)
    gaps = [[] for _ in range(n)]
    if late_dma: rg = list(range(len(rd))); dg = [len(rd) + 2*k for k in range(len(d))]
    else:
        dg = [1 + 4*k for k in range(len(d))]; rg = [g for g in range(n) if g not in dg][:len(rd)]
    for g, t in zip(rg, rd): gaps[g].append(t)
    for g, (m_, l_) in zip(dg, d):
        gaps[g-1].append(m_); gaps[g].append(l_)
    def runs(ops):
        out = []
        for t in ops:
            if t.startswith("s_cselect") : out[-1].append(t)
            else: out.append([t])
        return out
    def put(run, g0):
        g = g0
        while g < n - 1 and len(gaps[g]) + len(run) > 3: g += 1
        gaps[g] += run
        return g
    g = (dg[len(d)-1] if d else 0)
    for r in runs(post): g = put(r, g)
    g = 0
    for r in runs(late):
        if r[0].startswith("v_"): g = max(g, rg[-1] if rg else 0)
        g = put(r, g)
    seq = []
    for i, m_ in enumerate(M):
        seq.append(m_); seq += gaps[i]
    return seq

FL = 32 << 20
FSH = int(OPT['fsh'])
PK1 = 208

def k1(a):
    N = NAME + "_kernel"
    head(a, N)
    XS, WS, WSL = 32768, 98304, 12288
    VD, VXB, VXA, VWB, VWA, VST, VPX, VPW, VPD = 10, 18, 20, 22, 24, 26, 27, 28, 29
    F = [32, 72]; ACC = 112; NV = 208
    PF = OPT["pf1"] == "1"
    DLT = int(OPT["dlt"]); PST = 2
    def A_(f, mt): return F[f] + 4*mt
    def B_(f, nb): return F[f] + 16 + 4*nb
    def acc(mt, nb): return ACC + (mt*6 + nb)*4
    a("s_cmp_ge_u32 s2, 256")
    a("s_cbranch_scc1 L2_end")
    stamp(a, 0); rstamp(a, 1)
    a("s_and_b32 s20, s2, 7")
    a("s_lshr_b32 s21, s2, 3")
    MIX = OPT["mix"] == "1"
    if MIX: a("s_lshr_b32 s22, s21, 4")
    else: a("s_lshr_b32 s22, s20, 2")
    a("s_mul_i32 s23, s22, 24")
    a("s_load_dwordx4 s[4:7], s[0:1], s23")
    a("s_load_dwordx4 s[96:99], s[0:1], 56")
    a("s_load_dwordx4 s[88:91], s[0:1], 0")
    a("v_lshrrev_b32 v1, 6, v0")
    a("v_and_b32 v0, 63, v0")
    a("v_readfirstlane_b32 s26, v1")
    a("s_and_b32 s24, s20, 1")
    a("s_lshl_b32 s24, s24, 2")
    a("s_and_b32 s25, s21, 3")
    a("s_add_u32 s24, s24, s25")
    if MIX:
        a("s_lshr_b32 s25, s20, 1")
        a("s_xor_b32 s53, s25, s22")
        a("s_lshl_b32 s25, s53, 2")
        a("s_bfe_u32 s27, s21, 0x20002")
    else:
        a("s_bfe_u32 s25, s20, 0x10001")
        a("s_lshl_b32 s25, s25, 3")
        a("s_lshr_b32 s27, s21, 2")
    a("s_add_u32 s25, s25, s27")
    a("s_and_b32 s31, s26, 3")
    a("s_lshr_b32 s32, s26, 2")
    PH = OPT["ph"]
    if PH == "0": a("s_mov_b32 s44, 0")
    elif PH == "1":
        a("s_lshl_b32 s44, s20, 1")
    elif PH == "2":
        a("s_lshl_b32 s44, s20, 1")
        a("s_and_b32 s45, s21, 1")
        a("s_add_u32 s44, s44, s45")
    elif PH in ("6", "7", "8"):
        a("s_lshr_b32 s54, s20, 1")
        a("s_lshl_b32 s54, s54, 2")
        a("s_and_b32 s45, s20, 1")
        a("s_mul_i32 s45, s45, 10")
        a("s_add_u32 s54, s54, s45")
        a("s_and_b32 s54, s54, 15")
        if PH == "6": a("s_and_b32 s45, s21, 1")
        elif PH == "7": a("s_mov_b32 s45, s22")
        else: a("s_mov_b32 s45, 0")
        a("s_add_u32 s44, s54, s45")
    elif PH == "5":
        a("s_lshl_b32 s44, s20, 1")
        a("s_add_u32 s44, s44, s22")
    elif PH == "3":
        a("s_lshl_b32 s44, s22, 1")
        a("s_and_b32 s45, s20, 1")
        a("s_add_u32 s44, s44, s45")
        a("s_lshl_b32 s44, s44, 2")
        a("s_and_b32 s45, s21, 3")
        a("s_add_u32 s44, s44, s45")
    elif PH == "4":
        a("s_lshl_b32 s44, s22, 1")
        a("s_and_b32 s45, s20, 1")
        a("s_add_u32 s44, s44, s45")
        a("s_lshl_b32 s44, s44, 2")
    a("v_lshrrev_b32 v2, 3, v0")
    a("v_and_b32 v3, 7, v0")
    a("v_lshrrev_b32 v4, 4, v0")

    def rdA(f, ks, mt): return [f"ds_read_b128 {vr(A_(f,mt))}, v{VXA+ks} offset:{mt*2048}"]
    def rdB(f, nb):
        o = (nb//2)*4096
        return [f"ds_read_b64_tr_b16 {vr(B_(f,nb),2)}, v{VWA+nb%2} offset:{o}",
                f"ds_read_b64_tr_b16 {vr(B_(f,nb)+2,2)}, v{VWA+nb%2} offset:{o+512}"]
    def reads(f, ks):
        r = rdB(f, 0)
        for mt in range(4): r += rdA(f, ks, mt)
        for nb in range(1, 6): r += rdB(f, nb)
        return r
    def mm(f):
        r = []
        for nb in range(6):
            for mt in range(4):
                if nb < 4: r.append(mfma16(acc(mt, nb), B_(f, nb), A_(f, mt)))
                else:      r.append(mfma16(acc(mt, nb), A_(f, mt), B_(f, nb)))
        return r

    def common_setup():
        srd(a, 16, 98, WS_BYTES)
        a("v_and_b32 v2, 15, v0")
        a("v_lshrrev_b32 v3, 4, v0")
        a("v_bfe_u32 v4, v0, 1, 3")
        a("s_lshl_b32 s33, s31, 13")
        a("v_lshlrev_b32 v5, 7, v2")
        a("v_add_u32 v5, s33, v5")
        a("v_xor_b32 v6, v3, v4")
        a(f"v_lshl_add_u32 v{VXB}, v6, 4, v5")
        a(f"v_xor_b32 v{VXB+1}, 64, v{VXB}")
        a(f"v_mov_b32 v{VXA}, v{VXB}")
        a(f"v_mov_b32 v{VXA+1}, v{VXB+1}")
        a("v_bfe_u32 v4, v0, 2, 2")
        a("v_lshl_add_u32 v4, v3, 3, v4")
        a("v_lshlrev_b32 v4, 7, v4")
        a("v_and_b32 v6, 3, v0")
        a("v_lshl_add_u32 v4, v6, 3, v4")
        a("v_bfe_u32 v5, v0, 3, 2")
        a("s_lshl_b32 s33, s32, 1")
        a("v_xor_b32 v5, s33, v5")
        a(f"v_lshl_add_u32 v{VWB}, v5, 5, v4")
        a(f"v_xor_b32 v{VWB+1}, 32, v{VWB}")
        a(f"v_add_u32 v{VWA}, {WS}, v{VWB}")
        a(f"v_add_u32 v{VWA+1}, {WS}, v{VWB+1}")
        a("v_lshlrev_b32 v4, 4, v2")
        a(f"v_lshl_add_u32 v{VST}, v3, 9, v4")
        for i in range(96): a(f"v_mov_b32 v{ACC+i}, 0")
        a("s_lshl_b32 s40, s22, 22")
        a("s_lshl_b32 s41, s25, 1")
        a("s_add_u32 s41, s41, s32")
        a("s_lshl_b32 s41, s41, 17")
        a("s_add_u32 s40, s40, s41")
        a("s_lshl_b32 s41, s24, 14")
        a("s_add_u32 s40, s40, s41")
        a("s_lshl_b32 s41, s31, 12")
        a("s_add_u32 s40, s40, s41")
        a(f"s_add_u32 s41, s40, {KF}")
        a(f"s_add_u32 s42, s40, {VF}")
        a(f"s_mov_b32 s43, {QSCALE:#x}")
        a("s_lshl_b32 s95, s25, 3")
        a("s_add_u32 s95, s95, s24")
        a("s_lshl_b32 s94, s95, 2")
        a("s_add_u32 s94, s94, s31")
        a("s_add_u32 s94, s94, 1408")
        a("s_add_u32 s95, s95, 1280")
        a("s_cmp_eq_u32 s22, 0")
        a("s_cselect_b32 s95, s95, s94")
        a(f"s_lshl_b32 s95, s95, {FSH}")
        a(f"s_add_u32 s95, s95, {FL}")
        srd(a, 80, 96, 256)
        a("s_mov_b32 s33, 0")
        a(f"s_mov_b32 s34, {WS}")
        a("s_mov_b32 s35, 0")

    wupd = [f"s_add_u32 s34, s34, {WSL}", f"s_cmp_eq_u32 s34, {WS+5*WSL}", f"s_cselect_b32 s34, {WS}, s34",
            f"v_add_u32 v{VWA}, s34, v{VWB}", f"v_add_u32 v{VWA+1}, s34, v{VWB+1}", "s_add_u32 s35, s35, 1"]
    xupd = [f"s_add_u32 s33, s33, {XS}", f"s_cmp_eq_u32 s33, {3*XS}", "s_cselect_b32 s33, 0, s33",
            f"v_add_u32 v{VXA}, s33, v{VXB}", f"v_add_u32 v{VXA+1}, s33, v{VXB+1}"]

    def mix(dma, other):
        out = []; o = list(other)
        for m, l in dma:
            out.append(m)
            out.append(o.pop(0) if o else "s_nop 0")
            out.append(l)
        return out + o

    def event(tag):
        a.lab(tag)
        if OPT["cpf"] == "1":
            a("s_cmp_ge_u32 s51, 0x100")
            a(f"s_cbranch_scc1 {tag}c")
        a("s_add_u32 s48, s54, s51")
        a("s_and_b32 s48, s48, 15")
        a("s_mul_i32 s48, s48, s52")
        a("s_add_u32 s48, s48, s50")
        a(f"buffer_load_dword v{VPD}, v{VPW}, s[84:87], s48 offen")
        a(f"s_add_u32 s51, s51, {PST}")
        a("s_lshl_b32 s49, s51, 1")
        a("s_max_u32 s49, s49, s39")
        a("s_sub_u32 s49, s49, s39")
        a(f"s_cmp_lt_u32 s51, {OPT['pfe']}")
        a(f"s_cbranch_scc1 {tag}r")
        a("s_mov_b32 s49, 0x7fff")
        if OPT["cpf"] == "1":
            a("s_cmp_eq_u32 s31, 3")
            a(f"s_cselect_b32 s49, {OPT['cpb']}, s49")
            a("s_mov_b32 s51, 0x100")
        a(f"s_branch {tag}r")
        if OPT["cpf"] == "1":
            a.lab(tag + "c")
            a("s_mov_b32 s49, 0x7fff")
            codepf(a, "L1_epi", "L1_epi+8192", 31)
            codepf(a, "L1_epi+8192", "L1_epi+16384", 9)
            codepf(a, "L1_epi+16384", "L2_slow0", 8)
            a(f"s_branch {tag}r")

    a("s_cmp_lg_u32 s32, 0")
    a("s_cbranch_scc1 L1_W")
    for cls in ("X", "W"):
        P = "L1" + cls
        if cls == "X":
            a("v_lshlrev_b32 v5, 11, v2")
            a("v_xor_b32 v6, v3, v4")
            a("v_lshl_add_u32 v6, v6, 4, v5")
            a("v_xor_b32 v7, 64, v6")
            a(f"v_mov_b32 v{VD}, v6")
            a(f"v_add_u32 v{VD+1}, 16384, v7")
            a(f"v_add_u32 v{VD+2}, 32768, v6")
            a(f"v_add_u32 v{VD+3}, 49152, v7")
            a("s_lshl_b32 s27, s24, 19")
            a("s_lshl_b32 s28, s31, 16")
            a("s_add_u32 s45, s27, s28")
            a("s_lshl_b32 s46, s44, 7")
            a("s_add_u32 s27, s45, s46")
            a("s_add_u32 s28, s27, 0x40000")
            a("s_lshl_b32 s29, s31, 12")
            a(f"s_add_u32 s30, s29, {6*16384}")
            a("s_waitcnt lgkmcnt(0)")
            if OPT["s2e"] == "1": stamp(a, 2)
            srd(a, 8, 4, 4 << 20)
            def grp(par):
                so = "s27" if par == 0 else "s28"
                d = [(f"s_add_u32 m0, s29, {j*1024}", f"buffer_load_dwordx4 v{VD+j}, s[8:11], {so} offen lds") for j in range(4)]
                post = ["s_add_u32 s29, s29, 16384"]
                if par == 0: post += ["s_add_u32 s46, s46, 128", "s_and_b32 s46, s46, 0x7ff", "s_add_u32 s27, s45, s46"]
                if par == 1: post += ["s_add_u32 s28, s27, 0x40000", "s_cmp_eq_u32 s29, s30", f"s_cselect_b32 s38, {6*16384}, 0", "s_sub_u32 s29, s29, s38"]
                return d, post
            NG = 4
        else:
            a.lab("L1_W")
            if OPT["cpf"] == "1":
                a("s_cmp_lg_u32 s26, 7")
                a("s_cbranch_scc1 L1_nocp")
                codepf(a, N, "L1_epi", VPD)
                a.lab("L1_nocp")
            a("v_mul_u32_u24 v5, 6144, v2")
            a("v_and_b32 v6, 1, v4")
            a("v_lshlrev_b32 v6, 1, v6")
            a("s_and_b32 s33, s26, 1")
            a("s_lshl_b32 s33, s33, 2")
            a("v_xor_b32 v6, v3, v6")
            a("v_xor_b32 v6, s33, v6")
            a(f"v_lshl_add_u32 v{VD}, v6, 4, v5")
            a(f"v_add_u32 v{VD+1}, 2048, v{VD}")
            a(f"v_add_u32 v{VD+2}, 4096, v{VD}")
            a("s_lshl_b32 s27, s25, 7")
            a(f"s_mul_i32 s28, s31, {8*6144}")
            a("s_add_u32 s27, s27, s28")
            a(f"s_mul_i32 s28, s44, {64*6144}")
            a("s_add_u32 s27, s27, s28")
            a("s_lshl_b32 s29, s31, 10")
            a(f"s_add_u32 s29, s29, {WS}")
            a(f"s_add_u32 s30, s29, {5*WSL}")
            a("s_waitcnt lgkmcnt(0)")
            if OPT["s2e"] == "1": stamp(a, 2)
            srd(a, 12, 6, 6 << 20)
            def pfsetup():
                a("s_and_b32 s47, s21, 7")
                a("s_bfe_u32 s51, s21, 0x10003")
                a(f"s_add_u32 s51, s51, {OPT['pf0']}")
                a("v_lshlrev_b32 v5, 11, v0")
                a("v_lshrrev_b32 v6, 2, v0")
                a("v_mul_u32_u24 v6, 6144, v6")
                a("v_and_b32 v7, 3, v0")
                a("v_lshl_add_u32 v6, v7, 7, v6")
                a("v_mul_u32_u24 v7, 6144, v0")
                a("s_cmp_lt_u32 s47, 4")
                a("s_cselect_b64 s[56:57], -1, 0")
                a("s_cselect_b32 s84, s88, s90")
                a("s_cselect_b32 s85, s89, s91")
                a(f"s_mov_b32 s86, {6<<20:#x}")
                a(f"s_cselect_b32 s86, {4<<20:#x}, s86")
                a("s_mov_b32 s87, 0x00020000")
                a(f"s_mov_b32 s52, {64*6144}")
                a("s_cselect_b32 s52, 128, s52")
                a(f"v_cndmask_b32 v{VPW}, v6, v5, s[56:57]")
                a("s_and_b32 s48, s20, 1")
                a("s_lshl_b32 s48, s48, 2")
                a("s_add_u32 s48, s48, s47")
                a("s_lshl_b32 s48, s48, 2")
                a("s_add_u32 s48, s48, s31")
                a("s_lshl_b32 s48, s48, 17")
                a("s_lshr_b32 s50, s20, 1")
                a("s_lshl_b32 s50, s50, 9")
                a("s_and_b32 s55, s47, 3")
                a("s_lshl_b32 s55, s55, 11")
                a("s_add_u32 s50, s50, s55")
                a(f"s_mul_i32 s55, s31, {16*6144}")
                a("s_add_u32 s50, s50, s55")
                a("s_cmp_lt_u32 s47, 4")
                a("s_cselect_b32 s50, s48, s50")
                a("s_and_b32 s48, s53, 2")
                a("s_lshl_b32 s48, s48, 9")
                a("s_lshl_b32 s55, s31, 11")
                a("s_add_u32 s48, s48, s55")
                a("s_add_u32 s48, s48, 384")
                a("s_bitcmp1_b32 s53, 0")
                a("s_cselect_b32 s90, s90, s6")
                a("s_cselect_b32 s91, s91, s7")
                a("s_cmp_eq_u32 s47, 7")
                a("s_cselect_b64 s[56:57], -1, 0")
                a("s_cselect_b32 s50, s48, s50")
                a("s_cselect_b32 s84, s90, s84")
                a("s_cselect_b32 s85, s91, s85")
                a("s_cselect_b32 s55, 3, 0")
                a(f"s_cselect_b32 s39, {4+DLT+int(OPT['xl'])}, {4+DLT}")
                a(f"v_cndmask_b32 v{VPW}, v{VPW}, v7, s[56:57]")
                a("s_and_b32 s48, s55, s31")
                a("s_cmp_eq_u32 s48, 3")
                a("s_cselect_b32 s86, 0, s86")
                if OPT["pfm"] != "255":
                    a(f"s_lshr_b32 s48, {OPT['pfm']}, s47")
                    a("s_and_b32 s48, s48, 1")
                    a("s_cselect_b32 s86, s86, 0")
                a("s_lshl_b32 s49, s51, 1")
                a("s_max_u32 s49, s49, s39")
                a("s_sub_u32 s49, s49, s39")
                a("s_cmp_eq_u32 s22, 0")
                a("s_cselect_b32 s49, 0x7fff, s49")
            def grp(par):
                d = [(f"s_add_u32 m0, s29, {g*4096}", f"buffer_load_dwordx4 v{VD+g}, s[12:15], s27 offen lds") for g in range(3)]
                post = [f"s_add_u32 s27, s27, {32*6144}", f"s_add_u32 s29, s29, {WSL}",
                        "s_cmp_eq_u32 s29, s30", f"s_cselect_b32 s38, {5*WSL}, 0", "s_sub_u32 s29, s29, s38"]
                if par == 1: post += [f"s_cmp_ge_u32 s27, {6<<20:#x}", f"s_cselect_b32 s38, {6<<20:#x}, 0", "s_sub_u32 s27, s27, s38"]
                return d, post
            NG = 3
        def emit_grp(par):
            d, post = grp(par)
            for t in mix(d, []) + post: a(t)
        first = 2 if cls == "X" else 1
        for n in range(first): emit_grp(n & 1)
        common_setup()
        if cls == "W" and PF: pfsetup()
        if cls == "X":
            a(f"v_lshlrev_b32 v8, {FSH}, v0")
            a("v_mov_b32 v9, 0")
            a(f"s_lshl_b32 s47, s2, {3+FSH}")
            a(f"s_add_u32 s47, s47, {FL}")
            a("s_cmp_eq_u32 s31, 0")
            a("s_cselect_b64 exec, 0xff, 0")
            a("s_cbranch_execz L1_nofl")
            a("buffer_store_dword v9, v8, s[16:19], s47 offen sc1")
            a.lab("L1_nofl")
            a("s_mov_b64 exec, -1")
        for n in range(first, 4): emit_grp(n & 1)
        npf = 0
        if cls == "W" and PF:
            a("s_cmp_eq_u32 s49, 0")
            a(f"s_cbranch_scc1 {P}_e0")
            a.lab(f"{P}_e0r")
        a(f"s_waitcnt vmcnt({(4-first)*NG + npf})")
        a("s_barrier")
        if cls == "X":
            a("v_mov_b32 v8, 1")
            a("s_cmp_eq_u32 s31, 0")
            a("s_cselect_b64 exec, 1, 0")
            a("s_cbranch_execz L1_noat")
            a("buffer_atomic_add v8, v9, s[80:83], 0 offen sc1")
            a.lab("L1_noat")
            a("s_mov_b64 exec, -1")
        d, post = grp(0)
        for t in reads(0, 0) + mix(d, []) + post + wupd: a(t)
        if cls == "W": a(f"s_waitcnt vmcnt({3*NG + npf})")
        a("s_waitcnt lgkmcnt(0)")
        a("s_barrier")
        if cls == "W" and OPT["wp"] == "1": a("s_setprio 1")
        a(f"s_branch {P}_odd")
        a.raw(".p2align 6")
        a.lab(f"{P}_loop")
        for par in range(2):
            if par == 1: a.lab(f"{P}_odd")
            d, post = grp(par)
            rd = reads(par, par)
            tail = list(post) + wupd
            if par == 1:
                tail += xupd
            X = OPT["k1x"]
            if "d" in X: d = []
            if "r" in X: rd = []
            fill = rd[:8] + mix(d, rd[8:]) + tail
            if "o" not in X:
                late = [t for t in tail if t not in post]
                late = [t for t in late if not t.startswith("v_")] + [t for t in late if t.startswith("v_")]
                seq = sched(mm(1-par), rd, d, list(post), late, late_dma=("l" in X))
            elif "1" in X: seq = place(mm(1-par), fill, 2, 2)
            elif "3" in X: seq = place(mm(1-par), fill, 3, 0)
            elif "f" in X: seq = rd[:4] + place(mm(1-par), fill[4:], 2, 0)
            else: seq = place(mm(1-par), fill, 2, 0)
            if "p" in X: seq = ["s_setprio 1"] + seq[:len(seq)-8] + ["s_setprio 0"] + seq[len(seq)-8:]
            if "P" in X and cls == "W": seq = ["s_setprio 1"] + seq
            for t in seq: a(t)
            if cls == "W" and PF:
                a("s_cmp_ge_u32 s35, s49")
                a(f"s_cbranch_scc1 {P}_e{par+1}")
                a.lab(f"{P}_e{par+1}r")
            if par == 1: a("s_cmp_lt_u32 s35, 28")
            if cls == "W": a(f"s_waitcnt vmcnt({3*NG}) lgkmcnt(0)")
            elif par == 1: a(f"s_waitcnt vmcnt({2*NG}) lgkmcnt(0)")
            else: a("s_waitcnt lgkmcnt(0)")
            if "b" not in X and not ("h" in X and par == 0): a("s_barrier")
        if OPT["trip"] == "1":
            a("s_cselect_b32 s62, 1, 0")
            a("s_cmp_lg_u32 s35, 4")
            a(f"s_cbranch_scc1 {P}_t1")
            stamp(a, 2)
            a.lab(f"{P}_t1")
            a("s_cmp_lg_u32 s62, 0")
        a(f"s_cbranch_scc1 {P}_loop")
        a("s_branch L1_epi")
        if cls == "W" and PF:
            for k in range(3): event(f"{P}_e{k}")
    a.lab("L1_epi")
    a("v_mov_b32 v9, 0")
    a("s_mov_b32 s44, s43")
    a("s_mov_b32 s45, s43")
    a(f"v_add_u32 v{VWA}, {WS}, v{VWB}")
    a(f"v_add_u32 v{VWA+1}, {WS}, v{VWB+1}")
    a("s_and_b32 s33, s22, s32")
    a(f"s_cselect_b32 s18, 0, s18")
    XF = lambda sl, mt: (32 if sl < 2 else 72 - 32) + 16*sl + 4*mt
    WBUF = [64, 240, 248, 104]
    def tx(sl): return [f"ds_read_b128 {vr(XF(sl, mt))}, v{(VXA if sl < 2 else VXB) + (sl & 1)} offset:{mt*2048}" for mt in range(4)]
    def tw(gi):
        seg, sl = G[gi]; b = WBUF[gi % 4]; o = ((28 + sl) % 5)*WSL + seg*4096
        return [f"ds_read_b64_tr_b16 {vr(b+4*u+2*i,2)}, v{VWA+u} offset:{o+512*i}" for u in range(2) for i in range(2)]
    def tm(gi):
        seg, sl = G[gi]; b = WBUF[gi % 4]; r = []
        for u in range(2):
            for mt in range(4):
                if seg < 2: r.append(mfma16(acc(mt, 2*seg+u), b+4*u, XF(sl, mt)))
                else:       r.append(mfma16(acc(mt, 2*seg+u), XF(sl, mt), b+4*u))
        return r
    G = [(0, 0), (1, 0), (0, 1), (0, 2), (0, 3), (1, 1), (1, 2), (1, 3), (2, 0), (2, 1), (2, 2), (2, 3)]
    jobs = []
    for T in range(2):
        for sg in range(2): jobs.append((1, acc(2*T+sg, 2), acc(2*T+sg, 3), T*2048 + sg*256))
    for T in range(2):
        for sg in range(2): jobs.append((0, acc(2*T+sg, 0), acc(2*T+sg, 1), T*2048 + sg*256))
    for T in range(2):
        for u in range(2):  jobs.append((2, acc(2*T, 4+u), acc(2*T+1, 4+u), T*2048 + u*256))
    def conv(n):
        seg, b0, b1, off = jobs[n]; t0 = PK1 + 4*n; r = []
        if seg == 0: r += [f"v_pk_mul_f32 v[{b+q}:{b+q+1}], v[{b+q}:{b+q+1}], s[44:45]" for b in (b0, b1) for q in (0, 2)]
        r += [f"v_cvt_pk_bf16_f32 v{t0}, v{b0}, v{b0+1}", f"v_cvt_pk_bf16_f32 v{t0+1}, v{b0+2}, v{b0+3}",
              f"v_cvt_pk_bf16_f32 v{t0+2}, v{b1}, v{b1+1}", f"v_cvt_pk_bf16_f32 v{t0+3}, v{b1+2}, v{b1+3}",
              f"buffer_store_dwordx4 {vr(t0)}, v{VST}, s[16:19], s{40+seg} offen offset:{off} sc1"]
        return r
    lds = []
    def emit(M, rd, tags, other, skip=0):
        o = list(other)
        for i, m_ in enumerate(M):
            a(m_)
            n_ = 2
            if i < len(rd):
                a(rd[i]); lds.append(tags[i]); n_ = 1
            if i >= skip:
                for _ in range(n_):
                    if o and not (i < len(rd) and o[0].startswith("buffer")): a(o.pop(0))
        return o
    def need(tags):
        last = max(i for i, x in enumerate(lds) if x in tags)
        a(f"s_waitcnt lgkmcnt({min(15, len(lds) - 1 - last)})")
    emit(mm(1), tx(0) + tw(0) + tw(1) + tx(1), ["x0"]*4 + ["w0"]*4 + ["w1"]*4 + ["x1"]*4, [])
    a("s_waitcnt vmcnt(6)")
    a("s_barrier")
    need(["x0", "w0"])
    emit(tm(0), tw(2), ["w2"]*4, [])
    a("s_waitcnt vmcnt(0)")
    a("s_barrier")
    a("s_cmp_lg_u32 s26, 5")
    a("s_cbranch_scc1 L1_noc")
    a("buffer_load_dword v8, v9, s[80:83], 0 offen sc1")
    a.lab("L1_noc")
    need(["w1"])
    emit(tm(1), tx(2) + tw(3), ["x2"]*4 + ["w3"]*4, [])
    need(["w2", "x1"])
    emit(tm(2), tx(3) + tw(4), ["x3"]*4 + ["w4"]*4, [])
    pend = []
    for gi in range(3, 12):
        need([f"w{gi}", f"x{G[gi][1]}"])
        had = len(pend) >= 6
        if gi == 5: pend += [t for n in range(4, 8) for t in conv(n)]
        if gi == 8: pend += [t for n in range(4) for t in conv(n)]
        rd = tw(gi + 2) if gi + 2 < 12 else []
        pend = emit(tm(gi), rd, [f"w{gi+2}"]*4, pend, skip=(3 if gi == 5 else (3 if gi == 8 and not had else 0)))
    if OPT["pst"] == "0": stamp(a, 2)
    for t in pend: a(t)
    a("s_nop 1")
    a("s_cmp_lg_u32 s22, 0")
    a("s_cselect_b32 s18, 0, s18")
    for n in (8, 10, 9, 11):
        for t in conv(n): a(t)
    a.lab("L1_done")
    a("s_setprio 0")
    a(f"v_mov_b32 v200, v{VST}")
    a("s_mov_b32 s92, s40")
    a("s_mov_b32 s93, s41")
    a("s_mov_b32 s94, s42")
    a("s_mov_b32 s24, s26")
    return [(seg, off) for seg, _, _, off in jobs]

def kperm(rho):
    return ((rho >> 2) & 1) * 16 + (rho >> 3) * 4 + (rho & 3)

SLOTS = [131072, 0, 65536, 32768, 98304]

def k2(a, jobs):
    N = NAME + "_kernel"
    VL16, VKA, VVA, VIDX, VM, VT, VKL = 1, 2, 3, 4, 5, 6, 7
    ONES = 8; Q = [12, 20]; NEG = [28, 44]; O = [60, 76]; L = [92, 96]; KB = [100, 108]; VB = [116, 124]; S = [132, 148, 164, 180]
    NV = 256
    PF = OPT["pf3"] == "1"
    def sm32(d, av, b): return f"v_smfmac_f32_32x32x32_bf16 {vr(d,16)}, {vr(av)}, {vr(b,8)}, v{VIDX}"
    def sm16(l, b): return f"v_smfmac_f32_16x16x64_bf16 {vr(l)}, {vr(ONES)}, {vr(b,8)}, v{VIDX}"
    def ld(d, soff, off=0, v=VL16): a(f"buffer_load_dwordx4 {vr(d)}, v{v}, s[8:11], {soff} offen offset:{off} sc1")
    def xhalf_max():
        a(f"v_max_f32 v{VM}, v{VM}, v{VT}")
        a("s_nop 0")
        a(f"v_mov_b32 v{VT}, v{VM}")
        a("s_nop 1")
        a(f"v_permlane32_swap_b32 v{VM}, v{VT}")
        a("s_nop 1")
        a(f"v_max_f32 v{VM}, v{VM}, v{VT}")
    def maxof(vals):
        a(f"v_max3_f32 v{VM}, v{vals[0]}, v{vals[1]}, v{vals[2]}")
        a(f"v_max3_f32 v{VT}, v{vals[3]}, v{vals[4]}, v{vals[5]}")
        for i in range(6, len(vals) - 2, 4):
            a(f"v_max3_f32 v{VM}, v{VM}, v{vals[i]}, v{vals[i+1]}")
            a(f"v_max3_f32 v{VT}, v{VT}, v{vals[i+2]}, v{vals[i+3]}")
        a(f"v_max3_f32 v{VM}, v{VM}, v{vals[-2]}, v{vals[-1]}")
        xhalf_max()
    def finish(soff, off, T, o, l):
        a(f"v_rcp_f32 v{VT}, v{l}")
        a("s_nop 0")
        for i in range(16): a(f"v_mul_f32 v{o+i}, v{o+i}, v{VT}")
        for i in range(8): a(f"v_cvt_pk_bf16_f32 v{T+i}, v{o+2*i}, v{o+2*i+1}")
        a(f"buffer_store_dwordx4 {vr(T)}, v{VL16}, s[8:11], {soff} offen{OPT['st2']}")
        a(f"buffer_store_dwordx4 {vr(T+4)}, v{VL16}, s[8:11], {soff} offen offset:1024{OPT['st2']}")
    def consts():
        a(f"v_mov_b32 v{VIDX}, 0xdddddddd")
        a("v_bfe_u32 v5, v0, 2, 1")
        a("v_cmp_eq_u32 vcc, 0, v5")
        a("v_mov_b32 v6, 0x3f803f80")
        a("s_nop 0")
        a(f"v_cndmask_b32 v{ONES}, 0, v6, vcc")
        a(f"v_cndmask_b32 v{ONES+1}, 0, v6, vcc")
        a(f"v_cndmask_b32 v{ONES+2}, v6, 0, vcc")
        a(f"v_cndmask_b32 v{ONES+3}, v6, 0, vcc")
    a("s_lshr_b32 s60, s21, 4")
    a("s_mul_i32 s22, s60, 24")
    a("s_add_u32 s22, s22, 16")
    a("s_load_dwordx2 s[6:7], s[0:1], s22")
    a("s_load_dwordx2 s[58:59], s[0:1], 48")
    a("s_lshl_b32 s22, s20, 2")
    a("s_lshr_b32 s23, s21, 3")
    a("s_add_u32 s22, s22, s23")
    a("s_and_b32 s23, s21, 7")
    a(f"v_lshlrev_b32 v{VL16}, 4, v0")
    a("s_and_b32 s28, s24, 3")
    a("s_lshl_b32 s25, s23, 3")
    a("s_lshl_b32 s29, s28, 1")
    a("s_add_u32 s25, s25, s29")
    a("s_lshl_b32 s26, s22, 17")
    a("s_lshl_b32 s27, s25, 11")
    a("s_add_u32 s27, s27, s26")
    a("v_bfe_u32 v5, v0, 2, 1")
    a("v_and_b32 v6, 0x23, v0")
    a("v_lshl_or_b32 v6, v5, 4, v6")
    a("v_bfe_u32 v5, v0, 3, 2")
    a("v_lshl_or_b32 v6, v5, 2, v6")
    a(f"v_lshlrev_b32 v{VKL}, 4, v6")
    a(f"s_add_u32 s33, s26, {KF}")
    a("s_lshl_b32 s37, s25, 16")
    a("s_lshl_b32 s38, s22, 11")
    a("s_add_u32 s37, s37, s38")
    a(f"s_add_u32 s37, s37, {OF}")
    a("s_lshr_b32 s61, s20, 1")
    a("s_lshl_b32 s61, s61, 2")
    a("s_and_b32 s62, s21, 3")
    a("s_add_u32 s61, s61, s62")
    a("s_and_b32 s62, s20, 1")
    a("s_lshl_b32 s62, s62, 2")
    a("s_bfe_u32 s63, s21, 0x20002")
    a("s_add_u32 s62, s62, s63")
    a("s_lshl_b32 s63, s23, 5")
    a("s_add_u32 s63, s63, s22")
    a(f"s_lshl_b32 s63, s63, {FSH}")
    a(f"s_add_u32 s63, s63, {FL}")
    a("s_cmp_ge_u32 s24, 4")
    a("s_cbranch_scc1 L2_help")
    srd(a, 8, 98, WS_BYTES)
    consts()
    a("s_add_u32 s38, s37, 0x10000")
    a(f"v_mov_b32 v{VKA}, v{VKL}")
    a(f"v_add_u32 v{VVA}, 0x10000, v{VL16}")
    for i in range(40): a(f"v_mov_b32 v{O[0]+i}, 0")
    for i in range(16): a(f"v_mov_b32 v{S[3]+i}, 0")
    for i in range(8): a(f"v_mov_b32 v{VB[1]+i}, 0")
    a("s_mov_b32 s39, 0")
    a("s_mov_b32 s40, 0")
    a("s_waitcnt lgkmcnt(0)")
    if OPT["df"] == "1":
        a("s_cmp_lg_u32 s60, 0")
        a("s_cbranch_scc1 L2_x1")
    a("s_waitcnt vmcnt(0)")
    a.lab("L2_x1")
    a("s_barrier")
    if OPT["pst"] == "0": stamp(a, 3)
    a("s_barrier")
    if OPT["pst"] == "0": stamp(a, 4)
    if OPT["pst"] == "3": stamp(a, 5)
    ld(Q[0], "s27"); ld(KB[0], "s33", 0, VKL); ld(Q[0]+4, "s27", 1024); ld(KB[0]+4, "s33", 1024, VKL)
    ld(Q[1], "s27", 2048); ld(Q[1]+4, "s27", 3072)
    ld(KB[1], "s33", 2048, VKL); ld(KB[1]+4, "s33", 3072, VKL)
    a("s_waitcnt vmcnt(4)")
    a(mfma(S[0], KB[0], Q[0], "0")); a(mfma(S[0], KB[0]+4, Q[0]+4))
    a("s_waitcnt vmcnt(2)")
    if OPT["pst"] == "3": stamp(a, 2)
    a(mfma(S[1], KB[0], Q[1], "0")); a(mfma(S[1], KB[0]+4, Q[1]+4))
    a("s_nop 8")
    maxof([S[0]+r for r in range(16)])
    for i in range(16): a(f"v_sub_f32 v{NEG[0]+i}, 0, v{VM}")
    for i in range(16): a(f"v_sub_f32 v{S[0]+i}, v{S[0]+i}, v{VM}")
    maxof([S[1]+r for r in range(16)])
    for i in range(16): a(f"v_sub_f32 v{NEG[1]+i}, 0, v{VM}")
    a("s_waitcnt vmcnt(0)")
    if OPT["pst"] == "3": stamp(a, 3)
    a("s_barrier")
    if OPT["pst"] == "3": stamp(a, 4)
    if OPT["pst"] == "0": stamp(a, 5)
    if OPT["pst"] == "2":
        stamp(a, 2); a("s_memtime s[72:73]")
    if OPT["tlb"] == "1": a(f"buffer_load_dword v196, v{VL16}, s[8:11], s37 offen")
    if OPT["cp"] != "0": a(f"s_setprio {OPT['cp']}")
    a("s_cmp_eq_u32 s60, 0")
    a("s_cbranch_scc1 L2_it3")
    for n in range(8, 12):
        a(f"buffer_store_dwordx4 {vr(PK1+4*n)}, v200, s[8:11], s94 offen offset:{jobs[n][1]} sc1")
    a("s_branch L2_it3")

    def item(p, qk=True, rd=True, pre=None, post=None):
        n = (p - 3) % 16
        i = n >> 1; qt = n & 1
        Sn, Sc, Sp = S[(n+1) % 4], S[n % 4], S[(n-1) % 4]
        qn = (n+1) & 1; kbu = KB[((n+1) >> 1) % 2]
        qp = (n-1) & 1; vbu = VB[((n-1) >> 1) % 2]
        if qt == 1:
            kt = (i + 2) % 8
            r = [f"ds_read_b128 {vr(KB[i % 2])}, v{VKA} offset:{kt*2048}", f"ds_read_b128 {vr(KB[i % 2]+4)}, v{VKA} offset:{kt*2048+1024}"]
        else:
            r = [f"ds_read_b128 {vr(VB[i % 2])}, v{VVA} offset:{i*2048}", f"ds_read_b128 {vr(VB[i % 2]+4)}, v{VVA} offset:{i*2048+1024}"]
        if not rd or "r" in OPT["k2x"]: r = []
        ex = [f"v_exp_f32 v{Sc+k}, v{Sc+k}" for k in range(16)]
        post = list(post or [])
        seq = []
        if qk: seq.append(mfma(Sn, kbu, Q[qn], NEG[qn]))
        seq += post[0:1] + ex[0:3]
        if qk: seq.append(mfma(Sn, kbu+4, Q[qn]+4))
        seq += ["s_waitcnt lgkmcnt(0)"] + list(pre or []) + ex[3:6]
        seq.append(sm32(O[qp], vbu, Sp))
        seq += r[:1] + ex[6:9]
        seq.append(sm16(L[qp], Sp))
        seq += post[1:3] + ex[9:10]
        seq.append(sm32(O[qp], vbu+4, Sp+8))
        seq += r[1:] + ex[10:13]
        seq.append(sm16(L[qp], Sp+8))
        seq += post[3:] + ex[13:16]
        for t in seq: a(t)

    a.raw(".p2align 6")
    a.lab("L2_loop")
    item(0, pre=["s_waitcnt vmcnt(0)", "s_barrier", f"v_add_u32 v{VKA}, s40, v{VKL}"])
    item(1); item(2)
    a(f"v_add_u32 v{VVA}, s41, v{VL16}")
    a.lab("L2_it3")
    for p in range(3, 15): item(p)
    item(15, post=["s_add_u32 s40, s40, 16384", "s_and_b32 s40, s40, 0xffff", "s_add_u32 s41, s40, 0x10000", "s_add_u32 s39, s39, 1", "s_cmp_lt_u32 s39, 8"])
    if OPT["trip"] != "0":
        a("s_cselect_b32 s57, 1, 0")
        for n, tr in zip((2, 3, 4), OPT["trip"].split(",")):
            a(f"s_cmp_lg_u32 s39, {int(tr)+1}")
            a(f"s_cbranch_scc1 L2_t{n}")
            stamp(a, n)
            a.lab(f"L2_t{n}")
        a("s_cmp_lg_u32 s57, 0")
    a("s_cbranch_scc1 L2_loop")
    item(0, rd=False)
    item(1)
    item(2, qk=False, rd=False)
    a("s_nop 1")
    Sp = S[3]
    a(sm32(O[1], VB[1], Sp)); a(sm16(L[1], Sp)); a(sm32(O[1], VB[1]+4, Sp+8)); a(sm16(L[1], Sp+8))
    a("s_nop 4")
    if OPT["pst"] == "1": stamp(a, 5)
    if OPT["pst"] == "2":
        stamp(a, 3); a("s_memtime s[74:75]")
    for qt in range(2):
        a(f"v_mul_f32 v{VM}, 0, v{O[qt]}")
        for i in range(1, 16): a(f"v_fma_f32 v{VM}, v{O[qt]+i}, 0, v{VM}")
        a(f"v_add_f32 v{VM}, v{VM}, v{L[qt]}")
        a(f"v_mov_b32 v{VT}, {f2u(2.0**64):#x}")
        a(f"v_cmp_nlt_f32 vcc, v{VM}, v{VT}")
        a("s_nop 4")
        a(f"s_cbranch_vccnz L2_slow{qt}")
        a.lab(f"L2_fin{qt}")
        finish("s37" if qt == 0 else "s38", 0, S[1+qt], O[qt], L[qt])
    VOB, VOA, VWB, VWA, VST = 10, 11, 12, 16, 20
    F = [24, 56]; ACC = 88
    def Of(f, mt): return F[f] + 4*mt
    def Wf(f, nb): return F[f] + 16 + 4*nb
    def acc(mt, nb): return ACC + (mt*4 + nb)*4
    a("s_and_b32 s31, s24, 1")
    a("s_lshr_b32 s32, s24, 1")
    a("v_and_b32 v2, 15, v0")
    a("v_lshrrev_b32 v3, 4, v0")
    a("s_lshl_b32 s33, s31, 13")
    a("v_lshlrev_b32 v4, 4, v2")
    a("v_lshl_add_u32 v4, v3, 9, v4")
    a(f"v_add_u32 v{VOB}, s33, v4")
    a(f"v_add_u32 v{VOA}, {SLOTS[0]}, v{VOB}")
    a("v_bfe_u32 v4, v0, 2, 3")
    a("v_lshrrev_b32 v5, 5, v0")
    a("v_lshl_add_u32 v5, v5, 4, v4")
    a("v_lshlrev_b32 v5, 8, v5")
    a("v_and_b32 v6, 3, v0")
    a("v_lshl_add_u32 v5, v6, 3, v5")
    a("v_add_u32 v5, 16384, v5")
    a("s_lshl_b32 s33, s32, 2")
    a("v_xor_b32 v4, s33, v4")
    a(f"v_lshl_add_u32 v{VWB}, v4, 5, v5")
    for nb in range(1, 4): a(f"v_xor_b32 v{VWB+nb}, {nb*32}, v{VWB}")
    for nb in range(4): a(f"v_add_u32 v{VWA+nb}, {SLOTS[0]}, v{VWB+nb}")
    for i in range(64): a(f"v_mov_b32 v{ACC+i}, 0")
    for i in range(5): a(f"s_mov_b32 s{44+i}, {SLOTS[(i+1) % 5]}")
    a("s_mov_b32 s35, 0")
    srd(a, 16, 58, 8 << 20)
    a("s_lshl_b32 s40, s61, 19")
    a("s_lshl_b32 s41, s31, 18")
    a("s_add_u32 s40, s40, s41")
    a("s_lshl_b32 s41, s60, 11")
    a("s_add_u32 s40, s40, s41")
    a("s_lshl_b32 s41, s62, 8")
    a("s_add_u32 s40, s40, s41")
    a("s_lshl_b32 s41, s32, 7")
    a("s_add_u32 s40, s40, s41")
    def rdO(f, ks, mt): return [f"ds_read_b128 {vr(Of(f,mt))}, v{VOA} offset:{(mt>>1)*4096 + ks*2048 + (mt&1)*256}"]
    def rdW(f, ks, nb): return [f"ds_read_b64_tr_b16 {vr(Wf(f,nb),2)}, v{VWA+nb} offset:{ks*8192}",
                                f"ds_read_b64_tr_b16 {vr(Wf(f,nb)+2,2)}, v{VWA+nb} offset:{ks*8192+2048}"]
    def reads(f, ks):
        return [rdO(f, ks, 0)] + [rdW(f, ks, nb) for nb in range(4)] + [rdO(f, ks, mt) for mt in (1, 2, 3)]
    def mm(f):
        return [mfma16(acc(mt, nb), Wf(f, nb), Of(f, mt)) for mt in range(4) for nb in range(4)]
    a("s_waitcnt vmcnt(0)")
    if OPT["pst"] == "1": stamp(a, 2)
    a("s_barrier")
    if OPT["opf"] != "0":
        a("s_lshl_b32 s36, s60, 22")
        a("s_lshl_b32 s39, s61, 18")
        a("s_add_u32 s36, s36, s39")
        a("s_lshl_b32 s39, s24, 16")
        a("s_add_u32 s36, s36, s39")
        a("s_and_b32 s39, s62, 3")
        a("s_lshl_b32 s39, s39, 14")
        a("s_add_u32 s36, s36, s39")
        a(f"s_add_u32 s36, s36, {OF}")
        a("s_add_u32 s39, s36, 8192")
        a("v_lshlrev_b32 v21, 7, v0")
    a("s_barrier")
    if OPT["opf"] != "0":
        if OPT["opf"] == "2": a("s_sleep 3")
        a("buffer_load_dword v22, v21, s[8:11], s36 offen sc1")
        a("buffer_load_dword v23, v21, s[8:11], s39 offen sc1")
    a("s_barrier")
    if OPT["pst"] == "1": stamp(a, 3)
    flat = lambda g: [t for x in g for t in x]
    def block(f, rd, extra):
        M = mm(f)
        a("s_waitcnt lgkmcnt(3)")
        for i, m_ in enumerate(M):
            if i in (4, 8, 12): a(f"s_waitcnt lgkmcnt({min(15, (2 - (i//4 - 1)) + min(i, len(rd)))})")
            a(m_)
            if i < len(rd): a(rd[i])
            for t in extra.get(i, []): a(t)
    for t in flat(reads(0, 0)): a(t)
    a("s_branch L3_mid")
    a.raw(".p2align 6")
    a.lab("L3_loop")
    block(1, flat(reads(0, 0)), {})
    a.lab("L3_mid")
    block(0, flat(reads(1, 1)), {0: (["s_barrier"] if OPT["la"] == "4" else []) + ["s_mov_b32 s33, s44"], 15: (["s_waitcnt lgkmcnt(0)", "s_barrier"] if OPT["la"] == "5" else []), 1: ["s_mov_b32 s44, s45", "s_mov_b32 s45, s46"],
                                 2: ["s_mov_b32 s46, s47", "s_mov_b32 s47, s48"], 3: ["s_mov_b32 s48, s33"],
                                 5: ["s_add_u32 s35, s35, 1", "s_cmp_lt_u32 s35, 16"],
                                 9: [f"v_add_u32 v{VWA}, s33, v{VWB}"], 10: [f"v_add_u32 v{VWA+1}, s33, v{VWB+1}"],
                                 11: [f"v_add_u32 v{VWA+2}, s33, v{VWB+2}"], 12: [f"v_add_u32 v{VWA+3}, s33, v{VWB+3}"], 13: [f"v_add_u32 v{VOA}, s33, v{VOB}"]})
    a("s_cbranch_scc1 L3_loop")
    block(1, [], {})
    if OPT["pst"] == "1": stamp(a, 4)
    a("s_mul_i32 s41, s24, 9216")
    a("v_mul_u32_u24 v4, 144, v2")
    a("v_lshl_add_u32 v4, v3, 3, v4")
    a("v_add_u32 v4, s41, v4")
    a("v_lshrrev_b32 v5, 3, v0")
    a("v_mul_u32_u24 v6, 144, v5")
    a("v_and_b32 v7, 7, v0")
    a("v_lshl_add_u32 v6, v7, 4, v6")
    a("v_add_u32 v6, s41, v6")
    a("v_lshlrev_b32 v5, 12, v5")
    a(f"v_lshl_add_u32 v{VST}, v7, 4, v5")
    for mt in range(4):
        for nb in range(4):
            b = acc(mt, nb); t0 = F[0] + 2*(mt*4 + nb)
            a(f"v_cvt_pk_bf16_f32 v{t0}, v{b}, v{b+1}")
            a(f"v_cvt_pk_bf16_f32 v{t0+1}, v{b+2}, v{b+3}")
            a(f"ds_write_b64 v4, {vr(t0,2)} offset:{mt*16*144 + nb*32}")
        a(f"ds_read_b128 {vr(F[1]+8*mt)}, v6 offset:{mt*16*144}")
        a(f"ds_read_b128 {vr(F[1]+8*mt+4)}, v6 offset:{mt*16*144 + 8*144}")
        if mt >= 1:
            a("s_waitcnt lgkmcnt(6)")
            for h in range(2):
                a(f"buffer_store_dwordx4 {vr(F[1]+8*(mt-1)+4*h)}, v{VST}, s[16:19], s40 offen{OPT['st3']}")
                a(f"s_add_u32 s40, s40, {8*4096}")
    a("s_waitcnt lgkmcnt(0)")
    for h in range(2):
        a(f"buffer_store_dwordx4 {vr(F[1]+24+4*h)}, v{VST}, s[16:19], s40 offen{OPT['st3']}")
        a(f"s_add_u32 s40, s40, {8*4096}")
    dump(a, 0, "s24")
    a.lab("L2_end")
    a("s_endpgm")

    a.lab("L2_help")
    issued = []
    MC, MP, MP0, SC, SP, OB, LB = 12, 28, 44, 60, 76, [92, 112], [108, 128]
    QB = [132, 140]; KX = [148, 156, 164]; VX = [172, 180, 188]; VPF = 2
    a("s_lshl_b32 s34, s28, 12")
    a("s_add_u32 s35, s33, s34")
    a(f"s_add_u32 s36, s35, {VF-KF}")
    srd(a, 8, 98, WS_BYTES)
    def dma_stage(st):
        for base, so in ((0, "s35"), (65536, "s36")):
            a(f"s_add_u32 m0, s34, {base + (st % 4)*16384}")
            a("s_nop 0")
            for j in range(4):
                a(f"buffer_load_dwordx4 v{VL16}, s[8:11], {so} offen offset:{j*1024} sc1 lds")
            a(f"s_add_u32 {so}, {so}, 16384")
        issued.extend([f"s{st}"]*8)
    def late1():
        consts()
        a(f"s_add_u32 s28, s27, {4<<20}")
        a(f"s_add_u32 s29, s28, {KF}")
        a(f"s_add_u32 s30, s28, {VF}")
        a("s_cmp_eq_u32 s25, 0")
        a("s_cselect_b32 s32, 0, 2048")
        a("s_cselect_b64 s[44:45], 0, -1")
        a("s_sub_u32 s31, s29, s32")
        a("s_sub_u32 s32, s30, s32")
        a(f"s_add_u32 s37, s37, {4<<20}")
        a("s_add_u32 s38, s37, 0x10000")
        if PF:
            a("v_lshrrev_b32 v5, 3, v0")
            a("v_lshlrev_b32 v5, 11, v5")
            a("v_and_b32 v6, 7, v0")
            a(f"v_lshl_add_u32 v{VPF}, v6, 7, v5")
            a("v_cmp_gt_u32 vcc, 32, v0")
            a("v_mov_b32 v5, 0x7fffff00")
            a("s_and_b32 s47, s21, 15")
            a("s_lshl_b32 s47, s47, 17")
            a(f"v_cndmask_b32 v{VPF}, v5, v{VPF}, vcc")
            a("s_lshl_b32 s46, s34, 3")
            a("s_add_u32 s47, s47, s46")
            a("s_and_b32 s46, s20, 1")
            a("s_lshl_b32 s46, s46, 10")
            a("s_add_u32 s47, s47, s46")
    def pf():
        if PF:
            a(f"buffer_load_dword v{VPF+1}, v{VPF}, s[16:19], s47 offen")
            a("s_add_u32 s47, s47, 8192")
    VWD0, VWD1, VFL, VFD = 196, 197, 198, 199
    def dma_w(st):
        sl = SLOTS[st % 5] + 16384
        a(f"s_add_u32 m0, s34, {sl}")
        a("s_nop 0")
        a(f"buffer_load_dwordx4 v{VWD0}, s[16:19], s40 offen lds")
        a("s_add_u32 m0, m0, 1024")
        a("s_nop 0")
        a(f"buffer_load_dwordx4 v{VWD1}, s[16:19], s40 offen lds")
        a("s_add_u32 m0, m0, 1024")
        a(f"s_add_u32 s40, s40, {64*2048}")
        a(f"buffer_load_dwordx4 v{VWD0}, s[16:19], s41 offen lds")
        a("s_add_u32 m0, m0, 1024")
        a("s_nop 0")
        a(f"buffer_load_dwordx4 v{VWD1}, s[16:19], s41 offen lds")
        a(f"s_add_u32 s41, s41, {64*2048}")
    def dma_o(st):
        a(f"s_add_u32 m0, s34, {SLOTS[st % 5]}")
        a("s_nop 0")
        for j in range(4):
            a(f"buffer_load_dwordx4 v{VL16}, s[8:11], s39 offen offset:{j*1024}{OPT['osc']} lds")
        a("s_add_u32 s39, s39, 4096")
    def poll(tag, voff, soff, srd_="s[8:11]", val=1, cmp_="ne"):
        a("s_mov_b32 s43, 0")
        a.lab(tag)
        a(f"buffer_load_dword v{VFD}, v{voff}, {srd_}, {soff} offen sc1")
        a("s_add_u32 s43, s43, 1")
        a("s_waitcnt vmcnt(0)")
        a(f"v_cmp_{cmp_}_u32 vcc, {val}, v{VFD}")
        a("s_cmp_gt_u32 s43, 0x200000")
        a(f"s_cbranch_scc1 {tag}x")
        a("s_nop 2")
        a(f"s_cbranch_vccz {tag}x")
        a(f"s_sleep {OPT['slp']}")
        a(f"s_branch {tag}")
        a.lab(tag + "x")
    def lanemask(r, prev):
        m = 0
        for l in range(64):
            q = l & 31; hh = l >> 5
            key = kperm(8*(r//4) + 4*hh + r % 4)
            d = q - key + (32 if prev else 0)
            if 0 <= d <= 14 and d % 2 == 0: m |= 1 << l
        return m
    def masks(prev):
        k = 0
        a(f"v_mov_b32 v{VT}, {NEGBIG:#x}")
        for i in range(20): a(f"v_mov_b32 v{OB[prev]+i}, 0")
        for r in range(16):
            m = lanemask(r, prev)
            sp = 48 + 2*(k % 4); k += 1
            a(f"s_mov_b32 s{sp}, {m & 0xffffffff:#x}")
            a(f"s_mov_b32 s{sp+1}, {m >> 32:#x}")
            a(f"v_cndmask_b32 v{(MP if prev else MC)+r}, v{VT}, 0, s[{sp}:{sp+1}]")
            if prev: a(f"v_cndmask_b32 v{MP0+r}, v{VT}, v{MP+r}, s[44:45]")
    def bcomp(t):
        keep = a.l; a.l = []
        kc, kp, vc, vp = KX[t+1], KX[t], VX[t+1], VX[t]
        ob, lb = OB[t], LB[t]
        a(mfma(SC, kc, QB[t], MC)); a(mfma(SP, kp, QB[t], MP0 if t == 0 else MP))
        a(mfma(SC, kc+4, QB[t]+4)); a(mfma(SP, kp+4, QB[t]+4))
        a("s_nop 10")
        vals = [SC+r for r in range(16)] + [SP+r for r in range(16)]
        maxof(vals)
        for v in vals: a(f"v_sub_f32 v{v}, v{v}, v{VM}")
        for v in vals: a(f"v_exp_f32 v{v}, v{v}")
        a("s_nop 1")
        a(sm32(ob, vc, SC)); a(sm16(lb, SC)); a(sm32(ob, vc+4, SC+8)); a(sm16(lb, SC+8))
        a(sm32(ob, vp, SP)); a(sm16(lb, SP)); a(sm16(lb, SP+8)); a(sm32(ob, vp+4, SP+8))
        a("s_nop 12")
        finish("s37" if t == 0 else "s38", 0, QB[t], ob, lb)
        out = a.l; a.l = keep
        return out
    work = [] if "B" in OPT["k2x"] else bcomp(0) + bcomp(1)
    def cost(t): return 2 if "v_exp" in t else (3 if "mfma" in t else 1)
    tot = sum(cost(t) for t in work)
    slots = [int(c) for c in OPT["bslots"]]
    chunks = {b: [] for b in range(8)}
    acc_ = 0
    for t in work:
        chunks[slots[min(len(slots) - 1, acc_ * len(slots) // tot)]].append(t)
        acc_ += cost(t)
    def psetup():
        a("v_lshrrev_b32 v5, 4, v0")
        a("v_and_b32 v199, 15, v0")
        a(f"v_lshlrev_b32 v{VWD0}, 1, v5")
        a(f"v_xor_b32 v199, v199, v{VWD0}")
        a("v_lshlrev_b32 v199, 4, v199")
        a(f"v_lshl_add_u32 v{VWD0}, v5, 11, v199")
        a(f"v_xor_b32 v{VWD1}, 128, v{VWD0}")
        a(f"v_add_u32 v{VWD1}, 8192, v{VWD1}")
        a(f"v_and_b32 v{VFL}, 31, v0")
        a(f"v_lshlrev_b32 v{VFL}, {FSH}, v{VFL}")
        a("s_lshl_b32 s39, s60, 22")
        a("s_lshl_b32 s40, s61, 18")
        a("s_add_u32 s39, s39, s40")
        a("s_lshl_b32 s40, s34, 4")
        a("s_add_u32 s39, s39, s40")
        a(f"s_add_u32 s39, s39, {OF}")
        a("s_lshl_b32 s40, s34, 3")
        a("s_lshl_b32 s41, s62, 8")
        a("s_add_u32 s40, s40, s41")
        a("s_add_u32 s41, s40, 16384")
        a("s_lshl_b32 s42, s61, 1")
        a("s_lshr_b32 s43, s34, 13")
        a("s_add_u32 s42, s42, s43")
        a("s_add_u32 s42, s42, 8")
        a("s_lshr_b32 s43, s61, 1")
        a("s_cmp_eq_u32 s60, 0")
        a("s_cselect_b32 s42, s43, s42")
        a(f"s_lshl_b32 s42, s42, {5+FSH}")
        a(f"s_add_u32 s42, s42, {FL}")
        a("s_lshl_b32 s89, s25, 4")
        a("s_add_u32 s89, s89, s22")
        a("s_add_u32 s89, s89, 256")
        a(f"s_lshl_b32 s89, s89, {FSH}")
        a(f"s_add_u32 s89, s89, {FL}")
    def publish(base, tag=None):
        if tag:
            a("s_cmp_lg_u32 s24, 4")
            a(f"s_cbranch_scc1 {tag}")
        a("s_mov_b64 exec, 1")
        a(f"buffer_store_dword v204, v203, s[8:11], {base} offen sc1")
        a("s_mov_b64 exec, -1")
        if tag: a.lab(tag)
        else: issued.append("f")
    def wait_for(tags):
        idx_ = [i for i, x in enumerate(issued) if x in tags]
        if idx_: a(f"s_waitcnt vmcnt({min(63, len(issued) - 1 - max(idx_))})")
    a("v_mov_b32 v203, 0")
    a("v_mov_b32 v204, 1")
    a("v_and_b32 v205, 7, v0")
    a(f"v_lshlrev_b32 v205, {FSH}, v205")
    a("s_lshr_b32 s84, s22, 1")
    a(f"s_lshl_b32 s84, s84, {3+FSH}")
    a(f"s_add_u32 s84, s84, {FL + (1280 << FSH)}")
    def late2():
        a("s_lshr_b32 s85, s22, 1")
        a("s_lshl_b32 s85, s85, 5")
        a("s_lshr_b32 s43, s25, 1")
        a("s_add_u32 s85, s85, s43")
        a("s_add_u32 s85, s85, 1407")
        a(f"s_lshl_b32 s85, s85, {FSH}")
        a(f"s_add_u32 s85, s85, {FL}")
        a("v_and_b32 v207, 1, v0")
        a("v_and_b32 v206, 1, s44")
        a("v_xor_b32 v206, 1, v206")
        a("v_or_b32 v207, v207, v206")
        a(f"v_lshlrev_b32 v207, {FSH}, v207")
    a("s_waitcnt vmcnt(0) lgkmcnt(0)")
    a("v_mov_b32 v202, v8")
    srd(a, 16, 6, 2 << 20)
    a("s_cmp_eq_u32 s60, 0")
    a("s_cbranch_scc1 L2_hA")
    BF = min(7, slots[-1] + 1)
    QS = [int(c) for c in OPT["qs"]]
    QP = int(OPT["qp"]); BL = int(OPT["bl"])
    PX = 132
    ADP = OPT["adp"] == "1"
    for typ in ("B", "A"):
        T_ = "L2" + typ
        issued[:] = []
        if typ == "A":
            a.lab("L2_hA")
            a("s_barrier")
            publish("s95", T_ + "_p1")
        else:
            if OPT["df"] == "2":
                for n in range(12): a(f"ds_read_b128 {vr(PX+4*n)}, v201 offset:{n*1024}")
            if OPT["df"] == "0": publish("s95")
        a("s_cmp_lg_u32 s24, 5")
        a(f"s_cbranch_scc1 {T_}_qx")
        a("v_cmp_gt_u32 vcc, 0x100, v202")
        a("s_nop 4")
        a(f"s_cbranch_vccz {T_}_cx")
        poll(T_ + "_c", 203, "0", "s[80:83]", "0x100", "gt")
        if OPT["xslp"] != "0": a(f"s_sleep {OPT['xslp']}")
        poll(T_ + "_q", 205, "s84")
        if typ == "B": a("s_barrier")
        if OPT["hp0"] == "1": a("s_setprio 3")
        a("s_barrier")
        dma_stage(0)
        if OPT["hp0"] == "1": a("s_setprio 0")
        a("s_waitcnt vmcnt(0)")
        a("s_barrier")
        dma_stage(1); dma_stage(2)
        qst = []
        if typ == "B":
            for n, (seg, off) in enumerate(jobs if OPT["df"] != "0" else []):
                qst.append(f"buffer_store_dwordx4 {vr(PK1+4*n)}, v200, s[8:11], s{92+seg} offen offset:{off} sc1")
            for n, (seg, off) in enumerate(jobs if OPT["df"] == "2" else []):
                qst.append(f"buffer_store_dwordx4 {vr(PX+4*n)}, v200, s[8:11], s{86+seg} offen offset:{off} sc1")
            for sg in range(3): a(f"s_sub_u32 s{86+sg}, s{92+sg}, 0x20000")
        ORD = [2*x + h for x in [int(c) for c in OPT["xord"]] for h in range(2)]
        def sw(st):
            if typ == "A" and ADP:
                a(f"s_add_u32 s40, s87, {ORD[st]*64*2048}")
                a("s_add_u32 s41, s40, 16384")
            dma_w(st)
        def so(st):
            t = ORD[st]; tag = f"{T_}_n{st}"
            a(f"s_andn2_b32 s88, {3 << (2*t):#x}, s90")
            a(f"s_cbranch_scc0 {tag}x")
            a("s_mov_b32 s43, 0")
            a.lab(tag)
            a(f"buffer_load_dword v{VFD}, v{VFL}, s[8:11], s42 offen sc1")
            a("s_add_u32 s43, s43, 1")
            a("s_waitcnt vmcnt(0)")
            a(f"v_cmp_eq_u32 vcc, 1, v{VFD}")
            a("s_cmp_gt_u32 s43, 0x200000")
            a(f"s_cbranch_scc1 {tag}x")
            a("s_nop 2")
            a("s_mov_b32 s90, vcc_lo")
            a(f"s_andn2_b32 s88, {3 << (2*t):#x}, s90")
            a(f"s_cbranch_scc0 {tag}x")
            a(f"s_sleep {OPT['slp']}")
            a(f"s_branch {tag}")
            a.lab(tag + "x")
            a(f"s_add_u32 s39, s86, {t*4096}")
            dma_o(st); issued.extend([f"o{st}"]*4)
        def qstores(b):
            k = [i for i, x in enumerate(QS) if x == b]
            per = -(-len(qst) // len(QS))
            for i in k:
                for t in qst[i*per:(i+1)*per]:
                    a(t); issued.append("q")
        qstores(0)
        late1(); late2(); masks(0)
        for b in range(1, 8):
            wait_for([f"s{b}"])
            a("s_barrier")
            if b <= 5: dma_stage(b + 2)
            qstores(b)
            if b == QP and typ == "B" and OPT["df"] != "0":
                wait_for(["q"]); publish("s95")
            if b == 1:
                masks(1); psetup()
            if b == BL:
                poll(T_ + "_b", 207, "s85"); issued[:] = []
                for t in range(2): ld(QB[t], "s28", t*2048); ld(QB[t]+4, "s28", t*2048+1024)
                ld(KX[0], "s31", 0, VKL); ld(KX[0]+4, "s31", 1024, VKL)
                for t in range(2): ld(KX[t+1], "s29", t*2048, VKL); ld(KX[t+1]+4, "s29", t*2048+1024, VKL)
                ld(VX[0], "s32"); ld(VX[0]+4, "s32", 1024)
                for t in range(2): ld(VX[t+1], "s30", t*2048); ld(VX[t+1]+4, "s30", t*2048+1024)
                issued.extend(["B"]*16)
            if b == slots[0]: wait_for(["B"])
            if b == BF:
                wait_for(["st"]); publish("s89")
            for c in OPT['pfs']:
                if int(c) == b and PF:
                    pf(); issued.append("p")
            if b == 5 and OPT["tlb"] == "1":
                srd(a, 12, 58, 8 << 20)
                a("v_lshlrev_b32 v206, 21, v0")
                a("buffer_load_dword v206, v206, s[12:15], 0 offen"); issued.append("p")
            if b >= 6:
                if b == 6:
                    if typ == "A" and ADP:
                        a("s_mov_b32 s86, s39")
                        a("s_mov_b32 s87, s40")
                    sw(0); issued.extend(["w0"]*4)
                sw(b - 5); issued.extend([f"w{b-5}"]*4)
            for t in chunks[b]:
                a.l.append(t)
                if "buffer_store" in t: issued.append("st")
        if typ == "B":
            a(f"s_sleep {OPT['bslp']}")
            poll(T_ + "_o", VFL, "s42"); issued[:] = []
            for st in range(3):
                dma_o(st); issued.extend([f"o{st}"]*4)
            a("s_barrier")
            publish("s63", T_ + "_p3")
            a("s_barrier")
            wait_for(["o0"])
            a("s_barrier")
            for st in (3, 4):
                dma_w(st); dma_o(st); issued.extend([f"w{st}"]*4 + [f"o{st}"]*4)
        elif not ADP:
            a("s_barrier")
            publish("s63", T_ + "_p3")
            dma_w(3); dma_w(4)
            a("s_cmp_lg_u32 s24, 5")
            a(f"s_cbranch_scc1 {T_}_ox")
            if OPT["aslp"] != "0": a(f"s_sleep {OPT['aslp']}")
            poll(T_ + "_o", VFL, "s42"); issued[:] = []
            a("s_barrier")
            for st in range(2):
                dma_o(st); issued.extend([f"o{st}"]*4)
            wait_for(["o0"])
            a("s_barrier")
            for st in range(2, 5):
                dma_o(st); issued.extend([f"o{st}"]*4)
        else:
            a("s_mov_b32 s90, 0")
            a("s_barrier")
            publish("s63", T_ + "_p3")
            a("s_barrier")
            so(0); so(1)
            wait_for(["o0"])
            a("s_barrier")
            so(2)
            for st in (3, 4):
                sw(st); issued.extend([f"w{st}"]*4); so(st)
        for t in range(15):
            wait_for([f"o{t+1}", f"w{t+1}"])
            a("s_barrier")
            if t + 5 < 16:
                if typ == "A" and ADP:
                    sw(t + 5); issued.extend([f"w{t+5}"]*4); so(t + 5)
                else:
                    dma_w(t + 5); dma_o(t + 5); issued.extend([f"w{t+5}"]*4 + [f"o{t+5}"]*4)
        for n in (2, 3, 4, 5): stamp(a, n)
        dump(a, 0, "s24")
        a("s_endpgm")

    s0 = S[0]
    for qt in range(2):
        a.lab(f"L2_slow{qt}")
        a(f"s_add_u32 s36, s26, {VF}")
        a(f"v_mov_b32 v{VM}, 0xff800000")
        a("s_mov_b32 s39, 0")
        a.lab(f"L2_s1{qt}")
        a("s_add_u32 s41, s33, s39")
        ld(KB[0], "s41", 0, VKL); ld(KB[0]+4, "s41", 1024, VKL)
        a("s_waitcnt vmcnt(0)")
        a(mfma(s0, KB[0], Q[qt], "0")); a(mfma(s0, KB[0]+4, Q[qt]+4))
        a("s_nop 15")
        for i in range(0, 16, 2): a(f"v_max3_f32 v{VM}, v{VM}, v{s0+i}, v{s0+i+1}")
        a("s_add_u32 s39, s39, 2048")
        a(f"s_cmp_lt_u32 s39, {64*2048}")
        a(f"s_cbranch_scc1 L2_s1{qt}")
        a(f"v_mov_b32 v{VT}, v{VM}")
        xhalf_max()
        for i in range(16): a(f"v_sub_f32 v{NEG[qt]+i}, 0, v{VM}")
        for i in range(16): a(f"v_mov_b32 v{O[qt]+i}, 0")
        for i in range(4): a(f"v_mov_b32 v{L[qt]+i}, 0")
        a("s_mov_b32 s39, 0")
        a.lab(f"L2_s2{qt}")
        a("s_add_u32 s41, s33, s39")
        ld(KB[0], "s41", 0, VKL); ld(KB[0]+4, "s41", 1024, VKL)
        a("s_add_u32 s41, s36, s39")
        ld(VB[0], "s41"); ld(VB[0]+4, "s41", 1024)
        a("s_waitcnt vmcnt(0)")
        a(mfma(s0, KB[0], Q[qt], NEG[qt])); a(mfma(s0, KB[0]+4, Q[qt]+4))
        a("s_nop 15")
        for i in range(16): a(f"v_exp_f32 v{s0+i}, v{s0+i}")
        a("s_nop 1")
        a(sm32(O[qt], VB[0], s0)); a(sm16(L[qt], s0)); a(sm32(O[qt], VB[0]+4, s0+8)); a(sm16(L[qt], s0+8))
        a("s_nop 7")
        a("s_add_u32 s39, s39, 2048")
        a(f"s_cmp_lt_u32 s39, {64*2048}")
        a(f"s_cbranch_scc1 L2_s2{qt}")
        a("s_nop 15")
        a(f"s_branch L2_fin{qt}")
    return kd(N, NV, 102), f"; @launch kernel={N} grid=(256,1,1) block=(512,1,1) lds=163840"


def main():
    a = A()
    jobs = k1(a)
    desc, launch = k2(a, jobs)
    if OPT["single"] == "1": launch = "; @launch grid=(256,1,1) block=(512,1,1) lds=163840"
    hdr = open("cdna_kernels/" + NAME + ".s.ref").read().split("\n")
    top = [l for l in hdr if l.startswith(";") and "@launch" not in l and "Override" not in l and "grid=ceil" not in l]
    out = "\n".join(top) + "\n" + launch + "\n"
    out += '.amdgcn_target "amdgcn-amd-amdhsa--gfx950"\n.text\n' + a.text()
    out += '.section .rodata,"a"\n' + desc
    open(sys.argv[1], "w").write(out)

main()
```

```python
import struct, math, sys

NAME = "concat_heads__mha_block__sliding_local_dilated__prompt"
OPT = dict(st1=" sc1", st2=" sc1", st3=" sc1", dbg="0", pf1="1", pf3="1", ord1="0", dlt="4", nx="0", ph="8", pf0="2", pfm="255", xl="4", pfe="8", cpb="16", s2e="0", prio="1", k2x="", cpf="1", hprio="0", trip="0", k1x="", tlb="1", dk="0", spin="", bslots="345", pst="0", wfirst="1", slp="10", fsh="5", pfs="2345", opf="0", la="5", hp0="0", wp="1", cp="2", adp="0", xord="20361475", k3x="", mix="1", qs="0", qp="1", bl="2", xslp="0", single="0", df="1", rt="1", pub="3", od="3", pa="1", fm="g", aslp="8", bslp="1", osc=" sc1")
for a in sys.argv[2:]:
    k, v = a.split("=", 1)
    OPT[k] = v

def f2u(x): return struct.unpack("<I", struct.pack("<f", x))[0]
QSCALE = f2u(math.log2(math.e) / math.sqrt(32.0))
NEGBIG = f2u(-1e30)

QF, KF, VF, OF = 0, 8 << 20, 16 << 20, 24 << 20
WS_BYTES = 33 << 20

class A:
    def __init__(s): s.l = []
    def __call__(s, t): s.l.append("    " + t)
    def lab(s, t): s.l.append(t + ":")
    def raw(s, t): s.l.append(t)
    def text(s): return "\n".join(s.l) + "\n"

def vr(b, n=4): return f"v[{b}:{b+n-1}]"
def mfma(d, a, b, c=None):
    cc = vr(d, 16) if c is None else (c if isinstance(c, str) else vr(c, 16))
    return f"v_mfma_f32_32x32x16_bf16 {vr(d,16)}, {vr(a)}, {vr(b)}, {cc}"

def mfma16(d, a, b):
    return f"v_mfma_f32_16x16x32_bf16 {vr(d)}, {vr(a)}, {vr(b)}, {vr(d)}"

def spread(main, fill, start=0, every=1, per=1):
    out = []; k = 0
    for i, m in enumerate(main):
        out.append(m)
        if i >= start and (i - start) % every == 0:
            for _ in range(per):
                if k < len(fill):
                    out += fill[k]; k += 1
    while k < len(fill):
        out += fill[k]; k += 1
    return out

def interleave(main, fill, pattern):
    out = []; k = 0
    for i, m in enumerate(main):
        for _ in range(pattern[i] if i < len(pattern) else 0):
            if k < len(fill):
                out += fill[k]; k += 1
        out.append(m)
    while k < len(fill):
        out += fill[k]; k += 1
    return out

def kd(name, vgpr, sgpr=96):
    acc = (vgpr + 3) // 4 * 4
    return f""".p2align 6
.amdhsa_kernel {name}
  .amdhsa_next_free_vgpr {vgpr}
  .amdhsa_next_free_sgpr {sgpr}
  .amdhsa_accum_offset {acc}
  .amdhsa_group_segment_fixed_size 0
  .amdhsa_kernarg_size 72
  .amdhsa_user_sgpr_count 2
  .amdhsa_user_sgpr_kernarg_segment_ptr 1
  .amdhsa_system_sgpr_workgroup_id_x 1
.end_amdhsa_kernel
"""

_cp = [0]
DBG = OPT["dbg"] in ("1", "2", "3", "4")
def stamp(a, n):
    if DBG:
        a(f"{'s_memrealtime' if OPT['rt'] == '1' and n >= 2 else 's_memtime'} s[{64+2*n}:{65+2*n}]")
def rstamp(a, n):
    if DBG:
        a(f"s_memrealtime s[{64+2*n}:{65+2*n}]")
def dump(a, kidx, wave_sgpr, nst=8):
    if not DBG: return
    if OPT["dbg"] == "4":
        _cp[0] += 1
        sk = f"Ldbg{_cp[0]}"
        a("s_lshl_b32 s92, s2, 3")
        a(f"s_add_u32 s92, s92, {wave_sgpr}")
        a(f"s_cmp_lg_u32 s92, {OPT['dk']}")
        a(f"s_cbranch_scc1 {sk}")
        a("s_waitcnt vmcnt(0)")
        a("s_memrealtime s[78:79]")
        a("s_waitcnt lgkmcnt(0)")
        if OPT["spin"] in ("x", "y"):
            a("v_mov_b32 v2, 0")
            a("buffer_load_dwordx2 v[4:5], v2, s[80:83], 0 offen offset:8 sc1")
            a("s_waitcnt vmcnt(0)")
            a("v_readfirstlane_b32 s90, v4")
            a("v_readfirstlane_b32 s91, v5")
            a("s_nop 3")
            a("s_sub_u32 s91, 0x40000000, s91")
            a("s_and_b32 s93, s66, 0x3fffffff")
            if OPT["spin"] == "x": a("s_sub_u32 s93, s90, s91")
            else: a("s_sub_u32 s93, s93, s91")
            a("s_lshl_b32 s93, s93, 2")
            a("s_min_u32 s93, s93, 20000")
        else:
            a(f"s_sub_u32 s93, s{64+2*int(OPT['spin'])}, s66")
        a.lab(sk + "s")
        a("s_memrealtime s[62:63]")
        a("s_waitcnt lgkmcnt(0)")
        a("s_sub_u32 s62, s62, s78")
        a("s_cmp_lt_u32 s62, s93")
        a(f"s_cbranch_scc1 {sk}s")
        a.lab(sk)
        return
    if OPT["dbg"] == "2":
        if kidx != int(OPT["dk"]): return
        _cp[0] += 1
        sk = f"Ldbg{_cp[0]}"
        a("s_load_dwordx2 s[88:89], s[0:1], 56")
        a("s_waitcnt lgkmcnt(0) vmcnt(0)")
        a(f"s_memtime s[{64+2*(nst-2)}:{65+2*(nst-2)}]")
        a(f"s_memrealtime s[{64+2*(nst-1)}:{65+2*(nst-1)}]")
        a("s_waitcnt lgkmcnt(0)")
        a(f"s_sub_u32 s88, s88, {512*kidx}")
        a("s_subb_u32 s89, s89, 0")
        a("s_mov_b32 s90, 64")
        a("s_mov_b32 s91, 0x00020000")
        a("s_lshl_b32 s92, s2, 3")
        a(f"s_add_u32 s92, s92, {wave_sgpr}")
        a("s_cmp_eq_u32 s92, 805")
        a("s_cselect_b32 s93, 32, 0x1000")
        a("s_cmp_eq_u32 s92, 0")
        a("s_cselect_b32 s92, 0, s93")
        a("v_mov_b32 v2, 0")
        for n in range(2, nst):
            base = 64 if n < nst-1 else 66
            a(f"s_sub_u32 s93, s{64+2*n}, s{base}")
            a("v_mov_b32 v3, s93")
            a(f"buffer_store_dword v3, v2, s[88:91], s92 offen offset:{4*(n-2)}")
            a("s_nop 1")
        return
    a("s_load_dwordx2 s[88:89], s[0:1], 64")
    a("s_waitcnt lgkmcnt(0) vmcnt(0)")
    a(f"s_memtime s[{64+2*(nst-2)}:{65+2*(nst-2)}]")
    a(f"s_memrealtime s[{64+2*(nst-1)}:{65+2*(nst-1)}]")
    a("s_waitcnt lgkmcnt(0)")
    a("s_mov_b32 s90, 0x8000000")
    a("s_mov_b32 s91, 0x00020000")
    a("s_lshl_b32 s92, s2, 3")
    a(f"s_add_u32 s92, s92, {wave_sgpr}")
    a("s_lshl_b32 s92, s92, 6")
    a(f"s_add_u32 s92, s92, {(64+kidx) << 20}")
    a("v_mov_b32 v2, 0")
    for n in range(nst):
        a(f"v_mov_b32 v3, s{64+2*n}")
        a(f"buffer_store_dword v3, v2, s[88:91], s92 offen offset:{4*n}")
        a("s_nop 1")
    if OPT["dbg"] == "3" and kidx == 2:
        _cp[0] += 1
        sk = f"Ldbg{_cp[0]}"
        a("s_lshl_b32 s92, s2, 3")
        a(f"s_add_u32 s92, s92, {wave_sgpr}")
        a(f"s_cmp_lg_u32 s92, {OPT['dk']}")
        a(f"s_cbranch_scc1 {sk}")
        a(f"s_add_u32 s88, s88, {(64 << 20) + int(OPT['dk'])*64}")
        a("s_addc_u32 s89, s89, 0")
        a("s_load_dwordx8 s[40:47], s[88:89], 0")
        a("s_add_u32 s88, s88, 0x100000")
        a("s_addc_u32 s89, s89, 0")
        a("s_load_dwordx8 s[48:55], s[88:89], 0")
        a("s_load_dwordx2 s[88:89], s[0:1], 56")
        a("s_waitcnt lgkmcnt(0)")
        a("s_mov_b32 s90, 64")
        k = 0
        for b, st in ((40, 1), (48, 1), (64, 2)):
            for n, ref in ((3, b), (4, b), (6, b), (1, 41), (7, 41)):
                a(f"s_sub_u32 s93, s{b+st*n}, s{ref}")
                a("v_mov_b32 v3, s93")
                a(f"buffer_store_dword v3, v2, s[88:91], 0 offen offset:{4*k}")
                a("s_nop 1")
                k += 1
        if OPT["spin"] != "":
            q, mult, unit = OPT["spin"].split(",")
            x, y = q.split("-")
            a(f"s_sub_u32 s93, s{x}, s{y}")
            a(f"s_mul_i32 s93, s93, {mult}")
            ins = "s_memrealtime" if unit == "r" else "s_memtime"
            a(f"{ins} s[60:61]")
            a("s_waitcnt lgkmcnt(0)")
            a.lab(sk + "s")
            a(f"{ins} s[62:63]")
            a("s_waitcnt lgkmcnt(0)")
            a("s_sub_u32 s62, s62, s60")
            a("s_cmp_lt_u32 s62, s93")
            a(f"s_cbranch_scc1 {sk}s")
        a.lab(sk)

def codepf(a, start, end, vtmp, lane="v0"):
    if OPT["cpf"] != "1": return
    _cp[0] += 1
    l = f"Lcp{_cp[0]}"
    a("s_getpc_b64 s[56:57]")
    a.lab(l)
    a(f"s_add_u32 s56, s56, {start}-{l}")
    a(f"s_addc_u32 s57, s57, ({start}-{l})>>32")
    a(f"v_lshlrev_b32 v{vtmp}, 7, {lane}")
    a(f"v_min_u32 v{vtmp}, ({end})-({start})-4, v{vtmp}")
    a(f"global_load_dword v{vtmp}, v{vtmp}, s[56:57]")

def head(a, name):
    a.raw(f".globl {name}\n.p2align 8\n.type {name},@function\n{name}:")

def srd(a, d, base, nbytes):
    a(f"s_mov_b32 s{d}, s{base}")
    a(f"s_mov_b32 s{d+1}, s{base+1}")
    a(f"s_mov_b32 s{d+2}, {nbytes:#x}")
    a(f"s_mov_b32 s{d+3}, 0x00020000")

def place(main, fill, per=2, start=0):
    out = []; k = 0
    for i, m in enumerate(main):
        out.append(m)
        if i >= start:
            out += fill[k:k+per]; k += per
    out += fill[k:]
    return out

def sched(M, rd, d, post, late, late_dma=False):
    n = len(M)
    gaps = [[] for _ in range(n)]
    if late_dma: rg = list(range(len(rd))); dg = [len(rd) + 2*k for k in range(len(d))]
    else:
        dg = [1 + 4*k for k in range(len(d))]; rg = [g for g in range(n) if g not in dg][:len(rd)]
    for g, t in zip(rg, rd): gaps[g].append(t)
    for g, (m_, l_) in zip(dg, d):
        gaps[g-1].append(m_); gaps[g].append(l_)
    def runs(ops):
        out = []
        for t in ops:
            if t.startswith("s_cselect") : out[-1].append(t)
            else: out.append([t])
        return out
    def put(run, g0):
        g = g0
        while g < n - 1 and len(gaps[g]) + len(run) > 3: g += 1
        gaps[g] += run
        return g
    g = (dg[len(d)-1] if d else 0)
    for r in runs(post): g = put(r, g)
    g = 0
    for r in runs(late):
        if r[0].startswith("v_"): g = max(g, rg[-1] if rg else 0)
        g = put(r, g)
    seq = []
    for i, m_ in enumerate(M):
        seq.append(m_); seq += gaps[i]
    return seq

FL = 32 << 20
FSH = int(OPT['fsh'])
PK1 = 208

def k1(a):
    N = NAME + "_kernel"
    head(a, N)
    XS, WS, WSL = 32768, 98304, 12288
    VD, VXB, VXA, VWB, VWA, VST, VPX, VPW, VPD = 10, 18, 20, 22, 24, 26, 27, 28, 29
    F = [32, 72]; ACC = 112; NV = 208
    PF = OPT["pf1"] == "1"
    DLT = int(OPT["dlt"]); PST = 2
    def A_(f, mt): return F[f] + 4*mt
    def B_(f, nb): return F[f] + 16 + 4*nb
    def acc(mt, nb): return ACC + (mt*6 + nb)*4
    a("s_cmp_ge_u32 s2, 256")
    a("s_cbranch_scc1 L2_end")
    stamp(a, 0); rstamp(a, 1)
    a("s_and_b32 s20, s2, 7")
    a("s_lshr_b32 s21, s2, 3")
    MIX = OPT["mix"] == "1"
    if MIX: a("s_lshr_b32 s22, s21, 4")
    else: a("s_lshr_b32 s22, s20, 2")
    a("s_mul_i32 s23, s22, 24")
    a("s_load_dwordx4 s[4:7], s[0:1], s23")
    a("s_load_dwordx4 s[96:99], s[0:1], 56")
    a("s_load_dwordx4 s[88:91], s[0:1], 0")
    a("v_lshrrev_b32 v1, 6, v0")
    a("v_and_b32 v0, 63, v0")
    a("v_readfirstlane_b32 s26, v1")
    a("s_and_b32 s24, s20, 1")
    a("s_lshl_b32 s24, s24, 2")
    a("s_and_b32 s25, s21, 3")
    a("s_add_u32 s24, s24, s25")
    if MIX:
        a("s_lshr_b32 s25, s20, 1")
        a("s_xor_b32 s53, s25, s22")
        a("s_lshl_b32 s25, s53, 2")
        a("s_bfe_u32 s27, s21, 0x20002")
    else:
        a("s_bfe_u32 s25, s20, 0x10001")
        a("s_lshl_b32 s25, s25, 3")
        a("s_lshr_b32 s27, s21, 2")
    a("s_add_u32 s25, s25, s27")
    a("s_and_b32 s31, s26, 3")
    a("s_lshr_b32 s32, s26, 2")
    PH = OPT["ph"]
    if PH == "0": a("s_mov_b32 s44, 0")
    elif PH == "1":
        a("s_lshl_b32 s44, s20, 1")
    elif PH == "2":
        a("s_lshl_b32 s44, s20, 1")
        a("s_and_b32 s45, s21, 1")
        a("s_add_u32 s44, s44, s45")
    elif PH in ("6", "7", "8"):
        a("s_lshr_b32 s54, s20, 1")
        a("s_lshl_b32 s54, s54, 2")
        a("s_and_b32 s45, s20, 1")
        a("s_mul_i32 s45, s45, 10")
        a("s_add_u32 s54, s54, s45")
        a("s_and_b32 s54, s54, 15")
        if PH == "6": a("s_and_b32 s45, s21, 1")
        elif PH == "7": a("s_mov_b32 s45, s22")
        else: a("s_mov_b32 s45, 0")
        a("s_add_u32 s44, s54, s45")
    elif PH == "5":
        a("s_lshl_b32 s44, s20, 1")
        a("s_add_u32 s44, s44, s22")
    elif PH == "3":
        a("s_lshl_b32 s44, s22, 1")
        a("s_and_b32 s45, s20, 1")
        a("s_add_u32 s44, s44, s45")
        a("s_lshl_b32 s44, s44, 2")
        a("s_and_b32 s45, s21, 3")
        a("s_add_u32 s44, s44, s45")
    elif PH == "4":
        a("s_lshl_b32 s44, s22, 1")
        a("s_and_b32 s45, s20, 1")
        a("s_add_u32 s44, s44, s45")
        a("s_lshl_b32 s44, s44, 2")
    a("v_lshrrev_b32 v2, 3, v0")
    a("v_and_b32 v3, 7, v0")
    a("v_lshrrev_b32 v4, 4, v0")

    def rdA(f, ks, mt): return [f"ds_read_b128 {vr(A_(f,mt))}, v{VXA+ks} offset:{mt*2048}"]
    def rdB(f, nb):
        o = (nb//2)*4096
        return [f"ds_read_b64_tr_b16 {vr(B_(f,nb),2)}, v{VWA+nb%2} offset:{o}",
                f"ds_read_b64_tr_b16 {vr(B_(f,nb)+2,2)}, v{VWA+nb%2} offset:{o+512}"]
    def reads(f, ks):
        r = rdB(f, 0)
        for mt in range(4): r += rdA(f, ks, mt)
        for nb in range(1, 6): r += rdB(f, nb)
        return r
    def mm(f):
        r = []
        for nb in range(6):
            for mt in range(4):
                if nb < 4: r.append(mfma16(acc(mt, nb), B_(f, nb), A_(f, mt)))
                else:      r.append(mfma16(acc(mt, nb), A_(f, mt), B_(f, nb)))
        return r

    def common_setup():
        srd(a, 16, 98, WS_BYTES)
        a("v_and_b32 v2, 15, v0")
        a("v_lshrrev_b32 v3, 4, v0")
        a("v_bfe_u32 v4, v0, 1, 3")
        a("s_lshl_b32 s33, s31, 13")
        a("v_lshlrev_b32 v5, 7, v2")
        a("v_add_u32 v5, s33, v5")
        a("v_xor_b32 v6, v3, v4")
        a(f"v_lshl_add_u32 v{VXB}, v6, 4, v5")
        a(f"v_xor_b32 v{VXB+1}, 64, v{VXB}")
        a(f"v_mov_b32 v{VXA}, v{VXB}")
        a(f"v_mov_b32 v{VXA+1}, v{VXB+1}")
        a("v_bfe_u32 v4, v0, 2, 2")
        a("v_lshl_add_u32 v4, v3, 3, v4")
        a("v_lshlrev_b32 v4, 7, v4")
        a("v_and_b32 v6, 3, v0")
        a("v_lshl_add_u32 v4, v6, 3, v4")
        a("v_bfe_u32 v5, v0, 3, 2")
        a("s_lshl_b32 s33, s32, 1")
        a("v_xor_b32 v5, s33, v5")
        a(f"v_lshl_add_u32 v{VWB}, v5, 5, v4")
        a(f"v_xor_b32 v{VWB+1}, 32, v{VWB}")
        a(f"v_add_u32 v{VWA}, {WS}, v{VWB}")
        a(f"v_add_u32 v{VWA+1}, {WS}, v{VWB+1}")
        a("v_lshlrev_b32 v4, 4, v2")
        a(f"v_lshl_add_u32 v{VST}, v3, 9, v4")
        for i in range(96): a(f"v_mov_b32 v{ACC+i}, 0")
        a("s_lshl_b32 s40, s22, 22")
        a("s_lshl_b32 s41, s25, 1")
        a("s_add_u32 s41, s41, s32")
        a("s_lshl_b32 s41, s41, 17")
        a("s_add_u32 s40, s40, s41")
        a("s_lshl_b32 s41, s24, 14")
        a("s_add_u32 s40, s40, s41")
        a("s_lshl_b32 s41, s31, 12")
        a("s_add_u32 s40, s40, s41")
        a(f"s_add_u32 s41, s40, {KF}")
        a(f"s_add_u32 s42, s40, {VF}")
        a(f"s_mov_b32 s43, {QSCALE:#x}")
        a("s_lshl_b32 s95, s25, 3")
        a("s_add_u32 s95, s95, s24")
        a("s_lshl_b32 s94, s95, 2")
        a("s_add_u32 s94, s94, s31")
        a("s_add_u32 s94, s94, 1408")
        a("s_add_u32 s95, s95, 1280")
        a("s_cmp_eq_u32 s22, 0")
        a("s_cselect_b32 s95, s95, s94")
        a(f"s_lshl_b32 s95, s95, {FSH}")
        a(f"s_add_u32 s95, s95, {FL}")
        srd(a, 80, 96, 256)
        a("s_mov_b32 s33, 0")
        a(f"s_mov_b32 s34, {WS}")
        a("s_mov_b32 s35, 0")

    wupd = [f"s_add_u32 s34, s34, {WSL}", f"s_cmp_eq_u32 s34, {WS+5*WSL}", f"s_cselect_b32 s34, {WS}, s34",
            f"v_add_u32 v{VWA}, s34, v{VWB}", f"v_add_u32 v{VWA+1}, s34, v{VWB+1}", "s_add_u32 s35, s35, 1"]
    xupd = [f"s_add_u32 s33, s33, {XS}", f"s_cmp_eq_u32 s33, {3*XS}", "s_cselect_b32 s33, 0, s33",
            f"v_add_u32 v{VXA}, s33, v{VXB}", f"v_add_u32 v{VXA+1}, s33, v{VXB+1}"]

    def mix(dma, other):
        out = []; o = list(other)
        for m, l in dma:
            out.append(m)
            out.append(o.pop(0) if o else "s_nop 0")
            out.append(l)
        return out + o

    def event(tag):
        a.lab(tag)
        if OPT["cpf"] == "1":
            a("s_cmp_ge_u32 s51, 0x100")
            a(f"s_cbranch_scc1 {tag}c")
        a("s_add_u32 s48, s54, s51")
        a("s_and_b32 s48, s48, 15")
        a("s_mul_i32 s48, s48, s52")
        a("s_add_u32 s48, s48, s50")
        a(f"buffer_load_dword v{VPD}, v{VPW}, s[84:87], s48 offen")
        a(f"s_add_u32 s51, s51, {PST}")
        a("s_lshl_b32 s49, s51, 1")
        a("s_max_u32 s49, s49, s39")
        a("s_sub_u32 s49, s49, s39")
        a(f"s_cmp_lt_u32 s51, {OPT['pfe']}")
        a(f"s_cbranch_scc1 {tag}r")
        a("s_mov_b32 s49, 0x7fff")
        if OPT["cpf"] == "1":
            a("s_cmp_eq_u32 s31, 3")
            a(f"s_cselect_b32 s49, {OPT['cpb']}, s49")
            a("s_mov_b32 s51, 0x100")
        a(f"s_branch {tag}r")
        if OPT["cpf"] == "1":
            a.lab(tag + "c")
            a("s_mov_b32 s49, 0x7fff")
            codepf(a, "L1_epi", "L1_epi+8192", 31)
            codepf(a, "L1_epi+8192", "L1_epi+16384", 9)
            codepf(a, "L1_epi+16384", "L2_slow0", 8)
            a(f"s_branch {tag}r")

    a("s_cmp_lg_u32 s32, 0")
    a("s_cbranch_scc1 L1_W")
    for cls in ("X", "W"):
        P = "L1" + cls
        if cls == "X":
            a("v_lshlrev_b32 v5, 11, v2")
            a("v_xor_b32 v6, v3, v4")
            a("v_lshl_add_u32 v6, v6, 4, v5")
            a("v_xor_b32 v7, 64, v6")
            a(f"v_mov_b32 v{VD}, v6")
            a(f"v_add_u32 v{VD+1}, 16384, v7")
            a(f"v_add_u32 v{VD+2}, 32768, v6")
            a(f"v_add_u32 v{VD+3}, 49152, v7")
            a("s_lshl_b32 s27, s24, 19")
            a("s_lshl_b32 s28, s31, 16")
            a("s_add_u32 s45, s27, s28")
            a("s_lshl_b32 s46, s44, 7")
            a("s_add_u32 s27, s45, s46")
            a("s_add_u32 s28, s27, 0x40000")
            a("s_lshl_b32 s29, s31, 12")
            a(f"s_add_u32 s30, s29, {6*16384}")
            a("s_waitcnt lgkmcnt(0)")
            if OPT["s2e"] == "1": stamp(a, 2)
            srd(a, 8, 4, 4 << 20)
            def grp(par):
                so = "s27" if par == 0 else "s28"
                d = [(f"s_add_u32 m0, s29, {j*1024}", f"buffer_load_dwordx4 v{VD+j}, s[8:11], {so} offen lds") for j in range(4)]
                post = ["s_add_u32 s29, s29, 16384"]
                if par == 0: post += ["s_add_u32 s46, s46, 128", "s_and_b32 s46, s46, 0x7ff", "s_add_u32 s27, s45, s46"]
                if par == 1: post += ["s_add_u32 s28, s27, 0x40000", "s_cmp_eq_u32 s29, s30", f"s_cselect_b32 s38, {6*16384}, 0", "s_sub_u32 s29, s29, s38"]
                return d, post
            NG = 4
        else:
            a.lab("L1_W")
            if OPT["cpf"] == "1":
                a("s_cmp_lg_u32 s26, 7")
                a("s_cbranch_scc1 L1_nocp")
                codepf(a, N, "L1_epi", VPD)
                a.lab("L1_nocp")
            a("v_mul_u32_u24 v5, 6144, v2")
            a("v_and_b32 v6, 1, v4")
            a("v_lshlrev_b32 v6, 1, v6")
            a("s_and_b32 s33, s26, 1")
            a("s_lshl_b32 s33, s33, 2")
            a("v_xor_b32 v6, v3, v6")
            a("v_xor_b32 v6, s33, v6")
            a(f"v_lshl_add_u32 v{VD}, v6, 4, v5")
            a(f"v_add_u32 v{VD+1}, 2048, v{VD}")
            a(f"v_add_u32 v{VD+2}, 4096, v{VD}")
            a("s_lshl_b32 s27, s25, 7")
            a(f"s_mul_i32 s28, s31, {8*6144}")
            a("s_add_u32 s27, s27, s28")
            a(f"s_mul_i32 s28, s44, {64*6144}")
            a("s_add_u32 s27, s27, s28")
            a("s_lshl_b32 s29, s31, 10")
            a(f"s_add_u32 s29, s29, {WS}")
            a(f"s_add_u32 s30, s29, {5*WSL}")
            a("s_waitcnt lgkmcnt(0)")
            if OPT["s2e"] == "1": stamp(a, 2)
            srd(a, 12, 6, 6 << 20)
            def pfsetup():
                a("s_and_b32 s47, s21, 7")
                a("s_bfe_u32 s51, s21, 0x10003")
                a(f"s_add_u32 s51, s51, {OPT['pf0']}")
                a("v_lshlrev_b32 v5, 11, v0")
                a("v_lshrrev_b32 v6, 2, v0")
                a("v_mul_u32_u24 v6, 6144, v6")
                a("v_and_b32 v7, 3, v0")
                a("v_lshl_add_u32 v6, v7, 7, v6")
                a("v_mul_u32_u24 v7, 6144, v0")
                a("s_cmp_lt_u32 s47, 4")
                a("s_cselect_b64 s[56:57], -1, 0")
                a("s_cselect_b32 s84, s88, s90")
                a("s_cselect_b32 s85, s89, s91")
                a(f"s_mov_b32 s86, {6<<20:#x}")
                a(f"s_cselect_b32 s86, {4<<20:#x}, s86")
                a("s_mov_b32 s87, 0x00020000")
                a(f"s_mov_b32 s52, {64*6144}")
                a("s_cselect_b32 s52, 128, s52")
                a(f"v_cndmask_b32 v{VPW}, v6, v5, s[56:57]")
                a("s_and_b32 s48, s20, 1")
                a("s_lshl_b32 s48, s48, 2")
                a("s_add_u32 s48, s48, s47")
                a("s_lshl_b32 s48, s48, 2")
                a("s_add_u32 s48, s48, s31")
                a("s_lshl_b32 s48, s48, 17")
                a("s_lshr_b32 s50, s20, 1")
                a("s_lshl_b32 s50, s50, 9")
                a("s_and_b32 s55, s47, 3")
                a("s_lshl_b32 s55, s55, 11")
                a("s_add_u32 s50, s50, s55")
                a(f"s_mul_i32 s55, s31, {16*6144}")
                a("s_add_u32 s50, s50, s55")
                a("s_cmp_lt_u32 s47, 4")
                a("s_cselect_b32 s50, s48, s50")
                a("s_and_b32 s48, s53, 2")
                a("s_lshl_b32 s48, s48, 9")
                a("s_lshl_b32 s55, s31, 11")
                a("s_add_u32 s48, s48, s55")
                a("s_add_u32 s48, s48, 384")
                a("s_bitcmp1_b32 s53, 0")
                a("s_cselect_b32 s90, s90, s6")
                a("s_cselect_b32 s91, s91, s7")
                a("s_cmp_eq_u32 s47, 7")
                a("s_cselect_b64 s[56:57], -1, 0")
                a("s_cselect_b32 s50, s48, s50")
                a("s_cselect_b32 s84, s90, s84")
                a("s_cselect_b32 s85, s91, s85")
                a("s_cselect_b32 s55, 3, 0")
                a(f"s_cselect_b32 s39, {4+DLT+int(OPT['xl'])}, {4+DLT}")
                a(f"v_cndmask_b32 v{VPW}, v{VPW}, v7, s[56:57]")
                a("s_and_b32 s48, s55, s31")
                a("s_cmp_eq_u32 s48, 3")
                a("s_cselect_b32 s86, 0, s86")
                if OPT["pfm"] != "255":
                    a(f"s_lshr_b32 s48, {OPT['pfm']}, s47")
                    a("s_and_b32 s48, s48, 1")
                    a("s_cselect_b32 s86, s86, 0")
                a("s_lshl_b32 s49, s51, 1")
                a("s_max_u32 s49, s49, s39")
                a("s_sub_u32 s49, s49, s39")
                a("s_cmp_eq_u32 s22, 0")
                a("s_cselect_b32 s49, 0x7fff, s49")
            def grp(par):
                d = [(f"s_add_u32 m0, s29, {g*4096}", f"buffer_load_dwordx4 v{VD+g}, s[12:15], s27 offen lds") for g in range(3)]
                post = [f"s_add_u32 s27, s27, {32*6144}", f"s_add_u32 s29, s29, {WSL}",
                        "s_cmp_eq_u32 s29, s30", f"s_cselect_b32 s38, {5*WSL}, 0", "s_sub_u32 s29, s29, s38"]
                if par == 1: post += [f"s_cmp_ge_u32 s27, {6<<20:#x}", f"s_cselect_b32 s38, {6<<20:#x}, 0", "s_sub_u32 s27, s27, s38"]
                return d, post
            NG = 3
        def emit_grp(par):
            d, post = grp(par)
            for t in mix(d, []) + post: a(t)
        first = 2 if cls == "X" else 1
        for n in range(first): emit_grp(n & 1)
        common_setup()
        if cls == "W" and PF: pfsetup()
        if cls == "X":
            a(f"v_lshlrev_b32 v8, {FSH}, v0")
            a("v_mov_b32 v9, 0")
            a(f"s_lshl_b32 s47, s2, {3+FSH}")
            a(f"s_add_u32 s47, s47, {FL}")
            a("s_cmp_eq_u32 s31, 0")
            a("s_cselect_b64 exec, 0xff, 0")
            a("s_cbranch_execz L1_nofl")
            a("buffer_store_dword v9, v8, s[16:19], s47 offen sc1")
            a.lab("L1_nofl")
            a("s_mov_b64 exec, -1")
        for n in range(first, 4): emit_grp(n & 1)
        npf = 0
        if cls == "W" and PF:
            a("s_cmp_eq_u32 s49, 0")
            a(f"s_cbranch_scc1 {P}_e0")
            a.lab(f"{P}_e0r")
        a(f"s_waitcnt vmcnt({(4-first)*NG + npf})")
        a("s_barrier")
        if cls == "X":
            a("v_mov_b32 v8, 1")
            a("s_cmp_eq_u32 s31, 0")
            a("s_cselect_b64 exec, 1, 0")
            a("s_cbranch_execz L1_noat")
            a("buffer_atomic_add v8, v9, s[80:83], 0 offen sc1")
            if OPT["dbg"] == "4":
                a("s_and_b32 s47, s66, 0x3fffffff")
                a("v_mov_b32 v8, s47")
                a("buffer_atomic_umax v8, v9, s[80:83], 0 offen offset:8 sc1")
                a("s_sub_u32 s47, 0x40000000, s47")
                a("s_nop 1")
                a("v_mov_b32 v31, s47")
                a("buffer_atomic_umax v31, v9, s[80:83], 0 offen offset:12 sc1")
            a.lab("L1_noat")
            a("s_mov_b64 exec, -1")
        d, post = grp(0)
        for t in reads(0, 0) + mix(d, []) + post + wupd: a(t)
        if cls == "W": a(f"s_waitcnt vmcnt({3*NG + npf})")
        a("s_waitcnt lgkmcnt(0)")
        a("s_barrier")
        if cls == "W" and OPT["wp"] == "1": a("s_setprio 1")
        a(f"s_branch {P}_odd")
        a.raw(".p2align 6")
        a.lab(f"{P}_loop")
        for par in range(2):
            if par == 1: a.lab(f"{P}_odd")
            d, post = grp(par)
            rd = reads(par, par)
            tail = list(post) + wupd
            if par == 1:
                tail += xupd
            X = OPT["k1x"]
            if "d" in X: d = []
            if "r" in X: rd = []
            fill = rd[:8] + mix(d, rd[8:]) + tail
            if "o" not in X:
                late = [t for t in tail if t not in post]
                late = [t for t in late if not t.startswith("v_")] + [t for t in late if t.startswith("v_")]
                seq = sched(mm(1-par), rd, d, list(post), late, late_dma=("l" in X))
            elif "1" in X: seq = place(mm(1-par), fill, 2, 2)
            elif "3" in X: seq = place(mm(1-par), fill, 3, 0)
            elif "f" in X: seq = rd[:4] + place(mm(1-par), fill[4:], 2, 0)
            else: seq = place(mm(1-par), fill, 2, 0)
            if "p" in X: seq = ["s_setprio 1"] + seq[:len(seq)-8] + ["s_setprio 0"] + seq[len(seq)-8:]
            if "P" in X and cls == "W": seq = ["s_setprio 1"] + seq
            for t in seq: a(t)
            if cls == "W" and PF:
                a("s_cmp_ge_u32 s35, s49")
                a(f"s_cbranch_scc1 {P}_e{par+1}")
                a.lab(f"{P}_e{par+1}r")
            if par == 1: a("s_cmp_lt_u32 s35, 28")
            if cls == "W": a(f"s_waitcnt vmcnt({3*NG}) lgkmcnt(0)")
            elif par == 1: a(f"s_waitcnt vmcnt({2*NG}) lgkmcnt(0)")
            else: a("s_waitcnt lgkmcnt(0)")
            if "b" not in X and not ("h" in X and par == 0): a("s_barrier")
        if OPT["trip"] == "1":
            a("s_cselect_b32 s62, 1, 0")
            a("s_cmp_lg_u32 s35, 4")
            a(f"s_cbranch_scc1 {P}_t1")
            stamp(a, 2)
            a.lab(f"{P}_t1")
            a("s_cmp_lg_u32 s62, 0")
        a(f"s_cbranch_scc1 {P}_loop")
        a("s_branch L1_epi")
        if cls == "W" and PF:
            for k in range(3): event(f"{P}_e{k}")
    a.lab("L1_epi")
    a("v_mov_b32 v9, 0")
    a("s_mov_b32 s44, s43")
    a("s_mov_b32 s45, s43")
    a(f"v_add_u32 v{VWA}, {WS}, v{VWB}")
    a(f"v_add_u32 v{VWA+1}, {WS}, v{VWB+1}")
    a("s_and_b32 s33, s22, s32")
    a(f"s_cselect_b32 s18, 0, s18")
    XF = lambda sl, mt: (32 if sl < 2 else 72 - 32) + 16*sl + 4*mt
    WBUF = [64, 240, 248, 104]
    def tx(sl): return [f"ds_read_b128 {vr(XF(sl, mt))}, v{(VXA if sl < 2 else VXB) + (sl & 1)} offset:{mt*2048}" for mt in range(4)]
    def tw(gi):
        seg, sl = G[gi]; b = WBUF[gi % 4]; o = ((28 + sl) % 5)*WSL + seg*4096
        return [f"ds_read_b64_tr_b16 {vr(b+4*u+2*i,2)}, v{VWA+u} offset:{o+512*i}" for u in range(2) for i in range(2)]
    def tm(gi):
        seg, sl = G[gi]; b = WBUF[gi % 4]; r = []
        for u in range(2):
            for mt in range(4):
                if seg < 2: r.append(mfma16(acc(mt, 2*seg+u), b+4*u, XF(sl, mt)))
                else:       r.append(mfma16(acc(mt, 2*seg+u), XF(sl, mt), b+4*u))
        return r
    G = [(0, 0), (1, 0), (0, 1), (0, 2), (0, 3), (1, 1), (1, 2), (1, 3), (2, 0), (2, 1), (2, 2), (2, 3)]
    jobs = []
    for T in range(2):
        for sg in range(2): jobs.append((1, acc(2*T+sg, 2), acc(2*T+sg, 3), T*2048 + sg*256))
    for T in range(2):
        for sg in range(2): jobs.append((0, acc(2*T+sg, 0), acc(2*T+sg, 1), T*2048 + sg*256))
    for T in range(2):
        for u in range(2):  jobs.append((2, acc(2*T, 4+u), acc(2*T+1, 4+u), T*2048 + u*256))
    def conv(n):
        seg, b0, b1, off = jobs[n]; t0 = PK1 + 4*n; r = []
        if seg == 0: r += [f"v_pk_mul_f32 v[{b+q}:{b+q+1}], v[{b+q}:{b+q+1}], s[44:45]" for b in (b0, b1) for q in (0, 2)]
        r += [f"v_cvt_pk_bf16_f32 v{t0}, v{b0}, v{b0+1}", f"v_cvt_pk_bf16_f32 v{t0+1}, v{b0+2}, v{b0+3}",
              f"v_cvt_pk_bf16_f32 v{t0+2}, v{b1}, v{b1+1}", f"v_cvt_pk_bf16_f32 v{t0+3}, v{b1+2}, v{b1+3}",
              f"buffer_store_dwordx4 {vr(t0)}, v{VST}, s[16:19], s{40+seg} offen offset:{off} sc1"]
        return r
    lds = []
    def emit(M, rd, tags, other, skip=0):
        o = list(other)
        for i, m_ in enumerate(M):
            a(m_)
            n_ = 2
            if i < len(rd):
                a(rd[i]); lds.append(tags[i]); n_ = 1
            if i >= skip:
                for _ in range(n_):
                    if o and not (i < len(rd) and o[0].startswith("buffer")): a(o.pop(0))
        return o
    def need(tags):
        last = max(i for i, x in enumerate(lds) if x in tags)
        a(f"s_waitcnt lgkmcnt({min(15, len(lds) - 1 - last)})")
    emit(mm(1), tx(0) + tw(0) + tw(1) + tx(1), ["x0"]*4 + ["w0"]*4 + ["w1"]*4 + ["x1"]*4, [])
    a("s_waitcnt vmcnt(6)")
    a("s_barrier")
    need(["x0", "w0"])
    emit(tm(0), tw(2), ["w2"]*4, [])
    a("s_waitcnt vmcnt(0)")
    a("s_barrier")
    a("s_cmp_lg_u32 s26, 5")
    a("s_cbranch_scc1 L1_noc")
    a("buffer_load_dword v8, v9, s[80:83], 0 offen sc1")
    a.lab("L1_noc")
    need(["w1"])
    emit(tm(1), tx(2) + tw(3), ["x2"]*4 + ["w3"]*4, [])
    need(["w2", "x1"])
    emit(tm(2), tx(3) + tw(4), ["x3"]*4 + ["w4"]*4, [])
    pend = []
    for gi in range(3, 12):
        need([f"w{gi}", f"x{G[gi][1]}"])
        had = len(pend) >= 6
        if gi == 5: pend += [t for n in range(4, 8) for t in conv(n)]
        if gi == 8: pend += [t for n in range(4) for t in conv(n)]
        rd = tw(gi + 2) if gi + 2 < 12 else []
        pend = emit(tm(gi), rd, [f"w{gi+2}"]*4, pend, skip=(3 if gi == 5 else (3 if gi == 8 and not had else 0)))
    if OPT["pst"] == "0": stamp(a, 2)
    for t in pend: a(t)
    a("s_nop 1")
    a("s_cmp_lg_u32 s22, 0")
    a("s_cselect_b32 s18, 0, s18")
    for n in (8, 10, 9, 11):
        for t in conv(n): a(t)
    a.lab("L1_done")
    a("s_setprio 0")
    a(f"v_mov_b32 v200, v{VST}")
    a("s_mov_b32 s92, s40")
    a("s_mov_b32 s93, s41")
    a("s_mov_b32 s94, s42")
    a("s_mov_b32 s24, s26")
    return [(seg, off) for seg, _, _, off in jobs]

def kperm(rho):
    return ((rho >> 2) & 1) * 16 + (rho >> 3) * 4 + (rho & 3)

SLOTS = [131072, 0, 65536, 32768, 98304]

def k2(a, jobs):
    N = NAME + "_kernel"
    VL16, VKA, VVA, VIDX, VM, VT, VKL = 1, 2, 3, 4, 5, 6, 7
    ONES = 8; Q = [12, 20]; NEG = [28, 44]; O = [60, 76]; L = [92, 96]; KB = [100, 108]; VB = [116, 124]; S = [132, 148, 164, 180]
    NV = 256
    PF = OPT["pf3"] == "1"
    def sm32(d, av, b): return f"v_smfmac_f32_32x32x32_bf16 {vr(d,16)}, {vr(av)}, {vr(b,8)}, v{VIDX}"
    def sm16(l, b): return f"v_smfmac_f32_16x16x64_bf16 {vr(l)}, {vr(ONES)}, {vr(b,8)}, v{VIDX}"
    def ld(d, soff, off=0, v=VL16): a(f"buffer_load_dwordx4 {vr(d)}, v{v}, s[8:11], {soff} offen offset:{off} sc1")
    def xhalf_max():
        a(f"v_max_f32 v{VM}, v{VM}, v{VT}")
        a("s_nop 0")
        a(f"v_mov_b32 v{VT}, v{VM}")
        a("s_nop 1")
        a(f"v_permlane32_swap_b32 v{VM}, v{VT}")
        a("s_nop 1")
        a(f"v_max_f32 v{VM}, v{VM}, v{VT}")
    def maxof(vals):
        a(f"v_max3_f32 v{VM}, v{vals[0]}, v{vals[1]}, v{vals[2]}")
        a(f"v_max3_f32 v{VT}, v{vals[3]}, v{vals[4]}, v{vals[5]}")
        for i in range(6, len(vals) - 2, 4):
            a(f"v_max3_f32 v{VM}, v{VM}, v{vals[i]}, v{vals[i+1]}")
            a(f"v_max3_f32 v{VT}, v{VT}, v{vals[i+2]}, v{vals[i+3]}")
        a(f"v_max3_f32 v{VM}, v{VM}, v{vals[-2]}, v{vals[-1]}")
        xhalf_max()
    def finish(soff, off, T, o, l):
        a(f"v_rcp_f32 v{VT}, v{l}")
        a("s_nop 0")
        for i in range(16): a(f"v_mul_f32 v{o+i}, v{o+i}, v{VT}")
        for i in range(8): a(f"v_cvt_pk_bf16_f32 v{T+i}, v{o+2*i}, v{o+2*i+1}")
        a(f"buffer_store_dwordx4 {vr(T)}, v{VL16}, s[8:11], {soff} offen{OPT['st2']}")
        a(f"buffer_store_dwordx4 {vr(T+4)}, v{VL16}, s[8:11], {soff} offen offset:1024{OPT['st2']}")
    def consts():
        a(f"v_mov_b32 v{VIDX}, 0xdddddddd")
        a("v_bfe_u32 v5, v0, 2, 1")
        a("v_cmp_eq_u32 vcc, 0, v5")
        a("v_mov_b32 v6, 0x3f803f80")
        a("s_nop 0")
        a(f"v_cndmask_b32 v{ONES}, 0, v6, vcc")
        a(f"v_cndmask_b32 v{ONES+1}, 0, v6, vcc")
        a(f"v_cndmask_b32 v{ONES+2}, v6, 0, vcc")
        a(f"v_cndmask_b32 v{ONES+3}, v6, 0, vcc")
    a("s_lshr_b32 s60, s21, 4")
    a("s_mul_i32 s22, s60, 24")
    a("s_add_u32 s22, s22, 16")
    a("s_load_dwordx2 s[6:7], s[0:1], s22")
    a("s_load_dwordx2 s[58:59], s[0:1], 48")
    a("s_lshl_b32 s22, s20, 2")
    a("s_lshr_b32 s23, s21, 3")
    a("s_add_u32 s22, s22, s23")
    a("s_and_b32 s23, s21, 7")
    a(f"v_lshlrev_b32 v{VL16}, 4, v0")
    a("s_and_b32 s28, s24, 3")
    a("s_lshl_b32 s25, s23, 3")
    a("s_lshl_b32 s29, s28, 1")
    a("s_add_u32 s25, s25, s29")
    a("s_lshl_b32 s26, s22, 17")
    a("s_lshl_b32 s27, s25, 11")
    a("s_add_u32 s27, s27, s26")
    a("v_bfe_u32 v5, v0, 2, 1")
    a("v_and_b32 v6, 0x23, v0")
    a("v_lshl_or_b32 v6, v5, 4, v6")
    a("v_bfe_u32 v5, v0, 3, 2")
    a("v_lshl_or_b32 v6, v5, 2, v6")
    a(f"v_lshlrev_b32 v{VKL}, 4, v6")
    a(f"s_add_u32 s33, s26, {KF}")
    a("s_lshl_b32 s37, s25, 16")
    a("s_lshl_b32 s38, s22, 11")
    a("s_add_u32 s37, s37, s38")
    a(f"s_add_u32 s37, s37, {OF}")
    a("s_lshr_b32 s61, s20, 1")
    a("s_lshl_b32 s61, s61, 2")
    a("s_and_b32 s62, s21, 3")
    a("s_add_u32 s61, s61, s62")
    a("s_and_b32 s62, s20, 1")
    a("s_lshl_b32 s62, s62, 2")
    a("s_bfe_u32 s63, s21, 0x20002")
    a("s_add_u32 s62, s62, s63")
    a("s_lshl_b32 s63, s23, 5")
    a("s_add_u32 s63, s63, s22")
    a(f"s_lshl_b32 s63, s63, {FSH}")
    a(f"s_add_u32 s63, s63, {FL}")
    a("s_cmp_ge_u32 s24, 4")
    a("s_cbranch_scc1 L2_help")
    srd(a, 8, 98, WS_BYTES)
    consts()
    a("s_add_u32 s38, s37, 0x10000")
    a(f"v_mov_b32 v{VKA}, v{VKL}")
    a(f"v_add_u32 v{VVA}, 0x10000, v{VL16}")
    for i in range(40): a(f"v_mov_b32 v{O[0]+i}, 0")
    for i in range(16): a(f"v_mov_b32 v{S[3]+i}, 0")
    for i in range(8): a(f"v_mov_b32 v{VB[1]+i}, 0")
    a("s_mov_b32 s39, 0")
    a("s_mov_b32 s40, 0")
    a("s_waitcnt lgkmcnt(0)")
    if OPT["df"] == "1":
        a("s_cmp_lg_u32 s60, 0")
        a("s_cbranch_scc1 L2_x1")
    a("s_waitcnt vmcnt(0)")
    a.lab("L2_x1")
    a("s_barrier")
    if OPT["pst"] == "0": stamp(a, 3)
    a("s_barrier")
    if OPT["pst"] == "0": stamp(a, 4)
    if OPT["pst"] == "3": stamp(a, 5)
    ld(Q[0], "s27"); ld(KB[0], "s33", 0, VKL); ld(Q[0]+4, "s27", 1024); ld(KB[0]+4, "s33", 1024, VKL)
    ld(Q[1], "s27", 2048); ld(Q[1]+4, "s27", 3072)
    ld(KB[1], "s33", 2048, VKL); ld(KB[1]+4, "s33", 3072, VKL)
    a("s_waitcnt vmcnt(4)")
    a(mfma(S[0], KB[0], Q[0], "0")); a(mfma(S[0], KB[0]+4, Q[0]+4))
    a("s_waitcnt vmcnt(2)")
    if OPT["pst"] == "3": stamp(a, 2)
    a(mfma(S[1], KB[0], Q[1], "0")); a(mfma(S[1], KB[0]+4, Q[1]+4))
    a("s_nop 8")
    maxof([S[0]+r for r in range(16)])
    for i in range(16): a(f"v_sub_f32 v{NEG[0]+i}, 0, v{VM}")
    for i in range(16): a(f"v_sub_f32 v{S[0]+i}, v{S[0]+i}, v{VM}")
    maxof([S[1]+r for r in range(16)])
    for i in range(16): a(f"v_sub_f32 v{NEG[1]+i}, 0, v{VM}")
    a("s_waitcnt vmcnt(0)")
    if OPT["pst"] == "3": stamp(a, 3)
    a("s_barrier")
    if OPT["pst"] == "3": stamp(a, 4)
    if OPT["pst"] == "0": stamp(a, 5)
    if OPT["pst"] == "2":
        stamp(a, 2); a("s_memtime s[72:73]")
    if OPT["tlb"] == "1": a(f"buffer_load_dword v196, v{VL16}, s[8:11], s37 offen")
    if OPT["cp"] != "0": a(f"s_setprio {OPT['cp']}")
    a("s_cmp_eq_u32 s60, 0")
    a("s_cbranch_scc1 L2_it3")
    for n in range(8, 12):
        a(f"buffer_store_dwordx4 {vr(PK1+4*n)}, v200, s[8:11], s94 offen offset:{jobs[n][1]} sc1")
    a("s_branch L2_it3")

    def item(p, qk=True, rd=True, pre=None, post=None):
        n = (p - 3) % 16
        i = n >> 1; qt = n & 1
        Sn, Sc, Sp = S[(n+1) % 4], S[n % 4], S[(n-1) % 4]
        qn = (n+1) & 1; kbu = KB[((n+1) >> 1) % 2]
        qp = (n-1) & 1; vbu = VB[((n-1) >> 1) % 2]
        if qt == 1:
            kt = (i + 2) % 8
            r = [f"ds_read_b128 {vr(KB[i % 2])}, v{VKA} offset:{kt*2048}", f"ds_read_b128 {vr(KB[i % 2]+4)}, v{VKA} offset:{kt*2048+1024}"]
        else:
            r = [f"ds_read_b128 {vr(VB[i % 2])}, v{VVA} offset:{i*2048}", f"ds_read_b128 {vr(VB[i % 2]+4)}, v{VVA} offset:{i*2048+1024}"]
        if not rd or "r" in OPT["k2x"]: r = []
        ex = [f"v_exp_f32 v{Sc+k}, v{Sc+k}" for k in range(16)]
        post = list(post or [])
        seq = []
        if qk: seq.append(mfma(Sn, kbu, Q[qn], NEG[qn]))
        seq += post[0:1] + ex[0:3]
        if qk: seq.append(mfma(Sn, kbu+4, Q[qn]+4))
        seq += ["s_waitcnt lgkmcnt(0)"] + list(pre or []) + ex[3:6]
        seq.append(sm32(O[qp], vbu, Sp))
        seq += r[:1] + ex[6:9]
        seq.append(sm16(L[qp], Sp))
        seq += post[1:3] + ex[9:10]
        seq.append(sm32(O[qp], vbu+4, Sp+8))
        seq += r[1:] + ex[10:13]
        seq.append(sm16(L[qp], Sp+8))
        seq += post[3:] + ex[13:16]
        for t in seq: a(t)

    a.raw(".p2align 6")
    a.lab("L2_loop")
    item(0, pre=["s_waitcnt vmcnt(0)", "s_barrier", f"v_add_u32 v{VKA}, s40, v{VKL}"])
    item(1); item(2)
    a(f"v_add_u32 v{VVA}, s41, v{VL16}")
    a.lab("L2_it3")
    for p in range(3, 15): item(p)
    item(15, post=["s_add_u32 s40, s40, 16384", "s_and_b32 s40, s40, 0xffff", "s_add_u32 s41, s40, 0x10000", "s_add_u32 s39, s39, 1", "s_cmp_lt_u32 s39, 8"])
    if OPT["trip"] != "0":
        a("s_cselect_b32 s57, 1, 0")
        for n, tr in zip((2, 3, 4), OPT["trip"].split(",")):
            a(f"s_cmp_lg_u32 s39, {int(tr)+1}")
            a(f"s_cbranch_scc1 L2_t{n}")
            stamp(a, n)
            a.lab(f"L2_t{n}")
        a("s_cmp_lg_u32 s57, 0")
    a("s_cbranch_scc1 L2_loop")
    item(0, rd=False)
    item(1)
    item(2, qk=False, rd=False)
    a("s_nop 1")
    Sp = S[3]
    a(sm32(O[1], VB[1], Sp)); a(sm16(L[1], Sp)); a(sm32(O[1], VB[1]+4, Sp+8)); a(sm16(L[1], Sp+8))
    a("s_nop 4")
    if OPT["pst"] == "1": stamp(a, 5)
    if OPT["pst"] == "2":
        stamp(a, 3); a("s_memtime s[74:75]")
    for qt in range(2):
        a(f"v_mul_f32 v{VM}, 0, v{O[qt]}")
        for i in range(1, 16): a(f"v_fma_f32 v{VM}, v{O[qt]+i}, 0, v{VM}")
        a(f"v_add_f32 v{VM}, v{VM}, v{L[qt]}")
        a(f"v_mov_b32 v{VT}, {f2u(2.0**64):#x}")
        a(f"v_cmp_nlt_f32 vcc, v{VM}, v{VT}")
        a("s_nop 4")
        a(f"s_cbranch_vccnz L2_slow{qt}")
        a.lab(f"L2_fin{qt}")
        finish("s37" if qt == 0 else "s38", 0, S[1+qt], O[qt], L[qt])
    VOB, VOA, VWB, VWA, VST = 10, 11, 12, 16, 20
    F = [24, 56]; ACC = 88
    def Of(f, mt): return F[f] + 4*mt
    def Wf(f, nb): return F[f] + 16 + 4*nb
    def acc(mt, nb): return ACC + (mt*4 + nb)*4
    a("s_and_b32 s31, s24, 1")
    a("s_lshr_b32 s32, s24, 1")
    a("v_and_b32 v2, 15, v0")
    a("v_lshrrev_b32 v3, 4, v0")
    a("s_lshl_b32 s33, s31, 13")
    a("v_lshlrev_b32 v4, 4, v2")
    a("v_lshl_add_u32 v4, v3, 9, v4")
    a(f"v_add_u32 v{VOB}, s33, v4")
    a(f"v_add_u32 v{VOA}, {SLOTS[0]}, v{VOB}")
    a("v_bfe_u32 v4, v0, 2, 3")
    a("v_lshrrev_b32 v5, 5, v0")
    a("v_lshl_add_u32 v5, v5, 4, v4")
    a("v_lshlrev_b32 v5, 8, v5")
    a("v_and_b32 v6, 3, v0")
    a("v_lshl_add_u32 v5, v6, 3, v5")
    a("v_add_u32 v5, 16384, v5")
    a("s_lshl_b32 s33, s32, 2")
    a("v_xor_b32 v4, s33, v4")
    a(f"v_lshl_add_u32 v{VWB}, v4, 5, v5")
    for nb in range(1, 4): a(f"v_xor_b32 v{VWB+nb}, {nb*32}, v{VWB}")
    for nb in range(4): a(f"v_add_u32 v{VWA+nb}, {SLOTS[0]}, v{VWB+nb}")
    for i in range(64): a(f"v_mov_b32 v{ACC+i}, 0")
    for i in range(5): a(f"s_mov_b32 s{44+i}, {SLOTS[(i+1) % 5]}")
    a("s_mov_b32 s35, 0")
    srd(a, 16, 58, 8 << 20)
    a("s_lshl_b32 s40, s61, 19")
    a("s_lshl_b32 s41, s31, 18")
    a("s_add_u32 s40, s40, s41")
    a("s_lshl_b32 s41, s60, 11")
    a("s_add_u32 s40, s40, s41")
    a("s_lshl_b32 s41, s62, 8")
    a("s_add_u32 s40, s40, s41")
    a("s_lshl_b32 s41, s32, 7")
    a("s_add_u32 s40, s40, s41")
    def rdO(f, ks, mt): return [f"ds_read_b128 {vr(Of(f,mt))}, v{VOA} offset:{(mt>>1)*4096 + ks*2048 + (mt&1)*256}"]
    def rdW(f, ks, nb): return [f"ds_read_b64_tr_b16 {vr(Wf(f,nb),2)}, v{VWA+nb} offset:{ks*8192}",
                                f"ds_read_b64_tr_b16 {vr(Wf(f,nb)+2,2)}, v{VWA+nb} offset:{ks*8192+2048}"]
    def reads(f, ks):
        return [rdO(f, ks, 0)] + [rdW(f, ks, nb) for nb in range(4)] + [rdO(f, ks, mt) for mt in (1, 2, 3)]
    def mm(f):
        return [mfma16(acc(mt, nb), Wf(f, nb), Of(f, mt)) for mt in range(4) for nb in range(4)]
    a("s_waitcnt vmcnt(0)")
    if OPT["pst"] == "1": stamp(a, 2)
    a("s_barrier")
    if OPT["opf"] != "0":
        a("s_lshl_b32 s36, s60, 22")
        a("s_lshl_b32 s39, s61, 18")
        a("s_add_u32 s36, s36, s39")
        a("s_lshl_b32 s39, s24, 16")
        a("s_add_u32 s36, s36, s39")
        a("s_and_b32 s39, s62, 3")
        a("s_lshl_b32 s39, s39, 14")
        a("s_add_u32 s36, s36, s39")
        a(f"s_add_u32 s36, s36, {OF}")
        a("s_add_u32 s39, s36, 8192")
        a("v_lshlrev_b32 v21, 7, v0")
    a("s_barrier")
    if OPT["opf"] != "0":
        if OPT["opf"] == "2": a("s_sleep 3")
        a("buffer_load_dword v22, v21, s[8:11], s36 offen sc1")
        a("buffer_load_dword v23, v21, s[8:11], s39 offen sc1")
    a("s_barrier")
    if OPT["pst"] == "1": stamp(a, 3)
    flat = lambda g: [t for x in g for t in x]
    def block(f, rd, extra):
        M = mm(f)
        a("s_waitcnt lgkmcnt(3)")
        for i, m_ in enumerate(M):
            if i in (4, 8, 12): a(f"s_waitcnt lgkmcnt({min(15, (2 - (i//4 - 1)) + min(i, len(rd)))})")
            a(m_)
            if i < len(rd): a(rd[i])
            for t in extra.get(i, []): a(t)
    for t in flat(reads(0, 0)): a(t)
    a("s_branch L3_mid")
    a.raw(".p2align 6")
    a.lab("L3_loop")
    block(1, flat(reads(0, 0)), {})
    a.lab("L3_mid")
    block(0, flat(reads(1, 1)), {0: (["s_barrier"] if OPT["la"] == "4" else []) + ["s_mov_b32 s33, s44"], 15: (["s_waitcnt lgkmcnt(0)", "s_barrier"] if OPT["la"] == "5" else []), 1: ["s_mov_b32 s44, s45", "s_mov_b32 s45, s46"],
                                 2: ["s_mov_b32 s46, s47", "s_mov_b32 s47, s48"], 3: ["s_mov_b32 s48, s33"],
                                 5: ["s_add_u32 s35, s35, 1", "s_cmp_lt_u32 s35, 16"],
                                 9: [f"v_add_u32 v{VWA}, s33, v{VWB}"], 10: [f"v_add_u32 v{VWA+1}, s33, v{VWB+1}"],
                                 11: [f"v_add_u32 v{VWA+2}, s33, v{VWB+2}"], 12: [f"v_add_u32 v{VWA+3}, s33, v{VWB+3}"], 13: [f"v_add_u32 v{VOA}, s33, v{VOB}"]})
    a("s_cbranch_scc1 L3_loop")
    block(1, [], {})
    if OPT["pst"] == "1": stamp(a, 4)
    a("s_mul_i32 s41, s24, 9216")
    a("v_mul_u32_u24 v4, 144, v2")
    a("v_lshl_add_u32 v4, v3, 3, v4")
    a("v_add_u32 v4, s41, v4")
    a("v_lshrrev_b32 v5, 3, v0")
    a("v_mul_u32_u24 v6, 144, v5")
    a("v_and_b32 v7, 7, v0")
    a("v_lshl_add_u32 v6, v7, 4, v6")
    a("v_add_u32 v6, s41, v6")
    a("v_lshlrev_b32 v5, 12, v5")
    a(f"v_lshl_add_u32 v{VST}, v7, 4, v5")
    for mt in range(4):
        for nb in range(4):
            b = acc(mt, nb); t0 = F[0] + 2*(mt*4 + nb)
            a(f"v_cvt_pk_bf16_f32 v{t0}, v{b}, v{b+1}")
            a(f"v_cvt_pk_bf16_f32 v{t0+1}, v{b+2}, v{b+3}")
            a(f"ds_write_b64 v4, {vr(t0,2)} offset:{mt*16*144 + nb*32}")
        a(f"ds_read_b128 {vr(F[1]+8*mt)}, v6 offset:{mt*16*144}")
        a(f"ds_read_b128 {vr(F[1]+8*mt+4)}, v6 offset:{mt*16*144 + 8*144}")
        if mt >= 1:
            a("s_waitcnt lgkmcnt(6)")
            for h in range(2):
                a(f"buffer_store_dwordx4 {vr(F[1]+8*(mt-1)+4*h)}, v{VST}, s[16:19], s40 offen{OPT['st3']}")
                a(f"s_add_u32 s40, s40, {8*4096}")
    a("s_waitcnt lgkmcnt(0)")
    for h in range(2):
        a(f"buffer_store_dwordx4 {vr(F[1]+24+4*h)}, v{VST}, s[16:19], s40 offen{OPT['st3']}")
        a(f"s_add_u32 s40, s40, {8*4096}")
    dump(a, 0, "s24")
    a.lab("L2_end")
    a("s_endpgm")

    a.lab("L2_help")
    issued = []
    MC, MP, MP0, SC, SP, OB, LB = 12, 28, 44, 60, 76, [92, 112], [108, 128]
    QB = [132, 140]; KX = [148, 156, 164]; VX = [172, 180, 188]; VPF = 2
    a("s_lshl_b32 s34, s28, 12")
    a("s_add_u32 s35, s33, s34")
    a(f"s_add_u32 s36, s35, {VF-KF}")
    srd(a, 8, 98, WS_BYTES)
    def dma_stage(st):
        for base, so in ((0, "s35"), (65536, "s36")):
            a(f"s_add_u32 m0, s34, {base + (st % 4)*16384}")
            a("s_nop 0")
            for j in range(4):
                a(f"buffer_load_dwordx4 v{VL16}, s[8:11], {so} offen offset:{j*1024} sc1 lds")
            a(f"s_add_u32 {so}, {so}, 16384")
        issued.extend([f"s{st}"]*8)
    def late1():
        consts()
        a(f"s_add_u32 s28, s27, {4<<20}")
        a(f"s_add_u32 s29, s28, {KF}")
        a(f"s_add_u32 s30, s28, {VF}")
        a("s_cmp_eq_u32 s25, 0")
        a("s_cselect_b32 s32, 0, 2048")
        a("s_cselect_b64 s[44:45], 0, -1")
        a("s_sub_u32 s31, s29, s32")
        a("s_sub_u32 s32, s30, s32")
        a(f"s_add_u32 s37, s37, {4<<20}")
        a("s_add_u32 s38, s37, 0x10000")
        if PF:
            a("v_lshrrev_b32 v5, 3, v0")
            a("v_lshlrev_b32 v5, 11, v5")
            a("v_and_b32 v6, 7, v0")
            a(f"v_lshl_add_u32 v{VPF}, v6, 7, v5")
            a("v_cmp_gt_u32 vcc, 32, v0")
            a("v_mov_b32 v5, 0x7fffff00")
            a("s_and_b32 s47, s21, 15")
            a("s_lshl_b32 s47, s47, 17")
            a(f"v_cndmask_b32 v{VPF}, v5, v{VPF}, vcc")
            a("s_lshl_b32 s46, s34, 3")
            a("s_add_u32 s47, s47, s46")
            a("s_and_b32 s46, s20, 1")
            a("s_lshl_b32 s46, s46, 10")
            a("s_add_u32 s47, s47, s46")
    def pf():
        if PF:
            a(f"buffer_load_dword v{VPF+1}, v{VPF}, s[16:19], s47 offen")
            a("s_add_u32 s47, s47, 8192")
    VWD0, VWD1, VFL, VFD = 196, 197, 198, 199
    def dma_w(st):
        sl = SLOTS[st % 5] + 16384
        a(f"s_add_u32 m0, s34, {sl}")
        a("s_nop 0")
        a(f"buffer_load_dwordx4 v{VWD0}, s[16:19], s40 offen lds")
        a("s_add_u32 m0, m0, 1024")
        a("s_nop 0")
        a(f"buffer_load_dwordx4 v{VWD1}, s[16:19], s40 offen lds")
        a("s_add_u32 m0, m0, 1024")
        a(f"s_add_u32 s40, s40, {64*2048}")
        a(f"buffer_load_dwordx4 v{VWD0}, s[16:19], s41 offen lds")
        a("s_add_u32 m0, m0, 1024")
        a("s_nop 0")
        a(f"buffer_load_dwordx4 v{VWD1}, s[16:19], s41 offen lds")
        a(f"s_add_u32 s41, s41, {64*2048}")
    def dma_o(st):
        a(f"s_add_u32 m0, s34, {SLOTS[st % 5]}")
        a("s_nop 0")
        for j in range(4):
            a(f"buffer_load_dwordx4 v{VL16}, s[8:11], s39 offen offset:{j*1024}{OPT['osc']} lds")
        a("s_add_u32 s39, s39, 4096")
    def poll(tag, voff, soff, srd_="s[8:11]", val=1, cmp_="ne"):
        a("s_mov_b32 s43, 0")
        a.lab(tag)
        a(f"buffer_load_dword v{VFD}, v{voff}, {srd_}, {soff} offen sc1")
        a("s_add_u32 s43, s43, 1")
        a("s_waitcnt vmcnt(0)")
        a(f"v_cmp_{cmp_}_u32 vcc, {val}, v{VFD}")
        a("s_cmp_gt_u32 s43, 0x200000")
        a(f"s_cbranch_scc1 {tag}x")
        a("s_nop 2")
        a(f"s_cbranch_vccz {tag}x")
        a(f"s_sleep {OPT['slp']}")
        a(f"s_branch {tag}")
        a.lab(tag + "x")
    def lanemask(r, prev):
        m = 0
        for l in range(64):
            q = l & 31; hh = l >> 5
            key = kperm(8*(r//4) + 4*hh + r % 4)
            d = q - key + (32 if prev else 0)
            if 0 <= d <= 14 and d % 2 == 0: m |= 1 << l
        return m
    def masks(prev):
        k = 0
        a(f"v_mov_b32 v{VT}, {NEGBIG:#x}")
        for i in range(20): a(f"v_mov_b32 v{OB[prev]+i}, 0")
        for r in range(16):
            m = lanemask(r, prev)
            sp = 48 + 2*(k % 4); k += 1
            a(f"s_mov_b32 s{sp}, {m & 0xffffffff:#x}")
            a(f"s_mov_b32 s{sp+1}, {m >> 32:#x}")
            a(f"v_cndmask_b32 v{(MP if prev else MC)+r}, v{VT}, 0, s[{sp}:{sp+1}]")
            if prev: a(f"v_cndmask_b32 v{MP0+r}, v{VT}, v{MP+r}, s[44:45]")
    def bcomp(t):
        keep = a.l; a.l = []
        kc, kp, vc, vp = KX[t+1], KX[t], VX[t+1], VX[t]
        ob, lb = OB[t], LB[t]
        a(mfma(SC, kc, QB[t], MC)); a(mfma(SP, kp, QB[t], MP0 if t == 0 else MP))
        a(mfma(SC, kc+4, QB[t]+4)); a(mfma(SP, kp+4, QB[t]+4))
        a("s_nop 10")
        vals = [SC+r for r in range(16)] + [SP+r for r in range(16)]
        maxof(vals)
        for v in vals: a(f"v_sub_f32 v{v}, v{v}, v{VM}")
        for v in vals: a(f"v_exp_f32 v{v}, v{v}")
        a("s_nop 1")
        a(sm32(ob, vc, SC)); a(sm16(lb, SC)); a(sm32(ob, vc+4, SC+8)); a(sm16(lb, SC+8))
        a(sm32(ob, vp, SP)); a(sm16(lb, SP)); a(sm16(lb, SP+8)); a(sm32(ob, vp+4, SP+8))
        a("s_nop 12")
        finish("s37" if t == 0 else "s38", 0, QB[t], ob, lb)
        out = a.l; a.l = keep
        return out
    work = [] if "B" in OPT["k2x"] else bcomp(0) + bcomp(1)
    def cost(t): return 2 if "v_exp" in t else (3 if "mfma" in t else 1)
    tot = sum(cost(t) for t in work)
    slots = [int(c) for c in OPT["bslots"]]
    chunks = {b: [] for b in range(8)}
    acc_ = 0
    for t in work:
        chunks[slots[min(len(slots) - 1, acc_ * len(slots) // tot)]].append(t)
        acc_ += cost(t)
    def psetup():
        a("v_lshrrev_b32 v5, 4, v0")
        a("v_and_b32 v199, 15, v0")
        a(f"v_lshlrev_b32 v{VWD0}, 1, v5")
        a(f"v_xor_b32 v199, v199, v{VWD0}")
        a("v_lshlrev_b32 v199, 4, v199")
        a(f"v_lshl_add_u32 v{VWD0}, v5, 11, v199")
        a(f"v_xor_b32 v{VWD1}, 128, v{VWD0}")
        a(f"v_add_u32 v{VWD1}, 8192, v{VWD1}")
        a(f"v_and_b32 v{VFL}, 31, v0")
        a(f"v_lshlrev_b32 v{VFL}, {FSH}, v{VFL}")
        a("s_lshl_b32 s39, s60, 22")
        a("s_lshl_b32 s40, s61, 18")
        a("s_add_u32 s39, s39, s40")
        a("s_lshl_b32 s40, s34, 4")
        a("s_add_u32 s39, s39, s40")
        a(f"s_add_u32 s39, s39, {OF}")
        a("s_lshl_b32 s40, s34, 3")
        a("s_lshl_b32 s41, s62, 8")
        a("s_add_u32 s40, s40, s41")
        a("s_add_u32 s41, s40, 16384")
        a("s_lshl_b32 s42, s61, 1")
        a("s_lshr_b32 s43, s34, 13")
        a("s_add_u32 s42, s42, s43")
        a("s_add_u32 s42, s42, 8")
        a("s_lshr_b32 s43, s61, 1")
        a("s_cmp_eq_u32 s60, 0")
        a("s_cselect_b32 s42, s43, s42")
        a(f"s_lshl_b32 s42, s42, {5+FSH}")
        a(f"s_add_u32 s42, s42, {FL}")
        a("s_lshl_b32 s89, s25, 4")
        a("s_add_u32 s89, s89, s22")
        a("s_add_u32 s89, s89, 256")
        a(f"s_lshl_b32 s89, s89, {FSH}")
        a(f"s_add_u32 s89, s89, {FL}")
    def publish(base, tag=None):
        if tag:
            a("s_cmp_lg_u32 s24, 4")
            a(f"s_cbranch_scc1 {tag}")
        a("s_mov_b64 exec, 1")
        a(f"buffer_store_dword v204, v203, s[8:11], {base} offen sc1")
        a("s_mov_b64 exec, -1")
        if tag: a.lab(tag)
        else: issued.append("f")
    def wait_for(tags):
        idx_ = [i for i, x in enumerate(issued) if x in tags]
        if idx_: a(f"s_waitcnt vmcnt({min(63, len(issued) - 1 - max(idx_))})")
    a("v_mov_b32 v203, 0")
    a("v_mov_b32 v204, 1")
    a("v_and_b32 v205, 7, v0")
    a(f"v_lshlrev_b32 v205, {FSH}, v205")
    a("s_lshr_b32 s84, s22, 1")
    a(f"s_lshl_b32 s84, s84, {3+FSH}")
    a(f"s_add_u32 s84, s84, {FL + (1280 << FSH)}")
    def late2():
        a("s_lshr_b32 s85, s22, 1")
        a("s_lshl_b32 s85, s85, 5")
        a("s_lshr_b32 s43, s25, 1")
        a("s_add_u32 s85, s85, s43")
        a("s_add_u32 s85, s85, 1407")
        a(f"s_lshl_b32 s85, s85, {FSH}")
        a(f"s_add_u32 s85, s85, {FL}")
        a("v_and_b32 v207, 1, v0")
        a("v_and_b32 v206, 1, s44")
        a("v_xor_b32 v206, 1, v206")
        a("v_or_b32 v207, v207, v206")
        a(f"v_lshlrev_b32 v207, {FSH}, v207")
    a("s_waitcnt vmcnt(0) lgkmcnt(0)")
    a("v_mov_b32 v202, v8")
    srd(a, 16, 6, 2 << 20)
    a("s_cmp_eq_u32 s60, 0")
    a("s_cbranch_scc1 L2_hA")
    BF = min(7, slots[-1] + 1)
    QS = [int(c) for c in OPT["qs"]]
    QP = int(OPT["qp"]); BL = int(OPT["bl"])
    PX = 132
    ADP = OPT["adp"] == "1"
    for typ in ("B", "A"):
        T_ = "L2" + typ
        issued[:] = []
        if typ == "A":
            a.lab("L2_hA")
            a("s_barrier")
            publish("s95", T_ + "_p1")
        else:
            if OPT["df"] == "2":
                for n in range(12): a(f"ds_read_b128 {vr(PX+4*n)}, v201 offset:{n*1024}")
            if OPT["df"] == "0": publish("s95")
        a("s_cmp_lg_u32 s24, 5")
        a(f"s_cbranch_scc1 {T_}_qx")
        a("v_cmp_gt_u32 vcc, 0x100, v202")
        a("s_nop 4")
        a(f"s_cbranch_vccz {T_}_cx")
        poll(T_ + "_c", 203, "0", "s[80:83]", "0x100", "gt")
        if OPT["xslp"] != "0": a(f"s_sleep {OPT['xslp']}")
        poll(T_ + "_q", 205, "s84")
        if typ == "B": a("s_barrier")
        if OPT["hp0"] == "1": a("s_setprio 3")
        a("s_barrier")
        dma_stage(0)
        if OPT["hp0"] == "1": a("s_setprio 0")
        a("s_waitcnt vmcnt(0)")
        a("s_barrier")
        dma_stage(1); dma_stage(2)
        qst = []
        if typ == "B":
            for n, (seg, off) in enumerate(jobs if OPT["df"] != "0" else []):
                qst.append(f"buffer_store_dwordx4 {vr(PK1+4*n)}, v200, s[8:11], s{92+seg} offen offset:{off} sc1")
            for n, (seg, off) in enumerate(jobs if OPT["df"] == "2" else []):
                qst.append(f"buffer_store_dwordx4 {vr(PX+4*n)}, v200, s[8:11], s{86+seg} offen offset:{off} sc1")
            for sg in range(3): a(f"s_sub_u32 s{86+sg}, s{92+sg}, 0x20000")
        ORD = [2*x + h for x in [int(c) for c in OPT["xord"]] for h in range(2)]
        def sw(st):
            if typ == "A" and ADP:
                a(f"s_add_u32 s40, s87, {ORD[st]*64*2048}")
                a("s_add_u32 s41, s40, 16384")
            dma_w(st)
        def so(st):
            t = ORD[st]; tag = f"{T_}_n{st}"
            a(f"s_andn2_b32 s88, {3 << (2*t):#x}, s90")
            a(f"s_cbranch_scc0 {tag}x")
            a("s_mov_b32 s43, 0")
            a.lab(tag)
            a(f"buffer_load_dword v{VFD}, v{VFL}, s[8:11], s42 offen sc1")
            a("s_add_u32 s43, s43, 1")
            a("s_waitcnt vmcnt(0)")
            a(f"v_cmp_eq_u32 vcc, 1, v{VFD}")
            a("s_cmp_gt_u32 s43, 0x200000")
            a(f"s_cbranch_scc1 {tag}x")
            a("s_nop 2")
            a("s_mov_b32 s90, vcc_lo")
            a(f"s_andn2_b32 s88, {3 << (2*t):#x}, s90")
            a(f"s_cbranch_scc0 {tag}x")
            a(f"s_sleep {OPT['slp']}")
            a(f"s_branch {tag}")
            a.lab(tag + "x")
            a(f"s_add_u32 s39, s86, {t*4096}")
            dma_o(st); issued.extend([f"o{st}"]*4)
        def qstores(b):
            k = [i for i, x in enumerate(QS) if x == b]
            per = -(-len(qst) // len(QS))
            for i in k:
                for t in qst[i*per:(i+1)*per]:
                    a(t); issued.append("q")
        qstores(0)
        late1(); late2(); masks(0)
        for b in range(1, 8):
            wait_for([f"s{b}"])
            a("s_barrier")
            if b <= 5: dma_stage(b + 2)
            qstores(b)
            if b == QP and typ == "B" and OPT["df"] != "0":
                wait_for(["q"]); publish("s95")
            if b == 1:
                masks(1); psetup()
            if b == BL:
                poll(T_ + "_b", 207, "s85"); issued[:] = []
                for t in range(2): ld(QB[t], "s28", t*2048); ld(QB[t]+4, "s28", t*2048+1024)
                ld(KX[0], "s31", 0, VKL); ld(KX[0]+4, "s31", 1024, VKL)
                for t in range(2): ld(KX[t+1], "s29", t*2048, VKL); ld(KX[t+1]+4, "s29", t*2048+1024, VKL)
                ld(VX[0], "s32"); ld(VX[0]+4, "s32", 1024)
                for t in range(2): ld(VX[t+1], "s30", t*2048); ld(VX[t+1]+4, "s30", t*2048+1024)
                issued.extend(["B"]*16)
            if b == slots[0]: wait_for(["B"])
            if b == BF:
                wait_for(["st"]); publish("s89")
            for c in OPT['pfs']:
                if int(c) == b and PF:
                    pf(); issued.append("p")
            if b == 5 and OPT["tlb"] == "1":
                srd(a, 12, 58, 8 << 20)
                a("v_lshlrev_b32 v206, 21, v0")
                a("buffer_load_dword v206, v206, s[12:15], 0 offen"); issued.append("p")
            if b >= 6:
                if b == 6:
                    if typ == "A" and ADP:
                        a("s_mov_b32 s86, s39")
                        a("s_mov_b32 s87, s40")
                    sw(0); issued.extend(["w0"]*4)
                sw(b - 5); issued.extend([f"w{b-5}"]*4)
            for t in chunks[b]:
                a.l.append(t)
                if "buffer_store" in t: issued.append("st")
        if typ == "B":
            a(f"s_sleep {OPT['bslp']}")
            poll(T_ + "_o", VFL, "s42"); issued[:] = []
            for st in range(3):
                dma_o(st); issued.extend([f"o{st}"]*4)
            a("s_barrier")
            publish("s63", T_ + "_p3")
            a("s_barrier")
            wait_for(["o0"])
            a("s_barrier")
            for st in (3, 4):
                dma_w(st); dma_o(st); issued.extend([f"w{st}"]*4 + [f"o{st}"]*4)
        elif not ADP:
            a("s_barrier")
            publish("s63", T_ + "_p3")
            dma_w(3); dma_w(4)
            a("s_cmp_lg_u32 s24, 5")
            a(f"s_cbranch_scc1 {T_}_ox")
            if OPT["aslp"] != "0": a(f"s_sleep {OPT['aslp']}")
            poll(T_ + "_o", VFL, "s42"); issued[:] = []
            a("s_barrier")
            for st in range(2):
                dma_o(st); issued.extend([f"o{st}"]*4)
            wait_for(["o0"])
            a("s_barrier")
            for st in range(2, 5):
                dma_o(st); issued.extend([f"o{st}"]*4)
        else:
            a("s_mov_b32 s90, 0")
            a("s_barrier")
            publish("s63", T_ + "_p3")
            a("s_barrier")
            so(0); so(1)
            wait_for(["o0"])
            a("s_barrier")
            so(2)
            for st in (3, 4):
                sw(st); issued.extend([f"w{st}"]*4); so(st)
        for t in range(15):
            wait_for([f"o{t+1}", f"w{t+1}"])
            a("s_barrier")
            if t + 5 < 16:
                if typ == "A" and ADP:
                    sw(t + 5); issued.extend([f"w{t+5}"]*4); so(t + 5)
                else:
                    dma_w(t + 5); dma_o(t + 5); issued.extend([f"w{t+5}"]*4 + [f"o{t+5}"]*4)
        for n in (2, 3, 4, 5): stamp(a, n)
        dump(a, 0, "s24")
        a("s_endpgm")

    s0 = S[0]
    for qt in range(2):
        a.lab(f"L2_slow{qt}")
        a(f"s_add_u32 s36, s26, {VF}")
        a(f"v_mov_b32 v{VM}, 0xff800000")
        a("s_mov_b32 s39, 0")
        a.lab(f"L2_s1{qt}")
        a("s_add_u32 s41, s33, s39")
        ld(KB[0], "s41", 0, VKL); ld(KB[0]+4, "s41", 1024, VKL)
        a("s_waitcnt vmcnt(0)")
        a(mfma(s0, KB[0], Q[qt], "0")); a(mfma(s0, KB[0]+4, Q[qt]+4))
        a("s_nop 15")
        for i in range(0, 16, 2): a(f"v_max3_f32 v{VM}, v{VM}, v{s0+i}, v{s0+i+1}")
        a("s_add_u32 s39, s39, 2048")
        a(f"s_cmp_lt_u32 s39, {64*2048}")
        a(f"s_cbranch_scc1 L2_s1{qt}")
        a(f"v_mov_b32 v{VT}, v{VM}")
        xhalf_max()
        for i in range(16): a(f"v_sub_f32 v{NEG[qt]+i}, 0, v{VM}")
        for i in range(16): a(f"v_mov_b32 v{O[qt]+i}, 0")
        for i in range(4): a(f"v_mov_b32 v{L[qt]+i}, 0")
        a("s_mov_b32 s39, 0")
        a.lab(f"L2_s2{qt}")
        a("s_add_u32 s41, s33, s39")
        ld(KB[0], "s41", 0, VKL); ld(KB[0]+4, "s41", 1024, VKL)
        a("s_add_u32 s41, s36, s39")
        ld(VB[0], "s41"); ld(VB[0]+4, "s41", 1024)
        a("s_waitcnt vmcnt(0)")
        a(mfma(s0, KB[0], Q[qt], NEG[qt])); a(mfma(s0, KB[0]+4, Q[qt]+4))
        a("s_nop 15")
        for i in range(16): a(f"v_exp_f32 v{s0+i}, v{s0+i}")
        a("s_nop 1")
        a(sm32(O[qt], VB[0], s0)); a(sm16(L[qt], s0)); a(sm32(O[qt], VB[0]+4, s0+8)); a(sm16(L[qt], s0+8))
        a("s_nop 7")
        a("s_add_u32 s39, s39, 2048")
        a(f"s_cmp_lt_u32 s39, {64*2048}")
        a(f"s_cbranch_scc1 L2_s2{qt}")
        a("s_nop 15")
        a(f"s_branch L2_fin{qt}")
    return kd(N, NV, 102), f"; @launch kernel={N} grid=(256,1,1) block=(512,1,1) lds=163840"


def main():
    a = A()
    jobs = k1(a)
    desc, launch = k2(a, jobs)
    if OPT["single"] == "1": launch = "; @launch grid=(256,1,1) block=(512,1,1) lds=163840"
    hdr = open("cdna_kernels/" + NAME + ".s.ref").read().split("\n")
    top = [l for l in hdr if l.startswith(";") and "@launch" not in l and "Override" not in l and "grid=ceil" not in l]
    out = "\n".join(top) + "\n" + launch + "\n"
    out += '.amdgcn_target "amdgcn-amd-amdhsa--gfx950"\n.text\n' + a.text()
    out += '.section .rodata,"a"\n' + desc
    open(sys.argv[1], "w").write(out)

main()
```

```python
import struct, math, sys

NAME = "concat_heads__mha_block__sliding_local_dilated__prompt"
OPT = dict(st1=" sc1", st2=" sc1", st3=" sc1", dbg="0", pf1="1", pf3="1", ord1="0", dlt="4", nx="0", ph="8", pf0="2", pfm="255", xl="4", pfe="8", cpb="16", s2e="0", prio="1", k2x="", cpf="1", hprio="0", trip="0", k1x="", tlb="1", dk="0", spin="", bslots="345", pst="0", wfirst="1", slp="4", fsh="5", pfs="2345", opf="0", la="5", hp0="0", wp="1", cp="2", adp="0", xord="20361475", k3x="", mix="1", qs="0", qp="1", bl="2", xslp="0", single="0", df="1", rt="1", pub="3", od="3", pa="1", fm="g", aslp="0", bslp="0", osc=" sc1")
for a in sys.argv[2:]:
    k, v = a.split("=", 1)
    OPT[k] = v

def f2u(x): return struct.unpack("<I", struct.pack("<f", x))[0]
QSCALE = f2u(math.log2(math.e) / math.sqrt(32.0))
NEGBIG = f2u(-1e30)

QF, KF, VF, OF = 0, 8 << 20, 16 << 20, 24 << 20
WS_BYTES = 33 << 20

class A:
    def __init__(s): s.l = []
    def __call__(s, t): s.l.append("    " + t)
    def lab(s, t): s.l.append(t + ":")
    def raw(s, t): s.l.append(t)
    def text(s): return "\n".join(s.l) + "\n"

def vr(b, n=4): return f"v[{b}:{b+n-1}]"
def mfma(d, a, b, c=None):
    cc = vr(d, 16) if c is None else (c if isinstance(c, str) else vr(c, 16))
    return f"v_mfma_f32_32x32x16_bf16 {vr(d,16)}, {vr(a)}, {vr(b)}, {cc}"

def mfma16(d, a, b):
    return f"v_mfma_f32_16x16x32_bf16 {vr(d)}, {vr(a)}, {vr(b)}, {vr(d)}"

def spread(main, fill, start=0, every=1, per=1):
    out = []; k = 0
    for i, m in enumerate(main):
        out.append(m)
        if i >= start and (i - start) % every == 0:
            for _ in range(per):
                if k < len(fill):
                    out += fill[k]; k += 1
    while k < len(fill):
        out += fill[k]; k += 1
    return out

def interleave(main, fill, pattern):
    out = []; k = 0
    for i, m in enumerate(main):
        for _ in range(pattern[i] if i < len(pattern) else 0):
            if k < len(fill):
                out += fill[k]; k += 1
        out.append(m)
    while k < len(fill):
        out += fill[k]; k += 1
    return out

def kd(name, vgpr, sgpr=96):
    acc = (vgpr + 3) // 4 * 4
    return f""".p2align 6
.amdhsa_kernel {name}
  .amdhsa_next_free_vgpr {vgpr}
  .amdhsa_next_free_sgpr {sgpr}
  .amdhsa_accum_offset {acc}
  .amdhsa_group_segment_fixed_size 0
  .amdhsa_kernarg_size 72
  .amdhsa_user_sgpr_count 2
  .amdhsa_user_sgpr_kernarg_segment_ptr 1
  .amdhsa_system_sgpr_workgroup_id_x 1
.end_amdhsa_kernel
"""

_cp = [0]
DBG = OPT["dbg"] in ("1", "2", "3", "4")
def stamp(a, n):
    if DBG:
        a(f"{'s_memrealtime' if OPT['rt'] == '1' and n >= 2 else 's_memtime'} s[{64+2*n}:{65+2*n}]")
def rstamp(a, n):
    if DBG:
        a(f"s_memrealtime s[{64+2*n}:{65+2*n}]")
def dump(a, kidx, wave_sgpr, nst=8):
    if not DBG: return
    if OPT["dbg"] == "4":
        _cp[0] += 1
        sk = f"Ldbg{_cp[0]}"
        a("s_lshl_b32 s92, s2, 3")
        a(f"s_add_u32 s92, s92, {wave_sgpr}")
        a(f"s_cmp_lg_u32 s92, {OPT['dk']}")
        a(f"s_cbranch_scc1 {sk}")
        a("s_waitcnt vmcnt(0)")
        a("s_memrealtime s[78:79]")
        a("s_waitcnt lgkmcnt(0)")
        a(f"s_sub_u32 s93, s{64+2*int(OPT['spin'])}, s66")
        a.lab(sk + "s")
        a("s_memrealtime s[62:63]")
        a("s_waitcnt lgkmcnt(0)")
        a("s_sub_u32 s62, s62, s78")
        a("s_cmp_lt_u32 s62, s93")
        a(f"s_cbranch_scc1 {sk}s")
        a.lab(sk)
        return
    if OPT["dbg"] == "2":
        if kidx != int(OPT["dk"]): return
        _cp[0] += 1
        sk = f"Ldbg{_cp[0]}"
        a("s_load_dwordx2 s[88:89], s[0:1], 56")
        a("s_waitcnt lgkmcnt(0) vmcnt(0)")
        a(f"s_memtime s[{64+2*(nst-2)}:{65+2*(nst-2)}]")
        a(f"s_memrealtime s[{64+2*(nst-1)}:{65+2*(nst-1)}]")
        a("s_waitcnt lgkmcnt(0)")
        a(f"s_sub_u32 s88, s88, {512*kidx}")
        a("s_subb_u32 s89, s89, 0")
        a("s_mov_b32 s90, 64")
        a("s_mov_b32 s91, 0x00020000")
        a("s_lshl_b32 s92, s2, 3")
        a(f"s_add_u32 s92, s92, {wave_sgpr}")
        a("s_cmp_eq_u32 s92, 805")
        a("s_cselect_b32 s93, 32, 0x1000")
        a("s_cmp_eq_u32 s92, 0")
        a("s_cselect_b32 s92, 0, s93")
        a("v_mov_b32 v2, 0")
        for n in range(2, nst):
            base = 64 if n < nst-1 else 66
            a(f"s_sub_u32 s93, s{64+2*n}, s{base}")
            a("v_mov_b32 v3, s93")
            a(f"buffer_store_dword v3, v2, s[88:91], s92 offen offset:{4*(n-2)}")
            a("s_nop 1")
        return
    a("s_load_dwordx2 s[88:89], s[0:1], 64")
    a("s_waitcnt lgkmcnt(0) vmcnt(0)")
    a(f"s_memtime s[{64+2*(nst-2)}:{65+2*(nst-2)}]")
    a(f"s_memrealtime s[{64+2*(nst-1)}:{65+2*(nst-1)}]")
    a("s_waitcnt lgkmcnt(0)")
    a("s_mov_b32 s90, 0x8000000")
    a("s_mov_b32 s91, 0x00020000")
    a("s_lshl_b32 s92, s2, 3")
    a(f"s_add_u32 s92, s92, {wave_sgpr}")
    a("s_lshl_b32 s92, s92, 6")
    a(f"s_add_u32 s92, s92, {(64+kidx) << 20}")
    a("v_mov_b32 v2, 0")
    for n in range(nst):
        a(f"v_mov_b32 v3, s{64+2*n}")
        a(f"buffer_store_dword v3, v2, s[88:91], s92 offen offset:{4*n}")
        a("s_nop 1")
    if OPT["dbg"] == "3" and kidx == 2:
        _cp[0] += 1
        sk = f"Ldbg{_cp[0]}"
        a("s_lshl_b32 s92, s2, 3")
        a(f"s_add_u32 s92, s92, {wave_sgpr}")
        a(f"s_cmp_lg_u32 s92, {OPT['dk']}")
        a(f"s_cbranch_scc1 {sk}")
        a(f"s_add_u32 s88, s88, {(64 << 20) + int(OPT['dk'])*64}")
        a("s_addc_u32 s89, s89, 0")
        a("s_load_dwordx8 s[40:47], s[88:89], 0")
        a("s_add_u32 s88, s88, 0x100000")
        a("s_addc_u32 s89, s89, 0")
        a("s_load_dwordx8 s[48:55], s[88:89], 0")
        a("s_load_dwordx2 s[88:89], s[0:1], 56")
        a("s_waitcnt lgkmcnt(0)")
        a("s_mov_b32 s90, 64")
        k = 0
        for b, st in ((40, 1), (48, 1), (64, 2)):
            for n, ref in ((3, b), (4, b), (6, b), (1, 41), (7, 41)):
                a(f"s_sub_u32 s93, s{b+st*n}, s{ref}")
                a("v_mov_b32 v3, s93")
                a(f"buffer_store_dword v3, v2, s[88:91], 0 offen offset:{4*k}")
                a("s_nop 1")
                k += 1
        if OPT["spin"] != "":
            q, mult, unit = OPT["spin"].split(",")
            x, y = q.split("-")
            a(f"s_sub_u32 s93, s{x}, s{y}")
            a(f"s_mul_i32 s93, s93, {mult}")
            ins = "s_memrealtime" if unit == "r" else "s_memtime"
            a(f"{ins} s[60:61]")
            a("s_waitcnt lgkmcnt(0)")
            a.lab(sk + "s")
            a(f"{ins} s[62:63]")
            a("s_waitcnt lgkmcnt(0)")
            a("s_sub_u32 s62, s62, s60")
            a("s_cmp_lt_u32 s62, s93")
            a(f"s_cbranch_scc1 {sk}s")
        a.lab(sk)

def codepf(a, start, end, vtmp, lane="v0"):
    if OPT["cpf"] != "1": return
    _cp[0] += 1
    l = f"Lcp{_cp[0]}"
    a("s_getpc_b64 s[56:57]")
    a.lab(l)
    a(f"s_add_u32 s56, s56, {start}-{l}")
    a(f"s_addc_u32 s57, s57, ({start}-{l})>>32")
    a(f"v_lshlrev_b32 v{vtmp}, 7, {lane}")
    a(f"v_min_u32 v{vtmp}, ({end})-({start})-4, v{vtmp}")
    a(f"global_load_dword v{vtmp}, v{vtmp}, s[56:57]")

def head(a, name):
    a.raw(f".globl {name}\n.p2align 8\n.type {name},@function\n{name}:")

def srd(a, d, base, nbytes):
    a(f"s_mov_b32 s{d}, s{base}")
    a(f"s_mov_b32 s{d+1}, s{base+1}")
    a(f"s_mov_b32 s{d+2}, {nbytes:#x}")
    a(f"s_mov_b32 s{d+3}, 0x00020000")

def place(main, fill, per=2, start=0):
    out = []; k = 0
    for i, m in enumerate(main):
        out.append(m)
        if i >= start:
            out += fill[k:k+per]; k += per
    out += fill[k:]
    return out

def sched(M, rd, d, post, late, late_dma=False):
    n = len(M)
    gaps = [[] for _ in range(n)]
    if late_dma: rg = list(range(len(rd))); dg = [len(rd) + 2*k for k in range(len(d))]
    else:
        dg = [1 + 4*k for k in range(len(d))]; rg = [g for g in range(n) if g not in dg][:len(rd)]
    for g, t in zip(rg, rd): gaps[g].append(t)
    for g, (m_, l_) in zip(dg, d):
        gaps[g-1].append(m_); gaps[g].append(l_)
    def runs(ops):
        out = []
        for t in ops:
            if t.startswith("s_cselect") : out[-1].append(t)
            else: out.append([t])
        return out
    def put(run, g0):
        g = g0
        while g < n - 1 and len(gaps[g]) + len(run) > 3: g += 1
        gaps[g] += run
        return g
    g = (dg[len(d)-1] if d else 0)
    for r in runs(post): g = put(r, g)
    g = 0
    for r in runs(late):
        if r[0].startswith("v_"): g = max(g, rg[-1] if rg else 0)
        g = put(r, g)
    seq = []
    for i, m_ in enumerate(M):
        seq.append(m_); seq += gaps[i]
    return seq

FL = 32 << 20
FSH = int(OPT['fsh'])
PK1 = 208

def k1(a):
    N = NAME + "_kernel"
    head(a, N)
    XS, WS, WSL = 32768, 98304, 12288
    VD, VXB, VXA, VWB, VWA, VST, VPX, VPW, VPD = 10, 18, 20, 22, 24, 26, 27, 28, 29
    F = [32, 72]; ACC = 112; NV = 208
    PF = OPT["pf1"] == "1"
    DLT = int(OPT["dlt"]); PST = 2
    def A_(f, mt): return F[f] + 4*mt
    def B_(f, nb): return F[f] + 16 + 4*nb
    def acc(mt, nb): return ACC + (mt*6 + nb)*4
    a("s_cmp_ge_u32 s2, 256")
    a("s_cbranch_scc1 L2_end")
    stamp(a, 0); rstamp(a, 1)
    a("s_and_b32 s20, s2, 7")
    a("s_lshr_b32 s21, s2, 3")
    MIX = OPT["mix"] == "1"
    if MIX: a("s_lshr_b32 s22, s21, 4")
    else: a("s_lshr_b32 s22, s20, 2")
    a("s_mul_i32 s23, s22, 24")
    a("s_load_dwordx4 s[4:7], s[0:1], s23")
    a("s_load_dwordx4 s[96:99], s[0:1], 56")
    a("s_load_dwordx4 s[88:91], s[0:1], 0")
    a("v_lshrrev_b32 v1, 6, v0")
    a("v_and_b32 v0, 63, v0")
    a("v_readfirstlane_b32 s26, v1")
    a("s_and_b32 s24, s20, 1")
    a("s_lshl_b32 s24, s24, 2")
    a("s_and_b32 s25, s21, 3")
    a("s_add_u32 s24, s24, s25")
    if MIX:
        a("s_lshr_b32 s25, s20, 1")
        a("s_xor_b32 s53, s25, s22")
        a("s_lshl_b32 s25, s53, 2")
        a("s_bfe_u32 s27, s21, 0x20002")
    else:
        a("s_bfe_u32 s25, s20, 0x10001")
        a("s_lshl_b32 s25, s25, 3")
        a("s_lshr_b32 s27, s21, 2")
    a("s_add_u32 s25, s25, s27")
    a("s_and_b32 s31, s26, 3")
    a("s_lshr_b32 s32, s26, 2")
    PH = OPT["ph"]
    if PH == "0": a("s_mov_b32 s44, 0")
    elif PH == "1":
        a("s_lshl_b32 s44, s20, 1")
    elif PH == "2":
        a("s_lshl_b32 s44, s20, 1")
        a("s_and_b32 s45, s21, 1")
        a("s_add_u32 s44, s44, s45")
    elif PH in ("6", "7", "8"):
        a("s_lshr_b32 s54, s20, 1")
        a("s_lshl_b32 s54, s54, 2")
        a("s_and_b32 s45, s20, 1")
        a("s_mul_i32 s45, s45, 10")
        a("s_add_u32 s54, s54, s45")
        a("s_and_b32 s54, s54, 15")
        if PH == "6": a("s_and_b32 s45, s21, 1")
        elif PH == "7": a("s_mov_b32 s45, s22")
        else: a("s_mov_b32 s45, 0")
        a("s_add_u32 s44, s54, s45")
    elif PH == "5":
        a("s_lshl_b32 s44, s20, 1")
        a("s_add_u32 s44, s44, s22")
    elif PH == "3":
        a("s_lshl_b32 s44, s22, 1")
        a("s_and_b32 s45, s20, 1")
        a("s_add_u32 s44, s44, s45")
        a("s_lshl_b32 s44, s44, 2")
        a("s_and_b32 s45, s21, 3")
        a("s_add_u32 s44, s44, s45")
    elif PH == "4":
        a("s_lshl_b32 s44, s22, 1")
        a("s_and_b32 s45, s20, 1")
        a("s_add_u32 s44, s44, s45")
        a("s_lshl_b32 s44, s44, 2")
    a("v_lshrrev_b32 v2, 3, v0")
    a("v_and_b32 v3, 7, v0")
    a("v_lshrrev_b32 v4, 4, v0")

    def rdA(f, ks, mt): return [f"ds_read_b128 {vr(A_(f,mt))}, v{VXA+ks} offset:{mt*2048}"]
    def rdB(f, nb):
        o = (nb//2)*4096
        return [f"ds_read_b64_tr_b16 {vr(B_(f,nb),2)}, v{VWA+nb%2} offset:{o}",
                f"ds_read_b64_tr_b16 {vr(B_(f,nb)+2,2)}, v{VWA+nb%2} offset:{o+512}"]
    def reads(f, ks):
        r = rdB(f, 0)
        for mt in range(4): r += rdA(f, ks, mt)
        for nb in range(1, 6): r += rdB(f, nb)
        return r
    def mm(f):
        r = []
        for nb in range(6):
            for mt in range(4):
                if nb < 4: r.append(mfma16(acc(mt, nb), B_(f, nb), A_(f, mt)))
                else:      r.append(mfma16(acc(mt, nb), A_(f, mt), B_(f, nb)))
        return r

    def common_setup():
        srd(a, 16, 98, WS_BYTES)
        a("v_and_b32 v2, 15, v0")
        a("v_lshrrev_b32 v3, 4, v0")
        a("v_bfe_u32 v4, v0, 1, 3")
        a("s_lshl_b32 s33, s31, 13")
        a("v_lshlrev_b32 v5, 7, v2")
        a("v_add_u32 v5, s33, v5")
        a("v_xor_b32 v6, v3, v4")
        a(f"v_lshl_add_u32 v{VXB}, v6, 4, v5")
        a(f"v_xor_b32 v{VXB+1}, 64, v{VXB}")
        a(f"v_mov_b32 v{VXA}, v{VXB}")
        a(f"v_mov_b32 v{VXA+1}, v{VXB+1}")
        a("v_bfe_u32 v4, v0, 2, 2")
        a("v_lshl_add_u32 v4, v3, 3, v4")
        a("v_lshlrev_b32 v4, 7, v4")
        a("v_and_b32 v6, 3, v0")
        a("v_lshl_add_u32 v4, v6, 3, v4")
        a("v_bfe_u32 v5, v0, 3, 2")
        a("s_lshl_b32 s33, s32, 1")
        a("v_xor_b32 v5, s33, v5")
        a(f"v_lshl_add_u32 v{VWB}, v5, 5, v4")
        a(f"v_xor_b32 v{VWB+1}, 32, v{VWB}")
        a(f"v_add_u32 v{VWA}, {WS}, v{VWB}")
        a(f"v_add_u32 v{VWA+1}, {WS}, v{VWB+1}")
        a("v_lshlrev_b32 v4, 4, v2")
        a(f"v_lshl_add_u32 v{VST}, v3, 9, v4")
        for i in range(96): a(f"v_mov_b32 v{ACC+i}, 0")
        a("s_lshl_b32 s40, s22, 22")
        a("s_lshl_b32 s41, s25, 1")
        a("s_add_u32 s41, s41, s32")
        a("s_lshl_b32 s41, s41, 17")
        a("s_add_u32 s40, s40, s41")
        a("s_lshl_b32 s41, s24, 14")
        a("s_add_u32 s40, s40, s41")
        a("s_lshl_b32 s41, s31, 12")
        a("s_add_u32 s40, s40, s41")
        a(f"s_add_u32 s41, s40, {KF}")
        a(f"s_add_u32 s42, s40, {VF}")
        a(f"s_mov_b32 s43, {QSCALE:#x}")
        a("s_lshl_b32 s95, s25, 3")
        a("s_add_u32 s95, s95, s24")
        a("s_lshl_b32 s94, s95, 2")
        a("s_add_u32 s94, s94, s31")
        a("s_add_u32 s94, s94, 1408")
        a("s_add_u32 s95, s95, 1280")
        a("s_cmp_eq_u32 s22, 0")
        a("s_cselect_b32 s95, s95, s94")
        a(f"s_lshl_b32 s95, s95, {FSH}")
        a(f"s_add_u32 s95, s95, {FL}")
        srd(a, 80, 96, 256)
        a("s_mov_b32 s33, 0")
        a(f"s_mov_b32 s34, {WS}")
        a("s_mov_b32 s35, 0")

    wupd = [f"s_add_u32 s34, s34, {WSL}", f"s_cmp_eq_u32 s34, {WS+5*WSL}", f"s_cselect_b32 s34, {WS}, s34",
            f"v_add_u32 v{VWA}, s34, v{VWB}", f"v_add_u32 v{VWA+1}, s34, v{VWB+1}", "s_add_u32 s35, s35, 1"]
    xupd = [f"s_add_u32 s33, s33, {XS}", f"s_cmp_eq_u32 s33, {3*XS}", "s_cselect_b32 s33, 0, s33",
            f"v_add_u32 v{VXA}, s33, v{VXB}", f"v_add_u32 v{VXA+1}, s33, v{VXB+1}"]

    def mix(dma, other):
        out = []; o = list(other)
        for m, l in dma:
            out.append(m)
            out.append(o.pop(0) if o else "s_nop 0")
            out.append(l)
        return out + o

    def event(tag):
        a.lab(tag)
        if OPT["cpf"] == "1":
            a("s_cmp_ge_u32 s51, 0x100")
            a(f"s_cbranch_scc1 {tag}c")
        a("s_add_u32 s48, s54, s51")
        a("s_and_b32 s48, s48, 15")
        a("s_mul_i32 s48, s48, s52")
        a("s_add_u32 s48, s48, s50")
        a(f"buffer_load_dword v{VPD}, v{VPW}, s[84:87], s48 offen")
        a(f"s_add_u32 s51, s51, {PST}")
        a("s_lshl_b32 s49, s51, 1")
        a("s_max_u32 s49, s49, s39")
        a("s_sub_u32 s49, s49, s39")
        a(f"s_cmp_lt_u32 s51, {OPT['pfe']}")
        a(f"s_cbranch_scc1 {tag}r")
        a("s_mov_b32 s49, 0x7fff")
        if OPT["cpf"] == "1":
            a("s_cmp_eq_u32 s31, 3")
            a(f"s_cselect_b32 s49, {OPT['cpb']}, s49")
            a("s_mov_b32 s51, 0x100")
        a(f"s_branch {tag}r")
        if OPT["cpf"] == "1":
            a.lab(tag + "c")
            a("s_mov_b32 s49, 0x7fff")
            codepf(a, "L1_epi", "L1_epi+8192", 31)
            codepf(a, "L1_epi+8192", "L1_epi+16384", 9)
            codepf(a, "L1_epi+16384", "L2_slow0", 8)
            a(f"s_branch {tag}r")

    a("s_cmp_lg_u32 s32, 0")
    a("s_cbranch_scc1 L1_W")
    for cls in ("X", "W"):
        P = "L1" + cls
        if cls == "X":
            a("v_lshlrev_b32 v5, 11, v2")
            a("v_xor_b32 v6, v3, v4")
            a("v_lshl_add_u32 v6, v6, 4, v5")
            a("v_xor_b32 v7, 64, v6")
            a(f"v_mov_b32 v{VD}, v6")
            a(f"v_add_u32 v{VD+1}, 16384, v7")
            a(f"v_add_u32 v{VD+2}, 32768, v6")
            a(f"v_add_u32 v{VD+3}, 49152, v7")
            a("s_lshl_b32 s27, s24, 19")
            a("s_lshl_b32 s28, s31, 16")
            a("s_add_u32 s45, s27, s28")
            a("s_lshl_b32 s46, s44, 7")
            a("s_add_u32 s27, s45, s46")
            a("s_add_u32 s28, s27, 0x40000")
            a("s_lshl_b32 s29, s31, 12")
            a(f"s_add_u32 s30, s29, {6*16384}")
            a("s_waitcnt lgkmcnt(0)")
            if OPT["s2e"] == "1": stamp(a, 2)
            srd(a, 8, 4, 4 << 20)
            def grp(par):
                so = "s27" if par == 0 else "s28"
                d = [(f"s_add_u32 m0, s29, {j*1024}", f"buffer_load_dwordx4 v{VD+j}, s[8:11], {so} offen lds") for j in range(4)]
                post = ["s_add_u32 s29, s29, 16384"]
                if par == 0: post += ["s_add_u32 s46, s46, 128", "s_and_b32 s46, s46, 0x7ff", "s_add_u32 s27, s45, s46"]
                if par == 1: post += ["s_add_u32 s28, s27, 0x40000", "s_cmp_eq_u32 s29, s30", f"s_cselect_b32 s38, {6*16384}, 0", "s_sub_u32 s29, s29, s38"]
                return d, post
            NG = 4
        else:
            a.lab("L1_W")
            if OPT["cpf"] == "1":
                a("s_cmp_lg_u32 s26, 7")
                a("s_cbranch_scc1 L1_nocp")
                codepf(a, N, "L1_epi", VPD)
                a.lab("L1_nocp")
            a("v_mul_u32_u24 v5, 6144, v2")
            a("v_and_b32 v6, 1, v4")
            a("v_lshlrev_b32 v6, 1, v6")
            a("s_and_b32 s33, s26, 1")
            a("s_lshl_b32 s33, s33, 2")
            a("v_xor_b32 v6, v3, v6")
            a("v_xor_b32 v6, s33, v6")
            a(f"v_lshl_add_u32 v{VD}, v6, 4, v5")
            a(f"v_add_u32 v{VD+1}, 2048, v{VD}")
            a(f"v_add_u32 v{VD+2}, 4096, v{VD}")
            a("s_lshl_b32 s27, s25, 7")
            a(f"s_mul_i32 s28, s31, {8*6144}")
            a("s_add_u32 s27, s27, s28")
            a(f"s_mul_i32 s28, s44, {64*6144}")
            a("s_add_u32 s27, s27, s28")
            a("s_lshl_b32 s29, s31, 10")
            a(f"s_add_u32 s29, s29, {WS}")
            a(f"s_add_u32 s30, s29, {5*WSL}")
            a("s_waitcnt lgkmcnt(0)")
            if OPT["s2e"] == "1": stamp(a, 2)
            srd(a, 12, 6, 6 << 20)
            def pfsetup():
                a("s_and_b32 s47, s21, 7")
                a("s_bfe_u32 s51, s21, 0x10003")
                a(f"s_add_u32 s51, s51, {OPT['pf0']}")
                a("v_lshlrev_b32 v5, 11, v0")
                a("v_lshrrev_b32 v6, 2, v0")
                a("v_mul_u32_u24 v6, 6144, v6")
                a("v_and_b32 v7, 3, v0")
                a("v_lshl_add_u32 v6, v7, 7, v6")
                a("v_mul_u32_u24 v7, 6144, v0")
                a("s_cmp_lt_u32 s47, 4")
                a("s_cselect_b64 s[56:57], -1, 0")
                a("s_cselect_b32 s84, s88, s90")
                a("s_cselect_b32 s85, s89, s91")
                a(f"s_mov_b32 s86, {6<<20:#x}")
                a(f"s_cselect_b32 s86, {4<<20:#x}, s86")
                a("s_mov_b32 s87, 0x00020000")
                a(f"s_mov_b32 s52, {64*6144}")
                a("s_cselect_b32 s52, 128, s52")
                a(f"v_cndmask_b32 v{VPW}, v6, v5, s[56:57]")
                a("s_and_b32 s48, s20, 1")
                a("s_lshl_b32 s48, s48, 2")
                a("s_add_u32 s48, s48, s47")
                a("s_lshl_b32 s48, s48, 2")
                a("s_add_u32 s48, s48, s31")
                a("s_lshl_b32 s48, s48, 17")
                a("s_lshr_b32 s50, s20, 1")
                a("s_lshl_b32 s50, s50, 9")
                a("s_and_b32 s55, s47, 3")
                a("s_lshl_b32 s55, s55, 11")
                a("s_add_u32 s50, s50, s55")
                a(f"s_mul_i32 s55, s31, {16*6144}")
                a("s_add_u32 s50, s50, s55")
                a("s_cmp_lt_u32 s47, 4")
                a("s_cselect_b32 s50, s48, s50")
                a("s_and_b32 s48, s53, 2")
                a("s_lshl_b32 s48, s48, 9")
                a("s_lshl_b32 s55, s31, 11")
                a("s_add_u32 s48, s48, s55")
                a("s_add_u32 s48, s48, 384")
                a("s_bitcmp1_b32 s53, 0")
                a("s_cselect_b32 s90, s90, s6")
                a("s_cselect_b32 s91, s91, s7")
                a("s_cmp_eq_u32 s47, 7")
                a("s_cselect_b64 s[56:57], -1, 0")
                a("s_cselect_b32 s50, s48, s50")
                a("s_cselect_b32 s84, s90, s84")
                a("s_cselect_b32 s85, s91, s85")
                a("s_cselect_b32 s55, 3, 0")
                a(f"s_cselect_b32 s39, {4+DLT+int(OPT['xl'])}, {4+DLT}")
                a(f"v_cndmask_b32 v{VPW}, v{VPW}, v7, s[56:57]")
                a("s_and_b32 s48, s55, s31")
                a("s_cmp_eq_u32 s48, 3")
                a("s_cselect_b32 s86, 0, s86")
                if OPT["pfm"] != "255":
                    a(f"s_lshr_b32 s48, {OPT['pfm']}, s47")
                    a("s_and_b32 s48, s48, 1")
                    a("s_cselect_b32 s86, s86, 0")
                a("s_lshl_b32 s49, s51, 1")
                a("s_max_u32 s49, s49, s39")
                a("s_sub_u32 s49, s49, s39")
                a("s_cmp_eq_u32 s22, 0")
                a("s_cselect_b32 s49, 0x7fff, s49")
            def grp(par):
                d = [(f"s_add_u32 m0, s29, {g*4096}", f"buffer_load_dwordx4 v{VD+g}, s[12:15], s27 offen lds") for g in range(3)]
                post = [f"s_add_u32 s27, s27, {32*6144}", f"s_add_u32 s29, s29, {WSL}",
                        "s_cmp_eq_u32 s29, s30", f"s_cselect_b32 s38, {5*WSL}, 0", "s_sub_u32 s29, s29, s38"]
                if par == 1: post += [f"s_cmp_ge_u32 s27, {6<<20:#x}", f"s_cselect_b32 s38, {6<<20:#x}, 0", "s_sub_u32 s27, s27, s38"]
                return d, post
            NG = 3
        def emit_grp(par):
            d, post = grp(par)
            for t in mix(d, []) + post: a(t)
        first = 2 if cls == "X" else 1
        for n in range(first): emit_grp(n & 1)
        common_setup()
        if cls == "W" and PF: pfsetup()
        if cls == "X":
            a(f"v_lshlrev_b32 v8, {FSH}, v0")
            a("v_mov_b32 v9, 0")
            a(f"s_lshl_b32 s47, s2, {3+FSH}")
            a(f"s_add_u32 s47, s47, {FL}")
            a("s_cmp_eq_u32 s31, 0")
            a("s_cselect_b64 exec, 0xff, 0")
            a("s_cbranch_execz L1_nofl")
            a("buffer_store_dword v9, v8, s[16:19], s47 offen sc1")
            a.lab("L1_nofl")
            a("s_mov_b64 exec, -1")
        for n in range(first, 4): emit_grp(n & 1)
        npf = 0
        if cls == "W" and PF:
            a("s_cmp_eq_u32 s49, 0")
            a(f"s_cbranch_scc1 {P}_e0")
            a.lab(f"{P}_e0r")
        a(f"s_waitcnt vmcnt({(4-first)*NG + npf})")
        a("s_barrier")
        if cls == "X":
            a("v_mov_b32 v8, 1")
            a("s_mul_i32 s47, s2, 43")
            a("s_lshr_b32 s47, s47, 10")
            a("s_lshl_b32 s47, s47, 1")
            a("s_add_u32 s47, s47, 2")
            a("s_cmp_eq_u32 s31, 0")
            a("s_cselect_b32 s47, s47, 0x7fff")
        d, post = grp(0)
        for t in reads(0, 0) + mix(d, []) + post + wupd: a(t)
        if cls == "W": a(f"s_waitcnt vmcnt({3*NG + npf})")
        a("s_waitcnt lgkmcnt(0)")
        a("s_barrier")
        if cls == "W" and OPT["wp"] == "1": a("s_setprio 1")
        a(f"s_branch {P}_odd")
        a.raw(".p2align 6")
        a.lab(f"{P}_loop")
        for par in range(2):
            if par == 1: a.lab(f"{P}_odd")
            d, post = grp(par)
            rd = reads(par, par)
            tail = list(post) + wupd
            if par == 1:
                tail += xupd
            X = OPT["k1x"]
            if "d" in X: d = []
            if "r" in X: rd = []
            fill = rd[:8] + mix(d, rd[8:]) + tail
            if "o" not in X:
                late = [t for t in tail if t not in post]
                late = [t for t in late if not t.startswith("v_")] + [t for t in late if t.startswith("v_")]
                seq = sched(mm(1-par), rd, d, list(post), late, late_dma=("l" in X))
            elif "1" in X: seq = place(mm(1-par), fill, 2, 2)
            elif "3" in X: seq = place(mm(1-par), fill, 3, 0)
            elif "f" in X: seq = rd[:4] + place(mm(1-par), fill[4:], 2, 0)
            else: seq = place(mm(1-par), fill, 2, 0)
            if "p" in X: seq = ["s_setprio 1"] + seq[:len(seq)-8] + ["s_setprio 0"] + seq[len(seq)-8:]
            if "P" in X and cls == "W": seq = ["s_setprio 1"] + seq
            for t in seq: a(t)
            if cls == "W" and PF:
                a("s_cmp_ge_u32 s35, s49")
                a(f"s_cbranch_scc1 {P}_e{par+1}")
                a.lab(f"{P}_e{par+1}r")
            if par == 1 and cls == "X":
                a("s_cmp_eq_u32 s35, s47")
                a("s_cbranch_scc1 L1_at")
                a.lab("L1_atr")
            if par == 1: a("s_cmp_lt_u32 s35, 28")
            if cls == "W": a(f"s_waitcnt vmcnt({3*NG}) lgkmcnt(0)")
            elif par == 1: a(f"s_waitcnt vmcnt({2*NG}) lgkmcnt(0)")
            else: a("s_waitcnt lgkmcnt(0)")
            if "b" not in X and not ("h" in X and par == 0): a("s_barrier")
        if OPT["trip"] == "1":
            a("s_cselect_b32 s62, 1, 0")
            a("s_cmp_lg_u32 s35, 4")
            a(f"s_cbranch_scc1 {P}_t1")
            stamp(a, 2)
            a.lab(f"{P}_t1")
            a("s_cmp_lg_u32 s62, 0")
        a(f"s_cbranch_scc1 {P}_loop")
        a("s_branch L1_epi")
        if cls == "W" and PF:
            for k in range(3): event(f"{P}_e{k}")
        if cls == "X":
            a.lab("L1_at")
            a("s_mov_b64 exec, 1")
            a("buffer_atomic_add v8, v9, s[80:83], 0 offen sc1")
            a("s_mov_b64 exec, -1")
            a("s_branch L1_atr")
    a.lab("L1_epi")
    a("v_mov_b32 v9, 0")
    a("s_mov_b32 s44, s43")
    a("s_mov_b32 s45, s43")
    a(f"v_add_u32 v{VWA}, {WS}, v{VWB}")
    a(f"v_add_u32 v{VWA+1}, {WS}, v{VWB+1}")
    a("s_and_b32 s33, s22, s32")
    a(f"s_cselect_b32 s18, 0, s18")
    XF = lambda sl, mt: (32 if sl < 2 else 72 - 32) + 16*sl + 4*mt
    WBUF = [64, 240, 248, 104]
    def tx(sl): return [f"ds_read_b128 {vr(XF(sl, mt))}, v{(VXA if sl < 2 else VXB) + (sl & 1)} offset:{mt*2048}" for mt in range(4)]
    def tw(gi):
        seg, sl = G[gi]; b = WBUF[gi % 4]; o = ((28 + sl) % 5)*WSL + seg*4096
        return [f"ds_read_b64_tr_b16 {vr(b+4*u+2*i,2)}, v{VWA+u} offset:{o+512*i}" for u in range(2) for i in range(2)]
    def tm(gi):
        seg, sl = G[gi]; b = WBUF[gi % 4]; r = []
        for u in range(2):
            for mt in range(4):
                if seg < 2: r.append(mfma16(acc(mt, 2*seg+u), b+4*u, XF(sl, mt)))
                else:       r.append(mfma16(acc(mt, 2*seg+u), XF(sl, mt), b+4*u))
        return r
    G = [(0, 0), (1, 0), (0, 1), (0, 2), (0, 3), (1, 1), (1, 2), (1, 3), (2, 0), (2, 1), (2, 2), (2, 3)]
    jobs = []
    for T in range(2):
        for sg in range(2): jobs.append((1, acc(2*T+sg, 2), acc(2*T+sg, 3), T*2048 + sg*256))
    for T in range(2):
        for sg in range(2): jobs.append((0, acc(2*T+sg, 0), acc(2*T+sg, 1), T*2048 + sg*256))
    for T in range(2):
        for u in range(2):  jobs.append((2, acc(2*T, 4+u), acc(2*T+1, 4+u), T*2048 + u*256))
    def conv(n):
        seg, b0, b1, off = jobs[n]; t0 = PK1 + 4*n; r = []
        if seg == 0: r += [f"v_pk_mul_f32 v[{b+q}:{b+q+1}], v[{b+q}:{b+q+1}], s[44:45]" for b in (b0, b1) for q in (0, 2)]
        r += [f"v_cvt_pk_bf16_f32 v{t0}, v{b0}, v{b0+1}", f"v_cvt_pk_bf16_f32 v{t0+1}, v{b0+2}, v{b0+3}",
              f"v_cvt_pk_bf16_f32 v{t0+2}, v{b1}, v{b1+1}", f"v_cvt_pk_bf16_f32 v{t0+3}, v{b1+2}, v{b1+3}",
              f"buffer_store_dwordx4 {vr(t0)}, v{VST}, s[16:19], s{40+seg} offen offset:{off} sc1"]
        return r
    lds = []
    def emit(M, rd, tags, other, skip=0):
        o = list(other)
        for i, m_ in enumerate(M):
            a(m_)
            n_ = 2
            if i < len(rd):
                a(rd[i]); lds.append(tags[i]); n_ = 1
            if i >= skip:
                for _ in range(n_):
                    if o and not (i < len(rd) and o[0].startswith("buffer")): a(o.pop(0))
        return o
    def need(tags):
        last = max(i for i, x in enumerate(lds) if x in tags)
        a(f"s_waitcnt lgkmcnt({min(15, len(lds) - 1 - last)})")
    emit(mm(1), tx(0) + tw(0) + tw(1) + tx(1), ["x0"]*4 + ["w0"]*4 + ["w1"]*4 + ["x1"]*4, [])
    a("s_waitcnt vmcnt(6)")
    a("s_barrier")
    need(["x0", "w0"])
    emit(tm(0), tw(2), ["w2"]*4, [])
    a("s_waitcnt vmcnt(0)")
    a("s_barrier")
    a("s_cmp_lg_u32 s26, 5")
    a("s_cbranch_scc1 L1_noc")
    a("buffer_load_dword v8, v9, s[80:83], 0 offen sc1")
    a.lab("L1_noc")
    need(["w1"])
    emit(tm(1), tx(2) + tw(3), ["x2"]*4 + ["w3"]*4, [])
    need(["w2", "x1"])
    emit(tm(2), tx(3) + tw(4), ["x3"]*4 + ["w4"]*4, [])
    pend = []
    for gi in range(3, 12):
        need([f"w{gi}", f"x{G[gi][1]}"])
        had = len(pend) >= 6
        if gi == 5: pend += [t for n in range(4, 8) for t in conv(n)]
        if gi == 8: pend += [t for n in range(4) for t in conv(n)]
        rd = tw(gi + 2) if gi + 2 < 12 else []
        pend = emit(tm(gi), rd, [f"w{gi+2}"]*4, pend, skip=(3 if gi == 5 else (3 if gi == 8 and not had else 0)))
    if OPT["pst"] == "0": stamp(a, 2)
    for t in pend: a(t)
    a("s_nop 1")
    a("s_cmp_lg_u32 s22, 0")
    a("s_cselect_b32 s18, 0, s18")
    for n in (8, 10, 9, 11):
        for t in conv(n): a(t)
    a.lab("L1_done")
    a("s_setprio 0")
    a(f"v_mov_b32 v200, v{VST}")
    a("s_mov_b32 s92, s40")
    a("s_mov_b32 s93, s41")
    a("s_mov_b32 s94, s42")
    a("s_mov_b32 s24, s26")
    return [(seg, off) for seg, _, _, off in jobs]

def kperm(rho):
    return ((rho >> 2) & 1) * 16 + (rho >> 3) * 4 + (rho & 3)

SLOTS = [131072, 0, 65536, 32768, 98304]

def k2(a, jobs):
    N = NAME + "_kernel"
    VL16, VKA, VVA, VIDX, VM, VT, VKL = 1, 2, 3, 4, 5, 6, 7
    ONES = 8; Q = [12, 20]; NEG = [28, 44]; O = [60, 76]; L = [92, 96]; KB = [100, 108]; VB = [116, 124]; S = [132, 148, 164, 180]
    NV = 256
    PF = OPT["pf3"] == "1"
    def sm32(d, av, b): return f"v_smfmac_f32_32x32x32_bf16 {vr(d,16)}, {vr(av)}, {vr(b,8)}, v{VIDX}"
    def sm16(l, b): return f"v_smfmac_f32_16x16x64_bf16 {vr(l)}, {vr(ONES)}, {vr(b,8)}, v{VIDX}"
    def ld(d, soff, off=0, v=VL16): a(f"buffer_load_dwordx4 {vr(d)}, v{v}, s[8:11], {soff} offen offset:{off} sc1")
    def xhalf_max():
        a(f"v_max_f32 v{VM}, v{VM}, v{VT}")
        a("s_nop 0")
        a(f"v_mov_b32 v{VT}, v{VM}")
        a("s_nop 1")
        a(f"v_permlane32_swap_b32 v{VM}, v{VT}")
        a("s_nop 1")
        a(f"v_max_f32 v{VM}, v{VM}, v{VT}")
    def maxof(vals):
        a(f"v_max3_f32 v{VM}, v{vals[0]}, v{vals[1]}, v{vals[2]}")
        a(f"v_max3_f32 v{VT}, v{vals[3]}, v{vals[4]}, v{vals[5]}")
        for i in range(6, len(vals) - 2, 4):
            a(f"v_max3_f32 v{VM}, v{VM}, v{vals[i]}, v{vals[i+1]}")
            a(f"v_max3_f32 v{VT}, v{VT}, v{vals[i+2]}, v{vals[i+3]}")
        a(f"v_max3_f32 v{VM}, v{VM}, v{vals[-2]}, v{vals[-1]}")
        xhalf_max()
    def finish(soff, off, T, o, l):
        a(f"v_rcp_f32 v{VT}, v{l}")
        a("s_nop 0")
        for i in range(16): a(f"v_mul_f32 v{o+i}, v{o+i}, v{VT}")
        for i in range(8): a(f"v_cvt_pk_bf16_f32 v{T+i}, v{o+2*i}, v{o+2*i+1}")
        a(f"buffer_store_dwordx4 {vr(T)}, v{VL16}, s[8:11], {soff} offen{OPT['st2']}")
        a(f"buffer_store_dwordx4 {vr(T+4)}, v{VL16}, s[8:11], {soff} offen offset:1024{OPT['st2']}")
    def consts():
        a(f"v_mov_b32 v{VIDX}, 0xdddddddd")
        a("v_bfe_u32 v5, v0, 2, 1")
        a("v_cmp_eq_u32 vcc, 0, v5")
        a("v_mov_b32 v6, 0x3f803f80")
        a("s_nop 0")
        a(f"v_cndmask_b32 v{ONES}, 0, v6, vcc")
        a(f"v_cndmask_b32 v{ONES+1}, 0, v6, vcc")
        a(f"v_cndmask_b32 v{ONES+2}, v6, 0, vcc")
        a(f"v_cndmask_b32 v{ONES+3}, v6, 0, vcc")
    a("s_lshr_b32 s60, s21, 4")
    a("s_mul_i32 s22, s60, 24")
    a("s_add_u32 s22, s22, 16")
    a("s_load_dwordx2 s[6:7], s[0:1], s22")
    a("s_load_dwordx2 s[58:59], s[0:1], 48")
    a("s_lshl_b32 s22, s20, 2")
    a("s_lshr_b32 s23, s21, 3")
    a("s_add_u32 s22, s22, s23")
    a("s_and_b32 s23, s21, 7")
    a(f"v_lshlrev_b32 v{VL16}, 4, v0")
    a("s_and_b32 s28, s24, 3")
    a("s_lshl_b32 s25, s23, 3")
    a("s_lshl_b32 s29, s28, 1")
    a("s_add_u32 s25, s25, s29")
    a("s_lshl_b32 s26, s22, 17")
    a("s_lshl_b32 s27, s25, 11")
    a("s_add_u32 s27, s27, s26")
    a("v_bfe_u32 v5, v0, 2, 1")
    a("v_and_b32 v6, 0x23, v0")
    a("v_lshl_or_b32 v6, v5, 4, v6")
    a("v_bfe_u32 v5, v0, 3, 2")
    a("v_lshl_or_b32 v6, v5, 2, v6")
    a(f"v_lshlrev_b32 v{VKL}, 4, v6")
    a(f"s_add_u32 s33, s26, {KF}")
    a("s_lshl_b32 s37, s25, 16")
    a("s_lshl_b32 s38, s22, 11")
    a("s_add_u32 s37, s37, s38")
    a(f"s_add_u32 s37, s37, {OF}")
    a("s_lshr_b32 s61, s20, 1")
    a("s_lshl_b32 s61, s61, 2")
    a("s_and_b32 s62, s21, 3")
    a("s_add_u32 s61, s61, s62")
    a("s_and_b32 s62, s20, 1")
    a("s_lshl_b32 s62, s62, 2")
    a("s_bfe_u32 s63, s21, 0x20002")
    a("s_add_u32 s62, s62, s63")
    a("s_lshl_b32 s63, s23, 5")
    a("s_add_u32 s63, s63, s22")
    a(f"s_lshl_b32 s63, s63, {FSH}")
    a(f"s_add_u32 s63, s63, {FL}")
    a("s_cmp_ge_u32 s24, 4")
    a("s_cbranch_scc1 L2_help")
    srd(a, 8, 98, WS_BYTES)
    consts()
    a("s_add_u32 s38, s37, 0x10000")
    a(f"v_mov_b32 v{VKA}, v{VKL}")
    a(f"v_add_u32 v{VVA}, 0x10000, v{VL16}")
    for i in range(40): a(f"v_mov_b32 v{O[0]+i}, 0")
    for i in range(16): a(f"v_mov_b32 v{S[3]+i}, 0")
    for i in range(8): a(f"v_mov_b32 v{VB[1]+i}, 0")
    a("s_mov_b32 s39, 0")
    a("s_mov_b32 s40, 0")
    a("s_waitcnt lgkmcnt(0)")
    if OPT["df"] == "1":
        a("s_cmp_lg_u32 s60, 0")
        a("s_cbranch_scc1 L2_x1")
    a("s_waitcnt vmcnt(0)")
    a.lab("L2_x1")
    a("s_barrier")
    if OPT["pst"] == "0": stamp(a, 3)
    a("s_barrier")
    if OPT["pst"] == "0": stamp(a, 4)
    if OPT["pst"] == "3": stamp(a, 5)
    ld(Q[0], "s27"); ld(KB[0], "s33", 0, VKL); ld(Q[0]+4, "s27", 1024); ld(KB[0]+4, "s33", 1024, VKL)
    ld(Q[1], "s27", 2048); ld(Q[1]+4, "s27", 3072)
    ld(KB[1], "s33", 2048, VKL); ld(KB[1]+4, "s33", 3072, VKL)
    a("s_waitcnt vmcnt(4)")
    a(mfma(S[0], KB[0], Q[0], "0")); a(mfma(S[0], KB[0]+4, Q[0]+4))
    a("s_waitcnt vmcnt(2)")
    if OPT["pst"] == "3": stamp(a, 2)
    a(mfma(S[1], KB[0], Q[1], "0")); a(mfma(S[1], KB[0]+4, Q[1]+4))
    a("s_nop 8")
    maxof([S[0]+r for r in range(16)])
    for i in range(16): a(f"v_sub_f32 v{NEG[0]+i}, 0, v{VM}")
    for i in range(16): a(f"v_sub_f32 v{S[0]+i}, v{S[0]+i}, v{VM}")
    maxof([S[1]+r for r in range(16)])
    for i in range(16): a(f"v_sub_f32 v{NEG[1]+i}, 0, v{VM}")
    a("s_waitcnt vmcnt(0)")
    if OPT["pst"] == "3": stamp(a, 3)
    a("s_barrier")
    if OPT["pst"] == "3": stamp(a, 4)
    if OPT["pst"] == "0": stamp(a, 5)
    if OPT["pst"] == "2":
        stamp(a, 2); a("s_memtime s[72:73]")
    if OPT["tlb"] == "1": a(f"buffer_load_dword v196, v{VL16}, s[8:11], s37 offen")
    if OPT["cp"] != "0": a(f"s_setprio {OPT['cp']}")
    a("s_cmp_eq_u32 s60, 0")
    a("s_cbranch_scc1 L2_it3")
    for n in range(8, 12):
        a(f"buffer_store_dwordx4 {vr(PK1+4*n)}, v200, s[8:11], s94 offen offset:{jobs[n][1]} sc1")
    a("s_branch L2_it3")

    def item(p, qk=True, rd=True, pre=None, post=None):
        n = (p - 3) % 16
        i = n >> 1; qt = n & 1
        Sn, Sc, Sp = S[(n+1) % 4], S[n % 4], S[(n-1) % 4]
        qn = (n+1) & 1; kbu = KB[((n+1) >> 1) % 2]
        qp = (n-1) & 1; vbu = VB[((n-1) >> 1) % 2]
        if qt == 1:
            kt = (i + 2) % 8
            r = [f"ds_read_b128 {vr(KB[i % 2])}, v{VKA} offset:{kt*2048}", f"ds_read_b128 {vr(KB[i % 2]+4)}, v{VKA} offset:{kt*2048+1024}"]
        else:
            r = [f"ds_read_b128 {vr(VB[i % 2])}, v{VVA} offset:{i*2048}", f"ds_read_b128 {vr(VB[i % 2]+4)}, v{VVA} offset:{i*2048+1024}"]
        if not rd or "r" in OPT["k2x"]: r = []
        ex = [f"v_exp_f32 v{Sc+k}, v{Sc+k}" for k in range(16)]
        post = list(post or [])
        seq = []
        if qk: seq.append(mfma(Sn, kbu, Q[qn], NEG[qn]))
        seq += post[0:1] + ex[0:3]
        if qk: seq.append(mfma(Sn, kbu+4, Q[qn]+4))
        seq += ["s_waitcnt lgkmcnt(0)"] + list(pre or []) + ex[3:6]
        seq.append(sm32(O[qp], vbu, Sp))
        seq += r[:1] + ex[6:9]
        seq.append(sm16(L[qp], Sp))
        seq += post[1:3] + ex[9:10]
        seq.append(sm32(O[qp], vbu+4, Sp+8))
        seq += r[1:] + ex[10:13]
        seq.append(sm16(L[qp], Sp+8))
        seq += post[3:] + ex[13:16]
        for t in seq: a(t)

    a.raw(".p2align 6")
    a.lab("L2_loop")
    item(0, pre=["s_waitcnt vmcnt(0)", "s_barrier", f"v_add_u32 v{VKA}, s40, v{VKL}"])
    item(1); item(2)
    a(f"v_add_u32 v{VVA}, s41, v{VL16}")
    a.lab("L2_it3")
    for p in range(3, 15): item(p)
    item(15, post=["s_add_u32 s40, s40, 16384", "s_and_b32 s40, s40, 0xffff", "s_add_u32 s41, s40, 0x10000", "s_add_u32 s39, s39, 1", "s_cmp_lt_u32 s39, 8"])
    if OPT["trip"] != "0":
        a("s_cselect_b32 s57, 1, 0")
        for n, tr in zip((2, 3, 4), OPT["trip"].split(",")):
            a(f"s_cmp_lg_u32 s39, {int(tr)+1}")
            a(f"s_cbranch_scc1 L2_t{n}")
            stamp(a, n)
            a.lab(f"L2_t{n}")
        a("s_cmp_lg_u32 s57, 0")
    a("s_cbranch_scc1 L2_loop")
    item(0, rd=False)
    item(1)
    item(2, qk=False, rd=False)
    a("s_nop 1")
    Sp = S[3]
    a(sm32(O[1], VB[1], Sp)); a(sm16(L[1], Sp)); a(sm32(O[1], VB[1]+4, Sp+8)); a(sm16(L[1], Sp+8))
    a("s_nop 4")
    if OPT["pst"] == "1": stamp(a, 5)
    if OPT["pst"] == "2":
        stamp(a, 3); a("s_memtime s[74:75]")
    for qt in range(2):
        a(f"v_mul_f32 v{VM}, 0, v{O[qt]}")
        for i in range(1, 16): a(f"v_fma_f32 v{VM}, v{O[qt]+i}, 0, v{VM}")
        a(f"v_add_f32 v{VM}, v{VM}, v{L[qt]}")
        a(f"v_mov_b32 v{VT}, {f2u(2.0**64):#x}")
        a(f"v_cmp_nlt_f32 vcc, v{VM}, v{VT}")
        a("s_nop 4")
        a(f"s_cbranch_vccnz L2_slow{qt}")
        a.lab(f"L2_fin{qt}")
        finish("s37" if qt == 0 else "s38", 0, S[1+qt], O[qt], L[qt])
    VOB, VOA, VWB, VWA, VST = 10, 11, 12, 16, 20
    F = [24, 56]; ACC = 88
    def Of(f, mt): return F[f] + 4*mt
    def Wf(f, nb): return F[f] + 16 + 4*nb
    def acc(mt, nb): return ACC + (mt*4 + nb)*4
    a("s_and_b32 s31, s24, 1")
    a("s_lshr_b32 s32, s24, 1")
    a("v_and_b32 v2, 15, v0")
    a("v_lshrrev_b32 v3, 4, v0")
    a("s_lshl_b32 s33, s31, 13")
    a("v_lshlrev_b32 v4, 4, v2")
    a("v_lshl_add_u32 v4, v3, 9, v4")
    a(f"v_add_u32 v{VOB}, s33, v4")
    a(f"v_add_u32 v{VOA}, {SLOTS[0]}, v{VOB}")
    a("v_bfe_u32 v4, v0, 2, 3")
    a("v_lshrrev_b32 v5, 5, v0")
    a("v_lshl_add_u32 v5, v5, 4, v4")
    a("v_lshlrev_b32 v5, 8, v5")
    a("v_and_b32 v6, 3, v0")
    a("v_lshl_add_u32 v5, v6, 3, v5")
    a("v_add_u32 v5, 16384, v5")
    a("s_lshl_b32 s33, s32, 2")
    a("v_xor_b32 v4, s33, v4")
    a(f"v_lshl_add_u32 v{VWB}, v4, 5, v5")
    for nb in range(1, 4): a(f"v_xor_b32 v{VWB+nb}, {nb*32}, v{VWB}")
    for nb in range(4): a(f"v_add_u32 v{VWA+nb}, {SLOTS[0]}, v{VWB+nb}")
    for i in range(64): a(f"v_mov_b32 v{ACC+i}, 0")
    for i in range(5): a(f"s_mov_b32 s{44+i}, {SLOTS[(i+1) % 5]}")
    a("s_mov_b32 s35, 0")
    srd(a, 16, 58, 8 << 20)
    a("s_lshl_b32 s40, s61, 19")
    a("s_lshl_b32 s41, s31, 18")
    a("s_add_u32 s40, s40, s41")
    a("s_lshl_b32 s41, s60, 11")
    a("s_add_u32 s40, s40, s41")
    a("s_lshl_b32 s41, s62, 8")
    a("s_add_u32 s40, s40, s41")
    a("s_lshl_b32 s41, s32, 7")
    a("s_add_u32 s40, s40, s41")
    def rdO(f, ks, mt): return [f"ds_read_b128 {vr(Of(f,mt))}, v{VOA} offset:{(mt>>1)*4096 + ks*2048 + (mt&1)*256}"]
    def rdW(f, ks, nb): return [f"ds_read_b64_tr_b16 {vr(Wf(f,nb),2)}, v{VWA+nb} offset:{ks*8192}",
                                f"ds_read_b64_tr_b16 {vr(Wf(f,nb)+2,2)}, v{VWA+nb} offset:{ks*8192+2048}"]
    def reads(f, ks):
        return [rdO(f, ks, 0)] + [rdW(f, ks, nb) for nb in range(4)] + [rdO(f, ks, mt) for mt in (1, 2, 3)]
    def mm(f):
        return [mfma16(acc(mt, nb), Wf(f, nb), Of(f, mt)) for mt in range(4) for nb in range(4)]
    a("s_waitcnt vmcnt(0)")
    if OPT["pst"] == "1": stamp(a, 2)
    a("s_barrier")
    if OPT["opf"] != "0":
        a("s_lshl_b32 s36, s60, 22")
        a("s_lshl_b32 s39, s61, 18")
        a("s_add_u32 s36, s36, s39")
        a("s_lshl_b32 s39, s24, 16")
        a("s_add_u32 s36, s36, s39")
        a("s_and_b32 s39, s62, 3")
        a("s_lshl_b32 s39, s39, 14")
        a("s_add_u32 s36, s36, s39")
        a(f"s_add_u32 s36, s36, {OF}")
        a("s_add_u32 s39, s36, 8192")
        a("v_lshlrev_b32 v21, 7, v0")
    a("s_barrier")
    if OPT["opf"] != "0":
        if OPT["opf"] == "2": a("s_sleep 3")
        a("buffer_load_dword v22, v21, s[8:11], s36 offen sc1")
        a("buffer_load_dword v23, v21, s[8:11], s39 offen sc1")
    a("s_barrier")
    if OPT["pst"] == "1": stamp(a, 3)
    flat = lambda g: [t for x in g for t in x]
    def block(f, rd, extra):
        M = mm(f)
        a("s_waitcnt lgkmcnt(3)")
        for i, m_ in enumerate(M):
            if i in (4, 8, 12): a(f"s_waitcnt lgkmcnt({min(15, (2 - (i//4 - 1)) + min(i, len(rd)))})")
            a(m_)
            if i < len(rd): a(rd[i])
            for t in extra.get(i, []): a(t)
    for t in flat(reads(0, 0)): a(t)
    a("s_branch L3_mid")
    a.raw(".p2align 6")
    a.lab("L3_loop")
    block(1, flat(reads(0, 0)), {})
    a.lab("L3_mid")
    block(0, flat(reads(1, 1)), {0: (["s_barrier"] if OPT["la"] == "4" else []) + ["s_mov_b32 s33, s44"], 15: (["s_waitcnt lgkmcnt(0)", "s_barrier"] if OPT["la"] == "5" else []), 1: ["s_mov_b32 s44, s45", "s_mov_b32 s45, s46"],
                                 2: ["s_mov_b32 s46, s47", "s_mov_b32 s47, s48"], 3: ["s_mov_b32 s48, s33"],
                                 5: ["s_add_u32 s35, s35, 1", "s_cmp_lt_u32 s35, 16"],
                                 9: [f"v_add_u32 v{VWA}, s33, v{VWB}"], 10: [f"v_add_u32 v{VWA+1}, s33, v{VWB+1}"],
                                 11: [f"v_add_u32 v{VWA+2}, s33, v{VWB+2}"], 12: [f"v_add_u32 v{VWA+3}, s33, v{VWB+3}"], 13: [f"v_add_u32 v{VOA}, s33, v{VOB}"]})
    a("s_cbranch_scc1 L3_loop")
    block(1, [], {})
    if OPT["pst"] == "1": stamp(a, 4)
    a("s_mul_i32 s41, s24, 9216")
    a("v_mul_u32_u24 v4, 144, v2")
    a("v_lshl_add_u32 v4, v3, 3, v4")
    a("v_add_u32 v4, s41, v4")
    a("v_lshrrev_b32 v5, 3, v0")
    a("v_mul_u32_u24 v6, 144, v5")
    a("v_and_b32 v7, 7, v0")
    a("v_lshl_add_u32 v6, v7, 4, v6")
    a("v_add_u32 v6, s41, v6")
    a("v_lshlrev_b32 v5, 12, v5")
    a(f"v_lshl_add_u32 v{VST}, v7, 4, v5")
    for mt in range(4):
        for nb in range(4):
            b = acc(mt, nb); t0 = F[0] + 2*(mt*4 + nb)
            a(f"v_cvt_pk_bf16_f32 v{t0}, v{b}, v{b+1}")
            a(f"v_cvt_pk_bf16_f32 v{t0+1}, v{b+2}, v{b+3}")
            a(f"ds_write_b64 v4, {vr(t0,2)} offset:{mt*16*144 + nb*32}")
        a(f"ds_read_b128 {vr(F[1]+8*mt)}, v6 offset:{mt*16*144}")
        a(f"ds_read_b128 {vr(F[1]+8*mt+4)}, v6 offset:{mt*16*144 + 8*144}")
        if mt >= 1:
            a("s_waitcnt lgkmcnt(6)")
            for h in range(2):
                a(f"buffer_store_dwordx4 {vr(F[1]+8*(mt-1)+4*h)}, v{VST}, s[16:19], s40 offen{OPT['st3']}")
                a(f"s_add_u32 s40, s40, {8*4096}")
    a("s_waitcnt lgkmcnt(0)")
    for h in range(2):
        a(f"buffer_store_dwordx4 {vr(F[1]+24+4*h)}, v{VST}, s[16:19], s40 offen{OPT['st3']}")
        a(f"s_add_u32 s40, s40, {8*4096}")
    dump(a, 0, "s24")
    a.lab("L2_end")
    a("s_endpgm")

    a.lab("L2_help")
    issued = []
    MC, MP, MP0, SC, SP, OB, LB = 12, 28, 44, 60, 76, [92, 112], [108, 128]
    QB = [132, 140]; KX = [148, 156, 164]; VX = [172, 180, 188]; VPF = 2
    a("s_lshl_b32 s34, s28, 12")
    a("s_add_u32 s35, s33, s34")
    a(f"s_add_u32 s36, s35, {VF-KF}")
    srd(a, 8, 98, WS_BYTES)
    def dma_stage(st):
        for base, so in ((0, "s35"), (65536, "s36")):
            a(f"s_add_u32 m0, s34, {base + (st % 4)*16384}")
            a("s_nop 0")
            for j in range(4):
                a(f"buffer_load_dwordx4 v{VL16}, s[8:11], {so} offen offset:{j*1024} sc1 lds")
            a(f"s_add_u32 {so}, {so}, 16384")
        issued.extend([f"s{st}"]*8)
    def late1():
        consts()
        a(f"s_add_u32 s28, s27, {4<<20}")
        a(f"s_add_u32 s29, s28, {KF}")
        a(f"s_add_u32 s30, s28, {VF}")
        a("s_cmp_eq_u32 s25, 0")
        a("s_cselect_b32 s32, 0, 2048")
        a("s_cselect_b64 s[44:45], 0, -1")
        a("s_sub_u32 s31, s29, s32")
        a("s_sub_u32 s32, s30, s32")
        a(f"s_add_u32 s37, s37, {4<<20}")
        a("s_add_u32 s38, s37, 0x10000")
        if PF:
            a("v_lshrrev_b32 v5, 3, v0")
            a("v_lshlrev_b32 v5, 11, v5")
            a("v_and_b32 v6, 7, v0")
            a(f"v_lshl_add_u32 v{VPF}, v6, 7, v5")
            a("v_cmp_gt_u32 vcc, 32, v0")
            a("v_mov_b32 v5, 0x7fffff00")
            a("s_and_b32 s47, s21, 15")
            a("s_lshl_b32 s47, s47, 17")
            a(f"v_cndmask_b32 v{VPF}, v5, v{VPF}, vcc")
            a("s_lshl_b32 s46, s34, 3")
            a("s_add_u32 s47, s47, s46")
            a("s_and_b32 s46, s20, 1")
            a("s_lshl_b32 s46, s46, 10")
            a("s_add_u32 s47, s47, s46")
    def pf():
        if PF:
            a(f"buffer_load_dword v{VPF+1}, v{VPF}, s[16:19], s47 offen")
            a("s_add_u32 s47, s47, 8192")
    VWD0, VWD1, VFL, VFD = 196, 197, 198, 199
    def dma_w(st):
        sl = SLOTS[st % 5] + 16384
        a(f"s_add_u32 m0, s34, {sl}")
        a("s_nop 0")
        a(f"buffer_load_dwordx4 v{VWD0}, s[16:19], s40 offen lds")
        a("s_add_u32 m0, m0, 1024")
        a("s_nop 0")
        a(f"buffer_load_dwordx4 v{VWD1}, s[16:19], s40 offen lds")
        a("s_add_u32 m0, m0, 1024")
        a(f"s_add_u32 s40, s40, {64*2048}")
        a(f"buffer_load_dwordx4 v{VWD0}, s[16:19], s41 offen lds")
        a("s_add_u32 m0, m0, 1024")
        a("s_nop 0")
        a(f"buffer_load_dwordx4 v{VWD1}, s[16:19], s41 offen lds")
        a(f"s_add_u32 s41, s41, {64*2048}")
    def dma_o(st):
        a(f"s_add_u32 m0, s34, {SLOTS[st % 5]}")
        a("s_nop 0")
        for j in range(4):
            a(f"buffer_load_dwordx4 v{VL16}, s[8:11], s39 offen offset:{j*1024}{OPT['osc']} lds")
        a("s_add_u32 s39, s39, 4096")
    def poll(tag, voff, soff, srd_="s[8:11]", val=1, cmp_="ne"):
        a("s_mov_b32 s43, 0")
        a.lab(tag)
        a(f"buffer_load_dword v{VFD}, v{voff}, {srd_}, {soff} offen sc1")
        a("s_add_u32 s43, s43, 1")
        a("s_waitcnt vmcnt(0)")
        a(f"v_cmp_{cmp_}_u32 vcc, {val}, v{VFD}")
        a("s_cmp_gt_u32 s43, 0x200000")
        a(f"s_cbranch_scc1 {tag}x")
        a("s_nop 2")
        a(f"s_cbranch_vccz {tag}x")
        a(f"s_sleep {OPT['slp']}")
        a(f"s_branch {tag}")
        a.lab(tag + "x")
    def lanemask(r, prev):
        m = 0
        for l in range(64):
            q = l & 31; hh = l >> 5
            key = kperm(8*(r//4) + 4*hh + r % 4)
            d = q - key + (32 if prev else 0)
            if 0 <= d <= 14 and d % 2 == 0: m |= 1 << l
        return m
    def masks(prev):
        k = 0
        a(f"v_mov_b32 v{VT}, {NEGBIG:#x}")
        for i in range(20): a(f"v_mov_b32 v{OB[prev]+i}, 0")
        for r in range(16):
            m = lanemask(r, prev)
            sp = 48 + 2*(k % 4); k += 1
            a(f"s_mov_b32 s{sp}, {m & 0xffffffff:#x}")
            a(f"s_mov_b32 s{sp+1}, {m >> 32:#x}")
            a(f"v_cndmask_b32 v{(MP if prev else MC)+r}, v{VT}, 0, s[{sp}:{sp+1}]")
            if prev: a(f"v_cndmask_b32 v{MP0+r}, v{VT}, v{MP+r}, s[44:45]")
    def bcomp(t):
        keep = a.l; a.l = []
        kc, kp, vc, vp = KX[t+1], KX[t], VX[t+1], VX[t]
        ob, lb = OB[t], LB[t]
        a(mfma(SC, kc, QB[t], MC)); a(mfma(SP, kp, QB[t], MP0 if t == 0 else MP))
        a(mfma(SC, kc+4, QB[t]+4)); a(mfma(SP, kp+4, QB[t]+4))
        a("s_nop 10")
        vals = [SC+r for r in range(16)] + [SP+r for r in range(16)]
        maxof(vals)
        for v in vals: a(f"v_sub_f32 v{v}, v{v}, v{VM}")
        for v in vals: a(f"v_exp_f32 v{v}, v{v}")
        a("s_nop 1")
        a(sm32(ob, vc, SC)); a(sm16(lb, SC)); a(sm32(ob, vc+4, SC+8)); a(sm16(lb, SC+8))
        a(sm32(ob, vp, SP)); a(sm16(lb, SP)); a(sm16(lb, SP+8)); a(sm32(ob, vp+4, SP+8))
        a("s_nop 12")
        finish("s37" if t == 0 else "s38", 0, QB[t], ob, lb)
        out = a.l; a.l = keep
        return out
    work = [] if "B" in OPT["k2x"] else bcomp(0) + bcomp(1)
    def cost(t): return 2 if "v_exp" in t else (3 if "mfma" in t else 1)
    tot = sum(cost(t) for t in work)
    slots = [int(c) for c in OPT["bslots"]]
    chunks = {b: [] for b in range(8)}
    acc_ = 0
    for t in work:
        chunks[slots[min(len(slots) - 1, acc_ * len(slots) // tot)]].append(t)
        acc_ += cost(t)
    def psetup():
        a("v_lshrrev_b32 v5, 4, v0")
        a("v_and_b32 v199, 15, v0")
        a(f"v_lshlrev_b32 v{VWD0}, 1, v5")
        a(f"v_xor_b32 v199, v199, v{VWD0}")
        a("v_lshlrev_b32 v199, 4, v199")
        a(f"v_lshl_add_u32 v{VWD0}, v5, 11, v199")
        a(f"v_xor_b32 v{VWD1}, 128, v{VWD0}")
        a(f"v_add_u32 v{VWD1}, 8192, v{VWD1}")
        a(f"v_and_b32 v{VFL}, 31, v0")
        a(f"v_lshlrev_b32 v{VFL}, {FSH}, v{VFL}")
        a("s_lshl_b32 s39, s60, 22")
        a("s_lshl_b32 s40, s61, 18")
        a("s_add_u32 s39, s39, s40")
        a("s_lshl_b32 s40, s34, 4")
        a("s_add_u32 s39, s39, s40")
        a(f"s_add_u32 s39, s39, {OF}")
        a("s_lshl_b32 s40, s34, 3")
        a("s_lshl_b32 s41, s62, 8")
        a("s_add_u32 s40, s40, s41")
        a("s_add_u32 s41, s40, 16384")
        a("s_lshl_b32 s42, s61, 1")
        a("s_lshr_b32 s43, s34, 13")
        a("s_add_u32 s42, s42, s43")
        a("s_add_u32 s42, s42, 8")
        a("s_lshr_b32 s43, s61, 1")
        a("s_cmp_eq_u32 s60, 0")
        a("s_cselect_b32 s42, s43, s42")
        a(f"s_lshl_b32 s42, s42, {5+FSH}")
        a(f"s_add_u32 s42, s42, {FL}")
        a("s_lshl_b32 s89, s25, 4")
        a("s_add_u32 s89, s89, s22")
        a("s_add_u32 s89, s89, 256")
        a(f"s_lshl_b32 s89, s89, {FSH}")
        a(f"s_add_u32 s89, s89, {FL}")
    def publish(base, tag=None):
        if tag:
            a("s_cmp_lg_u32 s24, 4")
            a(f"s_cbranch_scc1 {tag}")
        a("s_mov_b64 exec, 1")
        a(f"buffer_store_dword v204, v203, s[8:11], {base} offen sc1")
        a("s_mov_b64 exec, -1")
        if tag: a.lab(tag)
        else: issued.append("f")
    def wait_for(tags):
        idx_ = [i for i, x in enumerate(issued) if x in tags]
        if idx_: a(f"s_waitcnt vmcnt({min(63, len(issued) - 1 - max(idx_))})")
    a("v_mov_b32 v203, 0")
    a("v_mov_b32 v204, 1")
    a("v_and_b32 v205, 7, v0")
    a(f"v_lshlrev_b32 v205, {FSH}, v205")
    a("s_lshr_b32 s84, s22, 1")
    a(f"s_lshl_b32 s84, s84, {3+FSH}")
    a(f"s_add_u32 s84, s84, {FL + (1280 << FSH)}")
    def late2():
        a("s_lshr_b32 s85, s22, 1")
        a("s_lshl_b32 s85, s85, 5")
        a("s_lshr_b32 s43, s25, 1")
        a("s_add_u32 s85, s85, s43")
        a("s_add_u32 s85, s85, 1407")
        a(f"s_lshl_b32 s85, s85, {FSH}")
        a(f"s_add_u32 s85, s85, {FL}")
        a("v_and_b32 v207, 1, v0")
        a("v_and_b32 v206, 1, s44")
        a("v_xor_b32 v206, 1, v206")
        a("v_or_b32 v207, v207, v206")
        a(f"v_lshlrev_b32 v207, {FSH}, v207")
    a("s_waitcnt vmcnt(0) lgkmcnt(0)")
    a("v_mov_b32 v202, v8")
    srd(a, 16, 6, 2 << 20)
    a("s_cmp_eq_u32 s60, 0")
    a("s_cbranch_scc1 L2_hA")
    BF = min(7, slots[-1] + 1)
    QS = [int(c) for c in OPT["qs"]]
    QP = int(OPT["qp"]); BL = int(OPT["bl"])
    PX = 132
    ADP = OPT["adp"] == "1"
    for typ in ("B", "A"):
        T_ = "L2" + typ
        issued[:] = []
        if typ == "A":
            a.lab("L2_hA")
            a("s_barrier")
            publish("s95", T_ + "_p1")
        else:
            if OPT["df"] == "2":
                for n in range(12): a(f"ds_read_b128 {vr(PX+4*n)}, v201 offset:{n*1024}")
            if OPT["df"] == "0": publish("s95")
        a("s_cmp_lg_u32 s24, 5")
        a(f"s_cbranch_scc1 {T_}_qx")
        a("v_cmp_gt_u32 vcc, 0x100, v202")
        a("s_nop 4")
        a(f"s_cbranch_vccz {T_}_cx")
        poll(T_ + "_c", 203, "0", "s[80:83]", "0x100", "gt")
        if OPT["xslp"] != "0": a(f"s_sleep {OPT['xslp']}")
        poll(T_ + "_q", 205, "s84")
        if typ == "B": a("s_barrier")
        if OPT["hp0"] == "1": a("s_setprio 3")
        a("s_barrier")
        dma_stage(0)
        if OPT["hp0"] == "1": a("s_setprio 0")
        a("s_waitcnt vmcnt(0)")
        a("s_barrier")
        dma_stage(1); dma_stage(2)
        qst = []
        if typ == "B":
            for n, (seg, off) in enumerate(jobs if OPT["df"] != "0" else []):
                qst.append(f"buffer_store_dwordx4 {vr(PK1+4*n)}, v200, s[8:11], s{92+seg} offen offset:{off} sc1")
            for n, (seg, off) in enumerate(jobs if OPT["df"] == "2" else []):
                qst.append(f"buffer_store_dwordx4 {vr(PX+4*n)}, v200, s[8:11], s{86+seg} offen offset:{off} sc1")
            for sg in range(3): a(f"s_sub_u32 s{86+sg}, s{92+sg}, 0x20000")
        ORD = [2*x + h for x in [int(c) for c in OPT["xord"]] for h in range(2)]
        def sw(st):
            if typ == "A" and ADP:
                a(f"s_add_u32 s40, s87, {ORD[st]*64*2048}")
                a("s_add_u32 s41, s40, 16384")
            dma_w(st)
        def so(st):
            t = ORD[st]; tag = f"{T_}_n{st}"
            a(f"s_andn2_b32 s88, {3 << (2*t):#x}, s90")
            a(f"s_cbranch_scc0 {tag}x")
            a("s_mov_b32 s43, 0")
            a.lab(tag)
            a(f"buffer_load_dword v{VFD}, v{VFL}, s[8:11], s42 offen sc1")
            a("s_add_u32 s43, s43, 1")
            a("s_waitcnt vmcnt(0)")
            a(f"v_cmp_eq_u32 vcc, 1, v{VFD}")
            a("s_cmp_gt_u32 s43, 0x200000")
            a(f"s_cbranch_scc1 {tag}x")
            a("s_nop 2")
            a("s_mov_b32 s90, vcc_lo")
            a(f"s_andn2_b32 s88, {3 << (2*t):#x}, s90")
            a(f"s_cbranch_scc0 {tag}x")
            a(f"s_sleep {OPT['slp']}")
            a(f"s_branch {tag}")
            a.lab(tag + "x")
            a(f"s_add_u32 s39, s86, {t*4096}")
            dma_o(st); issued.extend([f"o{st}"]*4)
        def qstores(b):
            k = [i for i, x in enumerate(QS) if x == b]
            per = -(-len(qst) // len(QS))
            for i in k:
                for t in qst[i*per:(i+1)*per]:
                    a(t); issued.append("q")
        qstores(0)
        late1(); late2(); masks(0)
        for b in range(1, 8):
            wait_for([f"s{b}"])
            a("s_barrier")
            if b <= 5: dma_stage(b + 2)
            qstores(b)
            if b == QP and typ == "B" and OPT["df"] != "0":
                wait_for(["q"]); publish("s95")
            if b == 1:
                masks(1); psetup()
            if b == BL:
                poll(T_ + "_b", 207, "s85"); issued[:] = []
                for t in range(2): ld(QB[t], "s28", t*2048); ld(QB[t]+4, "s28", t*2048+1024)
                ld(KX[0], "s31", 0, VKL); ld(KX[0]+4, "s31", 1024, VKL)
                for t in range(2): ld(KX[t+1], "s29", t*2048, VKL); ld(KX[t+1]+4, "s29", t*2048+1024, VKL)
                ld(VX[0], "s32"); ld(VX[0]+4, "s32", 1024)
                for t in range(2): ld(VX[t+1], "s30", t*2048); ld(VX[t+1]+4, "s30", t*2048+1024)
                issued.extend(["B"]*16)
            if b == slots[0]: wait_for(["B"])
            if b == BF:
                wait_for(["st"]); publish("s89")
            for c in OPT['pfs']:
                if int(c) == b and PF:
                    pf(); issued.append("p")
            if b == 5 and OPT["tlb"] == "1":
                srd(a, 12, 58, 8 << 20)
                a("v_lshlrev_b32 v206, 21, v0")
                a("buffer_load_dword v206, v206, s[12:15], 0 offen"); issued.append("p")
            if b >= 6:
                if b == 6:
                    if typ == "A" and ADP:
                        a("s_mov_b32 s86, s39")
                        a("s_mov_b32 s87, s40")
                    sw(0); issued.extend(["w0"]*4)
                sw(b - 5); issued.extend([f"w{b-5}"]*4)
            for t in chunks[b]:
                a.l.append(t)
                if "buffer_store" in t: issued.append("st")
        if typ == "B":
            if OPT['bslp'] != '0': a(f"s_sleep {OPT['bslp']}")
            poll(T_ + "_o", VFL, "s42"); issued[:] = []
            for st in range(3):
                dma_o(st); issued.extend([f"o{st}"]*4)
            a("s_barrier")
            publish("s63", T_ + "_p3")
            a("s_barrier")
            wait_for(["o0"])
            a("s_barrier")
            for st in (3, 4):
                dma_w(st); dma_o(st); issued.extend([f"w{st}"]*4 + [f"o{st}"]*4)
        elif not ADP:
            a("s_barrier")
            publish("s63", T_ + "_p3")
            dma_w(3); dma_w(4)
            a("s_cmp_lg_u32 s24, 5")
            a(f"s_cbranch_scc1 {T_}_ox")
            if OPT["aslp"] != "0": a(f"s_sleep {OPT['aslp']}")
            poll(T_ + "_o", VFL, "s42"); issued[:] = []
            a("s_barrier")
            for st in range(2):
                dma_o(st); issued.extend([f"o{st}"]*4)
            wait_for(["o0"])
            a("s_barrier")
            for st in range(2, 5):
                dma_o(st); issued.extend([f"o{st}"]*4)
        else:
            a("s_mov_b32 s90, 0")
            a("s_barrier")
            publish("s63", T_ + "_p3")
            a("s_barrier")
            so(0); so(1)
            wait_for(["o0"])
            a("s_barrier")
            so(2)
            for st in (3, 4):
                sw(st); issued.extend([f"w{st}"]*4); so(st)
        for t in range(15):
            wait_for([f"o{t+1}", f"w{t+1}"])
            a("s_barrier")
            if t + 5 < 16:
                if typ == "A" and ADP:
                    sw(t + 5); issued.extend([f"w{t+5}"]*4); so(t + 5)
                else:
                    dma_w(t + 5); dma_o(t + 5); issued.extend([f"w{t+5}"]*4 + [f"o{t+5}"]*4)
        for n in (2, 3, 4, 5): stamp(a, n)
        dump(a, 0, "s24")
        a("s_endpgm")

    s0 = S[0]
    for qt in range(2):
        a.lab(f"L2_slow{qt}")
        a(f"s_add_u32 s36, s26, {VF}")
        a(f"v_mov_b32 v{VM}, 0xff800000")
        a("s_mov_b32 s39, 0")
        a.lab(f"L2_s1{qt}")
        a("s_add_u32 s41, s33, s39")
        ld(KB[0], "s41", 0, VKL); ld(KB[0]+4, "s41", 1024, VKL)
        a("s_waitcnt vmcnt(0)")
        a(mfma(s0, KB[0], Q[qt], "0")); a(mfma(s0, KB[0]+4, Q[qt]+4))
        a("s_nop 15")
        for i in range(0, 16, 2): a(f"v_max3_f32 v{VM}, v{VM}, v{s0+i}, v{s0+i+1}")
        a("s_add_u32 s39, s39, 2048")
        a(f"s_cmp_lt_u32 s39, {64*2048}")
        a(f"s_cbranch_scc1 L2_s1{qt}")
        a(f"v_mov_b32 v{VT}, v{VM}")
        xhalf_max()
        for i in range(16): a(f"v_sub_f32 v{NEG[qt]+i}, 0, v{VM}")
        for i in range(16): a(f"v_mov_b32 v{O[qt]+i}, 0")
        for i in range(4): a(f"v_mov_b32 v{L[qt]+i}, 0")
        a("s_mov_b32 s39, 0")
        a.lab(f"L2_s2{qt}")
        a("s_add_u32 s41, s33, s39")
        ld(KB[0], "s41", 0, VKL); ld(KB[0]+4, "s41", 1024, VKL)
        a("s_add_u32 s41, s36, s39")
        ld(VB[0], "s41"); ld(VB[0]+4, "s41", 1024)
        a("s_waitcnt vmcnt(0)")
        a(mfma(s0, KB[0], Q[qt], NEG[qt])); a(mfma(s0, KB[0]+4, Q[qt]+4))
        a("s_nop 15")
        for i in range(16): a(f"v_exp_f32 v{s0+i}, v{s0+i}")
        a("s_nop 1")
        a(sm32(O[qt], VB[0], s0)); a(sm16(L[qt], s0)); a(sm32(O[qt], VB[0]+4, s0+8)); a(sm16(L[qt], s0+8))
        a("s_nop 7")
        a("s_add_u32 s39, s39, 2048")
        a(f"s_cmp_lt_u32 s39, {64*2048}")
        a(f"s_cbranch_scc1 L2_s2{qt}")
        a("s_nop 15")
        a(f"s_branch L2_fin{qt}")
    return kd(N, NV, 102), f"; @launch kernel={N} grid=(256,1,1) block=(512,1,1) lds=163840"


DOC = """;
; One persistent kernel, 256 workgroups x 8 waves, one workgroup per CU, three phases joined by flag hand-offs in d_ws
; (write-through stores -> vmcnt(0) -> flag; consumers poll with sc1 loads and read the data with sc1 loads; the flags are
;     results stored as MFMA operand fragments (q pre-scaled by log2(e)/sqrt(32)).
"""

def main():
    a = A()
    jobs = k1(a)
    desc, launch = k2(a, jobs)
    if OPT["single"] == "1": launch = "; @launch grid=(256,1,1) block=(512,1,1) lds=163840"
    hdr = open("cdna_kernels/" + NAME + ".s.ref").read().split("\n")
    top = [l for l in hdr if l.startswith(";") and "@launch" not in l and "Override" not in l and "grid=ceil" not in l]
    out = "\n".join(top) + "\n" + launch + "\n"
    out += DOC
    out += '.amdgcn_target "amdgcn-amd-amdhsa--gfx950"\n.text\n' + a.text()
    out += '.section .rodata,"a"\n' + desc
    open(sys.argv[1], "w").write(out)

main()
```

```python
import struct, math, sys

NAME = "concat_heads__mha_block__sliding_local_dilated__prompt"
OPT = dict(st1=" sc1", st2=" sc1", st3=" sc1", dbg="0", pf1="1", pf3="1", ord1="0", dlt="4", nx="0", ph="8", pf0="2", pfm="255", xl="4", pfe="8", cpb="16", s2e="0", prio="1", k2x="", cpf="1", hprio="0", trip="0", k1x="", tlb="1", dk="0", spin="", bslots="345", pst="0", wfirst="1", slp="4", fsh="5", pfs="2345", opf="0", la="5", hp0="0", wp="1", cp="2", adp="0", xord="20361475", k3x="", mix="1", qs="0", qp="1", bl="2", xslp="0", single="0", df="1", rt="1", pub="3", od="3", pa="1", fm="g", aslp="0", bslp="0", osc=" sc1")
for a in sys.argv[2:]:
    k, v = a.split("=", 1)
    OPT[k] = v

def f2u(x): return struct.unpack("<I", struct.pack("<f", x))[0]
QSCALE = f2u(math.log2(math.e) / math.sqrt(32.0))
NEGBIG = f2u(-1e30)

QF, KF, VF, OF = 0, 8 << 20, 16 << 20, 24 << 20
WS_BYTES = 33 << 20

class A:
    def __init__(s): s.l = []
    def __call__(s, t): s.l.append("    " + t)
    def lab(s, t): s.l.append(t + ":")
    def raw(s, t): s.l.append(t)
    def text(s): return "\n".join(s.l) + "\n"

def vr(b, n=4): return f"v[{b}:{b+n-1}]"
def mfma(d, a, b, c=None):
    cc = vr(d, 16) if c is None else (c if isinstance(c, str) else vr(c, 16))
    return f"v_mfma_f32_32x32x16_bf16 {vr(d,16)}, {vr(a)}, {vr(b)}, {cc}"

def mfma16(d, a, b):
    return f"v_mfma_f32_16x16x32_bf16 {vr(d)}, {vr(a)}, {vr(b)}, {vr(d)}"

def spread(main, fill, start=0, every=1, per=1):
    out = []; k = 0
    for i, m in enumerate(main):
        out.append(m)
        if i >= start and (i - start) % every == 0:
            for _ in range(per):
                if k < len(fill):
                    out += fill[k]; k += 1
    while k < len(fill):
        out += fill[k]; k += 1
    return out

def interleave(main, fill, pattern):
    out = []; k = 0
    for i, m in enumerate(main):
        for _ in range(pattern[i] if i < len(pattern) else 0):
            if k < len(fill):
                out += fill[k]; k += 1
        out.append(m)
    while k < len(fill):
        out += fill[k]; k += 1
    return out

def kd(name, vgpr, sgpr=96):
    acc = (vgpr + 3) // 4 * 4
    return f""".p2align 6
.amdhsa_kernel {name}
  .amdhsa_next_free_vgpr {vgpr}
  .amdhsa_next_free_sgpr {sgpr}
  .amdhsa_accum_offset {acc}
  .amdhsa_group_segment_fixed_size 0
  .amdhsa_kernarg_size 72
  .amdhsa_user_sgpr_count 2
  .amdhsa_user_sgpr_kernarg_segment_ptr 1
  .amdhsa_system_sgpr_workgroup_id_x 1
.end_amdhsa_kernel
"""

_cp = [0]
DBG = OPT["dbg"] in ("1", "2", "3", "4")
def stamp(a, n):
    if DBG:
        a(f"{'s_memrealtime' if OPT['rt'] == '1' and n >= 2 else 's_memtime'} s[{64+2*n}:{65+2*n}]")
def rstamp(a, n):
    if DBG:
        a(f"s_memrealtime s[{64+2*n}:{65+2*n}]")
def dump(a, kidx, wave_sgpr, nst=8):
    if not DBG: return
    if OPT["dbg"] == "4":
        _cp[0] += 1
        sk = f"Ldbg{_cp[0]}"
        a("s_lshl_b32 s92, s2, 3")
        a(f"s_add_u32 s92, s92, {wave_sgpr}")
        a(f"s_cmp_lg_u32 s92, {OPT['dk']}")
        a(f"s_cbranch_scc1 {sk}")
        a("s_waitcnt vmcnt(0)")
        a("s_memrealtime s[78:79]")
        a("s_waitcnt lgkmcnt(0)")
        a(f"s_sub_u32 s93, s{64+2*int(OPT['spin'])}, s66")
        a.lab(sk + "s")
        a("s_memrealtime s[62:63]")
        a("s_waitcnt lgkmcnt(0)")
        a("s_sub_u32 s62, s62, s78")
        a("s_cmp_lt_u32 s62, s93")
        a(f"s_cbranch_scc1 {sk}s")
        a.lab(sk)
        return
    if OPT["dbg"] == "2":
        if kidx != int(OPT["dk"]): return
        _cp[0] += 1
        sk = f"Ldbg{_cp[0]}"
        a("s_load_dwordx2 s[88:89], s[0:1], 56")
        a("s_waitcnt lgkmcnt(0) vmcnt(0)")
        a(f"s_memtime s[{64+2*(nst-2)}:{65+2*(nst-2)}]")
        a(f"s_memrealtime s[{64+2*(nst-1)}:{65+2*(nst-1)}]")
        a("s_waitcnt lgkmcnt(0)")
        a(f"s_sub_u32 s88, s88, {512*kidx}")
        a("s_subb_u32 s89, s89, 0")
        a("s_mov_b32 s90, 64")
        a("s_mov_b32 s91, 0x00020000")
        a("s_lshl_b32 s92, s2, 3")
        a(f"s_add_u32 s92, s92, {wave_sgpr}")
        a("s_cmp_eq_u32 s92, 805")
        a("s_cselect_b32 s93, 32, 0x1000")
        a("s_cmp_eq_u32 s92, 0")
        a("s_cselect_b32 s92, 0, s93")
        a("v_mov_b32 v2, 0")
        for n in range(2, nst):
            base = 64 if n < nst-1 else 66
            a(f"s_sub_u32 s93, s{64+2*n}, s{base}")
            a("v_mov_b32 v3, s93")
            a(f"buffer_store_dword v3, v2, s[88:91], s92 offen offset:{4*(n-2)}")
            a("s_nop 1")
        return
    a("s_load_dwordx2 s[88:89], s[0:1], 64")
    a("s_waitcnt lgkmcnt(0) vmcnt(0)")
    a(f"s_memtime s[{64+2*(nst-2)}:{65+2*(nst-2)}]")
    a(f"s_memrealtime s[{64+2*(nst-1)}:{65+2*(nst-1)}]")
    a("s_waitcnt lgkmcnt(0)")
    a("s_mov_b32 s90, 0x8000000")
    a("s_mov_b32 s91, 0x00020000")
    a("s_lshl_b32 s92, s2, 3")
    a(f"s_add_u32 s92, s92, {wave_sgpr}")
    a("s_lshl_b32 s92, s92, 6")
    a(f"s_add_u32 s92, s92, {(64+kidx) << 20}")
    a("v_mov_b32 v2, 0")
    for n in range(nst):
        a(f"v_mov_b32 v3, s{64+2*n}")
        a(f"buffer_store_dword v3, v2, s[88:91], s92 offen offset:{4*n}")
        a("s_nop 1")
    if OPT["dbg"] == "3" and kidx == 2:
        _cp[0] += 1
        sk = f"Ldbg{_cp[0]}"
        a("s_lshl_b32 s92, s2, 3")
        a(f"s_add_u32 s92, s92, {wave_sgpr}")
        a(f"s_cmp_lg_u32 s92, {OPT['dk']}")
        a(f"s_cbranch_scc1 {sk}")
        a(f"s_add_u32 s88, s88, {(64 << 20) + int(OPT['dk'])*64}")
        a("s_addc_u32 s89, s89, 0")
        a("s_load_dwordx8 s[40:47], s[88:89], 0")
        a("s_add_u32 s88, s88, 0x100000")
        a("s_addc_u32 s89, s89, 0")
        a("s_load_dwordx8 s[48:55], s[88:89], 0")
        a("s_load_dwordx2 s[88:89], s[0:1], 56")
        a("s_waitcnt lgkmcnt(0)")
        a("s_mov_b32 s90, 64")
        k = 0
        for b, st in ((40, 1), (48, 1), (64, 2)):
            for n, ref in ((3, b), (4, b), (6, b), (1, 41), (7, 41)):
                a(f"s_sub_u32 s93, s{b+st*n}, s{ref}")
                a("v_mov_b32 v3, s93")
                a(f"buffer_store_dword v3, v2, s[88:91], 0 offen offset:{4*k}")
                a("s_nop 1")
                k += 1
        if OPT["spin"] != "":
            q, mult, unit = OPT["spin"].split(",")
            x, y = q.split("-")
            a(f"s_sub_u32 s93, s{x}, s{y}")
            a(f"s_mul_i32 s93, s93, {mult}")
            ins = "s_memrealtime" if unit == "r" else "s_memtime"
            a(f"{ins} s[60:61]")
            a("s_waitcnt lgkmcnt(0)")
            a.lab(sk + "s")
            a(f"{ins} s[62:63]")
            a("s_waitcnt lgkmcnt(0)")
            a("s_sub_u32 s62, s62, s60")
            a("s_cmp_lt_u32 s62, s93")
            a(f"s_cbranch_scc1 {sk}s")
        a.lab(sk)

def codepf(a, start, end, vtmp, lane="v0"):
    if OPT["cpf"] != "1": return
    _cp[0] += 1
    l = f"Lcp{_cp[0]}"
    a("s_getpc_b64 s[56:57]")
    a.lab(l)
    a(f"s_add_u32 s56, s56, {start}-{l}")
    a(f"s_addc_u32 s57, s57, ({start}-{l})>>32")
    a(f"v_lshlrev_b32 v{vtmp}, 7, {lane}")
    a(f"v_min_u32 v{vtmp}, ({end})-({start})-4, v{vtmp}")
    a(f"global_load_dword v{vtmp}, v{vtmp}, s[56:57]")

def head(a, name):
    a.raw(f".globl {name}\n.p2align 8\n.type {name},@function\n{name}:")

def srd(a, d, base, nbytes):
    a(f"s_mov_b32 s{d}, s{base}")
    a(f"s_mov_b32 s{d+1}, s{base+1}")
    a(f"s_mov_b32 s{d+2}, {nbytes:#x}")
    a(f"s_mov_b32 s{d+3}, 0x00020000")

def place(main, fill, per=2, start=0):
    out = []; k = 0
    for i, m in enumerate(main):
        out.append(m)
        if i >= start:
            out += fill[k:k+per]; k += per
    out += fill[k:]
    return out

def sched(M, rd, d, post, late, late_dma=False):
    n = len(M)
    gaps = [[] for _ in range(n)]
    if late_dma: rg = list(range(len(rd))); dg = [len(rd) + 2*k for k in range(len(d))]
    else:
        dg = [1 + 4*k for k in range(len(d))]; rg = [g for g in range(n) if g not in dg][:len(rd)]
    for g, t in zip(rg, rd): gaps[g].append(t)
    for g, (m_, l_) in zip(dg, d):
        gaps[g-1].append(m_); gaps[g].append(l_)
    def runs(ops):
        out = []
        for t in ops:
            if t.startswith("s_cselect") : out[-1].append(t)
            else: out.append([t])
        return out
    def put(run, g0):
        g = g0
        while g < n - 1 and len(gaps[g]) + len(run) > 3: g += 1
        gaps[g] += run
        return g
    g = (dg[len(d)-1] if d else 0)
    for r in runs(post): g = put(r, g)
    g = 0
    for r in runs(late):
        if r[0].startswith("v_"): g = max(g, rg[-1] if rg else 0)
        g = put(r, g)
    seq = []
    for i, m_ in enumerate(M):
        seq.append(m_); seq += gaps[i]
    return seq

FL = 32 << 20
FSH = int(OPT['fsh'])
PK1 = 208

def k1(a):
    N = NAME + "_kernel"
    head(a, N)
    XS, WS, WSL = 32768, 98304, 12288
    VD, VXB, VXA, VWB, VWA, VST, VPX, VPW, VPD = 10, 18, 20, 22, 24, 26, 27, 28, 29
    F = [32, 72]; ACC = 112; NV = 208
    PF = OPT["pf1"] == "1"
    DLT = int(OPT["dlt"]); PST = 2
    def A_(f, mt): return F[f] + 4*mt
    def B_(f, nb): return F[f] + 16 + 4*nb
    def acc(mt, nb): return ACC + (mt*6 + nb)*4
    a("s_cmp_ge_u32 s2, 256")
    a("s_cbranch_scc1 L2_end")
    stamp(a, 0); rstamp(a, 1)
    a("s_and_b32 s20, s2, 7")
    a("s_lshr_b32 s21, s2, 3")
    MIX = OPT["mix"] == "1"
    if MIX: a("s_lshr_b32 s22, s21, 4")
    else: a("s_lshr_b32 s22, s20, 2")
    a("s_mul_i32 s23, s22, 24")
    a("s_load_dwordx4 s[4:7], s[0:1], s23")
    a("s_load_dwordx4 s[96:99], s[0:1], 56")
    a("s_load_dwordx4 s[88:91], s[0:1], 0")
    a("v_lshrrev_b32 v1, 6, v0")
    a("v_and_b32 v0, 63, v0")
    a("v_readfirstlane_b32 s26, v1")
    a("s_and_b32 s24, s20, 1")
    a("s_lshl_b32 s24, s24, 2")
    a("s_and_b32 s25, s21, 3")
    a("s_add_u32 s24, s24, s25")
    if MIX:
        a("s_lshr_b32 s25, s20, 1")
        a("s_xor_b32 s53, s25, s22")
        a("s_lshl_b32 s25, s53, 2")
        a("s_bfe_u32 s27, s21, 0x20002")
    else:
        a("s_bfe_u32 s25, s20, 0x10001")
        a("s_lshl_b32 s25, s25, 3")
        a("s_lshr_b32 s27, s21, 2")
    a("s_add_u32 s25, s25, s27")
    a("s_and_b32 s31, s26, 3")
    a("s_lshr_b32 s32, s26, 2")
    PH = OPT["ph"]
    if PH == "0": a("s_mov_b32 s44, 0")
    elif PH == "1":
        a("s_lshl_b32 s44, s20, 1")
    elif PH == "2":
        a("s_lshl_b32 s44, s20, 1")
        a("s_and_b32 s45, s21, 1")
        a("s_add_u32 s44, s44, s45")
    elif PH in ("6", "7", "8"):
        a("s_lshr_b32 s54, s20, 1")
        a("s_lshl_b32 s54, s54, 2")
        a("s_and_b32 s45, s20, 1")
        a("s_mul_i32 s45, s45, 10")
        a("s_add_u32 s54, s54, s45")
        a("s_and_b32 s54, s54, 15")
        if PH == "6": a("s_and_b32 s45, s21, 1")
        elif PH == "7": a("s_mov_b32 s45, s22")
        else: a("s_mov_b32 s45, 0")
        a("s_add_u32 s44, s54, s45")
    elif PH == "5":
        a("s_lshl_b32 s44, s20, 1")
        a("s_add_u32 s44, s44, s22")
    elif PH == "3":
        a("s_lshl_b32 s44, s22, 1")
        a("s_and_b32 s45, s20, 1")
        a("s_add_u32 s44, s44, s45")
        a("s_lshl_b32 s44, s44, 2")
        a("s_and_b32 s45, s21, 3")
        a("s_add_u32 s44, s44, s45")
    elif PH == "4":
        a("s_lshl_b32 s44, s22, 1")
        a("s_and_b32 s45, s20, 1")
        a("s_add_u32 s44, s44, s45")
        a("s_lshl_b32 s44, s44, 2")
    a("v_lshrrev_b32 v2, 3, v0")
    a("v_and_b32 v3, 7, v0")
    a("v_lshrrev_b32 v4, 4, v0")

    def rdA(f, ks, mt): return [f"ds_read_b128 {vr(A_(f,mt))}, v{VXA+ks} offset:{mt*2048}"]
    def rdB(f, nb):
        o = (nb//2)*4096
        return [f"ds_read_b64_tr_b16 {vr(B_(f,nb),2)}, v{VWA+nb%2} offset:{o}",
                f"ds_read_b64_tr_b16 {vr(B_(f,nb)+2,2)}, v{VWA+nb%2} offset:{o+512}"]
    def reads(f, ks):
        r = rdB(f, 0)
        for mt in range(4): r += rdA(f, ks, mt)
        for nb in range(1, 6): r += rdB(f, nb)
        return r
    def mm(f):
        r = []
        for nb in range(6):
            for mt in range(4):
                if nb < 4: r.append(mfma16(acc(mt, nb), B_(f, nb), A_(f, mt)))
                else:      r.append(mfma16(acc(mt, nb), A_(f, mt), B_(f, nb)))
        return r

    def common_setup():
        srd(a, 16, 98, WS_BYTES)
        a("v_and_b32 v2, 15, v0")
        a("v_lshrrev_b32 v3, 4, v0")
        a("v_bfe_u32 v4, v0, 1, 3")
        a("s_lshl_b32 s33, s31, 13")
        a("v_lshlrev_b32 v5, 7, v2")
        a("v_add_u32 v5, s33, v5")
        a("v_xor_b32 v6, v3, v4")
        a(f"v_lshl_add_u32 v{VXB}, v6, 4, v5")
        a(f"v_xor_b32 v{VXB+1}, 64, v{VXB}")
        a(f"v_mov_b32 v{VXA}, v{VXB}")
        a(f"v_mov_b32 v{VXA+1}, v{VXB+1}")
        a("v_bfe_u32 v4, v0, 2, 2")
        a("v_lshl_add_u32 v4, v3, 3, v4")
        a("v_lshlrev_b32 v4, 7, v4")
        a("v_and_b32 v6, 3, v0")
        a("v_lshl_add_u32 v4, v6, 3, v4")
        a("v_bfe_u32 v5, v0, 3, 2")
        a("s_lshl_b32 s33, s32, 1")
        a("v_xor_b32 v5, s33, v5")
        a(f"v_lshl_add_u32 v{VWB}, v5, 5, v4")
        a(f"v_xor_b32 v{VWB+1}, 32, v{VWB}")
        a(f"v_add_u32 v{VWA}, {WS}, v{VWB}")
        a(f"v_add_u32 v{VWA+1}, {WS}, v{VWB+1}")
        a("v_lshlrev_b32 v4, 4, v2")
        a(f"v_lshl_add_u32 v{VST}, v3, 9, v4")
        for i in range(96): a(f"v_mov_b32 v{ACC+i}, 0")
        a("s_lshl_b32 s40, s22, 22")
        a("s_lshl_b32 s41, s25, 1")
        a("s_add_u32 s41, s41, s32")
        a("s_lshl_b32 s41, s41, 17")
        a("s_add_u32 s40, s40, s41")
        a("s_lshl_b32 s41, s24, 14")
        a("s_add_u32 s40, s40, s41")
        a("s_lshl_b32 s41, s31, 12")
        a("s_add_u32 s40, s40, s41")
        a(f"s_add_u32 s41, s40, {KF}")
        a(f"s_add_u32 s42, s40, {VF}")
        a(f"s_mov_b32 s43, {QSCALE:#x}")
        a("s_lshl_b32 s95, s25, 3")
        a("s_add_u32 s95, s95, s24")
        a("s_lshl_b32 s94, s95, 2")
        a("s_add_u32 s94, s94, s31")
        a("s_add_u32 s94, s94, 1408")
        a("s_add_u32 s95, s95, 1280")
        a("s_cmp_eq_u32 s22, 0")
        a("s_cselect_b32 s95, s95, s94")
        a(f"s_lshl_b32 s95, s95, {FSH}")
        a(f"s_add_u32 s95, s95, {FL}")
        srd(a, 80, 96, 256)
        a("s_mov_b32 s33, 0")
        a(f"s_mov_b32 s34, {WS}")
        a("s_mov_b32 s35, 0")

    wupd = [f"s_add_u32 s34, s34, {WSL}", f"s_cmp_eq_u32 s34, {WS+5*WSL}", f"s_cselect_b32 s34, {WS}, s34",
            f"v_add_u32 v{VWA}, s34, v{VWB}", f"v_add_u32 v{VWA+1}, s34, v{VWB+1}", "s_add_u32 s35, s35, 1"]
    xupd = [f"s_add_u32 s33, s33, {XS}", f"s_cmp_eq_u32 s33, {3*XS}", "s_cselect_b32 s33, 0, s33",
            f"v_add_u32 v{VXA}, s33, v{VXB}", f"v_add_u32 v{VXA+1}, s33, v{VXB+1}"]

    def mix(dma, other):
        out = []; o = list(other)
        for m, l in dma:
            out.append(m)
            out.append(o.pop(0) if o else "s_nop 0")
            out.append(l)
        return out + o

    def event(tag):
        a.lab(tag)
        if OPT["cpf"] == "1":
            a("s_cmp_ge_u32 s51, 0x100")
            a(f"s_cbranch_scc1 {tag}c")
        a("s_add_u32 s48, s54, s51")
        a("s_and_b32 s48, s48, 15")
        a("s_mul_i32 s48, s48, s52")
        a("s_add_u32 s48, s48, s50")
        a(f"buffer_load_dword v{VPD}, v{VPW}, s[84:87], s48 offen")
        a(f"s_add_u32 s51, s51, {PST}")
        a("s_lshl_b32 s49, s51, 1")
        a("s_max_u32 s49, s49, s39")
        a("s_sub_u32 s49, s49, s39")
        a(f"s_cmp_lt_u32 s51, {OPT['pfe']}")
        a(f"s_cbranch_scc1 {tag}r")
        a("s_mov_b32 s49, 0x7fff")
        if OPT["cpf"] == "1":
            a("s_cmp_eq_u32 s31, 3")
            a(f"s_cselect_b32 s49, {OPT['cpb']}, s49")
            a("s_mov_b32 s51, 0x100")
        a(f"s_branch {tag}r")
        if OPT["cpf"] == "1":
            a.lab(tag + "c")
            a("s_mov_b32 s49, 0x7fff")
            codepf(a, "L1_epi", "L1_epi+8192", 31)
            codepf(a, "L1_epi+8192", "L1_epi+16384", 9)
            codepf(a, "L1_epi+16384", "L2_slow0", 8)
            a(f"s_branch {tag}r")

    a("s_cmp_lg_u32 s32, 0")
    a("s_cbranch_scc1 L1_W")
    for cls in ("X", "W"):
        P = "L1" + cls
        if cls == "X":
            a("v_lshlrev_b32 v5, 11, v2")
            a("v_xor_b32 v6, v3, v4")
            a("v_lshl_add_u32 v6, v6, 4, v5")
            a("v_xor_b32 v7, 64, v6")
            a(f"v_mov_b32 v{VD}, v6")
            a(f"v_add_u32 v{VD+1}, 16384, v7")
            a(f"v_add_u32 v{VD+2}, 32768, v6")
            a(f"v_add_u32 v{VD+3}, 49152, v7")
            a("s_lshl_b32 s27, s24, 19")
            a("s_lshl_b32 s28, s31, 16")
            a("s_add_u32 s45, s27, s28")
            a("s_lshl_b32 s46, s44, 7")
            a("s_add_u32 s27, s45, s46")
            a("s_add_u32 s28, s27, 0x40000")
            a("s_lshl_b32 s29, s31, 12")
            a(f"s_add_u32 s30, s29, {6*16384}")
            a("s_waitcnt lgkmcnt(0)")
            if OPT["s2e"] == "1": stamp(a, 2)
            srd(a, 8, 4, 4 << 20)
            def grp(par):
                so = "s27" if par == 0 else "s28"
                d = [(f"s_add_u32 m0, s29, {j*1024}", f"buffer_load_dwordx4 v{VD+j}, s[8:11], {so} offen lds") for j in range(4)]
                post = ["s_add_u32 s29, s29, 16384"]
                if par == 0: post += ["s_add_u32 s46, s46, 128", "s_and_b32 s46, s46, 0x7ff", "s_add_u32 s27, s45, s46"]
                if par == 1: post += ["s_add_u32 s28, s27, 0x40000", "s_cmp_eq_u32 s29, s30", f"s_cselect_b32 s38, {6*16384}, 0", "s_sub_u32 s29, s29, s38"]
                return d, post
            NG = 4
        else:
            a.lab("L1_W")
            if OPT["cpf"] == "1":
                a("s_cmp_lg_u32 s26, 7")
                a("s_cbranch_scc1 L1_nocp")
                codepf(a, N, "L1_epi", VPD)
                a.lab("L1_nocp")
            a("v_mul_u32_u24 v5, 6144, v2")
            a("v_and_b32 v6, 1, v4")
            a("v_lshlrev_b32 v6, 1, v6")
            a("s_and_b32 s33, s26, 1")
            a("s_lshl_b32 s33, s33, 2")
            a("v_xor_b32 v6, v3, v6")
            a("v_xor_b32 v6, s33, v6")
            a(f"v_lshl_add_u32 v{VD}, v6, 4, v5")
            a(f"v_add_u32 v{VD+1}, 2048, v{VD}")
            a(f"v_add_u32 v{VD+2}, 4096, v{VD}")
            a("s_lshl_b32 s27, s25, 7")
            a(f"s_mul_i32 s28, s31, {8*6144}")
            a("s_add_u32 s27, s27, s28")
            a(f"s_mul_i32 s28, s44, {64*6144}")
            a("s_add_u32 s27, s27, s28")
            a("s_lshl_b32 s29, s31, 10")
            a(f"s_add_u32 s29, s29, {WS}")
            a(f"s_add_u32 s30, s29, {5*WSL}")
            a("s_waitcnt lgkmcnt(0)")
            if OPT["s2e"] == "1": stamp(a, 2)
            srd(a, 12, 6, 6 << 20)
            def pfsetup():
                a("s_and_b32 s47, s21, 7")
                a("s_bfe_u32 s51, s21, 0x10003")
                a(f"s_add_u32 s51, s51, {OPT['pf0']}")
                a("v_lshlrev_b32 v5, 11, v0")
                a("v_lshrrev_b32 v6, 2, v0")
                a("v_mul_u32_u24 v6, 6144, v6")
                a("v_and_b32 v7, 3, v0")
                a("v_lshl_add_u32 v6, v7, 7, v6")
                a("v_mul_u32_u24 v7, 6144, v0")
                a("s_cmp_lt_u32 s47, 4")
                a("s_cselect_b64 s[56:57], -1, 0")
                a("s_cselect_b32 s84, s88, s90")
                a("s_cselect_b32 s85, s89, s91")
                a(f"s_mov_b32 s86, {6<<20:#x}")
                a(f"s_cselect_b32 s86, {4<<20:#x}, s86")
                a("s_mov_b32 s87, 0x00020000")
                a(f"s_mov_b32 s52, {64*6144}")
                a("s_cselect_b32 s52, 128, s52")
                a(f"v_cndmask_b32 v{VPW}, v6, v5, s[56:57]")
                a("s_and_b32 s48, s20, 1")
                a("s_lshl_b32 s48, s48, 2")
                a("s_add_u32 s48, s48, s47")
                a("s_lshl_b32 s48, s48, 2")
                a("s_add_u32 s48, s48, s31")
                a("s_lshl_b32 s48, s48, 17")
                a("s_lshr_b32 s50, s20, 1")
                a("s_lshl_b32 s50, s50, 9")
                a("s_and_b32 s55, s47, 3")
                a("s_lshl_b32 s55, s55, 11")
                a("s_add_u32 s50, s50, s55")
                a(f"s_mul_i32 s55, s31, {16*6144}")
                a("s_add_u32 s50, s50, s55")
                a("s_cmp_lt_u32 s47, 4")
                a("s_cselect_b32 s50, s48, s50")
                a("s_and_b32 s48, s53, 2")
                a("s_lshl_b32 s48, s48, 9")
                a("s_lshl_b32 s55, s31, 11")
                a("s_add_u32 s48, s48, s55")
                a("s_add_u32 s48, s48, 384")
                a("s_bitcmp1_b32 s53, 0")
                a("s_cselect_b32 s90, s90, s6")
                a("s_cselect_b32 s91, s91, s7")
                a("s_cmp_eq_u32 s47, 7")
                a("s_cselect_b64 s[56:57], -1, 0")
                a("s_cselect_b32 s50, s48, s50")
                a("s_cselect_b32 s84, s90, s84")
                a("s_cselect_b32 s85, s91, s85")
                a("s_cselect_b32 s55, 3, 0")
                a(f"s_cselect_b32 s39, {4+DLT+int(OPT['xl'])}, {4+DLT}")
                a(f"v_cndmask_b32 v{VPW}, v{VPW}, v7, s[56:57]")
                a("s_and_b32 s48, s55, s31")
                a("s_cmp_eq_u32 s48, 3")
                a("s_cselect_b32 s86, 0, s86")
                if OPT["pfm"] != "255":
                    a(f"s_lshr_b32 s48, {OPT['pfm']}, s47")
                    a("s_and_b32 s48, s48, 1")
                    a("s_cselect_b32 s86, s86, 0")
                a("s_lshl_b32 s49, s51, 1")
                a("s_max_u32 s49, s49, s39")
                a("s_sub_u32 s49, s49, s39")
                a("s_cmp_eq_u32 s22, 0")
                a("s_cselect_b32 s49, 0x7fff, s49")
            def grp(par):
                d = [(f"s_add_u32 m0, s29, {g*4096}", f"buffer_load_dwordx4 v{VD+g}, s[12:15], s27 offen lds") for g in range(3)]
                post = [f"s_add_u32 s27, s27, {32*6144}", f"s_add_u32 s29, s29, {WSL}",
                        "s_cmp_eq_u32 s29, s30", f"s_cselect_b32 s38, {5*WSL}, 0", "s_sub_u32 s29, s29, s38"]
                if par == 1: post += [f"s_cmp_ge_u32 s27, {6<<20:#x}", f"s_cselect_b32 s38, {6<<20:#x}, 0", "s_sub_u32 s27, s27, s38"]
                return d, post
            NG = 3
        def emit_grp(par):
            d, post = grp(par)
            for t in mix(d, []) + post: a(t)
        first = 2 if cls == "X" else 1
        for n in range(first): emit_grp(n & 1)
        common_setup()
        if cls == "W" and PF: pfsetup()
        if cls == "X":
            a("s_lshl_b32 s47, s20, 2")
            a("s_lshr_b32 s48, s21, 3")
            a("s_add_u32 s47, s47, s48")
            a("s_and_b32 s48, s21, 7")
            a("s_lshl_b32 s49, s48, 5")
            a("s_add_u32 s49, s49, s47")
            a(f"s_lshl_b32 s49, s49, {FSH}")
            a(f"s_add_u32 s49, s49, {FL}")
            a("s_lshl_b32 s50, s48, 7")
            a("s_add_u32 s50, s50, s47")
            a("s_add_u32 s50, s50, 256")
            a(f"s_lshl_b32 s50, s50, {FSH}")
            a(f"s_add_u32 s50, s50, {FL}")
            a("v_and_b32 v9, 3, v0")
            a(f"v_lshlrev_b32 v8, {5+FSH}, v9")
            a("v_add_u32 v8, s50, v8")
            a(f"s_lshl_b32 s48, s22, {FSH}")
            a("v_mul_u32_u24 v9, s48, v9")
            a("v_add_u32 v9, s95, v9")
            a("s_mov_b64 s[50:51], 0xf00")
            a("v_cndmask_b32 v8, v8, v9, s[50:51]")
            a("v_mov_b32 v9, s49")
            a("s_mov_b64 s[50:51], 1")
            a("v_cndmask_b32 v8, v8, v9, s[50:51]")
            a("v_mov_b32 v9, 0")
            a("s_cmp_eq_u32 s31, 0")
            a("s_cselect_b64 exec, 0xff1, 0")
            a("s_cbranch_execz L1_nofl")
            a("buffer_store_dword v9, v8, s[16:19], 0 offen sc1")
            a.lab("L1_nofl")
            a("s_mov_b64 exec, -1")
        for n in range(first, 4): emit_grp(n & 1)
        npf = 0
        if cls == "W" and PF:
            a("s_cmp_eq_u32 s49, 0")
            a(f"s_cbranch_scc1 {P}_e0")
            a.lab(f"{P}_e0r")
        a(f"s_waitcnt vmcnt({(4-first)*NG + npf})")
        a("s_barrier")
        if cls == "X":
            a("v_mov_b32 v8, 1")
            a("s_mul_i32 s47, s2, 43")
            a("s_lshr_b32 s47, s47, 10")
            a("s_lshl_b32 s47, s47, 1")
            a("s_add_u32 s47, s47, 2")
            a("s_cmp_eq_u32 s31, 0")
            a("s_cselect_b32 s47, s47, 0x7fff")
        d, post = grp(0)
        for t in reads(0, 0) + mix(d, []) + post + wupd: a(t)
        if cls == "W": a(f"s_waitcnt vmcnt({3*NG + npf})")
        a("s_waitcnt lgkmcnt(0)")
        a("s_barrier")
        if cls == "W" and OPT["wp"] == "1": a("s_setprio 1")
        a(f"s_branch {P}_odd")
        a.raw(".p2align 6")
        a.lab(f"{P}_loop")
        for par in range(2):
            if par == 1: a.lab(f"{P}_odd")
            d, post = grp(par)
            rd = reads(par, par)
            tail = list(post) + wupd
            if par == 1:
                tail += xupd
            X = OPT["k1x"]
            if "d" in X: d = []
            if "r" in X: rd = []
            fill = rd[:8] + mix(d, rd[8:]) + tail
            if "o" not in X:
                late = [t for t in tail if t not in post]
                late = [t for t in late if not t.startswith("v_")] + [t for t in late if t.startswith("v_")]
                seq = sched(mm(1-par), rd, d, list(post), late, late_dma=("l" in X))
            elif "1" in X: seq = place(mm(1-par), fill, 2, 2)
            elif "3" in X: seq = place(mm(1-par), fill, 3, 0)
            elif "f" in X: seq = rd[:4] + place(mm(1-par), fill[4:], 2, 0)
            else: seq = place(mm(1-par), fill, 2, 0)
            if "p" in X: seq = ["s_setprio 1"] + seq[:len(seq)-8] + ["s_setprio 0"] + seq[len(seq)-8:]
            if "P" in X and cls == "W": seq = ["s_setprio 1"] + seq
            for t in seq: a(t)
            if cls == "W" and PF:
                a("s_cmp_ge_u32 s35, s49")
                a(f"s_cbranch_scc1 {P}_e{par+1}")
                a.lab(f"{P}_e{par+1}r")
            if par == 1 and cls == "X":
                a("s_cmp_eq_u32 s35, s47")
                a("s_cbranch_scc1 L1_at")
                a.lab("L1_atr")
            if par == 1: a("s_cmp_lt_u32 s35, 28")
            if cls == "W": a(f"s_waitcnt vmcnt({3*NG}) lgkmcnt(0)")
            elif par == 1: a(f"s_waitcnt vmcnt({2*NG}) lgkmcnt(0)")
            else: a("s_waitcnt lgkmcnt(0)")
            if "b" not in X and not ("h" in X and par == 0): a("s_barrier")
        if OPT["trip"] == "1":
            a("s_cselect_b32 s62, 1, 0")
            a("s_cmp_lg_u32 s35, 4")
            a(f"s_cbranch_scc1 {P}_t1")
            stamp(a, 2)
            a.lab(f"{P}_t1")
            a("s_cmp_lg_u32 s62, 0")
        a(f"s_cbranch_scc1 {P}_loop")
        a("s_branch L1_epi")
        if cls == "W" and PF:
            for k in range(3): event(f"{P}_e{k}")
        if cls == "X":
            a.lab("L1_at")
            a("s_mov_b64 exec, 1")
            a("buffer_atomic_add v8, v9, s[80:83], 0 offen sc1")
            a("s_mov_b64 exec, -1")
            a("s_branch L1_atr")
    a.lab("L1_epi")
    a("v_mov_b32 v9, 0")
    a("s_mov_b32 s44, s43")
    a("s_mov_b32 s45, s43")
    a(f"v_add_u32 v{VWA}, {WS}, v{VWB}")
    a(f"v_add_u32 v{VWA+1}, {WS}, v{VWB+1}")
    a("s_and_b32 s33, s22, s32")
    a(f"s_cselect_b32 s18, 0, s18")
    XF = lambda sl, mt: (32 if sl < 2 else 72 - 32) + 16*sl + 4*mt
    WBUF = [64, 240, 248, 104]
    def tx(sl): return [f"ds_read_b128 {vr(XF(sl, mt))}, v{(VXA if sl < 2 else VXB) + (sl & 1)} offset:{mt*2048}" for mt in range(4)]
    def tw(gi):
        seg, sl = G[gi]; b = WBUF[gi % 4]; o = ((28 + sl) % 5)*WSL + seg*4096
        return [f"ds_read_b64_tr_b16 {vr(b+4*u+2*i,2)}, v{VWA+u} offset:{o+512*i}" for u in range(2) for i in range(2)]
    def tm(gi):
        seg, sl = G[gi]; b = WBUF[gi % 4]; r = []
        for u in range(2):
            for mt in range(4):
                if seg < 2: r.append(mfma16(acc(mt, 2*seg+u), b+4*u, XF(sl, mt)))
                else:       r.append(mfma16(acc(mt, 2*seg+u), XF(sl, mt), b+4*u))
        return r
    G = [(0, 0), (1, 0), (0, 1), (0, 2), (0, 3), (1, 1), (1, 2), (1, 3), (2, 0), (2, 1), (2, 2), (2, 3)]
    jobs = []
    for T in range(2):
        for sg in range(2): jobs.append((1, acc(2*T+sg, 2), acc(2*T+sg, 3), T*2048 + sg*256))
    for T in range(2):
        for sg in range(2): jobs.append((0, acc(2*T+sg, 0), acc(2*T+sg, 1), T*2048 + sg*256))
    for T in range(2):
        for u in range(2):  jobs.append((2, acc(2*T, 4+u), acc(2*T+1, 4+u), T*2048 + u*256))
    def conv(n):
        seg, b0, b1, off = jobs[n]; t0 = PK1 + 4*n; r = []
        if seg == 0: r += [f"v_pk_mul_f32 v[{b+q}:{b+q+1}], v[{b+q}:{b+q+1}], s[44:45]" for b in (b0, b1) for q in (0, 2)]
        r += [f"v_cvt_pk_bf16_f32 v{t0}, v{b0}, v{b0+1}", f"v_cvt_pk_bf16_f32 v{t0+1}, v{b0+2}, v{b0+3}",
              f"v_cvt_pk_bf16_f32 v{t0+2}, v{b1}, v{b1+1}", f"v_cvt_pk_bf16_f32 v{t0+3}, v{b1+2}, v{b1+3}",
              f"buffer_store_dwordx4 {vr(t0)}, v{VST}, s[16:19], s{40+seg} offen offset:{off} sc1"]
        return r
    lds = []
    def emit(M, rd, tags, other, skip=0):
        o = list(other)
        for i, m_ in enumerate(M):
            a(m_)
            n_ = 2
            if i < len(rd):
                a(rd[i]); lds.append(tags[i]); n_ = 1
            if i >= skip:
                for _ in range(n_):
                    if o and not (i < len(rd) and o[0].startswith("buffer")): a(o.pop(0))
        return o
    def need(tags):
        last = max(i for i, x in enumerate(lds) if x in tags)
        a(f"s_waitcnt lgkmcnt({min(15, len(lds) - 1 - last)})")
    emit(mm(1), tx(0) + tw(0) + tw(1) + tx(1), ["x0"]*4 + ["w0"]*4 + ["w1"]*4 + ["x1"]*4, [])
    a("s_waitcnt vmcnt(6)")
    a("s_barrier")
    need(["x0", "w0"])
    emit(tm(0), tw(2), ["w2"]*4, [])
    a("s_waitcnt vmcnt(0)")
    a("s_barrier")
    a("s_cmp_lg_u32 s26, 5")
    a("s_cbranch_scc1 L1_noc")
    a("buffer_load_dword v8, v9, s[80:83], 0 offen sc1")
    a.lab("L1_noc")
    need(["w1"])
    emit(tm(1), tx(2) + tw(3), ["x2"]*4 + ["w3"]*4, [])
    need(["w2", "x1"])
    emit(tm(2), tx(3) + tw(4), ["x3"]*4 + ["w4"]*4, [])
    pend = []
    for gi in range(3, 12):
        need([f"w{gi}", f"x{G[gi][1]}"])
        had = len(pend) >= 6
        if gi == 5: pend += [t for n in range(4, 8) for t in conv(n)]
        if gi == 8: pend += [t for n in range(4) for t in conv(n)]
        rd = tw(gi + 2) if gi + 2 < 12 else []
        pend = emit(tm(gi), rd, [f"w{gi+2}"]*4, pend, skip=(3 if gi == 5 else (3 if gi == 8 and not had else 0)))
    if OPT["pst"] == "0": stamp(a, 2)
    for t in pend: a(t)
    a("s_nop 1")
    a("s_cmp_lg_u32 s22, 0")
    a("s_cselect_b32 s18, 0, s18")
    for n in (8, 10, 9, 11):
        for t in conv(n): a(t)
    a.lab("L1_done")
    a("s_setprio 0")
    a(f"v_mov_b32 v200, v{VST}")
    a("s_mov_b32 s92, s40")
    a("s_mov_b32 s93, s41")
    a("s_mov_b32 s94, s42")
    a("s_mov_b32 s24, s26")
    return [(seg, off) for seg, _, _, off in jobs]

def kperm(rho):
    return ((rho >> 2) & 1) * 16 + (rho >> 3) * 4 + (rho & 3)

SLOTS = [131072, 0, 65536, 32768, 98304]

def k2(a, jobs):
    N = NAME + "_kernel"
    VL16, VKA, VVA, VIDX, VM, VT, VKL = 1, 2, 3, 4, 5, 6, 7
    ONES = 8; Q = [12, 20]; NEG = [28, 44]; O = [60, 76]; L = [92, 96]; KB = [100, 108]; VB = [116, 124]; S = [132, 148, 164, 180]
    NV = 256
    PF = OPT["pf3"] == "1"
    def sm32(d, av, b): return f"v_smfmac_f32_32x32x32_bf16 {vr(d,16)}, {vr(av)}, {vr(b,8)}, v{VIDX}"
    def sm16(l, b): return f"v_smfmac_f32_16x16x64_bf16 {vr(l)}, {vr(ONES)}, {vr(b,8)}, v{VIDX}"
    def ld(d, soff, off=0, v=VL16): a(f"buffer_load_dwordx4 {vr(d)}, v{v}, s[8:11], {soff} offen offset:{off} sc1")
    def xhalf_max():
        a(f"v_max_f32 v{VM}, v{VM}, v{VT}")
        a("s_nop 0")
        a(f"v_mov_b32 v{VT}, v{VM}")
        a("s_nop 1")
        a(f"v_permlane32_swap_b32 v{VM}, v{VT}")
        a("s_nop 1")
        a(f"v_max_f32 v{VM}, v{VM}, v{VT}")
    def maxof(vals):
        a(f"v_max3_f32 v{VM}, v{vals[0]}, v{vals[1]}, v{vals[2]}")
        a(f"v_max3_f32 v{VT}, v{vals[3]}, v{vals[4]}, v{vals[5]}")
        for i in range(6, len(vals) - 2, 4):
            a(f"v_max3_f32 v{VM}, v{VM}, v{vals[i]}, v{vals[i+1]}")
            a(f"v_max3_f32 v{VT}, v{VT}, v{vals[i+2]}, v{vals[i+3]}")
        a(f"v_max3_f32 v{VM}, v{VM}, v{vals[-2]}, v{vals[-1]}")
        xhalf_max()
    def finish(soff, off, T, o, l):
        a(f"v_rcp_f32 v{VT}, v{l}")
        a("s_nop 0")
        for i in range(16): a(f"v_mul_f32 v{o+i}, v{o+i}, v{VT}")
        for i in range(8): a(f"v_cvt_pk_bf16_f32 v{T+i}, v{o+2*i}, v{o+2*i+1}")
        a(f"buffer_store_dwordx4 {vr(T)}, v{VL16}, s[8:11], {soff} offen{OPT['st2']}")
        a(f"buffer_store_dwordx4 {vr(T+4)}, v{VL16}, s[8:11], {soff} offen offset:1024{OPT['st2']}")
    def consts():
        a(f"v_mov_b32 v{VIDX}, 0xdddddddd")
        a("v_bfe_u32 v5, v0, 2, 1")
        a("v_cmp_eq_u32 vcc, 0, v5")
        a("v_mov_b32 v6, 0x3f803f80")
        a("s_nop 0")
        a(f"v_cndmask_b32 v{ONES}, 0, v6, vcc")
        a(f"v_cndmask_b32 v{ONES+1}, 0, v6, vcc")
        a(f"v_cndmask_b32 v{ONES+2}, v6, 0, vcc")
        a(f"v_cndmask_b32 v{ONES+3}, v6, 0, vcc")
    a("s_lshr_b32 s60, s21, 4")
    a("s_mul_i32 s22, s60, 24")
    a("s_add_u32 s22, s22, 16")
    a("s_load_dwordx2 s[6:7], s[0:1], s22")
    a("s_load_dwordx2 s[58:59], s[0:1], 48")
    a("s_lshl_b32 s22, s20, 2")
    a("s_lshr_b32 s23, s21, 3")
    a("s_add_u32 s22, s22, s23")
    a("s_and_b32 s23, s21, 7")
    a(f"v_lshlrev_b32 v{VL16}, 4, v0")
    a("s_and_b32 s28, s24, 3")
    a("s_lshl_b32 s25, s23, 3")
    a("s_lshl_b32 s29, s28, 1")
    a("s_add_u32 s25, s25, s29")
    a("s_lshl_b32 s26, s22, 17")
    a("s_lshl_b32 s27, s25, 11")
    a("s_add_u32 s27, s27, s26")
    a("v_bfe_u32 v5, v0, 2, 1")
    a("v_and_b32 v6, 0x23, v0")
    a("v_lshl_or_b32 v6, v5, 4, v6")
    a("v_bfe_u32 v5, v0, 3, 2")
    a("v_lshl_or_b32 v6, v5, 2, v6")
    a(f"v_lshlrev_b32 v{VKL}, 4, v6")
    a(f"s_add_u32 s33, s26, {KF}")
    a("s_lshl_b32 s37, s25, 16")
    a("s_lshl_b32 s38, s22, 11")
    a("s_add_u32 s37, s37, s38")
    a(f"s_add_u32 s37, s37, {OF}")
    a("s_lshr_b32 s61, s20, 1")
    a("s_lshl_b32 s61, s61, 2")
    a("s_and_b32 s62, s21, 3")
    a("s_add_u32 s61, s61, s62")
    a("s_and_b32 s62, s20, 1")
    a("s_lshl_b32 s62, s62, 2")
    a("s_bfe_u32 s63, s21, 0x20002")
    a("s_add_u32 s62, s62, s63")
    a("s_lshl_b32 s63, s23, 5")
    a("s_add_u32 s63, s63, s22")
    a(f"s_lshl_b32 s63, s63, {FSH}")
    a(f"s_add_u32 s63, s63, {FL}")
    a("s_cmp_ge_u32 s24, 4")
    a("s_cbranch_scc1 L2_help")
    srd(a, 8, 98, WS_BYTES)
    consts()
    a("s_add_u32 s38, s37, 0x10000")
    a(f"v_mov_b32 v{VKA}, v{VKL}")
    a(f"v_add_u32 v{VVA}, 0x10000, v{VL16}")
    for i in range(40): a(f"v_mov_b32 v{O[0]+i}, 0")
    for i in range(16): a(f"v_mov_b32 v{S[3]+i}, 0")
    for i in range(8): a(f"v_mov_b32 v{VB[1]+i}, 0")
    a("s_mov_b32 s39, 0")
    a("s_mov_b32 s40, 0")
    a("s_waitcnt lgkmcnt(0)")
    if OPT["df"] == "1":
        a("s_cmp_lg_u32 s60, 0")
        a("s_cbranch_scc1 L2_x1")
    a("s_waitcnt vmcnt(0)")
    a.lab("L2_x1")
    a("s_barrier")
    if OPT["pst"] == "0": stamp(a, 3)
    a("s_barrier")
    if OPT["pst"] == "0": stamp(a, 4)
    if OPT["pst"] == "3": stamp(a, 5)
    ld(Q[0], "s27"); ld(KB[0], "s33", 0, VKL); ld(Q[0]+4, "s27", 1024); ld(KB[0]+4, "s33", 1024, VKL)
    ld(Q[1], "s27", 2048); ld(Q[1]+4, "s27", 3072)
    ld(KB[1], "s33", 2048, VKL); ld(KB[1]+4, "s33", 3072, VKL)
    a("s_waitcnt vmcnt(4)")
    a(mfma(S[0], KB[0], Q[0], "0")); a(mfma(S[0], KB[0]+4, Q[0]+4))
    a("s_waitcnt vmcnt(2)")
    if OPT["pst"] == "3": stamp(a, 2)
    a(mfma(S[1], KB[0], Q[1], "0")); a(mfma(S[1], KB[0]+4, Q[1]+4))
    a("s_nop 8")
    maxof([S[0]+r for r in range(16)])
    for i in range(16): a(f"v_sub_f32 v{NEG[0]+i}, 0, v{VM}")
    for i in range(16): a(f"v_sub_f32 v{S[0]+i}, v{S[0]+i}, v{VM}")
    maxof([S[1]+r for r in range(16)])
    for i in range(16): a(f"v_sub_f32 v{NEG[1]+i}, 0, v{VM}")
    a("s_waitcnt vmcnt(0)")
    if OPT["pst"] == "3": stamp(a, 3)
    a("s_barrier")
    if OPT["pst"] == "3": stamp(a, 4)
    if OPT["pst"] == "0": stamp(a, 5)
    if OPT["pst"] == "2":
        stamp(a, 2); a("s_memtime s[72:73]")
    if OPT["tlb"] == "1": a(f"buffer_load_dword v196, v{VL16}, s[8:11], s37 offen")
    if OPT["cp"] != "0": a(f"s_setprio {OPT['cp']}")
    a("s_cmp_eq_u32 s60, 0")
    a("s_cbranch_scc1 L2_it3")
    for n in range(8, 12):
        a(f"buffer_store_dwordx4 {vr(PK1+4*n)}, v200, s[8:11], s94 offen offset:{jobs[n][1]} sc1")
    a("s_branch L2_it3")

    def item(p, qk=True, rd=True, pre=None, post=None):
        n = (p - 3) % 16
        i = n >> 1; qt = n & 1
        Sn, Sc, Sp = S[(n+1) % 4], S[n % 4], S[(n-1) % 4]
        qn = (n+1) & 1; kbu = KB[((n+1) >> 1) % 2]
        qp = (n-1) & 1; vbu = VB[((n-1) >> 1) % 2]
        if qt == 1:
            kt = (i + 2) % 8
            r = [f"ds_read_b128 {vr(KB[i % 2])}, v{VKA} offset:{kt*2048}", f"ds_read_b128 {vr(KB[i % 2]+4)}, v{VKA} offset:{kt*2048+1024}"]
        else:
            r = [f"ds_read_b128 {vr(VB[i % 2])}, v{VVA} offset:{i*2048}", f"ds_read_b128 {vr(VB[i % 2]+4)}, v{VVA} offset:{i*2048+1024}"]
        if not rd or "r" in OPT["k2x"]: r = []
        ex = [f"v_exp_f32 v{Sc+k}, v{Sc+k}" for k in range(16)]
        post = list(post or [])
        seq = []
        if qk: seq.append(mfma(Sn, kbu, Q[qn], NEG[qn]))
        seq += post[0:1] + ex[0:3]
        if qk: seq.append(mfma(Sn, kbu+4, Q[qn]+4))
        seq += ["s_waitcnt lgkmcnt(0)"] + list(pre or []) + ex[3:6]
        seq.append(sm32(O[qp], vbu, Sp))
        seq += r[:1] + ex[6:9]
        seq.append(sm16(L[qp], Sp))
        seq += post[1:3] + ex[9:10]
        seq.append(sm32(O[qp], vbu+4, Sp+8))
        seq += r[1:] + ex[10:13]
        seq.append(sm16(L[qp], Sp+8))
        seq += post[3:] + ex[13:16]
        for t in seq: a(t)

    a.raw(".p2align 6")
    a.lab("L2_loop")
    item(0, pre=["s_waitcnt vmcnt(0)", "s_barrier", f"v_add_u32 v{VKA}, s40, v{VKL}"])
    item(1); item(2)
    a(f"v_add_u32 v{VVA}, s41, v{VL16}")
    a.lab("L2_it3")
    for p in range(3, 15): item(p)
    item(15, post=["s_add_u32 s40, s40, 16384", "s_and_b32 s40, s40, 0xffff", "s_add_u32 s41, s40, 0x10000", "s_add_u32 s39, s39, 1", "s_cmp_lt_u32 s39, 8"])
    if OPT["trip"] != "0":
        a("s_cselect_b32 s57, 1, 0")
        for n, tr in zip((2, 3, 4), OPT["trip"].split(",")):
            a(f"s_cmp_lg_u32 s39, {int(tr)+1}")
            a(f"s_cbranch_scc1 L2_t{n}")
            stamp(a, n)
            a.lab(f"L2_t{n}")
        a("s_cmp_lg_u32 s57, 0")
    a("s_cbranch_scc1 L2_loop")
    item(0, rd=False)
    item(1)
    item(2, qk=False, rd=False)
    a("s_nop 1")
    Sp = S[3]
    a(sm32(O[1], VB[1], Sp)); a(sm16(L[1], Sp)); a(sm32(O[1], VB[1]+4, Sp+8)); a(sm16(L[1], Sp+8))
    a("s_nop 4")
    if OPT["pst"] == "1": stamp(a, 5)
    if OPT["pst"] == "2":
        stamp(a, 3); a("s_memtime s[74:75]")
    for qt in range(2):
        a(f"v_mul_f32 v{VM}, 0, v{O[qt]}")
        for i in range(1, 16): a(f"v_fma_f32 v{VM}, v{O[qt]+i}, 0, v{VM}")
        a(f"v_add_f32 v{VM}, v{VM}, v{L[qt]}")
        a(f"v_mov_b32 v{VT}, {f2u(2.0**64):#x}")
        a(f"v_cmp_nlt_f32 vcc, v{VM}, v{VT}")
        a("s_nop 4")
        a(f"s_cbranch_vccnz L2_slow{qt}")
        a.lab(f"L2_fin{qt}")
        finish("s37" if qt == 0 else "s38", 0, S[1+qt], O[qt], L[qt])
    VOB, VOA, VWB, VWA, VST = 10, 11, 12, 16, 20
    F = [24, 56]; ACC = 88
    def Of(f, mt): return F[f] + 4*mt
    def Wf(f, nb): return F[f] + 16 + 4*nb
    def acc(mt, nb): return ACC + (mt*4 + nb)*4
    a("s_and_b32 s31, s24, 1")
    a("s_lshr_b32 s32, s24, 1")
    a("v_and_b32 v2, 15, v0")
    a("v_lshrrev_b32 v3, 4, v0")
    a("s_lshl_b32 s33, s31, 13")
    a("v_lshlrev_b32 v4, 4, v2")
    a("v_lshl_add_u32 v4, v3, 9, v4")
    a(f"v_add_u32 v{VOB}, s33, v4")
    a(f"v_add_u32 v{VOA}, {SLOTS[0]}, v{VOB}")
    a("v_bfe_u32 v4, v0, 2, 3")
    a("v_lshrrev_b32 v5, 5, v0")
    a("v_lshl_add_u32 v5, v5, 4, v4")
    a("v_lshlrev_b32 v5, 8, v5")
    a("v_and_b32 v6, 3, v0")
    a("v_lshl_add_u32 v5, v6, 3, v5")
    a("v_add_u32 v5, 16384, v5")
    a("s_lshl_b32 s33, s32, 2")
    a("v_xor_b32 v4, s33, v4")
    a(f"v_lshl_add_u32 v{VWB}, v4, 5, v5")
    for nb in range(1, 4): a(f"v_xor_b32 v{VWB+nb}, {nb*32}, v{VWB}")
    for nb in range(4): a(f"v_add_u32 v{VWA+nb}, {SLOTS[0]}, v{VWB+nb}")
    for i in range(64): a(f"v_mov_b32 v{ACC+i}, 0")
    for i in range(5): a(f"s_mov_b32 s{44+i}, {SLOTS[(i+1) % 5]}")
    a("s_mov_b32 s35, 0")
    srd(a, 16, 58, 8 << 20)
    a("s_lshl_b32 s40, s61, 19")
    a("s_lshl_b32 s41, s31, 18")
    a("s_add_u32 s40, s40, s41")
    a("s_lshl_b32 s41, s60, 11")
    a("s_add_u32 s40, s40, s41")
    a("s_lshl_b32 s41, s62, 8")
    a("s_add_u32 s40, s40, s41")
    a("s_lshl_b32 s41, s32, 7")
    a("s_add_u32 s40, s40, s41")
    def rdO(f, ks, mt): return [f"ds_read_b128 {vr(Of(f,mt))}, v{VOA} offset:{(mt>>1)*4096 + ks*2048 + (mt&1)*256}"]
    def rdW(f, ks, nb): return [f"ds_read_b64_tr_b16 {vr(Wf(f,nb),2)}, v{VWA+nb} offset:{ks*8192}",
                                f"ds_read_b64_tr_b16 {vr(Wf(f,nb)+2,2)}, v{VWA+nb} offset:{ks*8192+2048}"]
    def reads(f, ks):
        return [rdO(f, ks, 0)] + [rdW(f, ks, nb) for nb in range(4)] + [rdO(f, ks, mt) for mt in (1, 2, 3)]
    def mm(f):
        return [mfma16(acc(mt, nb), Wf(f, nb), Of(f, mt)) for mt in range(4) for nb in range(4)]
    a("s_waitcnt vmcnt(0)")
    if OPT["pst"] == "1": stamp(a, 2)
    a("s_barrier")
    if OPT["opf"] != "0":
        a("s_lshl_b32 s36, s60, 22")
        a("s_lshl_b32 s39, s61, 18")
        a("s_add_u32 s36, s36, s39")
        a("s_lshl_b32 s39, s24, 16")
        a("s_add_u32 s36, s36, s39")
        a("s_and_b32 s39, s62, 3")
        a("s_lshl_b32 s39, s39, 14")
        a("s_add_u32 s36, s36, s39")
        a(f"s_add_u32 s36, s36, {OF}")
        a("s_add_u32 s39, s36, 8192")
        a("v_lshlrev_b32 v21, 7, v0")
    a("s_barrier")
    if OPT["opf"] != "0":
        if OPT["opf"] == "2": a("s_sleep 3")
        a("buffer_load_dword v22, v21, s[8:11], s36 offen sc1")
        a("buffer_load_dword v23, v21, s[8:11], s39 offen sc1")
    a("s_barrier")
    if OPT["pst"] == "1": stamp(a, 3)
    flat = lambda g: [t for x in g for t in x]
    def block(f, rd, extra):
        M = mm(f)
        a("s_waitcnt lgkmcnt(3)")
        for i, m_ in enumerate(M):
            if i in (4, 8, 12): a(f"s_waitcnt lgkmcnt({min(15, (2 - (i//4 - 1)) + min(i, len(rd)))})")
            a(m_)
            if i < len(rd): a(rd[i])
            for t in extra.get(i, []): a(t)
    for t in flat(reads(0, 0)): a(t)
    a("s_branch L3_mid")
    a.raw(".p2align 6")
    a.lab("L3_loop")
    block(1, flat(reads(0, 0)), {})
    a.lab("L3_mid")
    block(0, flat(reads(1, 1)), {0: (["s_barrier"] if OPT["la"] == "4" else []) + ["s_mov_b32 s33, s44"], 15: (["s_waitcnt lgkmcnt(0)", "s_barrier"] if OPT["la"] == "5" else []), 1: ["s_mov_b32 s44, s45", "s_mov_b32 s45, s46"],
                                 2: ["s_mov_b32 s46, s47", "s_mov_b32 s47, s48"], 3: ["s_mov_b32 s48, s33"],
                                 5: ["s_add_u32 s35, s35, 1", "s_cmp_lt_u32 s35, 16"],
                                 9: [f"v_add_u32 v{VWA}, s33, v{VWB}"], 10: [f"v_add_u32 v{VWA+1}, s33, v{VWB+1}"],
                                 11: [f"v_add_u32 v{VWA+2}, s33, v{VWB+2}"], 12: [f"v_add_u32 v{VWA+3}, s33, v{VWB+3}"], 13: [f"v_add_u32 v{VOA}, s33, v{VOB}"]})
    a("s_cbranch_scc1 L3_loop")
    block(1, [], {})
    if OPT["pst"] == "1": stamp(a, 4)
    a("s_mul_i32 s41, s24, 9216")
    a("v_mul_u32_u24 v4, 144, v2")
    a("v_lshl_add_u32 v4, v3, 3, v4")
    a("v_add_u32 v4, s41, v4")
    a("v_lshrrev_b32 v5, 3, v0")
    a("v_mul_u32_u24 v6, 144, v5")
    a("v_and_b32 v7, 7, v0")
    a("v_lshl_add_u32 v6, v7, 4, v6")
    a("v_add_u32 v6, s41, v6")
    a("v_lshlrev_b32 v5, 12, v5")
    a(f"v_lshl_add_u32 v{VST}, v7, 4, v5")
    for mt in range(4):
        for nb in range(4):
            b = acc(mt, nb); t0 = F[0] + 2*(mt*4 + nb)
            a(f"v_cvt_pk_bf16_f32 v{t0}, v{b}, v{b+1}")
            a(f"v_cvt_pk_bf16_f32 v{t0+1}, v{b+2}, v{b+3}")
            a(f"ds_write_b64 v4, {vr(t0,2)} offset:{mt*16*144 + nb*32}")
        a(f"ds_read_b128 {vr(F[1]+8*mt)}, v6 offset:{mt*16*144}")
        a(f"ds_read_b128 {vr(F[1]+8*mt+4)}, v6 offset:{mt*16*144 + 8*144}")
        if mt >= 1:
            a("s_waitcnt lgkmcnt(6)")
            for h in range(2):
                a(f"buffer_store_dwordx4 {vr(F[1]+8*(mt-1)+4*h)}, v{VST}, s[16:19], s40 offen{OPT['st3']}")
                a(f"s_add_u32 s40, s40, {8*4096}")
    a("s_waitcnt lgkmcnt(0)")
    for h in range(2):
        a(f"buffer_store_dwordx4 {vr(F[1]+24+4*h)}, v{VST}, s[16:19], s40 offen{OPT['st3']}")
        a(f"s_add_u32 s40, s40, {8*4096}")
    dump(a, 0, "s24")
    a.lab("L2_end")
    a("s_endpgm")

    a.lab("L2_help")
    issued = []
    MC, MP, MP0, SC, SP, OB, LB = 12, 28, 44, 60, 76, [92, 112], [108, 128]
    QB = [132, 140]; KX = [148, 156, 164]; VX = [172, 180, 188]; VPF = 2
    a("s_lshl_b32 s34, s28, 12")
    a("s_add_u32 s35, s33, s34")
    a(f"s_add_u32 s36, s35, {VF-KF}")
    srd(a, 8, 98, WS_BYTES)
    def dma_stage(st):
        for base, so in ((0, "s35"), (65536, "s36")):
            a(f"s_add_u32 m0, s34, {base + (st % 4)*16384}")
            a("s_nop 0")
            for j in range(4):
                a(f"buffer_load_dwordx4 v{VL16}, s[8:11], {so} offen offset:{j*1024} sc1 lds")
            a(f"s_add_u32 {so}, {so}, 16384")
        issued.extend([f"s{st}"]*8)
    def late1():
        consts()
        a(f"s_add_u32 s28, s27, {4<<20}")
        a(f"s_add_u32 s29, s28, {KF}")
        a(f"s_add_u32 s30, s28, {VF}")
        a("s_cmp_eq_u32 s25, 0")
        a("s_cselect_b32 s32, 0, 2048")
        a("s_cselect_b64 s[44:45], 0, -1")
        a("s_sub_u32 s31, s29, s32")
        a("s_sub_u32 s32, s30, s32")
        a(f"s_add_u32 s37, s37, {4<<20}")
        a("s_add_u32 s38, s37, 0x10000")
        if PF:
            a("v_lshrrev_b32 v5, 3, v0")
            a("v_lshlrev_b32 v5, 11, v5")
            a("v_and_b32 v6, 7, v0")
            a(f"v_lshl_add_u32 v{VPF}, v6, 7, v5")
            a("v_cmp_gt_u32 vcc, 32, v0")
            a("v_mov_b32 v5, 0x7fffff00")
            a("s_and_b32 s47, s21, 15")
            a("s_lshl_b32 s47, s47, 17")
            a(f"v_cndmask_b32 v{VPF}, v5, v{VPF}, vcc")
            a("s_lshl_b32 s46, s34, 3")
            a("s_add_u32 s47, s47, s46")
            a("s_and_b32 s46, s20, 1")
            a("s_lshl_b32 s46, s46, 10")
            a("s_add_u32 s47, s47, s46")
    def pf():
        if PF:
            a(f"buffer_load_dword v{VPF+1}, v{VPF}, s[16:19], s47 offen")
            a("s_add_u32 s47, s47, 8192")
    VWD0, VWD1, VFL, VFD = 196, 197, 198, 199
    def dma_w(st):
        sl = SLOTS[st % 5] + 16384
        a(f"s_add_u32 m0, s34, {sl}")
        a("s_nop 0")
        a(f"buffer_load_dwordx4 v{VWD0}, s[16:19], s40 offen lds")
        a("s_add_u32 m0, m0, 1024")
        a("s_nop 0")
        a(f"buffer_load_dwordx4 v{VWD1}, s[16:19], s40 offen lds")
        a("s_add_u32 m0, m0, 1024")
        a(f"s_add_u32 s40, s40, {64*2048}")
        a(f"buffer_load_dwordx4 v{VWD0}, s[16:19], s41 offen lds")
        a("s_add_u32 m0, m0, 1024")
        a("s_nop 0")
        a(f"buffer_load_dwordx4 v{VWD1}, s[16:19], s41 offen lds")
        a(f"s_add_u32 s41, s41, {64*2048}")
    def dma_o(st):
        a(f"s_add_u32 m0, s34, {SLOTS[st % 5]}")
        a("s_nop 0")
        for j in range(4):
            a(f"buffer_load_dwordx4 v{VL16}, s[8:11], s39 offen offset:{j*1024}{OPT['osc']} lds")
        a("s_add_u32 s39, s39, 4096")
    def poll(tag, voff, soff, srd_="s[8:11]", val=1, cmp_="ne"):
        a("s_mov_b32 s43, 0")
        a.lab(tag)
        a(f"buffer_load_dword v{VFD}, v{voff}, {srd_}, {soff} offen sc1")
        a("s_add_u32 s43, s43, 1")
        a("s_waitcnt vmcnt(0)")
        a(f"v_cmp_{cmp_}_u32 vcc, {val}, v{VFD}")
        a("s_cmp_gt_u32 s43, 0x200000")
        a(f"s_cbranch_scc1 {tag}x")
        a("s_nop 2")
        a(f"s_cbranch_vccz {tag}x")
        a(f"s_sleep {OPT['slp']}")
        a(f"s_branch {tag}")
        a.lab(tag + "x")
    def lanemask(r, prev):
        m = 0
        for l in range(64):
            q = l & 31; hh = l >> 5
            key = kperm(8*(r//4) + 4*hh + r % 4)
            d = q - key + (32 if prev else 0)
            if 0 <= d <= 14 and d % 2 == 0: m |= 1 << l
        return m
    def masks(prev):
        k = 0
        a(f"v_mov_b32 v{VT}, {NEGBIG:#x}")
        for i in range(20): a(f"v_mov_b32 v{OB[prev]+i}, 0")
        for r in range(16):
            m = lanemask(r, prev)
            sp = 48 + 2*(k % 4); k += 1
            a(f"s_mov_b32 s{sp}, {m & 0xffffffff:#x}")
            a(f"s_mov_b32 s{sp+1}, {m >> 32:#x}")
            a(f"v_cndmask_b32 v{(MP if prev else MC)+r}, v{VT}, 0, s[{sp}:{sp+1}]")
            if prev: a(f"v_cndmask_b32 v{MP0+r}, v{VT}, v{MP+r}, s[44:45]")
    def bcomp(t):
        keep = a.l; a.l = []
        kc, kp, vc, vp = KX[t+1], KX[t], VX[t+1], VX[t]
        ob, lb = OB[t], LB[t]
        a(mfma(SC, kc, QB[t], MC)); a(mfma(SP, kp, QB[t], MP0 if t == 0 else MP))
        a(mfma(SC, kc+4, QB[t]+4)); a(mfma(SP, kp+4, QB[t]+4))
        a("s_nop 10")
        vals = [SC+r for r in range(16)] + [SP+r for r in range(16)]
        maxof(vals)
        for v in vals: a(f"v_sub_f32 v{v}, v{v}, v{VM}")
        for v in vals: a(f"v_exp_f32 v{v}, v{v}")
        a("s_nop 1")
        a(sm32(ob, vc, SC)); a(sm16(lb, SC)); a(sm32(ob, vc+4, SC+8)); a(sm16(lb, SC+8))
        a(sm32(ob, vp, SP)); a(sm16(lb, SP)); a(sm16(lb, SP+8)); a(sm32(ob, vp+4, SP+8))
        a("s_nop 12")
        finish("s37" if t == 0 else "s38", 0, QB[t], ob, lb)
        out = a.l; a.l = keep
        return out
    work = [] if "B" in OPT["k2x"] else bcomp(0) + bcomp(1)
    def cost(t): return 2 if "v_exp" in t else (3 if "mfma" in t else 1)
    tot = sum(cost(t) for t in work)
    slots = [int(c) for c in OPT["bslots"]]
    chunks = {b: [] for b in range(8)}
    acc_ = 0
    for t in work:
        chunks[slots[min(len(slots) - 1, acc_ * len(slots) // tot)]].append(t)
        acc_ += cost(t)
    def psetup():
        a("v_lshrrev_b32 v5, 4, v0")
        a("v_and_b32 v199, 15, v0")
        a(f"v_lshlrev_b32 v{VWD0}, 1, v5")
        a(f"v_xor_b32 v199, v199, v{VWD0}")
        a("v_lshlrev_b32 v199, 4, v199")
        a(f"v_lshl_add_u32 v{VWD0}, v5, 11, v199")
        a(f"v_xor_b32 v{VWD1}, 128, v{VWD0}")
        a(f"v_add_u32 v{VWD1}, 8192, v{VWD1}")
        a(f"v_and_b32 v{VFL}, 31, v0")
        a(f"v_lshlrev_b32 v{VFL}, {FSH}, v{VFL}")
        a("s_lshl_b32 s39, s60, 22")
        a("s_lshl_b32 s40, s61, 18")
        a("s_add_u32 s39, s39, s40")
        a("s_lshl_b32 s40, s34, 4")
        a("s_add_u32 s39, s39, s40")
        a(f"s_add_u32 s39, s39, {OF}")
        a("s_lshl_b32 s40, s34, 3")
        a("s_lshl_b32 s41, s62, 8")
        a("s_add_u32 s40, s40, s41")
        a("s_add_u32 s41, s40, 16384")
        a("s_lshl_b32 s42, s61, 1")
        a("s_lshr_b32 s43, s34, 13")
        a("s_add_u32 s42, s42, s43")
        a("s_add_u32 s42, s42, 8")
        a("s_lshr_b32 s43, s61, 1")
        a("s_cmp_eq_u32 s60, 0")
        a("s_cselect_b32 s42, s43, s42")
        a(f"s_lshl_b32 s42, s42, {5+FSH}")
        a(f"s_add_u32 s42, s42, {FL}")
        a("s_lshl_b32 s89, s25, 4")
        a("s_add_u32 s89, s89, s22")
        a("s_add_u32 s89, s89, 256")
        a(f"s_lshl_b32 s89, s89, {FSH}")
        a(f"s_add_u32 s89, s89, {FL}")
    def publish(base, tag=None):
        if tag:
            a("s_cmp_lg_u32 s24, 4")
            a(f"s_cbranch_scc1 {tag}")
        a("s_mov_b64 exec, 1")
        a(f"buffer_store_dword v204, v203, s[8:11], {base} offen sc1")
        a("s_mov_b64 exec, -1")
        if tag: a.lab(tag)
        else: issued.append("f")
    def wait_for(tags):
        idx_ = [i for i, x in enumerate(issued) if x in tags]
        if idx_: a(f"s_waitcnt vmcnt({min(63, len(issued) - 1 - max(idx_))})")
    a("v_mov_b32 v203, 0")
    a("v_mov_b32 v204, 1")
    a("v_and_b32 v205, 7, v0")
    a(f"v_lshlrev_b32 v205, {FSH}, v205")
    a("s_lshr_b32 s84, s22, 1")
    a(f"s_lshl_b32 s84, s84, {3+FSH}")
    a(f"s_add_u32 s84, s84, {FL + (1280 << FSH)}")
    def late2():
        a("s_lshr_b32 s85, s22, 1")
        a("s_lshl_b32 s85, s85, 5")
        a("s_lshr_b32 s43, s25, 1")
        a("s_add_u32 s85, s85, s43")
        a("s_add_u32 s85, s85, 1407")
        a(f"s_lshl_b32 s85, s85, {FSH}")
        a(f"s_add_u32 s85, s85, {FL}")
        a("v_and_b32 v207, 1, v0")
        a("v_and_b32 v206, 1, s44")
        a("v_xor_b32 v206, 1, v206")
        a("v_or_b32 v207, v207, v206")
        a(f"v_lshlrev_b32 v207, {FSH}, v207")
    a("s_waitcnt vmcnt(0) lgkmcnt(0)")
    a("v_mov_b32 v202, v8")
    srd(a, 16, 6, 2 << 20)
    a("s_cmp_eq_u32 s60, 0")
    a("s_cbranch_scc1 L2_hA")
    BF = min(7, slots[-1] + 1)
    QS = [int(c) for c in OPT["qs"]]
    QP = int(OPT["qp"]); BL = int(OPT["bl"])
    PX = 132
    ADP = OPT["adp"] == "1"
    for typ in ("B", "A"):
        T_ = "L2" + typ
        issued[:] = []
        if typ == "A":
            a.lab("L2_hA")
            a("s_barrier")
            publish("s95", T_ + "_p1")
        else:
            if OPT["df"] == "2":
                for n in range(12): a(f"ds_read_b128 {vr(PX+4*n)}, v201 offset:{n*1024}")
            if OPT["df"] == "0": publish("s95")
        a("s_cmp_lg_u32 s24, 5")
        a(f"s_cbranch_scc1 {T_}_qx")
        a("v_cmp_gt_u32 vcc, 0x100, v202")
        a("s_nop 4")
        a(f"s_cbranch_vccz {T_}_cx")
        poll(T_ + "_c", 203, "0", "s[80:83]", "0x100", "gt")
        if OPT["xslp"] != "0": a(f"s_sleep {OPT['xslp']}")
        poll(T_ + "_q", 205, "s84")
        if typ == "B": a("s_barrier")
        if OPT["hp0"] == "1": a("s_setprio 3")
        a("s_barrier")
        dma_stage(0)
        if OPT["hp0"] == "1": a("s_setprio 0")
        a("s_waitcnt vmcnt(0)")
        a("s_barrier")
        dma_stage(1); dma_stage(2)
        qst = []
        if typ == "B":
            for n, (seg, off) in enumerate(jobs if OPT["df"] != "0" else []):
                qst.append(f"buffer_store_dwordx4 {vr(PK1+4*n)}, v200, s[8:11], s{92+seg} offen offset:{off} sc1")
            for n, (seg, off) in enumerate(jobs if OPT["df"] == "2" else []):
                qst.append(f"buffer_store_dwordx4 {vr(PX+4*n)}, v200, s[8:11], s{86+seg} offen offset:{off} sc1")
            for sg in range(3): a(f"s_sub_u32 s{86+sg}, s{92+sg}, 0x20000")
        ORD = [2*x + h for x in [int(c) for c in OPT["xord"]] for h in range(2)]
        def sw(st):
            if typ == "A" and ADP:
                a(f"s_add_u32 s40, s87, {ORD[st]*64*2048}")
                a("s_add_u32 s41, s40, 16384")
            dma_w(st)
        def so(st):
            t = ORD[st]; tag = f"{T_}_n{st}"
            a(f"s_andn2_b32 s88, {3 << (2*t):#x}, s90")
            a(f"s_cbranch_scc0 {tag}x")
            a("s_mov_b32 s43, 0")
            a.lab(tag)
            a(f"buffer_load_dword v{VFD}, v{VFL}, s[8:11], s42 offen sc1")
            a("s_add_u32 s43, s43, 1")
            a("s_waitcnt vmcnt(0)")
            a(f"v_cmp_eq_u32 vcc, 1, v{VFD}")
            a("s_cmp_gt_u32 s43, 0x200000")
            a(f"s_cbranch_scc1 {tag}x")
            a("s_nop 2")
            a("s_mov_b32 s90, vcc_lo")
            a(f"s_andn2_b32 s88, {3 << (2*t):#x}, s90")
            a(f"s_cbranch_scc0 {tag}x")
            a(f"s_sleep {OPT['slp']}")
            a(f"s_branch {tag}")
            a.lab(tag + "x")
            a(f"s_add_u32 s39, s86, {t*4096}")
            dma_o(st); issued.extend([f"o{st}"]*4)
        def qstores(b):
            k = [i for i, x in enumerate(QS) if x == b]
            per = -(-len(qst) // len(QS))
            for i in k:
                for t in qst[i*per:(i+1)*per]:
                    a(t); issued.append("q")
        qstores(0)
        late1(); late2(); masks(0)
        for b in range(1, 8):
            wait_for([f"s{b}"])
            a("s_barrier")
            if b <= 5: dma_stage(b + 2)
            qstores(b)
            if b == QP and typ == "B" and OPT["df"] != "0":
                wait_for(["q"]); publish("s95")
            if b == 1:
                masks(1); psetup()
            if b == BL:
                poll(T_ + "_b", 207, "s85"); issued[:] = []
                for t in range(2): ld(QB[t], "s28", t*2048); ld(QB[t]+4, "s28", t*2048+1024)
                ld(KX[0], "s31", 0, VKL); ld(KX[0]+4, "s31", 1024, VKL)
                for t in range(2): ld(KX[t+1], "s29", t*2048, VKL); ld(KX[t+1]+4, "s29", t*2048+1024, VKL)
                ld(VX[0], "s32"); ld(VX[0]+4, "s32", 1024)
                for t in range(2): ld(VX[t+1], "s30", t*2048); ld(VX[t+1]+4, "s30", t*2048+1024)
                issued.extend(["B"]*16)
            if b == slots[0]: wait_for(["B"])
            if b == BF:
                wait_for(["st"]); publish("s89")
            for c in OPT['pfs']:
                if int(c) == b and PF:
                    pf(); issued.append("p")
            if b == 5 and OPT["tlb"] == "1":
                srd(a, 12, 58, 8 << 20)
                a("v_lshlrev_b32 v206, 21, v0")
                a("buffer_load_dword v206, v206, s[12:15], 0 offen"); issued.append("p")
            if b >= 6:
                if b == 6:
                    if typ == "A" and ADP:
                        a("s_mov_b32 s86, s39")
                        a("s_mov_b32 s87, s40")
                    sw(0); issued.extend(["w0"]*4)
                sw(b - 5); issued.extend([f"w{b-5}"]*4)
            for t in chunks[b]:
                a.l.append(t)
                if "buffer_store" in t: issued.append("st")
        if typ == "B":
            if OPT['bslp'] != '0': a(f"s_sleep {OPT['bslp']}")
            poll(T_ + "_o", VFL, "s42"); issued[:] = []
            for st in range(3):
                dma_o(st); issued.extend([f"o{st}"]*4)
            a("s_barrier")
            publish("s63", T_ + "_p3")
            a("s_barrier")
            wait_for(["o0"])
            a("s_barrier")
            for st in (3, 4):
                dma_w(st); dma_o(st); issued.extend([f"w{st}"]*4 + [f"o{st}"]*4)
        elif not ADP:
            a("s_barrier")
            publish("s63", T_ + "_p3")
            dma_w(3); dma_w(4)
            a("s_cmp_lg_u32 s24, 5")
            a(f"s_cbranch_scc1 {T_}_ox")
            if OPT["aslp"] != "0": a(f"s_sleep {OPT['aslp']}")
            poll(T_ + "_o", VFL, "s42"); issued[:] = []
            a("s_barrier")
            for st in range(2):
                dma_o(st); issued.extend([f"o{st}"]*4)
            wait_for(["o0"])
            a("s_barrier")
            for st in range(2, 5):
                dma_o(st); issued.extend([f"o{st}"]*4)
        else:
            a("s_mov_b32 s90, 0")
            a("s_barrier")
            publish("s63", T_ + "_p3")
            a("s_barrier")
            so(0); so(1)
            wait_for(["o0"])
            a("s_barrier")
            so(2)
            for st in (3, 4):
                sw(st); issued.extend([f"w{st}"]*4); so(st)
        for t in range(15):
            wait_for([f"o{t+1}", f"w{t+1}"])
            a("s_barrier")
            if t + 5 < 16:
                if typ == "A" and ADP:
                    sw(t + 5); issued.extend([f"w{t+5}"]*4); so(t + 5)
                else:
                    dma_w(t + 5); dma_o(t + 5); issued.extend([f"w{t+5}"]*4 + [f"o{t+5}"]*4)
        for n in (2, 3, 4, 5): stamp(a, n)
        dump(a, 0, "s24")
        a("s_endpgm")

    s0 = S[0]
    for qt in range(2):
        a.lab(f"L2_slow{qt}")
        a(f"s_add_u32 s36, s26, {VF}")
        a(f"v_mov_b32 v{VM}, 0xff800000")
        a("s_mov_b32 s39, 0")
        a.lab(f"L2_s1{qt}")
        a("s_add_u32 s41, s33, s39")
        ld(KB[0], "s41", 0, VKL); ld(KB[0]+4, "s41", 1024, VKL)
        a("s_waitcnt vmcnt(0)")
        a(mfma(s0, KB[0], Q[qt], "0")); a(mfma(s0, KB[0]+4, Q[qt]+4))
        a("s_nop 15")
        for i in range(0, 16, 2): a(f"v_max3_f32 v{VM}, v{VM}, v{s0+i}, v{s0+i+1}")
        a("s_add_u32 s39, s39, 2048")
        a(f"s_cmp_lt_u32 s39, {64*2048}")
        a(f"s_cbranch_scc1 L2_s1{qt}")
        a(f"v_mov_b32 v{VT}, v{VM}")
        xhalf_max()
        for i in range(16): a(f"v_sub_f32 v{NEG[qt]+i}, 0, v{VM}")
        for i in range(16): a(f"v_mov_b32 v{O[qt]+i}, 0")
        for i in range(4): a(f"v_mov_b32 v{L[qt]+i}, 0")
        a("s_mov_b32 s39, 0")
        a.lab(f"L2_s2{qt}")
        a("s_add_u32 s41, s33, s39")
        ld(KB[0], "s41", 0, VKL); ld(KB[0]+4, "s41", 1024, VKL)
        a("s_add_u32 s41, s36, s39")
        ld(VB[0], "s41"); ld(VB[0]+4, "s41", 1024)
        a("s_waitcnt vmcnt(0)")
        a(mfma(s0, KB[0], Q[qt], NEG[qt])); a(mfma(s0, KB[0]+4, Q[qt]+4))
        a("s_nop 15")
        for i in range(16): a(f"v_exp_f32 v{s0+i}, v{s0+i}")
        a("s_nop 1")
        a(sm32(O[qt], VB[0], s0)); a(sm16(L[qt], s0)); a(sm32(O[qt], VB[0]+4, s0+8)); a(sm16(L[qt], s0+8))
        a("s_nop 7")
        a("s_add_u32 s39, s39, 2048")
        a(f"s_cmp_lt_u32 s39, {64*2048}")
        a(f"s_cbranch_scc1 L2_s2{qt}")
        a("s_nop 15")
        a(f"s_branch L2_fin{qt}")
    return kd(N, NV, 102), f"; @launch kernel={N} grid=(256,1,1) block=(512,1,1) lds=163840"


DOC = """;
; One persistent kernel, 256 workgroups x 8 waves, one workgroup per CU, three phases joined by flag hand-offs in d_ws
; (write-through stores -> vmcnt(0) -> flag; consumers poll with sc1 loads and read the data with sc1 loads; the flags are
;     results stored as MFMA operand fragments (q pre-scaled by log2(e)/sqrt(32)).
"""

def main():
    a = A()
    jobs = k1(a)
    desc, launch = k2(a, jobs)
    if OPT["single"] == "1": launch = "; @launch grid=(256,1,1) block=(512,1,1) lds=163840"
    hdr = open("cdna_kernels/" + NAME + ".s.ref").read().split("\n")
    top = [l for l in hdr if l.startswith(";") and "@launch" not in l and "Override" not in l and "grid=ceil" not in l]
    out = "\n".join(top) + "\n" + launch + "\n"
    out += DOC
    out += '.amdgcn_target "amdgcn-amd-amdhsa--gfx950"\n.text\n' + a.text()
    out += '.section .rodata,"a"\n' + desc
    open(sys.argv[1], "w").write(out)

main()
```

```python
import struct, math, sys

NAME = "concat_heads__mha_block__sliding_local_dilated__prompt"
OPT = dict(st1=" sc1", st2=" sc1", st3=" sc1", dbg="0", pf1="1", pf3="1", ord1="0", dlt="4", nx="0", ph="8", pf0="2", pfm="255", xl="4", pfe="8", cpb="16", s2e="0", prio="1", k2x="", cpf="1", hprio="0", trip="0", k1x="", tlb="1", dk="0", spin="", bslots="345", pst="0", wfirst="1", slp="4", fsh="5", pfs="2345", opf="0", la="5", xb="0", xw="5", nt0="3", ntb="0", ntx="", ntw="", ntp="", nto="", hp0="0", wp="1", cp="2", adp="0", xord="20361475", k3x="", mix="1", qs="0", qp="1", bl="2", xslp="0", single="0", df="1", rt="1", pub="3", od="3", pa="1", fm="g", aslp="0", bslp="0", osc=" sc1")
for a in sys.argv[2:]:
    k, v = a.split("=", 1)
    OPT[k] = v

def f2u(x): return struct.unpack("<I", struct.pack("<f", x))[0]
QSCALE = f2u(math.log2(math.e) / math.sqrt(32.0))
NEGBIG = f2u(-1e30)

QF, KF, VF, OF = 0, 8 << 20, 16 << 20, 24 << 20
WS_BYTES = 33 << 20

class A:
    def __init__(s): s.l = []
    def __call__(s, t): s.l.append("    " + t)
    def lab(s, t): s.l.append(t + ":")
    def raw(s, t): s.l.append(t)
    def text(s): return "\n".join(s.l) + "\n"

def vr(b, n=4): return f"v[{b}:{b+n-1}]"
def mfma(d, a, b, c=None):
    cc = vr(d, 16) if c is None else (c if isinstance(c, str) else vr(c, 16))
    return f"v_mfma_f32_32x32x16_bf16 {vr(d,16)}, {vr(a)}, {vr(b)}, {cc}"

def mfma16(d, a, b):
    return f"v_mfma_f32_16x16x32_bf16 {vr(d)}, {vr(a)}, {vr(b)}, {vr(d)}"

def spread(main, fill, start=0, every=1, per=1):
    out = []; k = 0
    for i, m in enumerate(main):
        out.append(m)
        if i >= start and (i - start) % every == 0:
            for _ in range(per):
                if k < len(fill):
                    out += fill[k]; k += 1
    while k < len(fill):
        out += fill[k]; k += 1
    return out

def interleave(main, fill, pattern):
    out = []; k = 0
    for i, m in enumerate(main):
        for _ in range(pattern[i] if i < len(pattern) else 0):
            if k < len(fill):
                out += fill[k]; k += 1
        out.append(m)
    while k < len(fill):
        out += fill[k]; k += 1
    return out

def kd(name, vgpr, sgpr=96):
    acc = (vgpr + 3) // 4 * 4
    return f""".p2align 6
.amdhsa_kernel {name}
  .amdhsa_next_free_vgpr {vgpr}
  .amdhsa_next_free_sgpr {sgpr}
  .amdhsa_accum_offset {acc}
  .amdhsa_group_segment_fixed_size 0
  .amdhsa_kernarg_size 72
  .amdhsa_user_sgpr_count 2
  .amdhsa_user_sgpr_kernarg_segment_ptr 1
  .amdhsa_system_sgpr_workgroup_id_x 1
.end_amdhsa_kernel
"""

_cp = [0]
DBG = OPT["dbg"] in ("1", "2", "3", "4")
def stamp(a, n):
    if DBG:
        a(f"{'s_memrealtime' if OPT['rt'] == '1' and n >= 2 else 's_memtime'} s[{64+2*n}:{65+2*n}]")
def rstamp(a, n):
    if DBG:
        a(f"s_memrealtime s[{64+2*n}:{65+2*n}]")
def dump(a, kidx, wave_sgpr, nst=8):
    if not DBG: return
    if OPT["dbg"] == "4":
        _cp[0] += 1
        sk = f"Ldbg{_cp[0]}"
        a("s_lshl_b32 s92, s2, 3")
        a(f"s_add_u32 s92, s92, {wave_sgpr}")
        a(f"s_cmp_lg_u32 s92, {OPT['dk']}")
        a(f"s_cbranch_scc1 {sk}")
        a("s_waitcnt vmcnt(0)")
        a("s_memrealtime s[78:79]")
        a("s_waitcnt lgkmcnt(0)")
        a(f"s_sub_u32 s93, s{64+2*int(OPT['spin'])}, s66")
        a.lab(sk + "s")
        a("s_memrealtime s[62:63]")
        a("s_waitcnt lgkmcnt(0)")
        a("s_sub_u32 s62, s62, s78")
        a("s_cmp_lt_u32 s62, s93")
        a(f"s_cbranch_scc1 {sk}s")
        a.lab(sk)
        return
    if OPT["dbg"] == "2":
        if kidx != int(OPT["dk"]): return
        _cp[0] += 1
        sk = f"Ldbg{_cp[0]}"
        a("s_load_dwordx2 s[88:89], s[0:1], 56")
        a("s_waitcnt lgkmcnt(0) vmcnt(0)")
        a(f"s_memtime s[{64+2*(nst-2)}:{65+2*(nst-2)}]")
        a(f"s_memrealtime s[{64+2*(nst-1)}:{65+2*(nst-1)}]")
        a("s_waitcnt lgkmcnt(0)")
        a(f"s_sub_u32 s88, s88, {512*kidx}")
        a("s_subb_u32 s89, s89, 0")
        a("s_mov_b32 s90, 64")
        a("s_mov_b32 s91, 0x00020000")
        a("s_lshl_b32 s92, s2, 3")
        a(f"s_add_u32 s92, s92, {wave_sgpr}")
        a("s_cmp_eq_u32 s92, 805")
        a("s_cselect_b32 s93, 32, 0x1000")
        a("s_cmp_eq_u32 s92, 0")
        a("s_cselect_b32 s92, 0, s93")
        a("v_mov_b32 v2, 0")
        for n in range(2, nst):
            base = 64 if n < nst-1 else 66
            a(f"s_sub_u32 s93, s{64+2*n}, s{base}")
            a("v_mov_b32 v3, s93")
            a(f"buffer_store_dword v3, v2, s[88:91], s92 offen offset:{4*(n-2)}")
            a("s_nop 1")
        return
    a("s_load_dwordx2 s[88:89], s[0:1], 64")
    a("s_waitcnt lgkmcnt(0) vmcnt(0)")
    a(f"s_memtime s[{64+2*(nst-2)}:{65+2*(nst-2)}]")
    a(f"s_memrealtime s[{64+2*(nst-1)}:{65+2*(nst-1)}]")
    a("s_waitcnt lgkmcnt(0)")
    a("s_mov_b32 s90, 0x8000000")
    a("s_mov_b32 s91, 0x00020000")
    a("s_lshl_b32 s92, s2, 3")
    a(f"s_add_u32 s92, s92, {wave_sgpr}")
    a("s_lshl_b32 s92, s92, 6")
    a(f"s_add_u32 s92, s92, {(64+kidx) << 20}")
    a("v_mov_b32 v2, 0")
    for n in range(nst):
        a(f"v_mov_b32 v3, s{64+2*n}")
        a(f"buffer_store_dword v3, v2, s[88:91], s92 offen offset:{4*n}")
        a("s_nop 1")
    if OPT["dbg"] == "3" and kidx == 2:
        _cp[0] += 1
        sk = f"Ldbg{_cp[0]}"
        a("s_lshl_b32 s92, s2, 3")
        a(f"s_add_u32 s92, s92, {wave_sgpr}")
        a(f"s_cmp_lg_u32 s92, {OPT['dk']}")
        a(f"s_cbranch_scc1 {sk}")
        a(f"s_add_u32 s88, s88, {(64 << 20) + int(OPT['dk'])*64}")
        a("s_addc_u32 s89, s89, 0")
        a("s_load_dwordx8 s[40:47], s[88:89], 0")
        a("s_add_u32 s88, s88, 0x100000")
        a("s_addc_u32 s89, s89, 0")
        a("s_load_dwordx8 s[48:55], s[88:89], 0")
        a("s_load_dwordx2 s[88:89], s[0:1], 56")
        a("s_waitcnt lgkmcnt(0)")
        a("s_mov_b32 s90, 64")
        k = 0
        for b, st in ((40, 1), (48, 1), (64, 2)):
            for n, ref in ((3, b), (4, b), (6, b), (1, 41), (7, 41)):
                a(f"s_sub_u32 s93, s{b+st*n}, s{ref}")
                a("v_mov_b32 v3, s93")
                a(f"buffer_store_dword v3, v2, s[88:91], 0 offen offset:{4*k}")
                a("s_nop 1")
                k += 1
        if OPT["spin"] != "":
            q, mult, unit = OPT["spin"].split(",")
            x, y = q.split("-")
            a(f"s_sub_u32 s93, s{x}, s{y}")
            a(f"s_mul_i32 s93, s93, {mult}")
            ins = "s_memrealtime" if unit == "r" else "s_memtime"
            a(f"{ins} s[60:61]")
            a("s_waitcnt lgkmcnt(0)")
            a.lab(sk + "s")
            a(f"{ins} s[62:63]")
            a("s_waitcnt lgkmcnt(0)")
            a("s_sub_u32 s62, s62, s60")
            a("s_cmp_lt_u32 s62, s93")
            a(f"s_cbranch_scc1 {sk}s")
        a.lab(sk)

def codepf(a, start, end, vtmp, lane="v0"):
    if OPT["cpf"] != "1": return
    _cp[0] += 1
    l = f"Lcp{_cp[0]}"
    a("s_getpc_b64 s[56:57]")
    a.lab(l)
    a(f"s_add_u32 s56, s56, {start}-{l}")
    a(f"s_addc_u32 s57, s57, ({start}-{l})>>32")
    a(f"v_lshlrev_b32 v{vtmp}, 7, {lane}")
    a(f"v_min_u32 v{vtmp}, ({end})-({start})-4, v{vtmp}")
    a(f"global_load_dword v{vtmp}, v{vtmp}, s[56:57]")

def head(a, name):
    a.raw(f".globl {name}\n.p2align 8\n.type {name},@function\n{name}:")

def srd(a, d, base, nbytes):
    a(f"s_mov_b32 s{d}, s{base}")
    a(f"s_mov_b32 s{d+1}, s{base+1}")
    a(f"s_mov_b32 s{d+2}, {nbytes:#x}")
    a(f"s_mov_b32 s{d+3}, 0x00020000")

def place(main, fill, per=2, start=0):
    out = []; k = 0
    for i, m in enumerate(main):
        out.append(m)
        if i >= start:
            out += fill[k:k+per]; k += per
    out += fill[k:]
    return out

def sched(M, rd, d, post, late, late_dma=False):
    n = len(M)
    gaps = [[] for _ in range(n)]
    if late_dma: rg = list(range(len(rd))); dg = [len(rd) + 2*k for k in range(len(d))]
    else:
        dg = [1 + 4*k for k in range(len(d))]; rg = [g for g in range(n) if g not in dg][:len(rd)]
    for g, t in zip(rg, rd): gaps[g].append(t)
    for g, (m_, l_) in zip(dg, d):
        gaps[g-1].append(m_); gaps[g].append(l_)
    def runs(ops):
        out = []
        for t in ops:
            if t.startswith("s_cselect") : out[-1].append(t)
            else: out.append([t])
        return out
    def put(run, g0):
        g = g0
        while g < n - 1 and len(gaps[g]) + len(run) > 3: g += 1
        gaps[g] += run
        return g
    g = (dg[len(d)-1] if d else 0)
    for r in runs(post): g = put(r, g)
    g = 0
    for r in runs(late):
        if r[0].startswith("v_"): g = max(g, rg[-1] if rg else 0)
        g = put(r, g)
    seq = []
    for i, m_ in enumerate(M):
        seq.append(m_); seq += gaps[i]
    return seq

FL = 32 << 20
FSH = int(OPT['fsh'])
PK1 = 208

def k1(a):
    N = NAME + "_kernel"
    head(a, N)
    XS, WS, WSL = 32768, 98304, 12288
    VD, VXB, VXA, VWB, VWA, VST, VPX, VPW, VPD = 10, 18, 20, 22, 24, 26, 27, 28, 29
    F = [32, 72]; ACC = 112; NV = 208
    PF = OPT["pf1"] == "1"
    DLT = int(OPT["dlt"]); PST = 2
    def A_(f, mt): return F[f] + 4*mt
    def B_(f, nb): return F[f] + 16 + 4*nb
    def acc(mt, nb): return ACC + (mt*6 + nb)*4
    a("s_cmp_ge_u32 s2, 256")
    a("s_cbranch_scc1 L2_end")
    stamp(a, 0); rstamp(a, 1)
    a("s_and_b32 s20, s2, 7")
    a("s_lshr_b32 s21, s2, 3")
    MIX = OPT["mix"] == "1"
    if MIX: a("s_lshr_b32 s22, s21, 4")
    else: a("s_lshr_b32 s22, s20, 2")
    a("s_mul_i32 s23, s22, 24")
    a("s_load_dwordx4 s[4:7], s[0:1], s23")
    a("s_load_dwordx4 s[96:99], s[0:1], 56")
    a("s_load_dwordx4 s[88:91], s[0:1], 0")
    a("v_lshrrev_b32 v1, 6, v0")
    a("v_and_b32 v0, 63, v0")
    a("v_readfirstlane_b32 s26, v1")
    a("s_and_b32 s24, s20, 1")
    a("s_lshl_b32 s24, s24, 2")
    a("s_and_b32 s25, s21, 3")
    a("s_add_u32 s24, s24, s25")
    if MIX:
        a("s_lshr_b32 s25, s20, 1")
        a("s_xor_b32 s53, s25, s22")
        a("s_lshl_b32 s25, s53, 2")
        a("s_bfe_u32 s27, s21, 0x20002")
    else:
        a("s_bfe_u32 s25, s20, 0x10001")
        a("s_lshl_b32 s25, s25, 3")
        a("s_lshr_b32 s27, s21, 2")
    a("s_add_u32 s25, s25, s27")
    a("s_and_b32 s31, s26, 3")
    a("s_lshr_b32 s32, s26, 2")
    PH = OPT["ph"]
    if PH == "0": a("s_mov_b32 s44, 0")
    elif PH == "1":
        a("s_lshl_b32 s44, s20, 1")
    elif PH == "2":
        a("s_lshl_b32 s44, s20, 1")
        a("s_and_b32 s45, s21, 1")
        a("s_add_u32 s44, s44, s45")
    elif PH in ("6", "7", "8"):
        a("s_lshr_b32 s54, s20, 1")
        a("s_lshl_b32 s54, s54, 2")
        a("s_and_b32 s45, s20, 1")
        a("s_mul_i32 s45, s45, 10")
        a("s_add_u32 s54, s54, s45")
        a("s_and_b32 s54, s54, 15")
        if PH == "6": a("s_and_b32 s45, s21, 1")
        elif PH == "7": a("s_mov_b32 s45, s22")
        else: a("s_mov_b32 s45, 0")
        a("s_add_u32 s44, s54, s45")
    elif PH == "5":
        a("s_lshl_b32 s44, s20, 1")
        a("s_add_u32 s44, s44, s22")
    elif PH == "3":
        a("s_lshl_b32 s44, s22, 1")
        a("s_and_b32 s45, s20, 1")
        a("s_add_u32 s44, s44, s45")
        a("s_lshl_b32 s44, s44, 2")
        a("s_and_b32 s45, s21, 3")
        a("s_add_u32 s44, s44, s45")
    elif PH == "4":
        a("s_lshl_b32 s44, s22, 1")
        a("s_and_b32 s45, s20, 1")
        a("s_add_u32 s44, s44, s45")
        a("s_lshl_b32 s44, s44, 2")
    a("v_lshrrev_b32 v2, 3, v0")
    a("v_and_b32 v3, 7, v0")
    a("v_lshrrev_b32 v4, 4, v0")

    def rdA(f, ks, mt): return [f"ds_read_b128 {vr(A_(f,mt))}, v{VXA+ks} offset:{mt*2048}"]
    def rdB(f, nb):
        o = (nb//2)*4096
        return [f"ds_read_b64_tr_b16 {vr(B_(f,nb),2)}, v{VWA+nb%2} offset:{o}",
                f"ds_read_b64_tr_b16 {vr(B_(f,nb)+2,2)}, v{VWA+nb%2} offset:{o+512}"]
    def reads(f, ks):
        r = rdB(f, 0)
        for mt in range(4): r += rdA(f, ks, mt)
        for nb in range(1, 6): r += rdB(f, nb)
        return r
    def mm(f):
        r = []
        for nb in range(6):
            for mt in range(4):
                if nb < 4: r.append(mfma16(acc(mt, nb), B_(f, nb), A_(f, mt)))
                else:      r.append(mfma16(acc(mt, nb), A_(f, mt), B_(f, nb)))
        return r

    def common_setup():
        srd(a, 16, 98, WS_BYTES)
        a("v_and_b32 v2, 15, v0")
        a("v_lshrrev_b32 v3, 4, v0")
        a("v_bfe_u32 v4, v0, 1, 3")
        a("s_lshl_b32 s33, s31, 13")
        a("v_lshlrev_b32 v5, 7, v2")
        a("v_add_u32 v5, s33, v5")
        a("v_xor_b32 v6, v3, v4")
        a(f"v_lshl_add_u32 v{VXB}, v6, 4, v5")
        a(f"v_xor_b32 v{VXB+1}, 64, v{VXB}")
        a(f"v_mov_b32 v{VXA}, v{VXB}")
        a(f"v_mov_b32 v{VXA+1}, v{VXB+1}")
        a("v_bfe_u32 v4, v0, 2, 2")
        a("v_lshl_add_u32 v4, v3, 3, v4")
        a("v_lshlrev_b32 v4, 7, v4")
        a("v_and_b32 v6, 3, v0")
        a("v_lshl_add_u32 v4, v6, 3, v4")
        a("v_bfe_u32 v5, v0, 3, 2")
        a("s_lshl_b32 s33, s32, 1")
        a("v_xor_b32 v5, s33, v5")
        a(f"v_lshl_add_u32 v{VWB}, v5, 5, v4")
        a(f"v_xor_b32 v{VWB+1}, 32, v{VWB}")
        a(f"v_add_u32 v{VWA}, {WS}, v{VWB}")
        a(f"v_add_u32 v{VWA+1}, {WS}, v{VWB+1}")
        a("v_lshlrev_b32 v4, 4, v2")
        a(f"v_lshl_add_u32 v{VST}, v3, 9, v4")
        for i in range(96): a(f"v_mov_b32 v{ACC+i}, 0")
        a("s_lshl_b32 s40, s22, 22")
        a("s_lshl_b32 s41, s25, 1")
        a("s_add_u32 s41, s41, s32")
        a("s_lshl_b32 s41, s41, 17")
        a("s_add_u32 s40, s40, s41")
        a("s_lshl_b32 s41, s24, 14")
        a("s_add_u32 s40, s40, s41")
        a("s_lshl_b32 s41, s31, 12")
        a("s_add_u32 s40, s40, s41")
        a(f"s_add_u32 s41, s40, {KF}")
        a(f"s_add_u32 s42, s40, {VF}")
        a(f"s_mov_b32 s43, {QSCALE:#x}")
        a("s_lshl_b32 s95, s25, 3")
        a("s_add_u32 s95, s95, s24")
        a("s_lshl_b32 s94, s95, 2")
        a("s_add_u32 s94, s94, s31")
        a("s_add_u32 s94, s94, 1408")
        a("s_add_u32 s95, s95, 1280")
        a("s_cmp_eq_u32 s22, 0")
        a("s_cselect_b32 s95, s95, s94")
        a(f"s_lshl_b32 s95, s95, {FSH}")
        a(f"s_add_u32 s95, s95, {FL}")
        srd(a, 80, 96, 256)
        a("s_mov_b32 s33, 0")
        a(f"s_mov_b32 s34, {WS}")
        a("s_mov_b32 s35, 0")

    wupd = [f"s_add_u32 s34, s34, {WSL}", f"s_cmp_eq_u32 s34, {WS+5*WSL}", f"s_cselect_b32 s34, {WS}, s34",
            f"v_add_u32 v{VWA}, s34, v{VWB}", f"v_add_u32 v{VWA+1}, s34, v{VWB+1}", "s_add_u32 s35, s35, 1"]
    xupd = [f"s_add_u32 s33, s33, {XS}", f"s_cmp_eq_u32 s33, {3*XS}", "s_cselect_b32 s33, 0, s33",
            f"v_add_u32 v{VXA}, s33, v{VXB}", f"v_add_u32 v{VXA+1}, s33, v{VXB+1}"]

    def mix(dma, other):
        out = []; o = list(other)
        for m, l in dma:
            out.append(m)
            out.append(o.pop(0) if o else "s_nop 0")
            out.append(l)
        return out + o

    def event(tag):
        a.lab(tag)
        if OPT["cpf"] == "1":
            a("s_cmp_ge_u32 s51, 0x100")
            a(f"s_cbranch_scc1 {tag}c")
        a("s_add_u32 s48, s54, s51")
        a("s_and_b32 s48, s48, 15")
        a("s_mul_i32 s48, s48, s52")
        a("s_add_u32 s48, s48, s50")
        a(f"buffer_load_dword v{VPD}, v{VPW}, s[84:87], s48 offen{OPT['ntp']}")
        a(f"s_add_u32 s51, s51, {PST}")
        a("s_lshl_b32 s49, s51, 1")
        a("s_max_u32 s49, s49, s39")
        a("s_sub_u32 s49, s49, s39")
        a(f"s_cmp_lt_u32 s51, {OPT['pfe']}")
        a(f"s_cbranch_scc1 {tag}r")
        a("s_mov_b32 s49, 0x7fff")
        if OPT["cpf"] == "1":
            a("s_cmp_eq_u32 s31, 3")
            a(f"s_cselect_b32 s49, {OPT['cpb']}, s49")
            a("s_mov_b32 s51, 0x100")
        a(f"s_branch {tag}r")
        if OPT["cpf"] == "1":
            a.lab(tag + "c")
            a("s_mov_b32 s49, 0x7fff")
            codepf(a, "L1_epi", "L1_epi+8192", 31)
            codepf(a, "L1_epi+8192", "L1_epi+16384", 9)
            codepf(a, "L1_epi+16384", "L2_slow0", 8)
            a(f"s_branch {tag}r")

    a("s_cmp_lg_u32 s32, 0")
    a("s_cbranch_scc1 L1_W")
    for cls in ("X", "W"):
        P = "L1" + cls
        if cls == "X":
            a("v_lshlrev_b32 v5, 11, v2")
            a("v_xor_b32 v6, v3, v4")
            a("v_lshl_add_u32 v6, v6, 4, v5")
            a("v_xor_b32 v7, 64, v6")
            a(f"v_mov_b32 v{VD}, v6")
            a(f"v_add_u32 v{VD+1}, 16384, v7")
            a(f"v_add_u32 v{VD+2}, 32768, v6")
            a(f"v_add_u32 v{VD+3}, 49152, v7")
            a("s_lshl_b32 s27, s24, 19")
            a("s_lshl_b32 s28, s31, 16")
            a("s_add_u32 s45, s27, s28")
            a("s_lshl_b32 s46, s44, 7")
            a("s_add_u32 s27, s45, s46")
            a("s_add_u32 s28, s27, 0x40000")
            a("s_lshl_b32 s29, s31, 12")
            a(f"s_add_u32 s30, s29, {6*16384}")
            a("s_waitcnt lgkmcnt(0)")
            if OPT["s2e"] == "1": stamp(a, 2)
            srd(a, 8, 4, 4 << 20)
            def grp(par):
                so = "s27" if par == 0 else "s28"
                d = [(f"s_add_u32 m0, s29, {j*1024}", f"buffer_load_dwordx4 v{VD+j}, s[8:11], {so} offen{OPT['ntx']} lds") for j in range(4)]
                post = ["s_add_u32 s29, s29, 16384"]
                if par == 0: post += ["s_add_u32 s46, s46, 128", "s_and_b32 s46, s46, 0x7ff", "s_add_u32 s27, s45, s46"]
                if par == 1: post += ["s_add_u32 s28, s27, 0x40000", "s_cmp_eq_u32 s29, s30", f"s_cselect_b32 s38, {6*16384}, 0", "s_sub_u32 s29, s29, s38"]
                return d, post
            NG = 4
        else:
            a.lab("L1_W")
            if OPT["cpf"] == "1":
                a("s_cmp_lg_u32 s26, 7")
                a("s_cbranch_scc1 L1_nocp")
                codepf(a, N, "L1_epi", VPD)
                a.lab("L1_nocp")
            a("v_mul_u32_u24 v5, 6144, v2")
            a("v_and_b32 v6, 1, v4")
            a("v_lshlrev_b32 v6, 1, v6")
            a("s_and_b32 s33, s26, 1")
            a("s_lshl_b32 s33, s33, 2")
            a("v_xor_b32 v6, v3, v6")
            a("v_xor_b32 v6, s33, v6")
            a(f"v_lshl_add_u32 v{VD}, v6, 4, v5")
            a(f"v_add_u32 v{VD+1}, 2048, v{VD}")
            a(f"v_add_u32 v{VD+2}, 4096, v{VD}")
            a("s_lshl_b32 s27, s25, 7")
            a(f"s_mul_i32 s28, s31, {8*6144}")
            a("s_add_u32 s27, s27, s28")
            a(f"s_mul_i32 s28, s44, {64*6144}")
            a("s_add_u32 s27, s27, s28")
            a("s_lshl_b32 s29, s31, 10")
            a(f"s_add_u32 s29, s29, {WS}")
            a(f"s_add_u32 s30, s29, {5*WSL}")
            a("s_waitcnt lgkmcnt(0)")
            if OPT["s2e"] == "1": stamp(a, 2)
            srd(a, 12, 6, 6 << 20)
            def pfsetup():
                a("s_and_b32 s47, s21, 7")
                a("s_bfe_u32 s51, s21, 0x10003")
                a(f"s_add_u32 s51, s51, {OPT['pf0']}")
                a("v_lshlrev_b32 v5, 11, v0")
                a("v_lshrrev_b32 v6, 2, v0")
                a("v_mul_u32_u24 v6, 6144, v6")
                a("v_and_b32 v7, 3, v0")
                a("v_lshl_add_u32 v6, v7, 7, v6")
                a("v_mul_u32_u24 v7, 6144, v0")
                a("s_cmp_lt_u32 s47, 4")
                a("s_cselect_b64 s[56:57], -1, 0")
                a("s_cselect_b32 s84, s88, s90")
                a("s_cselect_b32 s85, s89, s91")
                a(f"s_mov_b32 s86, {6<<20:#x}")
                a(f"s_cselect_b32 s86, {4<<20:#x}, s86")
                a("s_mov_b32 s87, 0x00020000")
                a(f"s_mov_b32 s52, {64*6144}")
                a("s_cselect_b32 s52, 128, s52")
                a(f"v_cndmask_b32 v{VPW}, v6, v5, s[56:57]")
                a("s_and_b32 s48, s20, 1")
                a("s_lshl_b32 s48, s48, 2")
                a("s_add_u32 s48, s48, s47")
                a("s_lshl_b32 s48, s48, 2")
                a("s_add_u32 s48, s48, s31")
                a("s_lshl_b32 s48, s48, 17")
                a("s_lshr_b32 s50, s20, 1")
                a("s_lshl_b32 s50, s50, 9")
                a("s_and_b32 s55, s47, 3")
                a("s_lshl_b32 s55, s55, 11")
                a("s_add_u32 s50, s50, s55")
                a(f"s_mul_i32 s55, s31, {16*6144}")
                a("s_add_u32 s50, s50, s55")
                a("s_cmp_lt_u32 s47, 4")
                a("s_cselect_b32 s50, s48, s50")
                a("s_and_b32 s48, s53, 2")
                a("s_lshl_b32 s48, s48, 9")
                a("s_lshl_b32 s55, s31, 11")
                a("s_add_u32 s48, s48, s55")
                a("s_add_u32 s48, s48, 384")
                a("s_bitcmp1_b32 s53, 0")
                a("s_cselect_b32 s90, s90, s6")
                a("s_cselect_b32 s91, s91, s7")
                a("s_cmp_eq_u32 s47, 7")
                a("s_cselect_b64 s[56:57], -1, 0")
                a("s_cselect_b32 s50, s48, s50")
                a("s_cselect_b32 s84, s90, s84")
                a("s_cselect_b32 s85, s91, s85")
                a("s_cselect_b32 s55, 3, 0")
                a(f"s_cselect_b32 s39, {4+DLT+int(OPT['xl'])}, {4+DLT}")
                a(f"v_cndmask_b32 v{VPW}, v{VPW}, v7, s[56:57]")
                a("s_and_b32 s48, s55, s31")
                a("s_cmp_eq_u32 s48, 3")
                a("s_cselect_b32 s86, 0, s86")
                if OPT["pfm"] != "255":
                    a(f"s_lshr_b32 s48, {OPT['pfm']}, s47")
                    a("s_and_b32 s48, s48, 1")
                    a("s_cselect_b32 s86, s86, 0")
                a("s_lshl_b32 s49, s51, 1")
                a("s_max_u32 s49, s49, s39")
                a("s_sub_u32 s49, s49, s39")
                a("s_cmp_eq_u32 s22, 0")
                a("s_cselect_b32 s49, 0x7fff, s49")
            def grp(par):
                d = [(f"s_add_u32 m0, s29, {g*4096}", f"buffer_load_dwordx4 v{VD+g}, s[12:15], s27 offen{OPT['ntw']} lds") for g in range(3)]
                post = [f"s_add_u32 s27, s27, {32*6144}", f"s_add_u32 s29, s29, {WSL}",
                        "s_cmp_eq_u32 s29, s30", f"s_cselect_b32 s38, {5*WSL}, 0", "s_sub_u32 s29, s29, s38"]
                if par == 1: post += [f"s_cmp_ge_u32 s27, {6<<20:#x}", f"s_cselect_b32 s38, {6<<20:#x}, 0", "s_sub_u32 s27, s27, s38"]
                return d, post
            NG = 3
        def emit_grp(par, nt=False):
            d, post = grp(par)
            for t in mix(d, []) + post: a(t.replace(" offen lds", " offen nt lds") if nt else t)
        first = 2 if cls == "X" else 1
        for n in range(first): emit_grp(n & 1, int(OPT['nt0']) >= 1)
        common_setup()
        if cls == "W" and PF: pfsetup()
        if cls == "X":
            a("s_lshl_b32 s47, s20, 2")
            a("s_lshr_b32 s48, s21, 3")
            a("s_add_u32 s47, s47, s48")
            a("s_and_b32 s48, s21, 7")
            a("s_lshl_b32 s49, s48, 5")
            a("s_add_u32 s49, s49, s47")
            a(f"s_lshl_b32 s49, s49, {FSH}")
            a(f"s_add_u32 s49, s49, {FL}")
            a("s_lshl_b32 s50, s48, 7")
            a("s_add_u32 s50, s50, s47")
            a("s_add_u32 s50, s50, 256")
            a(f"s_lshl_b32 s50, s50, {FSH}")
            a(f"s_add_u32 s50, s50, {FL}")
            a("v_and_b32 v9, 3, v0")
            a(f"v_lshlrev_b32 v8, {5+FSH}, v9")
            a("v_add_u32 v8, s50, v8")
            if OPT["xb"] != "0":
                a("v_bfe_u32 v7, v0, 3, 1")
                a(f"v_lshl_add_u32 v8, v7, {1+FSH}, v8")
            a(f"s_lshl_b32 s48, s22, {FSH}")
            a("v_mul_u32_u24 v9, s48, v9")
            a("v_add_u32 v9, s95, v9")
            a("s_mov_b64 s[50:51], 0xf00")
            a("v_cndmask_b32 v8, v8, v9, s[50:51]")
            a("v_mov_b32 v9, s49")
            a("s_mov_b64 s[50:51], 1")
            a("v_cndmask_b32 v8, v8, v9, s[50:51]")
            a("v_mov_b32 v9, 0")
            if OPT["xb"] != "0":
                a("s_mov_b64 s[50:51], 0xfff1")
                a("s_cmp_eq_u32 s22, 0")
                a("s_cselect_b64 s[50:51], s[50:51], 0xf01")
                a("s_cmp_eq_u32 s31, 0")
                a("s_cselect_b64 exec, s[50:51], 0")
            else:
                a("s_cmp_eq_u32 s31, 0")
                a("s_cselect_b64 exec, 0xff1, 0")
            a("s_cbranch_execz L1_nofl")
            a("buffer_store_dword v9, v8, s[16:19], 0 offen sc1")
            a.lab("L1_nofl")
            a("s_mov_b64 exec, -1")
        for n in range(first, 4): emit_grp(n & 1, int(OPT['nt0']) >= 2)
        npf = 0
        if cls == "W" and PF:
            a("s_cmp_eq_u32 s49, 0")
            a(f"s_cbranch_scc1 {P}_e0")
            a.lab(f"{P}_e0r")
        a(f"s_waitcnt vmcnt({(4-first)*NG + npf})")
        a("s_barrier")
        if cls == "X":
            a("v_mov_b32 v8, 1")
            a("s_lshr_b32 s47, s2, 5")
            a("s_lshl_b32 s47, s47, 1")
            a(f"s_add_u32 s47, s47, {int(OPT['ntb'])+2}")
            a("s_cmp_eq_u32 s31, 0")
            a("s_cselect_b32 s47, s47, 0x7fff")
        d, post = grp(0)
        for t in reads(0, 0) + mix(d, []) + post + wupd: a(t.replace(" offen lds", " offen nt lds") if int(OPT["nt0"]) >= 3 else t)
        if cls == "W": a(f"s_waitcnt vmcnt({3*NG + npf})")
        a("s_waitcnt lgkmcnt(0)")
        a("s_barrier")
        if cls == "W" and OPT["wp"] == "1": a("s_setprio 1")
        NTB = int(OPT["ntb"])
        vers = (["n"] if NTB else []) + [""]
        a(f"s_branch {P}{vers[0]}_odd")
        nev = 1
        for V in vers:
            a.raw(".p2align 6")
            a.lab(f"{P}{V}_loop")
            for par in range(2):
                if par == 1: a.lab(f"{P}{V}_odd")
                d, post = grp(par)
                if V == "n": d = [(m_, l_.replace(" offen lds", " offen nt lds")) for m_, l_ in d]
                rd = reads(par, par)
                tail = list(post) + wupd
                if par == 1: tail += xupd
                late = [t for t in tail if t not in post]
                late = [t for t in late if not t.startswith("v_")] + [t for t in late if t.startswith("v_")]
                for t in sched(mm(1-par), rd, d, list(post), late): a(t)
                if cls == "W" and PF:
                    a("s_cmp_ge_u32 s35, s49")
                    a(f"s_cbranch_scc1 {P}_e{nev}")
                    a.lab(f"{P}_e{nev}r"); nev += 1
                if par == 1 and cls == "X" and V == "":
                    a("s_cmp_eq_u32 s35, s47")
                    a("s_cbranch_scc1 L1_at")
                    a.lab("L1_atr")
                if par == 1: a(f"s_cmp_lt_u32 s35, {NTB if V == 'n' else 28}")
                if cls == "W": a(f"s_waitcnt vmcnt({3*NG}) lgkmcnt(0)")
                elif par == 1: a(f"s_waitcnt vmcnt({2*NG}) lgkmcnt(0)")
                else: a("s_waitcnt lgkmcnt(0)")
                a("s_barrier")
            a(f"s_cbranch_scc1 {P}{V}_loop")
            if V == "n": a(f"s_branch {P}_loop")
        a("s_branch L1_epi")
        if cls == "W" and PF:
            for k in range(nev): event(f"{P}_e{k}")
        if cls == "X":
            a.lab("L1_at")
            a("s_mov_b64 exec, 1")
            a("buffer_atomic_add v8, v9, s[80:83], 0 offen sc1")
            a("s_mov_b64 exec, -1")
            a("s_branch L1_atr")
    a.lab("L1_epi")
    a("v_mov_b32 v9, 0")
    a("s_mov_b32 s44, s43")
    a("s_mov_b32 s45, s43")
    a(f"v_add_u32 v{VWA}, {WS}, v{VWB}")
    a(f"v_add_u32 v{VWA+1}, {WS}, v{VWB+1}")
    a("s_and_b32 s33, s22, s32")
    a(f"s_cselect_b32 s18, 0, s18")
    XF = lambda sl, mt: (32 if sl < 2 else 72 - 32) + 16*sl + 4*mt
    WBUF = [64, 240, 248, 104]
    def tx(sl): return [f"ds_read_b128 {vr(XF(sl, mt))}, v{(VXA if sl < 2 else VXB) + (sl & 1)} offset:{mt*2048}" for mt in range(4)]
    def tw(gi):
        seg, sl = G[gi]; b = WBUF[gi % 4]; o = ((28 + sl) % 5)*WSL + seg*4096
        return [f"ds_read_b64_tr_b16 {vr(b+4*u+2*i,2)}, v{VWA+u} offset:{o+512*i}" for u in range(2) for i in range(2)]
    def tm(gi):
        seg, sl = G[gi]; b = WBUF[gi % 4]; r = []
        for u in range(2):
            for mt in range(4):
                if seg < 2: r.append(mfma16(acc(mt, 2*seg+u), b+4*u, XF(sl, mt)))
                else:       r.append(mfma16(acc(mt, 2*seg+u), XF(sl, mt), b+4*u))
        return r
    G = [(0, 0), (1, 0), (0, 1), (0, 2), (0, 3), (1, 1), (1, 2), (1, 3), (2, 0), (2, 1), (2, 2), (2, 3)]
    jobs = []
    for T in range(2):
        for sg in range(2): jobs.append((1, acc(2*T+sg, 2), acc(2*T+sg, 3), T*2048 + sg*256))
    for T in range(2):
        for sg in range(2): jobs.append((0, acc(2*T+sg, 0), acc(2*T+sg, 1), T*2048 + sg*256))
    for T in range(2):
        for u in range(2):  jobs.append((2, acc(2*T, 4+u), acc(2*T+1, 4+u), T*2048 + u*256))
    def conv(n):
        seg, b0, b1, off = jobs[n]; t0 = PK1 + 4*n; r = []
        if seg == 0: r += [f"v_pk_mul_f32 v[{b+q}:{b+q+1}], v[{b+q}:{b+q+1}], s[44:45]" for b in (b0, b1) for q in (0, 2)]
        r += [f"v_cvt_pk_bf16_f32 v{t0}, v{b0}, v{b0+1}", f"v_cvt_pk_bf16_f32 v{t0+1}, v{b0+2}, v{b0+3}",
              f"v_cvt_pk_bf16_f32 v{t0+2}, v{b1}, v{b1+1}", f"v_cvt_pk_bf16_f32 v{t0+3}, v{b1+2}, v{b1+3}",
              f"buffer_store_dwordx4 {vr(t0)}, v{VST}, s[16:19], s{40+seg} offen offset:{off} sc1"]
        return r
    lds = []
    def emit(M, rd, tags, other, skip=0):
        o = list(other)
        for i, m_ in enumerate(M):
            a(m_)
            n_ = 2
            if i < len(rd):
                a(rd[i]); lds.append(tags[i]); n_ = 1
            if i >= skip:
                for _ in range(n_):
                    if o and not (i < len(rd) and o[0].startswith("buffer")): a(o.pop(0))
        return o
    def need(tags):
        last = max(i for i, x in enumerate(lds) if x in tags)
        a(f"s_waitcnt lgkmcnt({min(15, len(lds) - 1 - last)})")
    emit(mm(1), tx(0) + tw(0) + tw(1) + tx(1), ["x0"]*4 + ["w0"]*4 + ["w1"]*4 + ["x1"]*4, [])
    a("s_waitcnt vmcnt(6)")
    a("s_barrier")
    need(["x0", "w0"])
    emit(tm(0), tw(2), ["w2"]*4, [])
    a("s_waitcnt vmcnt(0)")
    a("s_barrier")
    a("s_cmp_lg_u32 s26, 5")
    a("s_cbranch_scc1 L1_noc")
    a("buffer_load_dword v8, v9, s[80:83], 0 offen sc1")
    a.lab("L1_noc")
    need(["w1"])
    emit(tm(1), tx(2) + tw(3), ["x2"]*4 + ["w3"]*4, [])
    need(["w2", "x1"])
    emit(tm(2), tx(3) + tw(4), ["x3"]*4 + ["w4"]*4, [])
    pend = []
    for gi in range(3, 12):
        need([f"w{gi}", f"x{G[gi][1]}"])
        had = len(pend) >= 6
        if gi == 5: pend += [t for n in range(4, 8) for t in conv(n)]
        if gi == 8: pend += [t for n in range(4) for t in conv(n)]
        rd = tw(gi + 2) if gi + 2 < 12 else []
        pend = emit(tm(gi), rd, [f"w{gi+2}"]*4, pend, skip=(3 if gi == 5 else (3 if gi == 8 and not had else 0)))
    if OPT["pst"] == "0": stamp(a, 2)
    for t in pend: a(t)
    a("s_nop 1")
    a("s_cmp_lg_u32 s22, 0")
    a("s_cselect_b32 s18, 0, s18")
    for n in (8, 10, 9, 11):
        for t in conv(n): a(t)
    a.lab("L1_done")
    a("s_setprio 0")
    a(f"v_mov_b32 v200, v{VST}")
    a("s_mov_b32 s92, s40")
    a("s_mov_b32 s93, s41")
    a("s_mov_b32 s94, s42")
    a("s_mov_b32 s24, s26")
    return [(seg, off) for seg, _, _, off in jobs]

def kperm(rho):
    return ((rho >> 2) & 1) * 16 + (rho >> 3) * 4 + (rho & 3)

SLOTS = [131072, 0, 65536, 32768, 98304]

def k2(a, jobs):
    N = NAME + "_kernel"
    VL16, VKA, VVA, VIDX, VM, VT, VKL = 1, 2, 3, 4, 5, 6, 7
    ONES = 8; Q = [12, 20]; NEG = [28, 44]; O = [60, 76]; L = [92, 96]; KB = [100, 108]; VB = [116, 124]; S = [132, 148, 164, 180]
    NV = 256
    PF = OPT["pf3"] == "1"
    def sm32(d, av, b): return f"v_smfmac_f32_32x32x32_bf16 {vr(d,16)}, {vr(av)}, {vr(b,8)}, v{VIDX}"
    def sm16(l, b): return f"v_smfmac_f32_16x16x64_bf16 {vr(l)}, {vr(ONES)}, {vr(b,8)}, v{VIDX}"
    def ld(d, soff, off=0, v=VL16): a(f"buffer_load_dwordx4 {vr(d)}, v{v}, s[8:11], {soff} offen offset:{off} sc1")
    def xhalf_max():
        a(f"v_max_f32 v{VM}, v{VM}, v{VT}")
        a("s_nop 0")
        a(f"v_mov_b32 v{VT}, v{VM}")
        a("s_nop 1")
        a(f"v_permlane32_swap_b32 v{VM}, v{VT}")
        a("s_nop 1")
        a(f"v_max_f32 v{VM}, v{VM}, v{VT}")
    def maxof(vals):
        a(f"v_max3_f32 v{VM}, v{vals[0]}, v{vals[1]}, v{vals[2]}")
        a(f"v_max3_f32 v{VT}, v{vals[3]}, v{vals[4]}, v{vals[5]}")
        for i in range(6, len(vals) - 2, 4):
            a(f"v_max3_f32 v{VM}, v{VM}, v{vals[i]}, v{vals[i+1]}")
            a(f"v_max3_f32 v{VT}, v{VT}, v{vals[i+2]}, v{vals[i+3]}")
        a(f"v_max3_f32 v{VM}, v{VM}, v{vals[-2]}, v{vals[-1]}")
        xhalf_max()
    def finish(soff, off, T, o, l):
        a(f"v_rcp_f32 v{VT}, v{l}")
        a("s_nop 0")
        for i in range(16): a(f"v_mul_f32 v{o+i}, v{o+i}, v{VT}")
        for i in range(8): a(f"v_cvt_pk_bf16_f32 v{T+i}, v{o+2*i}, v{o+2*i+1}")
        a(f"buffer_store_dwordx4 {vr(T)}, v{VL16}, s[8:11], {soff} offen{OPT['st2']}")
        a(f"buffer_store_dwordx4 {vr(T+4)}, v{VL16}, s[8:11], {soff} offen offset:1024{OPT['st2']}")
    def consts():
        a(f"v_mov_b32 v{VIDX}, 0xdddddddd")
        a("v_bfe_u32 v5, v0, 2, 1")
        a("v_cmp_eq_u32 vcc, 0, v5")
        a("v_mov_b32 v6, 0x3f803f80")
        a("s_nop 0")
        a(f"v_cndmask_b32 v{ONES}, 0, v6, vcc")
        a(f"v_cndmask_b32 v{ONES+1}, 0, v6, vcc")
        a(f"v_cndmask_b32 v{ONES+2}, v6, 0, vcc")
        a(f"v_cndmask_b32 v{ONES+3}, v6, 0, vcc")
    a("s_lshr_b32 s60, s21, 4")
    a("s_mul_i32 s22, s60, 24")
    a("s_add_u32 s22, s22, 16")
    a("s_load_dwordx2 s[6:7], s[0:1], s22")
    a("s_load_dwordx2 s[58:59], s[0:1], 48")
    a("s_lshl_b32 s22, s20, 2")
    a("s_lshr_b32 s23, s21, 3")
    a("s_add_u32 s22, s22, s23")
    a("s_and_b32 s23, s21, 7")
    a(f"v_lshlrev_b32 v{VL16}, 4, v0")
    a("s_and_b32 s28, s24, 3")
    a("s_lshl_b32 s25, s23, 3")
    a("s_lshl_b32 s29, s28, 1")
    a("s_add_u32 s25, s25, s29")
    a("s_lshl_b32 s26, s22, 17")
    a("s_lshl_b32 s27, s25, 11")
    a("s_add_u32 s27, s27, s26")
    a("v_bfe_u32 v5, v0, 2, 1")
    a("v_and_b32 v6, 0x23, v0")
    a("v_lshl_or_b32 v6, v5, 4, v6")
    a("v_bfe_u32 v5, v0, 3, 2")
    a("v_lshl_or_b32 v6, v5, 2, v6")
    a(f"v_lshlrev_b32 v{VKL}, 4, v6")
    a(f"s_add_u32 s33, s26, {KF}")
    a("s_lshl_b32 s37, s25, 16")
    a("s_lshl_b32 s38, s22, 11")
    a("s_add_u32 s37, s37, s38")
    a(f"s_add_u32 s37, s37, {OF}")
    a("s_lshr_b32 s61, s20, 1")
    a("s_lshl_b32 s61, s61, 2")
    a("s_and_b32 s62, s21, 3")
    a("s_add_u32 s61, s61, s62")
    a("s_and_b32 s62, s20, 1")
    a("s_lshl_b32 s62, s62, 2")
    a("s_bfe_u32 s63, s21, 0x20002")
    a("s_add_u32 s62, s62, s63")
    a("s_lshl_b32 s63, s23, 5")
    a("s_add_u32 s63, s63, s22")
    a(f"s_lshl_b32 s63, s63, {FSH}")
    a(f"s_add_u32 s63, s63, {FL}")
    a("s_cmp_ge_u32 s24, 4")
    a("s_cbranch_scc1 L2_help")
    srd(a, 8, 98, WS_BYTES)
    consts()
    a("s_add_u32 s38, s37, 0x10000")
    a(f"v_mov_b32 v{VKA}, v{VKL}")
    a(f"v_add_u32 v{VVA}, 0x10000, v{VL16}")
    for i in range(40): a(f"v_mov_b32 v{O[0]+i}, 0")
    for i in range(16): a(f"v_mov_b32 v{S[3]+i}, 0")
    for i in range(8): a(f"v_mov_b32 v{VB[1]+i}, 0")
    a("s_mov_b32 s39, 0")
    a("s_mov_b32 s40, 0")
    a("s_waitcnt lgkmcnt(0)")
    if OPT["df"] == "1":
        a("s_cmp_lg_u32 s60, 0")
        a("s_cbranch_scc1 L2_x1")
    a("s_waitcnt vmcnt(0)")
    a.lab("L2_x1")
    a("s_barrier")
    if OPT["pst"] == "0": stamp(a, 3)
    a("s_barrier")
    if OPT["pst"] == "0": stamp(a, 4)
    if OPT["pst"] == "3": stamp(a, 5)
    ld(Q[0], "s27"); ld(KB[0], "s33", 0, VKL); ld(Q[0]+4, "s27", 1024); ld(KB[0]+4, "s33", 1024, VKL)
    ld(Q[1], "s27", 2048); ld(Q[1]+4, "s27", 3072)
    ld(KB[1], "s33", 2048, VKL); ld(KB[1]+4, "s33", 3072, VKL)
    a("s_waitcnt vmcnt(4)")
    a(mfma(S[0], KB[0], Q[0], "0")); a(mfma(S[0], KB[0]+4, Q[0]+4))
    a("s_waitcnt vmcnt(2)")
    if OPT["pst"] == "3": stamp(a, 2)
    a(mfma(S[1], KB[0], Q[1], "0")); a(mfma(S[1], KB[0]+4, Q[1]+4))
    a("s_nop 8")
    maxof([S[0]+r for r in range(16)])
    for i in range(16): a(f"v_sub_f32 v{NEG[0]+i}, 0, v{VM}")
    for i in range(16): a(f"v_sub_f32 v{S[0]+i}, v{S[0]+i}, v{VM}")
    maxof([S[1]+r for r in range(16)])
    for i in range(16): a(f"v_sub_f32 v{NEG[1]+i}, 0, v{VM}")
    a("s_waitcnt vmcnt(0)")
    if OPT["pst"] == "3": stamp(a, 3)
    a("s_barrier")
    if OPT["pst"] == "3": stamp(a, 4)
    if OPT["pst"] == "0": stamp(a, 5)
    if OPT["pst"] == "2":
        stamp(a, 2); a("s_memtime s[72:73]")
    if OPT["tlb"] == "1": a(f"buffer_load_dword v196, v{VL16}, s[8:11], s37 offen")
    if OPT["cp"] != "0": a(f"s_setprio {OPT['cp']}")
    a("s_cmp_eq_u32 s60, 0")
    a("s_cbranch_scc1 L2_it3")
    for n in range(8, 12):
        a(f"buffer_store_dwordx4 {vr(PK1+4*n)}, v200, s[8:11], s94 offen offset:{jobs[n][1]} sc1")
    a("s_branch L2_it3")

    def item(p, qk=True, rd=True, pre=None, post=None):
        n = (p - 3) % 16
        i = n >> 1; qt = n & 1
        Sn, Sc, Sp = S[(n+1) % 4], S[n % 4], S[(n-1) % 4]
        qn = (n+1) & 1; kbu = KB[((n+1) >> 1) % 2]
        qp = (n-1) & 1; vbu = VB[((n-1) >> 1) % 2]
        if qt == 1:
            kt = (i + 2) % 8
            r = [f"ds_read_b128 {vr(KB[i % 2])}, v{VKA} offset:{kt*2048}", f"ds_read_b128 {vr(KB[i % 2]+4)}, v{VKA} offset:{kt*2048+1024}"]
        else:
            r = [f"ds_read_b128 {vr(VB[i % 2])}, v{VVA} offset:{i*2048}", f"ds_read_b128 {vr(VB[i % 2]+4)}, v{VVA} offset:{i*2048+1024}"]
        if not rd or "r" in OPT["k2x"]: r = []
        ex = [f"v_exp_f32 v{Sc+k}, v{Sc+k}" for k in range(16)]
        post = list(post or [])
        seq = []
        if qk: seq.append(mfma(Sn, kbu, Q[qn], NEG[qn]))
        seq += post[0:1] + ex[0:3]
        if qk: seq.append(mfma(Sn, kbu+4, Q[qn]+4))
        seq += ["s_waitcnt lgkmcnt(0)"] + list(pre or []) + ex[3:6]
        seq.append(sm32(O[qp], vbu, Sp))
        seq += r[:1] + ex[6:9]
        seq.append(sm16(L[qp], Sp))
        seq += post[1:3] + ex[9:10]
        seq.append(sm32(O[qp], vbu+4, Sp+8))
        seq += r[1:] + ex[10:13]
        seq.append(sm16(L[qp], Sp+8))
        seq += post[3:] + ex[13:16]
        for t in seq: a(t)

    a.raw(".p2align 6")
    a.lab("L2_loop")
    item(0, pre=["s_waitcnt vmcnt(0)", "s_barrier", f"v_add_u32 v{VKA}, s40, v{VKL}"])
    item(1); item(2)
    a(f"v_add_u32 v{VVA}, s41, v{VL16}")
    a.lab("L2_it3")
    for p in range(3, 15): item(p)
    item(15, post=["s_add_u32 s40, s40, 16384", "s_and_b32 s40, s40, 0xffff", "s_add_u32 s41, s40, 0x10000", "s_add_u32 s39, s39, 1", "s_cmp_lt_u32 s39, 8"])
    if OPT["trip"] != "0":
        a("s_cselect_b32 s57, 1, 0")
        for n, tr in zip((2, 3, 4), OPT["trip"].split(",")):
            a(f"s_cmp_lg_u32 s39, {int(tr)+1}")
            a(f"s_cbranch_scc1 L2_t{n}")
            stamp(a, n)
            a.lab(f"L2_t{n}")
        a("s_cmp_lg_u32 s57, 0")
    a("s_cbranch_scc1 L2_loop")
    item(0, rd=False)
    item(1)
    item(2, qk=False, rd=False)
    a("s_nop 1")
    Sp = S[3]
    a(sm32(O[1], VB[1], Sp)); a(sm16(L[1], Sp)); a(sm32(O[1], VB[1]+4, Sp+8)); a(sm16(L[1], Sp+8))
    a("s_nop 4")
    if OPT["pst"] == "1": stamp(a, 5)
    if OPT["pst"] == "2":
        stamp(a, 3); a("s_memtime s[74:75]")
    for qt in range(2):
        a(f"v_mul_f32 v{VM}, 0, v{O[qt]}")
        for i in range(1, 16): a(f"v_fma_f32 v{VM}, v{O[qt]+i}, 0, v{VM}")
        a(f"v_add_f32 v{VM}, v{VM}, v{L[qt]}")
        a(f"v_mov_b32 v{VT}, {f2u(2.0**64):#x}")
        a(f"v_cmp_nlt_f32 vcc, v{VM}, v{VT}")
        a("s_nop 4")
        a(f"s_cbranch_vccnz L2_slow{qt}")
        a.lab(f"L2_fin{qt}")
        finish("s37" if qt == 0 else "s38", 0, S[1+qt], O[qt], L[qt])
    VOB, VOA, VWB, VWA, VST = 10, 11, 12, 16, 20
    F = [24, 56]; ACC = 88
    def Of(f, mt): return F[f] + 4*mt
    def Wf(f, nb): return F[f] + 16 + 4*nb
    def acc(mt, nb): return ACC + (mt*4 + nb)*4
    a("s_and_b32 s31, s24, 1")
    a("s_lshr_b32 s32, s24, 1")
    a("v_and_b32 v2, 15, v0")
    a("v_lshrrev_b32 v3, 4, v0")
    a("s_lshl_b32 s33, s31, 13")
    a("v_lshlrev_b32 v4, 4, v2")
    a("v_lshl_add_u32 v4, v3, 9, v4")
    a(f"v_add_u32 v{VOB}, s33, v4")
    a(f"v_add_u32 v{VOA}, {SLOTS[0]}, v{VOB}")
    a("v_bfe_u32 v4, v0, 2, 3")
    a("v_lshrrev_b32 v5, 5, v0")
    a("v_lshl_add_u32 v5, v5, 4, v4")
    a("v_lshlrev_b32 v5, 8, v5")
    a("v_and_b32 v6, 3, v0")
    a("v_lshl_add_u32 v5, v6, 3, v5")
    a("v_add_u32 v5, 16384, v5")
    a("s_lshl_b32 s33, s32, 2")
    a("v_xor_b32 v4, s33, v4")
    a(f"v_lshl_add_u32 v{VWB}, v4, 5, v5")
    for nb in range(1, 4): a(f"v_xor_b32 v{VWB+nb}, {nb*32}, v{VWB}")
    for nb in range(4): a(f"v_add_u32 v{VWA+nb}, {SLOTS[0]}, v{VWB+nb}")
    for i in range(64): a(f"v_mov_b32 v{ACC+i}, 0")
    for i in range(5): a(f"s_mov_b32 s{44+i}, {SLOTS[(i+1) % 5]}")
    a("s_mov_b32 s35, 0")
    srd(a, 16, 58, 8 << 20)
    a("s_lshl_b32 s40, s61, 19")
    a("s_lshl_b32 s41, s31, 18")
    a("s_add_u32 s40, s40, s41")
    a("s_lshl_b32 s41, s60, 11")
    a("s_add_u32 s40, s40, s41")
    a("s_lshl_b32 s41, s62, 8")
    a("s_add_u32 s40, s40, s41")
    a("s_lshl_b32 s41, s32, 7")
    a("s_add_u32 s40, s40, s41")
    def rdO(f, ks, mt): return [f"ds_read_b128 {vr(Of(f,mt))}, v{VOA} offset:{(mt>>1)*4096 + ks*2048 + (mt&1)*256}"]
    def rdW(f, ks, nb): return [f"ds_read_b64_tr_b16 {vr(Wf(f,nb),2)}, v{VWA+nb} offset:{ks*8192}",
                                f"ds_read_b64_tr_b16 {vr(Wf(f,nb)+2,2)}, v{VWA+nb} offset:{ks*8192+2048}"]
    def reads(f, ks):
        return [rdO(f, ks, 0)] + [rdW(f, ks, nb) for nb in range(4)] + [rdO(f, ks, mt) for mt in (1, 2, 3)]
    def mm(f):
        return [mfma16(acc(mt, nb), Wf(f, nb), Of(f, mt)) for mt in range(4) for nb in range(4)]
    a("s_waitcnt vmcnt(0)")
    if OPT["pst"] == "1": stamp(a, 2)
    a("s_barrier")
    if OPT["opf"] != "0":
        a("s_lshl_b32 s36, s60, 22")
        a("s_lshl_b32 s39, s61, 18")
        a("s_add_u32 s36, s36, s39")
        a("s_lshl_b32 s39, s24, 16")
        a("s_add_u32 s36, s36, s39")
        a("s_and_b32 s39, s62, 3")
        a("s_lshl_b32 s39, s39, 14")
        a("s_add_u32 s36, s36, s39")
        a(f"s_add_u32 s36, s36, {OF}")
        a("s_add_u32 s39, s36, 8192")
        a("v_lshlrev_b32 v21, 7, v0")
    a("s_barrier")
    if OPT["opf"] != "0":
        if OPT["opf"] == "2": a("s_sleep 3")
        a("buffer_load_dword v22, v21, s[8:11], s36 offen sc1")
        a("buffer_load_dword v23, v21, s[8:11], s39 offen sc1")
    a("s_barrier")
    if OPT["pst"] == "1": stamp(a, 3)
    flat = lambda g: [t for x in g for t in x]
    def block(f, rd, extra):
        M = mm(f)
        a("s_waitcnt lgkmcnt(3)")
        for i, m_ in enumerate(M):
            if i in (4, 8, 12): a(f"s_waitcnt lgkmcnt({min(15, (2 - (i//4 - 1)) + min(i, len(rd)))})")
            a(m_)
            if i < len(rd): a(rd[i])
            for t in extra.get(i, []): a(t)
    for t in flat(reads(0, 0)): a(t)
    a("s_branch L3_mid")
    a.raw(".p2align 6")
    a.lab("L3_loop")
    block(1, flat(reads(0, 0)), {})
    a.lab("L3_mid")
    block(0, flat(reads(1, 1)), {0: (["s_barrier"] if OPT["la"] == "4" else []) + ["s_mov_b32 s33, s44"], 15: (["s_waitcnt lgkmcnt(0)", "s_barrier"] if OPT["la"] == "5" else []), 1: ["s_mov_b32 s44, s45", "s_mov_b32 s45, s46"],
                                 2: ["s_mov_b32 s46, s47", "s_mov_b32 s47, s48"], 3: ["s_mov_b32 s48, s33"],
                                 5: ["s_add_u32 s35, s35, 1", "s_cmp_lt_u32 s35, 16"],
                                 9: [f"v_add_u32 v{VWA}, s33, v{VWB}"], 10: [f"v_add_u32 v{VWA+1}, s33, v{VWB+1}"],
                                 11: [f"v_add_u32 v{VWA+2}, s33, v{VWB+2}"], 12: [f"v_add_u32 v{VWA+3}, s33, v{VWB+3}"], 13: [f"v_add_u32 v{VOA}, s33, v{VOB}"]})
    a("s_cbranch_scc1 L3_loop")
    block(1, [], {})
    if OPT["pst"] == "1": stamp(a, 4)
    a("s_mul_i32 s41, s24, 9216")
    a("v_mul_u32_u24 v4, 144, v2")
    a("v_lshl_add_u32 v4, v3, 3, v4")
    a("v_add_u32 v4, s41, v4")
    a("v_lshrrev_b32 v5, 3, v0")
    a("v_mul_u32_u24 v6, 144, v5")
    a("v_and_b32 v7, 7, v0")
    a("v_lshl_add_u32 v6, v7, 4, v6")
    a("v_add_u32 v6, s41, v6")
    a("v_lshlrev_b32 v5, 12, v5")
    a(f"v_lshl_add_u32 v{VST}, v7, 4, v5")
    for mt in range(4):
        for nb in range(4):
            b = acc(mt, nb); t0 = F[0] + 2*(mt*4 + nb)
            a(f"v_cvt_pk_bf16_f32 v{t0}, v{b}, v{b+1}")
            a(f"v_cvt_pk_bf16_f32 v{t0+1}, v{b+2}, v{b+3}")
            a(f"ds_write_b64 v4, {vr(t0,2)} offset:{mt*16*144 + nb*32}")
        a(f"ds_read_b128 {vr(F[1]+8*mt)}, v6 offset:{mt*16*144}")
        a(f"ds_read_b128 {vr(F[1]+8*mt+4)}, v6 offset:{mt*16*144 + 8*144}")
        if mt >= 1:
            a("s_waitcnt lgkmcnt(6)")
            for h in range(2):
                a(f"buffer_store_dwordx4 {vr(F[1]+8*(mt-1)+4*h)}, v{VST}, s[16:19], s40 offen{OPT['st3']}")
                a(f"s_add_u32 s40, s40, {8*4096}")
    a("s_waitcnt lgkmcnt(0)")
    for h in range(2):
        a(f"buffer_store_dwordx4 {vr(F[1]+24+4*h)}, v{VST}, s[16:19], s40 offen{OPT['st3']}")
        a(f"s_add_u32 s40, s40, {8*4096}")
    dump(a, 0, "s24")
    a.lab("L2_end")
    a("s_endpgm")

    a.lab("L2_help")
    issued = []
    MC, MP, MP0, SC, SP, OB, LB = 12, 28, 44, 60, 76, [92, 112], [108, 128]
    QB = [132, 140]; KX = [148, 156, 164]; VX = [172, 180, 188]; VPF = 2
    a("s_lshl_b32 s34, s28, 12")
    a("s_add_u32 s35, s33, s34")
    a(f"s_add_u32 s36, s35, {VF-KF}")
    srd(a, 8, 98, WS_BYTES)
    def dma_stage(st):
        for base, so in ((0, "s35"), (65536, "s36")):
            a(f"s_add_u32 m0, s34, {base + (st % 4)*16384}")
            a("s_nop 0")
            for j in range(4):
                a(f"buffer_load_dwordx4 v{VL16}, s[8:11], {so} offen offset:{j*1024} sc1 lds")
            a(f"s_add_u32 {so}, {so}, 16384")
        issued.extend([f"s{st}"]*8)
    def late1():
        consts()
        a(f"s_add_u32 s28, s27, {4<<20}")
        a(f"s_add_u32 s29, s28, {KF}")
        a(f"s_add_u32 s30, s28, {VF}")
        a("s_cmp_eq_u32 s25, 0")
        a("s_cselect_b32 s32, 0, 2048")
        a("s_cselect_b64 s[44:45], 0, -1")
        a("s_sub_u32 s31, s29, s32")
        a("s_sub_u32 s32, s30, s32")
        a(f"s_add_u32 s37, s37, {4<<20}")
        a("s_add_u32 s38, s37, 0x10000")
        if PF:
            a("v_lshrrev_b32 v5, 3, v0")
            a("v_lshlrev_b32 v5, 11, v5")
            a("v_and_b32 v6, 7, v0")
            a(f"v_lshl_add_u32 v{VPF}, v6, 7, v5")
            a("v_cmp_gt_u32 vcc, 32, v0")
            a("v_mov_b32 v5, 0x7fffff00")
            a("s_and_b32 s47, s21, 15")
            a("s_lshl_b32 s47, s47, 17")
            a(f"v_cndmask_b32 v{VPF}, v5, v{VPF}, vcc")
            a("s_lshl_b32 s46, s34, 3")
            a("s_add_u32 s47, s47, s46")
            a("s_and_b32 s46, s20, 1")
            a("s_lshl_b32 s46, s46, 10")
            a("s_add_u32 s47, s47, s46")
    def pf():
        if PF:
            a(f"buffer_load_dword v{VPF+1}, v{VPF}, s[16:19], s47 offen{OPT['nto']}")
            a("s_add_u32 s47, s47, 8192")
    VWD0, VWD1, VFL, VFD = 196, 197, 198, 199
    def dma_w(st):
        sl = SLOTS[st % 5] + 16384
        a(f"s_add_u32 m0, s34, {sl}")
        a("s_nop 0")
        a(f"buffer_load_dwordx4 v{VWD0}, s[16:19], s40 offen lds")
        a("s_add_u32 m0, m0, 1024")
        a("s_nop 0")
        a(f"buffer_load_dwordx4 v{VWD1}, s[16:19], s40 offen lds")
        a("s_add_u32 m0, m0, 1024")
        a(f"s_add_u32 s40, s40, {64*2048}")
        a(f"buffer_load_dwordx4 v{VWD0}, s[16:19], s41 offen lds")
        a("s_add_u32 m0, m0, 1024")
        a("s_nop 0")
        a(f"buffer_load_dwordx4 v{VWD1}, s[16:19], s41 offen lds")
        a(f"s_add_u32 s41, s41, {64*2048}")
    def dma_o(st):
        a(f"s_add_u32 m0, s34, {SLOTS[st % 5]}")
        a("s_nop 0")
        for j in range(4):
            a(f"buffer_load_dwordx4 v{VL16}, s[8:11], s39 offen offset:{j*1024}{OPT['osc']} lds")
        a("s_add_u32 s39, s39, 4096")
    def poll(tag, voff, soff, srd_="s[8:11]", val=1, cmp_="ne"):
        a("s_mov_b32 s43, 0")
        a.lab(tag)
        a(f"buffer_load_dword v{VFD}, v{voff}, {srd_}, {soff} offen sc1")
        a("s_add_u32 s43, s43, 1")
        a("s_waitcnt vmcnt(0)")
        a(f"v_cmp_{cmp_}_u32 vcc, {val}, v{VFD}")
        a("s_cmp_gt_u32 s43, 0x200000")
        a(f"s_cbranch_scc1 {tag}x")
        a("s_nop 2")
        a(f"s_cbranch_vccz {tag}x")
        a(f"s_sleep {OPT['slp']}")
        a(f"s_branch {tag}")
        a.lab(tag + "x")
    def lanemask(r, prev):
        m = 0
        for l in range(64):
            q = l & 31; hh = l >> 5
            key = kperm(8*(r//4) + 4*hh + r % 4)
            d = q - key + (32 if prev else 0)
            if 0 <= d <= 14 and d % 2 == 0: m |= 1 << l
        return m
    def masks(prev):
        k = 0
        a(f"v_mov_b32 v{VT}, {NEGBIG:#x}")
        for i in range(20): a(f"v_mov_b32 v{OB[prev]+i}, 0")
        for r in range(16):
            m = lanemask(r, prev)
            sp = 48 + 2*(k % 4); k += 1
            a(f"s_mov_b32 s{sp}, {m & 0xffffffff:#x}")
            a(f"s_mov_b32 s{sp+1}, {m >> 32:#x}")
            a(f"v_cndmask_b32 v{(MP if prev else MC)+r}, v{VT}, 0, s[{sp}:{sp+1}]")
            if prev: a(f"v_cndmask_b32 v{MP0+r}, v{VT}, v{MP+r}, s[44:45]")
    def bcomp(t):
        keep = a.l; a.l = []
        kc, kp, vc, vp = KX[t+1], KX[t], VX[t+1], VX[t]
        ob, lb = OB[t], LB[t]
        a(mfma(SC, kc, QB[t], MC)); a(mfma(SP, kp, QB[t], MP0 if t == 0 else MP))
        a(mfma(SC, kc+4, QB[t]+4)); a(mfma(SP, kp+4, QB[t]+4))
        a("s_nop 10")
        vals = [SC+r for r in range(16)] + [SP+r for r in range(16)]
        maxof(vals)
        for v in vals: a(f"v_sub_f32 v{v}, v{v}, v{VM}")
        for v in vals: a(f"v_exp_f32 v{v}, v{v}")
        a("s_nop 1")
        a(sm32(ob, vc, SC)); a(sm16(lb, SC)); a(sm32(ob, vc+4, SC+8)); a(sm16(lb, SC+8))
        a(sm32(ob, vp, SP)); a(sm16(lb, SP)); a(sm16(lb, SP+8)); a(sm32(ob, vp+4, SP+8))
        a("s_nop 12")
        finish("s37" if t == 0 else "s38", 0, QB[t], ob, lb)
        out = a.l; a.l = keep
        return out
    work = [] if "B" in OPT["k2x"] else bcomp(0) + bcomp(1)
    def cost(t): return 2 if "v_exp" in t else (3 if "mfma" in t else 1)
    tot = sum(cost(t) for t in work)
    slots = [int(c) for c in OPT["bslots"]]
    chunks = {b: [] for b in range(8)}
    acc_ = 0
    for t in work:
        chunks[slots[min(len(slots) - 1, acc_ * len(slots) // tot)]].append(t)
        acc_ += cost(t)
    def psetup():
        a("v_lshrrev_b32 v5, 4, v0")
        a("v_and_b32 v199, 15, v0")
        a(f"v_lshlrev_b32 v{VWD0}, 1, v5")
        a(f"v_xor_b32 v199, v199, v{VWD0}")
        a("v_lshlrev_b32 v199, 4, v199")
        a(f"v_lshl_add_u32 v{VWD0}, v5, 11, v199")
        a(f"v_xor_b32 v{VWD1}, 128, v{VWD0}")
        a(f"v_add_u32 v{VWD1}, 8192, v{VWD1}")
        a(f"v_and_b32 v{VFL}, 31, v0")
        a(f"v_lshlrev_b32 v{VFL}, {FSH}, v{VFL}")
        a("s_lshl_b32 s39, s60, 22")
        a("s_lshl_b32 s40, s61, 18")
        a("s_add_u32 s39, s39, s40")
        a("s_lshl_b32 s40, s34, 4")
        a("s_add_u32 s39, s39, s40")
        a(f"s_add_u32 s39, s39, {OF}")
        a("s_lshl_b32 s40, s34, 3")
        a("s_lshl_b32 s41, s62, 8")
        a("s_add_u32 s40, s40, s41")
        a("s_add_u32 s41, s40, 16384")
        a("s_lshl_b32 s42, s61, 1")
        a("s_lshr_b32 s43, s34, 13")
        a("s_add_u32 s42, s42, s43")
        a("s_add_u32 s42, s42, 8")
        a("s_lshr_b32 s43, s61, 1")
        a("s_cmp_eq_u32 s60, 0")
        a("s_cselect_b32 s42, s43, s42")
        a(f"s_lshl_b32 s42, s42, {5+FSH}")
        a(f"s_add_u32 s42, s42, {FL}")
        a("s_lshl_b32 s89, s25, 4")
        a("s_add_u32 s89, s89, s22")
        a("s_add_u32 s89, s89, 256")
        a(f"s_lshl_b32 s89, s89, {FSH}")
        a(f"s_add_u32 s89, s89, {FL}")
    def publish(base, tag=None):
        if tag:
            a("s_cmp_lg_u32 s24, 4")
            a(f"s_cbranch_scc1 {tag}")
        a("s_mov_b64 exec, 1")
        a(f"buffer_store_dword v204, v203, s[8:11], {base} offen sc1")
        a("s_mov_b64 exec, -1")
        if tag: a.lab(tag)
        else: issued.append("f")
    def wait_for(tags):
        idx_ = [i for i, x in enumerate(issued) if x in tags]
        if idx_: a(f"s_waitcnt vmcnt({min(63, len(issued) - 1 - max(idx_))})")
    a("v_mov_b32 v203, 0")
    a("v_mov_b32 v204, 1")
    a("v_and_b32 v205, 7, v0")
    a(f"v_lshlrev_b32 v205, {FSH}, v205")
    a("s_lshr_b32 s84, s22, 1")
    a(f"s_lshl_b32 s84, s84, {3+FSH}")
    a(f"s_add_u32 s84, s84, {FL + (1280 << FSH)}")
    def late2():
        a("s_lshr_b32 s85, s22, 1")
        a("s_lshl_b32 s85, s85, 5")
        a("s_lshr_b32 s43, s25, 1")
        a("s_add_u32 s85, s85, s43")
        a("s_add_u32 s85, s85, 1407")
        a(f"s_lshl_b32 s85, s85, {FSH}")
        a(f"s_add_u32 s85, s85, {FL}")
        a("v_and_b32 v207, 1, v0")
        a("v_and_b32 v206, 1, s44")
        a("v_xor_b32 v206, 1, v206")
        a("v_or_b32 v207, v207, v206")
        a(f"v_lshlrev_b32 v207, {FSH}, v207")
    a("s_waitcnt vmcnt(0) lgkmcnt(0)")
    a("v_mov_b32 v202, v8")
    srd(a, 16, 6, 2 << 20)
    a("s_cmp_eq_u32 s60, 0")
    a("s_cbranch_scc1 L2_hA")
    BF = min(7, slots[-1] + 1)
    QS = [int(c) for c in OPT["qs"]]
    QP = int(OPT["qp"]); BL = int(OPT["bl"])
    PX = 132
    ADP = OPT["adp"] == "1"
    XB = OPT["xb"] != "0"; XL = [int(c) for c in OPT["xb"]]
    for typ in ("B", "A"):
        T_ = "L2" + typ
        issued[:] = []
        if typ == "A":
            a.lab("L2_hA")
            a("s_barrier")
            publish("s95", T_ + "_p1")
        else:
            if OPT["df"] == "2":
                for n in range(12): a(f"ds_read_b128 {vr(PX+4*n)}, v201 offset:{n*1024}")
            if OPT["df"] == "0": publish("s95")
        a("s_cmp_lg_u32 s24, 5")
        a(f"s_cbranch_scc1 {T_}_qx")
        a("v_cmp_gt_u32 vcc, 0x100, v202")
        a("s_nop 4")
        a(f"s_cbranch_vccz {T_}_cx")
        poll(T_ + "_c", 203, "0", "s[80:83]", "0x100", "gt")
        if OPT["xslp"] != "0": a(f"s_sleep {OPT['xslp']}")
        poll(T_ + "_q", 205, "s84")
        if typ == "B": a("s_barrier")
        if OPT["hp0"] == "1": a("s_setprio 3")
        a("s_barrier")
        dma_stage(0)
        if OPT["hp0"] == "1": a("s_setprio 0")
        a("s_waitcnt vmcnt(0)")
        a("s_barrier")
        dma_stage(1); dma_stage(2)
        qst = []
        if typ == "B":
            for n, (seg, off) in enumerate(jobs if OPT["df"] != "0" else []):
                qst.append(f"buffer_store_dwordx4 {vr(PK1+4*n)}, v200, s[8:11], s{92+seg} offen offset:{off} sc1")
            for n, (seg, off) in enumerate(jobs if OPT["df"] == "2" else []):
                qst.append(f"buffer_store_dwordx4 {vr(PX+4*n)}, v200, s[8:11], s{86+seg} offen offset:{off} sc1")
            for sg in range(3): a(f"s_sub_u32 s{86+sg}, s{92+sg}, 0x20000")
        ORD = [2*x + h for x in [int(c) for c in OPT["xord"]] for h in range(2)]
        def sw(st):
            if typ == "A" and ADP:
                a(f"s_add_u32 s40, s87, {ORD[st]*64*2048}")
                a("s_add_u32 s41, s40, 16384")
            dma_w(st)
        def so(st):
            t = ORD[st]; tag = f"{T_}_n{st}"
            a(f"s_andn2_b32 s88, {3 << (2*t):#x}, s90")
            a(f"s_cbranch_scc0 {tag}x")
            a("s_mov_b32 s43, 0")
            a.lab(tag)
            a(f"buffer_load_dword v{VFD}, v{VFL}, s[8:11], s42 offen sc1")
            a("s_add_u32 s43, s43, 1")
            a("s_waitcnt vmcnt(0)")
            a(f"v_cmp_eq_u32 vcc, 1, v{VFD}")
            a("s_cmp_gt_u32 s43, 0x200000")
            a(f"s_cbranch_scc1 {tag}x")
            a("s_nop 2")
            a("s_mov_b32 s90, vcc_lo")
            a(f"s_andn2_b32 s88, {3 << (2*t):#x}, s90")
            a(f"s_cbranch_scc0 {tag}x")
            a(f"s_sleep {OPT['slp']}")
            a(f"s_branch {tag}")
            a.lab(tag + "x")
            a(f"s_add_u32 s39, s86, {t*4096}")
            dma_o(st); issued.extend([f"o{st}"]*4)
        def bload(tag):
            poll(tag, 207, "s85"); issued[:] = []
            for t in range(2): ld(QB[t], "s28", t*2048); ld(QB[t]+4, "s28", t*2048+1024)
            ld(KX[0], "s31", 0, VKL); ld(KX[0]+4, "s31", 1024, VKL)
            for t in range(2): ld(KX[t+1], "s29", t*2048, VKL); ld(KX[t+1]+4, "s29", t*2048+1024, VKL)
            ld(VX[0], "s32"); ld(VX[0]+4, "s32", 1024)
            for t in range(2): ld(VX[t+1], "s30", t*2048); ld(VX[t+1]+4, "s30", t*2048+1024)
            issued.extend(["B"]*16)
        if XB:
            chunks = {b: [] for b in range(8)}
            if typ == "A":
                for r_, (lo, hi) in enumerate(((XL[0], XL[1]), (XL[1], 7))):
                    wts = [int(OPT["xw"])] + [10]*(hi - lo - 1)
                    acc_ = 0
                    for t in work:
                        f_ = acc_ * sum(wts) / tot; j_ = 0
                        while j_ < len(wts) - 1 and f_ >= sum(wts[:j_+1]): j_ += 1
                        chunks[lo + j_].append(t); acc_ += cost(t)
        def qstores(b):
            k = [i for i, x in enumerate(QS) if x == b]
            per = -(-len(qst) // len(QS))
            for i in k:
                for t in qst[i*per:(i+1)*per]:
                    a(t); issued.append("q")
        qstores(0)
        late1(); late2()
        if not (XB and typ == "B"): masks(0)
        for b in range(1, 8):
            wait_for([f"s{b}"])
            a("s_barrier")
            if b <= 5: dma_stage(b + 2)
            qstores(b)
            if b == QP and typ == "B" and OPT["df"] != "0":
                wait_for(["q"]); publish("s95")
            if b == 1:
                if not (XB and typ == "B"): masks(1)
                psetup()
            if XB:
                if typ == "A":
                    if b in (XL[1], 7):
                        wait_for(["st"]); publish("s89")
                    if b == XL[1]:
                        for r_ in ("s28", "s29", "s30", "s31", "s32"): a(f"s_add_u32 {r_}, {r_}, 0x40000")
                        for r_ in ("s37", "s38"): a(f"s_add_u32 {r_}, {r_}, 4096")
                        a(f"s_add_u32 s89, s89, {2 << FSH}")
                        a(f"s_add_u32 s85, s85, {32 << FSH}")
                    if b in XL:
                        bload(f"{T_}_b{b}")
                        if b == XL[1]:
                            for i in range(40): a(f"v_mov_b32 v{OB[0]+i}, 0")
                        wait_for(["B"])
            else:
                if b == BL: bload(T_ + "_b")
                if b == slots[0]: wait_for(["B"])
                if b == BF:
                    wait_for(["st"]); publish("s89")
            for c in OPT['pfs']:
                if int(c) == b and PF:
                    pf(); issued.append("p")
            if b == 5 and OPT["tlb"] == "1":
                srd(a, 12, 58, 8 << 20)
                a("v_lshlrev_b32 v206, 21, v0")
                a("buffer_load_dword v206, v206, s[12:15], 0 offen"); issued.append("p")
            if b >= 6:
                if b == 6:
                    if typ == "A" and ADP:
                        a("s_mov_b32 s86, s39")
                        a("s_mov_b32 s87, s40")
                    sw(0); issued.extend(["w0"]*4)
                sw(b - 5); issued.extend([f"w{b-5}"]*4)
            for t in chunks[b]:
                a.l.append(t)
                if "buffer_store" in t: issued.append("st")
        if typ == "B":
            if OPT['bslp'] != '0': a(f"s_sleep {OPT['bslp']}")
            poll(T_ + "_o", VFL, "s42"); issued[:] = []
            for st in range(3):
                dma_o(st); issued.extend([f"o{st}"]*4)
            a("s_barrier")
            publish("s63", T_ + "_p3")
            a("s_barrier")
            wait_for(["o0"])
            a("s_barrier")
            for st in (3, 4):
                dma_w(st); dma_o(st); issued.extend([f"w{st}"]*4 + [f"o{st}"]*4)
        elif not ADP:
            a("s_barrier")
            publish("s63", T_ + "_p3")
            dma_w(3); dma_w(4)
            a("s_cmp_lg_u32 s24, 5")
            a(f"s_cbranch_scc1 {T_}_ox")
            if OPT["aslp"] != "0": a(f"s_sleep {OPT['aslp']}")
            poll(T_ + "_o", VFL, "s42"); issued[:] = []
            a("s_barrier")
            for st in range(2):
                dma_o(st); issued.extend([f"o{st}"]*4)
            wait_for(["o0"])
            a("s_barrier")
            for st in range(2, 5):
                dma_o(st); issued.extend([f"o{st}"]*4)
        else:
            a("s_mov_b32 s90, 0")
            a("s_barrier")
            publish("s63", T_ + "_p3")
            a("s_barrier")
            so(0); so(1)
            wait_for(["o0"])
            a("s_barrier")
            so(2)
            for st in (3, 4):
                sw(st); issued.extend([f"w{st}"]*4); so(st)
        for t in range(15):
            wait_for([f"o{t+1}", f"w{t+1}"])
            a("s_barrier")
            if t + 5 < 16:
                if typ == "A" and ADP:
                    sw(t + 5); issued.extend([f"w{t+5}"]*4); so(t + 5)
                else:
                    dma_w(t + 5); dma_o(t + 5); issued.extend([f"w{t+5}"]*4 + [f"o{t+5}"]*4)
        for n in (2, 3, 4, 5): stamp(a, n)
        dump(a, 0, "s24")
        a("s_endpgm")

    s0 = S[0]
    for qt in range(2):
        a.lab(f"L2_slow{qt}")
        a(f"s_add_u32 s36, s26, {VF}")
        a(f"v_mov_b32 v{VM}, 0xff800000")
        a("s_mov_b32 s39, 0")
        a.lab(f"L2_s1{qt}")
        a("s_add_u32 s41, s33, s39")
        ld(KB[0], "s41", 0, VKL); ld(KB[0]+4, "s41", 1024, VKL)
        a("s_waitcnt vmcnt(0)")
        a(mfma(s0, KB[0], Q[qt], "0")); a(mfma(s0, KB[0]+4, Q[qt]+4))
        a("s_nop 15")
        for i in range(0, 16, 2): a(f"v_max3_f32 v{VM}, v{VM}, v{s0+i}, v{s0+i+1}")
        a("s_add_u32 s39, s39, 2048")
        a(f"s_cmp_lt_u32 s39, {64*2048}")
        a(f"s_cbranch_scc1 L2_s1{qt}")
        a(f"v_mov_b32 v{VT}, v{VM}")
        xhalf_max()
        for i in range(16): a(f"v_sub_f32 v{NEG[qt]+i}, 0, v{VM}")
        for i in range(16): a(f"v_mov_b32 v{O[qt]+i}, 0")
        for i in range(4): a(f"v_mov_b32 v{L[qt]+i}, 0")
        a("s_mov_b32 s39, 0")
        a.lab(f"L2_s2{qt}")
        a("s_add_u32 s41, s33, s39")
        ld(KB[0], "s41", 0, VKL); ld(KB[0]+4, "s41", 1024, VKL)
        a("s_add_u32 s41, s36, s39")
        ld(VB[0], "s41"); ld(VB[0]+4, "s41", 1024)
        a("s_waitcnt vmcnt(0)")
        a(mfma(s0, KB[0], Q[qt], NEG[qt])); a(mfma(s0, KB[0]+4, Q[qt]+4))
        a("s_nop 15")
        for i in range(16): a(f"v_exp_f32 v{s0+i}, v{s0+i}")
        a("s_nop 1")
        a(sm32(O[qt], VB[0], s0)); a(sm16(L[qt], s0)); a(sm32(O[qt], VB[0]+4, s0+8)); a(sm16(L[qt], s0+8))
        a("s_nop 7")
        a("s_add_u32 s39, s39, 2048")
        a(f"s_cmp_lt_u32 s39, {64*2048}")
        a(f"s_cbranch_scc1 L2_s2{qt}")
        a("s_nop 15")
        a(f"s_branch L2_fin{qt}")
    return kd(N, NV, 102), f"; @launch kernel={N} grid=(256,1,1) block=(512,1,1) lds=163840"


DOC = """;
; One persistent kernel, 256 workgroups x 8 waves, one workgroup per CU, three phases joined by flag hand-offs in d_ws
; (write-through stores -> vmcnt(0) -> flag; consumers poll with sc1 loads and read the data with sc1 loads; the flags are
;     results stored as MFMA operand fragments (q pre-scaled by log2(e)/sqrt(32)).
"""

def main():
    a = A()
    jobs = k1(a)
    desc, launch = k2(a, jobs)
    if OPT["single"] == "1": launch = "; @launch grid=(256,1,1) block=(512,1,1) lds=163840"
    hdr = open("cdna_kernels/" + NAME + ".s.ref").read().split("\n")
    top = [l for l in hdr if l.startswith(";") and "@launch" not in l and "Override" not in l and "grid=ceil" not in l]
    out = "\n".join(top) + "\n" + launch + "\n"
    out += DOC
    out += '.amdgcn_target "amdgcn-amd-amdhsa--gfx950"\n.text\n' + a.text()
    out += '.section .rodata,"a"\n' + desc
    open(sys.argv[1], "w").write(out)

main()
```

```python
import struct, math, sys

NAME = "concat_heads__mha_block__sliding_local_dilated__prompt"
OPT = dict(st1=" sc1", st2=" sc1", st3=" sc1", dbg="0", pf1="1", pf3="1", ord1="0", dlt="4", nx="0", ph="8", pf0="2", pfm="255", xl="4", pfe="8", cpb="16", s2e="0", prio="1", k2x="", cpf="1", hprio="0", trip="0", k1x="", tlb="1", dk="0", spin="", bslots="345", pst="0", wfirst="1", slp="4", fsh="5", pfs="2345", opf="0", la="5", xb="0", xw="5", nt0="0", tl2="0", ntb="0", ntx="", ntw="", ntp="", nto="", hp0="0", wp="1", cp="2", adp="0", xord="20361475", k3x="", mix="1", qs="0", qp="1", bl="2", xslp="0", single="0", df="1", rt="1", pub="3", od="3", pa="1", fm="g", aslp="0", bslp="0", osc=" sc1")
for a in sys.argv[2:]:
    k, v = a.split("=", 1)
    OPT[k] = v

def f2u(x): return struct.unpack("<I", struct.pack("<f", x))[0]
QSCALE = f2u(math.log2(math.e) / math.sqrt(32.0))
NEGBIG = f2u(-1e30)

QF, KF, VF, OF = 0, 8 << 20, 16 << 20, 24 << 20
WS_BYTES = 33 << 20

class A:
    def __init__(s): s.l = []
    def __call__(s, t): s.l.append("    " + t)
    def lab(s, t): s.l.append(t + ":")
    def raw(s, t): s.l.append(t)
    def text(s): return "\n".join(s.l) + "\n"

def vr(b, n=4): return f"v[{b}:{b+n-1}]"
def mfma(d, a, b, c=None):
    cc = vr(d, 16) if c is None else (c if isinstance(c, str) else vr(c, 16))
    return f"v_mfma_f32_32x32x16_bf16 {vr(d,16)}, {vr(a)}, {vr(b)}, {cc}"

def mfma16(d, a, b):
    return f"v_mfma_f32_16x16x32_bf16 {vr(d)}, {vr(a)}, {vr(b)}, {vr(d)}"

def spread(main, fill, start=0, every=1, per=1):
    out = []; k = 0
    for i, m in enumerate(main):
        out.append(m)
        if i >= start and (i - start) % every == 0:
            for _ in range(per):
                if k < len(fill):
                    out += fill[k]; k += 1
    while k < len(fill):
        out += fill[k]; k += 1
    return out

def interleave(main, fill, pattern):
    out = []; k = 0
    for i, m in enumerate(main):
        for _ in range(pattern[i] if i < len(pattern) else 0):
            if k < len(fill):
                out += fill[k]; k += 1
        out.append(m)
    while k < len(fill):
        out += fill[k]; k += 1
    return out

def kd(name, vgpr, sgpr=96):
    acc = (vgpr + 3) // 4 * 4
    return f""".p2align 6
.amdhsa_kernel {name}
  .amdhsa_next_free_vgpr {vgpr}
  .amdhsa_next_free_sgpr {sgpr}
  .amdhsa_accum_offset {acc}
  .amdhsa_group_segment_fixed_size 0
  .amdhsa_kernarg_size 72
  .amdhsa_user_sgpr_count 2
  .amdhsa_user_sgpr_kernarg_segment_ptr 1
  .amdhsa_system_sgpr_workgroup_id_x 1
.end_amdhsa_kernel
"""

_cp = [0]
DBG = OPT["dbg"] in ("1", "2", "3", "4")
def stamp(a, n):
    if DBG:
        a(f"{'s_memrealtime' if OPT['rt'] == '1' and n >= 2 else 's_memtime'} s[{64+2*n}:{65+2*n}]")
def rstamp(a, n):
    if DBG:
        a(f"s_memrealtime s[{64+2*n}:{65+2*n}]")
def dump(a, kidx, wave_sgpr, nst=8):
    if not DBG: return
    if OPT["dbg"] == "4":
        _cp[0] += 1
        sk = f"Ldbg{_cp[0]}"
        a("s_lshl_b32 s92, s2, 3")
        a(f"s_add_u32 s92, s92, {wave_sgpr}")
        a(f"s_cmp_lg_u32 s92, {OPT['dk']}")
        a(f"s_cbranch_scc1 {sk}")
        a("s_waitcnt vmcnt(0)")
        a("s_memrealtime s[78:79]")
        a("s_waitcnt lgkmcnt(0)")
        a(f"s_sub_u32 s93, s{64+2*int(OPT['spin'])}, s66")
        a.lab(sk + "s")
        a("s_memrealtime s[62:63]")
        a("s_waitcnt lgkmcnt(0)")
        a("s_sub_u32 s62, s62, s78")
        a("s_cmp_lt_u32 s62, s93")
        a(f"s_cbranch_scc1 {sk}s")
        a.lab(sk)
        return
    if OPT["dbg"] == "2":
        if kidx != int(OPT["dk"]): return
        _cp[0] += 1
        sk = f"Ldbg{_cp[0]}"
        a("s_load_dwordx2 s[88:89], s[0:1], 56")
        a("s_waitcnt lgkmcnt(0) vmcnt(0)")
        a(f"s_memtime s[{64+2*(nst-2)}:{65+2*(nst-2)}]")
        a(f"s_memrealtime s[{64+2*(nst-1)}:{65+2*(nst-1)}]")
        a("s_waitcnt lgkmcnt(0)")
        a(f"s_sub_u32 s88, s88, {512*kidx}")
        a("s_subb_u32 s89, s89, 0")
        a("s_mov_b32 s90, 64")
        a("s_mov_b32 s91, 0x00020000")
        a("s_lshl_b32 s92, s2, 3")
        a(f"s_add_u32 s92, s92, {wave_sgpr}")
        a("s_cmp_eq_u32 s92, 805")
        a("s_cselect_b32 s93, 32, 0x1000")
        a("s_cmp_eq_u32 s92, 0")
        a("s_cselect_b32 s92, 0, s93")
        a("v_mov_b32 v2, 0")
        for n in range(2, nst):
            base = 64 if n < nst-1 else 66
            a(f"s_sub_u32 s93, s{64+2*n}, s{base}")
            a("v_mov_b32 v3, s93")
            a(f"buffer_store_dword v3, v2, s[88:91], s92 offen offset:{4*(n-2)}")
            a("s_nop 1")
        return
    a("s_load_dwordx2 s[88:89], s[0:1], 64")
    a("s_waitcnt lgkmcnt(0) vmcnt(0)")
    a(f"s_memtime s[{64+2*(nst-2)}:{65+2*(nst-2)}]")
    a(f"s_memrealtime s[{64+2*(nst-1)}:{65+2*(nst-1)}]")
    a("s_waitcnt lgkmcnt(0)")
    a("s_mov_b32 s90, 0x8000000")
    a("s_mov_b32 s91, 0x00020000")
    a("s_lshl_b32 s92, s2, 3")
    a(f"s_add_u32 s92, s92, {wave_sgpr}")
    a("s_lshl_b32 s92, s92, 6")
    a(f"s_add_u32 s92, s92, {(64+kidx) << 20}")
    a("v_mov_b32 v2, 0")
    for n in range(nst):
        a(f"v_mov_b32 v3, s{64+2*n}")
        a(f"buffer_store_dword v3, v2, s[88:91], s92 offen offset:{4*n}")
        a("s_nop 1")
    if OPT["dbg"] == "3" and kidx == 2:
        _cp[0] += 1
        sk = f"Ldbg{_cp[0]}"
        a("s_lshl_b32 s92, s2, 3")
        a(f"s_add_u32 s92, s92, {wave_sgpr}")
        a(f"s_cmp_lg_u32 s92, {OPT['dk']}")
        a(f"s_cbranch_scc1 {sk}")
        a(f"s_add_u32 s88, s88, {(64 << 20) + int(OPT['dk'])*64}")
        a("s_addc_u32 s89, s89, 0")
        a("s_load_dwordx8 s[40:47], s[88:89], 0")
        a("s_add_u32 s88, s88, 0x100000")
        a("s_addc_u32 s89, s89, 0")
        a("s_load_dwordx8 s[48:55], s[88:89], 0")
        a("s_load_dwordx2 s[88:89], s[0:1], 56")
        a("s_waitcnt lgkmcnt(0)")
        a("s_mov_b32 s90, 64")
        k = 0
        for b, st in ((40, 1), (48, 1), (64, 2)):
            for n, ref in ((3, b), (4, b), (6, b), (1, 41), (7, 41)):
                a(f"s_sub_u32 s93, s{b+st*n}, s{ref}")
                a("v_mov_b32 v3, s93")
                a(f"buffer_store_dword v3, v2, s[88:91], 0 offen offset:{4*k}")
                a("s_nop 1")
                k += 1
        if OPT["spin"] != "":
            q, mult, unit = OPT["spin"].split(",")
            x, y = q.split("-")
            a(f"s_sub_u32 s93, s{x}, s{y}")
            a(f"s_mul_i32 s93, s93, {mult}")
            ins = "s_memrealtime" if unit == "r" else "s_memtime"
            a(f"{ins} s[60:61]")
            a("s_waitcnt lgkmcnt(0)")
            a.lab(sk + "s")
            a(f"{ins} s[62:63]")
            a("s_waitcnt lgkmcnt(0)")
            a("s_sub_u32 s62, s62, s60")
            a("s_cmp_lt_u32 s62, s93")
            a(f"s_cbranch_scc1 {sk}s")
        a.lab(sk)

def codepf(a, start, end, vtmp, lane="v0"):
    if OPT["cpf"] != "1": return
    _cp[0] += 1
    l = f"Lcp{_cp[0]}"
    a("s_getpc_b64 s[56:57]")
    a.lab(l)
    a(f"s_add_u32 s56, s56, {start}-{l}")
    a(f"s_addc_u32 s57, s57, ({start}-{l})>>32")
    a(f"v_lshlrev_b32 v{vtmp}, 7, {lane}")
    a(f"v_min_u32 v{vtmp}, ({end})-({start})-4, v{vtmp}")
    a(f"global_load_dword v{vtmp}, v{vtmp}, s[56:57]")

def head(a, name):
    a.raw(f".globl {name}\n.p2align 8\n.type {name},@function\n{name}:")

def srd(a, d, base, nbytes):
    a(f"s_mov_b32 s{d}, s{base}")
    a(f"s_mov_b32 s{d+1}, s{base+1}")
    a(f"s_mov_b32 s{d+2}, {nbytes:#x}")
    a(f"s_mov_b32 s{d+3}, 0x00020000")

def place(main, fill, per=2, start=0):
    out = []; k = 0
    for i, m in enumerate(main):
        out.append(m)
        if i >= start:
            out += fill[k:k+per]; k += per
    out += fill[k:]
    return out

def sched(M, rd, d, post, late, late_dma=False):
    n = len(M)
    gaps = [[] for _ in range(n)]
    if late_dma: rg = list(range(len(rd))); dg = [len(rd) + 2*k for k in range(len(d))]
    else:
        dg = [1 + 4*k for k in range(len(d))]; rg = [g for g in range(n) if g not in dg][:len(rd)]
    for g, t in zip(rg, rd): gaps[g].append(t)
    for g, (m_, l_) in zip(dg, d):
        gaps[g-1].append(m_); gaps[g].append(l_)
    def runs(ops):
        out = []
        for t in ops:
            if t.startswith("s_cselect") : out[-1].append(t)
            else: out.append([t])
        return out
    def put(run, g0):
        g = g0
        while g < n - 1 and len(gaps[g]) + len(run) > 3: g += 1
        gaps[g] += run
        return g
    g = (dg[len(d)-1] if d else 0)
    for r in runs(post): g = put(r, g)
    g = 0
    for r in runs(late):
        if r[0].startswith("v_"): g = max(g, rg[-1] if rg else 0)
        g = put(r, g)
    seq = []
    for i, m_ in enumerate(M):
        seq.append(m_); seq += gaps[i]
    return seq

FL = 32 << 20
FSH = int(OPT['fsh'])
PK1 = 208

def k1(a):
    N = NAME + "_kernel"
    head(a, N)
    XS, WS, WSL = 32768, 98304, 12288
    VD, VXB, VXA, VWB, VWA, VST, VPX, VPW, VPD = 10, 18, 20, 22, 24, 26, 27, 28, 29
    F = [32, 72]; ACC = 112; NV = 208
    PF = OPT["pf1"] == "1"
    DLT = int(OPT["dlt"]); PST = 2
    def A_(f, mt): return F[f] + 4*mt
    def B_(f, nb): return F[f] + 16 + 4*nb
    def acc(mt, nb): return ACC + (mt*6 + nb)*4
    a("s_cmp_ge_u32 s2, 256")
    a("s_cbranch_scc1 L2_end")
    stamp(a, 0); rstamp(a, 1)
    a("s_and_b32 s20, s2, 7")
    a("s_lshr_b32 s21, s2, 3")
    MIX = OPT["mix"] == "1"
    if MIX: a("s_lshr_b32 s22, s21, 4")
    else: a("s_lshr_b32 s22, s20, 2")
    a("s_mul_i32 s23, s22, 24")
    a("s_load_dwordx4 s[4:7], s[0:1], s23")
    a("s_load_dwordx4 s[96:99], s[0:1], 56")
    a("s_load_dwordx4 s[88:91], s[0:1], 0")
    a("v_lshrrev_b32 v1, 6, v0")
    a("v_and_b32 v0, 63, v0")
    a("v_readfirstlane_b32 s26, v1")
    a("s_and_b32 s24, s20, 1")
    a("s_lshl_b32 s24, s24, 2")
    a("s_and_b32 s25, s21, 3")
    a("s_add_u32 s24, s24, s25")
    if MIX:
        a("s_lshr_b32 s25, s20, 1")
        a("s_xor_b32 s53, s25, s22")
        a("s_lshl_b32 s25, s53, 2")
        a("s_bfe_u32 s27, s21, 0x20002")
    else:
        a("s_bfe_u32 s25, s20, 0x10001")
        a("s_lshl_b32 s25, s25, 3")
        a("s_lshr_b32 s27, s21, 2")
    a("s_add_u32 s25, s25, s27")
    a("s_and_b32 s31, s26, 3")
    a("s_lshr_b32 s32, s26, 2")
    PH = OPT["ph"]
    if PH == "0": a("s_mov_b32 s44, 0")
    elif PH == "1":
        a("s_lshl_b32 s44, s20, 1")
    elif PH == "2":
        a("s_lshl_b32 s44, s20, 1")
        a("s_and_b32 s45, s21, 1")
        a("s_add_u32 s44, s44, s45")
    elif PH in ("6", "7", "8"):
        a("s_lshr_b32 s54, s20, 1")
        a("s_lshl_b32 s54, s54, 2")
        a("s_and_b32 s45, s20, 1")
        a("s_mul_i32 s45, s45, 10")
        a("s_add_u32 s54, s54, s45")
        a("s_and_b32 s54, s54, 15")
        if PH == "6": a("s_and_b32 s45, s21, 1")
        elif PH == "7": a("s_mov_b32 s45, s22")
        else: a("s_mov_b32 s45, 0")
        a("s_add_u32 s44, s54, s45")
    elif PH == "5":
        a("s_lshl_b32 s44, s20, 1")
        a("s_add_u32 s44, s44, s22")
    elif PH == "3":
        a("s_lshl_b32 s44, s22, 1")
        a("s_and_b32 s45, s20, 1")
        a("s_add_u32 s44, s44, s45")
        a("s_lshl_b32 s44, s44, 2")
        a("s_and_b32 s45, s21, 3")
        a("s_add_u32 s44, s44, s45")
    elif PH == "4":
        a("s_lshl_b32 s44, s22, 1")
        a("s_and_b32 s45, s20, 1")
        a("s_add_u32 s44, s44, s45")
        a("s_lshl_b32 s44, s44, 2")
    a("v_lshrrev_b32 v2, 3, v0")
    a("v_and_b32 v3, 7, v0")
    a("v_lshrrev_b32 v4, 4, v0")

    def rdA(f, ks, mt): return [f"ds_read_b128 {vr(A_(f,mt))}, v{VXA+ks} offset:{mt*2048}"]
    def rdB(f, nb):
        o = (nb//2)*4096
        return [f"ds_read_b64_tr_b16 {vr(B_(f,nb),2)}, v{VWA+nb%2} offset:{o}",
                f"ds_read_b64_tr_b16 {vr(B_(f,nb)+2,2)}, v{VWA+nb%2} offset:{o+512}"]
    def reads(f, ks):
        r = rdB(f, 0)
        for mt in range(4): r += rdA(f, ks, mt)
        for nb in range(1, 6): r += rdB(f, nb)
        return r
    def mm(f):
        r = []
        for nb in range(6):
            for mt in range(4):
                if nb < 4: r.append(mfma16(acc(mt, nb), B_(f, nb), A_(f, mt)))
                else:      r.append(mfma16(acc(mt, nb), A_(f, mt), B_(f, nb)))
        return r

    def common_setup():
        srd(a, 16, 98, WS_BYTES)
        a("v_and_b32 v2, 15, v0")
        a("v_lshrrev_b32 v3, 4, v0")
        a("v_bfe_u32 v4, v0, 1, 3")
        a("s_lshl_b32 s33, s31, 13")
        a("v_lshlrev_b32 v5, 7, v2")
        a("v_add_u32 v5, s33, v5")
        a("v_xor_b32 v6, v3, v4")
        a(f"v_lshl_add_u32 v{VXB}, v6, 4, v5")
        a(f"v_xor_b32 v{VXB+1}, 64, v{VXB}")
        a(f"v_mov_b32 v{VXA}, v{VXB}")
        a(f"v_mov_b32 v{VXA+1}, v{VXB+1}")
        a("v_bfe_u32 v4, v0, 2, 2")
        a("v_lshl_add_u32 v4, v3, 3, v4")
        a("v_lshlrev_b32 v4, 7, v4")
        a("v_and_b32 v6, 3, v0")
        a("v_lshl_add_u32 v4, v6, 3, v4")
        a("v_bfe_u32 v5, v0, 3, 2")
        a("s_lshl_b32 s33, s32, 1")
        a("v_xor_b32 v5, s33, v5")
        a(f"v_lshl_add_u32 v{VWB}, v5, 5, v4")
        a(f"v_xor_b32 v{VWB+1}, 32, v{VWB}")
        a(f"v_add_u32 v{VWA}, {WS}, v{VWB}")
        a(f"v_add_u32 v{VWA+1}, {WS}, v{VWB+1}")
        a("v_lshlrev_b32 v4, 4, v2")
        a(f"v_lshl_add_u32 v{VST}, v3, 9, v4")
        for i in range(96): a(f"v_mov_b32 v{ACC+i}, 0")
        a("s_lshl_b32 s40, s22, 22")
        a("s_lshl_b32 s41, s25, 1")
        a("s_add_u32 s41, s41, s32")
        a("s_lshl_b32 s41, s41, 17")
        a("s_add_u32 s40, s40, s41")
        a("s_lshl_b32 s41, s24, 14")
        a("s_add_u32 s40, s40, s41")
        a("s_lshl_b32 s41, s31, 12")
        a("s_add_u32 s40, s40, s41")
        a(f"s_add_u32 s41, s40, {KF}")
        a(f"s_add_u32 s42, s40, {VF}")
        a(f"s_mov_b32 s43, {QSCALE:#x}")
        a("s_lshl_b32 s95, s25, 3")
        a("s_add_u32 s95, s95, s24")
        a("s_lshl_b32 s94, s95, 2")
        a("s_add_u32 s94, s94, s31")
        a("s_add_u32 s94, s94, 1408")
        a("s_add_u32 s95, s95, 1280")
        a("s_cmp_eq_u32 s22, 0")
        a("s_cselect_b32 s95, s95, s94")
        a(f"s_lshl_b32 s95, s95, {FSH}")
        a(f"s_add_u32 s95, s95, {FL}")
        srd(a, 80, 96, 256)
        a("s_mov_b32 s33, 0")
        a(f"s_mov_b32 s34, {WS}")
        a("s_mov_b32 s35, 0")

    wupd = [f"s_add_u32 s34, s34, {WSL}", f"s_cmp_eq_u32 s34, {WS+5*WSL}", f"s_cselect_b32 s34, {WS}, s34",
            f"v_add_u32 v{VWA}, s34, v{VWB}", f"v_add_u32 v{VWA+1}, s34, v{VWB+1}", "s_add_u32 s35, s35, 1"]
    xupd = [f"s_add_u32 s33, s33, {XS}", f"s_cmp_eq_u32 s33, {3*XS}", "s_cselect_b32 s33, 0, s33",
            f"v_add_u32 v{VXA}, s33, v{VXB}", f"v_add_u32 v{VXA+1}, s33, v{VXB+1}"]

    def mix(dma, other):
        out = []; o = list(other)
        for m, l in dma:
            out.append(m)
            out.append(o.pop(0) if o else "s_nop 0")
            out.append(l)
        return out + o

    def event(tag):
        a.lab(tag)
        if OPT["cpf"] == "1":
            a("s_cmp_ge_u32 s51, 0x100")
            a(f"s_cbranch_scc1 {tag}c")
        a("s_add_u32 s48, s54, s51")
        a("s_and_b32 s48, s48, 15")
        a("s_mul_i32 s48, s48, s52")
        a("s_add_u32 s48, s48, s50")
        a(f"buffer_load_dword v{VPD}, v{VPW}, s[84:87], s48 offen{OPT['ntp']}")
        a(f"s_add_u32 s51, s51, {PST}")
        a("s_lshl_b32 s49, s51, 1")
        a("s_max_u32 s49, s49, s39")
        a("s_sub_u32 s49, s49, s39")
        a(f"s_cmp_lt_u32 s51, {OPT['pfe']}")
        a(f"s_cbranch_scc1 {tag}r")
        a("s_mov_b32 s49, 0x7fff")
        if OPT["cpf"] == "1":
            a("s_cmp_eq_u32 s31, 3")
            a(f"s_cselect_b32 s49, {OPT['cpb']}, s49")
            a("s_mov_b32 s51, 0x100")
        a(f"s_branch {tag}r")
        if OPT["cpf"] == "1":
            a.lab(tag + "c")
            a("s_mov_b32 s49, 0x7fff")
            codepf(a, "L1_epi", "L1_epi+8192", 31)
            codepf(a, "L1_epi+8192", "L1_epi+16384", 9)
            codepf(a, "L1_epi+16384", "L2_slow0", 8)
            a(f"s_branch {tag}r")

    a("s_cmp_lg_u32 s32, 0")
    a("s_cbranch_scc1 L1_W")
    for cls in ("X", "W"):
        P = "L1" + cls
        if cls == "X":
            a("v_lshlrev_b32 v5, 11, v2")
            a("v_xor_b32 v6, v3, v4")
            a("v_lshl_add_u32 v6, v6, 4, v5")
            a("v_xor_b32 v7, 64, v6")
            a(f"v_mov_b32 v{VD}, v6")
            a(f"v_add_u32 v{VD+1}, 16384, v7")
            a(f"v_add_u32 v{VD+2}, 32768, v6")
            a(f"v_add_u32 v{VD+3}, 49152, v7")
            a("s_lshl_b32 s27, s24, 19")
            a("s_lshl_b32 s28, s31, 16")
            a("s_add_u32 s45, s27, s28")
            a("s_lshl_b32 s46, s44, 7")
            a("s_add_u32 s27, s45, s46")
            a("s_add_u32 s28, s27, 0x40000")
            a("s_lshl_b32 s29, s31, 12")
            a(f"s_add_u32 s30, s29, {6*16384}")
            a("s_waitcnt lgkmcnt(0)")
            if OPT["s2e"] == "1": stamp(a, 2)
            srd(a, 8, 4, 4 << 20)
            def grp(par):
                so = "s27" if par == 0 else "s28"
                d = [(f"s_add_u32 m0, s29, {j*1024}", f"buffer_load_dwordx4 v{VD+j}, s[8:11], {so} offen{OPT['ntx']} lds") for j in range(4)]
                post = ["s_add_u32 s29, s29, 16384"]
                if par == 0: post += ["s_add_u32 s46, s46, 128", "s_and_b32 s46, s46, 0x7ff", "s_add_u32 s27, s45, s46"]
                if par == 1: post += ["s_add_u32 s28, s27, 0x40000", "s_cmp_eq_u32 s29, s30", f"s_cselect_b32 s38, {6*16384}, 0", "s_sub_u32 s29, s29, s38"]
                return d, post
            NG = 4
        else:
            a.lab("L1_W")
            if OPT["cpf"] == "1":
                a("s_cmp_lg_u32 s26, 7")
                a("s_cbranch_scc1 L1_nocp")
                codepf(a, N, "L1_epi", VPD)
                a.lab("L1_nocp")
            a("v_mul_u32_u24 v5, 6144, v2")
            a("v_and_b32 v6, 1, v4")
            a("v_lshlrev_b32 v6, 1, v6")
            a("s_and_b32 s33, s26, 1")
            a("s_lshl_b32 s33, s33, 2")
            a("v_xor_b32 v6, v3, v6")
            a("v_xor_b32 v6, s33, v6")
            a(f"v_lshl_add_u32 v{VD}, v6, 4, v5")
            a(f"v_add_u32 v{VD+1}, 2048, v{VD}")
            a(f"v_add_u32 v{VD+2}, 4096, v{VD}")
            a("s_lshl_b32 s27, s25, 7")
            a(f"s_mul_i32 s28, s31, {8*6144}")
            a("s_add_u32 s27, s27, s28")
            a(f"s_mul_i32 s28, s44, {64*6144}")
            a("s_add_u32 s27, s27, s28")
            a("s_lshl_b32 s29, s31, 10")
            a(f"s_add_u32 s29, s29, {WS}")
            a(f"s_add_u32 s30, s29, {5*WSL}")
            a("s_waitcnt lgkmcnt(0)")
            if OPT["s2e"] == "1": stamp(a, 2)
            srd(a, 12, 6, 6 << 20)
            def pfsetup():
                a("s_and_b32 s47, s21, 7")
                a("s_bfe_u32 s51, s21, 0x10003")
                a(f"s_add_u32 s51, s51, {OPT['pf0']}")
                a("v_lshlrev_b32 v5, 11, v0")
                a("v_lshrrev_b32 v6, 2, v0")
                a("v_mul_u32_u24 v6, 6144, v6")
                a("v_and_b32 v7, 3, v0")
                a("v_lshl_add_u32 v6, v7, 7, v6")
                a("v_mul_u32_u24 v7, 6144, v0")
                a("s_cmp_lt_u32 s47, 4")
                a("s_cselect_b64 s[56:57], -1, 0")
                a("s_cselect_b32 s84, s88, s90")
                a("s_cselect_b32 s85, s89, s91")
                a(f"s_mov_b32 s86, {6<<20:#x}")
                a(f"s_cselect_b32 s86, {4<<20:#x}, s86")
                a("s_mov_b32 s87, 0x00020000")
                a(f"s_mov_b32 s52, {64*6144}")
                a("s_cselect_b32 s52, 128, s52")
                a(f"v_cndmask_b32 v{VPW}, v6, v5, s[56:57]")
                a("s_and_b32 s48, s20, 1")
                a("s_lshl_b32 s48, s48, 2")
                a("s_add_u32 s48, s48, s47")
                a("s_lshl_b32 s48, s48, 2")
                a("s_add_u32 s48, s48, s31")
                a("s_lshl_b32 s48, s48, 17")
                a("s_lshr_b32 s50, s20, 1")
                a("s_lshl_b32 s50, s50, 9")
                a("s_and_b32 s55, s47, 3")
                a("s_lshl_b32 s55, s55, 11")
                a("s_add_u32 s50, s50, s55")
                a(f"s_mul_i32 s55, s31, {16*6144}")
                a("s_add_u32 s50, s50, s55")
                a("s_cmp_lt_u32 s47, 4")
                a("s_cselect_b32 s50, s48, s50")
                a("s_and_b32 s48, s53, 2")
                a("s_lshl_b32 s48, s48, 9")
                a("s_lshl_b32 s55, s31, 11")
                a("s_add_u32 s48, s48, s55")
                a("s_add_u32 s48, s48, 384")
                a("s_bitcmp1_b32 s53, 0")
                a("s_cselect_b32 s90, s90, s6")
                a("s_cselect_b32 s91, s91, s7")
                a("s_cmp_eq_u32 s47, 7")
                a("s_cselect_b64 s[56:57], -1, 0")
                a("s_cselect_b32 s50, s48, s50")
                a("s_cselect_b32 s84, s90, s84")
                a("s_cselect_b32 s85, s91, s85")
                a("s_cselect_b32 s55, 3, 0")
                a(f"s_cselect_b32 s39, {4+DLT+int(OPT['xl'])}, {4+DLT}")
                a(f"v_cndmask_b32 v{VPW}, v{VPW}, v7, s[56:57]")
                a("s_and_b32 s48, s55, s31")
                a("s_cmp_eq_u32 s48, 3")
                a("s_cselect_b32 s86, 0, s86")
                if OPT["pfm"] != "255":
                    a(f"s_lshr_b32 s48, {OPT['pfm']}, s47")
                    a("s_and_b32 s48, s48, 1")
                    a("s_cselect_b32 s86, s86, 0")
                a("s_lshl_b32 s49, s51, 1")
                a("s_max_u32 s49, s49, s39")
                a("s_sub_u32 s49, s49, s39")
                a("s_cmp_eq_u32 s22, 0")
                a("s_cselect_b32 s49, 0x7fff, s49")
            def grp(par):
                d = [(f"s_add_u32 m0, s29, {g*4096}", f"buffer_load_dwordx4 v{VD+g}, s[12:15], s27 offen{OPT['ntw']} lds") for g in range(3)]
                post = [f"s_add_u32 s27, s27, {32*6144}", f"s_add_u32 s29, s29, {WSL}",
                        "s_cmp_eq_u32 s29, s30", f"s_cselect_b32 s38, {5*WSL}, 0", "s_sub_u32 s29, s29, s38"]
                if par == 1: post += [f"s_cmp_ge_u32 s27, {6<<20:#x}", f"s_cselect_b32 s38, {6<<20:#x}, 0", "s_sub_u32 s27, s27, s38"]
                return d, post
            NG = 3
        def emit_grp(par, nt=False):
            d, post = grp(par)
            for t in mix(d, []) + post: a(t.replace(" offen lds", " offen nt lds") if nt else t)
        first = 2 if cls == "X" else 1
        for n in range(first): emit_grp(n & 1, int(OPT['nt0']) >= 1)
        common_setup()
        if cls == "W" and PF: pfsetup()
        if cls == "X":
            a("s_lshl_b32 s47, s20, 2")
            a("s_lshr_b32 s48, s21, 3")
            a("s_add_u32 s47, s47, s48")
            a("s_and_b32 s48, s21, 7")
            a("s_lshl_b32 s49, s48, 5")
            a("s_add_u32 s49, s49, s47")
            a(f"s_lshl_b32 s49, s49, {FSH}")
            a(f"s_add_u32 s49, s49, {FL}")
            a("s_lshl_b32 s50, s48, 7")
            a("s_add_u32 s50, s50, s47")
            a("s_add_u32 s50, s50, 256")
            a(f"s_lshl_b32 s50, s50, {FSH}")
            a(f"s_add_u32 s50, s50, {FL}")
            a("v_and_b32 v9, 3, v0")
            a(f"v_lshlrev_b32 v8, {5+FSH}, v9")
            a("v_add_u32 v8, s50, v8")
            if OPT["xb"] != "0":
                a("v_bfe_u32 v7, v0, 3, 1")
                a(f"v_lshl_add_u32 v8, v7, {1+FSH}, v8")
            a(f"s_lshl_b32 s48, s22, {FSH}")
            a("v_mul_u32_u24 v9, s48, v9")
            a("v_add_u32 v9, s95, v9")
            a("s_mov_b64 s[50:51], 0xf00")
            a("v_cndmask_b32 v8, v8, v9, s[50:51]")
            a("v_mov_b32 v9, s49")
            a("s_mov_b64 s[50:51], 1")
            a("v_cndmask_b32 v8, v8, v9, s[50:51]")
            a("v_mov_b32 v9, 0")
            if OPT["xb"] != "0":
                a("s_mov_b64 s[50:51], 0xfff1")
                a("s_cmp_eq_u32 s22, 0")
                a("s_cselect_b64 s[50:51], s[50:51], 0xf01")
                a("s_cmp_eq_u32 s31, 0")
                a("s_cselect_b64 exec, s[50:51], 0")
            else:
                a("s_cmp_eq_u32 s31, 0")
                a("s_cselect_b64 exec, 0xff1, 0")
            a("s_cbranch_execz L1_nofl")
            a("buffer_store_dword v9, v8, s[16:19], 0 offen sc1")
            a.lab("L1_nofl")
            a("s_mov_b64 exec, -1")
        for n in range(first, 4): emit_grp(n & 1, int(OPT['nt0']) >= 2)
        npf = 0
        if cls == "W" and PF:
            a("s_cmp_eq_u32 s49, 0")
            a(f"s_cbranch_scc1 {P}_e0")
            a.lab(f"{P}_e0r")
        a(f"s_waitcnt vmcnt({(4-first)*NG + npf})")
        a("s_barrier")
        if cls == "X":
            a("v_mov_b32 v8, 1")
            a("s_lshr_b32 s47, s2, 5")
            a("s_lshl_b32 s47, s47, 1")
            a(f"s_add_u32 s47, s47, {int(OPT['ntb'])+2}")
            a("s_cmp_eq_u32 s31, 0")
            a("s_cselect_b32 s47, s47, 0x7fff")
        d, post = grp(0)
        for t in reads(0, 0) + mix(d, []) + post + wupd: a(t.replace(" offen lds", " offen nt lds") if int(OPT["nt0"]) >= 3 else t)
        if cls == "W": a(f"s_waitcnt vmcnt({3*NG + npf})")
        a("s_waitcnt lgkmcnt(0)")
        a("s_barrier")
        if cls == "W" and OPT["wp"] == "1": a("s_setprio 1")
        NTB = int(OPT["ntb"])
        vers = (["n"] if NTB else []) + [""]
        a(f"s_branch {P}{vers[0]}_odd")
        nev = 1
        for V in vers:
            a.raw(".p2align 6")
            a.lab(f"{P}{V}_loop")
            for par in range(2):
                if par == 1: a.lab(f"{P}{V}_odd")
                d, post = grp(par)
                if V == "n": d = [(m_, l_.replace(" offen lds", " offen nt lds")) for m_, l_ in d]
                rd = reads(par, par)
                tail = list(post) + wupd
                if par == 1: tail += xupd
                late = [t for t in tail if t not in post]
                late = [t for t in late if not t.startswith("v_")] + [t for t in late if t.startswith("v_")]
                for t in sched(mm(1-par), rd, d, list(post), late): a(t)
                if cls == "W" and PF:
                    a("s_cmp_ge_u32 s35, s49")
                    a(f"s_cbranch_scc1 {P}_e{nev}")
                    a.lab(f"{P}_e{nev}r"); nev += 1
                if par == 1 and cls == "X" and V == "":
                    a("s_cmp_eq_u32 s35, s47")
                    a("s_cbranch_scc1 L1_at")
                    a.lab("L1_atr")
                if par == 1: a(f"s_cmp_lt_u32 s35, {NTB if V == 'n' else 28}")
                if cls == "W": a(f"s_waitcnt vmcnt({3*NG}) lgkmcnt(0)")
                elif par == 1: a(f"s_waitcnt vmcnt({2*NG}) lgkmcnt(0)")
                else: a("s_waitcnt lgkmcnt(0)")
                a("s_barrier")
            a(f"s_cbranch_scc1 {P}{V}_loop")
            if V == "n": a(f"s_branch {P}_loop")
        a("s_branch L1_epi")
        if cls == "W" and PF:
            for k in range(nev): event(f"{P}_e{k}")
        if cls == "X":
            a.lab("L1_at")
            a("s_mov_b64 exec, 1")
            a("buffer_atomic_add v8, v9, s[80:83], 0 offen sc1")
            a("s_mov_b64 exec, -1")
            if OPT["tl2"] == "1":
                a("v_lshlrev_b32 v30, 21, v0")
                a("buffer_load_dword v30, v30, s[16:19], 0 offen sc1")
            if OPT["tl2"] == "2":
                a("v_min_u32 v30, 2, v0")
                a("v_lshlrev_b32 v30, 23, v30")
                a("buffer_load_dword v30, v30, s[16:19], s40 offen sc1")
            a("s_branch L1_atr")
    a.lab("L1_epi")
    a("v_mov_b32 v9, 0")
    a("s_mov_b32 s44, s43")
    a("s_mov_b32 s45, s43")
    a(f"v_add_u32 v{VWA}, {WS}, v{VWB}")
    a(f"v_add_u32 v{VWA+1}, {WS}, v{VWB+1}")
    a("s_and_b32 s33, s22, s32")
    a(f"s_cselect_b32 s18, 0, s18")
    XF = lambda sl, mt: (32 if sl < 2 else 72 - 32) + 16*sl + 4*mt
    WBUF = [64, 240, 248, 104]
    def tx(sl): return [f"ds_read_b128 {vr(XF(sl, mt))}, v{(VXA if sl < 2 else VXB) + (sl & 1)} offset:{mt*2048}" for mt in range(4)]
    def tw(gi):
        seg, sl = G[gi]; b = WBUF[gi % 4]; o = ((28 + sl) % 5)*WSL + seg*4096
        return [f"ds_read_b64_tr_b16 {vr(b+4*u+2*i,2)}, v{VWA+u} offset:{o+512*i}" for u in range(2) for i in range(2)]
    def tm(gi):
        seg, sl = G[gi]; b = WBUF[gi % 4]; r = []
        for u in range(2):
            for mt in range(4):
                if seg < 2: r.append(mfma16(acc(mt, 2*seg+u), b+4*u, XF(sl, mt)))
                else:       r.append(mfma16(acc(mt, 2*seg+u), XF(sl, mt), b+4*u))
        return r
    G = [(0, 0), (1, 0), (0, 1), (0, 2), (0, 3), (1, 1), (1, 2), (1, 3), (2, 0), (2, 1), (2, 2), (2, 3)]
    jobs = []
    for T in range(2):
        for sg in range(2): jobs.append((1, acc(2*T+sg, 2), acc(2*T+sg, 3), T*2048 + sg*256))
    for T in range(2):
        for sg in range(2): jobs.append((0, acc(2*T+sg, 0), acc(2*T+sg, 1), T*2048 + sg*256))
    for T in range(2):
        for u in range(2):  jobs.append((2, acc(2*T, 4+u), acc(2*T+1, 4+u), T*2048 + u*256))
    def conv(n):
        seg, b0, b1, off = jobs[n]; t0 = PK1 + 4*n; r = []
        if seg == 0: r += [f"v_pk_mul_f32 v[{b+q}:{b+q+1}], v[{b+q}:{b+q+1}], s[44:45]" for b in (b0, b1) for q in (0, 2)]
        r += [f"v_cvt_pk_bf16_f32 v{t0}, v{b0}, v{b0+1}", f"v_cvt_pk_bf16_f32 v{t0+1}, v{b0+2}, v{b0+3}",
              f"v_cvt_pk_bf16_f32 v{t0+2}, v{b1}, v{b1+1}", f"v_cvt_pk_bf16_f32 v{t0+3}, v{b1+2}, v{b1+3}",
              f"buffer_store_dwordx4 {vr(t0)}, v{VST}, s[16:19], s{40+seg} offen offset:{off} sc1"]
        return r
    lds = []
    def emit(M, rd, tags, other, skip=0):
        o = list(other)
        for i, m_ in enumerate(M):
            a(m_)
            n_ = 2
            if i < len(rd):
                a(rd[i]); lds.append(tags[i]); n_ = 1
            if i >= skip:
                for _ in range(n_):
                    if o and not (i < len(rd) and o[0].startswith("buffer")): a(o.pop(0))
        return o
    def need(tags):
        last = max(i for i, x in enumerate(lds) if x in tags)
        a(f"s_waitcnt lgkmcnt({min(15, len(lds) - 1 - last)})")
    emit(mm(1), tx(0) + tw(0) + tw(1) + tx(1), ["x0"]*4 + ["w0"]*4 + ["w1"]*4 + ["x1"]*4, [])
    a("s_waitcnt vmcnt(6)")
    a("s_barrier")
    need(["x0", "w0"])
    emit(tm(0), tw(2), ["w2"]*4, [])
    a("s_waitcnt vmcnt(0)")
    a("s_barrier")
    a("s_cmp_lg_u32 s26, 5")
    a("s_cbranch_scc1 L1_noc")
    a("buffer_load_dword v8, v9, s[80:83], 0 offen sc1")
    a.lab("L1_noc")
    need(["w1"])
    emit(tm(1), tx(2) + tw(3), ["x2"]*4 + ["w3"]*4, [])
    need(["w2", "x1"])
    emit(tm(2), tx(3) + tw(4), ["x3"]*4 + ["w4"]*4, [])
    pend = []
    for gi in range(3, 12):
        need([f"w{gi}", f"x{G[gi][1]}"])
        had = len(pend) >= 6
        if gi == 5: pend += [t for n in range(4, 8) for t in conv(n)]
        if gi == 8: pend += [t for n in range(4) for t in conv(n)]
        rd = tw(gi + 2) if gi + 2 < 12 else []
        pend = emit(tm(gi), rd, [f"w{gi+2}"]*4, pend, skip=(3 if gi == 5 else (3 if gi == 8 and not had else 0)))
    if OPT["pst"] == "0": stamp(a, 2)
    for t in pend: a(t)
    a("s_nop 1")
    a("s_cmp_lg_u32 s22, 0")
    a("s_cselect_b32 s18, 0, s18")
    for n in (8, 10, 9, 11):
        for t in conv(n): a(t)
    a.lab("L1_done")
    a("s_setprio 0")
    a(f"v_mov_b32 v200, v{VST}")
    a("s_mov_b32 s92, s40")
    a("s_mov_b32 s93, s41")
    a("s_mov_b32 s94, s42")
    a("s_mov_b32 s24, s26")
    return [(seg, off) for seg, _, _, off in jobs]

def kperm(rho):
    return ((rho >> 2) & 1) * 16 + (rho >> 3) * 4 + (rho & 3)

SLOTS = [131072, 0, 65536, 32768, 98304]

def k2(a, jobs):
    N = NAME + "_kernel"
    VL16, VKA, VVA, VIDX, VM, VT, VKL = 1, 2, 3, 4, 5, 6, 7
    ONES = 8; Q = [12, 20]; NEG = [28, 44]; O = [60, 76]; L = [92, 96]; KB = [100, 108]; VB = [116, 124]; S = [132, 148, 164, 180]
    NV = 256
    PF = OPT["pf3"] == "1"
    def sm32(d, av, b): return f"v_smfmac_f32_32x32x32_bf16 {vr(d,16)}, {vr(av)}, {vr(b,8)}, v{VIDX}"
    def sm16(l, b): return f"v_smfmac_f32_16x16x64_bf16 {vr(l)}, {vr(ONES)}, {vr(b,8)}, v{VIDX}"
    def ld(d, soff, off=0, v=VL16): a(f"buffer_load_dwordx4 {vr(d)}, v{v}, s[8:11], {soff} offen offset:{off} sc1")
    def xhalf_max():
        a(f"v_max_f32 v{VM}, v{VM}, v{VT}")
        a("s_nop 0")
        a(f"v_mov_b32 v{VT}, v{VM}")
        a("s_nop 1")
        a(f"v_permlane32_swap_b32 v{VM}, v{VT}")
        a("s_nop 1")
        a(f"v_max_f32 v{VM}, v{VM}, v{VT}")
    def maxof(vals):
        a(f"v_max3_f32 v{VM}, v{vals[0]}, v{vals[1]}, v{vals[2]}")
        a(f"v_max3_f32 v{VT}, v{vals[3]}, v{vals[4]}, v{vals[5]}")
        for i in range(6, len(vals) - 2, 4):
            a(f"v_max3_f32 v{VM}, v{VM}, v{vals[i]}, v{vals[i+1]}")
            a(f"v_max3_f32 v{VT}, v{VT}, v{vals[i+2]}, v{vals[i+3]}")
        a(f"v_max3_f32 v{VM}, v{VM}, v{vals[-2]}, v{vals[-1]}")
        xhalf_max()
    def finish(soff, off, T, o, l):
        a(f"v_rcp_f32 v{VT}, v{l}")
        a("s_nop 0")
        for i in range(16): a(f"v_mul_f32 v{o+i}, v{o+i}, v{VT}")
        for i in range(8): a(f"v_cvt_pk_bf16_f32 v{T+i}, v{o+2*i}, v{o+2*i+1}")
        a(f"buffer_store_dwordx4 {vr(T)}, v{VL16}, s[8:11], {soff} offen{OPT['st2']}")
        a(f"buffer_store_dwordx4 {vr(T+4)}, v{VL16}, s[8:11], {soff} offen offset:1024{OPT['st2']}")
    def consts():
        a(f"v_mov_b32 v{VIDX}, 0xdddddddd")
        a("v_bfe_u32 v5, v0, 2, 1")
        a("v_cmp_eq_u32 vcc, 0, v5")
        a("v_mov_b32 v6, 0x3f803f80")
        a("s_nop 0")
        a(f"v_cndmask_b32 v{ONES}, 0, v6, vcc")
        a(f"v_cndmask_b32 v{ONES+1}, 0, v6, vcc")
        a(f"v_cndmask_b32 v{ONES+2}, v6, 0, vcc")
        a(f"v_cndmask_b32 v{ONES+3}, v6, 0, vcc")
    a("s_lshr_b32 s60, s21, 4")
    a("s_mul_i32 s22, s60, 24")
    a("s_add_u32 s22, s22, 16")
    a("s_load_dwordx2 s[6:7], s[0:1], s22")
    a("s_load_dwordx2 s[58:59], s[0:1], 48")
    a("s_lshl_b32 s22, s20, 2")
    a("s_lshr_b32 s23, s21, 3")
    a("s_add_u32 s22, s22, s23")
    a("s_and_b32 s23, s21, 7")
    a(f"v_lshlrev_b32 v{VL16}, 4, v0")
    a("s_and_b32 s28, s24, 3")
    a("s_lshl_b32 s25, s23, 3")
    a("s_lshl_b32 s29, s28, 1")
    a("s_add_u32 s25, s25, s29")
    a("s_lshl_b32 s26, s22, 17")
    a("s_lshl_b32 s27, s25, 11")
    a("s_add_u32 s27, s27, s26")
    a("v_bfe_u32 v5, v0, 2, 1")
    a("v_and_b32 v6, 0x23, v0")
    a("v_lshl_or_b32 v6, v5, 4, v6")
    a("v_bfe_u32 v5, v0, 3, 2")
    a("v_lshl_or_b32 v6, v5, 2, v6")
    a(f"v_lshlrev_b32 v{VKL}, 4, v6")
    a(f"s_add_u32 s33, s26, {KF}")
    a("s_lshl_b32 s37, s25, 16")
    a("s_lshl_b32 s38, s22, 11")
    a("s_add_u32 s37, s37, s38")
    a(f"s_add_u32 s37, s37, {OF}")
    a("s_lshr_b32 s61, s20, 1")
    a("s_lshl_b32 s61, s61, 2")
    a("s_and_b32 s62, s21, 3")
    a("s_add_u32 s61, s61, s62")
    a("s_and_b32 s62, s20, 1")
    a("s_lshl_b32 s62, s62, 2")
    a("s_bfe_u32 s63, s21, 0x20002")
    a("s_add_u32 s62, s62, s63")
    a("s_lshl_b32 s63, s23, 5")
    a("s_add_u32 s63, s63, s22")
    a(f"s_lshl_b32 s63, s63, {FSH}")
    a(f"s_add_u32 s63, s63, {FL}")
    a("s_cmp_ge_u32 s24, 4")
    a("s_cbranch_scc1 L2_help")
    srd(a, 8, 98, WS_BYTES)
    consts()
    a("s_add_u32 s38, s37, 0x10000")
    a(f"v_mov_b32 v{VKA}, v{VKL}")
    a(f"v_add_u32 v{VVA}, 0x10000, v{VL16}")
    for i in range(40): a(f"v_mov_b32 v{O[0]+i}, 0")
    for i in range(16): a(f"v_mov_b32 v{S[3]+i}, 0")
    for i in range(8): a(f"v_mov_b32 v{VB[1]+i}, 0")
    a("s_mov_b32 s39, 0")
    a("s_mov_b32 s40, 0")
    a("s_waitcnt lgkmcnt(0)")
    if OPT["df"] == "1":
        a("s_cmp_lg_u32 s60, 0")
        a("s_cbranch_scc1 L2_x1")
    a("s_waitcnt vmcnt(0)")
    a.lab("L2_x1")
    a("s_barrier")
    if OPT["pst"] == "0": stamp(a, 3)
    a("s_barrier")
    if OPT["pst"] == "0": stamp(a, 4)
    if OPT["pst"] == "3": stamp(a, 5)
    ld(Q[0], "s27"); ld(KB[0], "s33", 0, VKL); ld(Q[0]+4, "s27", 1024); ld(KB[0]+4, "s33", 1024, VKL)
    ld(Q[1], "s27", 2048); ld(Q[1]+4, "s27", 3072)
    ld(KB[1], "s33", 2048, VKL); ld(KB[1]+4, "s33", 3072, VKL)
    a("s_waitcnt vmcnt(4)")
    a(mfma(S[0], KB[0], Q[0], "0")); a(mfma(S[0], KB[0]+4, Q[0]+4))
    a("s_waitcnt vmcnt(2)")
    if OPT["pst"] == "3": stamp(a, 2)
    a(mfma(S[1], KB[0], Q[1], "0")); a(mfma(S[1], KB[0]+4, Q[1]+4))
    a("s_nop 8")
    maxof([S[0]+r for r in range(16)])
    for i in range(16): a(f"v_sub_f32 v{NEG[0]+i}, 0, v{VM}")
    for i in range(16): a(f"v_sub_f32 v{S[0]+i}, v{S[0]+i}, v{VM}")
    maxof([S[1]+r for r in range(16)])
    for i in range(16): a(f"v_sub_f32 v{NEG[1]+i}, 0, v{VM}")
    a("s_waitcnt vmcnt(0)")
    if OPT["pst"] == "3": stamp(a, 3)
    a("s_barrier")
    if OPT["pst"] == "3": stamp(a, 4)
    if OPT["pst"] == "0": stamp(a, 5)
    if OPT["pst"] == "2":
        stamp(a, 2); a("s_memtime s[72:73]")
    if OPT["tlb"] == "1": a(f"buffer_load_dword v196, v{VL16}, s[8:11], s37 offen")
    if OPT["cp"] != "0": a(f"s_setprio {OPT['cp']}")
    a("s_cmp_eq_u32 s60, 0")
    a("s_cbranch_scc1 L2_it3")
    for n in range(8, 12):
        a(f"buffer_store_dwordx4 {vr(PK1+4*n)}, v200, s[8:11], s94 offen offset:{jobs[n][1]} sc1")
    a("s_branch L2_it3")

    def item(p, qk=True, rd=True, pre=None, post=None):
        n = (p - 3) % 16
        i = n >> 1; qt = n & 1
        Sn, Sc, Sp = S[(n+1) % 4], S[n % 4], S[(n-1) % 4]
        qn = (n+1) & 1; kbu = KB[((n+1) >> 1) % 2]
        qp = (n-1) & 1; vbu = VB[((n-1) >> 1) % 2]
        if qt == 1:
            kt = (i + 2) % 8
            r = [f"ds_read_b128 {vr(KB[i % 2])}, v{VKA} offset:{kt*2048}", f"ds_read_b128 {vr(KB[i % 2]+4)}, v{VKA} offset:{kt*2048+1024}"]
        else:
            r = [f"ds_read_b128 {vr(VB[i % 2])}, v{VVA} offset:{i*2048}", f"ds_read_b128 {vr(VB[i % 2]+4)}, v{VVA} offset:{i*2048+1024}"]
        if not rd or "r" in OPT["k2x"]: r = []
        ex = [f"v_exp_f32 v{Sc+k}, v{Sc+k}" for k in range(16)]
        post = list(post or [])
        seq = []
        if qk: seq.append(mfma(Sn, kbu, Q[qn], NEG[qn]))
        seq += post[0:1] + ex[0:3]
        if qk: seq.append(mfma(Sn, kbu+4, Q[qn]+4))
        seq += ["s_waitcnt lgkmcnt(0)"] + list(pre or []) + ex[3:6]
        seq.append(sm32(O[qp], vbu, Sp))
        seq += r[:1] + ex[6:9]
        seq.append(sm16(L[qp], Sp))
        seq += post[1:3] + ex[9:10]
        seq.append(sm32(O[qp], vbu+4, Sp+8))
        seq += r[1:] + ex[10:13]
        seq.append(sm16(L[qp], Sp+8))
        seq += post[3:] + ex[13:16]
        for t in seq: a(t)

    a.raw(".p2align 6")
    a.lab("L2_loop")
    item(0, pre=["s_waitcnt vmcnt(0)", "s_barrier", f"v_add_u32 v{VKA}, s40, v{VKL}"])
    item(1); item(2)
    a(f"v_add_u32 v{VVA}, s41, v{VL16}")
    a.lab("L2_it3")
    for p in range(3, 15): item(p)
    item(15, post=["s_add_u32 s40, s40, 16384", "s_and_b32 s40, s40, 0xffff", "s_add_u32 s41, s40, 0x10000", "s_add_u32 s39, s39, 1", "s_cmp_lt_u32 s39, 8"])
    if OPT["trip"] != "0":
        a("s_cselect_b32 s57, 1, 0")
        for n, tr in zip((2, 3, 4), OPT["trip"].split(",")):
            a(f"s_cmp_lg_u32 s39, {int(tr)+1}")
            a(f"s_cbranch_scc1 L2_t{n}")
            stamp(a, n)
            a.lab(f"L2_t{n}")
        a("s_cmp_lg_u32 s57, 0")
    a("s_cbranch_scc1 L2_loop")
    item(0, rd=False)
    item(1)
    item(2, qk=False, rd=False)
    a("s_nop 1")
    Sp = S[3]
    a(sm32(O[1], VB[1], Sp)); a(sm16(L[1], Sp)); a(sm32(O[1], VB[1]+4, Sp+8)); a(sm16(L[1], Sp+8))
    a("s_nop 4")
    if OPT["pst"] == "1": stamp(a, 5)
    if OPT["pst"] == "2":
        stamp(a, 3); a("s_memtime s[74:75]")
    for qt in range(2):
        a(f"v_mul_f32 v{VM}, 0, v{O[qt]}")
        for i in range(1, 16): a(f"v_fma_f32 v{VM}, v{O[qt]+i}, 0, v{VM}")
        a(f"v_add_f32 v{VM}, v{VM}, v{L[qt]}")
        a(f"v_mov_b32 v{VT}, {f2u(2.0**64):#x}")
        a(f"v_cmp_nlt_f32 vcc, v{VM}, v{VT}")
        a("s_nop 4")
        a(f"s_cbranch_vccnz L2_slow{qt}")
        a.lab(f"L2_fin{qt}")
        finish("s37" if qt == 0 else "s38", 0, S[1+qt], O[qt], L[qt])
    VOB, VOA, VWB, VWA, VST = 10, 11, 12, 16, 20
    F = [24, 56]; ACC = 88
    def Of(f, mt): return F[f] + 4*mt
    def Wf(f, nb): return F[f] + 16 + 4*nb
    def acc(mt, nb): return ACC + (mt*4 + nb)*4
    a("s_and_b32 s31, s24, 1")
    a("s_lshr_b32 s32, s24, 1")
    a("v_and_b32 v2, 15, v0")
    a("v_lshrrev_b32 v3, 4, v0")
    a("s_lshl_b32 s33, s31, 13")
    a("v_lshlrev_b32 v4, 4, v2")
    a("v_lshl_add_u32 v4, v3, 9, v4")
    a(f"v_add_u32 v{VOB}, s33, v4")
    a(f"v_add_u32 v{VOA}, {SLOTS[0]}, v{VOB}")
    a("v_bfe_u32 v4, v0, 2, 3")
    a("v_lshrrev_b32 v5, 5, v0")
    a("v_lshl_add_u32 v5, v5, 4, v4")
    a("v_lshlrev_b32 v5, 8, v5")
    a("v_and_b32 v6, 3, v0")
    a("v_lshl_add_u32 v5, v6, 3, v5")
    a("v_add_u32 v5, 16384, v5")
    a("s_lshl_b32 s33, s32, 2")
    a("v_xor_b32 v4, s33, v4")
    a(f"v_lshl_add_u32 v{VWB}, v4, 5, v5")
    for nb in range(1, 4): a(f"v_xor_b32 v{VWB+nb}, {nb*32}, v{VWB}")
    for nb in range(4): a(f"v_add_u32 v{VWA+nb}, {SLOTS[0]}, v{VWB+nb}")
    for i in range(64): a(f"v_mov_b32 v{ACC+i}, 0")
    for i in range(5): a(f"s_mov_b32 s{44+i}, {SLOTS[(i+1) % 5]}")
    a("s_mov_b32 s35, 0")
    srd(a, 16, 58, 8 << 20)
    a("s_lshl_b32 s40, s61, 19")
    a("s_lshl_b32 s41, s31, 18")
    a("s_add_u32 s40, s40, s41")
    a("s_lshl_b32 s41, s60, 11")
    a("s_add_u32 s40, s40, s41")
    a("s_lshl_b32 s41, s62, 8")
    a("s_add_u32 s40, s40, s41")
    a("s_lshl_b32 s41, s32, 7")
    a("s_add_u32 s40, s40, s41")
    def rdO(f, ks, mt): return [f"ds_read_b128 {vr(Of(f,mt))}, v{VOA} offset:{(mt>>1)*4096 + ks*2048 + (mt&1)*256}"]
    def rdW(f, ks, nb): return [f"ds_read_b64_tr_b16 {vr(Wf(f,nb),2)}, v{VWA+nb} offset:{ks*8192}",
                                f"ds_read_b64_tr_b16 {vr(Wf(f,nb)+2,2)}, v{VWA+nb} offset:{ks*8192+2048}"]
    def reads(f, ks):
        return [rdO(f, ks, 0)] + [rdW(f, ks, nb) for nb in range(4)] + [rdO(f, ks, mt) for mt in (1, 2, 3)]
    def mm(f):
        return [mfma16(acc(mt, nb), Wf(f, nb), Of(f, mt)) for mt in range(4) for nb in range(4)]
    a("s_waitcnt vmcnt(0)")
    if OPT["pst"] == "1": stamp(a, 2)
    a("s_barrier")
    if OPT["opf"] != "0":
        a("s_lshl_b32 s36, s60, 22")
        a("s_lshl_b32 s39, s61, 18")
        a("s_add_u32 s36, s36, s39")
        a("s_lshl_b32 s39, s24, 16")
        a("s_add_u32 s36, s36, s39")
        a("s_and_b32 s39, s62, 3")
        a("s_lshl_b32 s39, s39, 14")
        a("s_add_u32 s36, s36, s39")
        a(f"s_add_u32 s36, s36, {OF}")
        a("s_add_u32 s39, s36, 8192")
        a("v_lshlrev_b32 v21, 7, v0")
    a("s_barrier")
    if OPT["opf"] != "0":
        if OPT["opf"] == "2": a("s_sleep 3")
        a("buffer_load_dword v22, v21, s[8:11], s36 offen sc1")
        a("buffer_load_dword v23, v21, s[8:11], s39 offen sc1")
    a("s_barrier")
    if OPT["pst"] == "1": stamp(a, 3)
    flat = lambda g: [t for x in g for t in x]
    def block(f, rd, extra):
        M = mm(f)
        a("s_waitcnt lgkmcnt(3)")
        for i, m_ in enumerate(M):
            if i in (4, 8, 12): a(f"s_waitcnt lgkmcnt({min(15, (2 - (i//4 - 1)) + min(i, len(rd)))})")
            a(m_)
            if i < len(rd): a(rd[i])
            for t in extra.get(i, []): a(t)
    for t in flat(reads(0, 0)): a(t)
    a("s_branch L3_mid")
    a.raw(".p2align 6")
    a.lab("L3_loop")
    block(1, flat(reads(0, 0)), {})
    a.lab("L3_mid")
    block(0, flat(reads(1, 1)), {0: (["s_barrier"] if OPT["la"] == "4" else []) + ["s_mov_b32 s33, s44"], 15: (["s_waitcnt lgkmcnt(0)", "s_barrier"] if OPT["la"] == "5" else []), 1: ["s_mov_b32 s44, s45", "s_mov_b32 s45, s46"],
                                 2: ["s_mov_b32 s46, s47", "s_mov_b32 s47, s48"], 3: ["s_mov_b32 s48, s33"],
                                 5: ["s_add_u32 s35, s35, 1", "s_cmp_lt_u32 s35, 16"],
                                 9: [f"v_add_u32 v{VWA}, s33, v{VWB}"], 10: [f"v_add_u32 v{VWA+1}, s33, v{VWB+1}"],
                                 11: [f"v_add_u32 v{VWA+2}, s33, v{VWB+2}"], 12: [f"v_add_u32 v{VWA+3}, s33, v{VWB+3}"], 13: [f"v_add_u32 v{VOA}, s33, v{VOB}"]})
    a("s_cbranch_scc1 L3_loop")
    block(1, [], {})
    if OPT["pst"] == "1": stamp(a, 4)
    a("s_mul_i32 s41, s24, 9216")
    a("v_mul_u32_u24 v4, 144, v2")
    a("v_lshl_add_u32 v4, v3, 3, v4")
    a("v_add_u32 v4, s41, v4")
    a("v_lshrrev_b32 v5, 3, v0")
    a("v_mul_u32_u24 v6, 144, v5")
    a("v_and_b32 v7, 7, v0")
    a("v_lshl_add_u32 v6, v7, 4, v6")
    a("v_add_u32 v6, s41, v6")
    a("v_lshlrev_b32 v5, 12, v5")
    a(f"v_lshl_add_u32 v{VST}, v7, 4, v5")
    for mt in range(4):
        for nb in range(4):
            b = acc(mt, nb); t0 = F[0] + 2*(mt*4 + nb)
            a(f"v_cvt_pk_bf16_f32 v{t0}, v{b}, v{b+1}")
            a(f"v_cvt_pk_bf16_f32 v{t0+1}, v{b+2}, v{b+3}")
            a(f"ds_write_b64 v4, {vr(t0,2)} offset:{mt*16*144 + nb*32}")
        a(f"ds_read_b128 {vr(F[1]+8*mt)}, v6 offset:{mt*16*144}")
        a(f"ds_read_b128 {vr(F[1]+8*mt+4)}, v6 offset:{mt*16*144 + 8*144}")
        if mt >= 1:
            a("s_waitcnt lgkmcnt(6)")
            for h in range(2):
                a(f"buffer_store_dwordx4 {vr(F[1]+8*(mt-1)+4*h)}, v{VST}, s[16:19], s40 offen{OPT['st3']}")
                a(f"s_add_u32 s40, s40, {8*4096}")
    a("s_waitcnt lgkmcnt(0)")
    for h in range(2):
        a(f"buffer_store_dwordx4 {vr(F[1]+24+4*h)}, v{VST}, s[16:19], s40 offen{OPT['st3']}")
        a(f"s_add_u32 s40, s40, {8*4096}")
    dump(a, 0, "s24")
    a.lab("L2_end")
    a("s_endpgm")

    a.lab("L2_help")
    issued = []
    MC, MP, MP0, SC, SP, OB, LB = 12, 28, 44, 60, 76, [92, 112], [108, 128]
    QB = [132, 140]; KX = [148, 156, 164]; VX = [172, 180, 188]; VPF = 2
    a("s_lshl_b32 s34, s28, 12")
    a("s_add_u32 s35, s33, s34")
    a(f"s_add_u32 s36, s35, {VF-KF}")
    srd(a, 8, 98, WS_BYTES)
    def dma_stage(st):
        for base, so in ((0, "s35"), (65536, "s36")):
            a(f"s_add_u32 m0, s34, {base + (st % 4)*16384}")
            a("s_nop 0")
            for j in range(4):
                a(f"buffer_load_dwordx4 v{VL16}, s[8:11], {so} offen offset:{j*1024} sc1 lds")
            a(f"s_add_u32 {so}, {so}, 16384")
        issued.extend([f"s{st}"]*8)
    def late1():
        consts()
        a(f"s_add_u32 s28, s27, {4<<20}")
        a(f"s_add_u32 s29, s28, {KF}")
        a(f"s_add_u32 s30, s28, {VF}")
        a("s_cmp_eq_u32 s25, 0")
        a("s_cselect_b32 s32, 0, 2048")
        a("s_cselect_b64 s[44:45], 0, -1")
        a("s_sub_u32 s31, s29, s32")
        a("s_sub_u32 s32, s30, s32")
        a(f"s_add_u32 s37, s37, {4<<20}")
        a("s_add_u32 s38, s37, 0x10000")
        if PF:
            a("v_lshrrev_b32 v5, 3, v0")
            a("v_lshlrev_b32 v5, 11, v5")
            a("v_and_b32 v6, 7, v0")
            a(f"v_lshl_add_u32 v{VPF}, v6, 7, v5")
            a("v_cmp_gt_u32 vcc, 32, v0")
            a("v_mov_b32 v5, 0x7fffff00")
            a("s_and_b32 s47, s21, 15")
            a("s_lshl_b32 s47, s47, 17")
            a(f"v_cndmask_b32 v{VPF}, v5, v{VPF}, vcc")
            a("s_lshl_b32 s46, s34, 3")
            a("s_add_u32 s47, s47, s46")
            a("s_and_b32 s46, s20, 1")
            a("s_lshl_b32 s46, s46, 10")
            a("s_add_u32 s47, s47, s46")
    def pf():
        if PF:
            a(f"buffer_load_dword v{VPF+1}, v{VPF}, s[16:19], s47 offen{OPT['nto']}")
            a("s_add_u32 s47, s47, 8192")
    VWD0, VWD1, VFL, VFD = 196, 197, 198, 199
    def dma_w(st):
        sl = SLOTS[st % 5] + 16384
        a(f"s_add_u32 m0, s34, {sl}")
        a("s_nop 0")
        a(f"buffer_load_dwordx4 v{VWD0}, s[16:19], s40 offen lds")
        a("s_add_u32 m0, m0, 1024")
        a("s_nop 0")
        a(f"buffer_load_dwordx4 v{VWD1}, s[16:19], s40 offen lds")
        a("s_add_u32 m0, m0, 1024")
        a(f"s_add_u32 s40, s40, {64*2048}")
        a(f"buffer_load_dwordx4 v{VWD0}, s[16:19], s41 offen lds")
        a("s_add_u32 m0, m0, 1024")
        a("s_nop 0")
        a(f"buffer_load_dwordx4 v{VWD1}, s[16:19], s41 offen lds")
        a(f"s_add_u32 s41, s41, {64*2048}")
    def dma_o(st):
        a(f"s_add_u32 m0, s34, {SLOTS[st % 5]}")
        a("s_nop 0")
        for j in range(4):
            a(f"buffer_load_dwordx4 v{VL16}, s[8:11], s39 offen offset:{j*1024}{OPT['osc']} lds")
        a("s_add_u32 s39, s39, 4096")
    def poll(tag, voff, soff, srd_="s[8:11]", val=1, cmp_="ne"):
        a("s_mov_b32 s43, 0")
        a.lab(tag)
        a(f"buffer_load_dword v{VFD}, v{voff}, {srd_}, {soff} offen sc1")
        a("s_add_u32 s43, s43, 1")
        a("s_waitcnt vmcnt(0)")
        a(f"v_cmp_{cmp_}_u32 vcc, {val}, v{VFD}")
        a("s_cmp_gt_u32 s43, 0x200000")
        a(f"s_cbranch_scc1 {tag}x")
        a("s_nop 2")
        a(f"s_cbranch_vccz {tag}x")
        a(f"s_sleep {OPT['slp']}")
        a(f"s_branch {tag}")
        a.lab(tag + "x")
    def lanemask(r, prev):
        m = 0
        for l in range(64):
            q = l & 31; hh = l >> 5
            key = kperm(8*(r//4) + 4*hh + r % 4)
            d = q - key + (32 if prev else 0)
            if 0 <= d <= 14 and d % 2 == 0: m |= 1 << l
        return m
    def masks(prev):
        k = 0
        a(f"v_mov_b32 v{VT}, {NEGBIG:#x}")
        for i in range(20): a(f"v_mov_b32 v{OB[prev]+i}, 0")
        for r in range(16):
            m = lanemask(r, prev)
            sp = 48 + 2*(k % 4); k += 1
            a(f"s_mov_b32 s{sp}, {m & 0xffffffff:#x}")
            a(f"s_mov_b32 s{sp+1}, {m >> 32:#x}")
            a(f"v_cndmask_b32 v{(MP if prev else MC)+r}, v{VT}, 0, s[{sp}:{sp+1}]")
            if prev: a(f"v_cndmask_b32 v{MP0+r}, v{VT}, v{MP+r}, s[44:45]")
    def bcomp(t):
        keep = a.l; a.l = []
        kc, kp, vc, vp = KX[t+1], KX[t], VX[t+1], VX[t]
        ob, lb = OB[t], LB[t]
        a(mfma(SC, kc, QB[t], MC)); a(mfma(SP, kp, QB[t], MP0 if t == 0 else MP))
        a(mfma(SC, kc+4, QB[t]+4)); a(mfma(SP, kp+4, QB[t]+4))
        a("s_nop 10")
        vals = [SC+r for r in range(16)] + [SP+r for r in range(16)]
        maxof(vals)
        for v in vals: a(f"v_sub_f32 v{v}, v{v}, v{VM}")
        for v in vals: a(f"v_exp_f32 v{v}, v{v}")
        a("s_nop 1")
        a(sm32(ob, vc, SC)); a(sm16(lb, SC)); a(sm32(ob, vc+4, SC+8)); a(sm16(lb, SC+8))
        a(sm32(ob, vp, SP)); a(sm16(lb, SP)); a(sm16(lb, SP+8)); a(sm32(ob, vp+4, SP+8))
        a("s_nop 12")
        finish("s37" if t == 0 else "s38", 0, QB[t], ob, lb)
        out = a.l; a.l = keep
        return out
    work = [] if "B" in OPT["k2x"] else bcomp(0) + bcomp(1)
    def cost(t): return 2 if "v_exp" in t else (3 if "mfma" in t else 1)
    tot = sum(cost(t) for t in work)
    slots = [int(c) for c in OPT["bslots"]]
    chunks = {b: [] for b in range(8)}
    acc_ = 0
    for t in work:
        chunks[slots[min(len(slots) - 1, acc_ * len(slots) // tot)]].append(t)
        acc_ += cost(t)
    def psetup():
        a("v_lshrrev_b32 v5, 4, v0")
        a("v_and_b32 v199, 15, v0")
        a(f"v_lshlrev_b32 v{VWD0}, 1, v5")
        a(f"v_xor_b32 v199, v199, v{VWD0}")
        a("v_lshlrev_b32 v199, 4, v199")
        a(f"v_lshl_add_u32 v{VWD0}, v5, 11, v199")
        a(f"v_xor_b32 v{VWD1}, 128, v{VWD0}")
        a(f"v_add_u32 v{VWD1}, 8192, v{VWD1}")
        a(f"v_and_b32 v{VFL}, 31, v0")
        a(f"v_lshlrev_b32 v{VFL}, {FSH}, v{VFL}")
        a("s_lshl_b32 s39, s60, 22")
        a("s_lshl_b32 s40, s61, 18")
        a("s_add_u32 s39, s39, s40")
        a("s_lshl_b32 s40, s34, 4")
        a("s_add_u32 s39, s39, s40")
        a(f"s_add_u32 s39, s39, {OF}")
        a("s_lshl_b32 s40, s34, 3")
        a("s_lshl_b32 s41, s62, 8")
        a("s_add_u32 s40, s40, s41")
        a("s_add_u32 s41, s40, 16384")
        a("s_lshl_b32 s42, s61, 1")
        a("s_lshr_b32 s43, s34, 13")
        a("s_add_u32 s42, s42, s43")
        a("s_add_u32 s42, s42, 8")
        a("s_lshr_b32 s43, s61, 1")
        a("s_cmp_eq_u32 s60, 0")
        a("s_cselect_b32 s42, s43, s42")
        a(f"s_lshl_b32 s42, s42, {5+FSH}")
        a(f"s_add_u32 s42, s42, {FL}")
        a("s_lshl_b32 s89, s25, 4")
        a("s_add_u32 s89, s89, s22")
        a("s_add_u32 s89, s89, 256")
        a(f"s_lshl_b32 s89, s89, {FSH}")
        a(f"s_add_u32 s89, s89, {FL}")
    def publish(base, tag=None):
        if tag:
            a("s_cmp_lg_u32 s24, 4")
            a(f"s_cbranch_scc1 {tag}")
        a("s_mov_b64 exec, 1")
        a(f"buffer_store_dword v204, v203, s[8:11], {base} offen sc1")
        a("s_mov_b64 exec, -1")
        if tag: a.lab(tag)
        else: issued.append("f")
    def wait_for(tags):
        idx_ = [i for i, x in enumerate(issued) if x in tags]
        if idx_: a(f"s_waitcnt vmcnt({min(63, len(issued) - 1 - max(idx_))})")
    a("v_mov_b32 v203, 0")
    a("v_mov_b32 v204, 1")
    a("v_and_b32 v205, 7, v0")
    a(f"v_lshlrev_b32 v205, {FSH}, v205")
    a("s_lshr_b32 s84, s22, 1")
    a(f"s_lshl_b32 s84, s84, {3+FSH}")
    a(f"s_add_u32 s84, s84, {FL + (1280 << FSH)}")
    def late2():
        a("s_lshr_b32 s85, s22, 1")
        a("s_lshl_b32 s85, s85, 5")
        a("s_lshr_b32 s43, s25, 1")
        a("s_add_u32 s85, s85, s43")
        a("s_add_u32 s85, s85, 1407")
        a(f"s_lshl_b32 s85, s85, {FSH}")
        a(f"s_add_u32 s85, s85, {FL}")
        a("v_and_b32 v207, 1, v0")
        a("v_and_b32 v206, 1, s44")
        a("v_xor_b32 v206, 1, v206")
        a("v_or_b32 v207, v207, v206")
        a(f"v_lshlrev_b32 v207, {FSH}, v207")
    a("s_waitcnt vmcnt(0) lgkmcnt(0)")
    a("v_mov_b32 v202, v8")
    srd(a, 16, 6, 2 << 20)
    a("s_cmp_eq_u32 s60, 0")
    a("s_cbranch_scc1 L2_hA")
    BF = min(7, slots[-1] + 1)
    QS = [int(c) for c in OPT["qs"]]
    QP = int(OPT["qp"]); BL = int(OPT["bl"])
    PX = 132
    ADP = OPT["adp"] == "1"
    XB = OPT["xb"] != "0"; XL = [int(c) for c in OPT["xb"]]
    for typ in ("B", "A"):
        T_ = "L2" + typ
        issued[:] = []
        if typ == "A":
            a.lab("L2_hA")
            a("s_barrier")
            publish("s95", T_ + "_p1")
        else:
            if OPT["df"] == "2":
                for n in range(12): a(f"ds_read_b128 {vr(PX+4*n)}, v201 offset:{n*1024}")
            if OPT["df"] == "0": publish("s95")
        a("s_cmp_lg_u32 s24, 5")
        a(f"s_cbranch_scc1 {T_}_qx")
        a("v_cmp_gt_u32 vcc, 0x100, v202")
        a("s_nop 4")
        a(f"s_cbranch_vccz {T_}_cx")
        poll(T_ + "_c", 203, "0", "s[80:83]", "0x100", "gt")
        if OPT["xslp"] != "0": a(f"s_sleep {OPT['xslp']}")
        poll(T_ + "_q", 205, "s84")
        if typ == "B": a("s_barrier")
        if OPT["hp0"] == "1": a("s_setprio 3")
        a("s_barrier")
        dma_stage(0)
        if OPT["hp0"] == "1": a("s_setprio 0")
        a("s_waitcnt vmcnt(0)")
        a("s_barrier")
        dma_stage(1); dma_stage(2)
        qst = []
        if typ == "B":
            for n, (seg, off) in enumerate(jobs if OPT["df"] != "0" else []):
                qst.append(f"buffer_store_dwordx4 {vr(PK1+4*n)}, v200, s[8:11], s{92+seg} offen offset:{off} sc1")
            for n, (seg, off) in enumerate(jobs if OPT["df"] == "2" else []):
                qst.append(f"buffer_store_dwordx4 {vr(PX+4*n)}, v200, s[8:11], s{86+seg} offen offset:{off} sc1")
            for sg in range(3): a(f"s_sub_u32 s{86+sg}, s{92+sg}, 0x20000")
        ORD = [2*x + h for x in [int(c) for c in OPT["xord"]] for h in range(2)]
        def sw(st):
            if typ == "A" and ADP:
                a(f"s_add_u32 s40, s87, {ORD[st]*64*2048}")
                a("s_add_u32 s41, s40, 16384")
            dma_w(st)
        def so(st):
            t = ORD[st]; tag = f"{T_}_n{st}"
            a(f"s_andn2_b32 s88, {3 << (2*t):#x}, s90")
            a(f"s_cbranch_scc0 {tag}x")
            a("s_mov_b32 s43, 0")
            a.lab(tag)
            a(f"buffer_load_dword v{VFD}, v{VFL}, s[8:11], s42 offen sc1")
            a("s_add_u32 s43, s43, 1")
            a("s_waitcnt vmcnt(0)")
            a(f"v_cmp_eq_u32 vcc, 1, v{VFD}")
            a("s_cmp_gt_u32 s43, 0x200000")
            a(f"s_cbranch_scc1 {tag}x")
            a("s_nop 2")
            a("s_mov_b32 s90, vcc_lo")
            a(f"s_andn2_b32 s88, {3 << (2*t):#x}, s90")
            a(f"s_cbranch_scc0 {tag}x")
            a(f"s_sleep {OPT['slp']}")
            a(f"s_branch {tag}")
            a.lab(tag + "x")
            a(f"s_add_u32 s39, s86, {t*4096}")
            dma_o(st); issued.extend([f"o{st}"]*4)
        def bload(tag):
            poll(tag, 207, "s85"); issued[:] = []
            for t in range(2): ld(QB[t], "s28", t*2048); ld(QB[t]+4, "s28", t*2048+1024)
            ld(KX[0], "s31", 0, VKL); ld(KX[0]+4, "s31", 1024, VKL)
            for t in range(2): ld(KX[t+1], "s29", t*2048, VKL); ld(KX[t+1]+4, "s29", t*2048+1024, VKL)
            ld(VX[0], "s32"); ld(VX[0]+4, "s32", 1024)
            for t in range(2): ld(VX[t+1], "s30", t*2048); ld(VX[t+1]+4, "s30", t*2048+1024)
            issued.extend(["B"]*16)
        if XB:
            chunks = {b: [] for b in range(8)}
            if typ == "A":
                for r_, (lo, hi) in enumerate(((XL[0], XL[1]), (XL[1], 7))):
                    wts = [int(OPT["xw"])] + [10]*(hi - lo - 1)
                    acc_ = 0
                    for t in work:
                        f_ = acc_ * sum(wts) / tot; j_ = 0
                        while j_ < len(wts) - 1 and f_ >= sum(wts[:j_+1]): j_ += 1
                        chunks[lo + j_].append(t); acc_ += cost(t)
        def qstores(b):
            k = [i for i, x in enumerate(QS) if x == b]
            per = -(-len(qst) // len(QS))
            for i in k:
                for t in qst[i*per:(i+1)*per]:
                    a(t); issued.append("q")
        qstores(0)
        late1(); late2()
        if not (XB and typ == "B"): masks(0)
        for b in range(1, 8):
            wait_for([f"s{b}"])
            a("s_barrier")
            if b <= 5: dma_stage(b + 2)
            qstores(b)
            if b == QP and typ == "B" and OPT["df"] != "0":
                wait_for(["q"]); publish("s95")
            if b == 1:
                if not (XB and typ == "B"): masks(1)
                psetup()
            if XB:
                if typ == "A":
                    if b in (XL[1], 7):
                        wait_for(["st"]); publish("s89")
                    if b == XL[1]:
                        for r_ in ("s28", "s29", "s30", "s31", "s32"): a(f"s_add_u32 {r_}, {r_}, 0x40000")
                        for r_ in ("s37", "s38"): a(f"s_add_u32 {r_}, {r_}, 4096")
                        a(f"s_add_u32 s89, s89, {2 << FSH}")
                        a(f"s_add_u32 s85, s85, {32 << FSH}")
                    if b in XL:
                        bload(f"{T_}_b{b}")
                        if b == XL[1]:
                            for i in range(40): a(f"v_mov_b32 v{OB[0]+i}, 0")
                        wait_for(["B"])
            else:
                if b == BL: bload(T_ + "_b")
                if b == slots[0]: wait_for(["B"])
                if b == BF:
                    wait_for(["st"]); publish("s89")
            for c in OPT['pfs']:
                if int(c) == b and PF:
                    pf(); issued.append("p")
            if b == 5 and OPT["tlb"] == "1":
                srd(a, 12, 58, 8 << 20)
                a("v_lshlrev_b32 v206, 21, v0")
                a("buffer_load_dword v206, v206, s[12:15], 0 offen"); issued.append("p")
            if b >= 6:
                if b == 6:
                    if typ == "A" and ADP:
                        a("s_mov_b32 s86, s39")
                        a("s_mov_b32 s87, s40")
                    sw(0); issued.extend(["w0"]*4)
                sw(b - 5); issued.extend([f"w{b-5}"]*4)
            for t in chunks[b]:
                a.l.append(t)
                if "buffer_store" in t: issued.append("st")
        if typ == "B":
            if OPT['bslp'] != '0': a(f"s_sleep {OPT['bslp']}")
            poll(T_ + "_o", VFL, "s42"); issued[:] = []
            for st in range(3):
                dma_o(st); issued.extend([f"o{st}"]*4)
            a("s_barrier")
            publish("s63", T_ + "_p3")
            a("s_barrier")
            wait_for(["o0"])
            a("s_barrier")
            for st in (3, 4):
                dma_w(st); dma_o(st); issued.extend([f"w{st}"]*4 + [f"o{st}"]*4)
        elif not ADP:
            a("s_barrier")
            publish("s63", T_ + "_p3")
            dma_w(3); dma_w(4)
            a("s_cmp_lg_u32 s24, 5")
            a(f"s_cbranch_scc1 {T_}_ox")
            if OPT["aslp"] != "0": a(f"s_sleep {OPT['aslp']}")
            poll(T_ + "_o", VFL, "s42"); issued[:] = []
            a("s_barrier")
            for st in range(2):
                dma_o(st); issued.extend([f"o{st}"]*4)
            wait_for(["o0"])
            a("s_barrier")
            for st in range(2, 5):
                dma_o(st); issued.extend([f"o{st}"]*4)
        else:
            a("s_mov_b32 s90, 0")
            a("s_barrier")
            publish("s63", T_ + "_p3")
            a("s_barrier")
            so(0); so(1)
            wait_for(["o0"])
            a("s_barrier")
            so(2)
            for st in (3, 4):
                sw(st); issued.extend([f"w{st}"]*4); so(st)
        for t in range(15):
            wait_for([f"o{t+1}", f"w{t+1}"])
            a("s_barrier")
            if t + 5 < 16:
                if typ == "A" and ADP:
                    sw(t + 5); issued.extend([f"w{t+5}"]*4); so(t + 5)
                else:
                    dma_w(t + 5); dma_o(t + 5); issued.extend([f"w{t+5}"]*4 + [f"o{t+5}"]*4)
        for n in (2, 3, 4, 5): stamp(a, n)
        dump(a, 0, "s24")
        a("s_endpgm")

    s0 = S[0]
    for qt in range(2):
        a.lab(f"L2_slow{qt}")
        a(f"s_add_u32 s36, s26, {VF}")
        a(f"v_mov_b32 v{VM}, 0xff800000")
        a("s_mov_b32 s39, 0")
        a.lab(f"L2_s1{qt}")
        a("s_add_u32 s41, s33, s39")
        ld(KB[0], "s41", 0, VKL); ld(KB[0]+4, "s41", 1024, VKL)
        a("s_waitcnt vmcnt(0)")
        a(mfma(s0, KB[0], Q[qt], "0")); a(mfma(s0, KB[0]+4, Q[qt]+4))
        a("s_nop 15")
        for i in range(0, 16, 2): a(f"v_max3_f32 v{VM}, v{VM}, v{s0+i}, v{s0+i+1}")
        a("s_add_u32 s39, s39, 2048")
        a(f"s_cmp_lt_u32 s39, {64*2048}")
        a(f"s_cbranch_scc1 L2_s1{qt}")
        a(f"v_mov_b32 v{VT}, v{VM}")
        xhalf_max()
        for i in range(16): a(f"v_sub_f32 v{NEG[qt]+i}, 0, v{VM}")
        for i in range(16): a(f"v_mov_b32 v{O[qt]+i}, 0")
        for i in range(4): a(f"v_mov_b32 v{L[qt]+i}, 0")
        a("s_mov_b32 s39, 0")
        a.lab(f"L2_s2{qt}")
        a("s_add_u32 s41, s33, s39")
        ld(KB[0], "s41", 0, VKL); ld(KB[0]+4, "s41", 1024, VKL)
        a("s_add_u32 s41, s36, s39")
        ld(VB[0], "s41"); ld(VB[0]+4, "s41", 1024)
        a("s_waitcnt vmcnt(0)")
        a(mfma(s0, KB[0], Q[qt], NEG[qt])); a(mfma(s0, KB[0]+4, Q[qt]+4))
        a("s_nop 15")
        for i in range(16): a(f"v_exp_f32 v{s0+i}, v{s0+i}")
        a("s_nop 1")
        a(sm32(O[qt], VB[0], s0)); a(sm16(L[qt], s0)); a(sm32(O[qt], VB[0]+4, s0+8)); a(sm16(L[qt], s0+8))
        a("s_nop 7")
        a("s_add_u32 s39, s39, 2048")
        a(f"s_cmp_lt_u32 s39, {64*2048}")
        a(f"s_cbranch_scc1 L2_s2{qt}")
        a("s_nop 15")
        a(f"s_branch L2_fin{qt}")
    return kd(N, NV, 102), f"; @launch kernel={N} grid=(256,1,1) block=(512,1,1) lds=163840"


DOC = """;
; One persistent kernel, 256 workgroups x 8 waves, one workgroup per CU, three phases joined by flag hand-offs in d_ws
; (write-through stores -> vmcnt(0) -> flag; consumers poll with sc1 loads and read the data with sc1 loads; the flags are
;     results stored as MFMA operand fragments (q pre-scaled by log2(e)/sqrt(32)).
"""

def main():
    a = A()
    jobs = k1(a)
    desc, launch = k2(a, jobs)
    if OPT["single"] == "1": launch = "; @launch grid=(256,1,1) block=(512,1,1) lds=163840"
    hdr = open("cdna_kernels/" + NAME + ".s.ref").read().split("\n")
    top = [l for l in hdr if l.startswith(";") and "@launch" not in l and "Override" not in l and "grid=ceil" not in l]
    out = "\n".join(top) + "\n" + launch + "\n"
    out += DOC
    out += '.amdgcn_target "amdgcn-amd-amdhsa--gfx950"\n.text\n' + a.text()
    out += '.section .rodata,"a"\n' + desc
    open(sys.argv[1], "w").write(out)

main()
```

```python
import struct, math, sys

NAME = "concat_heads__mha_block__sliding_local_dilated__prompt"
OPT = dict(st1=" sc1", st2=" sc1", st3=" sc1", dbg="0", pf1="1", pf3="1", ord1="0", dlt="4", nx="0", ph="t4dc56fe7", pf0="2", pfm="255", xl="4", pfe="6", cpb="16", s2e="0", prio="1", k2x="", cpf="1", hprio="0", trip="0", k1x="", tlb="1", dk="0", spin="", bslots="345", pst="0", wfirst="1", slp="4", fsh="5", pfs="2345", opf="0", la="5", qperm="1", xb="0", xw="5", nt0="0", tl2="0", ntb="0", ntx="", ntw="", ntp="", nto="", hp0="0", wp="1", cp="2", adp="0", xord="20361475", k3x="", mix="1", qs="0", qp="1", bl="2", xslp="0", single="0", df="1", rt="1", pub="3", od="3", pa="1", fm="g", aslp="0", bslp="0", osc=" sc1")
for a in sys.argv[2:]:
    k, v = a.split("=", 1)
    OPT[k] = v

def f2u(x): return struct.unpack("<I", struct.pack("<f", x))[0]
QSCALE = f2u(math.log2(math.e) / math.sqrt(32.0))
NEGBIG = f2u(-1e30)

QF, KF, VF, OF = 0, 8 << 20, 16 << 20, 24 << 20
WS_BYTES = 33 << 20

class A:
    def __init__(s): s.l = []
    def __call__(s, t): s.l.append("    " + t)
    def lab(s, t): s.l.append(t + ":")
    def raw(s, t): s.l.append(t)
    def text(s): return "\n".join(s.l) + "\n"

def vr(b, n=4): return f"v[{b}:{b+n-1}]"
def mfma(d, a, b, c=None):
    cc = vr(d, 16) if c is None else (c if isinstance(c, str) else vr(c, 16))
    return f"v_mfma_f32_32x32x16_bf16 {vr(d,16)}, {vr(a)}, {vr(b)}, {cc}"

def mfma16(d, a, b):
    return f"v_mfma_f32_16x16x32_bf16 {vr(d)}, {vr(a)}, {vr(b)}, {vr(d)}"

def spread(main, fill, start=0, every=1, per=1):
    out = []; k = 0
    for i, m in enumerate(main):
        out.append(m)
        if i >= start and (i - start) % every == 0:
            for _ in range(per):
                if k < len(fill):
                    out += fill[k]; k += 1
    while k < len(fill):
        out += fill[k]; k += 1
    return out

def interleave(main, fill, pattern):
    out = []; k = 0
    for i, m in enumerate(main):
        for _ in range(pattern[i] if i < len(pattern) else 0):
            if k < len(fill):
                out += fill[k]; k += 1
        out.append(m)
    while k < len(fill):
        out += fill[k]; k += 1
    return out

def kd(name, vgpr, sgpr=96):
    acc = (vgpr + 3) // 4 * 4
    return f""".p2align 6
.amdhsa_kernel {name}
  .amdhsa_next_free_vgpr {vgpr}
  .amdhsa_next_free_sgpr {sgpr}
  .amdhsa_accum_offset {acc}
  .amdhsa_group_segment_fixed_size 0
  .amdhsa_kernarg_size 72
  .amdhsa_user_sgpr_count 2
  .amdhsa_user_sgpr_kernarg_segment_ptr 1
  .amdhsa_system_sgpr_workgroup_id_x 1
.end_amdhsa_kernel
"""

_cp = [0]
DBG = OPT["dbg"] in ("1", "2", "3", "4")
def stamp(a, n):
    if DBG:
        a(f"{'s_memrealtime' if OPT['rt'] == '1' and n >= 2 else 's_memtime'} s[{64+2*n}:{65+2*n}]")
def rstamp(a, n):
    if DBG:
        a(f"s_memrealtime s[{64+2*n}:{65+2*n}]")
def dump(a, kidx, wave_sgpr, nst=8):
    if not DBG: return
    if OPT["dbg"] == "4":
        _cp[0] += 1
        sk = f"Ldbg{_cp[0]}"
        a("s_lshl_b32 s92, s2, 3")
        a(f"s_add_u32 s92, s92, {wave_sgpr}")
        a(f"s_cmp_lg_u32 s92, {OPT['dk']}")
        a(f"s_cbranch_scc1 {sk}")
        a("s_waitcnt vmcnt(0)")
        a("s_memrealtime s[78:79]")
        a("s_waitcnt lgkmcnt(0)")
        a(f"s_sub_u32 s93, s{64+2*int(OPT['spin'])}, s66")
        a.lab(sk + "s")
        a("s_memrealtime s[62:63]")
        a("s_waitcnt lgkmcnt(0)")
        a("s_sub_u32 s62, s62, s78")
        a("s_cmp_lt_u32 s62, s93")
        a(f"s_cbranch_scc1 {sk}s")
        a.lab(sk)
        return
    if OPT["dbg"] == "2":
        if kidx != int(OPT["dk"]): return
        _cp[0] += 1
        sk = f"Ldbg{_cp[0]}"
        a("s_load_dwordx2 s[88:89], s[0:1], 56")
        a("s_waitcnt lgkmcnt(0) vmcnt(0)")
        a(f"s_memtime s[{64+2*(nst-2)}:{65+2*(nst-2)}]")
        a(f"s_memrealtime s[{64+2*(nst-1)}:{65+2*(nst-1)}]")
        a("s_waitcnt lgkmcnt(0)")
        a(f"s_sub_u32 s88, s88, {512*kidx}")
        a("s_subb_u32 s89, s89, 0")
        a("s_mov_b32 s90, 64")
        a("s_mov_b32 s91, 0x00020000")
        a("s_lshl_b32 s92, s2, 3")
        a(f"s_add_u32 s92, s92, {wave_sgpr}")
        a("s_cmp_eq_u32 s92, 805")
        a("s_cselect_b32 s93, 32, 0x1000")
        a("s_cmp_eq_u32 s92, 0")
        a("s_cselect_b32 s92, 0, s93")
        a("v_mov_b32 v2, 0")
        for n in range(2, nst):
            base = 64 if n < nst-1 else 66
            a(f"s_sub_u32 s93, s{64+2*n}, s{base}")
            a("v_mov_b32 v3, s93")
            a(f"buffer_store_dword v3, v2, s[88:91], s92 offen offset:{4*(n-2)}")
            a("s_nop 1")
        return
    a("s_load_dwordx2 s[88:89], s[0:1], 64")
    a("s_waitcnt lgkmcnt(0) vmcnt(0)")
    a(f"s_memtime s[{64+2*(nst-2)}:{65+2*(nst-2)}]")
    a(f"s_memrealtime s[{64+2*(nst-1)}:{65+2*(nst-1)}]")
    a("s_waitcnt lgkmcnt(0)")
    a("s_mov_b32 s90, 0x8000000")
    a("s_mov_b32 s91, 0x00020000")
    a("s_lshl_b32 s92, s2, 3")
    a(f"s_add_u32 s92, s92, {wave_sgpr}")
    a("s_lshl_b32 s92, s92, 6")
    a(f"s_add_u32 s92, s92, {(64+kidx) << 20}")
    a("v_mov_b32 v2, 0")
    for n in range(nst):
        a(f"v_mov_b32 v3, s{64+2*n}")
        a(f"buffer_store_dword v3, v2, s[88:91], s92 offen offset:{4*n}")
        a("s_nop 1")
    if OPT["dbg"] == "3" and kidx == 2:
        _cp[0] += 1
        sk = f"Ldbg{_cp[0]}"
        a("s_lshl_b32 s92, s2, 3")
        a(f"s_add_u32 s92, s92, {wave_sgpr}")
        a(f"s_cmp_lg_u32 s92, {OPT['dk']}")
        a(f"s_cbranch_scc1 {sk}")
        a(f"s_add_u32 s88, s88, {(64 << 20) + int(OPT['dk'])*64}")
        a("s_addc_u32 s89, s89, 0")
        a("s_load_dwordx8 s[40:47], s[88:89], 0")
        a("s_add_u32 s88, s88, 0x100000")
        a("s_addc_u32 s89, s89, 0")
        a("s_load_dwordx8 s[48:55], s[88:89], 0")
        a("s_load_dwordx2 s[88:89], s[0:1], 56")
        a("s_waitcnt lgkmcnt(0)")
        a("s_mov_b32 s90, 64")
        k = 0
        for b, st in ((40, 1), (48, 1), (64, 2)):
            for n, ref in ((3, b), (4, b), (6, b), (1, 41), (7, 41)):
                a(f"s_sub_u32 s93, s{b+st*n}, s{ref}")
                a("v_mov_b32 v3, s93")
                a(f"buffer_store_dword v3, v2, s[88:91], 0 offen offset:{4*k}")
                a("s_nop 1")
                k += 1
        if OPT["spin"] != "":
            q, mult, unit = OPT["spin"].split(",")
            x, y = q.split("-")
            a(f"s_sub_u32 s93, s{x}, s{y}")
            a(f"s_mul_i32 s93, s93, {mult}")
            ins = "s_memrealtime" if unit == "r" else "s_memtime"
            a(f"{ins} s[60:61]")
            a("s_waitcnt lgkmcnt(0)")
            a.lab(sk + "s")
            a(f"{ins} s[62:63]")
            a("s_waitcnt lgkmcnt(0)")
            a("s_sub_u32 s62, s62, s60")
            a("s_cmp_lt_u32 s62, s93")
            a(f"s_cbranch_scc1 {sk}s")
        a.lab(sk)

def codepf(a, start, end, vtmp, lane="v0"):
    if OPT["cpf"] != "1": return
    _cp[0] += 1
    l = f"Lcp{_cp[0]}"
    a("s_getpc_b64 s[56:57]")
    a.lab(l)
    a(f"s_add_u32 s56, s56, {start}-{l}")
    a(f"s_addc_u32 s57, s57, ({start}-{l})>>32")
    a(f"v_lshlrev_b32 v{vtmp}, 7, {lane}")
    a(f"v_min_u32 v{vtmp}, ({end})-({start})-4, v{vtmp}")
    a(f"global_load_dword v{vtmp}, v{vtmp}, s[56:57]")

def head(a, name):
    a.raw(f".globl {name}\n.p2align 8\n.type {name},@function\n{name}:")

def srd(a, d, base, nbytes):
    a(f"s_mov_b32 s{d}, s{base}")
    a(f"s_mov_b32 s{d+1}, s{base+1}")
    a(f"s_mov_b32 s{d+2}, {nbytes:#x}")
    a(f"s_mov_b32 s{d+3}, 0x00020000")

def place(main, fill, per=2, start=0):
    out = []; k = 0
    for i, m in enumerate(main):
        out.append(m)
        if i >= start:
            out += fill[k:k+per]; k += per
    out += fill[k:]
    return out

def sched(M, rd, d, post, late, late_dma=False):
    n = len(M)
    gaps = [[] for _ in range(n)]
    if late_dma: rg = list(range(len(rd))); dg = [len(rd) + 2*k for k in range(len(d))]
    else:
        dg = [1 + 4*k for k in range(len(d))]; rg = [g for g in range(n) if g not in dg][:len(rd)]
    for g, t in zip(rg, rd): gaps[g].append(t)
    for g, (m_, l_) in zip(dg, d):
        gaps[g-1].append(m_); gaps[g].append(l_)
    def runs(ops):
        out = []
        for t in ops:
            if t.startswith("s_cselect") : out[-1].append(t)
            else: out.append([t])
        return out
    def put(run, g0):
        g = g0
        while g < n - 1 and len(gaps[g]) + len(run) > 3: g += 1
        gaps[g] += run
        return g
    g = (dg[len(d)-1] if d else 0)
    for r in runs(post): g = put(r, g)
    g = 0
    for r in runs(late):
        if r[0].startswith("v_"): g = max(g, rg[-1] if rg else 0)
        g = put(r, g)
    seq = []
    for i, m_ in enumerate(M):
        seq.append(m_); seq += gaps[i]
    return seq

FL = 32 << 20
FSH = int(OPT['fsh'])
PK1 = 208

def k1(a):
    N = NAME + "_kernel"
    head(a, N)
    XS, WS, WSL = 32768, 98304, 12288
    VD, VXB, VXA, VWB, VWA, VST, VPX, VPW, VPD = 10, 18, 20, 22, 24, 26, 27, 28, 29
    F = [32, 72]; ACC = 112; NV = 208
    PF = OPT["pf1"] == "1"
    DLT = int(OPT["dlt"]); PST = 2
    def A_(f, mt): return F[f] + 4*mt
    def B_(f, nb): return F[f] + 16 + 4*nb
    def acc(mt, nb): return ACC + (mt*6 + nb)*4
    a("s_cmp_ge_u32 s2, 256")
    a("s_cbranch_scc1 L2_end")
    stamp(a, 0); rstamp(a, 1)
    a("s_and_b32 s20, s2, 7")
    a("s_lshr_b32 s21, s2, 3")
    MIX = OPT["mix"] == "1"
    if MIX: a("s_lshr_b32 s22, s21, 4")
    else: a("s_lshr_b32 s22, s20, 2")
    a("s_mul_i32 s23, s22, 24")
    a("s_load_dwordx4 s[4:7], s[0:1], s23")
    a("s_load_dwordx4 s[96:99], s[0:1], 56")
    a("s_load_dwordx4 s[88:91], s[0:1], 0")
    a("v_lshrrev_b32 v1, 6, v0")
    a("v_and_b32 v0, 63, v0")
    a("v_readfirstlane_b32 s26, v1")
    a("s_and_b32 s24, s20, 1")
    a("s_lshl_b32 s24, s24, 2")
    a("s_and_b32 s25, s21, 3")
    a("s_add_u32 s24, s24, s25")
    if MIX:
        a("s_lshr_b32 s25, s20, 1")
        if OPT["qperm"] == "1":
            a("s_lshl_b32 s25, s25, 1")
            a("s_lshr_b32 s25, 0xd8, s25")
            a("s_and_b32 s25, s25, 3")
        a("s_mov_b32 s36, s25")
        a("s_xor_b32 s53, s25, s22")
        a("s_lshl_b32 s25, s53, 2")
        a("s_bfe_u32 s27, s21, 0x20002")
    else:
        a("s_bfe_u32 s25, s20, 0x10001")
        a("s_lshl_b32 s25, s25, 3")
        a("s_lshr_b32 s27, s21, 2")
    a("s_add_u32 s25, s25, s27")
    a("s_and_b32 s31, s26, 3")
    a("s_lshr_b32 s32, s26, 2")
    PH = OPT["ph"]
    if PH == "0": a("s_mov_b32 s44, 0")
    elif PH == "1":
        a("s_lshl_b32 s44, s20, 1")
    elif PH == "2":
        a("s_lshl_b32 s44, s20, 1")
        a("s_and_b32 s45, s21, 1")
        a("s_add_u32 s44, s44, s45")
    elif PH.startswith("t"):
        tab = sum(int(c, 16) << (4*i) for i, c in enumerate(PH[1:]))
        a("s_lshl_b32 s45, s20, 2")
        a(f"s_lshr_b32 s54, {tab:#x}, s45")
        a("s_and_b32 s54, s54, 15")
        a("s_mov_b32 s44, s54")
    elif PH in ("6", "7", "8"):
        a("s_lshr_b32 s54, s20, 1")
        a("s_lshl_b32 s54, s54, 2")
        a("s_and_b32 s45, s20, 1")
        a("s_mul_i32 s45, s45, 10")
        a("s_add_u32 s54, s54, s45")
        a("s_and_b32 s54, s54, 15")
        if PH == "6": a("s_and_b32 s45, s21, 1")
        elif PH == "7": a("s_mov_b32 s45, s22")
        else: a("s_mov_b32 s45, 0")
        a("s_add_u32 s44, s54, s45")
    elif PH == "5":
        a("s_lshl_b32 s44, s20, 1")
        a("s_add_u32 s44, s44, s22")
    elif PH == "3":
        a("s_lshl_b32 s44, s22, 1")
        a("s_and_b32 s45, s20, 1")
        a("s_add_u32 s44, s44, s45")
        a("s_lshl_b32 s44, s44, 2")
        a("s_and_b32 s45, s21, 3")
        a("s_add_u32 s44, s44, s45")
    elif PH == "4":
        a("s_lshl_b32 s44, s22, 1")
        a("s_and_b32 s45, s20, 1")
        a("s_add_u32 s44, s44, s45")
        a("s_lshl_b32 s44, s44, 2")
    a("v_lshrrev_b32 v2, 3, v0")
    a("v_and_b32 v3, 7, v0")
    a("v_lshrrev_b32 v4, 4, v0")

    def rdA(f, ks, mt): return [f"ds_read_b128 {vr(A_(f,mt))}, v{VXA+ks} offset:{mt*2048}"]
    def rdB(f, nb):
        o = (nb//2)*4096
        return [f"ds_read_b64_tr_b16 {vr(B_(f,nb),2)}, v{VWA+nb%2} offset:{o}",
                f"ds_read_b64_tr_b16 {vr(B_(f,nb)+2,2)}, v{VWA+nb%2} offset:{o+512}"]
    def reads(f, ks):
        r = rdB(f, 0)
        for mt in range(4): r += rdA(f, ks, mt)
        for nb in range(1, 6): r += rdB(f, nb)
        return r
    def mm(f):
        r = []
        for nb in range(6):
            for mt in range(4):
                if nb < 4: r.append(mfma16(acc(mt, nb), B_(f, nb), A_(f, mt)))
                else:      r.append(mfma16(acc(mt, nb), A_(f, mt), B_(f, nb)))
        return r

    def common_setup():
        srd(a, 16, 98, WS_BYTES)
        a("v_and_b32 v2, 15, v0")
        a("v_lshrrev_b32 v3, 4, v0")
        a("v_bfe_u32 v4, v0, 1, 3")
        a("s_lshl_b32 s33, s31, 13")
        a("v_lshlrev_b32 v5, 7, v2")
        a("v_add_u32 v5, s33, v5")
        a("v_xor_b32 v6, v3, v4")
        a(f"v_lshl_add_u32 v{VXB}, v6, 4, v5")
        a(f"v_xor_b32 v{VXB+1}, 64, v{VXB}")
        a(f"v_mov_b32 v{VXA}, v{VXB}")
        a(f"v_mov_b32 v{VXA+1}, v{VXB+1}")
        a("v_bfe_u32 v4, v0, 2, 2")
        a("v_lshl_add_u32 v4, v3, 3, v4")
        a("v_lshlrev_b32 v4, 7, v4")
        a("v_and_b32 v6, 3, v0")
        a("v_lshl_add_u32 v4, v6, 3, v4")
        a("v_bfe_u32 v5, v0, 3, 2")
        a("s_lshl_b32 s33, s32, 1")
        a("v_xor_b32 v5, s33, v5")
        a(f"v_lshl_add_u32 v{VWB}, v5, 5, v4")
        a(f"v_xor_b32 v{VWB+1}, 32, v{VWB}")
        a(f"v_add_u32 v{VWA}, {WS}, v{VWB}")
        a(f"v_add_u32 v{VWA+1}, {WS}, v{VWB+1}")
        a("v_lshlrev_b32 v4, 4, v2")
        a(f"v_lshl_add_u32 v{VST}, v3, 9, v4")
        for i in range(96): a(f"v_mov_b32 v{ACC+i}, 0")
        a("s_lshl_b32 s40, s22, 22")
        a("s_lshl_b32 s41, s25, 1")
        a("s_add_u32 s41, s41, s32")
        a("s_lshl_b32 s41, s41, 17")
        a("s_add_u32 s40, s40, s41")
        a("s_lshl_b32 s41, s24, 14")
        a("s_add_u32 s40, s40, s41")
        a("s_lshl_b32 s41, s31, 12")
        a("s_add_u32 s40, s40, s41")
        a(f"s_add_u32 s41, s40, {KF}")
        a(f"s_add_u32 s42, s40, {VF}")
        a(f"s_mov_b32 s43, {QSCALE:#x}")
        a("s_lshl_b32 s95, s25, 3")
        a("s_add_u32 s95, s95, s24")
        a("s_lshl_b32 s94, s95, 2")
        a("s_add_u32 s94, s94, s31")
        a("s_add_u32 s94, s94, 1408")
        a("s_add_u32 s95, s95, 1280")
        a("s_cmp_eq_u32 s22, 0")
        a("s_cselect_b32 s95, s95, s94")
        a(f"s_lshl_b32 s95, s95, {FSH}")
        a(f"s_add_u32 s95, s95, {FL}")
        srd(a, 80, 96, 256)
        a("s_mov_b32 s33, 0")
        a(f"s_mov_b32 s34, {WS}")
        a("s_mov_b32 s35, 0")

    wupd = [f"s_add_u32 s34, s34, {WSL}", f"s_cmp_eq_u32 s34, {WS+5*WSL}", f"s_cselect_b32 s34, {WS}, s34",
            f"v_add_u32 v{VWA}, s34, v{VWB}", f"v_add_u32 v{VWA+1}, s34, v{VWB+1}", "s_add_u32 s35, s35, 1"]
    xupd = [f"s_add_u32 s33, s33, {XS}", f"s_cmp_eq_u32 s33, {3*XS}", "s_cselect_b32 s33, 0, s33",
            f"v_add_u32 v{VXA}, s33, v{VXB}", f"v_add_u32 v{VXA+1}, s33, v{VXB+1}"]

    def mix(dma, other):
        out = []; o = list(other)
        for m, l in dma:
            out.append(m)
            out.append(o.pop(0) if o else "s_nop 0")
            out.append(l)
        return out + o

    def event(tag):
        a.lab(tag)
        if OPT["cpf"] == "1":
            a("s_cmp_ge_u32 s51, 0x100")
            a(f"s_cbranch_scc1 {tag}c")
        a("s_add_u32 s48, s54, s51")
        a("s_and_b32 s48, s48, 15")
        a("s_mul_i32 s48, s48, s52")
        a("s_add_u32 s48, s48, s50")
        a(f"buffer_load_dword v{VPD}, v{VPW}, s[84:87], s48 offen{OPT['ntp']}")
        a(f"s_add_u32 s51, s51, {PST}")
        a("s_lshl_b32 s49, s51, 1")
        a("s_max_u32 s49, s49, s39")
        a("s_sub_u32 s49, s49, s39")
        a(f"s_cmp_lt_u32 s51, {OPT['pfe']}")
        a(f"s_cbranch_scc1 {tag}r")
        a("s_mov_b32 s49, 0x7fff")
        if OPT["cpf"] == "1":
            a("s_cmp_eq_u32 s31, 3")
            a(f"s_cselect_b32 s49, {OPT['cpb']}, s49")
            a("s_mov_b32 s51, 0x100")
        a(f"s_branch {tag}r")
        if OPT["cpf"] == "1":
            a.lab(tag + "c")
            a("s_mov_b32 s49, 0x7fff")
            codepf(a, "L1_epi", "L1_epi+8192", 31)
            codepf(a, "L1_epi+8192", "L1_epi+16384", 9)
            codepf(a, "L1_epi+16384", "L2_slow0", 8)
            a(f"s_branch {tag}r")

    a("s_cmp_lg_u32 s32, 0")
    a("s_cbranch_scc1 L1_W")
    for cls in ("X", "W"):
        P = "L1" + cls
        if cls == "X":
            a("v_lshlrev_b32 v5, 11, v2")
            a("v_xor_b32 v6, v3, v4")
            a("v_lshl_add_u32 v6, v6, 4, v5")
            a("v_xor_b32 v7, 64, v6")
            a(f"v_mov_b32 v{VD}, v6")
            a(f"v_add_u32 v{VD+1}, 16384, v7")
            a(f"v_add_u32 v{VD+2}, 32768, v6")
            a(f"v_add_u32 v{VD+3}, 49152, v7")
            a("s_lshl_b32 s27, s24, 19")
            a("s_lshl_b32 s28, s31, 16")
            a("s_add_u32 s45, s27, s28")
            a("s_lshl_b32 s46, s44, 7")
            a("s_add_u32 s27, s45, s46")
            a("s_add_u32 s28, s27, 0x40000")
            a("s_lshl_b32 s29, s31, 12")
            a(f"s_add_u32 s30, s29, {6*16384}")
            a("s_waitcnt lgkmcnt(0)")
            if OPT["s2e"] == "1": stamp(a, 2)
            srd(a, 8, 4, 4 << 20)
            def grp(par):
                so = "s27" if par == 0 else "s28"
                d = [(f"s_add_u32 m0, s29, {j*1024}", f"buffer_load_dwordx4 v{VD+j}, s[8:11], {so} offen{OPT['ntx']} lds") for j in range(4)]
                post = ["s_add_u32 s29, s29, 16384"]
                if par == 0: post += ["s_add_u32 s46, s46, 128", "s_and_b32 s46, s46, 0x7ff", "s_add_u32 s27, s45, s46"]
                if par == 1: post += ["s_add_u32 s28, s27, 0x40000", "s_cmp_eq_u32 s29, s30", f"s_cselect_b32 s38, {6*16384}, 0", "s_sub_u32 s29, s29, s38"]
                return d, post
            NG = 4
        else:
            a.lab("L1_W")
            if OPT["cpf"] == "1":
                a("s_cmp_lg_u32 s26, 7")
                a("s_cbranch_scc1 L1_nocp")
                codepf(a, N, "L1_epi", VPD)
                a.lab("L1_nocp")
            a("v_mul_u32_u24 v5, 6144, v2")
            a("v_and_b32 v6, 1, v4")
            a("v_lshlrev_b32 v6, 1, v6")
            a("s_and_b32 s33, s26, 1")
            a("s_lshl_b32 s33, s33, 2")
            a("v_xor_b32 v6, v3, v6")
            a("v_xor_b32 v6, s33, v6")
            a(f"v_lshl_add_u32 v{VD}, v6, 4, v5")
            a(f"v_add_u32 v{VD+1}, 2048, v{VD}")
            a(f"v_add_u32 v{VD+2}, 4096, v{VD}")
            a("s_lshl_b32 s27, s25, 7")
            a(f"s_mul_i32 s28, s31, {8*6144}")
            a("s_add_u32 s27, s27, s28")
            a(f"s_mul_i32 s28, s44, {64*6144}")
            a("s_add_u32 s27, s27, s28")
            a("s_lshl_b32 s29, s31, 10")
            a(f"s_add_u32 s29, s29, {WS}")
            a(f"s_add_u32 s30, s29, {5*WSL}")
            a("s_waitcnt lgkmcnt(0)")
            if OPT["s2e"] == "1": stamp(a, 2)
            srd(a, 12, 6, 6 << 20)
            def pfsetup():
                a("s_and_b32 s47, s21, 7")
                a("s_bfe_u32 s51, s21, 0x10003")
                a(f"s_add_u32 s51, s51, {OPT['pf0']}")
                a("v_lshlrev_b32 v5, 11, v0")
                a("v_lshrrev_b32 v6, 2, v0")
                a("v_mul_u32_u24 v6, 6144, v6")
                a("v_and_b32 v7, 3, v0")
                a("v_lshl_add_u32 v6, v7, 7, v6")
                a("v_mul_u32_u24 v7, 6144, v0")
                a("s_cmp_lt_u32 s47, 4")
                a("s_cselect_b64 s[56:57], -1, 0")
                a("s_cselect_b32 s84, s88, s90")
                a("s_cselect_b32 s85, s89, s91")
                a(f"s_mov_b32 s86, {6<<20:#x}")
                a(f"s_cselect_b32 s86, {4<<20:#x}, s86")
                a("s_mov_b32 s87, 0x00020000")
                a(f"s_mov_b32 s52, {64*6144}")
                a("s_cselect_b32 s52, 128, s52")
                a(f"v_cndmask_b32 v{VPW}, v6, v5, s[56:57]")
                a("s_and_b32 s48, s20, 1")
                a("s_lshl_b32 s48, s48, 2")
                a("s_add_u32 s48, s48, s47")
                a("s_lshl_b32 s48, s48, 2")
                a("s_add_u32 s48, s48, s31")
                a("s_lshl_b32 s48, s48, 17")
                a("s_lshl_b32 s50, s36, 9")
                a("s_and_b32 s55, s47, 3")
                a("s_lshl_b32 s55, s55, 11")
                a("s_add_u32 s50, s50, s55")
                a(f"s_mul_i32 s55, s31, {16*6144}")
                a("s_add_u32 s50, s50, s55")
                a("s_cmp_lt_u32 s47, 4")
                a("s_cselect_b32 s50, s48, s50")
                a("s_and_b32 s48, s53, 2")
                a("s_lshl_b32 s48, s48, 9")
                a("s_lshl_b32 s55, s31, 11")
                a("s_add_u32 s48, s48, s55")
                a("s_add_u32 s48, s48, 384")
                a("s_bitcmp1_b32 s53, 0")
                a("s_cselect_b32 s90, s90, s6")
                a("s_cselect_b32 s91, s91, s7")
                a("s_cmp_eq_u32 s47, 7")
                a("s_cselect_b64 s[56:57], -1, 0")
                a("s_cselect_b32 s50, s48, s50")
                a("s_cselect_b32 s84, s90, s84")
                a("s_cselect_b32 s85, s91, s85")
                a("s_cselect_b32 s55, 3, 0")
                a(f"s_cselect_b32 s39, {4+DLT+int(OPT['xl'])}, {4+DLT}")
                a(f"v_cndmask_b32 v{VPW}, v{VPW}, v7, s[56:57]")
                a("s_and_b32 s48, s55, s31")
                a("s_cmp_eq_u32 s48, 3")
                a("s_cselect_b32 s86, 0, s86")
                if OPT["pfm"] != "255":
                    a(f"s_lshr_b32 s48, {OPT['pfm']}, s47")
                    a("s_and_b32 s48, s48, 1")
                    a("s_cselect_b32 s86, s86, 0")
                a("s_lshl_b32 s49, s51, 1")
                a("s_max_u32 s49, s49, s39")
                a("s_sub_u32 s49, s49, s39")
                a("s_cmp_eq_u32 s22, 0")
                a("s_cselect_b32 s49, 0x7fff, s49")
            def grp(par):
                d = [(f"s_add_u32 m0, s29, {g*4096}", f"buffer_load_dwordx4 v{VD+g}, s[12:15], s27 offen{OPT['ntw']} lds") for g in range(3)]
                post = [f"s_add_u32 s27, s27, {32*6144}", f"s_add_u32 s29, s29, {WSL}",
                        "s_cmp_eq_u32 s29, s30", f"s_cselect_b32 s38, {5*WSL}, 0", "s_sub_u32 s29, s29, s38"]
                if par == 1: post += [f"s_cmp_ge_u32 s27, {6<<20:#x}", f"s_cselect_b32 s38, {6<<20:#x}, 0", "s_sub_u32 s27, s27, s38"]
                return d, post
            NG = 3
        def emit_grp(par, nt=False):
            d, post = grp(par)
            for t in mix(d, []) + post: a(t.replace(" offen lds", " offen nt lds") if nt else t)
        first = 2 if cls == "X" else 1
        for n in range(first): emit_grp(n & 1, int(OPT['nt0']) >= 1)
        common_setup()
        if cls == "W" and PF: pfsetup()
        if cls == "X":
            a("s_lshl_b32 s47, s20, 2")
            a("s_lshr_b32 s48, s21, 3")
            a("s_add_u32 s47, s47, s48")
            a("s_and_b32 s48, s21, 7")
            a("s_lshl_b32 s49, s48, 5")
            a("s_add_u32 s49, s49, s47")
            a(f"s_lshl_b32 s49, s49, {FSH}")
            a(f"s_add_u32 s49, s49, {FL}")
            a("s_lshl_b32 s50, s48, 7")
            a("s_add_u32 s50, s50, s47")
            a("s_add_u32 s50, s50, 256")
            a(f"s_lshl_b32 s50, s50, {FSH}")
            a(f"s_add_u32 s50, s50, {FL}")
            a("v_and_b32 v9, 3, v0")
            a(f"v_lshlrev_b32 v8, {5+FSH}, v9")
            a("v_add_u32 v8, s50, v8")
            if OPT["xb"] != "0":
                a("v_bfe_u32 v7, v0, 3, 1")
                a(f"v_lshl_add_u32 v8, v7, {1+FSH}, v8")
            a(f"s_lshl_b32 s48, s22, {FSH}")
            a("v_mul_u32_u24 v9, s48, v9")
            a("v_add_u32 v9, s95, v9")
            a("s_mov_b64 s[50:51], 0xf00")
            a("v_cndmask_b32 v8, v8, v9, s[50:51]")
            a("v_mov_b32 v9, s49")
            a("s_mov_b64 s[50:51], 1")
            a("v_cndmask_b32 v8, v8, v9, s[50:51]")
            a("v_mov_b32 v9, 0")
            if OPT["xb"] != "0":
                a("s_mov_b64 s[50:51], 0xfff1")
                a("s_cmp_eq_u32 s22, 0")
                a("s_cselect_b64 s[50:51], s[50:51], 0xf01")
                a("s_cmp_eq_u32 s31, 0")
                a("s_cselect_b64 exec, s[50:51], 0")
            else:
                a("s_cmp_eq_u32 s31, 0")
                a("s_cselect_b64 exec, 0xff1, 0")
            a("s_cbranch_execz L1_nofl")
            a("buffer_store_dword v9, v8, s[16:19], 0 offen sc1")
            a.lab("L1_nofl")
            a("s_mov_b64 exec, -1")
        for n in range(first, 4): emit_grp(n & 1, int(OPT['nt0']) >= 2)
        npf = 0
        if cls == "W" and PF:
            a("s_cmp_eq_u32 s49, 0")
            a(f"s_cbranch_scc1 {P}_e0")
            a.lab(f"{P}_e0r")
        a(f"s_waitcnt vmcnt({(4-first)*NG + npf})")
        a("s_barrier")
        if cls == "X":
            a("v_mov_b32 v8, 1")
            a("s_lshr_b32 s47, s2, 5")
            a("s_lshl_b32 s47, s47, 1")
            a(f"s_add_u32 s47, s47, {int(OPT['ntb'])+2}")
            a("s_cmp_eq_u32 s31, 0")
            a("s_cselect_b32 s47, s47, 0x7fff")
        d, post = grp(0)
        for t in reads(0, 0) + mix(d, []) + post + wupd: a(t.replace(" offen lds", " offen nt lds") if int(OPT["nt0"]) >= 3 else t)
        if cls == "W": a(f"s_waitcnt vmcnt({3*NG + npf})")
        a("s_waitcnt lgkmcnt(0)")
        a("s_barrier")
        if cls == "W" and OPT["wp"] == "1": a("s_setprio 1")
        NTB = int(OPT["ntb"])
        vers = (["n"] if NTB else []) + [""]
        a(f"s_branch {P}{vers[0]}_odd")
        nev = 1
        for V in vers:
            a.raw(".p2align 6")
            a.lab(f"{P}{V}_loop")
            for par in range(2):
                if par == 1: a.lab(f"{P}{V}_odd")
                d, post = grp(par)
                if V == "n": d = [(m_, l_.replace(" offen lds", " offen nt lds")) for m_, l_ in d]
                rd = reads(par, par)
                tail = list(post) + wupd
                if par == 1: tail += xupd
                late = [t for t in tail if t not in post]
                late = [t for t in late if not t.startswith("v_")] + [t for t in late if t.startswith("v_")]
                for t in sched(mm(1-par), rd, d, list(post), late): a(t)
                if cls == "W" and PF:
                    a("s_cmp_ge_u32 s35, s49")
                    a(f"s_cbranch_scc1 {P}_e{nev}")
                    a.lab(f"{P}_e{nev}r"); nev += 1
                if par == 1 and cls == "X" and V == "":
                    a("s_cmp_eq_u32 s35, s47")
                    a("s_cbranch_scc1 L1_at")
                    a.lab("L1_atr")
                if par == 1: a(f"s_cmp_lt_u32 s35, {NTB if V == 'n' else 28}")
                if cls == "W": a(f"s_waitcnt vmcnt({3*NG}) lgkmcnt(0)")
                elif par == 1: a(f"s_waitcnt vmcnt({2*NG}) lgkmcnt(0)")
                else: a("s_waitcnt lgkmcnt(0)")
                a("s_barrier")
            a(f"s_cbranch_scc1 {P}{V}_loop")
            if V == "n": a(f"s_branch {P}_loop")
        a("s_branch L1_epi")
        if cls == "W" and PF:
            for k in range(nev): event(f"{P}_e{k}")
        if cls == "X":
            a.lab("L1_at")
            a("s_mov_b64 exec, 1")
            a("buffer_atomic_add v8, v9, s[80:83], 0 offen sc1")
            a("s_mov_b64 exec, -1")
            if OPT["tl2"] == "1":
                a("v_lshlrev_b32 v30, 21, v0")
                a("buffer_load_dword v30, v30, s[16:19], 0 offen sc1")
            if OPT["tl2"] == "2":
                a("v_min_u32 v30, 2, v0")
                a("v_lshlrev_b32 v30, 23, v30")
                a("buffer_load_dword v30, v30, s[16:19], s40 offen sc1")
            a("s_branch L1_atr")
    a.lab("L1_epi")
    a("v_mov_b32 v9, 0")
    a("s_mov_b32 s44, s43")
    a("s_mov_b32 s45, s43")
    a(f"v_add_u32 v{VWA}, {WS}, v{VWB}")
    a(f"v_add_u32 v{VWA+1}, {WS}, v{VWB+1}")
    a("s_and_b32 s33, s22, s32")
    a(f"s_cselect_b32 s18, 0, s18")
    XF = lambda sl, mt: (32 if sl < 2 else 72 - 32) + 16*sl + 4*mt
    WBUF = [64, 240, 248, 104]
    def tx(sl): return [f"ds_read_b128 {vr(XF(sl, mt))}, v{(VXA if sl < 2 else VXB) + (sl & 1)} offset:{mt*2048}" for mt in range(4)]
    def tw(gi):
        seg, sl = G[gi]; b = WBUF[gi % 4]; o = ((28 + sl) % 5)*WSL + seg*4096
        return [f"ds_read_b64_tr_b16 {vr(b+4*u+2*i,2)}, v{VWA+u} offset:{o+512*i}" for u in range(2) for i in range(2)]
    def tm(gi):
        seg, sl = G[gi]; b = WBUF[gi % 4]; r = []
        for u in range(2):
            for mt in range(4):
                if seg < 2: r.append(mfma16(acc(mt, 2*seg+u), b+4*u, XF(sl, mt)))
                else:       r.append(mfma16(acc(mt, 2*seg+u), XF(sl, mt), b+4*u))
        return r
    G = [(0, 0), (1, 0), (0, 1), (0, 2), (0, 3), (1, 1), (1, 2), (1, 3), (2, 0), (2, 1), (2, 2), (2, 3)]
    jobs = []
    for T in range(2):
        for sg in range(2): jobs.append((1, acc(2*T+sg, 2), acc(2*T+sg, 3), T*2048 + sg*256))
    for T in range(2):
        for sg in range(2): jobs.append((0, acc(2*T+sg, 0), acc(2*T+sg, 1), T*2048 + sg*256))
    for T in range(2):
        for u in range(2):  jobs.append((2, acc(2*T, 4+u), acc(2*T+1, 4+u), T*2048 + u*256))
    def conv(n):
        seg, b0, b1, off = jobs[n]; t0 = PK1 + 4*n; r = []
        if seg == 0: r += [f"v_pk_mul_f32 v[{b+q}:{b+q+1}], v[{b+q}:{b+q+1}], s[44:45]" for b in (b0, b1) for q in (0, 2)]
        r += [f"v_cvt_pk_bf16_f32 v{t0}, v{b0}, v{b0+1}", f"v_cvt_pk_bf16_f32 v{t0+1}, v{b0+2}, v{b0+3}",
              f"v_cvt_pk_bf16_f32 v{t0+2}, v{b1}, v{b1+1}", f"v_cvt_pk_bf16_f32 v{t0+3}, v{b1+2}, v{b1+3}",
              f"buffer_store_dwordx4 {vr(t0)}, v{VST}, s[16:19], s{40+seg} offen offset:{off} sc1"]
        return r
    lds = []
    def emit(M, rd, tags, other, skip=0):
        o = list(other)
        for i, m_ in enumerate(M):
            a(m_)
            n_ = 2
            if i < len(rd):
                a(rd[i]); lds.append(tags[i]); n_ = 1
            if i >= skip:
                for _ in range(n_):
                    if o and not (i < len(rd) and o[0].startswith("buffer")): a(o.pop(0))
        return o
    def need(tags):
        last = max(i for i, x in enumerate(lds) if x in tags)
        a(f"s_waitcnt lgkmcnt({min(15, len(lds) - 1 - last)})")
    emit(mm(1), tx(0) + tw(0) + tw(1) + tx(1), ["x0"]*4 + ["w0"]*4 + ["w1"]*4 + ["x1"]*4, [])
    a("s_waitcnt vmcnt(6)")
    a("s_barrier")
    need(["x0", "w0"])
    emit(tm(0), tw(2), ["w2"]*4, [])
    a("s_waitcnt vmcnt(0)")
    a("s_barrier")
    a("s_cmp_lg_u32 s26, 5")
    a("s_cbranch_scc1 L1_noc")
    a("buffer_load_dword v8, v9, s[80:83], 0 offen sc1")
    a.lab("L1_noc")
    need(["w1"])
    emit(tm(1), tx(2) + tw(3), ["x2"]*4 + ["w3"]*4, [])
    need(["w2", "x1"])
    emit(tm(2), tx(3) + tw(4), ["x3"]*4 + ["w4"]*4, [])
    pend = []
    for gi in range(3, 12):
        need([f"w{gi}", f"x{G[gi][1]}"])
        had = len(pend) >= 6
        if gi == 5: pend += [t for n in range(4, 8) for t in conv(n)]
        if gi == 8: pend += [t for n in range(4) for t in conv(n)]
        rd = tw(gi + 2) if gi + 2 < 12 else []
        pend = emit(tm(gi), rd, [f"w{gi+2}"]*4, pend, skip=(3 if gi == 5 else (3 if gi == 8 and not had else 0)))
    if OPT["pst"] == "0": stamp(a, 2)
    for t in pend: a(t)
    a("s_nop 1")
    a("s_cmp_lg_u32 s22, 0")
    a("s_cselect_b32 s18, 0, s18")
    for n in (8, 10, 9, 11):
        for t in conv(n): a(t)
    a.lab("L1_done")
    a("s_setprio 0")
    a(f"v_mov_b32 v200, v{VST}")
    a("s_mov_b32 s92, s40")
    a("s_mov_b32 s93, s41")
    a("s_mov_b32 s94, s42")
    a("s_mov_b32 s24, s26")
    return [(seg, off) for seg, _, _, off in jobs]

def kperm(rho):
    return ((rho >> 2) & 1) * 16 + (rho >> 3) * 4 + (rho & 3)

SLOTS = [131072, 0, 65536, 32768, 98304]

def k2(a, jobs):
    N = NAME + "_kernel"
    VL16, VKA, VVA, VIDX, VM, VT, VKL = 1, 2, 3, 4, 5, 6, 7
    ONES = 8; Q = [12, 20]; NEG = [28, 44]; O = [60, 76]; L = [92, 96]; KB = [100, 108]; VB = [116, 124]; S = [132, 148, 164, 180]
    NV = 256
    PF = OPT["pf3"] == "1"
    def sm32(d, av, b): return f"v_smfmac_f32_32x32x32_bf16 {vr(d,16)}, {vr(av)}, {vr(b,8)}, v{VIDX}"
    def sm16(l, b): return f"v_smfmac_f32_16x16x64_bf16 {vr(l)}, {vr(ONES)}, {vr(b,8)}, v{VIDX}"
    def ld(d, soff, off=0, v=VL16): a(f"buffer_load_dwordx4 {vr(d)}, v{v}, s[8:11], {soff} offen offset:{off} sc1")
    def xhalf_max():
        a(f"v_max_f32 v{VM}, v{VM}, v{VT}")
        a("s_nop 0")
        a(f"v_mov_b32 v{VT}, v{VM}")
        a("s_nop 1")
        a(f"v_permlane32_swap_b32 v{VM}, v{VT}")
        a("s_nop 1")
        a(f"v_max_f32 v{VM}, v{VM}, v{VT}")
    def maxof(vals):
        a(f"v_max3_f32 v{VM}, v{vals[0]}, v{vals[1]}, v{vals[2]}")
        a(f"v_max3_f32 v{VT}, v{vals[3]}, v{vals[4]}, v{vals[5]}")
        for i in range(6, len(vals) - 2, 4):
            a(f"v_max3_f32 v{VM}, v{VM}, v{vals[i]}, v{vals[i+1]}")
            a(f"v_max3_f32 v{VT}, v{VT}, v{vals[i+2]}, v{vals[i+3]}")
        a(f"v_max3_f32 v{VM}, v{VM}, v{vals[-2]}, v{vals[-1]}")
        xhalf_max()
    def finish(soff, off, T, o, l):
        a(f"v_rcp_f32 v{VT}, v{l}")
        a("s_nop 0")
        for i in range(16): a(f"v_mul_f32 v{o+i}, v{o+i}, v{VT}")
        for i in range(8): a(f"v_cvt_pk_bf16_f32 v{T+i}, v{o+2*i}, v{o+2*i+1}")
        a(f"buffer_store_dwordx4 {vr(T)}, v{VL16}, s[8:11], {soff} offen{OPT['st2']}")
        a(f"buffer_store_dwordx4 {vr(T+4)}, v{VL16}, s[8:11], {soff} offen offset:1024{OPT['st2']}")
    def consts():
        a(f"v_mov_b32 v{VIDX}, 0xdddddddd")
        a("v_bfe_u32 v5, v0, 2, 1")
        a("v_cmp_eq_u32 vcc, 0, v5")
        a("v_mov_b32 v6, 0x3f803f80")
        a("s_nop 0")
        a(f"v_cndmask_b32 v{ONES}, 0, v6, vcc")
        a(f"v_cndmask_b32 v{ONES+1}, 0, v6, vcc")
        a(f"v_cndmask_b32 v{ONES+2}, v6, 0, vcc")
        a(f"v_cndmask_b32 v{ONES+3}, v6, 0, vcc")
    a("s_lshr_b32 s60, s21, 4")
    a("s_mul_i32 s22, s60, 24")
    a("s_add_u32 s22, s22, 16")
    a("s_load_dwordx2 s[6:7], s[0:1], s22")
    a("s_load_dwordx2 s[58:59], s[0:1], 48")
    a("s_lshl_b32 s22, s20, 2")
    a("s_lshr_b32 s23, s21, 3")
    a("s_add_u32 s22, s22, s23")
    a("s_and_b32 s23, s21, 7")
    a(f"v_lshlrev_b32 v{VL16}, 4, v0")
    a("s_and_b32 s28, s24, 3")
    a("s_lshl_b32 s25, s23, 3")
    a("s_lshl_b32 s29, s28, 1")
    a("s_add_u32 s25, s25, s29")
    a("s_lshl_b32 s26, s22, 17")
    a("s_lshl_b32 s27, s25, 11")
    a("s_add_u32 s27, s27, s26")
    a("v_bfe_u32 v5, v0, 2, 1")
    a("v_and_b32 v6, 0x23, v0")
    a("v_lshl_or_b32 v6, v5, 4, v6")
    a("v_bfe_u32 v5, v0, 3, 2")
    a("v_lshl_or_b32 v6, v5, 2, v6")
    a(f"v_lshlrev_b32 v{VKL}, 4, v6")
    a(f"s_add_u32 s33, s26, {KF}")
    a("s_lshl_b32 s37, s25, 16")
    a("s_lshl_b32 s38, s22, 11")
    a("s_add_u32 s37, s37, s38")
    a(f"s_add_u32 s37, s37, {OF}")
    a("s_lshr_b32 s61, s20, 1")
    a("s_lshl_b32 s61, s61, 2")
    a("s_and_b32 s62, s21, 3")
    a("s_add_u32 s61, s61, s62")
    a("s_and_b32 s62, s20, 1")
    a("s_lshl_b32 s62, s62, 2")
    a("s_bfe_u32 s63, s21, 0x20002")
    a("s_add_u32 s62, s62, s63")
    a("s_lshl_b32 s63, s23, 5")
    a("s_add_u32 s63, s63, s22")
    a(f"s_lshl_b32 s63, s63, {FSH}")
    a(f"s_add_u32 s63, s63, {FL}")
    a("s_cmp_ge_u32 s24, 4")
    a("s_cbranch_scc1 L2_help")
    srd(a, 8, 98, WS_BYTES)
    consts()
    a("s_add_u32 s38, s37, 0x10000")
    a(f"v_mov_b32 v{VKA}, v{VKL}")
    a(f"v_add_u32 v{VVA}, 0x10000, v{VL16}")
    for i in range(40): a(f"v_mov_b32 v{O[0]+i}, 0")
    for i in range(16): a(f"v_mov_b32 v{S[3]+i}, 0")
    for i in range(8): a(f"v_mov_b32 v{VB[1]+i}, 0")
    a("s_mov_b32 s39, 0")
    a("s_mov_b32 s40, 0")
    a("s_waitcnt lgkmcnt(0)")
    if OPT["df"] == "1":
        a("s_cmp_lg_u32 s60, 0")
        a("s_cbranch_scc1 L2_x1")
    a("s_waitcnt vmcnt(0)")
    a.lab("L2_x1")
    a("s_barrier")
    if OPT["pst"] == "0": stamp(a, 3)
    a("s_barrier")
    if OPT["pst"] == "0": stamp(a, 4)
    if OPT["pst"] == "3": stamp(a, 5)
    ld(Q[0], "s27"); ld(KB[0], "s33", 0, VKL); ld(Q[0]+4, "s27", 1024); ld(KB[0]+4, "s33", 1024, VKL)
    ld(Q[1], "s27", 2048); ld(Q[1]+4, "s27", 3072)
    ld(KB[1], "s33", 2048, VKL); ld(KB[1]+4, "s33", 3072, VKL)
    a("s_waitcnt vmcnt(4)")
    a(mfma(S[0], KB[0], Q[0], "0")); a(mfma(S[0], KB[0]+4, Q[0]+4))
    a("s_waitcnt vmcnt(2)")
    if OPT["pst"] == "3": stamp(a, 2)
    a(mfma(S[1], KB[0], Q[1], "0")); a(mfma(S[1], KB[0]+4, Q[1]+4))
    a("s_nop 8")
    maxof([S[0]+r for r in range(16)])
    for i in range(16): a(f"v_sub_f32 v{NEG[0]+i}, 0, v{VM}")
    for i in range(16): a(f"v_sub_f32 v{S[0]+i}, v{S[0]+i}, v{VM}")
    maxof([S[1]+r for r in range(16)])
    for i in range(16): a(f"v_sub_f32 v{NEG[1]+i}, 0, v{VM}")
    a("s_waitcnt vmcnt(0)")
    if OPT["pst"] == "3": stamp(a, 3)
    a("s_barrier")
    if OPT["pst"] == "3": stamp(a, 4)
    if OPT["pst"] == "0": stamp(a, 5)
    if OPT["pst"] == "2":
        stamp(a, 2); a("s_memtime s[72:73]")
    if OPT["tlb"] == "1": a(f"buffer_load_dword v196, v{VL16}, s[8:11], s37 offen")
    if OPT["cp"] != "0": a(f"s_setprio {OPT['cp']}")
    a("s_cmp_eq_u32 s60, 0")
    a("s_cbranch_scc1 L2_it3")
    for n in range(8, 12):
        a(f"buffer_store_dwordx4 {vr(PK1+4*n)}, v200, s[8:11], s94 offen offset:{jobs[n][1]} sc1")
    a("s_branch L2_it3")

    def item(p, qk=True, rd=True, pre=None, post=None):
        n = (p - 3) % 16
        i = n >> 1; qt = n & 1
        Sn, Sc, Sp = S[(n+1) % 4], S[n % 4], S[(n-1) % 4]
        qn = (n+1) & 1; kbu = KB[((n+1) >> 1) % 2]
        qp = (n-1) & 1; vbu = VB[((n-1) >> 1) % 2]
        if qt == 1:
            kt = (i + 2) % 8
            r = [f"ds_read_b128 {vr(KB[i % 2])}, v{VKA} offset:{kt*2048}", f"ds_read_b128 {vr(KB[i % 2]+4)}, v{VKA} offset:{kt*2048+1024}"]
        else:
            r = [f"ds_read_b128 {vr(VB[i % 2])}, v{VVA} offset:{i*2048}", f"ds_read_b128 {vr(VB[i % 2]+4)}, v{VVA} offset:{i*2048+1024}"]
        if not rd or "r" in OPT["k2x"]: r = []
        ex = [f"v_exp_f32 v{Sc+k}, v{Sc+k}" for k in range(16)]
        post = list(post or [])
        seq = []
        if qk: seq.append(mfma(Sn, kbu, Q[qn], NEG[qn]))
        seq += post[0:1] + ex[0:3]
        if qk: seq.append(mfma(Sn, kbu+4, Q[qn]+4))
        seq += ["s_waitcnt lgkmcnt(0)"] + list(pre or []) + ex[3:6]
        seq.append(sm32(O[qp], vbu, Sp))
        seq += r[:1] + ex[6:9]
        seq.append(sm16(L[qp], Sp))
        seq += post[1:3] + ex[9:10]
        seq.append(sm32(O[qp], vbu+4, Sp+8))
        seq += r[1:] + ex[10:13]
        seq.append(sm16(L[qp], Sp+8))
        seq += post[3:] + ex[13:16]
        for t in seq: a(t)

    a.raw(".p2align 6")
    a.lab("L2_loop")
    item(0, pre=["s_waitcnt vmcnt(0)", "s_barrier", f"v_add_u32 v{VKA}, s40, v{VKL}"])
    item(1); item(2)
    a(f"v_add_u32 v{VVA}, s41, v{VL16}")
    a.lab("L2_it3")
    for p in range(3, 15): item(p)
    item(15, post=["s_add_u32 s40, s40, 16384", "s_and_b32 s40, s40, 0xffff", "s_add_u32 s41, s40, 0x10000", "s_add_u32 s39, s39, 1", "s_cmp_lt_u32 s39, 8"])
    if OPT["trip"] != "0":
        a("s_cselect_b32 s57, 1, 0")
        for n, tr in zip((2, 3, 4), OPT["trip"].split(",")):
            a(f"s_cmp_lg_u32 s39, {int(tr)+1}")
            a(f"s_cbranch_scc1 L2_t{n}")
            stamp(a, n)
            a.lab(f"L2_t{n}")
        a("s_cmp_lg_u32 s57, 0")
    a("s_cbranch_scc1 L2_loop")
    item(0, rd=False)
    item(1)
    item(2, qk=False, rd=False)
    a("s_nop 1")
    Sp = S[3]
    a(sm32(O[1], VB[1], Sp)); a(sm16(L[1], Sp)); a(sm32(O[1], VB[1]+4, Sp+8)); a(sm16(L[1], Sp+8))
    a("s_nop 4")
    if OPT["pst"] == "1": stamp(a, 5)
    if OPT["pst"] == "2":
        stamp(a, 3); a("s_memtime s[74:75]")
    for qt in range(2):
        a(f"v_mul_f32 v{VM}, 0, v{O[qt]}")
        for i in range(1, 16): a(f"v_fma_f32 v{VM}, v{O[qt]+i}, 0, v{VM}")
        a(f"v_add_f32 v{VM}, v{VM}, v{L[qt]}")
        a(f"v_mov_b32 v{VT}, {f2u(2.0**64):#x}")
        a(f"v_cmp_nlt_f32 vcc, v{VM}, v{VT}")
        a("s_nop 4")
        a(f"s_cbranch_vccnz L2_slow{qt}")
        a.lab(f"L2_fin{qt}")
        finish("s37" if qt == 0 else "s38", 0, S[1+qt], O[qt], L[qt])
    VOB, VOA, VWB, VWA, VST = 10, 11, 12, 16, 20
    F = [24, 56]; ACC = 88
    def Of(f, mt): return F[f] + 4*mt
    def Wf(f, nb): return F[f] + 16 + 4*nb
    def acc(mt, nb): return ACC + (mt*4 + nb)*4
    a("s_and_b32 s31, s24, 1")
    a("s_lshr_b32 s32, s24, 1")
    a("v_and_b32 v2, 15, v0")
    a("v_lshrrev_b32 v3, 4, v0")
    a("s_lshl_b32 s33, s31, 13")
    a("v_lshlrev_b32 v4, 4, v2")
    a("v_lshl_add_u32 v4, v3, 9, v4")
    a(f"v_add_u32 v{VOB}, s33, v4")
    a(f"v_add_u32 v{VOA}, {SLOTS[0]}, v{VOB}")
    a("v_bfe_u32 v4, v0, 2, 3")
    a("v_lshrrev_b32 v5, 5, v0")
    a("v_lshl_add_u32 v5, v5, 4, v4")
    a("v_lshlrev_b32 v5, 8, v5")
    a("v_and_b32 v6, 3, v0")
    a("v_lshl_add_u32 v5, v6, 3, v5")
    a("v_add_u32 v5, 16384, v5")
    a("s_lshl_b32 s33, s32, 2")
    a("v_xor_b32 v4, s33, v4")
    a(f"v_lshl_add_u32 v{VWB}, v4, 5, v5")
    for nb in range(1, 4): a(f"v_xor_b32 v{VWB+nb}, {nb*32}, v{VWB}")
    for nb in range(4): a(f"v_add_u32 v{VWA+nb}, {SLOTS[0]}, v{VWB+nb}")
    for i in range(64): a(f"v_mov_b32 v{ACC+i}, 0")
    for i in range(5): a(f"s_mov_b32 s{44+i}, {SLOTS[(i+1) % 5]}")
    a("s_mov_b32 s35, 0")
    srd(a, 16, 58, 8 << 20)
    a("s_lshl_b32 s40, s61, 19")
    a("s_lshl_b32 s41, s31, 18")
    a("s_add_u32 s40, s40, s41")
    a("s_lshl_b32 s41, s60, 11")
    a("s_add_u32 s40, s40, s41")
    a("s_lshl_b32 s41, s62, 8")
    a("s_add_u32 s40, s40, s41")
    a("s_lshl_b32 s41, s32, 7")
    a("s_add_u32 s40, s40, s41")
    def rdO(f, ks, mt): return [f"ds_read_b128 {vr(Of(f,mt))}, v{VOA} offset:{(mt>>1)*4096 + ks*2048 + (mt&1)*256}"]
    def rdW(f, ks, nb): return [f"ds_read_b64_tr_b16 {vr(Wf(f,nb),2)}, v{VWA+nb} offset:{ks*8192}",
                                f"ds_read_b64_tr_b16 {vr(Wf(f,nb)+2,2)}, v{VWA+nb} offset:{ks*8192+2048}"]
    def reads(f, ks):
        return [rdO(f, ks, 0)] + [rdW(f, ks, nb) for nb in range(4)] + [rdO(f, ks, mt) for mt in (1, 2, 3)]
    def mm(f):
        return [mfma16(acc(mt, nb), Wf(f, nb), Of(f, mt)) for mt in range(4) for nb in range(4)]
    a("s_waitcnt vmcnt(0)")
    if OPT["pst"] == "1": stamp(a, 2)
    a("s_barrier")
    if OPT["opf"] != "0":
        a("s_lshl_b32 s36, s60, 22")
        a("s_lshl_b32 s39, s61, 18")
        a("s_add_u32 s36, s36, s39")
        a("s_lshl_b32 s39, s24, 16")
        a("s_add_u32 s36, s36, s39")
        a("s_and_b32 s39, s62, 3")
        a("s_lshl_b32 s39, s39, 14")
        a("s_add_u32 s36, s36, s39")
        a(f"s_add_u32 s36, s36, {OF}")
        a("s_add_u32 s39, s36, 8192")
        a("v_lshlrev_b32 v21, 7, v0")
    a("s_barrier")
    if OPT["opf"] != "0":
        if OPT["opf"] == "2": a("s_sleep 3")
        a("buffer_load_dword v22, v21, s[8:11], s36 offen sc1")
        a("buffer_load_dword v23, v21, s[8:11], s39 offen sc1")
    a("s_barrier")
    if OPT["pst"] == "1": stamp(a, 3)
    flat = lambda g: [t for x in g for t in x]
    def block(f, rd, extra):
        M = mm(f)
        a("s_waitcnt lgkmcnt(3)")
        for i, m_ in enumerate(M):
            if i in (4, 8, 12): a(f"s_waitcnt lgkmcnt({min(15, (2 - (i//4 - 1)) + min(i, len(rd)))})")
            a(m_)
            if i < len(rd): a(rd[i])
            for t in extra.get(i, []): a(t)
    for t in flat(reads(0, 0)): a(t)
    a("s_branch L3_mid")
    a.raw(".p2align 6")
    a.lab("L3_loop")
    block(1, flat(reads(0, 0)), {})
    a.lab("L3_mid")
    block(0, flat(reads(1, 1)), {0: (["s_barrier"] if OPT["la"] == "4" else []) + ["s_mov_b32 s33, s44"], 15: (["s_waitcnt lgkmcnt(0)", "s_barrier"] if OPT["la"] == "5" else []), 1: ["s_mov_b32 s44, s45", "s_mov_b32 s45, s46"],
                                 2: ["s_mov_b32 s46, s47", "s_mov_b32 s47, s48"], 3: ["s_mov_b32 s48, s33"],
                                 5: ["s_add_u32 s35, s35, 1", "s_cmp_lt_u32 s35, 16"],
                                 9: [f"v_add_u32 v{VWA}, s33, v{VWB}"], 10: [f"v_add_u32 v{VWA+1}, s33, v{VWB+1}"],
                                 11: [f"v_add_u32 v{VWA+2}, s33, v{VWB+2}"], 12: [f"v_add_u32 v{VWA+3}, s33, v{VWB+3}"], 13: [f"v_add_u32 v{VOA}, s33, v{VOB}"]})
    a("s_cbranch_scc1 L3_loop")
    block(1, [], {})
    if OPT["pst"] == "1": stamp(a, 4)
    a("s_mul_i32 s41, s24, 9216")
    a("v_mul_u32_u24 v4, 144, v2")
    a("v_lshl_add_u32 v4, v3, 3, v4")
    a("v_add_u32 v4, s41, v4")
    a("v_lshrrev_b32 v5, 3, v0")
    a("v_mul_u32_u24 v6, 144, v5")
    a("v_and_b32 v7, 7, v0")
    a("v_lshl_add_u32 v6, v7, 4, v6")
    a("v_add_u32 v6, s41, v6")
    a("v_lshlrev_b32 v5, 12, v5")
    a(f"v_lshl_add_u32 v{VST}, v7, 4, v5")
    for mt in range(4):
        for nb in range(4):
            b = acc(mt, nb); t0 = F[0] + 2*(mt*4 + nb)
            a(f"v_cvt_pk_bf16_f32 v{t0}, v{b}, v{b+1}")
            a(f"v_cvt_pk_bf16_f32 v{t0+1}, v{b+2}, v{b+3}")
            a(f"ds_write_b64 v4, {vr(t0,2)} offset:{mt*16*144 + nb*32}")
        a(f"ds_read_b128 {vr(F[1]+8*mt)}, v6 offset:{mt*16*144}")
        a(f"ds_read_b128 {vr(F[1]+8*mt+4)}, v6 offset:{mt*16*144 + 8*144}")
        if mt >= 1:
            a("s_waitcnt lgkmcnt(6)")
            for h in range(2):
                a(f"buffer_store_dwordx4 {vr(F[1]+8*(mt-1)+4*h)}, v{VST}, s[16:19], s40 offen{OPT['st3']}")
                a(f"s_add_u32 s40, s40, {8*4096}")
    a("s_waitcnt lgkmcnt(0)")
    for h in range(2):
        a(f"buffer_store_dwordx4 {vr(F[1]+24+4*h)}, v{VST}, s[16:19], s40 offen{OPT['st3']}")
        a(f"s_add_u32 s40, s40, {8*4096}")
    dump(a, 0, "s24")
    a.lab("L2_end")
    a("s_endpgm")

    a.lab("L2_help")
    issued = []
    MC, MP, MP0, SC, SP, OB, LB = 12, 28, 44, 60, 76, [92, 112], [108, 128]
    QB = [132, 140]; KX = [148, 156, 164]; VX = [172, 180, 188]; VPF = 2
    a("s_lshl_b32 s34, s28, 12")
    a("s_add_u32 s35, s33, s34")
    a(f"s_add_u32 s36, s35, {VF-KF}")
    srd(a, 8, 98, WS_BYTES)
    def dma_stage(st):
        for base, so in ((0, "s35"), (65536, "s36")):
            a(f"s_add_u32 m0, s34, {base + (st % 4)*16384}")
            a("s_nop 0")
            for j in range(4):
                a(f"buffer_load_dwordx4 v{VL16}, s[8:11], {so} offen offset:{j*1024} sc1 lds")
            a(f"s_add_u32 {so}, {so}, 16384")
        issued.extend([f"s{st}"]*8)
    def late1():
        consts()
        a(f"s_add_u32 s28, s27, {4<<20}")
        a(f"s_add_u32 s29, s28, {KF}")
        a(f"s_add_u32 s30, s28, {VF}")
        a("s_cmp_eq_u32 s25, 0")
        a("s_cselect_b32 s32, 0, 2048")
        a("s_cselect_b64 s[44:45], 0, -1")
        a("s_sub_u32 s31, s29, s32")
        a("s_sub_u32 s32, s30, s32")
        a(f"s_add_u32 s37, s37, {4<<20}")
        a("s_add_u32 s38, s37, 0x10000")
        if PF:
            a("v_lshrrev_b32 v5, 3, v0")
            a("v_lshlrev_b32 v5, 11, v5")
            a("v_and_b32 v6, 7, v0")
            a(f"v_lshl_add_u32 v{VPF}, v6, 7, v5")
            a("v_cmp_gt_u32 vcc, 32, v0")
            a("v_mov_b32 v5, 0x7fffff00")
            a("s_and_b32 s47, s21, 15")
            a("s_lshl_b32 s47, s47, 17")
            a(f"v_cndmask_b32 v{VPF}, v5, v{VPF}, vcc")
            a("s_lshl_b32 s46, s34, 3")
            a("s_add_u32 s47, s47, s46")
            a("s_and_b32 s46, s20, 1")
            a("s_lshl_b32 s46, s46, 10")
            a("s_add_u32 s47, s47, s46")
    def pf():
        if PF:
            a(f"buffer_load_dword v{VPF+1}, v{VPF}, s[16:19], s47 offen{OPT['nto']}")
            a("s_add_u32 s47, s47, 8192")
    VWD0, VWD1, VFL, VFD = 196, 197, 198, 199
    def dma_w(st):
        sl = SLOTS[st % 5] + 16384
        a(f"s_add_u32 m0, s34, {sl}")
        a("s_nop 0")
        a(f"buffer_load_dwordx4 v{VWD0}, s[16:19], s40 offen lds")
        a("s_add_u32 m0, m0, 1024")
        a("s_nop 0")
        a(f"buffer_load_dwordx4 v{VWD1}, s[16:19], s40 offen lds")
        a("s_add_u32 m0, m0, 1024")
        a(f"s_add_u32 s40, s40, {64*2048}")
        a(f"buffer_load_dwordx4 v{VWD0}, s[16:19], s41 offen lds")
        a("s_add_u32 m0, m0, 1024")
        a("s_nop 0")
        a(f"buffer_load_dwordx4 v{VWD1}, s[16:19], s41 offen lds")
        a(f"s_add_u32 s41, s41, {64*2048}")
    def dma_o(st):
        a(f"s_add_u32 m0, s34, {SLOTS[st % 5]}")
        a("s_nop 0")
        for j in range(4):
            a(f"buffer_load_dwordx4 v{VL16}, s[8:11], s39 offen offset:{j*1024}{OPT['osc']} lds")
        a("s_add_u32 s39, s39, 4096")
    def poll(tag, voff, soff, srd_="s[8:11]", val=1, cmp_="ne"):
        a("s_mov_b32 s43, 0")
        a.lab(tag)
        a(f"buffer_load_dword v{VFD}, v{voff}, {srd_}, {soff} offen sc1")
        a("s_add_u32 s43, s43, 1")
        a("s_waitcnt vmcnt(0)")
        a(f"v_cmp_{cmp_}_u32 vcc, {val}, v{VFD}")
        a("s_cmp_gt_u32 s43, 0x200000")
        a(f"s_cbranch_scc1 {tag}x")
        a("s_nop 2")
        a(f"s_cbranch_vccz {tag}x")
        a(f"s_sleep {OPT['slp']}")
        a(f"s_branch {tag}")
        a.lab(tag + "x")
    def lanemask(r, prev):
        m = 0
        for l in range(64):
            q = l & 31; hh = l >> 5
            key = kperm(8*(r//4) + 4*hh + r % 4)
            d = q - key + (32 if prev else 0)
            if 0 <= d <= 14 and d % 2 == 0: m |= 1 << l
        return m
    def masks(prev):
        k = 0
        a(f"v_mov_b32 v{VT}, {NEGBIG:#x}")
        for i in range(20): a(f"v_mov_b32 v{OB[prev]+i}, 0")
        for r in range(16):
            m = lanemask(r, prev)
            sp = 48 + 2*(k % 4); k += 1
            a(f"s_mov_b32 s{sp}, {m & 0xffffffff:#x}")
            a(f"s_mov_b32 s{sp+1}, {m >> 32:#x}")
            a(f"v_cndmask_b32 v{(MP if prev else MC)+r}, v{VT}, 0, s[{sp}:{sp+1}]")
            if prev: a(f"v_cndmask_b32 v{MP0+r}, v{VT}, v{MP+r}, s[44:45]")
    def bcomp(t):
        keep = a.l; a.l = []
        kc, kp, vc, vp = KX[t+1], KX[t], VX[t+1], VX[t]
        ob, lb = OB[t], LB[t]
        a(mfma(SC, kc, QB[t], MC)); a(mfma(SP, kp, QB[t], MP0 if t == 0 else MP))
        a(mfma(SC, kc+4, QB[t]+4)); a(mfma(SP, kp+4, QB[t]+4))
        a("s_nop 10")
        vals = [SC+r for r in range(16)] + [SP+r for r in range(16)]
        maxof(vals)
        for v in vals: a(f"v_sub_f32 v{v}, v{v}, v{VM}")
        for v in vals: a(f"v_exp_f32 v{v}, v{v}")
        a("s_nop 1")
        a(sm32(ob, vc, SC)); a(sm16(lb, SC)); a(sm32(ob, vc+4, SC+8)); a(sm16(lb, SC+8))
        a(sm32(ob, vp, SP)); a(sm16(lb, SP)); a(sm16(lb, SP+8)); a(sm32(ob, vp+4, SP+8))
        a("s_nop 12")
        finish("s37" if t == 0 else "s38", 0, QB[t], ob, lb)
        out = a.l; a.l = keep
        return out
    work = [] if "B" in OPT["k2x"] else bcomp(0) + bcomp(1)
    def cost(t): return 2 if "v_exp" in t else (3 if "mfma" in t else 1)
    tot = sum(cost(t) for t in work)
    slots = [int(c) for c in OPT["bslots"]]
    chunks = {b: [] for b in range(8)}
    acc_ = 0
    for t in work:
        chunks[slots[min(len(slots) - 1, acc_ * len(slots) // tot)]].append(t)
        acc_ += cost(t)
    def psetup():
        a("v_lshrrev_b32 v5, 4, v0")
        a("v_and_b32 v199, 15, v0")
        a(f"v_lshlrev_b32 v{VWD0}, 1, v5")
        a(f"v_xor_b32 v199, v199, v{VWD0}")
        a("v_lshlrev_b32 v199, 4, v199")
        a(f"v_lshl_add_u32 v{VWD0}, v5, 11, v199")
        a(f"v_xor_b32 v{VWD1}, 128, v{VWD0}")
        a(f"v_add_u32 v{VWD1}, 8192, v{VWD1}")
        a(f"v_and_b32 v{VFL}, 31, v0")
        a(f"v_lshlrev_b32 v{VFL}, {FSH}, v{VFL}")
        a("s_lshl_b32 s39, s60, 22")
        a("s_lshl_b32 s40, s61, 18")
        a("s_add_u32 s39, s39, s40")
        a("s_lshl_b32 s40, s34, 4")
        a("s_add_u32 s39, s39, s40")
        a(f"s_add_u32 s39, s39, {OF}")
        a("s_lshl_b32 s40, s34, 3")
        a("s_lshl_b32 s41, s62, 8")
        a("s_add_u32 s40, s40, s41")
        a("s_add_u32 s41, s40, 16384")
        a("s_lshl_b32 s42, s61, 1")
        a("s_lshr_b32 s43, s34, 13")
        a("s_add_u32 s42, s42, s43")
        a("s_add_u32 s42, s42, 8")
        a("s_lshr_b32 s43, s61, 1")
        a("s_cmp_eq_u32 s60, 0")
        a("s_cselect_b32 s42, s43, s42")
        a(f"s_lshl_b32 s42, s42, {5+FSH}")
        a(f"s_add_u32 s42, s42, {FL}")
        a("s_lshl_b32 s89, s25, 4")
        a("s_add_u32 s89, s89, s22")
        a("s_add_u32 s89, s89, 256")
        a(f"s_lshl_b32 s89, s89, {FSH}")
        a(f"s_add_u32 s89, s89, {FL}")
    def publish(base, tag=None):
        if tag:
            a("s_cmp_lg_u32 s24, 4")
            a(f"s_cbranch_scc1 {tag}")
        a("s_mov_b64 exec, 1")
        a(f"buffer_store_dword v204, v203, s[8:11], {base} offen sc1")
        a("s_mov_b64 exec, -1")
        if tag: a.lab(tag)
        else: issued.append("f")
    def wait_for(tags):
        idx_ = [i for i, x in enumerate(issued) if x in tags]
        if idx_: a(f"s_waitcnt vmcnt({min(63, len(issued) - 1 - max(idx_))})")
    a("v_mov_b32 v203, 0")
    a("v_mov_b32 v204, 1")
    a("v_and_b32 v205, 7, v0")
    a(f"v_lshlrev_b32 v205, {FSH}, v205")
    a("s_lshr_b32 s84, s22, 1")
    a(f"s_lshl_b32 s84, s84, {3+FSH}")
    a(f"s_add_u32 s84, s84, {FL + (1280 << FSH)}")
    def late2():
        a("s_lshr_b32 s85, s22, 1")
        a("s_lshl_b32 s85, s85, 5")
        a("s_lshr_b32 s43, s25, 1")
        a("s_add_u32 s85, s85, s43")
        a("s_add_u32 s85, s85, 1407")
        a(f"s_lshl_b32 s85, s85, {FSH}")
        a(f"s_add_u32 s85, s85, {FL}")
        a("v_and_b32 v207, 1, v0")
        a("v_and_b32 v206, 1, s44")
        a("v_xor_b32 v206, 1, v206")
        a("v_or_b32 v207, v207, v206")
        a(f"v_lshlrev_b32 v207, {FSH}, v207")
    a("s_waitcnt vmcnt(0) lgkmcnt(0)")
    a("v_mov_b32 v202, v8")
    srd(a, 16, 6, 2 << 20)
    a("s_cmp_eq_u32 s60, 0")
    a("s_cbranch_scc1 L2_hA")
    BF = min(7, slots[-1] + 1)
    QS = [int(c) for c in OPT["qs"]]
    QP = int(OPT["qp"]); BL = int(OPT["bl"])
    PX = 132
    ADP = OPT["adp"] == "1"
    XB = OPT["xb"] != "0"; XL = [int(c) for c in OPT["xb"]]
    for typ in ("B", "A"):
        T_ = "L2" + typ
        issued[:] = []
        if typ == "A":
            a.lab("L2_hA")
            a("s_barrier")
            publish("s95", T_ + "_p1")
        else:
            if OPT["df"] == "2":
                for n in range(12): a(f"ds_read_b128 {vr(PX+4*n)}, v201 offset:{n*1024}")
            if OPT["df"] == "0": publish("s95")
        a("s_cmp_lg_u32 s24, 5")
        a(f"s_cbranch_scc1 {T_}_qx")
        a("v_cmp_gt_u32 vcc, 0x100, v202")
        a("s_nop 4")
        a(f"s_cbranch_vccz {T_}_cx")
        poll(T_ + "_c", 203, "0", "s[80:83]", "0x100", "gt")
        if OPT["xslp"] != "0": a(f"s_sleep {OPT['xslp']}")
        poll(T_ + "_q", 205, "s84")
        if typ == "B": a("s_barrier")
        if OPT["hp0"] == "1": a("s_setprio 3")
        a("s_barrier")
        dma_stage(0)
        if OPT["hp0"] == "1": a("s_setprio 0")
        a("s_waitcnt vmcnt(0)")
        a("s_barrier")
        dma_stage(1); dma_stage(2)
        qst = []
        if typ == "B":
            for n, (seg, off) in enumerate(jobs if OPT["df"] != "0" else []):
                qst.append(f"buffer_store_dwordx4 {vr(PK1+4*n)}, v200, s[8:11], s{92+seg} offen offset:{off} sc1")
            for n, (seg, off) in enumerate(jobs if OPT["df"] == "2" else []):
                qst.append(f"buffer_store_dwordx4 {vr(PX+4*n)}, v200, s[8:11], s{86+seg} offen offset:{off} sc1")
            for sg in range(3): a(f"s_sub_u32 s{86+sg}, s{92+sg}, 0x20000")
        ORD = [2*x + h for x in [int(c) for c in OPT["xord"]] for h in range(2)]
        def sw(st):
            if typ == "A" and ADP:
                a(f"s_add_u32 s40, s87, {ORD[st]*64*2048}")
                a("s_add_u32 s41, s40, 16384")
            dma_w(st)
        def so(st):
            t = ORD[st]; tag = f"{T_}_n{st}"
            a(f"s_andn2_b32 s88, {3 << (2*t):#x}, s90")
            a(f"s_cbranch_scc0 {tag}x")
            a("s_mov_b32 s43, 0")
            a.lab(tag)
            a(f"buffer_load_dword v{VFD}, v{VFL}, s[8:11], s42 offen sc1")
            a("s_add_u32 s43, s43, 1")
            a("s_waitcnt vmcnt(0)")
            a(f"v_cmp_eq_u32 vcc, 1, v{VFD}")
            a("s_cmp_gt_u32 s43, 0x200000")
            a(f"s_cbranch_scc1 {tag}x")
            a("s_nop 2")
            a("s_mov_b32 s90, vcc_lo")
            a(f"s_andn2_b32 s88, {3 << (2*t):#x}, s90")
            a(f"s_cbranch_scc0 {tag}x")
            a(f"s_sleep {OPT['slp']}")
            a(f"s_branch {tag}")
            a.lab(tag + "x")
            a(f"s_add_u32 s39, s86, {t*4096}")
            dma_o(st); issued.extend([f"o{st}"]*4)
        def bload(tag):
            poll(tag, 207, "s85"); issued[:] = []
            for t in range(2): ld(QB[t], "s28", t*2048); ld(QB[t]+4, "s28", t*2048+1024)
            ld(KX[0], "s31", 0, VKL); ld(KX[0]+4, "s31", 1024, VKL)
            for t in range(2): ld(KX[t+1], "s29", t*2048, VKL); ld(KX[t+1]+4, "s29", t*2048+1024, VKL)
            ld(VX[0], "s32"); ld(VX[0]+4, "s32", 1024)
            for t in range(2): ld(VX[t+1], "s30", t*2048); ld(VX[t+1]+4, "s30", t*2048+1024)
            issued.extend(["B"]*16)
        if XB:
            chunks = {b: [] for b in range(8)}
            if typ == "A":
                for r_, (lo, hi) in enumerate(((XL[0], XL[1]), (XL[1], 7))):
                    wts = [int(OPT["xw"])] + [10]*(hi - lo - 1)
                    acc_ = 0
                    for t in work:
                        f_ = acc_ * sum(wts) / tot; j_ = 0
                        while j_ < len(wts) - 1 and f_ >= sum(wts[:j_+1]): j_ += 1
                        chunks[lo + j_].append(t); acc_ += cost(t)
        def qstores(b):
            k = [i for i, x in enumerate(QS) if x == b]
            per = -(-len(qst) // len(QS))
            for i in k:
                for t in qst[i*per:(i+1)*per]:
                    a(t); issued.append("q")
        qstores(0)
        late1(); late2()
        if not (XB and typ == "B"): masks(0)
        for b in range(1, 8):
            wait_for([f"s{b}"])
            a("s_barrier")
            if b <= 5: dma_stage(b + 2)
            qstores(b)
            if b == QP and typ == "B" and OPT["df"] != "0":
                wait_for(["q"]); publish("s95")
            if b == 1:
                if not (XB and typ == "B"): masks(1)
                psetup()
            if XB:
                if typ == "A":
                    if b in (XL[1], 7):
                        wait_for(["st"]); publish("s89")
                    if b == XL[1]:
                        for r_ in ("s28", "s29", "s30", "s31", "s32"): a(f"s_add_u32 {r_}, {r_}, 0x40000")
                        for r_ in ("s37", "s38"): a(f"s_add_u32 {r_}, {r_}, 4096")
                        a(f"s_add_u32 s89, s89, {2 << FSH}")
                        a(f"s_add_u32 s85, s85, {32 << FSH}")
                    if b in XL:
                        bload(f"{T_}_b{b}")
                        if b == XL[1]:
                            for i in range(40): a(f"v_mov_b32 v{OB[0]+i}, 0")
                        wait_for(["B"])
            else:
                if b == BL: bload(T_ + "_b")
                if b == slots[0]: wait_for(["B"])
                if b == BF:
                    wait_for(["st"]); publish("s89")
            for c in OPT['pfs']:
                if int(c) == b and PF:
                    pf(); issued.append("p")
            if b == 5 and OPT["tlb"] == "1":
                srd(a, 12, 58, 8 << 20)
                a("v_lshlrev_b32 v206, 21, v0")
                a("buffer_load_dword v206, v206, s[12:15], 0 offen"); issued.append("p")
            if b >= 6:
                if b == 6:
                    if typ == "A" and ADP:
                        a("s_mov_b32 s86, s39")
                        a("s_mov_b32 s87, s40")
                    sw(0); issued.extend(["w0"]*4)
                sw(b - 5); issued.extend([f"w{b-5}"]*4)
            for t in chunks[b]:
                a.l.append(t)
                if "buffer_store" in t: issued.append("st")
        if typ == "B":
            if OPT['bslp'] != '0': a(f"s_sleep {OPT['bslp']}")
            poll(T_ + "_o", VFL, "s42"); issued[:] = []
            for st in range(3):
                dma_o(st); issued.extend([f"o{st}"]*4)
            a("s_barrier")
            publish("s63", T_ + "_p3")
            a("s_barrier")
            wait_for(["o0"])
            a("s_barrier")
            for st in (3, 4):
                dma_w(st); dma_o(st); issued.extend([f"w{st}"]*4 + [f"o{st}"]*4)
        elif not ADP:
            a("s_barrier")
            publish("s63", T_ + "_p3")
            dma_w(3); dma_w(4)
            a("s_cmp_lg_u32 s24, 5")
            a(f"s_cbranch_scc1 {T_}_ox")
            if OPT["aslp"] != "0": a(f"s_sleep {OPT['aslp']}")
            poll(T_ + "_o", VFL, "s42"); issued[:] = []
            a("s_barrier")
            for st in range(2):
                dma_o(st); issued.extend([f"o{st}"]*4)
            wait_for(["o0"])
            a("s_barrier")
            for st in range(2, 5):
                dma_o(st); issued.extend([f"o{st}"]*4)
        else:
            a("s_mov_b32 s90, 0")
            a("s_barrier")
            publish("s63", T_ + "_p3")
            a("s_barrier")
            so(0); so(1)
            wait_for(["o0"])
            a("s_barrier")
            so(2)
            for st in (3, 4):
                sw(st); issued.extend([f"w{st}"]*4); so(st)
        for t in range(15):
            wait_for([f"o{t+1}", f"w{t+1}"])
            a("s_barrier")
            if t + 5 < 16:
                if typ == "A" and ADP:
                    sw(t + 5); issued.extend([f"w{t+5}"]*4); so(t + 5)
                else:
                    dma_w(t + 5); dma_o(t + 5); issued.extend([f"w{t+5}"]*4 + [f"o{t+5}"]*4)
        for n in (2, 3, 4, 5): stamp(a, n)
        dump(a, 0, "s24")
        a("s_endpgm")

    s0 = S[0]
    for qt in range(2):
        a.lab(f"L2_slow{qt}")
        a(f"s_add_u32 s36, s26, {VF}")
        a(f"v_mov_b32 v{VM}, 0xff800000")
        a("s_mov_b32 s39, 0")
        a.lab(f"L2_s1{qt}")
        a("s_add_u32 s41, s33, s39")
        ld(KB[0], "s41", 0, VKL); ld(KB[0]+4, "s41", 1024, VKL)
        a("s_waitcnt vmcnt(0)")
        a(mfma(s0, KB[0], Q[qt], "0")); a(mfma(s0, KB[0]+4, Q[qt]+4))
        a("s_nop 15")
        for i in range(0, 16, 2): a(f"v_max3_f32 v{VM}, v{VM}, v{s0+i}, v{s0+i+1}")
        a("s_add_u32 s39, s39, 2048")
        a(f"s_cmp_lt_u32 s39, {64*2048}")
        a(f"s_cbranch_scc1 L2_s1{qt}")
        a(f"v_mov_b32 v{VT}, v{VM}")
        xhalf_max()
        for i in range(16): a(f"v_sub_f32 v{NEG[qt]+i}, 0, v{VM}")
        for i in range(16): a(f"v_mov_b32 v{O[qt]+i}, 0")
        for i in range(4): a(f"v_mov_b32 v{L[qt]+i}, 0")
        a("s_mov_b32 s39, 0")
        a.lab(f"L2_s2{qt}")
        a("s_add_u32 s41, s33, s39")
        ld(KB[0], "s41", 0, VKL); ld(KB[0]+4, "s41", 1024, VKL)
        a("s_add_u32 s41, s36, s39")
        ld(VB[0], "s41"); ld(VB[0]+4, "s41", 1024)
        a("s_waitcnt vmcnt(0)")
        a(mfma(s0, KB[0], Q[qt], NEG[qt])); a(mfma(s0, KB[0]+4, Q[qt]+4))
        a("s_nop 15")
        for i in range(16): a(f"v_exp_f32 v{s0+i}, v{s0+i}")
        a("s_nop 1")
        a(sm32(O[qt], VB[0], s0)); a(sm16(L[qt], s0)); a(sm32(O[qt], VB[0]+4, s0+8)); a(sm16(L[qt], s0+8))
        a("s_nop 7")
        a("s_add_u32 s39, s39, 2048")
        a(f"s_cmp_lt_u32 s39, {64*2048}")
        a(f"s_cbranch_scc1 L2_s2{qt}")
        a("s_nop 15")
        a(f"s_branch L2_fin{qt}")
    return kd(N, NV, 102), f"; @launch kernel={N} grid=(256,1,1) block=(512,1,1) lds=163840"


DOC = """;
; One persistent kernel, 256 workgroups x 8 waves, one workgroup per CU, three phases joined by flag hand-offs in d_ws
; (write-through stores -> vmcnt(0) -> flag; consumers poll with sc1 loads and read the data with sc1 loads; the flags are
;     results stored as MFMA operand fragments (q pre-scaled by log2(e)/sqrt(32)).
"""

def main():
    a = A()
    jobs = k1(a)
    desc, launch = k2(a, jobs)
    if OPT["single"] == "1": launch = "; @launch grid=(256,1,1) block=(512,1,1) lds=163840"
    hdr = open("cdna_kernels/" + NAME + ".s.ref").read().split("\n")
    top = [l for l in hdr if l.startswith(";") and "@launch" not in l and "Override" not in l and "grid=ceil" not in l]
    out = "\n".join(top) + "\n" + launch + "\n"
    out += DOC
    out += '.amdgcn_target "amdgcn-amd-amdhsa--gfx950"\n.text\n' + a.text()
    out += '.section .rodata,"a"\n' + desc
    open(sys.argv[1], "w").write(out)

main()
```
